```python
import torch

def _softmax(x, axis=-1):
    return torch.softmax(x, dim=axis)
def _gelu(x):
    return torch.nn.functional.gelu(x, approximate="tanh")
def _silu(x):
    return torch.nn.functional.silu(x)
def _sigmoid(x):
    return torch.sigmoid(x)
def _layernorm(x, axis=-1, eps=1e-5):
    m = x.mean(dim=axis, keepdim=True)
    v = x.var(dim=axis, keepdim=True, unbiased=False)
    return (x - m) / torch.sqrt(v + eps)
def _scatter_add(tgt, idx, src, axis=0):
    return tgt.clone().index_add_(axis, idx, src)
def _segment_sum(src, seg, n):
    out = torch.zeros((n,) + src.shape[1:], dtype=src.dtype)
    return out.index_add_(0, seg, src)
def _pad(x, pw):
    flat = tuple(v for pair in reversed(pw) for v in pair)
    return torch.nn.functional.pad(x, flat)

kernel_name = 'concat_heads__sliding_block__linear_attn_block__prompt'

def setup_inputs():

    _w = (lambda a: (lambda t: t.to(torch.bfloat16) if t.is_floating_point() else t)(torch.as_tensor(a)))
    def _A_setup():
        B, S, D = 1, 2048, 640
        return {
            "x": _w((lambda *s: torch.randn(*s, dtype=torch.bfloat16) * 0.2)(B, S, D)),
            "wqkv": _w((lambda *s: torch.randn(*s, dtype=torch.bfloat16) * 0.2)(D, 3 * D)),
            "wo": _w((lambda *s: torch.randn(*s, dtype=torch.bfloat16) * 0.05)(D, D)),
        }
    _A_in = _A_setup()

    def _B_setup():
        B, S, D = 1, 2048, 640
        return {
            "x": _w((lambda *s: torch.randn(*s, dtype=torch.bfloat16) * 0.05)(B, S, D)),
            "wqkv": _w((lambda *s: torch.randn(*s, dtype=torch.bfloat16) * 1.6)(D, 3 * D)),
            "wo": _w((lambda *s: torch.randn(*s, dtype=torch.bfloat16) * 0.8)(D, D)),
        }
    _B_in = _B_setup()

    return {
        "A_x": _A_in["x"],
        "A_wqkv": _A_in["wqkv"],
        "A_wo": _A_in["wo"],
        "B_x": _B_in["x"],
        "B_wqkv": _B_in["wqkv"],
        "B_wo": _B_in["wo"],
    }

def reference(A_x, A_wqkv, A_wo, B_x, B_wqkv, B_wo):
    def _A_ref(x, wqkv, wo):
        B, S, D = x.shape
        H = 32; Dh = D // H; W = 256
        qkv = (lambda x, *d: x.permute(*d))((x @ wqkv).reshape(B, S, 3, H, Dh), 2, 0, 3, 1, 4)
        q, k, v = qkv[0], qkv[1], qkv[2]
        scores = torch.einsum("bhqd,bhkd->bhqk", q, k) * (Dh ** -0.5)
        idx = torch.arange(S)
        mask = (idx[:, None] - idx[None, :] >= 0) & (idx[:, None] - idx[None, :] < W)
        scores = torch.where(mask[None, None], scores, -1e9)
        p = _softmax(scores, axis=-1)
        o = torch.einsum("bhqk,bhkd->bhqd", p, v)
        return (lambda x, *d: x.permute(*d))(o, 0, 2, 1, 3).reshape(B, S, D) @ wo

    def _B_ref(x, wqkv, wo):
        B, S, D = x.shape
        H = 32; Dh = D // H
        qkv = (lambda x, *d: x.permute(*d))((x @ wqkv).reshape(B, S, 3, H, Dh), 2, 0, 3, 1, 4)
        q, k, v = qkv[0], qkv[1], qkv[2]
        phi = lambda t: torch.where(t > 0, t + 1, torch.exp(t)) + 1e-6
        pq, pk = phi(q), phi(k)
        kv = torch.einsum("bhsd,bhse->bhde", pk, v)
        z = torch.einsum("bhsd->bhd", pk)
        num = torch.einsum("bhqd,bhde->bhqe", pq, kv)
        den = torch.einsum("bhqd,bhd->bhq", pq, z)[..., None] + 1e-6
        o = num / den
        return (lambda x, *d: x.permute(*d))(o, 0, 2, 1, 3).reshape(B, S, D) @ wo

    a = _A_ref(A_x, A_wqkv, A_wo)
    b = _B_ref(B_x, B_wqkv, B_wo)
    return torch.concatenate([a, b], axis=-1)
```

```python
import re
class Asm:
    def __init__(self):
        self.lines = []
        self.nlab = 0
    def __call__(self, s):
        if s is None: return
        m = re.search(r"offset:(\d+)", s)
        if m:
            n = int(m.group(1))
            if s.startswith("buffer_"): assert n < 4096, s
            elif s.startswith("ds_"): assert n < 65536, s
            elif s.startswith("global_"): assert n < 4096, s
        self.lines.append("    " + s)
    def c(self, s):
        self.lines.append("    ; " + s)
    def label(self, name):
        self.lines.append(name + ":")
    def newlabel(self, base):
        self.nlab += 1
        return "L_%s_%d" % (base, self.nlab)
    def text(self):
        return "\n".join(self.lines) + "\n"

def vr(base, n=1):
    return "v%d" % base if n == 1 else "v[%d:%d]" % (base, base + n - 1)
def sr(base, n=1):
    return "s%d" % base if n == 1 else "s[%d:%d]" % (base, base + n - 1)
```

```python
import sys, struct
from asmlib import Asm, vr, sr

WS_KV   = 0x0000000
WS_Q    = 0x0500000
WS_O    = 0x0A00000
WS_PART = 0x0F00000
WS_FLAG = 0x1000000
WS_STAMP = 0x1080000
WS_SIZE = 0x1100000
O_BR = 128 * 20480

STAMPS = False
STAMPSET = 0
PF = True
ABL = set()

S_X, S_W, S_WS, S_OUT, S_WO = 24, 28, 32, 36, 40
S_WOB = 44
S_BR, S_R, S_G, S_WV, S_RG, S_CS = 48, 49, 50, 51, 52, 53
S_T0, S_T1, S_T2, S_T3, S_T4, S_T5 = 54, 55, 56, 57, 58, 59
S_DB, S_OFF = 60, 61
S_M0, S_M1 = 62, 64
S_M2 = 66
S_MASK = 68
S_I = 22
S_U0, S_U1 = 23, 100
S_U2 = 101
S_ST = 4

V_IMG, V_LANE, V_N, V_KG = 0, 1, 2, 3
V_DMA = 10
V_XA = 15
V_WA = 19
V_PF = 29
V_XT = 32
V_WB0 = 40
V_WB1 = 60
V_ACC = 80
V_ACC2 = 120
V_XP = 160
V_DMA2 = 240
V_PFD = 245
V_WA2 = 246

LDS_W = 65536
XSLOT, WSLOT = 16384, 20480
LOG2E = 1.4426950408889634
QSCALE = LOG2E / (20.0 ** 0.5)

def f2u(x): return struct.unpack("<I", struct.pack("<f", x))[0]

def mfma16(d, x, y, c=None):
    cs = vr(d, 4) if c is None else c
    return "v_mfma_f32_16x16x32_bf16 %s, %s, %s, %s" % (vr(d, 4), vr(x, 4), vr(y, 4), cs)
def mfma32(d, x, y, c=None):
    cs = vr(d, 16) if c is None else c
    return "v_mfma_f32_32x32x16_bf16 %s, %s, %s, %s" % (vr(d, 16), vr(x, 4), vr(y, 4), cs)

def emit(a, item):
    if callable(item): item(a)
    elif isinstance(item, (list, tuple)):
        for x in item: emit(a, x)
    else: a(item)

def weave(a, main, fill, lead=0):
    fill = list(fill)
    for x in fill[:lead]: emit(a, x)
    fill = fill[lead:]
    n, m, done = len(main), len(fill), 0
    for i, x in enumerate(main):
        emit(a, x)
        want = (i + 1) * m // n
        while done < want:
            emit(a, fill[done]); done += 1

NST = 8
def stamp(a, i, real=False):
    if not STAMPS: return
    assert i < NST
    a("s_memtime s[%d:%d]" % (S_ST + 2 * i, S_ST + 2 * i + 1))
def stamp_store(a, kidx):
    if not STAMPS: return
    a("s_memrealtime s[20:21]")
    a("s_waitcnt lgkmcnt(0)")
    a("s_lshl_b32 s%d, s2, 3" % S_T0)
    a("s_add_u32 s%d, s%d, s%d" % (S_T0, S_T0, S_WV))
    a("s_lshl_b32 s%d, s%d, 6" % (S_T0, S_T0))
    a("s_add_u32 s%d, s%d, %d" % (S_T0, S_T0, WS_STAMP + kidx * 0x20000))
    a("s_mov_b64 exec, 1")
    a("v_mov_b32 v4, 0")
    for i in range(NST):
        a("v_mov_b32 v5, s%d" % (S_ST + 2 * i))
        a("buffer_store_dword v5, v4, s[%d:%d], s%d offen offset:%d" % (S_WS, S_WS + 3, S_T0, i * 4))
    a("v_mov_b32 v5, s20")
    a("buffer_store_dword v5, v4, s[%d:%d], s%d offen offset:%d" % (S_WS, S_WS + 3, S_T0, 15 * 4))
    a("v_mov_b32 v5, s%d" % S_U2)
    a("buffer_store_dword v5, v4, s[%d:%d], s%d offen offset:%d" % (S_WS, S_WS + 3, S_T0, 14 * 4))
    a("v_mov_b32 v5, s%d" % S_U1)
    a("buffer_store_dword v5, v4, s[%d:%d], s%d offen offset:%d" % (S_WS, S_WS + 3, S_T0, 13 * 4))
    a("s_mov_b64 exec, -1")

def entry(a, endlab, nwg=256):
    a("s_cmp_ge_u32 s2, %d" % nwg)
    a("s_cbranch_scc1 %s" % endlab)
    if STAMPS:
        a("s_memrealtime s[100:101]")
        a("s_memtime s[62:63]")
    a("s_load_dwordx16 s[4:19], s[0:1], 0")
    a("s_load_dwordx2 s[20:21], s[0:1], 64")
    a("s_and_b32 s%d, s2, 7" % S_T0)
    a("s_lshr_b32 s%d, s2, 3" % S_I)
    a("s_and_b32 s%d, s%d, 1" % (S_BR, S_T0))
    a("s_lshr_b32 s%d, s%d, 1" % (S_T2, S_T0))
    a("s_and_b32 s%d, s%d, 1" % (S_T3, S_T2))
    a("s_lshl_b32 s%d, s%d, 3" % (S_T3, S_T3))
    a("s_and_b32 s%d, s%d, 7" % (S_T4, S_I))
    a("s_add_u32 s%d, s%d, s%d" % (S_R, S_T3, S_T4))
    a("s_lshr_b32 s%d, s%d, 1" % (S_T3, S_T2))
    a("s_lshl_b32 s%d, s%d, 2" % (S_T3, S_T3))
    a("s_lshr_b32 s%d, s%d, 3" % (S_T4, S_I))
    a("s_add_u32 s%d, s%d, s%d" % (S_G, S_T3, S_T4))
    a("v_lshrrev_b32 v4, 6, v0")
    a("v_and_b32 v%d, 63, v0" % V_LANE)
    a("v_and_b32 v%d, 15, v0" % V_N)
    a("v_readfirstlane_b32 s%d, v4" % S_WV)
    a("v_lshrrev_b32 v%d, 4, v%d" % (V_KG, V_LANE))
    a("s_nop 3")
    a("s_and_b32 s%d, s%d, 3" % (S_RG, S_WV))
    a("s_lshr_b32 s%d, s%d, 2" % (S_CS, S_WV))

def srd(a, d, lo, hi, size):
    a("s_mov_b32 s%d, s%d" % (d, lo)); a("s_mov_b32 s%d, s%d" % (d + 1, hi))
    a("s_mov_b32 s%d, %d" % (d + 2, size)); a("s_mov_b32 s%d, 0x20000" % (d + 3))

def entry_srd(a):
    a("s_waitcnt lgkmcnt(0)")
    a("s_cmp_eq_u32 s%d, 0" % S_BR)
    a("s_cselect_b32 s%d, s4, s10" % S_X)
    a("s_cselect_b32 s%d, s5, s11" % (S_X + 1))
    a("s_mov_b32 s%d, 2621440" % (S_X + 2))
    a("s_mov_b32 s%d, 0x20000" % (S_X + 3))
    a("s_cselect_b32 s%d, s6, s12" % S_W)
    a("s_cselect_b32 s%d, s7, s13" % (S_W + 1))
    a("s_mov_b32 s%d, 2457600" % (S_W + 2))
    a("s_mov_b32 s%d, 0x20000" % (S_W + 3))
    srd(a, S_WS, 20, 21, WS_SIZE)
    srd(a, S_OUT, 16, 17, 5242880)
    srd(a, S_WO, 8, 9, 819200)
    srd(a, S_WOB, 14, 15, 819200)
    if STAMPS:
        a("s_mov_b32 s%d, s100" % S_U2)
        a("s_mov_b32 s%d, s62" % S_U1)

def minwrap(a, v, m, tmp):
    a("v_subrev_u32 v%d, %d, v%d" % (tmp, m, v))
    a("v_min_u32 v%d, v%d, v%d" % (v, v, tmp))

def pf_setup(a):
    a("v_and_b32 v4, 31, v%d" % V_LANE)
    a("v_lshrrev_b32 v5, 5, v%d" % V_LANE)
    a("s_lshr_b32 s%d, s%d, 3" % (S_T0, S_R))
    a("s_lshl_b32 s%d, s%d, 5" % (S_T0, S_T0))
    a("s_add_u32 s%d, s%d, s%d" % (S_T0, S_T0, S_I))
    a("s_mul_i32 s%d, s%d, %d" % (S_T0, S_T0, 32 * 1280))
    a("s_movk_i32 s%d, 1280" % S_T1)
    a("v_mul_u32_u24 v6, s%d, v4" % S_T1)
    a("v_lshl_add_u32 v6, v5, 7, v6")
    a("v_add_u32 v%d, s%d, v6" % (V_PF, S_T0))
    a("v_min_u32 v4, 19, v4")
    a("s_lshr_b32 s%d, s%d, 2" % (S_T0, S_G))
    a("s_mul_i32 s%d, s%d, 640" % (S_T0, S_T0))
    a("s_movk_i32 s%d, 3840" % S_T1)
    a("v_mul_u32_u24 v6, 13, v4"); a("v_lshrrev_b32 v6, 7, v6")
    a("v_mul_u32_u24 v7, 52, v4"); a("v_lshrrev_b32 v7, 8, v7")
    a("v_mul_u32_u24 v8, 5, v7"); a("v_sub_u32 v8, v4, v8")
    a("v_lshlrev_b32 v8, 7, v8")
    a("v_lshl_add_u32 v6, v5, 6, v6")
    a("s_lshl_b32 s%d, s%d, 1" % (S_T2, S_I))
    a("v_add_u32 v6, s%d, v6" % S_T2)
    a("v_mul_u32_u24 v6, s%d, v6" % S_T1)
    a("v_and_b32 v9, 1, v7")
    a("s_movk_i32 s%d, 1280" % S_T2)
    a("v_mul_u32_u24 v9, s%d, v9" % S_T2)
    a("v_add3_u32 v6, v6, v9, v8")
    a("s_add_u32 s%d, s%d, 1280" % (S_T2, S_T0))
    a("v_add_u32 v%d, s%d, v6" % (V_PF + 1, S_T2))
    a("v_lshl_add_u32 v7, v5, 7, v7")
    a("s_lshl_b32 s%d, s%d, 2" % (S_T2, S_I))
    a("v_add_u32 v7, s%d, v7" % S_T2)
    a("v_mul_u32_u24 v7, s%d, v7" % S_T1)
    a("v_add3_u32 v%d, v7, v8, s%d" % (V_PF + 2, S_T0))

def pf_issue(kind, idx, wave):
    def f(a):
        if not PF: return
        l = a.newlabel("pf")
        a("s_cmp_eq_u32 s%d, %d" % (S_WV, wave))
        a("s_cbranch_scc0 %s" % l)
        if kind == 'x':
            a("s_mov_b32 s%d, %d" % (S_OFF, idx * 256)); srd_ = S_X; v = V_PF
        elif kind == 'w':
            a("s_mov_b32 s%d, %d" % (S_OFF, idx * 128 * 3840)); srd_ = S_W; v = V_PF + 1
        else:
            a("s_mov_b32 s%d, %d" % (S_OFF, idx * 256 * 3840)); srd_ = S_W; v = V_PF + 2
        a("buffer_load_dword v%d, v%d, s[%d:%d], s%d offen" % (V_PFD, v, srd_, srd_ + 3, S_OFF))
        a.label(l)
    return f

def p1_dma_setup(a):
    lx, ld = a.newlabel("xrole"), a.newlabel("dmaset")
    a("s_cmp_eq_u32 s%d, 0" % S_CS)
    a("s_cbranch_scc0 %s" % lx)
    a("s_mul_i32 s%d, s%d, %d" % (S_T0, S_RG, 16 * 3840))
    a("s_mul_i32 s%d, s%d, 160" % (S_T1, S_G))
    a("s_add_u32 s%d, s%d, s%d" % (S_T0, S_T0, S_T1))
    a("s_add_u32 s%d, s%d, 1280" % (S_T1, S_T0))
    a("s_movk_i32 s%d, 3277" % S_T2)
    a("s_movk_i32 s%d, 3840" % S_T3)
    a("s_movk_i32 s%d, 24576" % S_T4)
    for j in range(5):
        p, kk, q, u, t = 4, 5, 6, 7, 8
        a("v_add_u32 v%d, %d, v%d" % (p, 64 * j, V_LANE))
        a("v_mul_u32_u24 v%d, s%d, v%d" % (kk, S_T2, p))
        a("v_lshrrev_b32 v%d, 16, v%d" % (kk, kk))
        a("v_mul_u32_u24 v%d, 20, v%d" % (q, kk))
        a("v_sub_u32 v%d, v%d, v%d" % (q, p, q))
        a("v_lshrrev_b32 v%d, 2, v%d" % (u, kk))
        a("v_and_b32 v%d, 2, v%d" % (u, u))
        a("v_sub_u32 v%d, v%d, v%d" % (u, q, u))
        a("v_add_u32 v%d, 20, v%d" % (u, u))
        minwrap(a, u, 20, t)
        a("v_mov_b32 v%d, v%d" % (q, u))
        minwrap(a, q, 10, t)
        a("v_sub_u32 v%d, v%d, v%d" % (u, u, q))
        a("v_mul_u32_u24 v%d, s%d, v%d" % (kk, S_T3, kk))
        a("v_lshl_add_u32 v%d, v%d, 4, v%d" % (kk, q, kk))
        a("v_lshl_add_u32 v%d, v%d, 7, v%d" % (t, u, kk))
        a("v_add_u32 v%d, s%d, v%d" % (V_DMA + j, S_T1, t))
        a("v_mul_u32_u24 v%d, s%d, v%d" % (t, S_T4, u))
        a("v_add3_u32 v%d, v%d, v%d, s%d" % (V_DMA2 + j, t, kk, S_T0))
    a("s_mul_i32 s%d, s%d, 5120" % (S_DB, S_RG))
    a("s_add_u32 s%d, s%d, %d" % (S_DB, S_DB, LDS_W))
    a("s_branch %s" % ld)
    a.label(lx)
    a("s_lshl_b32 s%d, s%d, 7" % (S_T0, S_R))
    a("s_lshl_b32 s%d, s%d, 5" % (S_T1, S_RG))
    a("s_add_u32 s%d, s%d, s%d" % (S_T0, S_T0, S_T1))
    a("s_mul_i32 s%d, s%d, 1280" % (S_T0, S_T0))
    a("s_movk_i32 s%d, 1280" % S_T1)
    a("v_lshrrev_b32 v4, 3, v%d" % V_LANE)
    a("v_and_b32 v5, 7, v%d" % V_LANE)
    a("v_xor_b32 v5, v5, v4")
    a("v_mul_u32_u24 v4, s%d, v4" % S_T1)
    a("v_lshl_add_u32 v4, v5, 4, v4")
    a("v_add_u32 v%d, s%d, v4" % (V_DMA, S_T0))
    a("s_lshl_b32 s%d, s%d, 12" % (S_DB, S_RG))
    a.label(ld)

def p1_dma_w(sig):
    def f(a):
        if 'nodma' in ABL and sig >= 3: return
        slot = sig % 4
        ld = a.newlabel("dw")
        a("s_cmp_eq_u32 s%d, 0" % S_CS)
        a("s_cbranch_scc0 %s" % ld)
        if sig < 10:
            a("s_mov_b32 s%d, %d" % (S_OFF, sig * 64 * 3840)); vb = V_DMA
        else:
            a("s_mov_b32 s%d, %d" % (S_OFF, (sig - 10) * 128 * 3840)); vb = V_DMA2
        for j in range(5):
            a("s_add_u32 m0, s%d, %d" % (S_DB, slot * WSLOT + j * 1024))
            a("s_nop 0")
            a("buffer_load_dwordx4 v%d, s[%d:%d], s%d offen lds" % (vb + j, S_W, S_W + 3, S_OFF))
        a.label(ld)
    return f

def p1_dma_x(sig):
    def f(a):
        if 'nodma' in ABL and sig >= 3: return
        if sig >= 10: return
        slot = sig % 4
        ld = a.newlabel("dx")
        a("s_cmp_eq_u32 s%d, 0" % S_CS)
        a("s_cbranch_scc1 %s" % ld)
        for j in range(4):
            a("s_add_u32 m0, s%d, %d" % (S_DB, slot * XSLOT + j * 1024))
            a("s_mov_b32 s%d, %d" % (S_OFF, sig * 128 + j * 10240))
            a("buffer_load_dwordx4 v%d, s[%d:%d], s%d offen lds" % (V_DMA, S_X, S_X + 3, S_OFF))
        a.label(ld)
    return f

def img_pos(a, dst, tmp):
    a("v_lshl_add_u32 v%d, v%d, 2, v%d" % (tmp, V_KG, V_N))
    a("v_and_b32 v%d, 15, v%d" % (tmp, tmp))
    a("v_lshl_add_u32 v%d, v%d, 4, v%d" % (tmp, V_KG, tmp))
    a("v_lshlrev_b32 v%d, 4, v%d" % (dst, tmp))

def p1_addr_setup(a):
    TMP = V_XT
    a("v_and_b32 v4, 7, v%d" % V_N)
    a("s_xor_b32 s%d, s%d, 1" % (S_T0, S_CS))
    for hf in range(2):
        ks = S_T0 if hf == 0 else S_CS
        a("s_lshl_b32 s%d, s%d, 2" % (S_T1, ks))
        a("v_add_u32 v5, s%d, v%d" % (S_T1, V_KG))
        a("v_xor_b32 v5, v5, v4")
        a("v_lshlrev_b32 v5, 4, v5")
        a("v_lshl_add_u32 v5, v%d, 7, v5" % V_N)
        for tp in range(2):
            tt = S_CS if tp == 0 else S_T0
            a("s_lshl_b32 s%d, s%d, 11" % (S_T1, tt))
            a("s_lshl_b32 s%d, s%d, 12" % (S_T2, S_RG))
            a("s_add_u32 s%d, s%d, s%d" % (S_T1, S_T1, S_T2))
            a("v_add_u32 v%d, s%d, v5" % (V_XA + hf * 2 + tp, S_T1))
    a("v_and_b32 v4, 3, v%d" % V_N)
    a("v_lshlrev_b32 v6, 3, v4")
    a("v_and_b32 v7, 1, v%d" % V_KG)
    a("v_lshlrev_b32 v7, 5, v7")
    a("v_lshrrev_b32 v8, 2, v%d" % V_N)
    a("v_lshl_add_u32 v8, v%d, 3, v8" % V_KG)
    a("s_movk_i32 s%d, 320" % S_T1)
    a("v_mul_u32_u24 v8, s%d, v8" % S_T1)
    a("v_add_u32 v8, %d, v8" % LDS_W)
    a("s_mul_i32 s%d, s%d, 160" % (S_T2, S_CS))
    a("s_mul_i32 s%d, s%d, 80" % (S_T3, S_CS))
    for T in range(5):
        if T < 4:
            a("s_add_u32 s%d, s%d, %d" % (S_T4, S_T2, 40 * T))
            a("s_add_u32 s%d, s%d, %d" % (S_T5, S_T3, (T >> 1) * 160 + 40 * (T & 1)))
            a("s_cmp_eq_u32 s%d, 0" % S_BR)
            a("s_cselect_b32 s%d, s%d, s%d" % (S_T4, S_T4, S_T5))
            a("v_add3_u32 v9, v6, v7, s%d" % S_T4)
        else:
            a("v_mul_u32_u24 v5, 40, v4")
            a("v_add_u32 v5, s%d, v5" % S_T2)
            a("v_lshrrev_b32 v9, 1, v4")
            a("s_movk_i32 s%d, 80" % S_T4)
            a("v_mul_u32_u24 v9, s%d, v9" % S_T4)
            a("v_mul_u32_u24 v%d, 40, v4" % TMP)
            a("v_add3_u32 v9, v9, v%d, s%d" % (TMP, S_T3))
            a("s_cmp_eq_u32 s%d, 0" % S_BR)
            a("s_cselect_b64 s[%d:%d], -1, 0" % (S_M0, S_M0 + 1))
            a("v_cndmask_b32_e64 v9, v9, v5, s[%d:%d]" % (S_M0, S_M0 + 1))
            a("v_add3_u32 v9, v9, v7, 32")
        minwrap(a, 9, 320, 5)
        a("v_add_u32 v9, v9, v8")
        a("s_mul_i32 s%d, s%d, 10240" % (S_T4, S_T0))
        a("v_add_u32 v%d, s%d, v9" % (V_WA + T, S_T4))
        a("s_mul_i32 s%d, s%d, 10240" % (S_T4, S_CS))
        a("v_add_u32 v%d, s%d, v9" % (V_WA + 5 + T, S_T4))
    a("s_mul_i32 s%d, s%d, 10240" % (S_T4, S_CS))
    a("v_add_u32 v8, s%d, v8" % S_T4)
    for seg in range(2):
        for T in range(5):
            if T < 4:
                a("s_movk_i32 s%d, %d" % (S_T4, seg * 160 + 40 * T))
                a("v_add3_u32 v9, v6, v7, s%d" % S_T4)
            else:
                a("v_mul_u32_u24 v9, 40, v4")
                a("s_movk_i32 s%d, %d" % (S_T4, seg * 160 + 32))
                a("v_add3_u32 v9, v9, v7, s%d" % S_T4)
            minwrap(a, 9, 320, 5)
            a("v_add_u32 v%d, v9, v8" % (V_WA2 + seg * 5 + T))
    img_pos(a, V_IMG, 4)

def p1_reads(s, hf):
    if 'noread' in ABL: return []
    slot = s % 4
    wb = V_WB0 if hf == 0 else V_WB1
    L = []
    for tp in range(2):
        dst = (V_XT + 4 * tp) if hf == 0 else (V_XP + (s * 2 + tp) * 4)
        L.append("ds_read_b128 %s, v%d offset:%d" % (vr(dst, 4), V_XA + hf * 2 + tp, slot * XSLOT))
    for T in range(5):
        for rd in range(2):
            L.append("ds_read_b64_tr_b16 %s, v%d offset:%d" % (vr(wb + 4 * T + 2 * rd, 2), V_WA + hf * 5 + T, slot * WSLOT + rd * 1280))
    return L

def p1_mfmas(s, hf, first):
    if 'nomfma' in ABL: return ["s_nop 0"]
    wb = V_WB0 if hf == 0 else V_WB1
    L = []
    for T in range(5):
        for tp in range(2):
            x = (V_XT + 4 * tp) if hf == 0 else (V_XP + (s * 2 + tp) * 4)
            L.append(mfma16(V_ACC + (tp * 5 + T) * 4, x, wb + 4 * T, "0" if first else None))
    return L

def p2_reads(u):
    v, seg = u >> 1, u & 1
    slot = (10 + v) % 4
    wb = V_WB0 if (u & 1) == 0 else V_WB1
    return ["ds_read_b64_tr_b16 %s, v%d offset:%d" % (vr(wb + 4 * T + 2 * rd, 2), V_WA2 + seg * 5 + T, slot * WSLOT + rd * 1280)
            for T in range(5) for rd in range(2)]

def p2_mfmas(u):
    wb = V_WB0 if (u & 1) == 0 else V_WB1
    return [mfma16(V_ACC2 + (tp * 5 + T) * 4, V_XP + (u * 2 + tp) * 4, wb + 4 * T, "0" if u == 0 else None)
            for T in range(5) for tp in range(2)]

def epi1_A(a, stflags=""):
    a("s_lshl_b32 s%d, s%d, 3" % (S_T0, S_CS))
    a("s_add_u32 s%d, s%d, s%d" % (S_T0, S_T0, S_G))
    a("s_lshl_b32 s%d, s%d, 6" % (S_T0, S_T0))
    a("s_lshl_b32 s%d, s%d, 2" % (S_T1, S_R))
    a("s_add_u32 s%d, s%d, s%d" % (S_T0, S_T0, S_T1))
    a("s_add_u32 s%d, s%d, s%d" % (S_T0, S_T0, S_RG))
    a("s_mul_i32 s%d, s%d, 5120" % (S_T0, S_T0))
    a("s_add_u32 s%d, s%d, %d" % (S_T0, S_T0, WS_KV))
    a("s_add_u32 s%d, s%d, 4096" % (S_T1, S_T0))
    a("s_nop 4")
    for T in range(5):
        e = V_ACC2 + T * 4
        for tp in range(2):
            d = V_ACC + (tp * 5 + T) * 4
            a("v_cvt_pk_bf16_f32 v%d, v%d, v%d" % (e + 2 * tp, d, d + 1))
            a("v_cvt_pk_bf16_f32 v%d, v%d, v%d" % (e + 2 * tp + 1, d + 2, d + 3))
        a("buffer_store_dwordx4 %s, v%d, s[%d:%d], s%d offen offset:%d %s" % (vr(e, 4), V_IMG, S_WS, S_WS + 3, S_T1 if T == 4 else S_T0, (T & 3) * 1024, stflags))
    a("s_nop 1")

def phi(a, regs, tmp):
    a("s_mov_b32 s%d, 0x%x" % (S_T4, f2u(LOG2E)))
    a("s_mov_b32 s%d, 0x%x" % (S_T5, f2u(1e-6)))
    for i in range(0, len(regs), 4):
        grp = regs[i:i + 4]
        for k, r in enumerate(grp): a("v_mul_f32 v%d, s%d, v%d" % (tmp + k, S_T4, r))
        for k, r in enumerate(grp): a("v_min_f32 v%d, 0, v%d" % (tmp + k, tmp + k))
        for k, r in enumerate(grp): a("v_exp_f32 v%d, v%d" % (tmp + k, tmp + k))
        for k, r in enumerate(grp): a("v_max_f32 v%d, 0, v%d" % (r, r))
        for k, r in enumerate(grp): a("v_add_f32 v%d, s%d, v%d" % (r, S_T5, r))
        for k, r in enumerate(grp): a("v_add_f32 v%d, v%d, v%d" % (r, r, tmp + k))

def piece_decode(a):
    a("s_and_b32 s%d, s%d, 1" % (S_T0, S_WV))
    a("s_lshl_b32 s%d, s%d, 6" % (S_T0, S_T0))
    a("v_add_u32 v5, s%d, v%d" % (S_T0, V_LANE))
    a("s_movk_i32 s%d, 2731" % S_T1)
    a("v_mul_u32_u24 v6, s%d, v5" % S_T1)
    a("v_lshrrev_b32 v6, 16, v6")
    a("v_mul_u32_u24 v7, 24, v6")
    a("v_sub_u32 v7, v5, v7")

def epi1_B(a, stflags=""):
    acc = lambda tp, T: V_ACC + (tp * 5 + T) * 4
    raw = V_WB0
    TMP = V_ACC2
    a("s_nop 7")
    for tp in range(2):
        for k in range(4):
            a("v_mov_b32 v%d, v%d" % (raw + tp * 4 + k, acc(tp, 4) + k))
    regs = []
    for T in (0, 1, 4):
        for tp in range(2):
            regs += [acc(tp, T) + k for k in range(4)]
    phi(a, regs, TMP)
    a("s_mov_b32 s%d, 0x00ff00ff" % S_M0)
    a("s_mov_b32 s%d, 0x00ff00ff" % (S_M0 + 1))
    for tp in range(2):
        for k in range(4):
            a("v_cndmask_b32_e64 v%d, v%d, v%d, s[%d:%d]" % (acc(tp, 4) + k, raw + tp * 4 + k, acc(tp, 4) + k, S_M0, S_M0 + 1))
    P = V_WB1
    for T in range(5):
        for tp in range(2):
            d = acc(tp, T)
            a("v_cvt_pk_bf16_f32 v%d, v%d, v%d" % (P + 4 * T + 2 * tp, d, d + 1))
            a("v_cvt_pk_bf16_f32 v%d, v%d, v%d" % (P + 4 * T + 2 * tp + 1, d + 2, d + 3))
    TB = V_WB0 + 8
    a("v_mov_b32 v%d, 0x3f803f80" % TMP)
    for k in range(4):
        a("v_cndmask_b32_e64 v%d, v%d, v%d, s[%d:%d]" % (TB + k, P + 16 + k, TMP, S_M0, S_M0 + 1))
    F0, F1, V0, V1, TA = P, P + 4, P + 8, P + 12, P + 16
    D = V_ACC
    a("s_nop 1")
    for i, (x, y) in enumerate([(F0, V0), (F1, V1), (F0, TB), (F1, TB), (TA, V0), (TA, V1), (TA, TB)]):
        a(mfma16(D + 4 * i, x, y, "0"))
    a("s_barrier")
    a("s_mul_i32 s%d, s%d, 7168" % (S_T0, S_WV))
    a("v_lshlrev_b32 v4, 4, v%d" % V_LANE)
    a("v_add_u32 v4, s%d, v4" % S_T0)
    a("s_nop 7")
    for i in range(7):
        a("ds_write_b128 v4, %s offset:%d" % (vr(D + 4 * i, 4), i * 1024))
    piece_decode(a)
    M = TMP
    a("s_lshr_b32 s%d, s%d, 1" % (S_T2, S_WV))
    a("s_and_b32 s%d, s%d, 1" % (S_T3, S_T2))
    a("s_lshr_b32 s%d, s%d, 1" % (S_T2, S_T2))
    a("s_lshl_b32 s%d, s%d, 2" % (S_T4, S_T3))
    a("s_sub_u32 s%d, s%d, 8" % (S_T4, S_T4))
    a("v_add_u32 v8, s%d, v7" % S_T4)
    a("v_cmp_gt_u32_e64 s[%d:%d], 20, v7" % (S_M0, S_M0 + 1))
    a("v_cmp_gt_u32_e64 s[%d:%d], 16, v7" % (S_M1, S_M1 + 1))
    a("v_cmp_gt_u32_e64 s[%d:%d], 4, v6" % (S_M2, S_M2 + 1))
    a("s_nop 1")
    a("v_cndmask_b32_e64 v8, 0, v8, s[%d:%d]" % (S_M0, S_M0 + 1))
    a("v_cndmask_b32_e64 v8, v8, v7, s[%d:%d]" % (S_M1, S_M1 + 1))
    a("v_mov_b32 v9, s%d" % S_T3)
    a("v_cndmask_b32_e64 v9, v9, v6, s[%d:%d]" % (S_M2, S_M2 + 1))
    a("v_lshl_add_u32 v8, v9, 4, v8")
    a("s_add_u32 s%d, s%d, 4" % (S_T4, S_T3))
    a("v_mov_b32 v9, s%d" % S_T4)
    a("v_mov_b32 v%d, s%d" % (M, S_T3))
    a("v_cndmask_b32_e64 v9, v9, v%d, s[%d:%d]" % (M, S_M2, S_M2 + 1))
    a("s_add_u32 s%d, s%d, 2" % (S_T4, S_T3))
    a("v_mov_b32 v%d, s%d" % (M, S_T4))
    a("v_cndmask_b32_e64 v%d, 6, v%d, s[%d:%d]" % (M, M, S_M2, S_M2 + 1))
    a("v_cndmask_b32_e64 v9, v%d, v9, s[%d:%d]" % (M, S_M1, S_M1 + 1))
    a("v_lshlrev_b32 v9, 10, v9")
    a("v_lshl_add_u32 v8, v8, 4, v9")
    a("s_mul_i32 s%d, s%d, %d" % (S_T4, S_T2, 4 * 7168))
    a("v_add_u32 v8, s%d, v8" % S_T4)
    a("v_cmp_gt_u32_e64 s[%d:%d], 21, v7" % (S_M0, S_M0 + 1))
    a("v_cmp_gt_u32_e64 s[%d:%d], 5, v6" % (S_M1, S_M1 + 1))
    a("s_waitcnt lgkmcnt(0)")
    a("s_barrier")
    a("s_and_b64 s[%d:%d], s[%d:%d], s[%d:%d]" % (S_M0, S_M0 + 1, S_M0, S_M0 + 1, S_M1, S_M1 + 1))
    a("v_min_u32 v8, %d, v8" % (8 * 7168 - 3 * 7168 - 16))
    E = V_ACC
    for rg in range(4):
        a("ds_read_b128 %s, v8 offset:%d" % (vr(E + 4 * rg, 4), rg * 7168))
    a("s_lshl_b32 s%d, s%d, 4" % (S_T0, S_G))
    a("s_add_u32 s%d, s%d, s%d" % (S_T0, S_T0, S_R))
    a("s_lshl_b32 s%d, s%d, 13" % (S_T0, S_T0))
    a("s_lshr_b32 s%d, s%d, 1" % (S_T1, S_WV))
    a("s_lshl_b32 s%d, s%d, 11" % (S_T1, S_T1))
    a("s_add_u32 s%d, s%d, s%d" % (S_T0, S_T0, S_T1))
    a("s_add_u32 s%d, s%d, %d" % (S_T0, S_T0, WS_PART))
    a("v_lshlrev_b32 v5, 4, v5")
    a("s_waitcnt lgkmcnt(0)")
    for k in range(4):
        a("v_add_f32 v%d, v%d, v%d" % (E + k, E + k, E + 4 + k))
        a("v_add_f32 v%d, v%d, v%d" % (E + 8 + k, E + 8 + k, E + 12 + k))
    for k in range(4):
        a("v_add_f32 v%d, v%d, v%d" % (E + k, E + k, E + 8 + k))
    a("s_mov_b64 exec, s[%d:%d]" % (S_M0, S_M0 + 1))
    a("buffer_store_dwordx4 %s, v5, s[%d:%d], s%d offen %s" % (vr(E, 4), S_WS, S_WS + 3, S_T0, stflags))
    a("s_mov_b64 exec, -1")

LDS_Q = 126976
def epi2(a, split):
    XCH = LDS_W
    a("s_barrier")
    a("s_mul_i32 s%d, s%d, 5120" % (S_T0, S_WV))
    a("s_add_u32 s%d, s%d, %d" % (S_T0, S_T0, XCH))
    a("v_lshlrev_b32 v4, 4, v%d" % V_LANE)
    a("v_add_u32 v5, s%d, v4" % S_T0)
    a("s_nop 4")
    for T in range(5):
        a("ds_write_b128 v5, %s offset:%d" % (vr(V_ACC2 + (5 + T) * 4, 4), T * 1024))
    a("s_xor_b32 s%d, s%d, 4" % (S_T0, S_WV))
    a("s_mul_i32 s%d, s%d, 5120" % (S_T0, S_T0))
    a("s_add_u32 s%d, s%d, %d" % (S_T0, S_T0, XCH))
    a("v_add_u32 v5, s%d, v4" % S_T0)
    a("s_waitcnt lgkmcnt(0)")
    a("s_barrier")
    R = V_WB0
    for T in range(5):
        a("ds_read_b128 %s, v5 offset:%d" % (vr(R + 4 * T, 4), T * 1024))
    a("s_waitcnt lgkmcnt(0)")
    regs = [V_ACC2 + T * 4 + k for T in range(5) for k in range(4)]
    for i, r in enumerate(regs):
        a("v_add_f32 v%d, v%d, v%d" % (r, r, R + i))
    lb, ld = a.newlabel("e2b"), a.newlabel("e2d")
    a("s_cmp_eq_u32 s%d, 0" % S_BR)
    a("s_cbranch_scc0 %s" % lb)
    a("s_mov_b32 s%d, 0x%x" % (S_T4, f2u(QSCALE)))
    for r in regs:
        a("v_mul_f32 v%d, s%d, v%d" % (r, S_T4, r))
    a("s_branch %s" % ld)
    a.label(lb)
    phi(a, regs, V_ACC)
    a.label(ld)
    for T in range(5):
        d = V_ACC2 + T * 4
        a("v_cvt_pk_bf16_f32 v%d, v%d, v%d" % (R + 2 * T, d, d + 1))
        a("v_cvt_pk_bf16_f32 v%d, v%d, v%d" % (R + 2 * T + 1, d + 2, d + 3))
    a("s_lshl_b32 s%d, s%d, 3" % (S_T1, S_CS))
    a("v_add_u32 v4, s%d, v%d" % (S_T1, V_IMG))
    if split:
        a("s_lshl_b32 s%d, s%d, 3" % (S_T0, S_BR))
        a("s_add_u32 s%d, s%d, s%d" % (S_T0, S_T0, S_G))
        a("s_lshl_b32 s%d, s%d, 6" % (S_T0, S_T0))
        a("s_lshl_b32 s%d, s%d, 2" % (S_T1, S_R))
        a("s_add_u32 s%d, s%d, s%d" % (S_T0, S_T0, S_T1))
        a("s_add_u32 s%d, s%d, s%d" % (S_T0, S_T0, S_RG))
        a("s_mul_i32 s%d, s%d, 5120" % (S_T0, S_T0))
        a("s_add_u32 s%d, s%d, %d" % (S_T0, S_T0, WS_Q))
        a("s_add_u32 s%d, s%d, 4096" % (S_T1, S_T0))
        for T in range(5):
            a("buffer_store_dwordx2 %s, v4, s[%d:%d], s%d offen offset:%d" % (vr(R + 2 * T, 2), S_WS, S_WS + 3, S_T1 if T == 4 else S_T0, (T & 3) * 1024))
    else:
        a("s_mul_i32 s%d, s%d, 5120" % (S_T0, S_RG))
        a("s_add_u32 s%d, s%d, %d" % (S_T0, S_T0, LDS_Q))
        a("v_add_u32 v4, s%d, v4" % S_T0)
        for T in range(5):
            a("ds_write_b64 v4, %s offset:%d" % (vr(R + 2 * T, 2), T * 1024))

def phase1(a, split):
    p1_dma_setup(a)
    pf_setup(a)
    entry_srd(a)
    emit(a, [p1_dma_w(0), p1_dma_x(0)])
    emit(a, [pf_issue('x', 1, 0), pf_issue('w', 1, 4), pf_issue('x', 2, 1), pf_issue('w', 2, 5)])
    emit(a, [p1_dma_w(1), p1_dma_x(1), p1_dma_w(2), p1_dma_x(2)])
    p1_addr_setup(a)
    a("s_waitcnt vmcnt(8)")
    a("s_barrier")
    stamp(a, 0)
    emit(a, p1_reads(0, 0))
    for s in range(10):
        a("s_waitcnt lgkmcnt(0)")
        weave(a, p1_mfmas(s, 0, s == 0), p1_reads(s, 1))
        if s == 8:
            lx, ld = a.newlabel("w8x"), a.newlabel("w8d")
            a("s_cmp_eq_u32 s%d, 0" % S_CS)
            a("s_cbranch_scc0 %s" % lx)
            a("s_waitcnt vmcnt(5)")
            a("s_branch %s" % ld)
            a.label(lx)
            a("s_waitcnt vmcnt(0)")
            a.label(ld)
        elif s == 9:
            a("s_waitcnt vmcnt(5)")
        else:
            a("s_waitcnt vmcnt(4)")
        a("s_waitcnt lgkmcnt(0)")
        a("s_barrier")
        pf = []
        if s == 0: pf = [pf_issue('x', 3, 2), pf_issue('w', 3, 6)]
        if s == 2: pf = [pf_issue('x', 4, 3), pf_issue('w', 4, 7)]
        if s == 4: pf = [pf_issue('q', 0, 0)]
        if s == 5: pf = [pf_issue('q', 1, 1)]
        if s == 6: pf = [pf_issue('q', 2, 2)]
        rd = p1_reads(s + 1, 0) if s < 9 else p2_reads(0)
        fill = rd[:3] + [p1_dma_w(s + 3)] + rd[3:9] + [[p1_dma_x(s + 3)] + pf] + rd[9:]
        weave(a, p1_mfmas(s, 1, False), fill)
    stamp(a, 1)
    lb, ld = a.newlabel("e1b"), a.newlabel("e1d")
    a("s_cmp_eq_u32 s%d, 0" % S_BR)
    a("s_cbranch_scc0 %s" % lb)
    epi1_A(a)
    a("s_branch %s" % ld)
    a.label(lb)
    a("s_waitcnt lgkmcnt(0)")
    epi1_B(a)
    emit(a, p2_reads(0))
    a.label(ld)
    stamp(a, 2)
    for u in range(10):
        a("s_waitcnt lgkmcnt(0)")
        fill = []
        if u + 1 < 10:
            if (u + 1) % 2 == 0:
                nxt = 10 + (u + 1) // 2
                a("s_waitcnt vmcnt(0)" if nxt >= 13 else "s_waitcnt vmcnt(5)")
                a("s_barrier")
                if 13 <= nxt + 2 <= 14:
                    fill = [p1_dma_w(nxt + 2)]
            rd = p2_reads(u + 1)
            fill = rd[:2] + fill + rd[2:]
        weave(a, p2_mfmas(u), fill)
    a("s_nop 7")
    stamp(a, 3)
    epi2(a, split)
    stamp(a, 4)

LDS_K, LDS_V = 0, 65536
LDS_KVR = 147456
A_KA0, A_KA1, A_KAT, A_VA0, A_VA1, A_QA0, A_QA1, A_QAT, A_OM, A_OT = 10, 11, 12, 13, 14, 15, 16, 17, 18, 19
A_AM = 20
A_MX = 28
A_Q1, A_Q2 = 32, 36
A_KB = 40
A_VB = 64
A_S = 96
A_O = 240
S_TAU0 = 23
S_EXV = 62
S_HI = 64
S_LO = 66
NEG_BIG = f2u(-3.0e38)

def jkey(r, h):
    m, b, e = r >> 3, (r >> 2) & 1, r & 3
    return 16 * (1 - b) + 8 * m + 4 * h + e

def diag_mask(r):
    lo = sum(1 << i for i in range(32) if jkey(r, 0) <= i)
    hi = sum(1 << i for i in range(32) if jkey(r, 1) <= i)
    return lo, hi

def p2_common_setup(a):
    a("v_and_b32 v4, 1, v%d" % V_KG)
    a("v_lshrrev_b32 v5, 1, v%d" % V_KG)
    a("v_lshrrev_b32 v6, 2, v%d" % V_N)
    a("v_and_b32 v7, 3, v%d" % V_N)
    a("s_and_b32 s%d, s%d, 3" % (S_T0, S_WV))
    a("s_lshr_b32 s%d, s%d, 2" % (S_T1, S_WV))
    a("s_mul_i32 s%d, s%d, 5120" % (S_T1, S_T1))
    a("s_lshl_b32 s%d, s%d, 10" % (S_T2, S_T0))
    a("s_add_u32 s%d, s%d, s%d" % (S_T2, S_T2, S_T1))
    a("s_add_u32 s%d, s%d, 4096" % (S_T3, S_T1))
    a("s_lshl_b32 s%d, s%d, 2" % (S_T4, S_T0))
    def addr(dst, nexpr_reg, kgimg, tbit, sbase, extra):
        a("v_lshl_add_u32 v9, v%d, 2, v%d" % (kgimg, nexpr_reg))
        a("v_and_b32 v9, 15, v9")
        a("v_lshl_add_u32 v9, v%d, 4, v9" % kgimg)
        a("v_lshlrev_b32 v9, 4, v9")
        a("v_lshl_add_u32 v9, v%d, 3, v9" % tbit)
        a("s_add_u32 s%d, s%d, %d" % (S_T5, sbase, extra))
        a("v_add_u32 v%d, s%d, v9" % (dst, S_T5))
    a("v_lshl_add_u32 v8, v5, 3, v6")
    addr(A_QA0, 8, 7, 4, S_T2, LDS_Q)
    a("v_add_u32 v30, 4, v8")
    addr(A_QA1, 30, 7, 4, S_T2, LDS_Q)
    a("v_add_u32 v31, s%d, v6" % S_T4)
    addr(A_QAT, 31, 7, 4, S_T3, LDS_Q)
    a("v_and_b32 v28, 1, v7")
    a("v_lshl_add_u32 v28, v4, 1, v28")
    a("v_lshrrev_b32 v29, 1, v7")
    a("v_xor_b32 v29, 1, v29")
    addr(A_KA0, 8, 28, 29, S_T2, LDS_K)
    addr(A_KA1, 30, 28, 29, S_T2, LDS_K)
    addr(A_KAT, 31, 28, 29, S_T3, LDS_K)
    a("v_and_b32 v4, 31, v%d" % V_LANE)
    a("v_lshrrev_b32 v5, 5, v%d" % V_LANE)
    a("v_cmp_gt_u32_e64 s[%d:%d], 16, v4" % (S_M0, S_M0 + 1))
    a("s_sub_u32 s%d, s%d, 16" % (S_T5, S_T4))
    a("v_add_u32 v6, s%d, v4" % S_T5)
    a("v_and_b32 v6, 15, v6")
    a("v_cndmask_b32_e64 v6, v6, v4, s[%d:%d]" % (S_M0, S_M0 + 1))
    a("v_mov_b32 v7, s%d" % S_T3)
    a("v_mov_b32 v8, s%d" % S_T2)
    a("v_cndmask_b32_e64 v7, v7, v8, s[%d:%d]" % (S_M0, S_M0 + 1))
    for m in range(2):
        a("v_add_u32 v8, %d, v5" % (2 * m))
        a("v_lshl_add_u32 v9, v8, 2, v6")
        a("v_and_b32 v9, 15, v9")
        a("v_lshl_add_u32 v9, v8, 4, v9")
        a("v_lshl_add_u32 v9, v9, 4, v7")
        a("v_add_u32 v%d, %d, v9" % (A_VA0 + m, LDS_V))
    a("s_lshl_b32 s%d, s%d, 2" % (S_T1, S_G))
    a("s_add_u32 s%d, s%d, s%d" % (S_T1, S_T1, S_T0))
    a("s_lshl_b32 s%d, s%d, 3" % (S_T2, S_R))
    a("s_lshr_b32 s%d, s%d, 2" % (S_T3, S_WV))
    a("s_lshl_b32 s%d, s%d, 1" % (S_T3, S_T3))
    a("s_add_u32 s%d, s%d, s%d" % (S_T2, S_T2, S_T3))
    a("s_mul_i32 s%d, s%d, 20480" % (S_T2, S_T2))
    a("s_mul_i32 s%d, s%d, %d" % (S_T3, S_BR, O_BR))
    a("s_add_u32 s%d, s%d, s%d" % (S_T2, S_T2, S_T3))
    a("s_add_u32 s%d, s%d, %d" % (S_T2, S_T2, WS_O))
    a("v_lshrrev_b32 v6, 4, v4")
    a("s_movk_i32 s%d, 20480" % S_T3)
    a("v_mul_u32_u24 v6, s%d, v6" % S_T3)
    a("v_and_b32 v7, 15, v4")
    a("v_lshl_add_u32 v6, v7, 4, v6")
    a("v_add_u32 v6, s%d, v6" % S_T2)
    a("s_lshr_b32 s%d, s%d, 1" % (S_T3, S_T1))
    a("s_lshl_b32 s%d, s%d, 10" % (S_T3, S_T3))
    a("s_and_b32 s%d, s%d, 1" % (S_T4, S_T1))
    a("s_lshl_b32 s%d, s%d, 9" % (S_T4, S_T4))
    a("s_add_u32 s%d, s%d, s%d" % (S_T3, S_T3, S_T4))
    a("v_lshl_add_u32 v7, v5, 8, v6")
    a("v_add_u32 v%d, s%d, v7" % (A_OM, S_T3))
    a("s_lshr_b32 s%d, s%d, 3" % (S_T3, S_T1))
    a("s_add_u32 s%d, s%d, 16" % (S_T3, S_T3))
    a("s_lshl_b32 s%d, s%d, 10" % (S_T3, S_T3))
    a("s_and_b32 s%d, s%d, 6" % (S_T4, S_T1))
    a("s_lshl_b32 s%d, s%d, 7" % (S_T4, S_T4))
    a("s_add_u32 s%d, s%d, s%d" % (S_T3, S_T3, S_T4))
    a("s_and_b32 s%d, s%d, 1" % (S_T4, S_T1))
    a("s_lshl_b32 s%d, s%d, 3" % (S_T4, S_T4))
    a("s_add_u32 s%d, s%d, s%d" % (S_T3, S_T3, S_T4))
    a("v_add_u32 v%d, s%d, v6" % (A_OT, S_T3))
    a("s_mov_b32 s%d, 0" % S_HI); a("s_mov_b32 s%d, -1" % (S_HI + 1))
    a("s_mov_b32 s%d, -1" % S_LO); a("s_mov_b32 s%d, 0" % (S_LO + 1))

def q_frag_reads():
    return ["ds_read_b64_tr_b16 %s, v%d" % (vr(A_Q1, 2), A_QA0),
            "ds_read_b64_tr_b16 %s, v%d" % (vr(A_Q1 + 2, 2), A_QA1),
            "ds_read_b64_tr_b16 %s, v%d" % (vr(A_Q2, 2), A_QAT)]
def q_frag_fix(a):
    a("v_cndmask_b32_e64 v%d, v%d, 0, s[%d:%d]" % (A_Q2, A_Q2, S_HI, S_HI + 1))
    a("v_cndmask_b32_e64 v%d, v%d, 0, s[%d:%d]" % (A_Q2 + 1, A_Q2 + 1, S_HI, S_HI + 1))

def o_epilogue(a, stflags="", eps=False):
    O = A_O
    a("v_cndmask_b32_e64 v30, v%d, v%d, s[%d:%d]" % (O + 12, O + 8, S_HI, S_HI + 1))
    if eps: a("v_add_f32 v30, 0x%x, v30" % f2u(1e-6))
    a("v_rcp_f32 v30, v30")
    a("s_nop 0")
    for k in range(12):
        a("v_mul_f32 v%d, v30, v%d" % (O + k, O + k))
    for k in range(6):
        a("v_cvt_pk_bf16_f32 v%d, v%d, v%d" % (O + k, O + 2 * k, O + 2 * k + 1))
    a("buffer_store_dwordx4 %s, v%d, s[%d:%d], 0 offen %s" % (vr(O, 4), A_OM, S_WS, S_WS + 3, stflags))
    a("s_mov_b64 exec, s[%d:%d]" % (S_LO, S_LO + 1))
    a("buffer_store_dwordx2 %s, v%d, s[%d:%d], 0 offen %s" % (vr(O + 4, 2), A_OT, S_WS, S_WS + 3, stflags))
    a("s_mov_b64 exec, -1")

def attn_setup(a):
    p2_common_setup(a)
    for r in range(16):
        lo, hi = diag_mask(r)
        a("s_mov_b32 s%d, 0x%x" % (S_MASK + 2 * r, lo)); a("s_mov_b32 s%d, 0x%x" % (S_MASK + 2 * r + 1, hi))
    a("v_mov_b32 v30, 0xffff")
    a("v_mov_b32 v31, 0xffff0000")
    for k in range(8):
        a("v_cndmask_b32_e64 v4, 0, v30, s[%d:%d]" % (S_MASK + 4 * k, S_MASK + 4 * k + 1))
        a("v_cndmask_b32_e64 v5, 0, v31, s[%d:%d]" % (S_MASK + 4 * k + 2, S_MASK + 4 * k + 3))
        a("v_or_b32 v%d, v4, v5" % (A_AM + k))
    a("v_mov_b32 v4, 0x3f803f80")
    for k in range(24): a("v_mov_b32 v%d, v4" % (A_VB + k))
    for b in range(3):
        a("v_mov_b32 v%d, 0" % (A_KB + 8 * b + 6)); a("v_mov_b32 v%d, 0" % (A_KB + 8 * b + 7))
    a("v_mov_b32 v%d, 0" % (A_Q2 + 2)); a("v_mov_b32 v%d, 0" % (A_Q2 + 3))
    a("s_mov_b32 s%d, 0x000fffff" % S_EXV); a("s_mov_b32 s%d, 0x000fffff" % (S_EXV + 1))

def k_reads(tau, buf):
    b = A_KB + 8 * buf
    return ["ds_read_b64_tr_b16 %s, v%d offset:%d" % (vr(b, 2), A_KA0, tau * 5120),
            "ds_read_b64_tr_b16 %s, v%d offset:%d" % (vr(b + 2, 2), A_KA1, tau * 5120),
            "ds_read_b64_tr_b16 %s, v%d offset:%d" % (vr(b + 4, 2), A_KAT, tau * 5120)]
def v_reads(tau, buf):
    b = A_VB + 8 * buf
    return [["s_mov_b64 exec, s[%d:%d]" % (S_EXV, S_EXV + 1),
             "ds_read_b128 %s, v%d offset:%d" % (vr(b, 4), A_VA0, tau * 5120),
             "ds_read_b128 %s, v%d offset:%d" % (vr(b + 4, 4), A_VA1, tau * 5120),
             "s_mov_b64 exec, -1"]]

def attn_unit(a, stubs, stflags=""):
    S = lambda t: A_S + 16 * t
    order = [8, 0, 1, 2, 3, 4, 5, 6, 7]
    emit(a, q_frag_reads())
    emit(a, k_reads(order[0], 0)); emit(a, k_reads(order[1], 1))
    a("s_waitcnt lgkmcnt(6)")
    q_frag_fix(a)
    accs = [28, 29, 30, 31]
    acc_init = [False] * 4
    pend = []
    def max_ops(base):
        L = []
        for k in range(0, 16, 2):
            ai = (k // 2) % 4
            if not acc_init[ai]:
                L.append("v_max_f32 v%d, v%d, v%d" % (accs[ai], base + k, base + k + 1)); acc_init[ai] = True
            else:
                L.append("v_max3_f32 v%d, v%d, v%d, v%d" % (accs[ai], base + k, base + k + 1, accs[ai]))
        return L
    merge = ["v_cndmask_b32_e64 v%d, v%d, v%d, s[%d:%d]" % (S(0) + r, S(0) + r, S(8) + r, S_MASK + 2 * r, S_MASK + 2 * r + 1) for r in range(16)]
    for idx, tau in enumerate(order):
        buf = idx % 3
        if idx + 2 < 9: emit(a, k_reads(order[idx + 2], (idx + 2) % 3))
        n_out = 3 * min(2, 8 - idx)
        a("s_waitcnt lgkmcnt(%d)" % n_out)
        kb = A_KB + 8 * buf
        mm = [mfma32(S(tau), kb, A_Q1, "0"), mfma32(S(tau), kb + 4, A_Q2)]
        if tau < 8:
            lf, lr = a.newlabel("fill"), a.newlabel("fret")
            a("s_cmp_gt_u32 s%d, %d" % (S_TAU0, tau))
            a("s_cbranch_scc1 %s" % lf)
            stubs.append((lf, lr, S(tau)))
        work = []
        if idx == 3: work = merge[:]
        if idx == 4: work = max_ops(S(0))
        if idx >= 5: work = max_ops(S(order[idx - 3]))
        a(mm[0])
        half = len(work) // 2
        if tau < 8 and False: pass
        a(mm[1])
        if tau < 8: a.label(lr)
        emit(a, work)
    emit(a, v_reads(8, 0)); emit(a, v_reads(0, 1))
    emit(a, max_ops(S(5)))
    emit(a, max_ops(S(6)))
    a("s_nop 3")
    emit(a, max_ops(S(7)))
    a("v_max3_f32 v28, v28, v29, v30")
    a("v_max_f32 v28, v28, v31")
    a("v_mov_b32 v29, v28")
    a("s_nop 1")
    a("v_permlane32_swap_b32 v28, v29")
    a("s_nop 1")
    a("v_max_f32 v28, v28, v29")
    def sm_ops(base):
        L = []
        for k in range(0, 16, 2):
            L.append("v_pk_add_f32 %s, %s, v[28:29] op_sel_hi:[1,0] neg_lo:[0,1] neg_hi:[0,1]" % (vr(base + k, 2), vr(base + k, 2)))
        E = []
        for k in range(0, 16, 2):
            E.append(["v_exp_f32 v%d, v%d" % (base + k, base + k), "v_exp_f32 v%d, v%d" % (base + k + 1, base + k + 1)])
        out = L[:2]
        for k in range(8):
            out += E[k]
            if k + 2 < 8: out.append(L[k + 2])
            if k >= 1: out.append("v_cvt_pk_bf16_f32 v%d, v%d, v%d" % (base + k - 1, base + 2 * (k - 1), base + 2 * (k - 1) + 1))
        out.append("s_nop 0")
        out.append("v_cvt_pk_bf16_f32 v%d, v%d, v%d" % (base + 7, base + 14, base + 15))
        return out
    emit(a, sm_ops(S(0)))
    for k in range(8):
        a("v_and_b32 v%d, v%d, v%d" % (S(0) + 8 + k, S(0) + k, A_AM + k))
    for k in range(8):
        a("v_xor_b32 v%d, v%d, v%d" % (S(0) + k, S(0) + k, S(0) + 8 + k))
    a("s_waitcnt lgkmcnt(0)")
    emit(a, v_reads(1, 2))
    prev = [mfma32(A_O, A_VB + 0, S(0) + 8, "0"), mfma32(A_O, A_VB + 4, S(0) + 12)]
    prev_skip = None
    prev2 = ([mfma32(A_O, A_VB + 8, S(0)), mfma32(A_O, A_VB + 12, S(0) + 4)], 0)
    def guarded(mms, tau):
        def f(a):
            l = a.newlabel("pvs")
            a("s_cmp_gt_u32 s%d, %d" % (S_TAU0, tau))
            a("s_cbranch_scc1 %s" % l)
            for x in mms: a(x)
            a.label(l)
        return f
    vbuf = {8: 0, 0: 1}
    pv_pending = [prev[0], prev[1], guarded(prev2[0], 0)]
    for tau in range(1, 8):
        vb = (tau + 1) % 3
        sm = sm_ops(S(tau))
        weave(a, sm, pv_pending) if False else None
        n = len(sm); m = len(pv_pending); done = 0
        for i, x in enumerate(sm):
            emit(a, x)
            want = min(m, ((i + 1) * m + n // 2) // n) if i >= 1 else 0
            while done < want:
                emit(a, pv_pending[done]); done += 1
        while done < m:
            emit(a, pv_pending[done]); done += 1
        a("s_waitcnt lgkmcnt(0)")
        if tau + 1 < 8: emit(a, v_reads(tau + 1, (tau + 2) % 3))
        b = A_VB + 8 * vb
        pv_pending = [guarded([mfma32(A_O, b, S(tau)), mfma32(A_O, b + 4, S(tau) + 4)], tau)]
    a("s_nop 1")
    emit(a, pv_pending)
    a("s_nop 15")
    o_epilogue(a, stflags)

def attn_round_advance(a):
    for v in (A_KA0, A_KA1, A_KAT, A_VA0, A_VA1, A_QA0, A_QA1, A_QAT):
        a("v_add_u32 v%d, %d, v%d" % (v, 2 * 5120, v))
    a("v_add_u32 v%d, %d, v%d" % (A_OM, 4 * 20480, A_OM))
    a("v_add_u32 v%d, %d, v%d" % (A_OT, 4 * 20480, A_OT))

def set_tau0(a, qadd):
    a("s_lshl_b32 s%d, s%d, 2" % (S_T0, S_R))
    a("s_lshr_b32 s%d, s%d, 2" % (S_T1, S_WV))
    a("s_add_u32 s%d, s%d, s%d" % (S_T0, S_T0, S_T1))
    a("s_add_u32 s%d, s%d, %s" % (S_T0, S_T0, qadd))
    a("s_sub_i32 s%d, 8, s%d" % (S_TAU0, S_T0))
    a("s_max_i32 s%d, s%d, 0" % (S_TAU0, S_TAU0))

def emit_stubs(a, stubs):
    for lf, lr, base in stubs:
        a.label(lf)
        a("v_mov_b32 v%d, 0x%x" % (base, NEG_BIG))
        for k in range(1, 16): a("v_mov_b32 v%d, v%d" % (base + k, base))
        a("s_branch %s" % lr)

def attn_phase(a, stubs, stflags=""):
    attn_setup(a)
    a("s_mov_b32 s%d, 0" % S_DB)
    lr = a.newlabel("around")
    a("s_waitcnt vmcnt(0)")
    a("s_barrier")
    stamp(a, 5)
    a.label(lr)
    set_tau0(a, "s%d" % S_DB)
    attn_unit(a, stubs, stflags)
    attn_round_advance(a)
    a("s_add_u32 s%d, s%d, 2" % (S_DB, S_DB))
    a("s_cmp_lt_u32 s%d, 4" % S_DB)
    a("s_cbranch_scc1 %s" % lr)

def k2_loads_A(a, split):
    a("v_lshlrev_b32 v4, 4, v%d" % V_LANE)
    a("s_lshl_b32 s%d, s%d, 6" % (S_T0, S_G))
    a("s_lshl_b32 s%d, s%d, 2" % (S_T1, S_R))
    a("s_add_u32 s%d, s%d, s%d" % (S_T0, S_T0, S_T1))
    a("s_sub_i32 s%d, s%d, 8" % (S_T0, S_T0))
    a("s_mul_i32 s%d, s%d, 5120" % (S_T0, S_T0))
    a("s_lshl_b32 s%d, s%d, 10" % (S_T2, S_WV))
    a("s_add_u32 s%d, s%d, s%d" % (S_T0, S_T0, S_T2))
    a("s_lshl_b32 s%d, s%d, 2" % (S_T3, S_R))
    a("s_sub_i32 s%d, 8, s%d" % (S_T3, S_T3))
    a("s_max_i32 s%d, s%d, 0" % (S_T3, S_T3))
    a("s_mul_i32 s%d, s%d, 5120" % (S_T3, S_T3))
    for tensor in range(2):
        for k in range(8):
            l = a.newlabel("kvl")
            a("s_add_u32 s%d, s%d, %d" % (S_T4, S_T2, k * 8192))
            a("s_cmp_lt_u32 s%d, s%d" % (S_T4, S_T3))
            a("s_cbranch_scc1 %s" % l)
            if k == 7:
                a("s_cmp_ge_u32 s%d, 61440" % S_T4)
                a("s_cbranch_scc1 %s" % l)
            a("s_add_u32 m0, s%d, %d" % (S_T4, LDS_K if tensor == 0 else LDS_V))
            a("s_add_u32 s%d, s%d, %d" % (S_OFF, S_T0, WS_KV + tensor * 8 * 64 * 5120 + k * 8192))
            a("buffer_load_dwordx4 v4, s[%d:%d], s%d offen lds" % (S_WS, S_WS + 3, S_OFF))
            a.label(l)

def q_load(a):
    a("v_lshlrev_b32 v4, 4, v%d" % V_LANE)
    a("s_lshl_b32 s%d, s%d, 3" % (S_T0, S_BR))
    a("s_add_u32 s%d, s%d, s%d" % (S_T0, S_T0, S_G))
    a("s_lshl_b32 s%d, s%d, 6" % (S_T0, S_T0))
    a("s_lshl_b32 s%d, s%d, 2" % (S_T1, S_R))
    a("s_add_u32 s%d, s%d, s%d" % (S_T0, S_T0, S_T1))
    a("s_mul_i32 s%d, s%d, 5120" % (S_T0, S_T0))
    a("s_lshl_b32 s%d, s%d, 10" % (S_T2, S_WV))
    a("s_add_u32 s%d, s%d, s%d" % (S_T0, S_T0, S_T2))
    for k in range(3):
        l = a.newlabel("ql")
        if k == 2:
            a("s_cmp_ge_u32 s%d, 4" % S_WV)
            a("s_cbranch_scc1 %s" % l)
        a("s_add_u32 m0, s%d, %d" % (S_T2, LDS_Q + k * 8192))
        a("s_add_u32 s%d, s%d, %d" % (S_OFF, S_T0, WS_Q + k * 8192))
        a("buffer_load_dwordx4 v4, s[%d:%d], s%d offen lds" % (S_WS, S_WS + 3, S_OFF))
        a.label(l)

def apply_phase(a, stflags="", ldflags=""):
    piece_decode(a)
    a("v_cmp_gt_u32_e64 s[%d:%d], 21, v7" % (S_M0, S_M0 + 1))
    a("v_cmp_gt_u32_e64 s[%d:%d], 5, v6" % (S_M1, S_M1 + 1))
    a("s_lshl_b32 s%d, s%d, 17" % (S_T0, S_G))
    a("s_lshr_b32 s%d, s%d, 1" % (S_T1, S_WV))
    a("s_lshl_b32 s%d, s%d, 11" % (S_T1, S_T1))
    a("s_add_u32 s%d, s%d, s%d" % (S_T0, S_T0, S_T1))
    a("s_add_u32 s%d, s%d, %d" % (S_T0, S_T0, WS_PART))
    a("v_lshlrev_b32 v5, 4, v5")
    a("s_and_b64 s[%d:%d], s[%d:%d], s[%d:%d]" % (S_M0, S_M0 + 1, S_M0, S_M0 + 1, S_M1, S_M1 + 1))
    P = A_S
    for k in range(64): a("v_mov_b32 v%d, 0" % (P + k)) if False else None
    a("s_mov_b64 exec, s[%d:%d]" % (S_M0, S_M0 + 1))
    for r in range(16):
        a("s_add_u32 s%d, s%d, %d" % (S_OFF, S_T0, r * 8192))
        a("buffer_load_dwordx4 %s, v5, s[%d:%d], s%d offen %s" % (vr(P + 4 * r, 4), S_WS, S_WS + 3, S_OFF, ldflags))
    a("s_mov_b64 exec, -1")
    a("v_add_u32 v8, %d, v5" % LDS_KVR)
    a("v_add_u32 v8, s%d, v8" % S_T1)
    p2_common_setup(a) if False else None
    a("s_waitcnt vmcnt(0)")
    for st in (8, 4, 2, 1):
        for r in range(st):
            for k in range(4):
                a("v_add_f32 v%d, v%d, v%d" % (P + 4 * r + k, P + 4 * r + k, P + 4 * (r + st) + k))
    a("s_mov_b64 exec, s[%d:%d]" % (S_M0, S_M0 + 1))
    a("ds_write_b128 v8, %s" % vr(P, 4))
    a("s_mov_b64 exec, -1")
    p2_common_setup(a)
    a("v_mov_b32 v%d, 0" % (A_Q2 + 2)); a("v_mov_b32 v%d, 0" % (A_Q2 + 3))
    a("v_and_b32 v4, 31, v%d" % V_LANE)
    a("v_min_u32 v4, 20, v4")
    a("v_lshrrev_b32 v5, 5, v%d" % V_LANE)
    a("v_mul_u32_u24 v6, 48, v5")
    a("v_add_u32 v6, v6, v4")
    a("s_and_b32 s%d, s%d, 3" % (S_T0, S_WV))
    a("s_lshl_b32 s%d, s%d, 11" % (S_T0, S_T0))
    a("s_add_u32 s%d, s%d, %d" % (S_T0, S_T0, LDS_KVR))
    a("v_lshlrev_b32 v6, 4, v6")
    a("v_add_u32 v6, s%d, v6" % S_T0)
    a("v_lshlrev_b32 v7, 4, v4")
    a("v_add_u32 v7, s%d, v7" % S_T0)
    a("s_waitcnt lgkmcnt(0)")
    a("s_barrier")
    F = A_KB
    a("ds_read_b128 %s, v6" % vr(F, 4))
    a("ds_read_b128 %s, v6 offset:%d" % (vr(F + 4, 4), 24 * 16))
    a("ds_read_b128 %s, v7 offset:%d" % (vr(F + 8, 4), 4 * 24 * 16))
    a("s_waitcnt lgkmcnt(0)")
    KV1, KV2 = A_VB, A_VB + 4
    for k in range(4): a("v_cvt_pk_bf16_f32 v%d, v%d, v%d" % (KV1 + k, F + 2 * k, F + 2 * k + 1))
    for k in range(2): a("v_cvt_pk_bf16_f32 v%d, v%d, v%d" % (KV2 + k, F + 8 + 2 * k, F + 9 + 2 * k))
    a("v_mov_b32 v%d, 0" % (KV2 + 2)); a("v_mov_b32 v%d, 0" % (KV2 + 3))
    for rnd in range(2):
        emit(a, q_frag_reads())
        a("s_waitcnt lgkmcnt(0)")
        q_frag_fix(a)
        a("s_nop 1")
        a(mfma32(A_O, KV1, A_Q1, "0"))
        a(mfma32(A_O, KV2, A_Q2))
        a("s_nop 15")
        o_epilogue(a, stflags, eps=True)
        if rnd == 0: attn_round_advance(a)

C_DMA = 10
C_WA, C_WT = 15, 16
C_OF = 17
C_OUT = 18
C_XA = 19
C_O = 32
C_WB0, C_WB1 = 72, 92
C_ACC = 112
C_R = 132

def p3_setup(a):
    a("s_mul_i32 s%d, s%d, 160" % (S_T0, S_G))
    a("s_movk_i32 s%d, 6554" % S_T2)
    a("s_movk_i32 s%d, 1280" % S_T3)
    for j in range(5):
        a("v_add_u32 v4, %d, v%d" % (64 * j, V_LANE))
        a("v_mul_u32_u24 v5, s%d, v4" % S_T2)
        a("v_lshrrev_b32 v5, 16, v5")
        a("v_mul_u32_u24 v6, 10, v5")
        a("v_sub_u32 v6, v4, v6")
        a("v_mul_u32_u24 v5, s%d, v5" % S_T3)
        a("v_lshl_add_u32 v5, v6, 4, v5")
        a("v_add_u32 v%d, s%d, v5" % (C_DMA + j, S_T0))
    a("v_lshrrev_b32 v4, 1, v%d" % V_KG)
    a("v_and_b32 v5, 1, v%d" % V_KG)
    a("v_lshrrev_b32 v6, 2, v%d" % V_N)
    a("v_and_b32 v7, 3, v%d" % V_N)
    a("v_mul_u32_u24 v8, 20, v4")
    a("v_lshl_add_u32 v8, v5, 2, v8")
    a("v_add_u32 v8, v8, v6")
    a("s_movk_i32 s%d, 160" % S_T1)
    a("v_mul_u32_u24 v8, s%d, v8" % S_T1)
    a("v_lshl_add_u32 v8, v7, 3, v8")
    a("s_mul_i32 s%d, s%d, 51200" % (S_T2, S_CS))
    a("v_add_u32 v%d, s%d, v8" % (C_WA, S_T2))
    a("v_mul_u32_u24 v8, 40, v%d" % V_KG)
    a("v_add3_u32 v8, v8, v6, 16")
    a("v_mul_u32_u24 v8, s%d, v8" % S_T1)
    a("v_lshl_add_u32 v8, v7, 3, v8")
    a("v_add_u32 v%d, s%d, v8" % (C_WT, S_T2))
    a("v_lshlrev_b32 v%d, 4, v%d" % (C_OF, V_LANE))
    a("s_lshl_b32 s%d, s%d, 4" % (S_T2, S_RG))
    a("v_add_u32 v8, s%d, v%d" % (S_T2, V_N))
    a("s_movk_i32 s%d, 2560" % S_T2)
    a("v_mul_u32_u24 v8, s%d, v8" % S_T2)
    a("v_lshl_add_u32 v8, v%d, 3, v8" % V_KG)
    a("v_add_u32 v%d, s%d, v8" % (C_OUT, S_T0))
    a("s_mul_i32 s%d, s%d, 5120" % (S_T2, S_RG))
    a("s_add_u32 s%d, s%d, %d" % (S_T2, S_T2, 102400))
    a("v_add_u32 v%d, s%d, v%d" % (C_XA, S_T2, C_OF))

def wo_load(a, srd_wo):
    for k in range(3):
        l = a.newlabel("wol")
        if k == 2:
            a("s_cmp_ge_u32 s%d, 4" % S_WV)
            a("s_cbranch_scc1 %s" % l)
        a("s_add_u32 s%d, s%d, %d" % (S_T0, S_WV, 8 * k))
        a("s_mul_i32 s%d, s%d, %d" % (S_OFF, S_T0, 32 * 1280))
        a("s_mul_i32 s%d, s%d, 5120" % (S_T0, S_T0))
        for j in range(5):
            a("s_add_u32 m0, s%d, %d" % (S_T0, j * 1024))
            a("s_nop 0")
            a("buffer_load_dwordx4 v%d, s[%d:%d], s%d offen lds" % (C_DMA + j, srd_wo, srd_wo + 3, S_OFF))
        a.label(l)

def p3_oloads(a, s_br, s_row0, ldflags=""):
    a("s_lshr_b32 s%d, s%d, 4" % (S_T0, s_row0))
    a("s_add_u32 s%d, s%d, s%d" % (S_T0, S_T0, S_RG))
    a("s_mul_i32 s%d, s%d, 20480" % (S_T0, S_T0))
    a("s_mul_i32 s%d, s%d, %d" % (S_T1, s_br, O_BR))
    a("s_add_u32 s%d, s%d, s%d" % (S_T0, S_T0, S_T1))
    a("s_add_u32 s%d, s%d, %d" % (S_T0, S_T0, WS_O))
    a("s_lshl_b32 s%d, s%d, 13" % (S_T1, S_CS))
    a("s_add_u32 s%d, s%d, s%d" % (S_T1, S_T1, S_T0))
    for i in range(8):
        a("s_add_u32 s%d, s%d, %d" % (S_OFF, S_T1, i * 1024))
        a("buffer_load_dwordx4 %s, v%d, s[%d:%d], s%d offen %s" % (vr(C_O + 4 * i, 4), C_OF, S_WS, S_WS + 3, S_OFF, ldflags))
    a("s_lshl_b32 s%d, s%d, 11" % (S_T1, S_CS))
    a("s_add_u32 s%d, s%d, s%d" % (S_T1, S_T1, S_T0))
    for i in range(2):
        a("s_add_u32 s%d, s%d, %d" % (S_OFF, S_T1, (16 + i) * 1024))
        a("buffer_load_dwordx4 %s, v%d, s[%d:%d], s%d offen %s" % (vr(C_O + 32 + 4 * i, 4), C_OF, S_WS, S_WS + 3, S_OFF, ldflags))

def p3_wreads(i):
    wb = C_WB0 if (i & 1) == 0 else C_WB1
    L = []
    for T in range(5):
        for rd in range(2):
            if i < 8: L.append("ds_read_b64_tr_b16 %s, v%d offset:%d" % (vr(wb + 4 * T + 2 * rd, 2), C_WA, i * 6400 + rd * 1280 + 32 * T))
            else: L.append("ds_read_b64_tr_b16 %s, v%d offset:%d" % (vr(wb + 4 * T + 2 * rd, 2), C_WT, (i - 8) * 25600 + rd * 3200 + 32 * T))
    return L

def p3_job(a, s_br, s_row0):
    emit(a, p3_wreads(0))
    for i in range(10):
        a("s_waitcnt lgkmcnt(0)")
        wb = C_WB0 if (i & 1) == 0 else C_WB1
        mm = [mfma16(C_ACC + 4 * T, wb + 4 * T, C_O + 4 * i, "0" if i == 0 else None) for T in range(5)]
        weave(a, mm, p3_wreads(i + 1) if i < 9 else [])
    l1, l2 = a.newlabel("j1"), a.newlabel("j2")
    a("s_nop 7")
    a("s_cmp_eq_u32 s%d, 0" % S_CS)
    a("s_cbranch_scc1 %s" % l1)
    for T in range(5):
        a("ds_write_b128 v%d, %s offset:%d" % (C_XA, vr(C_ACC + 4 * T, 4), T * 1024))
    a("s_waitcnt lgkmcnt(0)")
    a.label(l1)
    a("s_barrier")
    a("s_cmp_eq_u32 s%d, 0" % S_CS)
    a("s_cbranch_scc0 %s" % l2)
    for T in range(5):
        a("ds_read_b128 %s, v%d offset:%d" % (vr(C_R + 4 * T, 4), C_XA, T * 1024))
    a("s_mul_i32 s%d, s%d, 2560" % (S_T0, s_row0))
    a("s_mul_i32 s%d, s%d, 1280" % (S_T1, s_br))
    a("s_add_u32 s%d, s%d, s%d" % (S_T0, S_T0, S_T1))
    a("s_waitcnt lgkmcnt(0)")
    for k in range(20):
        a("v_add_f32 v%d, v%d, v%d" % (C_ACC + k, C_ACC + k, C_R + k))
    for T in range(5):
        d = C_ACC + 4 * T
        a("v_cvt_pk_bf16_f32 v%d, v%d, v%d" % (C_R + 2 * T, d, d + 1))
        a("v_cvt_pk_bf16_f32 v%d, v%d, v%d" % (C_R + 2 * T + 1, d + 2, d + 3))
    for T in range(5):
        a("buffer_store_dwordx2 %s, v%d, s[%d:%d], s%d offen offset:%d" % (vr(C_R + 2 * T, 2), C_OUT, S_OUT, S_OUT + 3, S_T0, 32 * T))
    a.label(l2)
    a("s_barrier")

HEADER = """; sliding-window attention block + linear attention block (generated by gen.py)
"""
def kernel_text(name, body):
    return ".globl %s\n.p2align 8\n.type %s,@function\n%s:\n" % (name, name, name) + body

def kd_text(name, vgpr=256, sgpr=102):
    return (".amdhsa_kernel %s\n  .amdhsa_next_free_vgpr %d\n  .amdhsa_next_free_sgpr %d\n  .amdhsa_accum_offset %d\n"
            "  .amdhsa_group_segment_fixed_size 0\n  .amdhsa_kernarg_size 72\n  .amdhsa_user_sgpr_count 2\n"
            "  .amdhsa_user_sgpr_kernarg_segment_ptr 1\n  .amdhsa_system_sgpr_workgroup_id_x 1\n.end_amdhsa_kernel\n") % (name, vgpr, sgpr, (vgpr + 3) // 4 * 4)

def build_split(nk=3):
    out = [HEADER]
    names = ["k1_kernel", "k2_kernel", "k3_kernel"][:nk]
    for n in names:
        out.append("; @launch kernel=%s grid=(256,1,1) block=(512,1,1) lds=163840\n" % n)
    out.append('.amdgcn_target "amdgcn-amd-amdhsa--gfx950"\n.text\n')
    a = Asm(); a.nlab = 1000
    entry(a, "L_end1")
    phase1(a, True)
    a("s_waitcnt vmcnt(0)")
    stamp(a, 5)
    stamp_store(a, 0)
    a.label("L_end1"); a("s_endpgm")
    out.append(kernel_text("k1_kernel", a.text()))
    if nk >= 2:
        a = Asm(); a.nlab = 2000
        stubs = []
        entry(a, "L_end2")
        entry_srd(a)
        stamp(a, 0)
        q_load(a)
        lb = a.newlabel("k2b")
        a("s_cmp_eq_u32 s%d, 0" % S_BR)
        a("s_cbranch_scc0 %s" % lb)
        k2_loads_A(a, True)
        stamp(a, 1)
        attn_phase(a, stubs)
        a("s_branch L_fin2")
        emit_stubs(a, stubs)
        a.label(lb)
        stamp(a, 1); stamp(a, 5)
        apply_phase(a)
        a.label("L_fin2")
        stamp(a, 2)
        a("s_waitcnt vmcnt(0)")
        stamp(a, 3); stamp(a, 4); stamp(a, 6); stamp(a, 7)
        stamp_store(a, 1)
        a.label("L_end2"); a("s_endpgm")
        out.append(kernel_text("k2_kernel", a.text()))
    if nk >= 3:
        a = Asm(); a.nlab = 3000
        entry(a, "L_end3")
        p3_setup(a)
        entry_srd(a)
        stamp(a, 0)
        a("s_cmp_eq_u32 s%d, 0" % S_BR)
        for k in range(2):
            a("s_cselect_b32 s%d, s%d, s%d" % (S_WO + k, S_WO + k, S_WOB + k))
        wo_load(a, S_WO)
        a("s_lshl_b32 s%d, s%d, 7" % (S_DB, S_R))
        p3_oloads(a, S_BR, S_DB)
        a("s_waitcnt vmcnt(0)")
        a("s_barrier")
        stamp(a, 1)
        p3_job(a, S_BR, S_DB)
        stamp(a, 2)
        a("s_add_u32 s%d, s%d, 64" % (S_DB, S_DB))
        p3_oloads(a, S_BR, S_DB)
        a("s_waitcnt vmcnt(0)")
        p3_job(a, S_BR, S_DB)
        stamp(a, 3)
        a("s_waitcnt vmcnt(0)")
        stamp(a, 4); stamp(a, 5); stamp(a, 6); stamp(a, 7)
        stamp_store(a, 2)
        a.label("L_end3"); a("s_endpgm")
        out.append(kernel_text("k3_kernel", a.text()))
    out.append('.section .rodata,"a"\n')
    for n in names:
        out.append(".p2align 6\n" + kd_text(n))
    return "".join(out)

if __name__ == "__main__":
    mode = sys.argv[1]
    STAMPS = "stamps" in sys.argv
    PF = "nopf" not in sys.argv
    ABL = set(x for x in sys.argv if x in ("noread", "nomfma", "nodma"))
    if mode == "split":
        txt = build_split()
    open(sys.argv[2], "w").write(txt)
```

```python
import sys, struct
from asmlib import Asm, vr, sr

WS_KV   = 0x0000000
WS_Q    = 0x0500000
WS_O    = 0x0A00000
WS_PART = 0x0F00000
WS_FLAG = 0x1000000
WS_STAMP = 0x1080000
WS_SIZE = 0x1100000
O_BR = 128 * 20480

STAMPS = False
STAMPSET = 0
PF = True
ABL = set()

S_X, S_W, S_WS, S_OUT, S_WO = 24, 28, 32, 36, 40
S_WOB = 44
S_BR, S_R, S_G, S_WV, S_RG, S_CS = 48, 49, 50, 51, 52, 53
S_T0, S_T1, S_T2, S_T3, S_T4, S_T5 = 54, 55, 56, 57, 58, 59
S_DB, S_OFF = 60, 61
S_M0, S_M1 = 62, 64
S_M2 = 66
S_MASK = 68
S_I = 22
S_U0, S_U1 = 23, 100
S_U2 = 101
S_ST = 4

V_IMG, V_LANE, V_N, V_KG = 0, 1, 2, 3
V_DMA = 10
V_XA = 15
V_WA = 19
V_PF = 29
V_XT = 32
V_WB0 = 40
V_WB1 = 60
V_ACC = 80
V_ACC2 = 120
V_XP = 160
V_DMA2 = 240
V_PFD = 245
V_WA2 = 246

LDS_W = 65536
XSLOT, WSLOT = 16384, 20480
LOG2E = 1.4426950408889634
QSCALE = LOG2E / (20.0 ** 0.5)

def f2u(x): return struct.unpack("<I", struct.pack("<f", x))[0]

def mfma16(d, x, y, c=None):
    cs = vr(d, 4) if c is None else c
    return "v_mfma_f32_16x16x32_bf16 %s, %s, %s, %s" % (vr(d, 4), vr(x, 4), vr(y, 4), cs)
def mfma32(d, x, y, c=None):
    cs = vr(d, 16) if c is None else c
    return "v_mfma_f32_32x32x16_bf16 %s, %s, %s, %s" % (vr(d, 16), vr(x, 4), vr(y, 4), cs)

def emit(a, item):
    if callable(item): item(a)
    elif isinstance(item, (list, tuple)):
        for x in item: emit(a, x)
    else: a(item)

def weave(a, main, fill, lead=0):
    fill = list(fill)
    for x in fill[:lead]: emit(a, x)
    fill = fill[lead:]
    n, m, done = len(main), len(fill), 0
    for i, x in enumerate(main):
        emit(a, x)
        want = (i + 1) * m // n
        while done < want:
            emit(a, fill[done]); done += 1

NST = 8
STMAP = None
def stamp(a, i, real=False):
    if not STAMPS: return
    if STMAP is not None:
        if i not in STMAP: return
        i = STMAP[i]
    elif not isinstance(i, int): return
    assert i < NST
    a("s_memtime s[%d:%d]" % (S_ST + 2 * i, S_ST + 2 * i + 1))
def stamp_store(a, kidx):
    if not STAMPS: return
    a("s_memrealtime s[20:21]")
    a("s_waitcnt lgkmcnt(0)")
    a("s_lshl_b32 s%d, s2, 3" % S_T0)
    a("s_add_u32 s%d, s%d, s%d" % (S_T0, S_T0, S_WV))
    a("s_lshl_b32 s%d, s%d, 6" % (S_T0, S_T0))
    a("s_add_u32 s%d, s%d, %d" % (S_T0, S_T0, WS_STAMP + kidx * 0x20000))
    a("s_mov_b64 exec, 1")
    a("v_mov_b32 v4, 0")
    for i in range(NST):
        a("v_mov_b32 v5, s%d" % (S_ST + 2 * i))
        a("buffer_store_dword v5, v4, s[%d:%d], s%d offen offset:%d" % (S_WS, S_WS + 3, S_T0, i * 4))
    a("v_mov_b32 v5, s20")
    a("buffer_store_dword v5, v4, s[%d:%d], s%d offen offset:%d" % (S_WS, S_WS + 3, S_T0, 15 * 4))
    a("v_mov_b32 v5, s101")
    a("buffer_store_dword v5, v4, s[%d:%d], s%d offen offset:%d" % (S_WS, S_WS + 3, S_T0, 14 * 4))
    a("v_mov_b32 v5, s100")
    a("buffer_store_dword v5, v4, s[%d:%d], s%d offen offset:%d" % (S_WS, S_WS + 3, S_T0, 13 * 4))
    a("s_mov_b64 exec, -1")

def entry(a, endlab, nwg=256):
    a("s_cmp_ge_u32 s2, %d" % nwg)
    a("s_cbranch_scc1 %s" % endlab)
    if STAMPS:
        a("s_memrealtime s[100:101]")
        a("s_memtime s[62:63]")
    a("s_load_dwordx16 s[4:19], s[0:1], 0")
    a("s_load_dwordx2 s[20:21], s[0:1], 64")
    a("s_and_b32 s%d, s2, 7" % S_T0)
    a("s_lshr_b32 s%d, s2, 3" % S_I)
    a("s_and_b32 s%d, s%d, 1" % (S_BR, S_T0))
    a("s_lshr_b32 s%d, s%d, 1" % (S_T2, S_T0))
    a("s_and_b32 s%d, s%d, 1" % (S_T3, S_T2))
    a("s_lshl_b32 s%d, s%d, 3" % (S_T3, S_T3))
    a("s_and_b32 s%d, s%d, 7" % (S_T4, S_I))
    a("s_add_u32 s%d, s%d, s%d" % (S_R, S_T3, S_T4))
    a("s_lshr_b32 s%d, s%d, 1" % (S_T3, S_T2))
    a("s_lshl_b32 s%d, s%d, 2" % (S_T3, S_T3))
    a("s_lshr_b32 s%d, s%d, 3" % (S_T4, S_I))
    a("s_add_u32 s%d, s%d, s%d" % (S_G, S_T3, S_T4))
    a("v_lshrrev_b32 v4, 6, v0")
    a("v_and_b32 v%d, 63, v0" % V_LANE)
    a("v_and_b32 v%d, 15, v0" % V_N)
    a("v_readfirstlane_b32 s%d, v4" % S_WV)
    a("v_lshrrev_b32 v%d, 4, v%d" % (V_KG, V_LANE))
    a("s_nop 3")
    a("s_and_b32 s%d, s%d, 3" % (S_RG, S_WV))
    a("s_lshr_b32 s%d, s%d, 2" % (S_CS, S_WV))

def srd(a, d, lo, hi, size):
    a("s_mov_b32 s%d, s%d" % (d, lo)); a("s_mov_b32 s%d, s%d" % (d + 1, hi))
    a("s_mov_b32 s%d, %d" % (d + 2, size)); a("s_mov_b32 s%d, 0x20000" % (d + 3))

def entry_srd(a):
    a("s_waitcnt lgkmcnt(0)")
    a("s_cmp_eq_u32 s%d, 0" % S_BR)
    a("s_cselect_b32 s%d, s4, s10" % S_X)
    a("s_cselect_b32 s%d, s5, s11" % (S_X + 1))
    a("s_mov_b32 s%d, 2621440" % (S_X + 2))
    a("s_mov_b32 s%d, 0x20000" % (S_X + 3))
    a("s_cselect_b32 s%d, s6, s12" % S_W)
    a("s_cselect_b32 s%d, s7, s13" % (S_W + 1))
    a("s_mov_b32 s%d, 2457600" % (S_W + 2))
    a("s_mov_b32 s%d, 0x20000" % (S_W + 3))
    srd(a, S_WS, 20, 21, WS_SIZE)
    srd(a, S_OUT, 16, 17, 5242880)
    srd(a, S_WO, 8, 9, 819200)
    srd(a, S_WOB, 14, 15, 819200)
    if STAMPS:
        a("s_mov_b32 s101, s100")
        a("s_mov_b32 s100, s62")

def minwrap(a, v, m, tmp):
    a("v_subrev_u32 v%d, %d, v%d" % (tmp, m, v))
    a("v_min_u32 v%d, v%d, v%d" % (v, v, tmp))

def pf_setup(a):
    a("v_and_b32 v4, 31, v%d" % V_LANE)
    a("v_lshrrev_b32 v5, 5, v%d" % V_LANE)
    a("s_lshr_b32 s%d, s%d, 3" % (S_T0, S_R))
    a("s_lshl_b32 s%d, s%d, 5" % (S_T0, S_T0))
    a("s_add_u32 s%d, s%d, s%d" % (S_T0, S_T0, S_I))
    a("s_mul_i32 s%d, s%d, %d" % (S_T0, S_T0, 32 * 1280))
    a("s_movk_i32 s%d, 1280" % S_T1)
    a("v_mul_u32_u24 v6, s%d, v4" % S_T1)
    a("v_lshl_add_u32 v6, v5, 7, v6")
    a("v_add_u32 v%d, s%d, v6" % (V_PF, S_T0))
    a("v_min_u32 v4, 19, v4")
    a("s_lshr_b32 s%d, s%d, 2" % (S_T0, S_G))
    a("s_mul_i32 s%d, s%d, 640" % (S_T0, S_T0))
    a("s_movk_i32 s%d, 3840" % S_T1)
    a("v_mul_u32_u24 v6, 13, v4"); a("v_lshrrev_b32 v6, 7, v6")
    a("v_mul_u32_u24 v7, 52, v4"); a("v_lshrrev_b32 v7, 8, v7")
    a("v_mul_u32_u24 v8, 5, v7"); a("v_sub_u32 v8, v4, v8")
    a("v_lshlrev_b32 v8, 7, v8")
    a("v_lshl_add_u32 v6, v5, 6, v6")
    a("s_lshl_b32 s%d, s%d, 1" % (S_T2, S_I))
    a("v_add_u32 v6, s%d, v6" % S_T2)
    a("v_mul_u32_u24 v6, s%d, v6" % S_T1)
    a("v_and_b32 v9, 1, v7")
    a("s_movk_i32 s%d, 1280" % S_T2)
    a("v_mul_u32_u24 v9, s%d, v9" % S_T2)
    a("v_add3_u32 v6, v6, v9, v8")
    a("s_add_u32 s%d, s%d, 1280" % (S_T2, S_T0))
    a("v_add_u32 v%d, s%d, v6" % (V_PF + 1, S_T2))
    a("v_lshl_add_u32 v7, v5, 7, v7")
    a("s_lshl_b32 s%d, s%d, 2" % (S_T2, S_I))
    a("v_add_u32 v7, s%d, v7" % S_T2)
    a("v_mul_u32_u24 v7, s%d, v7" % S_T1)
    a("v_add3_u32 v%d, v7, v8, s%d" % (V_PF + 2, S_T0))

def pf_issue(kind, idx, wave):
    def f(a):
        if not PF: return
        l = a.newlabel("pf")
        a("s_cmp_eq_u32 s%d, %d" % (S_WV, wave))
        a("s_cbranch_scc0 %s" % l)
        if kind == 'x':
            a("s_mov_b32 s%d, %d" % (S_OFF, idx * 256)); srd_ = S_X; v = V_PF
        elif kind == 'w':
            a("s_mov_b32 s%d, %d" % (S_OFF, idx * 128 * 3840)); srd_ = S_W; v = V_PF + 1
        else:
            a("s_mov_b32 s%d, %d" % (S_OFF, idx * 256 * 3840)); srd_ = S_W; v = V_PF + 2
        a("buffer_load_dword v%d, v%d, s[%d:%d], s%d offen" % (V_PFD, v, srd_, srd_ + 3, S_OFF))
        a.label(l)
    return f

def p1_dma_setup(a):
    lx, ld = a.newlabel("xrole"), a.newlabel("dmaset")
    a("s_cmp_eq_u32 s%d, 0" % S_CS)
    a("s_cbranch_scc0 %s" % lx)
    a("s_mul_i32 s%d, s%d, %d" % (S_T0, S_RG, 16 * 3840))
    a("s_mul_i32 s%d, s%d, 160" % (S_T1, S_G))
    a("s_add_u32 s%d, s%d, s%d" % (S_T0, S_T0, S_T1))
    a("s_add_u32 s%d, s%d, 1280" % (S_T1, S_T0))
    a("s_movk_i32 s%d, 3277" % S_T2)
    a("s_movk_i32 s%d, 3840" % S_T3)
    a("s_movk_i32 s%d, 24576" % S_T4)
    for j in range(5):
        p, kk, q, u, t = 4, 5, 6, 7, 8
        a("v_add_u32 v%d, %d, v%d" % (p, 64 * j, V_LANE))
        a("v_mul_u32_u24 v%d, s%d, v%d" % (kk, S_T2, p))
        a("v_lshrrev_b32 v%d, 16, v%d" % (kk, kk))
        a("v_mul_u32_u24 v%d, 20, v%d" % (q, kk))
        a("v_sub_u32 v%d, v%d, v%d" % (q, p, q))
        a("v_lshrrev_b32 v%d, 2, v%d" % (u, kk))
        a("v_and_b32 v%d, 2, v%d" % (u, u))
        a("v_sub_u32 v%d, v%d, v%d" % (u, q, u))
        a("v_add_u32 v%d, 20, v%d" % (u, u))
        minwrap(a, u, 20, t)
        a("v_mov_b32 v%d, v%d" % (q, u))
        minwrap(a, q, 10, t)
        a("v_sub_u32 v%d, v%d, v%d" % (u, u, q))
        a("v_mul_u32_u24 v%d, s%d, v%d" % (kk, S_T3, kk))
        a("v_lshl_add_u32 v%d, v%d, 4, v%d" % (kk, q, kk))
        a("v_lshl_add_u32 v%d, v%d, 7, v%d" % (t, u, kk))
        a("v_add_u32 v%d, s%d, v%d" % (V_DMA + j, S_T1, t))
        a("v_mul_u32_u24 v%d, s%d, v%d" % (t, S_T4, u))
        a("v_add3_u32 v%d, v%d, v%d, s%d" % (V_DMA2 + j, t, kk, S_T0))
    a("s_mul_i32 s%d, s%d, 5120" % (S_DB, S_RG))
    a("s_add_u32 s%d, s%d, %d" % (S_DB, S_DB, LDS_W))
    a("s_branch %s" % ld)
    a.label(lx)
    a("s_lshl_b32 s%d, s%d, 7" % (S_T0, S_R))
    a("s_lshl_b32 s%d, s%d, 5" % (S_T1, S_RG))
    a("s_add_u32 s%d, s%d, s%d" % (S_T0, S_T0, S_T1))
    a("s_mul_i32 s%d, s%d, 1280" % (S_T0, S_T0))
    a("s_movk_i32 s%d, 1280" % S_T1)
    a("v_lshrrev_b32 v4, 3, v%d" % V_LANE)
    a("v_and_b32 v5, 7, v%d" % V_LANE)
    a("v_xor_b32 v5, v5, v4")
    a("v_mul_u32_u24 v4, s%d, v4" % S_T1)
    a("v_lshl_add_u32 v4, v5, 4, v4")
    a("v_add_u32 v%d, s%d, v4" % (V_DMA, S_T0))
    a("s_lshl_b32 s%d, s%d, 12" % (S_DB, S_RG))
    a.label(ld)

def p1_dma_w(sig):
    def f(a):
        if 'nodma' in ABL and sig >= 3: return
        slot = sig % 4
        ld = a.newlabel("dw")
        a("s_cmp_eq_u32 s%d, 0" % S_CS)
        a("s_cbranch_scc0 %s" % ld)
        if sig < 10:
            a("s_mov_b32 s%d, %d" % (S_OFF, sig * 64 * 3840)); vb = V_DMA
        else:
            a("s_mov_b32 s%d, %d" % (S_OFF, (sig - 10) * 128 * 3840)); vb = V_DMA2
        for j in range(5):
            a("s_add_u32 m0, s%d, %d" % (S_DB, slot * WSLOT + j * 1024))
            a("s_nop 0")
            a("buffer_load_dwordx4 v%d, s[%d:%d], s%d offen lds" % (vb + j, S_W, S_W + 3, S_OFF))
        a.label(ld)
    return f

def p1_dma_x(sig):
    def f(a):
        if 'nodma' in ABL and sig >= 3: return
        if sig >= 10: return
        slot = sig % 4
        ld = a.newlabel("dx")
        a("s_cmp_eq_u32 s%d, 0" % S_CS)
        a("s_cbranch_scc1 %s" % ld)
        for j in range(4):
            a("s_add_u32 m0, s%d, %d" % (S_DB, slot * XSLOT + j * 1024))
            a("s_mov_b32 s%d, %d" % (S_OFF, sig * 128 + j * 10240))
            a("buffer_load_dwordx4 v%d, s[%d:%d], s%d offen lds" % (V_DMA, S_X, S_X + 3, S_OFF))
        a.label(ld)
    return f

def img_pos(a, dst, tmp):
    a("v_lshl_add_u32 v%d, v%d, 2, v%d" % (tmp, V_KG, V_N))
    a("v_and_b32 v%d, 15, v%d" % (tmp, tmp))
    a("v_lshl_add_u32 v%d, v%d, 4, v%d" % (tmp, V_KG, tmp))
    a("v_lshlrev_b32 v%d, 4, v%d" % (dst, tmp))

def p1_addr_setup(a):
    TMP = V_XT
    a("v_and_b32 v4, 7, v%d" % V_N)
    a("s_xor_b32 s%d, s%d, 1" % (S_T0, S_CS))
    for hf in range(2):
        ks = S_T0 if hf == 0 else S_CS
        a("s_lshl_b32 s%d, s%d, 2" % (S_T1, ks))
        a("v_add_u32 v5, s%d, v%d" % (S_T1, V_KG))
        a("v_xor_b32 v5, v5, v4")
        a("v_lshlrev_b32 v5, 4, v5")
        a("v_lshl_add_u32 v5, v%d, 7, v5" % V_N)
        for tp in range(2):
            tt = S_CS if tp == 0 else S_T0
            a("s_lshl_b32 s%d, s%d, 11" % (S_T1, tt))
            a("s_lshl_b32 s%d, s%d, 12" % (S_T2, S_RG))
            a("s_add_u32 s%d, s%d, s%d" % (S_T1, S_T1, S_T2))
            a("v_add_u32 v%d, s%d, v5" % (V_XA + hf * 2 + tp, S_T1))
    a("v_and_b32 v4, 3, v%d" % V_N)
    a("v_lshlrev_b32 v6, 3, v4")
    a("v_and_b32 v7, 1, v%d" % V_KG)
    a("v_lshlrev_b32 v7, 5, v7")
    a("v_lshrrev_b32 v8, 2, v%d" % V_N)
    a("v_lshl_add_u32 v8, v%d, 3, v8" % V_KG)
    a("s_movk_i32 s%d, 320" % S_T1)
    a("v_mul_u32_u24 v8, s%d, v8" % S_T1)
    a("v_add_u32 v8, %d, v8" % LDS_W)
    a("s_mul_i32 s%d, s%d, 160" % (S_T2, S_CS))
    a("s_mul_i32 s%d, s%d, 80" % (S_T3, S_CS))
    for T in range(5):
        if T < 4:
            a("s_add_u32 s%d, s%d, %d" % (S_T4, S_T2, 40 * T))
            a("s_add_u32 s%d, s%d, %d" % (S_T5, S_T3, (T >> 1) * 160 + 40 * (T & 1)))
            a("s_cmp_eq_u32 s%d, 0" % S_BR)
            a("s_cselect_b32 s%d, s%d, s%d" % (S_T4, S_T4, S_T5))
            a("v_add3_u32 v9, v6, v7, s%d" % S_T4)
        else:
            a("v_mul_u32_u24 v5, 40, v4")
            a("v_add_u32 v5, s%d, v5" % S_T2)
            a("v_lshrrev_b32 v9, 1, v4")
            a("s_movk_i32 s%d, 80" % S_T4)
            a("v_mul_u32_u24 v9, s%d, v9" % S_T4)
            a("v_mul_u32_u24 v%d, 40, v4" % TMP)
            a("v_add3_u32 v9, v9, v%d, s%d" % (TMP, S_T3))
            a("s_cmp_eq_u32 s%d, 0" % S_BR)
            a("s_cselect_b64 s[%d:%d], -1, 0" % (S_M0, S_M0 + 1))
            a("v_cndmask_b32_e64 v9, v9, v5, s[%d:%d]" % (S_M0, S_M0 + 1))
            a("v_add3_u32 v9, v9, v7, 32")
        minwrap(a, 9, 320, 5)
        a("v_add_u32 v9, v9, v8")
        a("s_mul_i32 s%d, s%d, 10240" % (S_T4, S_T0))
        a("v_add_u32 v%d, s%d, v9" % (V_WA + T, S_T4))
        a("s_mul_i32 s%d, s%d, 10240" % (S_T4, S_CS))
        a("v_add_u32 v%d, s%d, v9" % (V_WA + 5 + T, S_T4))
    a("s_mul_i32 s%d, s%d, 10240" % (S_T4, S_CS))
    a("v_add_u32 v8, s%d, v8" % S_T4)
    for seg in range(2):
        for T in range(5):
            if T < 4:
                a("s_movk_i32 s%d, %d" % (S_T4, seg * 160 + 40 * T))
                a("v_add3_u32 v9, v6, v7, s%d" % S_T4)
            else:
                a("v_mul_u32_u24 v9, 40, v4")
                a("s_movk_i32 s%d, %d" % (S_T4, seg * 160 + 32))
                a("v_add3_u32 v9, v9, v7, s%d" % S_T4)
            minwrap(a, 9, 320, 5)
            a("v_add_u32 v%d, v9, v8" % (V_WA2 + seg * 5 + T))
    img_pos(a, V_IMG, 4)

def p1_reads(s, hf):
    if 'noread' in ABL: return []
    slot = s % 4
    wb = V_WB0 if hf == 0 else V_WB1
    L = []
    for tp in range(2):
        dst = (V_XT + 4 * tp) if hf == 0 else (V_XP + (s * 2 + tp) * 4)
        L.append("ds_read_b128 %s, v%d offset:%d" % (vr(dst, 4), V_XA + hf * 2 + tp, slot * XSLOT))
    for T in range(5):
        for rd in range(2):
            L.append("ds_read_b64_tr_b16 %s, v%d offset:%d" % (vr(wb + 4 * T + 2 * rd, 2), V_WA + hf * 5 + T, slot * WSLOT + rd * 1280))
    return L

def p1_mfmas(s, hf, first):
    if 'nomfma' in ABL: return ["s_nop 0"]
    wb = V_WB0 if hf == 0 else V_WB1
    L = []
    for T in range(5):
        for tp in range(2):
            x = (V_XT + 4 * tp) if hf == 0 else (V_XP + (s * 2 + tp) * 4)
            L.append(mfma16(V_ACC + (tp * 5 + T) * 4, x, wb + 4 * T, "0" if first else None))
    return L

def p2_reads(u):
    v, seg = u >> 1, u & 1
    slot = (10 + v) % 4
    wb = V_WB0 if (u & 1) == 0 else V_WB1
    return ["ds_read_b64_tr_b16 %s, v%d offset:%d" % (vr(wb + 4 * T + 2 * rd, 2), V_WA2 + seg * 5 + T, slot * WSLOT + rd * 1280)
            for T in range(5) for rd in range(2)]

def p2_mfmas(u):
    wb = V_WB0 if (u & 1) == 0 else V_WB1
    return [mfma16(V_ACC2 + (tp * 5 + T) * 4, V_XP + (u * 2 + tp) * 4, wb + 4 * T, "0" if u == 0 else None)
            for T in range(5) for tp in range(2)]

def epi1_A(a, stflags=""):
    a("s_lshl_b32 s%d, s%d, 3" % (S_T0, S_CS))
    a("s_add_u32 s%d, s%d, s%d" % (S_T0, S_T0, S_G))
    a("s_lshl_b32 s%d, s%d, 6" % (S_T0, S_T0))
    a("s_lshl_b32 s%d, s%d, 2" % (S_T1, S_R))
    a("s_add_u32 s%d, s%d, s%d" % (S_T0, S_T0, S_T1))
    a("s_add_u32 s%d, s%d, s%d" % (S_T0, S_T0, S_RG))
    a("s_mul_i32 s%d, s%d, 5120" % (S_T0, S_T0))
    a("s_add_u32 s%d, s%d, %d" % (S_T0, S_T0, WS_KV))
    a("s_add_u32 s%d, s%d, 4096" % (S_T1, S_T0))
    a("s_nop 4")
    for T in range(5):
        e = V_ACC2 + T * 4
        for tp in range(2):
            d = V_ACC + (tp * 5 + T) * 4
            a("v_cvt_pk_bf16_f32 v%d, v%d, v%d" % (e + 2 * tp, d, d + 1))
            a("v_cvt_pk_bf16_f32 v%d, v%d, v%d" % (e + 2 * tp + 1, d + 2, d + 3))
        a("buffer_store_dwordx4 %s, v%d, s[%d:%d], s%d offen offset:%d %s" % (vr(e, 4), V_IMG, S_WS, S_WS + 3, S_T1 if T == 4 else S_T0, (T & 3) * 1024, stflags))
    a("s_nop 1")

def phi(a, regs, tmp):
    a("s_mov_b32 s%d, 0x%x" % (S_T4, f2u(LOG2E)))
    a("s_mov_b32 s%d, 0x%x" % (S_T5, f2u(1e-6)))
    for i in range(0, len(regs), 4):
        grp = regs[i:i + 4]
        for k, r in enumerate(grp): a("v_mul_f32 v%d, s%d, v%d" % (tmp + k, S_T4, r))
        for k, r in enumerate(grp): a("v_min_f32 v%d, 0, v%d" % (tmp + k, tmp + k))
        for k, r in enumerate(grp): a("v_exp_f32 v%d, v%d" % (tmp + k, tmp + k))
        for k, r in enumerate(grp): a("v_max_f32 v%d, 0, v%d" % (r, r))
        for k, r in enumerate(grp): a("v_add_f32 v%d, s%d, v%d" % (r, S_T5, r))
        for k, r in enumerate(grp): a("v_add_f32 v%d, v%d, v%d" % (r, r, tmp + k))

def piece_decode(a):
    a("s_and_b32 s%d, s%d, 1" % (S_T0, S_WV))
    a("s_lshl_b32 s%d, s%d, 6" % (S_T0, S_T0))
    a("v_add_u32 v5, s%d, v%d" % (S_T0, V_LANE))
    a("s_movk_i32 s%d, 2731" % S_T1)
    a("v_mul_u32_u24 v6, s%d, v5" % S_T1)
    a("v_lshrrev_b32 v6, 16, v6")
    a("v_mul_u32_u24 v7, 24, v6")
    a("v_sub_u32 v7, v5, v7")

def epi1_B(a, stflags=""):
    acc = lambda tp, T: V_ACC + (tp * 5 + T) * 4
    raw = V_WB0
    TMP = V_ACC2
    a("s_nop 7")
    for tp in range(2):
        for k in range(4):
            a("v_mov_b32 v%d, v%d" % (raw + tp * 4 + k, acc(tp, 4) + k))
    regs = []
    for T in (0, 1, 4):
        for tp in range(2):
            regs += [acc(tp, T) + k for k in range(4)]
    phi(a, regs, TMP)
    a("s_mov_b32 s%d, 0x00ff00ff" % S_M0)
    a("s_mov_b32 s%d, 0x00ff00ff" % (S_M0 + 1))
    for tp in range(2):
        for k in range(4):
            a("v_cndmask_b32_e64 v%d, v%d, v%d, s[%d:%d]" % (acc(tp, 4) + k, raw + tp * 4 + k, acc(tp, 4) + k, S_M0, S_M0 + 1))
    P = V_WB1
    for T in range(5):
        for tp in range(2):
            d = acc(tp, T)
            a("v_cvt_pk_bf16_f32 v%d, v%d, v%d" % (P + 4 * T + 2 * tp, d, d + 1))
            a("v_cvt_pk_bf16_f32 v%d, v%d, v%d" % (P + 4 * T + 2 * tp + 1, d + 2, d + 3))
    TB = V_WB0 + 8
    a("v_mov_b32 v%d, 0x3f803f80" % TMP)
    for k in range(4):
        a("v_cndmask_b32_e64 v%d, v%d, v%d, s[%d:%d]" % (TB + k, P + 16 + k, TMP, S_M0, S_M0 + 1))
    F0, F1, V0, V1, TA = P, P + 4, P + 8, P + 12, P + 16
    D = V_ACC
    a("s_nop 1")
    for i, (x, y) in enumerate([(F0, V0), (F1, V1), (F0, TB), (F1, TB), (TA, V0), (TA, V1), (TA, TB)]):
        a(mfma16(D + 4 * i, x, y, "0"))
    a("s_barrier")
    a("s_mul_i32 s%d, s%d, 7168" % (S_T0, S_WV))
    a("v_lshlrev_b32 v4, 4, v%d" % V_LANE)
    a("v_add_u32 v4, s%d, v4" % S_T0)
    a("s_nop 7")
    for i in range(7):
        a("ds_write_b128 v4, %s offset:%d" % (vr(D + 4 * i, 4), i * 1024))
    piece_decode(a)
    M = TMP
    a("s_lshr_b32 s%d, s%d, 1" % (S_T2, S_WV))
    a("s_and_b32 s%d, s%d, 1" % (S_T3, S_T2))
    a("s_lshr_b32 s%d, s%d, 1" % (S_T2, S_T2))
    a("s_lshl_b32 s%d, s%d, 2" % (S_T4, S_T3))
    a("s_sub_u32 s%d, s%d, 8" % (S_T4, S_T4))
    a("v_add_u32 v8, s%d, v7" % S_T4)
    a("v_cmp_gt_u32_e64 s[%d:%d], 20, v7" % (S_M0, S_M0 + 1))
    a("v_cmp_gt_u32_e64 s[%d:%d], 16, v7" % (S_M1, S_M1 + 1))
    a("v_cmp_gt_u32_e64 s[%d:%d], 4, v6" % (S_M2, S_M2 + 1))
    a("s_nop 1")
    a("v_cndmask_b32_e64 v8, 0, v8, s[%d:%d]" % (S_M0, S_M0 + 1))
    a("v_cndmask_b32_e64 v8, v8, v7, s[%d:%d]" % (S_M1, S_M1 + 1))
    a("v_mov_b32 v9, s%d" % S_T3)
    a("v_cndmask_b32_e64 v9, v9, v6, s[%d:%d]" % (S_M2, S_M2 + 1))
    a("v_lshl_add_u32 v8, v9, 4, v8")
    a("s_add_u32 s%d, s%d, 4" % (S_T4, S_T3))
    a("v_mov_b32 v9, s%d" % S_T4)
    a("v_mov_b32 v%d, s%d" % (M, S_T3))
    a("v_cndmask_b32_e64 v9, v9, v%d, s[%d:%d]" % (M, S_M2, S_M2 + 1))
    a("s_add_u32 s%d, s%d, 2" % (S_T4, S_T3))
    a("v_mov_b32 v%d, s%d" % (M, S_T4))
    a("v_cndmask_b32_e64 v%d, 6, v%d, s[%d:%d]" % (M, M, S_M2, S_M2 + 1))
    a("v_cndmask_b32_e64 v9, v%d, v9, s[%d:%d]" % (M, S_M1, S_M1 + 1))
    a("v_lshlrev_b32 v9, 10, v9")
    a("v_lshl_add_u32 v8, v8, 4, v9")
    a("s_mul_i32 s%d, s%d, %d" % (S_T4, S_T2, 4 * 7168))
    a("v_add_u32 v8, s%d, v8" % S_T4)
    a("v_cmp_gt_u32_e64 s[%d:%d], 21, v7" % (S_M0, S_M0 + 1))
    a("v_cmp_gt_u32_e64 s[%d:%d], 5, v6" % (S_M1, S_M1 + 1))
    a("s_waitcnt lgkmcnt(0)")
    a("s_barrier")
    a("s_and_b64 s[%d:%d], s[%d:%d], s[%d:%d]" % (S_M0, S_M0 + 1, S_M0, S_M0 + 1, S_M1, S_M1 + 1))
    a("v_min_u32 v8, %d, v8" % (8 * 7168 - 3 * 7168 - 16))
    E = V_ACC
    for rg in range(4):
        a("ds_read_b128 %s, v8 offset:%d" % (vr(E + 4 * rg, 4), rg * 7168))
    a("s_lshl_b32 s%d, s%d, 4" % (S_T0, S_G))
    a("s_add_u32 s%d, s%d, s%d" % (S_T0, S_T0, S_R))
    a("s_lshl_b32 s%d, s%d, 13" % (S_T0, S_T0))
    a("s_lshr_b32 s%d, s%d, 1" % (S_T1, S_WV))
    a("s_lshl_b32 s%d, s%d, 11" % (S_T1, S_T1))
    a("s_add_u32 s%d, s%d, s%d" % (S_T0, S_T0, S_T1))
    a("s_add_u32 s%d, s%d, %d" % (S_T0, S_T0, WS_PART))
    a("v_lshlrev_b32 v5, 4, v5")
    a("s_waitcnt lgkmcnt(0)")
    for k in range(4):
        a("v_add_f32 v%d, v%d, v%d" % (E + k, E + k, E + 4 + k))
        a("v_add_f32 v%d, v%d, v%d" % (E + 8 + k, E + 8 + k, E + 12 + k))
    for k in range(4):
        a("v_add_f32 v%d, v%d, v%d" % (E + k, E + k, E + 8 + k))
    a("s_mov_b64 exec, s[%d:%d]" % (S_M0, S_M0 + 1))
    a("buffer_store_dwordx4 %s, v5, s[%d:%d], s%d offen %s" % (vr(E, 4), S_WS, S_WS + 3, S_T0, stflags))
    a("s_mov_b64 exec, -1")

LDS_Q = 126976
def epi2(a, split):
    XCH = LDS_W
    a("s_barrier")
    a("s_mul_i32 s%d, s%d, 5120" % (S_T0, S_WV))
    a("s_add_u32 s%d, s%d, %d" % (S_T0, S_T0, XCH))
    a("v_lshlrev_b32 v4, 4, v%d" % V_LANE)
    a("v_add_u32 v5, s%d, v4" % S_T0)
    a("s_nop 4")
    for T in range(5):
        a("ds_write_b128 v5, %s offset:%d" % (vr(V_ACC2 + (5 + T) * 4, 4), T * 1024))
    a("s_xor_b32 s%d, s%d, 4" % (S_T0, S_WV))
    a("s_mul_i32 s%d, s%d, 5120" % (S_T0, S_T0))
    a("s_add_u32 s%d, s%d, %d" % (S_T0, S_T0, XCH))
    a("v_add_u32 v5, s%d, v4" % S_T0)
    a("s_waitcnt lgkmcnt(0)")
    a("s_barrier")
    R = V_WB0
    for T in range(5):
        a("ds_read_b128 %s, v5 offset:%d" % (vr(R + 4 * T, 4), T * 1024))
    a("s_waitcnt lgkmcnt(0)")
    regs = [V_ACC2 + T * 4 + k for T in range(5) for k in range(4)]
    for i, r in enumerate(regs):
        a("v_add_f32 v%d, v%d, v%d" % (r, r, R + i))
    lb, ld = a.newlabel("e2b"), a.newlabel("e2d")
    a("s_cmp_eq_u32 s%d, 0" % S_BR)
    a("s_cbranch_scc0 %s" % lb)
    a("s_mov_b32 s%d, 0x%x" % (S_T4, f2u(QSCALE)))
    for r in regs:
        a("v_mul_f32 v%d, s%d, v%d" % (r, S_T4, r))
    a("s_branch %s" % ld)
    a.label(lb)
    phi(a, regs, V_ACC)
    a.label(ld)
    for T in range(5):
        d = V_ACC2 + T * 4
        a("v_cvt_pk_bf16_f32 v%d, v%d, v%d" % (R + 2 * T, d, d + 1))
        a("v_cvt_pk_bf16_f32 v%d, v%d, v%d" % (R + 2 * T + 1, d + 2, d + 3))
    a("s_lshl_b32 s%d, s%d, 3" % (S_T1, S_CS))
    a("v_add_u32 v4, s%d, v%d" % (S_T1, V_IMG))
    if split:
        a("s_lshl_b32 s%d, s%d, 3" % (S_T0, S_BR))
        a("s_add_u32 s%d, s%d, s%d" % (S_T0, S_T0, S_G))
        a("s_lshl_b32 s%d, s%d, 6" % (S_T0, S_T0))
        a("s_lshl_b32 s%d, s%d, 2" % (S_T1, S_R))
        a("s_add_u32 s%d, s%d, s%d" % (S_T0, S_T0, S_T1))
        a("s_add_u32 s%d, s%d, s%d" % (S_T0, S_T0, S_RG))
        a("s_mul_i32 s%d, s%d, 5120" % (S_T0, S_T0))
        a("s_add_u32 s%d, s%d, %d" % (S_T0, S_T0, WS_Q))
        a("s_add_u32 s%d, s%d, 4096" % (S_T1, S_T0))
        for T in range(5):
            a("buffer_store_dwordx2 %s, v4, s[%d:%d], s%d offen offset:%d" % (vr(R + 2 * T, 2), S_WS, S_WS + 3, S_T1 if T == 4 else S_T0, (T & 3) * 1024))
    else:
        a("s_mul_i32 s%d, s%d, 5120" % (S_T0, S_RG))
        a("s_add_u32 s%d, s%d, %d" % (S_T0, S_T0, LDS_Q))
        a("v_add_u32 v4, s%d, v4" % S_T0)
        for T in range(5):
            a("ds_write_b64 v4, %s offset:%d" % (vr(R + 2 * T, 2), T * 1024))

def phase1(a, split):
    p1_dma_setup(a)
    pf_setup(a)
    entry_srd(a)
    emit(a, [p1_dma_w(0), p1_dma_x(0)])
    emit(a, [pf_issue('x', 1, 0), pf_issue('w', 1, 4), pf_issue('x', 2, 1), pf_issue('w', 2, 5)])
    emit(a, [p1_dma_w(1), p1_dma_x(1), p1_dma_w(2), p1_dma_x(2)])
    p1_addr_setup(a)
    a("s_waitcnt vmcnt(8)")
    a("s_barrier")
    stamp(a, 0)
    emit(a, p1_reads(0, 0))
    for s in range(10):
        a("s_waitcnt lgkmcnt(0)")
        weave(a, p1_mfmas(s, 0, s == 0), p1_reads(s, 1))
        if s == 8:
            lx, ld = a.newlabel("w8x"), a.newlabel("w8d")
            a("s_cmp_eq_u32 s%d, 0" % S_CS)
            a("s_cbranch_scc0 %s" % lx)
            a("s_waitcnt vmcnt(5)")
            a("s_branch %s" % ld)
            a.label(lx)
            a("s_waitcnt vmcnt(0)")
            a.label(ld)
        elif s == 9:
            a("s_waitcnt vmcnt(5)")
        else:
            a("s_waitcnt vmcnt(4)")
        a("s_waitcnt lgkmcnt(0)")
        a("s_barrier")
        pf = []
        if s == 0: pf = [pf_issue('x', 3, 2), pf_issue('w', 3, 6)]
        if s == 2: pf = [pf_issue('x', 4, 3), pf_issue('w', 4, 7)]
        if s == 4: pf = [pf_issue('q', 0, 0)]
        if s == 5: pf = [pf_issue('q', 1, 1)]
        if s == 6: pf = [pf_issue('q', 2, 2)]
        rd = p1_reads(s + 1, 0) if s < 9 else p2_reads(0)
        fill = rd[:3] + [p1_dma_w(s + 3)] + rd[3:9] + [[p1_dma_x(s + 3)] + pf] + rd[9:]
        weave(a, p1_mfmas(s, 1, False), fill)
    stamp(a, 1)
    lb, ld = a.newlabel("e1b"), a.newlabel("e1d")
    a("s_cmp_eq_u32 s%d, 0" % S_BR)
    a("s_cbranch_scc0 %s" % lb)
    epi1_A(a)
    a("s_branch %s" % ld)
    a.label(lb)
    a("s_waitcnt lgkmcnt(0)")
    epi1_B(a)
    emit(a, p2_reads(0))
    a.label(ld)
    stamp(a, 2)
    for u in range(10):
        a("s_waitcnt lgkmcnt(0)")
        fill = []
        if u + 1 < 10:
            if (u + 1) % 2 == 0:
                nxt = 10 + (u + 1) // 2
                a("s_waitcnt vmcnt(0)" if nxt >= 13 else "s_waitcnt vmcnt(5)")
                a("s_barrier")
                if 13 <= nxt + 2 <= 14:
                    fill = [p1_dma_w(nxt + 2)]
            rd = p2_reads(u + 1)
            fill = rd[:2] + fill + rd[2:]
        weave(a, p2_mfmas(u), fill)
    a("s_nop 7")
    stamp(a, 3)
    epi2(a, split)
    stamp(a, 4)

LDS_K, LDS_V = 0, 65536
LDS_KVR = 147456
A_KA0, A_KA1, A_KAT, A_VA0, A_VA1, A_QA0, A_QA1, A_QAT, A_OM, A_OT = 10, 11, 12, 13, 14, 15, 16, 17, 18, 19
A_AM = 20
A_MX = 28
A_Q1, A_Q2 = 32, 36
A_KB = 40
A_VB = 64
A_S = 96
A_O = 240
S_TAU0 = 23
S_EXV = 62
S_HI = 64
S_LO = 66
NEG_BIG = f2u(-3.0e38)

def jkey(r, h):
    m, b, e = r >> 3, (r >> 2) & 1, r & 3
    return 16 * (1 - b) + 8 * m + 4 * h + e

def diag_mask(r):
    lo = sum(1 << i for i in range(32) if jkey(r, 0) <= i)
    hi = sum(1 << i for i in range(32) if jkey(r, 1) <= i)
    return lo, hi

def p2_common_setup(a):
    a("v_and_b32 v4, 1, v%d" % V_KG)
    a("v_lshrrev_b32 v5, 1, v%d" % V_KG)
    a("v_lshrrev_b32 v6, 2, v%d" % V_N)
    a("v_and_b32 v7, 3, v%d" % V_N)
    a("s_and_b32 s%d, s%d, 3" % (S_T0, S_WV))
    a("s_lshr_b32 s%d, s%d, 2" % (S_T1, S_WV))
    a("s_mul_i32 s%d, s%d, 5120" % (S_T1, S_T1))
    a("s_lshl_b32 s%d, s%d, 10" % (S_T2, S_T0))
    a("s_add_u32 s%d, s%d, s%d" % (S_T2, S_T2, S_T1))
    a("s_add_u32 s%d, s%d, 4096" % (S_T3, S_T1))
    a("s_lshl_b32 s%d, s%d, 2" % (S_T4, S_T0))
    def addr(dst, nexpr_reg, kgimg, tbit, sbase, extra):
        a("v_lshl_add_u32 v9, v%d, 2, v%d" % (kgimg, nexpr_reg))
        a("v_and_b32 v9, 15, v9")
        a("v_lshl_add_u32 v9, v%d, 4, v9" % kgimg)
        a("v_lshlrev_b32 v9, 4, v9")
        a("v_lshl_add_u32 v9, v%d, 3, v9" % tbit)
        a("s_add_u32 s%d, s%d, %d" % (S_T5, sbase, extra))
        a("v_add_u32 v%d, s%d, v9" % (dst, S_T5))
    a("v_lshl_add_u32 v8, v5, 3, v6")
    addr(A_QA0, 8, 7, 4, S_T2, LDS_Q)
    a("v_add_u32 v30, 4, v8")
    addr(A_QA1, 30, 7, 4, S_T2, LDS_Q)
    a("v_add_u32 v31, s%d, v6" % S_T4)
    addr(A_QAT, 31, 7, 4, S_T3, LDS_Q)
    a("v_and_b32 v28, 1, v7")
    a("v_lshl_add_u32 v28, v4, 1, v28")
    a("v_lshrrev_b32 v29, 1, v7")
    a("v_xor_b32 v29, 1, v29")
    addr(A_KA0, 8, 28, 29, S_T2, LDS_K)
    addr(A_KA1, 30, 28, 29, S_T2, LDS_K)
    addr(A_KAT, 31, 28, 29, S_T3, LDS_K)
    a("v_and_b32 v4, 31, v%d" % V_LANE)
    a("v_lshrrev_b32 v5, 5, v%d" % V_LANE)
    a("v_cmp_gt_u32_e64 s[%d:%d], 16, v4" % (S_M0, S_M0 + 1))
    a("s_sub_u32 s%d, s%d, 16" % (S_T5, S_T4))
    a("v_add_u32 v6, s%d, v4" % S_T5)
    a("v_and_b32 v6, 15, v6")
    a("v_cndmask_b32_e64 v6, v6, v4, s[%d:%d]" % (S_M0, S_M0 + 1))
    a("v_mov_b32 v7, s%d" % S_T3)
    a("v_mov_b32 v8, s%d" % S_T2)
    a("v_cndmask_b32_e64 v7, v7, v8, s[%d:%d]" % (S_M0, S_M0 + 1))
    for m in range(2):
        a("v_add_u32 v8, %d, v5" % (2 * m))
        a("v_lshl_add_u32 v9, v8, 2, v6")
        a("v_and_b32 v9, 15, v9")
        a("v_lshl_add_u32 v9, v8, 4, v9")
        a("v_lshl_add_u32 v9, v9, 4, v7")
        a("v_add_u32 v%d, %d, v9" % (A_VA0 + m, LDS_V))
    a("s_lshl_b32 s%d, s%d, 2" % (S_T1, S_G))
    a("s_add_u32 s%d, s%d, s%d" % (S_T1, S_T1, S_T0))
    a("s_lshl_b32 s%d, s%d, 3" % (S_T2, S_R))
    a("s_lshr_b32 s%d, s%d, 2" % (S_T3, S_WV))
    a("s_lshl_b32 s%d, s%d, 1" % (S_T3, S_T3))
    a("s_add_u32 s%d, s%d, s%d" % (S_T2, S_T2, S_T3))
    a("s_mul_i32 s%d, s%d, 20480" % (S_T2, S_T2))
    a("s_mul_i32 s%d, s%d, %d" % (S_T3, S_BR, O_BR))
    a("s_add_u32 s%d, s%d, s%d" % (S_T2, S_T2, S_T3))
    a("s_add_u32 s%d, s%d, %d" % (S_T2, S_T2, WS_O))
    a("v_lshrrev_b32 v6, 4, v4")
    a("s_movk_i32 s%d, 20480" % S_T3)
    a("v_mul_u32_u24 v6, s%d, v6" % S_T3)
    a("v_and_b32 v7, 15, v4")
    a("v_lshl_add_u32 v6, v7, 4, v6")
    a("v_add_u32 v6, s%d, v6" % S_T2)
    a("s_lshr_b32 s%d, s%d, 1" % (S_T3, S_T1))
    a("s_lshl_b32 s%d, s%d, 10" % (S_T3, S_T3))
    a("s_and_b32 s%d, s%d, 1" % (S_T4, S_T1))
    a("s_lshl_b32 s%d, s%d, 9" % (S_T4, S_T4))
    a("s_add_u32 s%d, s%d, s%d" % (S_T3, S_T3, S_T4))
    a("v_lshl_add_u32 v7, v5, 8, v6")
    a("v_add_u32 v%d, s%d, v7" % (A_OM, S_T3))
    a("s_lshr_b32 s%d, s%d, 3" % (S_T3, S_T1))
    a("s_add_u32 s%d, s%d, 16" % (S_T3, S_T3))
    a("s_lshl_b32 s%d, s%d, 10" % (S_T3, S_T3))
    a("s_and_b32 s%d, s%d, 6" % (S_T4, S_T1))
    a("s_lshl_b32 s%d, s%d, 7" % (S_T4, S_T4))
    a("s_add_u32 s%d, s%d, s%d" % (S_T3, S_T3, S_T4))
    a("s_and_b32 s%d, s%d, 1" % (S_T4, S_T1))
    a("s_lshl_b32 s%d, s%d, 3" % (S_T4, S_T4))
    a("s_add_u32 s%d, s%d, s%d" % (S_T3, S_T3, S_T4))
    a("v_add_u32 v%d, s%d, v6" % (A_OT, S_T3))
    a("s_mov_b32 s%d, 0" % S_HI); a("s_mov_b32 s%d, -1" % (S_HI + 1))
    a("s_mov_b32 s%d, -1" % S_LO); a("s_mov_b32 s%d, 0" % (S_LO + 1))

def q_frag_reads():
    return ["ds_read_b64_tr_b16 %s, v%d" % (vr(A_Q1, 2), A_QA0),
            "ds_read_b64_tr_b16 %s, v%d" % (vr(A_Q1 + 2, 2), A_QA1),
            "ds_read_b64_tr_b16 %s, v%d" % (vr(A_Q2, 2), A_QAT)]
def q_frag_fix(a):
    a("v_cndmask_b32_e64 v%d, v%d, 0, s[%d:%d]" % (A_Q2, A_Q2, S_HI, S_HI + 1))
    a("v_cndmask_b32_e64 v%d, v%d, 0, s[%d:%d]" % (A_Q2 + 1, A_Q2 + 1, S_HI, S_HI + 1))

def o_epilogue(a, stflags="", eps=False):
    O = A_O
    a("v_cndmask_b32_e64 v30, v%d, v%d, s[%d:%d]" % (O + 12, O + 8, S_HI, S_HI + 1))
    if eps: a("v_add_f32 v30, 0x%x, v30" % f2u(1e-6))
    a("v_rcp_f32 v30, v30")
    a("s_nop 0")
    for k in range(12):
        a("v_mul_f32 v%d, v30, v%d" % (O + k, O + k))
    for k in range(6):
        a("v_cvt_pk_bf16_f32 v%d, v%d, v%d" % (O + k, O + 2 * k, O + 2 * k + 1))
    a("buffer_store_dwordx4 %s, v%d, s[%d:%d], 0 offen %s" % (vr(O, 4), A_OM, S_WS, S_WS + 3, stflags))
    a("s_mov_b64 exec, s[%d:%d]" % (S_LO, S_LO + 1))
    a("buffer_store_dwordx2 %s, v%d, s[%d:%d], 0 offen %s" % (vr(O + 4, 2), A_OT, S_WS, S_WS + 3, stflags))
    a("s_mov_b64 exec, -1")

def attn_setup(a):
    p2_common_setup(a)
    for r in range(16):
        lo, hi = diag_mask(r)
        a("s_mov_b32 s%d, 0x%x" % (S_MASK + 2 * r, lo)); a("s_mov_b32 s%d, 0x%x" % (S_MASK + 2 * r + 1, hi))
    a("v_mov_b32 v30, 0xffff")
    a("v_mov_b32 v31, 0xffff0000")
    for k in range(8):
        a("v_cndmask_b32_e64 v4, 0, v30, s[%d:%d]" % (S_MASK + 4 * k, S_MASK + 4 * k + 1))
        a("v_cndmask_b32_e64 v5, 0, v31, s[%d:%d]" % (S_MASK + 4 * k + 2, S_MASK + 4 * k + 3))
        a("v_or_b32 v%d, v4, v5" % (A_AM + k))
    a("v_mov_b32 v4, 0x3f803f80")
    for k in range(24): a("v_mov_b32 v%d, v4" % (A_VB + k))
    for b in range(3):
        a("v_mov_b32 v%d, 0" % (A_KB + 8 * b + 6)); a("v_mov_b32 v%d, 0" % (A_KB + 8 * b + 7))
    a("v_mov_b32 v%d, 0" % (A_Q2 + 2)); a("v_mov_b32 v%d, 0" % (A_Q2 + 3))
    a("s_mov_b32 s%d, 0x000fffff" % S_EXV); a("s_mov_b32 s%d, 0x000fffff" % (S_EXV + 1))

def k_reads(tau, buf):
    b = A_KB + 8 * buf
    return ["ds_read_b64_tr_b16 %s, v%d offset:%d" % (vr(b, 2), A_KA0, tau * 5120),
            "ds_read_b64_tr_b16 %s, v%d offset:%d" % (vr(b + 2, 2), A_KA1, tau * 5120),
            "ds_read_b64_tr_b16 %s, v%d offset:%d" % (vr(b + 4, 2), A_KAT, tau * 5120)]
def v_reads(tau, buf):
    b = A_VB + 8 * buf
    return [["s_mov_b64 exec, s[%d:%d]" % (S_EXV, S_EXV + 1),
             "ds_read_b128 %s, v%d offset:%d" % (vr(b, 4), A_VA0, tau * 5120),
             "ds_read_b128 %s, v%d offset:%d" % (vr(b + 4, 4), A_VA1, tau * 5120),
             "s_mov_b64 exec, -1"]]

def attn_unit(a, stubs, stflags="", mid=None):
    S = lambda t: A_S + 16 * t
    order = [8, 0, 1, 2, 3, 4, 5, 6, 7]
    emit(a, q_frag_reads())
    emit(a, k_reads(order[0], 0)); emit(a, k_reads(order[1], 1))
    a("s_waitcnt lgkmcnt(6)")
    q_frag_fix(a)
    accs = [28, 29, 30, 31]
    acc_init = [False] * 4
    pend = []
    def max_ops(base):
        L = []
        for k in range(0, 16, 2):
            ai = (k // 2) % 4
            if not acc_init[ai]:
                L.append("v_max_f32 v%d, v%d, v%d" % (accs[ai], base + k, base + k + 1)); acc_init[ai] = True
            else:
                L.append("v_max3_f32 v%d, v%d, v%d, v%d" % (accs[ai], base + k, base + k + 1, accs[ai]))
        return L
    merge = ["v_cndmask_b32_e64 v%d, v%d, v%d, s[%d:%d]" % (S(0) + r, S(0) + r, S(8) + r, S_MASK + 2 * r, S_MASK + 2 * r + 1) for r in range(16)]
    for idx, tau in enumerate(order):
        buf = idx % 3
        if idx + 2 < 9: emit(a, k_reads(order[idx + 2], (idx + 2) % 3))
        n_out = 3 * min(2, 8 - idx)
        a("s_waitcnt lgkmcnt(%d)" % n_out)
        kb = A_KB + 8 * buf
        mm = [mfma32(S(tau), kb, A_Q1, "0"), mfma32(S(tau), kb + 4, A_Q2)]
        if tau < 8:
            lf, lr = a.newlabel("fill"), a.newlabel("fret")
            a("s_cmp_gt_u32 s%d, %d" % (S_TAU0, tau))
            a("s_cbranch_scc1 %s" % lf)
            stubs.append((lf, lr, S(tau)))
        work = []
        if idx == 3: work = merge[:]
        if idx == 4: work = max_ops(S(0))
        if idx >= 5: work = max_ops(S(order[idx - 3]))
        a(mm[0])
        half = len(work) // 2
        if tau < 8 and False: pass
        a(mm[1])
        if tau < 8: a.label(lr)
        emit(a, work)
    emit(a, v_reads(8, 0)); emit(a, v_reads(0, 1))
    emit(a, max_ops(S(5)))
    emit(a, max_ops(S(6)))
    a("s_nop 3")
    emit(a, max_ops(S(7)))
    a("v_max3_f32 v28, v28, v29, v30")
    a("v_max_f32 v28, v28, v31")
    a("v_mov_b32 v29, v28")
    if mid: mid(a)
    a("s_nop 1")
    a("v_permlane32_swap_b32 v28, v29")
    a("s_nop 1")
    a("v_max_f32 v28, v28, v29")
    def sm_ops(base):
        L = []
        for k in range(0, 16, 2):
            L.append("v_pk_add_f32 %s, %s, v[28:29] op_sel_hi:[1,0] neg_lo:[0,1] neg_hi:[0,1]" % (vr(base + k, 2), vr(base + k, 2)))
        E = []
        for k in range(0, 16, 2):
            E.append(["v_exp_f32 v%d, v%d" % (base + k, base + k), "v_exp_f32 v%d, v%d" % (base + k + 1, base + k + 1)])
        out = L[:2]
        for k in range(8):
            out += E[k]
            if k + 2 < 8: out.append(L[k + 2])
            if k >= 1: out.append("v_cvt_pk_bf16_f32 v%d, v%d, v%d" % (base + k - 1, base + 2 * (k - 1), base + 2 * (k - 1) + 1))
        out.append("s_nop 0")
        out.append("v_cvt_pk_bf16_f32 v%d, v%d, v%d" % (base + 7, base + 14, base + 15))
        return out
    emit(a, sm_ops(S(0)))
    for k in range(8):
        a("v_and_b32 v%d, v%d, v%d" % (S(0) + 8 + k, S(0) + k, A_AM + k))
    for k in range(8):
        a("v_xor_b32 v%d, v%d, v%d" % (S(0) + k, S(0) + k, S(0) + 8 + k))
    a("s_waitcnt lgkmcnt(0)")
    emit(a, v_reads(1, 2))
    prev = [mfma32(A_O, A_VB + 0, S(0) + 8, "0"), mfma32(A_O, A_VB + 4, S(0) + 12)]
    prev_skip = None
    prev2 = ([mfma32(A_O, A_VB + 8, S(0)), mfma32(A_O, A_VB + 12, S(0) + 4)], 0)
    def guarded(mms, tau):
        def f(a):
            l = a.newlabel("pvs")
            a("s_cmp_gt_u32 s%d, %d" % (S_TAU0, tau))
            a("s_cbranch_scc1 %s" % l)
            for x in mms: a(x)
            a.label(l)
        return f
    vbuf = {8: 0, 0: 1}
    pv_pending = [prev[0], prev[1], guarded(prev2[0], 0)]
    for tau in range(1, 8):
        vb = (tau + 1) % 3
        sm = sm_ops(S(tau))
        weave(a, sm, pv_pending) if False else None
        n = len(sm); m = len(pv_pending); done = 0
        for i, x in enumerate(sm):
            emit(a, x)
            want = min(m, ((i + 1) * m + n // 2) // n) if i >= 1 else 0
            while done < want:
                emit(a, pv_pending[done]); done += 1
        while done < m:
            emit(a, pv_pending[done]); done += 1
        a("s_waitcnt lgkmcnt(0)")
        if tau + 1 < 8: emit(a, v_reads(tau + 1, (tau + 2) % 3))
        b = A_VB + 8 * vb
        pv_pending = [guarded([mfma32(A_O, b, S(tau)), mfma32(A_O, b + 4, S(tau) + 4)], tau)]
    a("s_nop 1")
    emit(a, pv_pending)
    a("s_nop 15")
    o_epilogue(a, stflags)

def attn_round_advance(a):
    for v in (A_KA0, A_KA1, A_KAT, A_VA0, A_VA1, A_QA0, A_QA1, A_QAT):
        a("v_add_u32 v%d, %d, v%d" % (v, 2 * 5120, v))
    a("v_add_u32 v%d, %d, v%d" % (A_OM, 4 * 20480, A_OM))
    a("v_add_u32 v%d, %d, v%d" % (A_OT, 4 * 20480, A_OT))

def set_tau0(a, qadd):
    a("s_lshl_b32 s%d, s%d, 2" % (S_T0, S_R))
    a("s_lshr_b32 s%d, s%d, 2" % (S_T1, S_WV))
    a("s_add_u32 s%d, s%d, s%d" % (S_T0, S_T0, S_T1))
    a("s_add_u32 s%d, s%d, %s" % (S_T0, S_T0, qadd))
    a("s_sub_i32 s%d, 8, s%d" % (S_TAU0, S_T0))
    a("s_max_i32 s%d, s%d, 0" % (S_TAU0, S_TAU0))

def emit_stubs(a, stubs):
    for lf, lr, base in stubs:
        a.label(lf)
        a("v_mov_b32 v%d, 0x%x" % (base, NEG_BIG))
        for k in range(1, 16): a("v_mov_b32 v%d, v%d" % (base + k, base))
        a("s_branch %s" % lr)

def attn_phase(a, stubs, stflags=""):
    attn_setup(a)
    a("s_mov_b32 s%d, 0" % S_DB)
    lr = a.newlabel("around")
    a("s_waitcnt vmcnt(0)")
    a("s_barrier")
    stamp(a, 5)
    a.label(lr)
    set_tau0(a, "s%d" % S_DB)
    attn_unit(a, stubs, stflags)
    attn_round_advance(a)
    a("s_add_u32 s%d, s%d, 2" % (S_DB, S_DB))
    a("s_cmp_lt_u32 s%d, 4" % S_DB)
    a("s_cbranch_scc1 %s" % lr)

def k2_loads_A(a, split):
    a("v_lshlrev_b32 v4, 4, v%d" % V_LANE)
    a("s_lshl_b32 s%d, s%d, 6" % (S_T0, S_G))
    a("s_lshl_b32 s%d, s%d, 2" % (S_T1, S_R))
    a("s_add_u32 s%d, s%d, s%d" % (S_T0, S_T0, S_T1))
    a("s_sub_i32 s%d, s%d, 8" % (S_T0, S_T0))
    a("s_mul_i32 s%d, s%d, 5120" % (S_T0, S_T0))
    a("s_lshl_b32 s%d, s%d, 10" % (S_T2, S_WV))
    a("s_add_u32 s%d, s%d, s%d" % (S_T0, S_T0, S_T2))
    a("s_lshl_b32 s%d, s%d, 2" % (S_T3, S_R))
    a("s_sub_i32 s%d, 8, s%d" % (S_T3, S_T3))
    a("s_max_i32 s%d, s%d, 0" % (S_T3, S_T3))
    a("s_mul_i32 s%d, s%d, 5120" % (S_T3, S_T3))
    for tensor in range(2):
        for k in range(8):
            l = a.newlabel("kvl")
            a("s_add_u32 s%d, s%d, %d" % (S_T4, S_T2, k * 8192))
            a("s_cmp_lt_u32 s%d, s%d" % (S_T4, S_T3))
            a("s_cbranch_scc1 %s" % l)
            if k == 7:
                a("s_cmp_ge_u32 s%d, 61440" % S_T4)
                a("s_cbranch_scc1 %s" % l)
            a("s_add_u32 m0, s%d, %d" % (S_T4, LDS_K if tensor == 0 else LDS_V))
            a("s_add_u32 s%d, s%d, %d" % (S_OFF, S_T0, WS_KV + tensor * 8 * 64 * 5120 + k * 8192))
            a("buffer_load_dwordx4 v4, s[%d:%d], s%d offen lds" % (S_WS, S_WS + 3, S_OFF))
            a.label(l)

def q_load(a):
    a("v_lshlrev_b32 v4, 4, v%d" % V_LANE)
    a("s_lshl_b32 s%d, s%d, 3" % (S_T0, S_BR))
    a("s_add_u32 s%d, s%d, s%d" % (S_T0, S_T0, S_G))
    a("s_lshl_b32 s%d, s%d, 6" % (S_T0, S_T0))
    a("s_lshl_b32 s%d, s%d, 2" % (S_T1, S_R))
    a("s_add_u32 s%d, s%d, s%d" % (S_T0, S_T0, S_T1))
    a("s_mul_i32 s%d, s%d, 5120" % (S_T0, S_T0))
    a("s_lshl_b32 s%d, s%d, 10" % (S_T2, S_WV))
    a("s_add_u32 s%d, s%d, s%d" % (S_T0, S_T0, S_T2))
    for k in range(3):
        l = a.newlabel("ql")
        if k == 2:
            a("s_cmp_ge_u32 s%d, 4" % S_WV)
            a("s_cbranch_scc1 %s" % l)
        a("s_add_u32 m0, s%d, %d" % (S_T2, LDS_Q + k * 8192))
        a("s_add_u32 s%d, s%d, %d" % (S_OFF, S_T0, WS_Q + k * 8192))
        a("buffer_load_dwordx4 v4, s[%d:%d], s%d offen lds" % (S_WS, S_WS + 3, S_OFF))
        a.label(l)

def apply_phase(a, stflags="", ldflags=""):
    piece_decode(a)
    a("v_cmp_gt_u32_e64 s[%d:%d], 21, v7" % (S_M0, S_M0 + 1))
    a("v_cmp_gt_u32_e64 s[%d:%d], 5, v6" % (S_M1, S_M1 + 1))
    a("s_lshl_b32 s%d, s%d, 17" % (S_T0, S_G))
    a("s_lshr_b32 s%d, s%d, 1" % (S_T1, S_WV))
    a("s_lshl_b32 s%d, s%d, 11" % (S_T1, S_T1))
    a("s_add_u32 s%d, s%d, s%d" % (S_T0, S_T0, S_T1))
    a("s_add_u32 s%d, s%d, %d" % (S_T0, S_T0, WS_PART))
    a("v_lshlrev_b32 v5, 4, v5")
    a("s_and_b64 s[%d:%d], s[%d:%d], s[%d:%d]" % (S_M0, S_M0 + 1, S_M0, S_M0 + 1, S_M1, S_M1 + 1))
    P = A_S
    for k in range(64): a("v_mov_b32 v%d, 0" % (P + k)) if False else None
    a("s_mov_b64 exec, s[%d:%d]" % (S_M0, S_M0 + 1))
    for r in range(16):
        a("s_add_u32 s%d, s%d, %d" % (S_OFF, S_T0, r * 8192))
        a("buffer_load_dwordx4 %s, v5, s[%d:%d], s%d offen %s" % (vr(P + 4 * r, 4), S_WS, S_WS + 3, S_OFF, ldflags))
    a("s_mov_b64 exec, -1")
    a("v_add_u32 v8, %d, v5" % LDS_KVR)
    a("v_add_u32 v8, s%d, v8" % S_T1)
    p2_common_setup(a) if False else None
    a("s_waitcnt vmcnt(0)")
    for st in (8, 4, 2, 1):
        for r in range(st):
            for k in range(4):
                a("v_add_f32 v%d, v%d, v%d" % (P + 4 * r + k, P + 4 * r + k, P + 4 * (r + st) + k))
    a("s_mov_b64 exec, s[%d:%d]" % (S_M0, S_M0 + 1))
    a("ds_write_b128 v8, %s" % vr(P, 4))
    a("s_mov_b64 exec, -1")
    p2_common_setup(a)
    a("v_mov_b32 v%d, 0" % (A_Q2 + 2)); a("v_mov_b32 v%d, 0" % (A_Q2 + 3))
    a("v_and_b32 v4, 31, v%d" % V_LANE)
    a("v_min_u32 v4, 20, v4")
    a("v_lshrrev_b32 v5, 5, v%d" % V_LANE)
    a("v_mul_u32_u24 v6, 48, v5")
    a("v_add_u32 v6, v6, v4")
    a("s_and_b32 s%d, s%d, 3" % (S_T0, S_WV))
    a("s_lshl_b32 s%d, s%d, 11" % (S_T0, S_T0))
    a("s_add_u32 s%d, s%d, %d" % (S_T0, S_T0, LDS_KVR))
    a("v_lshlrev_b32 v6, 4, v6")
    a("v_add_u32 v6, s%d, v6" % S_T0)
    a("v_lshlrev_b32 v7, 4, v4")
    a("v_add_u32 v7, s%d, v7" % S_T0)
    a("s_waitcnt lgkmcnt(0)")
    a("s_barrier")
    F = A_KB
    a("ds_read_b128 %s, v6" % vr(F, 4))
    a("ds_read_b128 %s, v6 offset:%d" % (vr(F + 4, 4), 24 * 16))
    a("ds_read_b128 %s, v7 offset:%d" % (vr(F + 8, 4), 4 * 24 * 16))
    a("s_waitcnt lgkmcnt(0)")
    KV1, KV2 = A_VB, A_VB + 4
    for k in range(4): a("v_cvt_pk_bf16_f32 v%d, v%d, v%d" % (KV1 + k, F + 2 * k, F + 2 * k + 1))
    for k in range(2): a("v_cvt_pk_bf16_f32 v%d, v%d, v%d" % (KV2 + k, F + 8 + 2 * k, F + 9 + 2 * k))
    a("v_mov_b32 v%d, 0" % (KV2 + 2)); a("v_mov_b32 v%d, 0" % (KV2 + 3))
    for rnd in range(2):
        emit(a, q_frag_reads())
        a("s_waitcnt lgkmcnt(0)")
        q_frag_fix(a)
        a("s_nop 1")
        a(mfma32(A_O, KV1, A_Q1, "0"))
        a(mfma32(A_O, KV2, A_Q2))
        a("s_nop 15")
        o_epilogue(a, stflags, eps=True)
        if rnd == 0: attn_round_advance(a)

C_DMA = 10
C_WA, C_WT = 15, 16
C_OF = 17
C_OUT = 18
C_XA = 19
C_O = 32
C_WB0, C_WB1 = 72, 92
C_ACC = 112
C_R = 132

def p3_setup(a):
    a("s_mul_i32 s%d, s%d, 160" % (S_T0, S_G))
    a("s_movk_i32 s%d, 6554" % S_T2)
    a("s_movk_i32 s%d, 1280" % S_T3)
    for j in range(5):
        a("v_add_u32 v4, %d, v%d" % (64 * j, V_LANE))
        a("v_mul_u32_u24 v5, s%d, v4" % S_T2)
        a("v_lshrrev_b32 v5, 16, v5")
        a("v_mul_u32_u24 v6, 10, v5")
        a("v_sub_u32 v6, v4, v6")
        a("v_mul_u32_u24 v5, s%d, v5" % S_T3)
        a("v_lshl_add_u32 v5, v6, 4, v5")
        a("v_add_u32 v%d, s%d, v5" % (C_DMA + j, S_T0))
    a("v_lshrrev_b32 v4, 1, v%d" % V_KG)
    a("v_and_b32 v5, 1, v%d" % V_KG)
    a("v_lshrrev_b32 v6, 2, v%d" % V_N)
    a("v_and_b32 v7, 3, v%d" % V_N)
    a("v_mul_u32_u24 v8, 20, v4")
    a("v_lshl_add_u32 v8, v5, 2, v8")
    a("v_add_u32 v8, v8, v6")
    a("s_movk_i32 s%d, 160" % S_T1)
    a("v_mul_u32_u24 v8, s%d, v8" % S_T1)
    a("v_lshl_add_u32 v8, v7, 3, v8")
    a("s_mul_i32 s%d, s%d, 51200" % (S_T2, S_CS))
    a("v_add_u32 v%d, s%d, v8" % (C_WA, S_T2))
    a("v_mul_u32_u24 v8, 40, v%d" % V_KG)
    a("v_add3_u32 v8, v8, v6, 16")
    a("v_mul_u32_u24 v8, s%d, v8" % S_T1)
    a("v_lshl_add_u32 v8, v7, 3, v8")
    a("v_add_u32 v%d, s%d, v8" % (C_WT, S_T2))
    a("v_lshlrev_b32 v%d, 4, v%d" % (C_OF, V_LANE))
    a("s_lshl_b32 s%d, s%d, 4" % (S_T2, S_RG))
    a("v_add_u32 v8, s%d, v%d" % (S_T2, V_N))
    a("s_movk_i32 s%d, 2560" % S_T2)
    a("v_mul_u32_u24 v8, s%d, v8" % S_T2)
    a("v_lshl_add_u32 v8, v%d, 3, v8" % V_KG)
    a("v_add_u32 v%d, s%d, v8" % (C_OUT, S_T0))
    a("s_mul_i32 s%d, s%d, 5120" % (S_T2, S_RG))
    a("s_add_u32 s%d, s%d, %d" % (S_T2, S_T2, 102400))
    a("v_add_u32 v%d, s%d, v%d" % (C_XA, S_T2, C_OF))

def wo_load(a, srd_wo):
    for k in range(3):
        l = a.newlabel("wol")
        if k == 2:
            a("s_cmp_ge_u32 s%d, 4" % S_WV)
            a("s_cbranch_scc1 %s" % l)
        a("s_add_u32 s%d, s%d, %d" % (S_T0, S_WV, 8 * k))
        a("s_mul_i32 s%d, s%d, %d" % (S_OFF, S_T0, 32 * 1280))
        a("s_mul_i32 s%d, s%d, 5120" % (S_T0, S_T0))
        for j in range(5):
            a("s_add_u32 m0, s%d, %d" % (S_T0, j * 1024))
            a("s_nop 0")
            a("buffer_load_dwordx4 v%d, s[%d:%d], s%d offen lds" % (C_DMA + j, srd_wo, srd_wo + 3, S_OFF))
        a.label(l)

def p3_oloads(a, s_br, s_row0, ldflags=""):
    a("s_lshr_b32 s%d, s%d, 4" % (S_T0, s_row0))
    a("s_add_u32 s%d, s%d, s%d" % (S_T0, S_T0, S_RG))
    a("s_mul_i32 s%d, s%d, 20480" % (S_T0, S_T0))
    a("s_mul_i32 s%d, s%d, %d" % (S_T1, s_br, O_BR))
    a("s_add_u32 s%d, s%d, s%d" % (S_T0, S_T0, S_T1))
    a("s_add_u32 s%d, s%d, %d" % (S_T0, S_T0, WS_O))
    a("s_lshl_b32 s%d, s%d, 13" % (S_T1, S_CS))
    a("s_add_u32 s%d, s%d, s%d" % (S_T1, S_T1, S_T0))
    for i in range(8):
        a("s_add_u32 s%d, s%d, %d" % (S_OFF, S_T1, i * 1024))
        a("buffer_load_dwordx4 %s, v%d, s[%d:%d], s%d offen %s" % (vr(C_O + 4 * i, 4), C_OF, S_WS, S_WS + 3, S_OFF, ldflags))
    a("s_lshl_b32 s%d, s%d, 11" % (S_T1, S_CS))
    a("s_add_u32 s%d, s%d, s%d" % (S_T1, S_T1, S_T0))
    for i in range(2):
        a("s_add_u32 s%d, s%d, %d" % (S_OFF, S_T1, (16 + i) * 1024))
        a("buffer_load_dwordx4 %s, v%d, s[%d:%d], s%d offen %s" % (vr(C_O + 32 + 4 * i, 4), C_OF, S_WS, S_WS + 3, S_OFF, ldflags))

def p3_wreads(i):
    wb = C_WB0 if (i & 1) == 0 else C_WB1
    L = []
    for T in range(5):
        for rd in range(2):
            if i < 8: L.append("ds_read_b64_tr_b16 %s, v%d offset:%d" % (vr(wb + 4 * T + 2 * rd, 2), C_WA, i * 6400 + rd * 1280 + 32 * T))
            else: L.append("ds_read_b64_tr_b16 %s, v%d offset:%d" % (vr(wb + 4 * T + 2 * rd, 2), C_WT, (i - 8) * 25600 + rd * 3200 + 32 * T))
    return L

def p3_job(a, s_br, s_row0):
    emit(a, p3_wreads(0))
    for i in range(10):
        a("s_waitcnt lgkmcnt(0)")
        wb = C_WB0 if (i & 1) == 0 else C_WB1
        mm = [mfma16(C_ACC + 4 * T, wb + 4 * T, C_O + 4 * i, "0" if i == 0 else None) for T in range(5)]
        weave(a, mm, p3_wreads(i + 1) if i < 9 else [])
    l1, l2 = a.newlabel("j1"), a.newlabel("j2")
    a("s_nop 7")
    a("s_cmp_eq_u32 s%d, 0" % S_CS)
    a("s_cbranch_scc1 %s" % l1)
    for T in range(5):
        a("ds_write_b128 v%d, %s offset:%d" % (C_XA, vr(C_ACC + 4 * T, 4), T * 1024))
    a("s_waitcnt lgkmcnt(0)")
    a.label(l1)
    a("s_barrier")
    a("s_cmp_eq_u32 s%d, 0" % S_CS)
    a("s_cbranch_scc0 %s" % l2)
    for T in range(5):
        a("ds_read_b128 %s, v%d offset:%d" % (vr(C_R + 4 * T, 4), C_XA, T * 1024))
    a("s_mul_i32 s%d, s%d, 2560" % (S_T0, s_row0))
    a("s_mul_i32 s%d, s%d, 1280" % (S_T1, s_br))
    a("s_add_u32 s%d, s%d, s%d" % (S_T0, S_T0, S_T1))
    a("s_waitcnt lgkmcnt(0)")
    for k in range(20):
        a("v_add_f32 v%d, v%d, v%d" % (C_ACC + k, C_ACC + k, C_R + k))
    for T in range(5):
        d = C_ACC + 4 * T
        a("v_cvt_pk_bf16_f32 v%d, v%d, v%d" % (C_R + 2 * T, d, d + 1))
        a("v_cvt_pk_bf16_f32 v%d, v%d, v%d" % (C_R + 2 * T + 1, d + 2, d + 3))
    for T in range(5):
        a("buffer_store_dwordx2 %s, v%d, s[%d:%d], s%d offen offset:%d" % (vr(C_R + 2 * T, 2), C_OUT, S_OUT, S_OUT + 3, S_T0, 32 * T))
    a.label(l2)
    a("s_barrier")

HEADER = """; sliding-window attention block + linear attention block (generated by gen.py)
"""
def kernel_text(name, body):
    return ".globl %s\n.p2align 8\n.type %s,@function\n%s:\n" % (name, name, name) + body

def kd_text(name, vgpr=256, sgpr=102):
    return (".amdhsa_kernel %s\n  .amdhsa_next_free_vgpr %d\n  .amdhsa_next_free_sgpr %d\n  .amdhsa_accum_offset %d\n"
            "  .amdhsa_group_segment_fixed_size 0\n  .amdhsa_kernarg_size 72\n  .amdhsa_user_sgpr_count 2\n"
            "  .amdhsa_user_sgpr_kernarg_segment_ptr 1\n  .amdhsa_system_sgpr_workgroup_id_x 1\n.end_amdhsa_kernel\n") % (name, vgpr, sgpr, (vgpr + 3) // 4 * 4)

def build_split(nk=3):
    out = [HEADER]
    names = ["k1_kernel", "k2_kernel", "k3_kernel"][:nk]
    for n in names:
        out.append("; @launch kernel=%s grid=(256,1,1) block=(512,1,1) lds=163840\n" % n)
    out.append('.amdgcn_target "amdgcn-amd-amdhsa--gfx950"\n.text\n')
    a = Asm(); a.nlab = 1000
    entry(a, "L_end1")
    phase1(a, True)
    a("s_waitcnt vmcnt(0)")
    stamp(a, 5)
    stamp_store(a, 0)
    a.label("L_end1"); a("s_endpgm")
    out.append(kernel_text("k1_kernel", a.text()))
    if nk >= 2:
        a = Asm(); a.nlab = 2000
        stubs = []
        entry(a, "L_end2")
        entry_srd(a)
        stamp(a, 0)
        q_load(a)
        lb = a.newlabel("k2b")
        a("s_cmp_eq_u32 s%d, 0" % S_BR)
        a("s_cbranch_scc0 %s" % lb)
        k2_loads_A(a, True)
        stamp(a, 1)
        attn_phase(a, stubs)
        a("s_branch L_fin2")
        emit_stubs(a, stubs)
        a.label(lb)
        stamp(a, 1); stamp(a, 5)
        apply_phase(a)
        a.label("L_fin2")
        stamp(a, 2)
        a("s_waitcnt vmcnt(0)")
        stamp(a, 3); stamp(a, 4); stamp(a, 6); stamp(a, 7)
        stamp_store(a, 1)
        a.label("L_end2"); a("s_endpgm")
        out.append(kernel_text("k2_kernel", a.text()))
    if nk >= 3:
        a = Asm(); a.nlab = 3000
        entry(a, "L_end3")
        p3_setup(a)
        entry_srd(a)
        stamp(a, 0)
        a("s_cmp_eq_u32 s%d, 0" % S_BR)
        for k in range(2):
            a("s_cselect_b32 s%d, s%d, s%d" % (S_WO + k, S_WO + k, S_WOB + k))
        wo_load(a, S_WO)
        a("s_lshl_b32 s%d, s%d, 7" % (S_DB, S_R))
        p3_oloads(a, S_BR, S_DB)
        a("s_waitcnt vmcnt(0)")
        a("s_barrier")
        stamp(a, 1)
        p3_job(a, S_BR, S_DB)
        stamp(a, 2)
        a("s_add_u32 s%d, s%d, 64" % (S_DB, S_DB))
        p3_oloads(a, S_BR, S_DB)
        a("s_waitcnt vmcnt(0)")
        p3_job(a, S_BR, S_DB)
        stamp(a, 3)
        a("s_waitcnt vmcnt(0)")
        stamp(a, 4); stamp(a, 5); stamp(a, 6); stamp(a, 7)
        stamp_store(a, 2)
        a.label("L_end3"); a("s_endpgm")
        out.append(kernel_text("k3_kernel", a.text()))
    out.append('.section .rodata,"a"\n')
    for n in names:
        out.append(".p2align 6\n" + kd_text(n))
    return "".join(out)

if __name__ == "__main__":
    mode = sys.argv[1]
    STAMPS = "stamps" in sys.argv
    PF = "nopf" not in sys.argv
    ABL = set(x for x in sys.argv if x in ("noread", "nomfma", "nodma"))
    if mode == "split":
        txt = build_split(1 if 'k1only' in sys.argv else 3)
    open(sys.argv[2], "w").write(txt)
```

```python
import sys, struct
from asmlib import Asm, vr, sr
import gen as G
from gen import (WS_KV, WS_O, WS_PART, WS_FLAG, WS_STAMP, WS_SIZE, O_BR, f2u, mfma16, mfma32, emit, weave,
                 S_X, S_W, S_WS, S_OUT, S_WO, S_WOB, S_BR, S_R, S_G, S_WV, S_RG, S_CS, S_T0, S_T1, S_T2, S_T3, S_T4, S_T5,
                 S_DB, S_OFF, S_M0, S_M1, S_M2, S_I, V_IMG, V_LANE, V_N, V_KG, V_DMA, V_XA, V_WA, V_PF, V_XT, V_WB0, V_WB1,
                 V_ACC, V_ACC2, V_XP, V_DMA2, V_PFD, V_WA2, LDS_W, XSLOT, WSLOT, minwrap, srd)

NAME = "concat_heads__sliding_block__linear_attn_block__prompt_kernel"
S_NONCE = 3
F_KV, F_PART, F_OA, F_OB = WS_FLAG + 0x1000, WS_FLAG + 0x5000, WS_FLAG + 0x9000, WS_FLAG + 0x11000
SPIN_LIMIT = 40000
ST, LD = "sc1", "sc1"
OPT = set()

class LQ:
    def __init__(self, a): self.a, self.n, self.done = a, 0, 0
    def issue(self, s):
        emit(self.a, s); self.n += 1; return self.n
    def need(self, idx):
        if idx > self.done:
            cnt = self.n - idx
            self.a("s_waitcnt lgkmcnt(%d)" % min(cnt, 15))
            self.done = idx if cnt <= 15 else self.n - 15
    def drain(self):
        if self.n > self.done:
            self.a("s_waitcnt lgkmcnt(0)"); self.done = self.n

def rec(f, *args):
    r = Asm(); r.nlab = 900000; f(r, *args)
    return [l.strip() for l in r.lines]

def entry(a):
    a("s_cmp_ge_u32 s2, 256")
    a("s_cbranch_scc1 L_end")
    if G.STAMPS:
        a("s_memrealtime s[100:101]")
        a("s_memtime s[62:63]")
    a("s_load_dwordx16 s[4:19], s[0:1], 0")
    a("s_load_dwordx2 s[20:21], s[0:1], 64")
    a("s_and_b32 s%d, s2, 7" % S_T0)
    a("s_lshr_b32 s%d, s2, 3" % S_I)
    a("v_lshrrev_b32 v4, 6, v0")
    a("v_and_b32 v%d, 63, v0" % V_LANE)
    a("v_and_b32 v%d, 15, v0" % V_N)
    a("v_readfirstlane_b32 s%d, v4" % S_WV)
    a("v_lshrrev_b32 v%d, 4, v%d" % (V_KG, V_LANE))
    if 'nocodepf' not in OPT:
        lp = a.newlabel("cpf")
        a("s_nop 1")
        a("s_cmp_eq_u32 s%d, 7" % S_WV)
        a("s_cbranch_scc0 %s" % lp)
        a("s_getpc_b64 s[56:57]")
        a.label("L_pcbase")
        a("s_and_b32 s%d, s%d, 7" % (S_T4, S_I))
        a("s_mul_i32 s%d, s%d, CODE_CHUNK" % (S_T4, S_T4))
        a("v_lshlrev_b32 v4, 7, v%d" % V_LANE)
        a("v_add_u32 v4, s%d, v4" % S_T4)
        a("v_min_u32 v4, CODE_LAST, v4")
        a("global_load_dword v%d, v4, s[56:57]" % V_PFD)
        a.label(lp)
    else:
        a("s_nop 3")
    a("s_and_b32 s%d, s%d, 1" % (S_BR, S_T0))
    a("s_lshr_b32 s%d, s%d, 1" % (S_T2, S_T0))
    a("s_and_b32 s%d, s%d, 1" % (S_T3, S_T2))
    a("s_lshl_b32 s%d, s%d, 3" % (S_T3, S_T3))
    a("s_and_b32 s%d, s%d, 7" % (S_T4, S_I))
    a("s_add_u32 s%d, s%d, s%d" % (S_R, S_T3, S_T4))
    a("s_lshr_b32 s%d, s%d, 1" % (S_T3, S_T2))
    a("s_lshl_b32 s%d, s%d, 2" % (S_T3, S_T3))
    a("s_lshr_b32 s%d, s%d, 3" % (S_T4, S_I))
    a("s_add_u32 s%d, s%d, s%d" % (S_G, S_T3, S_T4))
    a("s_and_b32 s%d, s%d, 3" % (S_RG, S_WV))
    a("s_lshr_b32 s%d, s%d, 2" % (S_CS, S_WV))

def entry_srd(a):
    a("s_waitcnt lgkmcnt(0)")
    a("s_cmp_eq_u32 s%d, 0" % S_BR)
    a("s_cselect_b32 s%d, s4, s10" % S_X)
    a("s_cselect_b32 s%d, s5, s11" % (S_X + 1))
    a("s_mov_b32 s%d, 2621440" % (S_X + 2))
    a("s_mov_b32 s%d, 0x20000" % (S_X + 3))
    a("s_cselect_b32 s%d, s6, s12" % S_W)
    a("s_cselect_b32 s%d, s7, s13" % (S_W + 1))
    a("s_mov_b32 s%d, 2457600" % (S_W + 2))
    a("s_mov_b32 s%d, 0x20000" % (S_W + 3))

def entry_srd2(a):
    srd(a, S_WS, 20, 21, WS_SIZE)
    srd(a, S_OUT, 16, 17, 5242880)
    srd(a, S_WO, 8, 9, 819200)
    srd(a, S_WOB, 14, 15, 819200)
    a("s_add_u32 s%d, s20, %d" % (S_T0, WS_FLAG))
    a("s_addc_u32 s%d, s21, 0" % S_T1)
    a("s_load_dword s%d, s[%d:%d], 0" % (S_NONCE, S_T0, S_T1))
    if G.STAMPS:
        a("s_mov_b32 s101, s100")
        a("s_mov_b32 s100, s62")

def dma_setup(a):
    lx, ld = a.newlabel("xrole"), a.newlabel("dmaset")
    a("s_cmp_eq_u32 s%d, 0" % S_CS)
    a("s_cbranch_scc0 %s" % lx)
    a("s_mul_i32 s%d, s%d, %d" % (S_T0, S_RG, 16 * 3840))
    a("s_mul_i32 s%d, s%d, 160" % (S_T1, S_G))
    a("s_add_u32 s%d, s%d, s%d" % (S_T0, S_T0, S_T1))
    a("s_add_u32 s%d, s%d, 1280" % (S_T1, S_T0))
    a("s_movk_i32 s%d, 3277" % S_T2)
    a("s_movk_i32 s%d, 3840" % S_T3)
    a("s_mov_b32 s%d, %d" % (S_T4, 245760 - 160))
    a("s_movk_i32 s%d, 1120" % S_T5)
    for j in range(5):
        p, kk, q, u, t = 4, 5, 6, 7, 8
        a("v_add_u32 v%d, %d, v%d" % (p, 64 * j, V_LANE))
        a("v_mul_u32_u24 v%d, s%d, v%d" % (kk, S_T2, p))
        a("v_lshrrev_b32 v%d, 16, v%d" % (kk, kk))
        a("v_mad_i32_i24 v%d, v%d, -20, v%d" % (q, kk, p)) if False else None
        a("v_mul_u32_u24 v%d, 20, v%d" % (q, kk))
        a("v_lshrrev_b32 v%d, 2, v%d" % (u, kk))
        a("v_sub_u32 v%d, v%d, v%d" % (q, p, q))
        a("v_and_b32 v%d, 2, v%d" % (u, u))
        a("v_sub_u32 v%d, v%d, v%d" % (u, q, u))
        a("v_add_u32 v%d, 20, v%d" % (t, u))
        a("v_min_u32 v%d, v%d, v%d" % (u, u, t))
        a("v_add_u32 v%d, 6, v%d" % (t, u))
        a("v_lshrrev_b32 v%d, 4, v%d" % (t, t))
        a("v_mul_u32_u24 v%d, s%d, v%d" % (kk, S_T3, kk))
        a("v_lshl_add_u32 v%d, v%d, 4, v%d" % (kk, u, kk))
        a("v_mad_u32_u24 v%d, v%d, s%d, v%d" % (q, t, S_T5, kk))
        a("v_add_u32 v%d, s%d, v%d" % (V_DMA + j, S_T1, q))
        a("v_mad_u32_u24 v%d, v%d, s%d, v%d" % (q, t, S_T4, kk))
        a("v_add_u32 v%d, s%d, v%d" % (V_DMA2 + j, S_T0, q))
    a("s_mul_i32 s%d, s%d, 5120" % (S_DB, S_RG))
    a("s_add_u32 s%d, s%d, %d" % (S_DB, S_DB, LDS_W))
    a("s_branch %s" % ld)
    a.label(lx)
    a("s_lshl_b32 s%d, s%d, 7" % (S_T0, S_R))
    a("s_lshl_b32 s%d, s%d, 5" % (S_T1, S_RG))
    a("s_add_u32 s%d, s%d, s%d" % (S_T0, S_T0, S_T1))
    a("s_mul_i32 s%d, s%d, 1280" % (S_T0, S_T0))
    a("s_movk_i32 s%d, 1280" % S_T1)
    a("v_lshrrev_b32 v4, 3, v%d" % V_LANE)
    a("v_and_b32 v5, 7, v%d" % V_LANE)
    a("v_xor_b32 v5, v5, v4")
    a("v_mul_u32_u24 v4, s%d, v4" % S_T1)
    a("v_lshl_add_u32 v4, v5, 4, v4")
    a("v_add_u32 v%d, s%d, v4" % (V_DMA, S_T0))
    for j in range(1, 5): a("v_mov_b32 v%d, v%d" % (V_DMA + j, V_DMA))
    for j in range(5): a("v_mov_b32 v%d, 0" % (V_DMA2 + j))
    a("s_lshl_b32 s%d, s%d, 12" % (S_DB, S_RG))
    a.label(ld)

def addr1_setup(a):
    a("v_and_b32 v4, 7, v%d" % V_N)
    a("s_lshl_b32 s%d, s%d, 12" % (S_T0, S_RG))
    a("v_lshlrev_b32 v5, 7, v%d" % V_N)
    a("v_xor_b32 v4, v4, v%d" % V_KG)
    a("v_lshl_add_u32 v4, v4, 4, v5")
    a("s_xor_b32 s%d, s%d, 1" % (S_T5, S_CS))
    a("s_lshl_b32 s%d, s%d, 6" % (S_T1, S_T5))
    a("s_lshl_b32 s%d, s%d, 11" % (S_T2, S_CS))
    a("s_or_b32 s%d, s%d, s%d" % (S_T1, S_T1, S_T2))
    a("s_or_b32 s%d, s%d, s%d" % (S_T1, S_T1, S_T0))
    a("v_xor_b32 v%d, s%d, v4" % (V_XA, S_T1))
    a("v_xor_b32 v%d, 0x800, v%d" % (V_XA + 1, V_XA))
    a("v_xor_b32 v%d, 64, v%d" % (V_XA + 2, V_XA))
    a("v_xor_b32 v%d, 64, v%d" % (V_XA + 3, V_XA + 1))
    a("v_and_b32 v4, 3, v%d" % V_N)
    a("v_lshrrev_b32 v8, 2, v%d" % V_N)
    a("v_and_b32 v7, 1, v%d" % V_KG)
    a("v_lshl_add_u32 v8, v%d, 3, v8" % V_KG)
    a("s_movk_i32 s%d, 320" % S_T1)
    a("v_lshlrev_b32 v7, 5, v7")
    a("v_mul_u32_u24 v8, s%d, v8" % S_T1)
    a("v_lshl_add_u32 v6, v4, 3, v7")
    a("v_add_u32 v8, %d, v8" % LDS_W)
    a("v_add_u32 v9, v8, v6")
    a("s_mul_i32 s%d, s%d, 160" % (S_T2, S_CS))
    a("s_mul_i32 s%d, s%d, 80" % (S_T3, S_CS))
    a("s_mul_i32 s%d, s%d, 10240" % (S_T0, S_T5))
    a("s_mul_i32 s%d, s%d, 10240" % (S_T1, S_CS))
    def sA(T):
        a("s_add_u32 s%d, s%d, %d" % (S_T4, S_T2, 40 * T))
        a("s_add_u32 s%d, s%d, %d" % (S_T5, S_T3, (T >> 1) * 160 + 40 * (T & 1)))
        a("s_cmp_eq_u32 s%d, 0" % S_BR)
        a("s_cselect_b32 s%d, s%d, s%d" % (S_T4, S_T4, S_T5))
    for T in range(3):
        sA(T)
        a("s_add_u32 s%d, s%d, s%d" % (S_T5, S_T4, S_T0))
        a("v_add_u32 v%d, s%d, v9" % (V_WA + T, S_T5))
        a("s_add_u32 s%d, s%d, s%d" % (S_T5, S_T4, S_T1))
        a("v_add_u32 v%d, s%d, v9" % (V_WA + 5 + T, S_T5))
    sA(3)
    a("v_add_u32 v5, s%d, v6" % S_T4)
    minwrap(a, 5, 320, V_XT)
    a("v_add_u32 v5, v5, v8")
    a("v_add_u32 v%d, s%d, v5" % (V_WA + 3, S_T0))
    a("v_add_u32 v%d, s%d, v5" % (V_WA + 8, S_T1))
    a("s_cmp_eq_u32 s%d, 0" % S_BR)
    a("s_cselect_b32 s%d, s%d, s%d" % (S_T4, S_T2, S_T3))
    a("s_cselect_b32 s%d, 0, 80" % S_T5)
    a("s_add_u32 s%d, s%d, 32" % (S_T4, S_T4))
    a("v_mul_u32_u24 v%d, 40, v4" % (V_XT + 1))
    a("v_lshrrev_b32 v5, 1, v4")
    a("v_add_u32 v%d, v%d, v7" % (V_XT + 1, V_XT + 1))
    a("v_mad_u32_u24 v5, v5, s%d, v%d" % (S_T5, V_XT + 1))
    a("v_add_u32 v5, s%d, v5" % S_T4)
    minwrap(a, 5, 320, V_XT)
    a("v_add_u32 v5, v5, v8")
    a("v_add_u32 v%d, s%d, v5" % (V_WA + 4, S_T0))
    a("v_add_u32 v%d, s%d, v5" % (V_WA + 9, S_T1))

def addr2_setup(a):
    a("s_mul_i32 s%d, s%d, 10240" % (S_T1, S_CS))
    for seg in range(2):
        for T in range(4):
            if seg == 1 and T == 3: continue
            a("s_add_u32 s%d, s%d, %d" % (S_T4, S_T1, seg * 160 + 40 * T))
            a("v_add_u32 v%d, s%d, v9" % (V_WA2 + seg * 5 + T, S_T4))
    a("v_add_u32 v5, 280, v6")
    minwrap(a, 5, 320, V_XT)
    a("v_add3_u32 v%d, v5, v8, s%d" % (V_WA2 + 8, S_T1))
    a("s_add_u32 s%d, s%d, 32" % (S_T4, S_T1))
    a("v_add3_u32 v%d, v%d, v8, s%d" % (V_WA2 + 4, V_XT + 1, S_T4))
    a("v_add_u32 v5, 192, v%d" % (V_XT + 1))
    minwrap(a, 5, 320, V_XT)
    a("v_add3_u32 v%d, v5, v8, s%d" % (V_WA2 + 9, S_T1))
    G.img_pos(a, V_IMG, 4)

def vm_wait_roles(a, nw, nx):
    if nw == nx:
        a("s_waitcnt vmcnt(%d)" % nw); return
    lx, ld = a.newlabel("vx"), a.newlabel("vd")
    a("s_cmp_eq_u32 s%d, 0" % S_CS)
    a("s_cbranch_scc0 %s" % lx)
    a("s_waitcnt vmcnt(%d)" % nw)
    a("s_branch %s" % ld)
    a.label(lx)
    a("s_waitcnt vmcnt(%d)" % nx)
    a.label(ld)

def half(a, lq, mf, needs, reads, sched, extra):
    ids = []
    reads = list(reads)
    for i, m in enumerate(mf):
        lq.need(needs[i])
        a(m)
        for _ in range(sched[i]):
            if reads: ids.append(lq.issue(reads.pop(0)))
        if i in extra: emit(a, extra[i])
    while reads: ids.append(lq.issue(reads.pop(0)))
    return ids

def publish(a, s_off, wave=0):
    l = a.newlabel("pub")
    if wave is not None:
        a("s_cmp_eq_u32 s%d, %d" % (S_WV, wave))
        a("s_cbranch_scc0 %s" % l)
    a("v_mov_b32 v4, s%d" % S_NONCE)
    a("v_mov_b32 v5, 0")
    a("s_mov_b64 exec, 1")
    a("buffer_store_dword v4, v5, s[%d:%d], s%d offen sc0 sc1" % (S_WS, S_WS + 3, s_off))
    a("s_mov_b64 exec, -1")
    a.label(l)

def poll(a, voff, s_off, mask_lo, mask_hi):
    l, lp, ld = a.newlabel("pl"), a.newlabel("pp"), a.newlabel("pd")
    a("s_cmp_eq_u32 s%d, 0" % S_WV)
    a("s_cbranch_scc0 %s" % l)
    a("s_mov_b32 exec_lo, %s" % mask_lo)
    a("s_mov_b32 exec_hi, %s" % mask_hi)
    a("s_mov_b32 s%d, 0" % S_T5)
    a.label(lp)
    a("buffer_load_dword v6, v%d, s[%d:%d], s%d offen sc1" % (voff, S_WS, S_WS + 3, s_off))
    a("s_waitcnt vmcnt(0)")
    a("v_cmp_ne_u32_e64 s[%d:%d], s%d, v6" % (S_M0, S_M0 + 1, S_NONCE))
    a("s_add_u32 s%d, s%d, 1" % (S_T5, S_T5))
    a("s_nop 1")
    a("s_cmp_eq_u64 s[%d:%d], 0" % (S_M0, S_M0 + 1))
    a("s_cbranch_scc1 %s" % ld)
    a("s_sleep 1")
    a("s_cmp_lt_u32 s%d, %d" % (S_T5, SPIN_LIMIT))
    a("s_cbranch_scc1 %s" % lp)
    a.label(ld)
    a("s_mov_b64 exec, -1")
    a.label(l)

def phase1(a):
    dma_setup(a)
    entry_srd(a)
    emit(a, [G.p1_dma_w(0), G.p1_dma_x(0)])
    entry_srd2(a)
    G.stamp(a, "g0")
    addr1_setup(a)
    G.stamp(a, "a1")
    emit(a, [G.p1_dma_w(1), G.p1_dma_x(1)])
    G.stamp(a, "g1")
    G.pf_setup(a) if False else None
    addr2_setup(a)
    G.pf_setup(a)
    emit(a, [G.pf_issue('x', 1, 0), G.pf_issue('w', 1, 4), G.pf_issue('x', 2, 1), G.pf_issue('w', 2, 5)])
    G.stamp(a, "pf")
    emit(a, [G.p1_dma_w(2), G.p1_dma_x(2)])
    G.stamp(a, "g2")
    vm_wait_roles(a, 10, 8)
    G.stamp(a, "g0land")
    a("s_waitcnt lgkmcnt(0)")
    a("s_add_u32 s%d, s%d, 0x9e3779b9" % (S_NONCE, S_NONCE))
    a("s_barrier")
    G.stamp(a, "t0")
    lq = LQ(a)
    cur = [lq.issue(x) for x in G.p1_reads(0, 0)]
    SCH = [2, 2, 2, 2, 2, 2, 0, 0, 0, 0]
    needs12 = lambda ids: [ids[2 + 2 * (i // 2) + 1] for i in range(10)]
    needs10 = lambda ids: [ids[2 * (i // 2) + 1] for i in range(10)]
    for s in range(10):
        nxt = half(a, lq, G.p1_mfmas(s, 0, s == 0), needs12(cur), G.p1_reads(s, 1), SCH, {})
        if s == 8: vm_wait_roles(a, 5, 0)
        elif s == 9: a("s_waitcnt vmcnt(5)")
        else: vm_wait_roles(a, 5, 4)
        a("s_barrier")
        G.stamp(a, "s%d" % s)
        pf = []
        if s == 0: pf = [G.pf_issue('x', 3, 2), G.pf_issue('w', 3, 6)]
        if s == 2: pf = [G.pf_issue('x', 4, 3), G.pf_issue('w', 4, 7)]
        if s == 4: pf = [G.pf_issue('q', 0, 0)]
        if s == 5: pf = [G.pf_issue('q', 1, 1)]
        if s == 6: pf = [G.pf_issue('q', 2, 2)]
        rd = G.p1_reads(s + 1, 0) if s < 9 else G.p2_reads(0)
        cur = half(a, lq, G.p1_mfmas(s, 1, False), needs12(nxt), rd, SCH, {5: [G.p1_dma_w(s + 3)], 7: [G.p1_dma_x(s + 3)] + pf})
    G.stamp(a, "p1end")
    lb, ld = a.newlabel("e1b"), a.newlabel("e1d")
    a("s_cmp_eq_u32 s%d, 0" % S_BR)
    a("s_cbranch_scc0 %s" % lb)
    G.epi1_A(a, ST)
    a("s_branch %s" % ld)
    a.label(lb)
    a("s_waitcnt lgkmcnt(0)")
    G.epi1_B(a, ST)
    emit(a, G.p2_reads(0))
    a.label(ld)
    G.stamp(a, "e1end")
    a("s_waitcnt lgkmcnt(0)")
    lq = LQ(a)
    cur = None
    SCH2 = [2, 2, 2, 2, 2, 0, 0, 0, 0, 0]
    for u in range(10):
        extra = {}
        rd = []
        if u + 1 < 10:
            if (u + 1) % 2 == 0:
                nx = 10 + (u + 1) // 2
                a("s_waitcnt vmcnt(0)" if nx >= 13 else "s_waitcnt vmcnt(5)")
                a("s_barrier")
                if 13 <= nx + 2 <= 14: extra[5] = [G.p1_dma_w(nx + 2)]
                if nx == 13:
                    def pub(a):
                        a("s_lshl_b32 s%d, s%d, 4" % (S_T0, S_G))
                        a("s_add_u32 s%d, s%d, s%d" % (S_T0, S_T0, S_R))
                        a("s_lshl_b32 s%d, s%d, 7" % (S_T0, S_T0))
                        a("s_mul_i32 s%d, s%d, %d" % (S_T1, S_BR, F_PART - F_KV))
                        a("s_add_u32 s%d, s%d, s%d" % (S_T0, S_T0, S_T1))
                        a("s_add_u32 s%d, s%d, %d" % (S_T0, S_T0, F_KV))
                        publish(a, S_T0, 0)
                    extra[1] = [pub]
            rd = G.p2_reads(u + 1)
        needs = needs10(cur) if cur else [0] * 10
        cur = half(a, lq, G.p2_mfmas(u), needs, rd, SCH2, extra)
    a("s_nop 7")
    G.stamp(a, "p2end")
    G.epi2(a, False)
    G.stamp(a, "e2end")

def kv_loads(a):
    a("v_lshlrev_b32 v4, 4, v%d" % V_LANE)
    a("s_lshl_b32 s%d, s%d, 6" % (S_T0, S_G))
    a("s_lshl_b32 s%d, s%d, 2" % (S_T1, S_R))
    a("s_add_u32 s%d, s%d, s%d" % (S_T0, S_T0, S_T1))
    a("s_sub_i32 s%d, s%d, 8" % (S_T0, S_T0))
    a("s_mul_i32 s%d, s%d, 5120" % (S_T0, S_T0))
    a("s_lshl_b32 s%d, s%d, 10" % (S_T2, S_WV))
    a("s_add_u32 s%d, s%d, s%d" % (S_T0, S_T0, S_T2))
    a("s_lshl_b32 s%d, s%d, 2" % (S_T3, S_R))
    a("s_sub_i32 s%d, 8, s%d" % (S_T3, S_T3))
    a("s_max_i32 s%d, s%d, 0" % (S_T3, S_T3))
    a("s_mul_i32 s%d, s%d, 5120" % (S_T3, S_T3))
    for tensor in range(2):
        for k in range(8):
            l = a.newlabel("kvl")
            a("s_add_u32 s%d, s%d, %d" % (S_T4, S_T2, k * 8192))
            a("s_cmp_lt_u32 s%d, s%d" % (S_T4, S_T3))
            a("s_cbranch_scc1 %s" % l)
            if k == 7:
                a("s_cmp_ge_u32 s%d, 61440" % S_T4)
                a("s_cbranch_scc1 %s" % l)
            a("s_add_u32 m0, s%d, %d" % (S_T4, G.LDS_K if tensor == 0 else G.LDS_V))
            a("s_add_u32 s%d, s%d, %d" % (S_OFF, S_T0, WS_KV + tensor * 8 * 64 * 5120 + k * 8192))
            a("buffer_load_dwordx4 v4, s[%d:%d], s%d offen %s lds" % (S_WS, S_WS + 3, S_OFF, LD))
            a.label(l)

def oa_flag_off(a, dst, half_expr):
    a("s_lshl_b32 s%d, s%d, 1" % (dst, S_R))
    a("s_add_u32 s%d, s%d, %s" % (dst, dst, half_expr))
    a("s_lshl_b32 s%d, s%d, 3" % (dst, dst))
    a("s_add_u32 s%d, s%d, s%d" % (dst, dst, S_G))
    a("s_lshl_b32 s%d, s%d, 5" % (dst, dst))
    a("s_add_u32 s%d, s%d, s%d" % (dst, dst, S_WV))
    a("s_lshl_b32 s%d, s%d, 2" % (dst, dst))
    a("s_add_u32 s%d, s%d, %d" % (dst, dst, F_OA))

def phase2A(a, stubs):
    a("v_lshlrev_b32 v7, 7, v%d" % V_LANE)
    a("s_lshl_b32 s%d, s%d, 4" % (S_T0, S_G))
    a("s_add_u32 s%d, s%d, s%d" % (S_T0, S_T0, S_R))
    a("s_lshl_b32 s%d, s%d, 7" % (S_T0, S_T0))
    a("s_add_u32 s%d, s%d, %d" % (S_T0, S_T0, F_KV))
    a("v_sub_u32 v7, s%d, v7" % S_T0)
    a("s_min_u32 s%d, s%d, 2" % (S_T1, S_R))
    a("s_lshl_b32 s%d, 2, s%d" % (S_T1, S_T1))
    a("s_sub_u32 s%d, s%d, 1" % (S_T1, S_T1))
    a("s_mov_b32 s%d, 0" % S_T2)
    poll(a, 7, S_T2, "s%d" % S_T1, "0")
    a("s_waitcnt lgkmcnt(0)")
    a("s_barrier")
    G.stamp(a, "poll1")
    kv_loads(a)
    G.attn_setup(a)
    a("s_mov_b32 s%d, 0" % S_DB)
    lr = a.newlabel("around")
    a("s_waitcnt vmcnt(0)")
    a("s_barrier")
    G.stamp(a, "kvld")
    a.label(lr)
    G.set_tau0(a, "s%d" % S_DB)
    def mid(a):
        l = a.newlabel("mid")
        a("s_cmp_eq_u32 s%d, 0" % S_DB)
        a("s_cbranch_scc1 %s" % l)
        a("s_waitcnt vmcnt(0)")
        oa_flag_off(a, S_T0, "0")
        publish(a, S_T0, None)
        a.label(l)
    G.attn_unit(a, stubs, ST, mid)
    G.attn_round_advance(a)
    a("s_add_u32 s%d, s%d, 2" % (S_DB, S_DB))
    a("s_cmp_lt_u32 s%d, 4" % S_DB)
    a("s_cbranch_scc1 %s" % lr)
    a("s_waitcnt vmcnt(0)")
    oa_flag_off(a, S_T0, "1")
    publish(a, S_T0, None)
    G.stamp(a, "attn")

def poll_oa(a, half):
    a("v_lshrrev_b32 v7, 3, v%d" % V_LANE)
    a("v_and_b32 v8, 7, v%d" % V_LANE)
    a("v_lshlrev_b32 v7, 7, v7")
    a("v_lshl_add_u32 v7, v8, 2, v7")
    a("s_lshl_b32 s%d, s%d, 1" % (S_T0, S_R))
    a("s_add_u32 s%d, s%d, %d" % (S_T0, S_T0, half))
    a("s_lshl_b32 s%d, s%d, 10" % (S_T0, S_T0))
    a("s_add_u32 s%d, s%d, %d" % (S_T0, S_T0, F_OA))
    poll(a, 7, S_T0, "-1", "-1")

def job(a, s_br, s_row0, tag=""):
    G.stamp(a, "j0" + tag)
    G.p3_oloads(a, s_br, s_row0, LD)
    a("s_waitcnt vmcnt(0)")
    a("s_barrier")
    G.stamp(a, "j1" + tag)
    G.p3_job(a, s_br, s_row0)
    G.stamp(a, "j2" + tag)

S_JB, S_JR = 23, 60

def phase3A(a):
    a("s_barrier")
    G.p3_setup(a)
    G.wo_load(a, S_WO)
    poll_oa(a, 1)
    a("s_barrier")
    a("s_mov_b32 s%d, 0" % S_JB)
    a("s_lshl_b32 s%d, s%d, 7" % (S_JR, S_R))
    a("s_add_u32 s%d, s%d, 64" % (S_JR, S_JR))
    job(a, S_JB, S_JR, "a")

def phaseB(a):
    a("v_lshlrev_b32 v7, 7, v%d" % V_LANE)
    a("s_lshl_b32 s%d, s%d, 11" % (S_T0, S_G))
    a("s_add_u32 s%d, s%d, %d" % (S_T0, S_T0, F_PART))
    poll(a, 7, S_T0, "0xffff", "0")
    a("s_waitcnt lgkmcnt(0)")
    a("s_barrier")
    G.stamp(a, "poll1")
    G.apply_phase(a, ST, LD)
    G.stamp(a, "kvld")
    a("s_waitcnt vmcnt(0)")
    a("s_barrier")
    a("s_lshl_b32 s%d, s%d, 3" % (S_T0, S_R))
    a("s_add_u32 s%d, s%d, s%d" % (S_T0, S_T0, S_G))
    a("s_lshl_b32 s%d, s%d, 7" % (S_T0, S_T0))
    a("s_add_u32 s%d, s%d, %d" % (S_T0, S_T0, F_OB))
    publish(a, S_T0, 0)
    G.stamp(a, "attn")
    G.p3_setup(a)
    G.wo_load(a, S_WOB)
    a("v_lshlrev_b32 v7, 7, v%d" % V_LANE)
    a("s_lshl_b32 s%d, s%d, 10" % (S_T0, S_R))
    a("s_add_u32 s%d, s%d, %d" % (S_T0, S_T0, F_OB))
    poll(a, 7, S_T0, "0xff", "0")
    a("s_barrier")
    a("s_mov_b32 s%d, 1" % S_JB)
    a("s_lshl_b32 s%d, s%d, 7" % (S_JR, S_R))
    job(a, S_JB, S_JR, "b")
    a("s_add_u32 s%d, s%d, 64" % (S_JR, S_JR))
    job(a, S_JB, S_JR, "c")
    G.stamp(a, "jobsB")
    G.wo_load(a, S_WO)
    poll_oa(a, 0)
    a("s_barrier")
    a("s_mov_b32 s%d, 0" % S_JB)
    a("s_lshl_b32 s%d, s%d, 7" % (S_JR, S_R))
    job(a, S_JB, S_JR, "a")

def epoch_update(a):
    l = a.newlabel("ep")
    a("s_cmp_eq_u32 s2, 0")
    a("s_cbranch_scc0 %s" % l)
    a("v_lshlrev_b32 v7, 7, v%d" % V_LANE)
    for k in range(4):
        a("s_mov_b32 s%d, %d" % (S_T0, F_KV + k * 64 * 128))
        poll(a, 7, S_T0, "-1", "-1")
    a("s_mov_b32 s%d, %d" % (S_T0, WS_FLAG))
    publish(a, S_T0, 0)
    a.label(l)

def build():
    out = [G.HEADER, "; @launch grid=(256,1,1) block=(512,1,1) lds=163840\n"]
    out.append('.amdgcn_target "amdgcn-amd-amdhsa--gfx950"\n.text\n')
    a = Asm()
    stubs = []
    entry(a)
    phase1(a)
    lb = a.newlabel("brB")
    a("s_cmp_eq_u32 s%d, 0" % S_BR)
    a("s_cbranch_scc0 %s" % lb)
    phase2A(a, stubs)
    phase3A(a)
    a("s_branch L_fin")
    G.emit_stubs(a, stubs)
    a.label(lb)
    phaseB(a)
    a.label("L_fin")
    epoch_update(a)
    a("s_waitcnt vmcnt(0)")
    G.stamp(a, "end")
    G.stamp_store(a, 0)
    a.label("L_end"); a("s_endpgm")
    a.label("L_codeend")
    body = a.text()
    pre = ""
    if 'nocodepf' not in OPT:
        pre = ".set CODE_TOTAL, L_codeend - L_pcbase\n.set CODE_CHUNK, ((CODE_TOTAL / 8 + 127) / 128) * 128\n.set CODE_LAST, CODE_TOTAL - 4\n"
    out.append(G.kernel_text(NAME, body))
    out.append(pre)
    out.append('.section .rodata,"a"\n.p2align 6\n' + G.kd_text(NAME))
    return "".join(out)

if __name__ == "__main__":
    G.STAMPS = "stamps" in sys.argv
    G.PF = "nopf" not in sys.argv
    G.ABL = set(x for x in sys.argv if x in ("noread", "nomfma", "nodma"))
    OPT = set(sys.argv[2:])
    for x in sys.argv:
        if x.startswith("st="):
            G.STAMPS = True
            G.STMAP = {n: i for i, n in enumerate(x[3:].split(","))}
    open(sys.argv[1], "w").write(build())
```

```python
import sys, struct
from asmlib import Asm, vr, sr

NAME = "concat_heads__sliding_block__linear_attn_block__prompt_kernel"
WS_KV   = 0x0000000
WS_O    = 0x0A00000
WS_PART = 0x0F00000
WS_FLAG = 0x1000000
WS_STAMP = 0x1080000
WS_SIZE = 0x1100000
O_BR = 128 * 20480
F_KV, F_PART, F_OA, F_OB = WS_FLAG + 0x1000, WS_FLAG + 0x5000, WS_FLAG + 0x9000, WS_FLAG + 0x11000
SPIN_LIMIT = 40000
ST, LD = "sc1", "sc1"
PFL = ""
DML = ""
STAMPS, STMAP, OPT = False, None, set()
SCHED = 'e'

S_NONCE = 3
S_ST = 4
S_I, S_U = 22, 23
S_X, S_W, S_WS, S_OUT, S_WO, S_WOB = 24, 28, 32, 36, 40, 44
S_BR, S_R, S_G, S_WV, S_RG, S_CS = 48, 49, 50, 51, 52, 53
S_T0, S_T1, S_T2, S_T3, S_T4, S_T5 = 54, 55, 56, 57, 58, 59
S_DB, S_OFF = 60, 61
S_M0, S_M1, S_M2 = 62, 64, 66
S_D, S_SB, S_SOFF, S_STEP, S_J = 68, 72, 76, 77, 78
S_G1 = 82
S_MASK = 68

V_IMG, V_LANE, V_N, V_KG = 0, 1, 2, 3
V_DMA, V_XA, V_WA, V_PF, V_XT, V_WB0, V_WB1 = 10, 15, 19, 29, 32, 40, 60
V_ACC, V_ACC2, V_XP, V_DMA2, V_PFD, V_WA2 = 80, 120, 160, 240, 245, 246
LDS_W = 65536
XSLOT, WSLOT = 16384, 20480
LOG2E = 1.4426950408889634
QSCALE = LOG2E / (20.0 ** 0.5)

def f2u(x): return struct.unpack("<I", struct.pack("<f", x))[0]
def mfma16(d, x, y, c=None):
    return "v_mfma_f32_16x16x32_bf16 %s, %s, %s, %s" % (vr(d, 4), vr(x, 4), vr(y, 4), vr(d, 4) if c is None else c)
def mfma32(d, x, y, c=None):
    return "v_mfma_f32_32x32x16_bf16 %s, %s, %s, %s" % (vr(d, 16), vr(x, 4), vr(y, 4), vr(d, 16) if c is None else c)
def emit(a, item):
    if item is None: return
    if callable(item): item(a)
    elif isinstance(item, (list, tuple)):
        for x in item: emit(a, x)
    else: a(item)

class LQ:
    def __init__(self, a): self.a, self.n, self.done = a, 0, 0
    def issue(self, s, cnt=1):
        emit(self.a, s); self.n += cnt; return self.n
    def need(self, idx):
        if idx > self.done:
            cnt = self.n - idx
            self.a("s_waitcnt lgkmcnt(%d)" % min(cnt, 15))
            self.done = idx if cnt <= 15 else self.n - 15
    def drain(self):
        if self.n > self.done:
            self.a("s_waitcnt lgkmcnt(0)"); self.done = self.n

NST = 8
def stamp(a, name):
    if not STAMPS or STMAP is None or name not in STMAP: return
    i = STMAP[name]
    a("%s s[%d:%d]" % ("s_memtime" if 'cyc' in OPT else "s_memrealtime", S_ST + 2 * i, S_ST + 2 * i + 1))
def stamp_store(a):
    if not STAMPS: return
    a("s_memrealtime s[20:21]")
    a("s_memtime s[24:25]")
    a("s_waitcnt lgkmcnt(0)")
    a("s_lshl_b32 s%d, s2, 3" % S_T0)
    a("s_add_u32 s%d, s%d, s%d" % (S_T0, S_T0, S_WV))
    a("s_lshl_b32 s%d, s%d, 6" % (S_T0, S_T0))
    a("s_add_u32 s%d, s%d, %d" % (S_T0, S_T0, WS_STAMP))
    a("s_mov_b64 exec, 1")
    a("v_mov_b32 v4, 0")
    for i in range(NST):
        a("v_mov_b32 v5, s%d" % (S_ST + 2 * i))
        a("buffer_store_dword v5, v4, s[%d:%d], s%d offen offset:%d" % (S_WS, S_WS + 3, S_T0, i * 4))
    a("s_getreg_b32 s21, hwreg(HW_REG_XCC_ID)")
    a("s_getreg_b32 s22, hwreg(HW_REG_HW_ID)")
    for reg, slot in ((20, 15), (101, 14), (100, 13), (21, 12), (22, 11), (24, 10)):
        a("v_mov_b32 v5, s%d" % reg)
        a("buffer_store_dword v5, v4, s[%d:%d], s%d offen offset:%d" % (S_WS, S_WS + 3, S_T0, slot * 4))
    a("s_mov_b64 exec, -1")

def minwrap(a, v, m, tmp):
    a("v_subrev_u32 v%d, %d, v%d" % (tmp, m, v))
    a("v_min_u32 v%d, v%d, v%d" % (v, v, tmp))
def srd(a, d, lo, hi, size):
    a("s_mov_b32 s%d, s%d" % (d, lo)); a("s_mov_b32 s%d, s%d" % (d + 1, hi))
    a("s_mov_b32 s%d, %d" % (d + 2, size)); a("s_mov_b32 s%d, 0x20000" % (d + 3))
def role_branch(a, fw, fx):
    lx, ld = a.newlabel("rx"), a.newlabel("rd")
    a("s_cmp_eq_u32 s%d, 0" % S_CS)
    a("s_cbranch_scc0 %s" % (lx if fx else ld))
    emit(a, fw)
    if fx:
        a("s_branch %s" % ld)
        a.label(lx)
        emit(a, fx)
    a.label(ld)
def on_wave(a, wave, f):
    l = a.newlabel("ow")
    a("s_cmp_eq_u32 s%d, %d" % (S_WV, wave))
    a("s_cbranch_scc0 %s" % l)
    emit(a, f)
    a.label(l)

def entry(a):
    a("s_cmp_ge_u32 s2, 256")
    a("s_cbranch_scc1 L_end")
    if STAMPS:
        a("s_memrealtime s[100:101]")
        a("s_memtime s[62:63]")
    a("s_load_dwordx16 s[4:19], s[0:1], 0")
    a("s_load_dwordx2 s[20:21], s[0:1], 64")
    a("s_and_b32 s%d, s2, 7" % S_T0)
    a("s_lshr_b32 s%d, s2, 3" % S_I)
    a("v_lshrrev_b32 v4, 6, v0")
    a("v_and_b32 v%d, 63, v0" % V_LANE)
    a("v_and_b32 v%d, 15, v0" % V_N)
    a("v_readfirstlane_b32 s%d, v4" % S_WV)
    a("v_lshrrev_b32 v%d, 4, v%d" % (V_KG, V_LANE))
    a("s_and_b32 s%d, s%d, 1" % (S_BR, S_T0))
    a("s_lshr_b32 s%d, s%d, 1" % (S_T2, S_T0))
    a("s_and_b32 s%d, s%d, 1" % (S_T3, S_T2))
    a("s_lshl_b32 s%d, s%d, 3" % (S_T3, S_T3))
    a("s_and_b32 s%d, s%d, 7" % (S_T4, S_I))
    a("s_add_u32 s%d, s%d, s%d" % (S_R, S_T3, S_T4))
    a("s_lshr_b32 s%d, s%d, 1" % (S_T3, S_T2))
    a("s_lshr_b32 s%d, s%d, 3" % (S_T4, S_I))
    a("s_lshl_b32 s%d, s%d, 2" % (S_T5, S_T3))
    a("s_add_u32 s%d, s%d, s%d" % (S_G, S_T5, S_T4))
    a("s_lshl_b32 s%d, s%d, 1" % (S_T3, S_T3))
    a("s_and_b32 s%d, s%d, 1" % (S_T5, S_T4))
    a("s_add_u32 s%d, s%d, s%d" % (S_T3, S_T3, S_T5))
    a("s_lshr_b32 s%d, s%d, 1" % (S_T4, S_T4))
    a("s_lshl_b32 s%d, s%d, 2" % (S_T4, S_T4))
    a("s_add_u32 s%d, s%d, s%d" % (S_G1, S_T3, S_T4))
    a("s_and_b32 s%d, s%d, 3" % (S_RG, S_WV))
    a("s_lshr_b32 s%d, s%d, 2" % (S_CS, S_WV))
    if 'nocodepf' not in OPT:
        def cpf(a):
            a("s_getpc_b64 s[56:57]")
            a.label("L_pcbase")
            a("s_and_b32 s%d, s%d, 7" % (S_T4, S_I))
            a("s_mul_i32 s%d, s%d, CODE_CHUNK" % (S_T4, S_T4))
            a("v_lshlrev_b32 v4, 7, v%d" % V_LANE)
            a("v_add_u32 v4, s%d, v4" % S_T4)
            a("v_min_u32 v4, CODE_LAST, v4")
            a("global_load_dword v%d, v4, s[56:57]" % V_PFD)
        on_wave(a, 7, cpf)

def dma_setup(a):
    stamp(a, "ids")
    def fw(a):
        a("s_mul_i32 s%d, s%d, %d" % (S_T0, S_RG, 16 * 3840))
        a("s_mul_i32 s%d, s%d, 160" % (S_T1, S_G))
        a("s_mul_i32 s%d, s%d, 320" % (S_T2, S_G1))
        a("s_cmp_eq_u32 s%d, 0" % S_BR)
        a("s_cselect_b32 s%d, s%d, s%d" % (S_T2, S_T2, S_T1))
        a("s_cselect_b32 s%d, 0, 1120" % S_T5)
        a("s_add_u32 s%d, s%d, s%d" % (S_T2, S_T2, S_T0))
        a("s_add_u32 s%d, s%d, 1280" % (S_T2, S_T2))
        a("s_add_u32 s%d, s%d, s%d" % (S_T0, S_T0, S_T1))
        a("s_movk_i32 s%d, 3277" % S_T1)
        a("s_movk_i32 s%d, 3840" % S_T3)
        a("s_mov_b32 s%d, %d" % (S_T4, 245760 - 160))
        for j in range(5):
            p, kk, q, u, t = 4, 5, 6, 7, 8
            a("v_add_u32 v%d, %d, v%d" % (p, 64 * j, V_LANE))
            a("v_mul_u32_u24 v%d, s%d, v%d" % (kk, S_T1, p))
            a("v_lshrrev_b32 v%d, 16, v%d" % (kk, kk))
            a("v_mul_u32_u24 v%d, 20, v%d" % (q, kk))
            a("v_lshrrev_b32 v%d, 2, v%d" % (u, kk))
            a("v_sub_u32 v%d, v%d, v%d" % (q, p, q))
            a("v_and_b32 v%d, 2, v%d" % (u, u))
            a("v_sub_u32 v%d, v%d, v%d" % (u, q, u))
            a("v_add_u32 v%d, 20, v%d" % (t, u))
            a("v_min_u32 v%d, v%d, v%d" % (u, u, t))
            a("v_add_u32 v%d, 6, v%d" % (t, u))
            a("v_lshrrev_b32 v%d, 4, v%d" % (t, t))
            a("v_mul_u32_u24 v%d, s%d, v%d" % (kk, S_T3, kk))
            a("v_lshl_add_u32 v%d, v%d, 4, v%d" % (kk, u, kk))
            a("v_mad_u32_u24 v%d, v%d, s%d, v%d" % (q, t, S_T5, kk))
            a("v_add_u32 v%d, s%d, v%d" % (V_DMA + j, S_T2, q))
            a("v_mad_u32_u24 v%d, v%d, s%d, v%d" % (q, t, S_T4, kk))
            a("v_add_u32 v%d, s%d, v%d" % (V_DMA2 + j, S_T0, q))
        a("s_mul_i32 s%d, s%d, 5120" % (S_T0, S_RG))
        for k in range(4): a("s_add_u32 s%d, s%d, %d" % (S_SB + k, S_T0, LDS_W + k * WSLOT))
        a("s_mov_b32 s%d, %d" % (S_STEP, 64 * 3840))
        for k in range(1, 4): a("s_mov_b32 s%d, 0" % (S_J + k))
        a("v_and_b32 v4, 31, v%d" % V_LANE)
        a("v_lshrrev_b32 v5, 5, v%d" % V_LANE)
        a("v_min_u32 v4, 19, v4")
        a("s_lshr_b32 s%d, s%d, 2" % (S_T0, S_G))
        a("v_mul_u32_u24 v6, 13, v4"); a("v_lshrrev_b32 v6, 7, v6")
        a("v_mul_u32_u24 v7, 52, v4"); a("v_lshrrev_b32 v7, 8, v7")
        a("v_mul_u32_u24 v8, 5, v7"); a("v_sub_u32 v8, v4, v8")
        a("v_lshlrev_b32 v8, 7, v8")
        a("v_lshl_add_u32 v6, v5, 6, v6")
        a("s_lshl_b32 s%d, s%d, 1" % (S_T2, S_I))
        a("v_add_u32 v6, s%d, v6" % S_T2)
        a("v_mul_u32_u24 v6, s%d, v6" % S_T3)
        a("v_and_b32 v9, 1, v7")
        a("s_movk_i32 s%d, 1280" % S_T2)
        a("v_mul_u32_u24 v9, s%d, v9" % S_T2)
        a("v_add3_u32 v6, v6, v9, v8")
        a("s_mul_i32 s%d, s%d, 640" % (S_T0, S_T0))
        a("s_add_u32 s%d, s%d, 1280" % (S_T2, S_T0))
        a("v_add_u32 v%d, s%d, v6" % (V_PF + 1, S_T2))
        a("v_lshl_add_u32 v7, v5, 7, v7")
        a("s_lshl_b32 s%d, s%d, 2" % (S_T2, S_I))
        a("v_add_u32 v7, s%d, v7" % S_T2)
        a("v_mul_u32_u24 v7, s%d, v7" % S_T3)
        a("v_add3_u32 v%d, v7, v8, s%d" % (V_PF + 2, S_T0))
        a("v_mov_b32 v%d, 0" % V_PF)
    def fx(a):
        a("s_lshl_b32 s%d, s%d, 7" % (S_T0, S_R))
        a("s_lshl_b32 s%d, s%d, 5" % (S_T1, S_RG))
        a("s_add_u32 s%d, s%d, s%d" % (S_T0, S_T0, S_T1))
        a("s_mul_i32 s%d, s%d, 1280" % (S_T0, S_T0))
        a("s_movk_i32 s%d, 1280" % S_T1)
        a("v_lshrrev_b32 v4, 3, v%d" % V_LANE)
        a("v_and_b32 v5, 7, v%d" % V_LANE)
        a("v_xor_b32 v5, v5, v4")
        a("v_mul_u32_u24 v4, s%d, v4" % S_T1)
        a("v_lshl_add_u32 v4, v5, 4, v4")
        a("v_add_u32 v%d, s%d, v4" % (V_DMA, S_T0))
        for j in range(1, 5): a("v_mov_b32 v%d, v%d" % (V_DMA + j, V_DMA))
        for j in range(5): a("v_mov_b32 v%d, 0" % (V_DMA2 + j))
        a("s_lshl_b32 s%d, s%d, 12" % (S_T0, S_RG))
        for k in range(4): a("s_add_u32 s%d, s%d, %d" % (S_SB + k, S_T0, k * XSLOT))
        a("s_movk_i32 s%d, 128" % S_STEP)
        for k in range(1, 4): a("s_mov_b32 s%d, %d" % (S_J + k, k * 10240))
        a("v_and_b32 v4, 31, v%d" % V_LANE)
        a("v_lshrrev_b32 v5, 5, v%d" % V_LANE)
        a("s_lshr_b32 s%d, s%d, 3" % (S_T0, S_R))
        a("s_lshl_b32 s%d, s%d, 5" % (S_T0, S_T0))
        a("s_add_u32 s%d, s%d, s%d" % (S_T0, S_T0, S_I))
        a("s_mul_i32 s%d, s%d, %d" % (S_T0, S_T0, 32 * 1280))
        a("v_mul_u32_u24 v6, s%d, v4" % S_T1)
        a("v_lshl_add_u32 v6, v5, 7, v6")
        a("v_add_u32 v%d, s%d, v6" % (V_PF, S_T0))
        a("v_mov_b32 v%d, 0" % (V_PF + 1)); a("v_mov_b32 v%d, 0" % (V_PF + 2))
    role_branch(a, fw, fx)
    a("s_mov_b32 s%d, 0" % S_SOFF)

def entry_srd(a):
    a("s_waitcnt lgkmcnt(0)")
    a("s_cmp_eq_u32 s%d, 0" % S_BR)
    a("s_cselect_b32 s%d, s4, s10" % S_X)
    a("s_cselect_b32 s%d, s5, s11" % (S_X + 1))
    a("s_mov_b32 s%d, 2621440" % (S_X + 2))
    a("s_mov_b32 s%d, 0x20000" % (S_X + 3))
    a("s_cselect_b32 s%d, s6, s12" % S_W)
    a("s_cselect_b32 s%d, s7, s13" % (S_W + 1))
    a("s_mov_b32 s%d, 2457600" % (S_W + 2))
    a("s_mov_b32 s%d, 0x20000" % (S_W + 3))
    a("s_cmp_eq_u32 s%d, 0" % S_CS)
    a("s_cselect_b32 s%d, s%d, s%d" % (S_D, S_W, S_X))
    a("s_cselect_b32 s%d, s%d, s%d" % (S_D + 1, S_W + 1, S_X + 1))
    a("s_cselect_b32 s%d, s%d, s%d" % (S_D + 2, S_W + 2, S_X + 2))
    a("s_mov_b32 s%d, 0x20000" % (S_D + 3))

def entry_srd2(a):
    srd(a, S_WS, 20, 21, WS_SIZE)
    srd(a, S_OUT, 16, 17, 5242880)
    srd(a, S_WO, 8, 9, 819200)
    srd(a, S_WOB, 14, 15, 819200)
    if STAMPS:
        a("s_mov_b32 s101, s100")
        a("s_mov_b32 s100, s62")

def pf(kind, idx, k):
    def f(a):
        if 'nopf' in OPT: return
        def body(a):
            if kind == 'x': a("s_mov_b32 s%d, %d" % (S_OFF, idx * 256)); s_, v = S_X, V_PF
            elif kind == 'w': a("s_mov_b32 s%d, %d" % (S_OFF, idx * 128 * 3840)); s_, v = S_W, V_PF + 1
            else: a("s_mov_b32 s%d, %d" % (S_OFF, idx * 256 * 3840)); s_, v = S_W, V_PF + 2
            a("buffer_load_dword v%d, v%d, s[%d:%d], s%d offen %s" % (V_PFD, v, s_, s_ + 3, S_OFF, PFL))
        on_wave(a, (4 + k) if kind == 'x' else k, body)
    return f

def dma(sig, j):
    def f(a):
        if 'nodma' in OPT and sig >= 3: return
        slot = sig % 4
        def body(a):
            a("s_add_u32 m0, s%d, %d" % (S_SB + slot, j * 1024))
            if sig < 10:
                if 1 <= j <= 3:
                    a("s_add_u32 s%d, s%d, s%d" % (S_OFF, S_SOFF, S_J + j)); so = S_OFF
                else:
                    a("s_nop 0"); so = S_SOFF
                a("buffer_load_dwordx4 v%d, s[%d:%d], s%d offen %s lds" % (V_DMA + j, S_D, S_D + 3, so, DML))
            else:
                a("s_mov_b32 s%d, %d" % (S_OFF, (sig - 10) * 128 * 3840))
                a("buffer_load_dwordx4 v%d, s[%d:%d], s%d offen %s lds" % (V_DMA2 + j, S_D, S_D + 3, S_OFF, DML))
        if sig >= 10 or j == 4: role_branch(a, body, None)
        else: body(a)
        if sig < 10 and j == 4: a("s_add_u32 s%d, s%d, s%d" % (S_SOFF, S_SOFF, S_STEP))
    return f

def img_pos(a, dst, tmp):
    a("v_lshl_add_u32 v%d, v%d, 2, v%d" % (tmp, V_KG, V_N))
    a("v_and_b32 v%d, 15, v%d" % (tmp, tmp))
    a("v_lshl_add_u32 v%d, v%d, 4, v%d" % (tmp, V_KG, tmp))
    a("v_lshlrev_b32 v%d, 4, v%d" % (dst, tmp))

def addr1_setup(a):
    a("v_and_b32 v4, 7, v%d" % V_N)
    a("s_lshl_b32 s%d, s%d, 12" % (S_T0, S_RG))
    a("v_lshlrev_b32 v5, 7, v%d" % V_N)
    a("v_xor_b32 v4, v4, v%d" % V_KG)
    a("v_lshl_add_u32 v4, v4, 4, v5")
    a("s_xor_b32 s%d, s%d, 1" % (S_T5, S_CS))
    a("s_lshl_b32 s%d, s%d, 6" % (S_T1, S_T5))
    a("s_lshl_b32 s%d, s%d, 11" % (S_T2, S_CS))
    a("s_or_b32 s%d, s%d, s%d" % (S_T1, S_T1, S_T2))
    a("s_or_b32 s%d, s%d, s%d" % (S_T1, S_T1, S_T0))
    a("v_xor_b32 v%d, s%d, v4" % (V_XA, S_T1))
    a("v_xor_b32 v%d, 0x800, v%d" % (V_XA + 1, V_XA))
    a("v_xor_b32 v%d, 64, v%d" % (V_XA + 2, V_XA))
    a("v_xor_b32 v%d, 64, v%d" % (V_XA + 3, V_XA + 1))
    a("v_and_b32 v4, 3, v%d" % V_N)
    a("v_lshrrev_b32 v8, 2, v%d" % V_N)
    a("v_and_b32 v7, 1, v%d" % V_KG)
    a("v_lshl_add_u32 v8, v%d, 3, v8" % V_KG)
    a("s_movk_i32 s%d, 320" % S_T1)
    a("v_lshlrev_b32 v7, 5, v7")
    a("v_mul_u32_u24 v8, s%d, v8" % S_T1)
    a("v_lshl_add_u32 v6, v4, 3, v7")
    a("v_add_u32 v8, %d, v8" % LDS_W)
    a("v_add_u32 v9, v8, v6")
    a("s_mul_i32 s%d, s%d, 160" % (S_T2, S_CS))
    a("s_mul_i32 s%d, s%d, 80" % (S_T3, S_CS))
    a("s_mul_i32 s%d, s%d, 10240" % (S_T0, S_T5))
    a("s_mul_i32 s%d, s%d, 10240" % (S_T1, S_CS))
    def sA(T):
        a("s_add_u32 s%d, s%d, %d" % (S_T4, S_T2, 40 * T))
        a("s_add_u32 s%d, s%d, %d" % (S_T5, S_T3, (T >> 1) * 160 + 40 * (T & 1)))
        a("s_cmp_eq_u32 s%d, 0" % S_BR)
        a("s_cselect_b32 s%d, s%d, s%d" % (S_T4, S_T4, S_T5))
    for T in range(3):
        sA(T)
        a("s_add_u32 s%d, s%d, s%d" % (S_T5, S_T4, S_T0))
        a("v_add_u32 v%d, s%d, v9" % (V_WA + T, S_T5))
        a("s_add_u32 s%d, s%d, s%d" % (S_T5, S_T4, S_T1))
        a("v_add_u32 v%d, s%d, v9" % (V_WA + 5 + T, S_T5))
    sA(3)
    a("v_add_u32 v5, s%d, v6" % S_T4)
    minwrap(a, 5, 320, V_XT)
    a("v_add_u32 v5, v5, v8")
    a("v_add_u32 v%d, s%d, v5" % (V_WA + 3, S_T0))
    a("v_add_u32 v%d, s%d, v5" % (V_WA + 8, S_T1))
    a("s_cmp_eq_u32 s%d, 0" % S_BR)
    a("s_cselect_b32 s%d, s%d, s%d" % (S_T4, S_T2, S_T3))
    a("s_cselect_b32 s%d, 0, 80" % S_T5)
    a("s_add_u32 s%d, s%d, 32" % (S_T4, S_T4))
    a("v_mul_u32_u24 v%d, 40, v4" % (V_XT + 1))
    a("v_lshrrev_b32 v5, 1, v4")
    a("v_add_u32 v%d, v%d, v7" % (V_XT + 1, V_XT + 1))
    a("v_mad_u32_u24 v5, v5, s%d, v%d" % (S_T5, V_XT + 1))
    a("v_add_u32 v5, s%d, v5" % S_T4)
    minwrap(a, 5, 320, V_XT)
    a("v_add_u32 v5, v5, v8")
    a("v_add_u32 v%d, s%d, v5" % (V_WA + 4, S_T0))
    a("v_add_u32 v%d, s%d, v5" % (V_WA + 9, S_T1))

def addr2_setup(a):
    a("s_mul_i32 s%d, s%d, 10240" % (S_T1, S_CS))
    for seg in range(2):
        for T in range(4):
            if seg == 1 and T == 3: continue
            a("s_add_u32 s%d, s%d, %d" % (S_T4, S_T1, seg * 160 + 40 * T))
            a("v_add_u32 v%d, s%d, v9" % (V_WA2 + seg * 5 + T, S_T4))
    a("v_add_u32 v5, 280, v6")
    minwrap(a, 5, 320, V_XT)
    a("v_add3_u32 v%d, v5, v8, s%d" % (V_WA2 + 8, S_T1))
    a("s_add_u32 s%d, s%d, 32" % (S_T4, S_T1))
    a("v_add3_u32 v%d, v%d, v8, s%d" % (V_WA2 + 4, V_XT + 1, S_T4))
    a("v_add_u32 v5, 192, v%d" % (V_XT + 1))
    minwrap(a, 5, 320, V_XT)
    a("v_add3_u32 v%d, v5, v8, s%d" % (V_WA2 + 9, S_T1))
    img_pos(a, V_IMG, 4)

def p1_reads(s, hf):
    if 'noread' in OPT: return ["s_nop 0"] * 12
    slot = s % 4
    wb = V_WB0 if hf == 0 else V_WB1
    L = []
    for tp in range(2):
        dst = (V_XT + 4 * tp) if hf == 0 else (V_XP + (s * 2 + tp) * 4)
        L.append("ds_read_b128 %s, v%d offset:%d" % (vr(dst, 4), V_XA + hf * 2 + tp, slot * XSLOT))
    for T in range(5):
        for rd in range(2):
            L.append("ds_read_b64_tr_b16 %s, v%d offset:%d" % (vr(wb + 4 * T + 2 * rd, 2), V_WA + hf * 5 + T, slot * WSLOT + rd * 1280))
    return L
def p1_mfmas(s, hf, first):
    if 'nomfma' in OPT: return ["s_nop 0"] * 10
    wb = V_WB0 if hf == 0 else V_WB1
    return [mfma16(V_ACC + (tp * 5 + T) * 4, (V_XT + 4 * tp) if hf == 0 else (V_XP + (s * 2 + tp) * 4), wb + 4 * T, "0" if first else None)
            for T in range(5) for tp in range(2)]
def p2_reads(u):
    v, seg = u >> 1, u & 1
    slot = (10 + v) % 4
    wb = V_WB0 if (u & 1) == 0 else V_WB1
    return ["ds_read_b64_tr_b16 %s, v%d offset:%d" % (vr(wb + 4 * T + 2 * rd, 2), V_WA2 + seg * 5 + T, slot * WSLOT + rd * 1280)
            for T in range(5) for rd in range(2)]
def p2_mfmas(u):
    wb = V_WB0 if (u & 1) == 0 else V_WB1
    return [mfma16(V_ACC2 + (tp * 5 + T) * 4, V_XP + (u * 2 + tp) * 4, wb + 4 * T, "0" if u == 0 else None)
            for T in range(5) for tp in range(2)]

def half(a, lq, mf, needs, reads, sched, extra):
    ids = []
    reads = list(reads)
    for i, m in enumerate(mf):
        lq.need(needs[i])
        a(m)
        for _ in range(sched[i]):
            if reads: ids.append(lq.issue(reads.pop(0)))
        if i in extra: emit(a, extra[i])
    while reads: ids.append(lq.issue(reads.pop(0)))
    return ids

def epi1_A(a):
    a("s_lshr_b32 s%d, s%d, 2" % (S_T0, S_G1))
    a("s_lshl_b32 s%d, s%d, 3" % (S_T0, S_T0))
    a("s_and_b32 s%d, s%d, 3" % (S_T1, S_G1))
    a("s_lshl_b32 s%d, s%d, 1" % (S_T1, S_T1))
    a("s_add_u32 s%d, s%d, s%d" % (S_T0, S_T0, S_T1))
    a("s_add_u32 s%d, s%d, s%d" % (S_T0, S_T0, S_CS))
    a("s_lshl_b32 s%d, s%d, 6" % (S_T0, S_T0))
    a("s_lshl_b32 s%d, s%d, 2" % (S_T1, S_R))
    a("s_add_u32 s%d, s%d, s%d" % (S_T0, S_T0, S_T1))
    a("s_add_u32 s%d, s%d, s%d" % (S_T0, S_T0, S_RG))
    a("s_mul_i32 s%d, s%d, 5120" % (S_T0, S_T0))
    a("s_add_u32 s%d, s%d, %d" % (S_T0, S_T0, WS_KV))
    a("s_add_u32 s%d, s%d, 4096" % (S_T1, S_T0))
    def pack(swap):
        def f(a):
            for T in range(5):
                e = V_ACC2 + T * 4
                for t in range(2):
                    tp = t ^ swap
                    d = V_ACC + (tp * 5 + T) * 4
                    a("v_cvt_pk_bf16_f32 v%d, v%d, v%d" % (e + 2 * t, d, d + 1))
                    a("v_cvt_pk_bf16_f32 v%d, v%d, v%d" % (e + 2 * t + 1, d + 2, d + 3))
                a("buffer_store_dwordx4 %s, v%d, s[%d:%d], s%d offen offset:%d %s" % (vr(e, 4), V_IMG, S_WS, S_WS + 3, S_T1 if T == 4 else S_T0, (T & 3) * 1024, ST))
                if 'dbl' in OPT:
                    a("buffer_store_dwordx4 %s, v%d, s[%d:%d], s%d offen offset:%d" % (vr(e, 4), V_IMG, S_WS, S_WS + 3, S_T1 if T == 4 else S_T0, (T & 3) * 1024))
        return f
    role_branch(a, pack(0), pack(1))
    a("s_nop 1")

def phi(a, regs, tmp):
    a("s_mov_b32 s%d, 0x%x" % (S_T4, f2u(LOG2E)))
    a("s_mov_b32 s%d, 0x%x" % (S_T5, f2u(LOG2E)))
    a("s_mov_b32 s%d, 0x%x" % (S_M2, f2u(1e-6)))
    a("s_mov_b32 s%d, 0x%x" % (S_M2 + 1, f2u(1e-6)))
    for i in range(0, len(regs), 4):
        g = regs[i:i + 4]
        assert g[0] % 2 == 0 and g[1] == g[0] + 1 and g[2] % 2 == 0 and g[3] == g[2] + 1
        for k in (0, 2): a("v_pk_mul_f32 %s, %s, s[%d:%d]" % (vr(tmp + k, 2), vr(g[k], 2), S_T4, S_T5))
        for k in range(4): a("v_exp_f32_e64 v%d, v%d clamp" % (tmp + k, tmp + k))
        for k in range(4): a("v_max_f32 v%d, 0, v%d" % (g[k], g[k]))
        for k in (0, 2): a("v_pk_add_f32 %s, %s, s[%d:%d]" % (vr(g[k], 2), vr(g[k], 2), S_M2, S_M2 + 1))
        for k in (0, 2): a("v_pk_add_f32 %s, %s, %s" % (vr(g[k], 2), vr(g[k], 2), vr(tmp + k, 2)))

def piece_decode(a):
    a("s_and_b32 s%d, s%d, 1" % (S_T0, S_WV))
    a("s_lshl_b32 s%d, s%d, 6" % (S_T0, S_T0))
    a("v_add_u32 v5, s%d, v%d" % (S_T0, V_LANE))
    a("s_movk_i32 s%d, 2731" % S_T1)
    a("v_mul_u32_u24 v6, s%d, v5" % S_T1)
    a("v_lshrrev_b32 v6, 16, v6")
    a("v_mul_u32_u24 v7, 24, v6")
    a("v_sub_u32 v7, v5, v7")

def epi1_B(a):
    acc = lambda tp, T: V_ACC + (tp * 5 + T) * 4
    raw = V_WB0
    TMP = V_ACC2
    a("s_nop 7")
    for tp in range(2):
        for k in range(4): a("v_mov_b32 v%d, v%d" % (raw + tp * 4 + k, acc(tp, 4) + k))
    regs = []
    for T in (0, 1, 4):
        for tp in range(2): regs += [acc(tp, T) + k for k in range(4)]
    phi(a, regs, TMP)
    a("s_mov_b32 s%d, 0x00ff00ff" % S_M0)
    a("s_mov_b32 s%d, 0x00ff00ff" % (S_M0 + 1))
    for tp in range(2):
        for k in range(4):
            a("v_cndmask_b32_e64 v%d, v%d, v%d, s[%d:%d]" % (acc(tp, 4) + k, raw + tp * 4 + k, acc(tp, 4) + k, S_M0, S_M0 + 1))
    P = V_WB1
    for T in range(5):
        for tp in range(2):
            d = acc(tp, T)
            a("v_cvt_pk_bf16_f32 v%d, v%d, v%d" % (P + 4 * T + 2 * tp, d, d + 1))
            a("v_cvt_pk_bf16_f32 v%d, v%d, v%d" % (P + 4 * T + 2 * tp + 1, d + 2, d + 3))
    TB = V_WB0 + 8
    a("v_mov_b32 v%d, 0x3f803f80" % TMP)
    for k in range(4):
        a("v_cndmask_b32_e64 v%d, v%d, v%d, s[%d:%d]" % (TB + k, P + 16 + k, TMP, S_M0, S_M0 + 1))
    F0, F1, V0, V1, TA = P, P + 4, P + 8, P + 12, P + 16
    D = V_ACC
    a("s_mul_i32 s%d, s%d, 7168" % (S_T0, S_WV))
    a("v_lshlrev_b32 v4, 4, v%d" % V_LANE)
    for i, (x, y) in enumerate([(F0, V0), (F1, V1), (F0, TB), (F1, TB), (TA, V0), (TA, V1), (TA, TB)]):
        a(mfma16(D + 4 * i, x, y, "0"))
    a("v_add_u32 v4, s%d, v4" % S_T0)
    piece_decode(a)
    M = TMP
    a("s_lshr_b32 s%d, s%d, 1" % (S_T2, S_WV))
    a("s_and_b32 s%d, s%d, 1" % (S_T3, S_T2))
    a("s_lshr_b32 s%d, s%d, 1" % (S_T2, S_T2))
    a("s_lshl_b32 s%d, s%d, 2" % (S_T4, S_T3))
    a("s_sub_u32 s%d, s%d, 8" % (S_T4, S_T4))
    a("v_add_u32 v8, s%d, v7" % S_T4)
    a("v_cmp_gt_u32_e64 s[%d:%d], 20, v7" % (S_M0, S_M0 + 1))
    a("v_cmp_gt_u32_e64 s[%d:%d], 16, v7" % (S_M1, S_M1 + 1))
    a("v_cmp_gt_u32_e64 s[%d:%d], 4, v6" % (S_M2, S_M2 + 1))
    a("s_barrier")
    for i in range(7):
        a("ds_write_b128 v4, %s offset:%d" % (vr(D + 4 * i, 4), i * 1024))
    a("v_cndmask_b32_e64 v8, 0, v8, s[%d:%d]" % (S_M0, S_M0 + 1))
    a("v_cndmask_b32_e64 v8, v8, v7, s[%d:%d]" % (S_M1, S_M1 + 1))
    a("v_mov_b32 v9, s%d" % S_T3)
    a("v_cndmask_b32_e64 v9, v9, v6, s[%d:%d]" % (S_M2, S_M2 + 1))
    a("v_lshl_add_u32 v8, v9, 4, v8")
    a("s_add_u32 s%d, s%d, 4" % (S_T4, S_T3))
    a("v_mov_b32 v9, s%d" % S_T4)
    a("v_mov_b32 v%d, s%d" % (M, S_T3))
    a("v_cndmask_b32_e64 v9, v9, v%d, s[%d:%d]" % (M, S_M2, S_M2 + 1))
    a("s_add_u32 s%d, s%d, 2" % (S_T4, S_T3))
    a("v_mov_b32 v%d, s%d" % (M, S_T4))
    a("v_cndmask_b32_e64 v%d, 6, v%d, s[%d:%d]" % (M, M, S_M2, S_M2 + 1))
    a("v_cndmask_b32_e64 v9, v%d, v9, s[%d:%d]" % (M, S_M1, S_M1 + 1))
    a("v_lshlrev_b32 v9, 10, v9")
    a("v_lshl_add_u32 v8, v8, 4, v9")
    a("s_mul_i32 s%d, s%d, %d" % (S_T4, S_T2, 4 * 7168))
    a("v_add_u32 v8, s%d, v8" % S_T4)
    a("v_cmp_gt_u32_e64 s[%d:%d], 21, v7" % (S_M0, S_M0 + 1))
    a("v_cmp_gt_u32_e64 s[%d:%d], 5, v6" % (S_M1, S_M1 + 1))
    a("v_min_u32 v8, %d, v8" % (8 * 7168 - 3 * 7168 - 16))
    a("s_lshl_b32 s%d, s%d, 4" % (S_T0, S_G))
    a("s_add_u32 s%d, s%d, s%d" % (S_T0, S_T0, S_R))
    a("s_lshl_b32 s%d, s%d, 13" % (S_T0, S_T0))
    a("s_lshr_b32 s%d, s%d, 1" % (S_T1, S_WV))
    a("s_lshl_b32 s%d, s%d, 11" % (S_T1, S_T1))
    a("s_add_u32 s%d, s%d, s%d" % (S_T0, S_T0, S_T1))
    a("s_add_u32 s%d, s%d, %d" % (S_T0, S_T0, WS_PART))
    a("v_lshlrev_b32 v5, 4, v5")
    a("s_waitcnt lgkmcnt(0)")
    a("s_barrier")
    a("s_and_b64 s[%d:%d], s[%d:%d], s[%d:%d]" % (S_M0, S_M0 + 1, S_M0, S_M0 + 1, S_M1, S_M1 + 1))
    E = V_ACC
    for rg in range(4): a("ds_read_b128 %s, v8 offset:%d" % (vr(E + 4 * rg, 4), rg * 7168))
    a("s_waitcnt lgkmcnt(0)")
    for k in (0, 2):
        a("v_pk_add_f32 %s, %s, %s" % (vr(E + k, 2), vr(E + k, 2), vr(E + 4 + k, 2)))
        a("v_pk_add_f32 %s, %s, %s" % (vr(E + 8 + k, 2), vr(E + 8 + k, 2), vr(E + 12 + k, 2)))
    for k in (0, 2): a("v_pk_add_f32 %s, %s, %s" % (vr(E + k, 2), vr(E + k, 2), vr(E + 8 + k, 2)))
    a("s_mov_b64 exec, s[%d:%d]" % (S_M0, S_M0 + 1))
    a("buffer_store_dwordx4 %s, v5, s[%d:%d], s%d offen %s" % (vr(E, 4), S_WS, S_WS + 3, S_T0, ST))
    a("s_mov_b64 exec, -1")

LDS_Q = 126976
def epi2(a):
    XCH = 0
    a("s_mul_i32 s%d, s%d, 5120" % (S_T0, S_WV))
    a("v_lshlrev_b32 v4, 4, v%d" % V_LANE)
    a("s_xor_b32 s%d, s%d, 4" % (S_T1, S_WV))
    a("v_add_u32 v5, s%d, v4" % S_T0)
    a("s_mul_i32 s%d, s%d, 5120" % (S_T1, S_T1))
    a("s_nop 2")
    for T in range(5): a("ds_write_b128 v5, %s offset:%d" % (vr(V_ACC2 + (5 + T) * 4, 4), XCH + T * 1024))
    a("v_add_u32 v5, s%d, v4" % S_T1)
    a("s_lshl_b32 s%d, s%d, 3" % (S_T1, S_CS))
    a("v_add_u32 v4, s%d, v%d" % (S_T1, V_IMG))
    a("s_mul_i32 s%d, s%d, 5120" % (S_T0, S_RG))
    a("s_add_u32 s%d, s%d, %d" % (S_T0, S_T0, LDS_Q))
    a("v_add_u32 v4, s%d, v4" % S_T0)
    a("s_waitcnt lgkmcnt(0)")
    a("s_barrier")
    R = V_WB0
    for T in range(5): a("ds_read_b128 %s, v5 offset:%d" % (vr(R + 4 * T, 4), XCH + T * 1024))
    regs = [V_ACC2 + T * 4 + k for T in range(5) for k in range(4)]
    for T in range(5):
        a("s_waitcnt lgkmcnt(%d)" % (4 - T))
        for k in (0, 2):
            a("v_pk_add_f32 %s, %s, %s" % (vr(V_ACC2 + 4 * T + k, 2), vr(V_ACC2 + 4 * T + k, 2), vr(R + 4 * T + k, 2)))
    def fa(a):
        a("s_mov_b32 s%d, 0x%x" % (S_T4, f2u(QSCALE)))
        a("s_mov_b32 s%d, 0x%x" % (S_T5, f2u(QSCALE)))
        for k in range(0, 20, 2): a("v_pk_mul_f32 %s, %s, s[%d:%d]" % (vr(V_ACC2 + k, 2), vr(V_ACC2 + k, 2), S_T4, S_T5))
    lb, ld = a.newlabel("e2b"), a.newlabel("e2d")
    a("s_cmp_eq_u32 s%d, 0" % S_BR)
    a("s_cbranch_scc0 %s" % lb)
    fa(a)
    a("s_branch %s" % ld)
    a.label(lb)
    phi(a, regs, V_ACC)
    a.label(ld)
    for T in range(5):
        d = V_ACC2 + T * 4
        a("v_cvt_pk_bf16_f32 v%d, v%d, v%d" % (R + 2 * T, d, d + 1))
        a("v_cvt_pk_bf16_f32 v%d, v%d, v%d" % (R + 2 * T + 1, d + 2, d + 3))
        a("ds_write_b64 v4, %s offset:%d" % (vr(R + 2 * T, 2), T * 1024))

def vm_wait_roles(a, nw, nx):
    if nw == nx: a("s_waitcnt vmcnt(%d)" % nw)
    else: role_branch(a, "s_waitcnt vmcnt(%d)" % nw, "s_waitcnt vmcnt(%d)" % nx)

def publish(a, s_off, wave=0):
    def body(a):
        a("v_mov_b32 v4, s%d" % S_NONCE)
        a("v_mov_b32 v5, 0")
        a("s_mov_b64 exec, 1")
        a("buffer_store_dword v4, v5, s[%d:%d], s%d offen sc0 sc1" % (S_WS, S_WS + 3, s_off))
        a("s_mov_b64 exec, -1")
    if wave is None: body(a)
    else: on_wave(a, wave, body)

def poll(a, voff, s_off, mask_lo, mask_hi):
    def body(a):
        lp, ld = a.newlabel("pp"), a.newlabel("pd")
        a("s_mov_b32 exec_lo, %s" % mask_lo)
        a("s_mov_b32 exec_hi, %s" % mask_hi)
        a("s_mov_b32 s%d, 0" % S_T5)
        a.label(lp)
        a("buffer_load_dword v6, v%d, s[%d:%d], s%d offen sc1" % (voff, S_WS, S_WS + 3, s_off))
        a("s_waitcnt vmcnt(0)")
        a("v_cmp_ne_u32_e64 s[%d:%d], s%d, v6" % (S_M0, S_M0 + 1, S_NONCE))
        a("s_add_u32 s%d, s%d, 1" % (S_T5, S_T5))
        a("s_nop 1")
        a("s_cmp_eq_u64 s[%d:%d], 0" % (S_M0, S_M0 + 1))
        a("s_cbranch_scc1 %s" % ld)
        a("s_sleep 1")
        a("s_cmp_lt_u32 s%d, %d" % (S_T5, SPIN_LIMIT))
        a("s_cbranch_scc1 %s" % lp)
        a.label(ld)
        a("s_mov_b64 exec, -1")
    on_wave(a, 0, body)

def wo_pf_setup(a, v):
    a("v_mul_u32_u24 v4, 52, v%d" % V_LANE); a("v_lshrrev_b32 v4, 8, v4")
    a("v_mul_u32_u24 v5, 5, v4"); a("v_sub_u32 v5, v%d, v5" % V_LANE)
    a("s_mul_i32 s%d, s%d, 20" % (S_T0, S_I))
    a("v_add_u32 v4, s%d, v4" % S_T0)
    a("s_movk_i32 s%d, 1280" % S_T1)
    a("v_mul_u32_u24 v4, s%d, v4" % S_T1)
    a("v_lshl_add_u32 v4, v5, 7, v4")
    a("s_lshr_b32 s%d, s%d, 2" % (S_T0, S_G))
    a("s_mul_i32 s%d, s%d, 640" % (S_T0, S_T0))
    a("v_add_u32 v%d, s%d, v4" % (v, S_T0))
assert all((l * 52) >> 8 == l // 5 for l in range(64))

def wo_pf_issue(a, v, srd_):
    a("buffer_load_dword v%d, v%d, s[%d:%d], 0 offen %s" % (V_PFD, v, srd_, srd_ + 3, PFL))
    a("s_mov_b32 s%d, %d" % (S_OFF, 12 * 1280))
    a("buffer_load_dword v%d, v%d, s[%d:%d], s%d offen %s" % (V_PFD, v, srd_, srd_ + 3, S_OFF, PFL))

def phase1(a):
    dma_setup(a)
    stamp(a, "dset")
    entry_srd(a)
    stamp(a, "karg")
    emit(a, [pf('x', 0, 0), pf('w', 0, 0), pf('x', 1, 1), pf('w', 1, 1), pf('x', 2, 2), pf('w', 2, 2)])
    stamp(a, "pf0")
    emit(a, [dma(0, j) for j in range(5)])
    entry_srd2(a)
    stamp(a, "g0")
    addr1_setup(a)
    emit(a, [dma(1, j) for j in range(5)])
    stamp(a, "g1")
    addr2_setup(a)
    a("v_mov_b32 v8, 0")
    a("s_mov_b32 s%d, %d" % (S_OFF, WS_FLAG))
    a("buffer_load_dword v9, v8, s[%d:%d], s%d offen sc1" % (S_WS, S_WS + 3, S_OFF))
    emit(a, [dma(2, j) for j in range(5)])
    stamp(a, "g2")
    vm_wait_roles(a, 10, 8)
    stamp(a, "g0land")
    a("s_barrier")
    stamp(a, "t0")
    lq = LQ(a)
    cur = [lq.issue(x) for x in p1_reads(0, 0)]
    SCH = {'e': [2, 1, 1, 1, 1, 2, 1, 1, 1, 1], 'f': [2, 2, 2, 2, 2, 2, 0, 0, 0, 0], 'm': [2, 2, 1, 1, 1, 1, 1, 1, 1, 1], 'g': [2, 2, 2, 1, 1, 1, 1, 1, 1, 0]}[SCHED]
    needs12 = lambda ids: [ids[2 + 2 * (i // 2) + 1] for i in range(10)]
    needs10 = lambda ids: [ids[2 * (i // 2) + 1] for i in range(10)]
    for s in range(10):
        ex0 = {}
        if s >= 1: ex0 = {2: dma(s + 2, 3), 6: dma(s + 2, 4)}
        nxt = half(a, lq, p1_mfmas(s, 0, s == 0), needs12(cur), p1_reads(s, 1), SCH, ex0)
        if s == 8: vm_wait_roles(a, 5, 0)
        elif s == 9: a("s_waitcnt vmcnt(5)")
        else: vm_wait_roles(a, 5, 4)
        a("s_barrier")
        stamp(a, "s%d" % s)
        if s == 2:
            a("v_readfirstlane_b32 s%d, v9" % S_NONCE)
            a("s_nop 3")
            a("s_add_u32 s%d, s%d, 0x9e3779b9" % (S_NONCE, S_NONCE))
        pfl = []
        if s == 0: pfl = [pf('x', 3, 3), pf('w', 3, 3)]
        if s == 2: pfl = [pf('x', 4, 0), pf('w', 4, 0)]
        if s == 4: pfl = [pf('q', 0, 1)]
        if s == 5: pfl = [pf('q', 1, 2)]
        if s == 6: pfl = [pf('q', 2, 3)]
        ex1 = {1: dma(s + 3, 0), 4: dma(s + 3, 1), 7: dma(s + 3, 2), 9: pfl}
        if s == 9: ex1 = {1: dma(12, 0), 3: dma(12, 1), 5: dma(12, 2), 7: dma(12, 3), 9: dma(12, 4)}
        rd = p1_reads(s + 1, 0) if s < 9 else p2_reads(0)
        cur = half(a, lq, p1_mfmas(s, 1, False), needs12(nxt), rd, SCH, ex1)
    stamp(a, "p1end")
    lb, ld = a.newlabel("e1b"), a.newlabel("e1d")
    a("s_cmp_eq_u32 s%d, 0" % S_BR)
    a("s_cbranch_scc0 %s" % lb)
    epi1_A(a)
    a("s_branch %s" % ld)
    a.label(lb)
    a("s_waitcnt lgkmcnt(0)")
    epi1_B(a)
    emit(a, p2_reads(0))
    a.label(ld)
    stamp(a, "e1end")
    wo_pf_setup(a, V_PF)
    def wopf(a):
        if 'nopf' in OPT: return
        def body(a):
            a("s_cmp_eq_u32 s%d, 0" % S_BR)
            l = a.newlabel("wpf")
            a("s_cbranch_scc1 %s" % l)
            wo_pf_issue(a, V_PF, S_WOB)
            a.label(l)
            wo_pf_issue(a, V_PF, S_WO)
        on_wave(a, 4, body)
    a("s_waitcnt lgkmcnt(0)")
    lq = LQ(a)
    cur = None
    SCH2 = {'e': [1] * 10, 'f': [2, 2, 2, 2, 2, 0, 0, 0, 0, 0], 'm': [2, 1, 1, 1, 1, 1, 1, 1, 1, 0], 'g': [2, 2, 1, 1, 1, 1, 1, 1, 0, 0]}[SCHED]
    for u in range(10):
        extra = {}
        rd = []
        if u + 1 < 10:
            if (u + 1) % 2 == 0:
                nx = 10 + (u + 1) // 2
                if nx == 13: vm_wait_roles(a, 5, 0)
                elif nx == 14: role_branch(a, "s_waitcnt vmcnt(0)", None)
                else:
                    nsa = 5 + (10 if 'dbl' in OPT else 5)
                    lB, lD = a.newlabel("wb"), a.newlabel("wd")
                    a("s_cmp_eq_u32 s%d, 0" % S_BR)
                    a("s_cbranch_scc0 %s" % lB)
                    a("s_waitcnt vmcnt(%d)" % nsa)
                    a("s_branch %s" % lD)
                    a.label(lB)
                    a("s_waitcnt vmcnt(6)")
                    a.label(lD)
                a("s_barrier")
                if 13 <= nx + 2 <= 14: extra = {1: dma(nx + 2, 0), 3: dma(nx + 2, 1), 5: dma(nx + 2, 2), 7: dma(nx + 2, 3), 9: dma(nx + 2, 4)}
                if nx == 13:
                    def pub(a):
                        a("s_lshl_b32 s%d, s%d, 4" % (S_T0, S_G))
                        a("s_add_u32 s%d, s%d, s%d" % (S_T0, S_T0, S_R))
                        a("s_lshl_b32 s%d, s%d, 7" % (S_T0, S_T0))
                        a("s_mul_i32 s%d, s%d, %d" % (S_T1, S_BR, F_PART - F_KV))
                        a("s_add_u32 s%d, s%d, s%d" % (S_T0, S_T0, S_T1))
                        a("s_add_u32 s%d, s%d, %d" % (S_T0, S_T0, F_KV))
                        publish(a, S_T0, 0)
                    extra[0] = [pub]
            rd = p2_reads(u + 1)
        if u == 6: extra[3] = [wopf]
        needs = needs10(cur) if cur else [0] * 10
        cur = half(a, lq, p2_mfmas(u), needs, rd, SCH2, extra)
    a("s_nop 4")
    stamp(a, "p2end")
    epi2(a)
    stamp(a, "e2end")

LDS_K, LDS_V = 0, 65536
LDS_KVR = 147456
A_KA0, A_KA1, A_KAT, A_VA0, A_VA1, A_QA0, A_QA1, A_QAT, A_OM, A_OT = 10, 11, 12, 13, 14, 15, 16, 17, 18, 19
A_AM, A_Q1, A_Q2, A_KB, A_VB, A_S, A_O = 20, 32, 36, 40, 64, 96, 240
S_TAU0 = S_U
S_EXV, S_HI, S_LO = 62, 64, 66
NEG_BIG = f2u(-3.0e38)
S_KV0, S_KV1, S_KV2 = 20, 21, 22
A_L16 = 88

def jkey(r, h):
    m, b, e = r >> 3, (r >> 2) & 1, r & 3
    return 16 * b + 8 * m + 4 * h + e
def diag_mask(r):
    return (sum(1 << i for i in range(32) if jkey(r, 0) <= i), sum(1 << i for i in range(32) if jkey(r, 1) <= i))

def p2_common_setup(a, attn):
    a("v_and_b32 v4, 1, v%d" % V_KG)
    a("v_lshrrev_b32 v5, 1, v%d" % V_KG)
    a("v_lshrrev_b32 v6, 2, v%d" % V_N)
    a("v_and_b32 v7, 3, v%d" % V_N)
    a("s_and_b32 s%d, s%d, 3" % (S_T0, S_WV))
    a("s_lshr_b32 s%d, s%d, 2" % (S_T1, S_WV))
    a("s_mul_i32 s%d, s%d, 5120" % (S_T1, S_T1))
    a("s_lshl_b32 s%d, s%d, 10" % (S_T2, S_T0))
    a("s_add_u32 s%d, s%d, s%d" % (S_T2, S_T2, S_T1))
    a("s_add_u32 s%d, s%d, 4096" % (S_T3, S_T1))
    a("s_lshl_b32 s%d, s%d, 2" % (S_T4, S_T0))
    def addr(dst, n, kgimg, tbit, sbase, extra):
        a("v_lshl_add_u32 v9, v%d, 2, v%d" % (kgimg, n))
        a("v_and_b32 v9, 15, v9")
        a("v_lshl_add_u32 v9, v%d, 4, v9" % kgimg)
        a("v_lshlrev_b32 v9, 4, v9")
        a("v_lshl_add_u32 v9, v%d, 3, v9" % tbit)
        a("s_add_u32 s%d, s%d, %d" % (S_T5, sbase, extra))
        a("v_add_u32 v%d, s%d, v9" % (dst, S_T5))
    a("v_lshl_add_u32 v8, v5, 3, v6")
    addr(A_QA0, 8, 7, 4, S_T2, LDS_Q)
    a("v_add_u32 v30, 4, v8")
    addr(A_QA1, 30, 7, 4, S_T2, LDS_Q)
    a("v_add_u32 v31, s%d, v6" % S_T4)
    addr(A_QAT, 31, 7, 4, S_T3, LDS_Q)
    if attn:
        a("v_and_b32 v28, 1, v7")
        a("v_lshl_add_u32 v28, v4, 1, v28")
        a("v_lshrrev_b32 v29, 1, v7")
        addr(A_KA0, 8, 28, 29, S_T2, LDS_K)
        addr(A_KA1, 30, 28, 29, S_T2, LDS_K)
        addr(A_KAT, 31, 28, 29, S_T3, LDS_K)
    a("v_and_b32 v4, 31, v%d" % V_LANE)
    a("v_lshrrev_b32 v5, 5, v%d" % V_LANE)
    if attn:
        a("v_cmp_gt_u32_e64 s[%d:%d], 16, v4" % (S_M0, S_M0 + 1))
        a("s_sub_u32 s%d, s%d, 16" % (S_T5, S_T4))
        a("v_add_u32 v6, s%d, v4" % S_T5)
        a("v_and_b32 v6, 15, v6")
        a("v_cndmask_b32_e64 v6, v6, v4, s[%d:%d]" % (S_M0, S_M0 + 1))
        a("v_mov_b32 v7, s%d" % S_T3)
        a("v_mov_b32 v8, s%d" % S_T2)
        a("v_cndmask_b32_e64 v7, v7, v8, s[%d:%d]" % (S_M0, S_M0 + 1))
        for m in range(2):
            a("v_add_u32 v8, %d, v5" % (2 * m))
            a("v_lshl_add_u32 v9, v8, 2, v6")
            a("v_and_b32 v9, 15, v9")
            a("v_lshl_add_u32 v9, v8, 4, v9")
            a("v_lshl_add_u32 v9, v9, 4, v7")
            a("v_add_u32 v%d, %d, v9" % (A_VA0 + m, LDS_V))
    a("s_lshl_b32 s%d, s%d, 2" % (S_T1, S_G))
    a("s_add_u32 s%d, s%d, s%d" % (S_T1, S_T1, S_T0))
    a("s_lshl_b32 s%d, s%d, 3" % (S_T2, S_R))
    a("s_lshr_b32 s%d, s%d, 2" % (S_T3, S_WV))
    a("s_lshl_b32 s%d, s%d, 1" % (S_T3, S_T3))
    a("s_add_u32 s%d, s%d, s%d" % (S_T2, S_T2, S_T3))
    a("s_mul_i32 s%d, s%d, 20480" % (S_T2, S_T2))
    a("s_mul_i32 s%d, s%d, %d" % (S_T3, S_BR, O_BR))
    a("s_add_u32 s%d, s%d, s%d" % (S_T2, S_T2, S_T3))
    a("s_add_u32 s%d, s%d, %d" % (S_T2, S_T2, WS_O))
    a("v_lshrrev_b32 v6, 4, v4")
    a("s_movk_i32 s%d, 20480" % S_T3)
    a("v_mul_u32_u24 v6, s%d, v6" % S_T3)
    a("v_and_b32 v7, 15, v4")
    a("v_lshl_add_u32 v6, v7, 4, v6")
    a("v_add_u32 v6, s%d, v6" % S_T2)
    a("s_lshr_b32 s%d, s%d, 1" % (S_T3, S_T1))
    a("s_lshl_b32 s%d, s%d, 10" % (S_T3, S_T3))
    a("s_and_b32 s%d, s%d, 1" % (S_T4, S_T1))
    a("s_lshl_b32 s%d, s%d, 9" % (S_T4, S_T4))
    a("s_add_u32 s%d, s%d, s%d" % (S_T3, S_T3, S_T4))
    a("v_lshl_add_u32 v7, v5, 8, v6")
    a("v_add_u32 v%d, s%d, v7" % (A_OM, S_T3))
    a("s_lshr_b32 s%d, s%d, 3" % (S_T3, S_T1))
    a("s_add_u32 s%d, s%d, 16" % (S_T3, S_T3))
    a("s_lshl_b32 s%d, s%d, 10" % (S_T3, S_T3))
    a("s_and_b32 s%d, s%d, 6" % (S_T4, S_T1))
    a("s_lshl_b32 s%d, s%d, 7" % (S_T4, S_T4))
    a("s_add_u32 s%d, s%d, s%d" % (S_T3, S_T3, S_T4))
    a("s_and_b32 s%d, s%d, 1" % (S_T4, S_T1))
    a("s_lshl_b32 s%d, s%d, 3" % (S_T4, S_T4))
    a("s_add_u32 s%d, s%d, s%d" % (S_T3, S_T3, S_T4))
    a("v_add_u32 v%d, s%d, v6" % (A_OT, S_T3))
    a("s_mov_b32 s%d, 0" % S_HI); a("s_mov_b32 s%d, -1" % (S_HI + 1))
    a("s_mov_b32 s%d, -1" % S_LO); a("s_mov_b32 s%d, 0" % (S_LO + 1))

def q_frag_reads():
    return ["ds_read_b64_tr_b16 %s, v%d" % (vr(A_Q1, 2), A_QA0),
            "ds_read_b64_tr_b16 %s, v%d" % (vr(A_Q1 + 2, 2), A_QA1),
            "ds_read_b64_tr_b16 %s, v%d" % (vr(A_Q2, 2), A_QAT)]
def q_frag_fix(a):
    a("v_cndmask_b32_e64 v%d, v%d, 0, s[%d:%d]" % (A_Q2, A_Q2, S_HI, S_HI + 1))
    a("v_cndmask_b32_e64 v%d, v%d, 0, s[%d:%d]" % (A_Q2 + 1, A_Q2 + 1, S_HI, S_HI + 1))

def o_epilogue(a, eps=False):
    O = A_O
    a("v_cndmask_b32_e64 v30, v%d, v%d, s[%d:%d]" % (O + 12, O + 8, S_HI, S_HI + 1))
    if eps: a("v_add_f32 v30, 0x%x, v30" % f2u(1e-6))
    a("v_rcp_f32 v30, v30")
    a("s_nop 0")
    for k in range(0, 12, 2):
        a("v_pk_mul_f32 %s, %s, v[30:31] op_sel_hi:[1,0]" % (vr(O + k, 2), vr(O + k, 2)))
    for k in range(6): a("v_cvt_pk_bf16_f32 v%d, v%d, v%d" % (O + k, O + 2 * k, O + 2 * k + 1))
    for fl in ([ST, ""] if 'dbl' in OPT else [ST]):
        a("buffer_store_dwordx4 %s, v%d, s[%d:%d], 0 offen %s" % (vr(O, 4), A_OM, S_WS, S_WS + 3, fl))
        a("s_mov_b64 exec, s[%d:%d]" % (S_LO, S_LO + 1))
        a("buffer_store_dwordx2 %s, v%d, s[%d:%d], 0 offen %s" % (vr(O + 4, 2), A_OT, S_WS, S_WS + 3, fl))
        a("s_mov_b64 exec, -1")

def attn_setup(a):
    p2_common_setup(a, True)
    for r in range(16):
        lo, hi = diag_mask(r)
        a("s_mov_b32 s%d, 0x%x" % (S_MASK + 2 * r, lo)); a("s_mov_b32 s%d, 0x%x" % (S_MASK + 2 * r + 1, hi))
    a("v_mov_b32 v30, 0xffff")
    a("v_mov_b32 v31, 0xffff0000")
    for k in range(8):
        a("v_cndmask_b32_e64 v4, 0, v30, s[%d:%d]" % (S_MASK + 4 * k, S_MASK + 4 * k + 1))
        a("v_cndmask_b32_e64 v5, 0, v31, s[%d:%d]" % (S_MASK + 4 * k + 2, S_MASK + 4 * k + 3))
        a("v_or_b32 v%d, v4, v5" % (A_AM + k))
    a("v_mov_b32 v4, 0x3f803f80")
    for k in range(24): a("v_mov_b32 v%d, v4" % (A_VB + k))
    for b in range(3):
        a("v_mov_b32 v%d, 0" % (A_KB + 8 * b + 6)); a("v_mov_b32 v%d, 0" % (A_KB + 8 * b + 7))
    a("v_mov_b32 v%d, 0" % (A_Q2 + 2)); a("v_mov_b32 v%d, 0" % (A_Q2 + 3))
    a("s_mov_b32 s%d, 0x000fffff" % S_EXV); a("s_mov_b32 s%d, 0x000fffff" % (S_EXV + 1))

def k_reads(tau, buf):
    b = A_KB + 8 * buf
    return ["ds_read_b64_tr_b16 %s, v%d offset:%d" % (vr(b, 2), A_KA0, tau * 5120),
            "ds_read_b64_tr_b16 %s, v%d offset:%d" % (vr(b + 2, 2), A_KA1, tau * 5120),
            "ds_read_b64_tr_b16 %s, v%d offset:%d" % (vr(b + 4, 2), A_KAT, tau * 5120)]
def v_reads(tau, buf):
    b = A_VB + 8 * buf
    return ["s_mov_b64 exec, s[%d:%d]" % (S_EXV, S_EXV + 1),
            "ds_read_b128 %s, v%d offset:%d" % (vr(b, 4), A_VA0, tau * 5120),
            "ds_read_b128 %s, v%d offset:%d" % (vr(b + 4, 4), A_VA1, tau * 5120),
            "s_mov_b64 exec, -1"]

def attn_unit(a, stubs, mid, qk_extra):
    S = lambda t: A_S + 16 * t
    order = [8, 0, 1, 2, 3, 4, 5, 6, 7]
    emit(a, q_frag_reads())
    emit(a, k_reads(order[0], 0)); emit(a, k_reads(order[1], 1))
    a("s_waitcnt lgkmcnt(6)")
    q_frag_fix(a)
    accs = [28, 29, 30, 31]
    acc_init = [False] * 4
    def max_ops(base):
        L = []
        for k in range(0, 16, 2):
            ai = (k // 2) % 4
            if not acc_init[ai]:
                L.append("v_max_f32 v%d, v%d, v%d" % (accs[ai], base + k, base + k + 1)); acc_init[ai] = True
            else:
                L.append("v_max3_f32 v%d, v%d, v%d, v%d" % (accs[ai], base + k, base + k + 1, accs[ai]))
        return L
    merge = ["v_cndmask_b32_e64 v%d, v%d, v%d, s[%d:%d]" % (S(0) + r, S(0) + r, S(8) + r, S_MASK + 2 * r, S_MASK + 2 * r + 1) for r in range(16)]
    for idx, tau in enumerate(order):
        buf = idx % 3
        if idx + 2 < 9: emit(a, k_reads(order[idx + 2], (idx + 2) % 3))
        a("s_waitcnt lgkmcnt(%d)" % (3 * min(2, 8 - idx)))
        kb = A_KB + 8 * buf
        if tau < 8:
            lf, lr = a.newlabel("fill"), a.newlabel("fret")
            a("s_cmp_gt_u32 s%d, %d" % (S_TAU0, tau))
            a("s_cbranch_scc1 %s" % lf)
            stubs.append((lf, lr, S(tau)))
        work = []
        if idx == 3: work = merge[:]
        if idx == 4: work = max_ops(S(0))
        if idx >= 5: work = max_ops(S(order[idx - 3]))
        a(mfma32(S(tau), kb, A_Q1, "0"))
        a(mfma32(S(tau), kb + 4, A_Q2))
        if tau < 8: a.label(lr)
        emit(a, qk_extra.get(idx))
        emit(a, work)
    emit(a, max_ops(S(5)))
    emit(a, max_ops(S(6)))
    emit(a, mid)
    emit(a, v_reads(8, 0)); emit(a, v_reads(0, 1))
    emit(a, max_ops(S(7)))
    a("v_max3_f32 v28, v28, v29, v30")
    a("v_max_f32 v28, v28, v31")
    a("v_mov_b32 v29, v28")
    a("s_nop 1")
    a("v_permlane32_swap_b32 v28, v29")
    a("s_nop 1")
    a("v_max_f32 v28, v28, v29")
    def sm_ops(base):
        L = ["v_pk_add_f32 %s, %s, v[28:29] op_sel_hi:[1,0] neg_lo:[0,1] neg_hi:[0,1]" % (vr(base + k, 2), vr(base + k, 2)) for k in range(0, 16, 2)]
        E = [["v_exp_f32 v%d, v%d" % (base + k, base + k), "v_exp_f32 v%d, v%d" % (base + k + 1, base + k + 1)] for k in range(0, 16, 2)]
        out = L[:2]
        for k in range(8):
            out += E[k]
            if k + 2 < 8: out.append(L[k + 2])
            if k >= 1: out.append("v_cvt_pk_bf16_f32 v%d, v%d, v%d" % (base + k - 1, base + 2 * (k - 1), base + 2 * (k - 1) + 1))
        out.append("s_nop 0")
        out.append("v_cvt_pk_bf16_f32 v%d, v%d, v%d" % (base + 7, base + 14, base + 15))
        return out
    emit(a, sm_ops(S(0)))
    for k in range(8): a("v_and_b32 v%d, v%d, v%d" % (S(0) + 8 + k, S(0) + k, A_AM + k))
    for k in range(8): a("v_xor_b32 v%d, v%d, v%d" % (S(0) + k, S(0) + k, S(0) + 8 + k))
    a("s_waitcnt lgkmcnt(0)")
    emit(a, v_reads(1, 2))
    def guarded(mms, tau):
        def f(a):
            l = a.newlabel("pvs")
            a("s_cmp_gt_u32 s%d, %d" % (S_TAU0, tau))
            a("s_cbranch_scc1 %s" % l)
            for x in mms: a(x)
            a.label(l)
        return f
    pv = [mfma32(A_O, A_VB + 0, S(0) + 8, "0"), mfma32(A_O, A_VB + 4, S(0) + 12),
          guarded([mfma32(A_O, A_VB + 8, S(0)), mfma32(A_O, A_VB + 12, S(0) + 4)], 0)]
    for tau in range(1, 8):
        vb = (tau + 1) % 3
        sm = sm_ops(S(tau))
        n, m, done = len(sm), len(pv), 0
        for i, x in enumerate(sm):
            emit(a, x)
            want = min(m, ((i + 1) * m + n // 2) // n) if i >= 1 else 0
            while done < want:
                emit(a, pv[done]); done += 1
        while done < m:
            emit(a, pv[done]); done += 1
        a("s_waitcnt lgkmcnt(0)")
        if tau + 1 < 8: emit(a, v_reads(tau + 1, (tau + 2) % 3))
        b = A_VB + 8 * vb
        pv = [guarded([mfma32(A_O, b, S(tau)), mfma32(A_O, b + 4, S(tau) + 4)], tau)]
    a("s_nop 1")
    emit(a, pv)
    a("s_nop 15")
    o_epilogue(a)

def round_advance(a, attn=True):
    for v in ((A_KA0, A_KA1, A_KAT, A_VA0, A_VA1) if attn else ()) + (A_QA0, A_QA1, A_QAT):
        a("v_add_u32 v%d, %d, v%d" % (v, 2 * 5120, v))
    a("v_add_u32 v%d, %d, v%d" % (A_OM, 4 * 20480, A_OM))
    a("v_add_u32 v%d, %d, v%d" % (A_OT, 4 * 20480, A_OT))

def set_tau0(a):
    a("s_lshl_b32 s%d, s%d, 2" % (S_T0, S_R))
    a("s_lshr_b32 s%d, s%d, 2" % (S_T1, S_WV))
    a("s_add_u32 s%d, s%d, s%d" % (S_T0, S_T0, S_T1))
    a("s_add_u32 s%d, s%d, s%d" % (S_T0, S_T0, S_DB))
    a("s_sub_i32 s%d, 8, s%d" % (S_TAU0, S_T0))
    a("s_max_i32 s%d, s%d, 0" % (S_TAU0, S_TAU0))

def emit_stubs(a, stubs):
    for lf, lr, base in stubs:
        a.label(lf)
        a("v_mov_b32 v%d, 0x%x" % (base, NEG_BIG))
        for k in range(1, 16): a("v_mov_b32 v%d, v%d" % (base + k, base))
        a("s_branch %s" % lr)

def kv_params(a):
    a("s_lshl_b32 s%d, s%d, 6" % (S_T0, S_G))
    a("s_lshl_b32 s%d, s%d, 2" % (S_T1, S_R))
    a("s_add_u32 s%d, s%d, s%d" % (S_T0, S_T0, S_T1))
    a("s_sub_i32 s%d, s%d, 8" % (S_T0, S_T0))
    a("s_mul_i32 s%d, s%d, 5120" % (S_T0, S_T0))
    a("s_lshl_b32 s%d, s%d, 10" % (S_KV1, S_WV))
    a("s_add_u32 s%d, s%d, s%d" % (S_KV0, S_T0, S_KV1))
    a("s_lshl_b32 s%d, s%d, 2" % (S_T3, S_R))
    a("s_sub_i32 s%d, 8, s%d" % (S_T3, S_T3))
    a("s_max_i32 s%d, s%d, 0" % (S_T3, S_T3))
    a("s_mul_i32 s%d, s%d, 5120" % (S_KV2, S_T3))
    a("v_lshlrev_b32 v%d, 4, v%d" % (A_L16, V_LANE))

def kv_load(tensor, k):
    def f(a):
        l = a.newlabel("kvl")
        a("s_add_u32 s%d, s%d, %d" % (S_T4, S_KV1, k * 8192))
        a("s_cmp_lt_u32 s%d, s%d" % (S_T4, S_KV2))
        a("s_cbranch_scc1 %s" % l)
        if k == 7:
            a("s_cmp_ge_u32 s%d, 61440" % S_T4)
            a("s_cbranch_scc1 %s" % l)
        a("s_add_u32 m0, s%d, %d" % (S_T4, LDS_K if tensor == 0 else LDS_V))
        a("s_add_u32 s%d, s%d, %d" % (S_OFF, S_KV0, WS_KV + tensor * 8 * 64 * 5120 + k * 8192))
        a("buffer_load_dwordx4 v%d, s[%d:%d], s%d offen %s lds" % (A_L16, S_WS, S_WS + 3, S_OFF, LD))
        a.label(l)
    return f

def oa_flag_off(a, dst, half_):
    a("s_lshl_b32 s%d, s%d, 1" % (dst, S_R))
    a("s_add_u32 s%d, s%d, %d" % (dst, dst, half_))
    a("s_lshl_b32 s%d, s%d, 3" % (dst, dst))
    a("s_add_u32 s%d, s%d, s%d" % (dst, dst, S_G))
    a("s_lshl_b32 s%d, s%d, 5" % (dst, dst))
    a("s_add_u32 s%d, s%d, s%d" % (dst, dst, S_WV))
    a("s_lshl_b32 s%d, s%d, 2" % (dst, dst))
    a("s_add_u32 s%d, s%d, %d" % (dst, dst, F_OA))

def phase2A(a, stubs):
    attn_setup(a)
    kv_params(a)
    a("v_and_b32 v7, 3, v%d" % V_LANE)
    a("v_lshlrev_b32 v7, 7, v7")
    a("v_lshrrev_b32 v8, 2, v%d" % V_LANE)
    a("v_lshlrev_b32 v8, 12, v8")
    a("v_sub_u32 v7, v8, v7")
    a("s_and_b32 s%d, s%d, 4" % (S_T0, S_G))
    a("s_and_b32 s%d, s%d, 3" % (S_T1, S_G))
    a("s_lshr_b32 s%d, s%d, 1" % (S_T1, S_T1))
    a("s_add_u32 s%d, s%d, s%d" % (S_T0, S_T0, S_T1))
    a("s_lshl_b32 s%d, s%d, 4" % (S_T0, S_T0))
    a("s_add_u32 s%d, s%d, s%d" % (S_T0, S_T0, S_R))
    a("s_lshl_b32 s%d, s%d, 7" % (S_T0, S_T0))
    a("s_add_u32 s%d, s%d, %d" % (S_T0, S_T0, F_KV))
    a("v_add_u32 v7, s%d, v7" % S_T0)
    a("s_min_u32 s%d, s%d, 2" % (S_T1, S_R))
    a("s_lshl_b32 s%d, 2, s%d" % (S_T1, S_T1))
    a("s_sub_u32 s%d, s%d, 1" % (S_T1, S_T1))
    a("s_mul_i32 s%d, s%d, 17" % (S_T1, S_T1))
    a("s_mov_b32 s%d, 0" % S_T2)
    stamp(a, "aset")
    poll(a, 7, S_T2, "s%d" % S_T1, "0")
    a("s_mov_b32 s%d, 0x000fffff" % S_EXV); a("s_mov_b32 s%d, 0x000fffff" % (S_EXV + 1))
    a("s_waitcnt lgkmcnt(0)")
    a("s_barrier")
    stamp(a, "poll1")
    emit(a, [kv_load(0, k) for k in range(8)])
    a("s_waitcnt vmcnt(0)")
    a("s_barrier")
    stamp(a, "kvld")
    for rnd in range(2):
        a("s_mov_b32 s%d, %d" % (S_DB, 2 * rnd))
        set_tau0(a)
        if rnd == 0:
            def mid(a):
                a("s_waitcnt vmcnt(0)")
                a("s_barrier")
                stamp(a, "vld")
            qk_extra = {i: kv_load(1, i - 0) for i in range(8)}
        else:
            def mid(a):
                a("s_waitcnt vmcnt(0)")
                oa_flag_off(a, S_T0, 0)
                publish(a, S_T0, None)
            qk_extra = {}
        attn_unit(a, stubs, mid, qk_extra)
        stamp(a, "rnd%d" % rnd)
        if rnd == 0: round_advance(a)

def apply_phase(a):
    piece_decode(a)
    a("v_cmp_gt_u32_e64 s[%d:%d], 21, v7" % (S_M0, S_M0 + 1))
    a("v_cmp_gt_u32_e64 s[%d:%d], 5, v6" % (S_M1, S_M1 + 1))
    a("s_lshl_b32 s%d, s%d, 17" % (S_T0, S_G))
    a("s_lshr_b32 s%d, s%d, 1" % (S_T1, S_WV))
    a("s_lshl_b32 s%d, s%d, 11" % (S_T1, S_T1))
    a("s_add_u32 s%d, s%d, s%d" % (S_T0, S_T0, S_T1))
    a("s_add_u32 s%d, s%d, %d" % (S_T0, S_T0, WS_PART))
    a("v_lshlrev_b32 v5, 4, v5")
    a("s_and_b64 s[%d:%d], s[%d:%d], s[%d:%d]" % (S_M0, S_M0 + 1, S_M0, S_M0 + 1, S_M1, S_M1 + 1))
    P = A_S
    a("s_mov_b64 exec, s[%d:%d]" % (S_M0, S_M0 + 1))
    for r in range(16):
        a("s_add_u32 s%d, s%d, %d" % (S_OFF, S_T0, r * 8192))
        a("buffer_load_dwordx4 %s, v5, s[%d:%d], s%d offen %s" % (vr(P + 4 * r, 4), S_WS, S_WS + 3, S_OFF, LD))
    a("s_mov_b64 exec, -1")
    a("v_add_u32 v%d, %d, v5" % (A_O, LDS_KVR))
    a("v_add_u32 v%d, s%d, v%d" % (A_O, S_T1, A_O))
    a("s_mov_b64 s[%d:%d], s[%d:%d]" % (S_MASK, S_MASK + 1, S_M0, S_M0 + 1))
    p3_dma_setup(a)
    wo_load(a, S_WOB)
    p2_common_setup(a, False)
    a("v_mov_b32 v%d, 0" % (A_Q2 + 2)); a("v_mov_b32 v%d, 0" % (A_Q2 + 3))
    a("v_and_b32 v4, 31, v%d" % V_LANE)
    a("v_min_u32 v4, 20, v4")
    a("v_lshrrev_b32 v5, 5, v%d" % V_LANE)
    a("v_mul_u32_u24 v6, 48, v5")
    a("v_add_u32 v6, v6, v4")
    a("s_and_b32 s%d, s%d, 3" % (S_T0, S_WV))
    a("s_lshl_b32 s%d, s%d, 11" % (S_T0, S_T0))
    a("s_add_u32 s%d, s%d, %d" % (S_T0, S_T0, LDS_KVR))
    a("v_lshlrev_b32 v6, 4, v6")
    a("v_add_u32 v6, s%d, v6" % S_T0)
    a("v_lshlrev_b32 v7, 4, v4")
    a("v_add_u32 v7, s%d, v7" % S_T0)
    l1, l2 = a.newlabel("pw"), a.newlabel("pd2")
    a("s_cmp_lt_u32 s%d, 4" % S_WV)
    a("s_cbranch_scc1 %s" % l1)
    a("s_waitcnt vmcnt(10)")
    a("s_branch %s" % l2)
    a.label(l1)
    a("s_waitcnt vmcnt(15)")
    a.label(l2)
    for st in (8, 4, 2, 1):
        for r in range(st):
            for k in (0, 2):
                a("v_pk_add_f32 %s, %s, %s" % (vr(P + 4 * r + k, 2), vr(P + 4 * r + k, 2), vr(P + 4 * (r + st) + k, 2)))
    a("s_mov_b64 exec, s[%d:%d]" % (S_MASK, S_MASK + 1))
    a("ds_write_b128 v%d, %s" % (A_O, vr(P, 4)))
    a("s_mov_b64 exec, -1")
    a("s_waitcnt lgkmcnt(0)")
    a("s_barrier")
    stamp(a, "kvred")
    F = A_KB
    a("ds_read_b128 %s, v6" % vr(F, 4))
    a("ds_read_b128 %s, v6 offset:%d" % (vr(F + 4, 4), 24 * 16))
    a("ds_read_b128 %s, v7 offset:%d" % (vr(F + 8, 4), 4 * 24 * 16))
    emit(a, q_frag_reads())
    a("s_waitcnt lgkmcnt(3)")
    KV1, KV2 = A_VB, A_VB + 4
    for k in range(4): a("v_cvt_pk_bf16_f32 v%d, v%d, v%d" % (KV1 + k, F + 2 * k, F + 2 * k + 1))
    for k in range(2): a("v_cvt_pk_bf16_f32 v%d, v%d, v%d" % (KV2 + k, F + 8 + 2 * k, F + 9 + 2 * k))
    a("v_mov_b32 v%d, 0" % (KV2 + 2)); a("v_mov_b32 v%d, 0" % (KV2 + 3))
    for rnd in range(2):
        a("s_waitcnt lgkmcnt(0)")
        q_frag_fix(a)
        a("s_nop 1")
        a(mfma32(A_O, KV1, A_Q1, "0"))
        a(mfma32(A_O, KV2, A_Q2))
        if rnd == 0:
            round_advance(a, False) if False else None
            for v in (A_QA0, A_QA1, A_QAT): a("v_add_u32 v%d, %d, v%d" % (v, 2 * 5120, v))
            emit(a, q_frag_reads())
            a("s_nop 9")
        else:
            a("s_nop 15")
        o_epilogue(a, eps=True)
        if rnd == 0:
            a("v_add_u32 v%d, %d, v%d" % (A_OM, 4 * 20480, A_OM))
            a("v_add_u32 v%d, %d, v%d" % (A_OT, 4 * 20480, A_OT))

C_DMA = 20
C_WA, C_WT, C_OF, C_OUT, C_XA = 10, 11, 12, 13, 14
C_O = 32
C_WB = 112
C_ACC = 172
C_R = 212

def p3_dma_setup(a):
    a("s_mul_i32 s%d, s%d, 160" % (S_T0, S_G))
    a("s_movk_i32 s%d, 6554" % S_T2)
    a("s_movk_i32 s%d, 1280" % S_T3)
    for j in range(5):
        a("v_add_u32 v4, %d, v%d" % (64 * j, V_LANE))
        a("v_mul_u32_u24 v8, s%d, v4" % S_T2)
        a("v_lshrrev_b32 v8, 16, v8")
        a("v_mul_u32_u24 v9, 10, v8")
        a("v_sub_u32 v9, v4, v9")
        a("v_mul_u32_u24 v8, s%d, v8" % S_T3)
        a("v_lshl_add_u32 v8, v9, 4, v8")
        a("v_add_u32 v%d, s%d, v8" % (C_DMA + j, S_T0))

def p3_setup(a):
    a("s_mul_i32 s%d, s%d, 160" % (S_T0, S_G))
    a("v_lshrrev_b32 v4, 1, v%d" % V_KG)
    a("v_and_b32 v5, 1, v%d" % V_KG)
    a("v_lshrrev_b32 v6, 2, v%d" % V_N)
    a("v_and_b32 v7, 3, v%d" % V_N)
    a("v_mul_u32_u24 v8, 20, v4")
    a("v_lshl_add_u32 v8, v5, 2, v8")
    a("v_add_u32 v8, v8, v6")
    a("s_movk_i32 s%d, 160" % S_T1)
    a("v_mul_u32_u24 v8, s%d, v8" % S_T1)
    a("v_lshl_add_u32 v8, v7, 3, v8")
    a("s_mul_i32 s%d, s%d, 51200" % (S_T2, S_CS))
    a("v_add_u32 v%d, s%d, v8" % (C_WA, S_T2))
    a("v_mul_u32_u24 v8, 40, v%d" % V_KG)
    a("v_add3_u32 v8, v8, v6, 16")
    a("v_mul_u32_u24 v8, s%d, v8" % S_T1)
    a("v_lshl_add_u32 v8, v7, 3, v8")
    a("v_add_u32 v%d, s%d, v8" % (C_WT, S_T2))
    a("v_lshlrev_b32 v%d, 4, v%d" % (C_OF, V_LANE))
    a("s_lshl_b32 s%d, s%d, 4" % (S_T2, S_RG))
    a("v_add_u32 v8, s%d, v%d" % (S_T2, V_N))
    a("s_movk_i32 s%d, 2560" % S_T2)
    a("v_mul_u32_u24 v8, s%d, v8" % S_T2)
    a("v_lshl_add_u32 v8, v%d, 3, v8" % V_KG)
    a("v_add_u32 v%d, s%d, v8" % (C_OUT, S_T0))
    a("s_mul_i32 s%d, s%d, 10240" % (S_T2, S_RG))
    a("s_add_u32 s%d, s%d, %d" % (S_T2, S_T2, 102400))
    a("v_add_u32 v%d, s%d, v%d" % (C_XA, S_T2, C_OF))

def wo_load(a, srd_wo):
    for k in range(3):
        l = a.newlabel("wol")
        if k == 2:
            a("s_cmp_ge_u32 s%d, 4" % S_WV)
            a("s_cbranch_scc1 %s" % l)
        a("s_add_u32 s%d, s%d, %d" % (S_T0, S_WV, 8 * k))
        a("s_mul_i32 s%d, s%d, %d" % (S_OFF, S_T0, 32 * 1280))
        a("s_mul_i32 s%d, s%d, 5120" % (S_T0, S_T0))
        for j in range(5):
            a("s_add_u32 m0, s%d, %d" % (S_T0, j * 1024))
            a("s_nop 0")
            a("buffer_load_dwordx4 v%d, s[%d:%d], s%d offen %s lds" % (C_DMA + j, srd_wo, srd_wo + 3, S_OFF, DML))
        a.label(l)

def p3_oloads(a, br, s_row0, nset):
    for k in range(nset):
        a("s_lshr_b32 s%d, s%d, 4" % (S_T0, s_row0))
        a("s_add_u32 s%d, s%d, s%d" % (S_T0, S_T0, S_RG))
        a("s_add_u32 s%d, s%d, %d" % (S_T0, S_T0, 4 * k))
        a("s_mul_i32 s%d, s%d, 20480" % (S_T0, S_T0))
        a("s_add_u32 s%d, s%d, %d" % (S_T0, S_T0, WS_O + br * O_BR))
        a("s_lshl_b32 s%d, s%d, 13" % (S_T1, S_CS))
        a("s_add_u32 s%d, s%d, s%d" % (S_T1, S_T1, S_T0))
        for i in range(8):
            a("s_add_u32 s%d, s%d, %d" % (S_OFF, S_T1, i * 1024))
            a("buffer_load_dwordx4 %s, v%d, s[%d:%d], s%d offen %s" % (vr(C_O + 40 * k + 4 * i, 4), C_OF, S_WS, S_WS + 3, S_OFF, LD))
        a("s_lshl_b32 s%d, s%d, 11" % (S_T1, S_CS))
        a("s_add_u32 s%d, s%d, s%d" % (S_T1, S_T1, S_T0))
        for i in range(2):
            a("s_add_u32 s%d, s%d, %d" % (S_OFF, S_T1, (16 + i) * 1024))
            a("buffer_load_dwordx4 %s, v%d, s[%d:%d], s%d offen %s" % (vr(C_O + 40 * k + 32 + 4 * i, 4), C_OF, S_WS, S_WS + 3, S_OFF, LD))

def p3_wreads(i):
    wb = C_WB + 20 * (i % 3)
    L = []
    for T in range(5):
        for rd in range(2):
            if i < 8: L.append("ds_read_b64_tr_b16 %s, v%d offset:%d" % (vr(wb + 4 * T + 2 * rd, 2), C_WA, i * 6400 + rd * 1280 + 32 * T))
            else: L.append("ds_read_b64_tr_b16 %s, v%d offset:%d" % (vr(wb + 4 * T + 2 * rd, 2), C_WT, (i - 8) * 25600 + rd * 3200 + 32 * T))
    return L

def p3_job(a, br, s_row0, nset, tag):
    lq = LQ(a)
    ids = {}
    ids[0] = [lq.issue(x) for x in p3_wreads(0)]
    ids[1] = [lq.issue(x) for x in p3_wreads(1)]
    for i in range(10):
        wb = C_WB + 20 * (i % 3)
        rd = p3_wreads(i + 2) if i + 2 < 10 else []
        ids[i + 2] = []
        remaining = (9 - i) if nset == 1 else None
        if nset == 1: a("s_waitcnt vmcnt(%d)" % (9 - i))
        elif i == 0: a("s_waitcnt vmcnt(%d)" % 9)
        else: a("s_waitcnt vmcnt(%d)" % (9 - i))
        mm = []
        for T in range(5):
            for k in range(nset):
                mm.append((T, mfma16(C_ACC + 20 * k + 4 * T, wb + 4 * T, C_O + 40 * k + 4 * i, "0" if i == 0 else None)))
        per = (len(rd) + len(mm) - 1) // len(mm) if rd else 0
        for (T, m) in mm:
            lq.need(ids[i][2 * T + 1])
            a(m)
            for _ in range(per):
                if rd: ids[i + 2].append(lq.issue(rd.pop(0)))
    stamp(a, "j1" + tag)
    def send(tiles):
        def f(a):
            for k in range(nset):
                for n_, T in enumerate(tiles):
                    a("ds_write_b128 v%d, %s offset:%d" % (C_XA, vr(C_ACC + 20 * k + 4 * T, 4), k * 5120 + T * 1024))
            a("s_waitcnt lgkmcnt(0)")
        return f
    def recv(tiles):
        def f(a):
            a("s_mul_i32 s%d, s%d, 2560" % (S_T0, s_row0))
            a("s_add_u32 s%d, s%d, %d" % (S_T0, S_T0, br * 1280))
            for k in range(nset):
                for n_, T in enumerate(tiles):
                    a("ds_read_b128 %s, v%d offset:%d" % (vr(C_R + 4 * n_, 4), C_XA, k * 5120 + T * 1024))
                for n_, T in enumerate(tiles):
                    a("s_waitcnt lgkmcnt(%d)" % (len(tiles) - 1 - n_))
                    d = C_ACC + 20 * k + 4 * T
                    for q in (0, 2): a("v_pk_add_f32 %s, %s, %s" % (vr(d + q, 2), vr(d + q, 2), vr(C_R + 4 * n_ + q, 2)))
                    a("v_cvt_pk_bf16_f32 v%d, v%d, v%d" % (d, d, d + 1))
                    a("v_cvt_pk_bf16_f32 v%d, v%d, v%d" % (d + 1, d + 2, d + 3))
                    a("buffer_store_dwordx2 %s, v%d, s[%d:%d], s%d offen offset:%d" % (vr(d, 2), C_OUT, S_OUT, S_OUT + 3, S_T0, 32 * T))
                if k + 1 < nset: a("s_add_u32 s%d, s%d, %d" % (S_T0, S_T0, 64 * 2560))
        return f
    a("s_nop 7")
    role_branch(a, send([3, 4]), send([0, 1, 2]))
    a("s_barrier")
    role_branch(a, recv([0, 1, 2]), recv([3, 4]))
    stamp(a, "j2" + tag)

def poll_oa(a, half_):
    a("v_lshrrev_b32 v7, 3, v%d" % V_LANE)
    a("v_and_b32 v8, 7, v%d" % V_LANE)
    a("v_lshlrev_b32 v7, 7, v7")
    a("v_lshl_add_u32 v7, v8, 2, v7")
    a("s_lshl_b32 s%d, s%d, 1" % (S_T0, S_R))
    a("s_add_u32 s%d, s%d, %d" % (S_T0, S_T0, half_))
    a("s_lshl_b32 s%d, s%d, 10" % (S_T0, S_T0))
    a("s_add_u32 s%d, s%d, %d" % (S_T0, S_T0, F_OA))
    poll(a, 7, S_T0, "-1", "-1")

S_JR = S_DB
def phase3A(a):
    p3_dma_setup(a)
    a("s_waitcnt vmcnt(0)")
    oa_flag_off(a, S_T0, 1)
    publish(a, S_T0, None)
    stamp(a, "attn")
    a("s_barrier")
    wo_load(a, S_WO)
    p3_setup(a)
    poll_oa(a, 1)
    a("s_waitcnt vmcnt(0)")
    a("s_barrier")
    stamp(a, "j0a")
    a("s_lshl_b32 s%d, s%d, 7" % (S_JR, S_R))
    a("s_add_u32 s%d, s%d, 64" % (S_JR, S_JR))
    p3_oloads(a, 0, S_JR, 1)
    p3_job(a, 0, S_JR, 1, "a")

def phaseB(a):
    a("v_lshlrev_b32 v7, 7, v%d" % V_LANE)
    a("s_lshl_b32 s%d, s%d, 11" % (S_T0, S_G))
    a("s_add_u32 s%d, s%d, %d" % (S_T0, S_T0, F_PART))
    poll(a, 7, S_T0, "0xffff", "0")
    a("s_waitcnt lgkmcnt(0)")
    a("s_barrier")
    stamp(a, "poll1")
    apply_phase(a)
    stamp(a, "kvld")
    a("s_waitcnt vmcnt(0)")
    a("s_barrier")
    a("s_lshl_b32 s%d, s%d, 3" % (S_T0, S_R))
    a("s_add_u32 s%d, s%d, s%d" % (S_T0, S_T0, S_G))
    a("s_lshl_b32 s%d, s%d, 7" % (S_T0, S_T0))
    a("s_add_u32 s%d, s%d, %d" % (S_T0, S_T0, F_OB))
    publish(a, S_T0, 0)
    stamp(a, "attn")
    p3_setup(a)
    a("v_lshlrev_b32 v7, 7, v%d" % V_LANE)
    a("s_lshl_b32 s%d, s%d, 10" % (S_T0, S_R))
    a("s_add_u32 s%d, s%d, %d" % (S_T0, S_T0, F_OB))
    poll(a, 7, S_T0, "0xff", "0")
    a("s_barrier")
    stamp(a, "j0b")
    a("s_lshl_b32 s%d, s%d, 7" % (S_JR, S_R))
    p3_oloads(a, 1, S_JR, 2)
    p3_job(a, 1, S_JR, 2, "b")
    a("s_barrier")
    wo_load(a, S_WO)
    poll_oa(a, 0)
    a("s_waitcnt vmcnt(0)")
    a("s_barrier")
    stamp(a, "j0a")
    a("s_lshl_b32 s%d, s%d, 7" % (S_JR, S_R))
    p3_oloads(a, 0, S_JR, 1)
    p3_job(a, 0, S_JR, 1, "a")

def epoch_update(a):
    l = a.newlabel("ep")
    a("s_cmp_eq_u32 s2, 0")
    a("s_cbranch_scc0 %s" % l)
    a("v_lshlrev_b32 v7, 7, v%d" % V_LANE)
    for k in range(4):
        a("s_mov_b32 s%d, %d" % (S_T0, F_KV + k * 64 * 128))
        poll(a, 7, S_T0, "-1", "-1")
    a("s_mov_b32 s%d, %d" % (S_T0, WS_FLAG))
    publish(a, S_T0, 0)
    a.label(l)

HEADER = """; sliding-window attention block + linear attention block, one fused launch (generated by gen3.py)
"""
def build():
    out = [HEADER, "; @launch grid=(256,1,1) block=(512,1,1) lds=163840\n"]
    out.append('.amdgcn_target "amdgcn-amd-amdhsa--gfx950"\n.text\n')
    a = Asm()
    stubs = []
    entry(a)
    phase1(a)
    if 'p1only' in OPT: a("s_branch L_fin2")
    lb = a.newlabel("brB")
    a("s_cmp_eq_u32 s%d, 0" % S_BR)
    a("s_cbranch_scc0 %s" % lb)
    phase2A(a, stubs)
    phase3A(a)
    a("s_branch L_fin")
    emit_stubs(a, stubs)
    a.label(lb)
    phaseB(a)
    a.label("L_fin")
    epoch_update(a)
    a.label("L_fin2")
    stamp(a, "end")
    if STAMPS: a("s_waitcnt vmcnt(0)")
    stamp_store(a)
    a.label("L_end"); a("s_endpgm")
    a.label("L_codeend")
    out.append(".globl %s\n.p2align 8\n.type %s,@function\n%s:\n" % (NAME, NAME, NAME) + a.text())
    if 'nocodepf' not in OPT:
        out.append(".set CODE_TOTAL, L_codeend - L_pcbase\n.set CODE_CHUNK, ((CODE_TOTAL / 8 + 127) / 128) * 128\n.set CODE_LAST, CODE_TOTAL - 4\n")
    out.append('.section .rodata,"a"\n.p2align 6\n')
    out.append((".amdhsa_kernel %s\n  .amdhsa_next_free_vgpr 256\n  .amdhsa_next_free_sgpr 102\n  .amdhsa_accum_offset 256\n"
                "  .amdhsa_group_segment_fixed_size 0\n  .amdhsa_kernarg_size 72\n  .amdhsa_user_sgpr_count 2\n"
                "  .amdhsa_user_sgpr_kernarg_segment_ptr 1\n  .amdhsa_system_sgpr_workgroup_id_x 1\n.end_amdhsa_kernel\n") % NAME)
    return "".join(out)

if __name__ == "__main__":
    OPT = set(sys.argv[2:])
    for x in sys.argv:
        if x.startswith("st="):
            STAMPS = True
            STMAP = {n: i for i, n in enumerate(x[3:].split(","))}
    for x in OPT:
        if x.startswith('sch='): SCHED = x[4:]
    if 'pfnt' in OPT: PFL = "nt"
    if 'dmant' in OPT: DML = "nt"
    if 'p1only' in OPT: S_ST = 84
    open(sys.argv[1], "w").write(build())
```

```python
import sys, struct
from asmlib import Asm, vr, sr

NAME = "concat_heads__sliding_block__linear_attn_block__prompt_kernel"
WS_KV   = 0x0000000
WS_O    = 0x0A00000
WS_PART = 0x0F00000
WS_FLAG = 0x1000000
WS_STAMP = 0x1080000
WS_SIZE = 0x1100000
O_BR = 128 * 20480
F_KV, F_PART, F_OA, F_OB = WS_FLAG + 0x1000, WS_FLAG + 0x5000, WS_FLAG + 0x9000, WS_FLAG + 0x11000
SPIN_LIMIT = 40000
ST, LD = "sc1", "sc1"
PFL = ""
DML = ""
STAMPS, STMAP, OPT = False, None, set()
SCHED = 'e'

S_NONCE = 3
S_ST = 4
S_I, S_U = 22, 23
S_X, S_W, S_WS, S_OUT, S_WO, S_WOB = 24, 28, 32, 36, 40, 44
S_BR, S_R, S_G, S_WV, S_RG, S_CS = 48, 49, 50, 51, 52, 53
S_T0, S_T1, S_T2, S_T3, S_T4, S_T5 = 54, 55, 56, 57, 58, 59
S_DB, S_OFF = 60, 61
S_M0, S_M1, S_M2 = 62, 64, 66
S_D, S_SB, S_SOFF, S_STEP, S_J = 68, 72, 76, 77, 78
S_G1 = 82
S_MASK = 68

V_IMG, V_LANE, V_N, V_KG = 0, 1, 2, 3
V_DMA, V_XA, V_WA, V_PF, V_XT, V_WB0, V_WB1 = 10, 15, 19, 29, 32, 40, 60
V_ACC, V_ACC2, V_XP, V_DMA2, V_PFD, V_WA2 = 80, 120, 160, 240, 245, 246
LDS_W = 65536
XSLOT, WSLOT = 16384, 20480
LOG2E = 1.4426950408889634
QSCALE = LOG2E / (20.0 ** 0.5)

def f2u(x): return struct.unpack("<I", struct.pack("<f", x))[0]
def mfma16(d, x, y, c=None):
    return "v_mfma_f32_16x16x32_bf16 %s, %s, %s, %s" % (vr(d, 4), vr(x, 4), vr(y, 4), vr(d, 4) if c is None else c)
def mfma32(d, x, y, c=None):
    return "v_mfma_f32_32x32x16_bf16 %s, %s, %s, %s" % (vr(d, 16), vr(x, 4), vr(y, 4), vr(d, 16) if c is None else c)
def emit(a, item):
    if item is None: return
    if callable(item): item(a)
    elif isinstance(item, (list, tuple)):
        for x in item: emit(a, x)
    else: a(item)

class LQ:
    def __init__(self, a): self.a, self.n, self.done = a, 0, 0
    def issue(self, s, cnt=1):
        emit(self.a, s); self.n += cnt; return self.n
    def need(self, idx):
        if idx > self.done:
            cnt = self.n - idx
            self.a("s_waitcnt lgkmcnt(%d)" % min(cnt, 15))
            self.done = idx if cnt <= 15 else self.n - 15
    def drain(self):
        if self.n > self.done:
            self.a("s_waitcnt lgkmcnt(0)"); self.done = self.n

NST = 8
def stamp(a, name):
    if not STAMPS or STMAP is None or name not in STMAP: return
    i = STMAP[name]
    a("%s s[%d:%d]" % ("s_memtime" if 'cyc' in OPT else "s_memrealtime", S_ST + 2 * i, S_ST + 2 * i + 1))
def stamp_dbg(a):
    a("s_memrealtime s[20:21]")
    a("s_load_dwordx2 s[24:25], s[0:1], 56")
    a("s_waitcnt lgkmcnt(0)")
    a("s_mov_b32 s26, 256"); a("s_mov_b32 s27, 0x20000")
    a("s_mov_b64 exec, 1")
    a("v_mov_b32 v4, 0")
    a("s_not_b32 s22, s101")
    for reg, slot in [(22, 0), (20, 1)] + [(S_ST + 2 * i, 2 + i) for i in range(NST)]:
        a("v_mov_b32 v5, s%d" % reg)
        a("buffer_atomic_umax v5, v4, s[24:27], 0 offen offset:%d" % (slot * 4))
    a("v_mov_b32 v5, s101")
    a("buffer_atomic_umax v5, v4, s[24:27], 0 offen offset:%d" % (10 * 4))
    a("s_mov_b64 exec, -1")

def stamp_store(a):
    if not STAMPS: return
    if 'dbg' in OPT: return stamp_dbg(a)
    a("s_memrealtime s[20:21]")
    a("s_memtime s[24:25]")
    a("s_waitcnt lgkmcnt(0)")
    a("s_lshl_b32 s%d, s2, 3" % S_T0)
    a("s_add_u32 s%d, s%d, s%d" % (S_T0, S_T0, S_WV))
    a("s_lshl_b32 s%d, s%d, 6" % (S_T0, S_T0))
    a("s_add_u32 s%d, s%d, %d" % (S_T0, S_T0, WS_STAMP))
    a("s_mov_b64 exec, 1")
    a("v_mov_b32 v4, 0")
    for i in range(NST):
        a("v_mov_b32 v5, s%d" % (S_ST + 2 * i))
        a("buffer_store_dword v5, v4, s[%d:%d], s%d offen offset:%d" % (S_WS, S_WS + 3, S_T0, i * 4))
    a("s_getreg_b32 s21, hwreg(HW_REG_XCC_ID)")
    a("s_getreg_b32 s22, hwreg(HW_REG_HW_ID)")
    for reg, slot in ((20, 15), (101, 14), (100, 13), (21, 12), (22, 11), (24, 10)):
        a("v_mov_b32 v5, s%d" % reg)
        a("buffer_store_dword v5, v4, s[%d:%d], s%d offen offset:%d" % (S_WS, S_WS + 3, S_T0, slot * 4))
    a("s_mov_b64 exec, -1")

def minwrap(a, v, m, tmp):
    a("v_subrev_u32 v%d, %d, v%d" % (tmp, m, v))
    a("v_min_u32 v%d, v%d, v%d" % (v, v, tmp))
def srd(a, d, lo, hi, size):
    a("s_mov_b32 s%d, s%d" % (d, lo)); a("s_mov_b32 s%d, s%d" % (d + 1, hi))
    a("s_mov_b32 s%d, %d" % (d + 2, size)); a("s_mov_b32 s%d, 0x20000" % (d + 3))
def role_branch(a, fw, fx):
    lx, ld = a.newlabel("rx"), a.newlabel("rd")
    a("s_cmp_eq_u32 s%d, 0" % S_CS)
    a("s_cbranch_scc0 %s" % (lx if fx else ld))
    emit(a, fw)
    if fx:
        a("s_branch %s" % ld)
        a.label(lx)
        emit(a, fx)
    a.label(ld)
def on_wave(a, wave, f):
    l = a.newlabel("ow")
    a("s_cmp_eq_u32 s%d, %d" % (S_WV, wave))
    a("s_cbranch_scc0 %s" % l)
    emit(a, f)
    a.label(l)

def entry(a):
    a("s_cmp_ge_u32 s2, 256")
    a("s_cbranch_scc1 L_end")
    if STAMPS:
        a("s_memrealtime s[100:101]")
        a("s_memtime s[62:63]")
    a("s_load_dwordx16 s[4:19], s[0:1], 0")
    a("s_load_dwordx2 s[20:21], s[0:1], 64")
    a("s_and_b32 s%d, s2, 7" % S_T0)
    a("s_lshr_b32 s%d, s2, 3" % S_I)
    a("v_lshrrev_b32 v4, 6, v0")
    a("v_and_b32 v%d, 63, v0" % V_LANE)
    a("v_and_b32 v%d, 15, v0" % V_N)
    a("v_readfirstlane_b32 s%d, v4" % S_WV)
    a("v_lshrrev_b32 v%d, 4, v%d" % (V_KG, V_LANE))
    a("s_and_b32 s%d, s%d, 1" % (S_BR, S_T0))
    a("s_lshr_b32 s%d, s%d, 1" % (S_T2, S_T0))
    a("s_and_b32 s%d, s%d, 1" % (S_T3, S_T2))
    a("s_lshl_b32 s%d, s%d, 3" % (S_T3, S_T3))
    a("s_and_b32 s%d, s%d, 7" % (S_T4, S_I))
    a("s_add_u32 s%d, s%d, s%d" % (S_R, S_T3, S_T4))
    a("s_lshr_b32 s%d, s%d, 1" % (S_T3, S_T2))
    a("s_lshr_b32 s%d, s%d, 3" % (S_T4, S_I))
    a("s_lshl_b32 s%d, s%d, 2" % (S_T5, S_T3))
    a("s_add_u32 s%d, s%d, s%d" % (S_G, S_T5, S_T4))
    a("s_lshl_b32 s%d, s%d, 1" % (S_T3, S_T3))
    a("s_and_b32 s%d, s%d, 1" % (S_T5, S_T4))
    a("s_add_u32 s%d, s%d, s%d" % (S_T3, S_T3, S_T5))
    a("s_lshr_b32 s%d, s%d, 1" % (S_T4, S_T4))
    a("s_lshl_b32 s%d, s%d, 2" % (S_T4, S_T4))
    a("s_add_u32 s%d, s%d, s%d" % (S_G1, S_T3, S_T4))
    a("s_and_b32 s%d, s%d, 3" % (S_RG, S_WV))
    a("s_lshr_b32 s%d, s%d, 2" % (S_CS, S_WV))
    if 'nocodepf' not in OPT:
        def cpf(a):
            a("s_getpc_b64 s[56:57]")
            a.label("L_pcbase")
            a("s_and_b32 s%d, s%d, 7" % (S_T4, S_I))
            a("s_mul_i32 s%d, s%d, CODE_CHUNK" % (S_T4, S_T4))
            a("v_lshlrev_b32 v4, 7, v%d" % V_LANE)
            a("v_add_u32 v4, s%d, v4" % S_T4)
            a("v_min_u32 v4, CODE_LAST, v4")
            a("global_load_dword v%d, v4, s[56:57]" % V_PFD)
        on_wave(a, 7, cpf)

def dma_setup(a):
    stamp(a, "ids")
    def fw(a):
        a("s_mul_i32 s%d, s%d, %d" % (S_T0, S_RG, 16 * 3840))
        a("s_mul_i32 s%d, s%d, 160" % (S_T1, S_G))
        a("s_mul_i32 s%d, s%d, 320" % (S_T2, S_G1))
        a("s_cmp_eq_u32 s%d, 0" % S_BR)
        a("s_cselect_b32 s%d, s%d, s%d" % (S_T2, S_T2, S_T1))
        a("s_cselect_b32 s%d, 0, 1120" % S_T5)
        a("s_add_u32 s%d, s%d, s%d" % (S_T2, S_T2, S_T0))
        a("s_add_u32 s%d, s%d, 1280" % (S_T2, S_T2))
        a("s_add_u32 s%d, s%d, s%d" % (S_T0, S_T0, S_T1))
        a("s_movk_i32 s%d, 3277" % S_T1)
        a("s_movk_i32 s%d, 3840" % S_T3)
        a("s_mov_b32 s%d, %d" % (S_T4, 245760 - 160))
        for j in range(5):
            p, kk, q, u, t = 4, 5, 6, 7, 8
            a("v_add_u32 v%d, %d, v%d" % (p, 64 * j, V_LANE))
            a("v_mul_u32_u24 v%d, s%d, v%d" % (kk, S_T1, p))
            a("v_lshrrev_b32 v%d, 16, v%d" % (kk, kk))
            a("v_mul_u32_u24 v%d, 20, v%d" % (q, kk))
            a("v_lshrrev_b32 v%d, 2, v%d" % (u, kk))
            a("v_sub_u32 v%d, v%d, v%d" % (q, p, q))
            a("v_and_b32 v%d, 2, v%d" % (u, u))
            a("v_sub_u32 v%d, v%d, v%d" % (u, q, u))
            a("v_add_u32 v%d, 20, v%d" % (t, u))
            a("v_min_u32 v%d, v%d, v%d" % (u, u, t))
            a("v_add_u32 v%d, 6, v%d" % (t, u))
            a("v_lshrrev_b32 v%d, 4, v%d" % (t, t))
            a("v_mul_u32_u24 v%d, s%d, v%d" % (kk, S_T3, kk))
            a("v_lshl_add_u32 v%d, v%d, 4, v%d" % (kk, u, kk))
            a("v_mad_u32_u24 v%d, v%d, s%d, v%d" % (q, t, S_T5, kk))
            a("v_add_u32 v%d, s%d, v%d" % (V_DMA + j, S_T2, q))
            a("v_mad_u32_u24 v%d, v%d, s%d, v%d" % (q, t, S_T4, kk))
            a("v_add_u32 v%d, s%d, v%d" % (V_DMA2 + j, S_T0, q))
        a("s_mul_i32 s%d, s%d, 5120" % (S_T0, S_RG))
        for k in range(4): a("s_add_u32 s%d, s%d, %d" % (S_SB + k, S_T0, LDS_W + k * WSLOT))
        a("s_mov_b32 s%d, %d" % (S_STEP, 64 * 3840))
        for k in range(1, 4): a("s_mov_b32 s%d, 0" % (S_J + k))
        a("v_and_b32 v4, 31, v%d" % V_LANE)
        a("v_lshrrev_b32 v5, 5, v%d" % V_LANE)
        a("v_min_u32 v4, 19, v4")
        a("s_lshr_b32 s%d, s%d, 2" % (S_T0, S_G))
        a("v_mul_u32_u24 v6, 13, v4"); a("v_lshrrev_b32 v6, 7, v6")
        a("v_mul_u32_u24 v7, 52, v4"); a("v_lshrrev_b32 v7, 8, v7")
        a("v_mul_u32_u24 v8, 5, v7"); a("v_sub_u32 v8, v4, v8")
        a("v_lshlrev_b32 v8, 7, v8")
        a("v_lshl_add_u32 v6, v5, 6, v6")
        a("s_lshl_b32 s%d, s%d, 1" % (S_T2, S_I))
        a("v_add_u32 v6, s%d, v6" % S_T2)
        a("v_mul_u32_u24 v6, s%d, v6" % S_T3)
        a("v_and_b32 v9, 1, v7")
        a("s_movk_i32 s%d, 1280" % S_T2)
        a("v_mul_u32_u24 v9, s%d, v9" % S_T2)
        a("v_add3_u32 v6, v6, v9, v8")
        a("s_mul_i32 s%d, s%d, 640" % (S_T0, S_T0))
        a("s_add_u32 s%d, s%d, 1280" % (S_T2, S_T0))
        a("v_add_u32 v%d, s%d, v6" % (V_PF + 1, S_T2))
        a("v_lshl_add_u32 v7, v5, 7, v7")
        a("s_lshl_b32 s%d, s%d, 2" % (S_T2, S_I))
        a("v_add_u32 v7, s%d, v7" % S_T2)
        a("v_mul_u32_u24 v7, s%d, v7" % S_T3)
        a("v_add3_u32 v%d, v7, v8, s%d" % (V_PF + 2, S_T0))
        a("v_mov_b32 v%d, 0" % V_PF)
    def fx(a):
        a("s_lshl_b32 s%d, s%d, 7" % (S_T0, S_R))
        a("s_lshl_b32 s%d, s%d, 5" % (S_T1, S_RG))
        a("s_add_u32 s%d, s%d, s%d" % (S_T0, S_T0, S_T1))
        a("s_mul_i32 s%d, s%d, 1280" % (S_T0, S_T0))
        a("s_movk_i32 s%d, 1280" % S_T1)
        a("v_lshrrev_b32 v4, 3, v%d" % V_LANE)
        a("v_and_b32 v5, 7, v%d" % V_LANE)
        a("v_xor_b32 v5, v5, v4")
        a("v_mul_u32_u24 v4, s%d, v4" % S_T1)
        a("v_lshl_add_u32 v4, v5, 4, v4")
        a("v_add_u32 v%d, s%d, v4" % (V_DMA, S_T0))
        for j in range(1, 5): a("v_mov_b32 v%d, v%d" % (V_DMA + j, V_DMA))
        for j in range(5): a("v_mov_b32 v%d, 0" % (V_DMA2 + j))
        a("s_lshl_b32 s%d, s%d, 12" % (S_T0, S_RG))
        for k in range(4): a("s_add_u32 s%d, s%d, %d" % (S_SB + k, S_T0, k * XSLOT))
        a("s_movk_i32 s%d, 128" % S_STEP)
        for k in range(1, 4): a("s_mov_b32 s%d, %d" % (S_J + k, k * 10240))
        a("v_and_b32 v4, 31, v%d" % V_LANE)
        a("v_lshrrev_b32 v5, 5, v%d" % V_LANE)
        a("s_lshr_b32 s%d, s%d, 3" % (S_T0, S_R))
        a("s_lshl_b32 s%d, s%d, 5" % (S_T0, S_T0))
        a("s_add_u32 s%d, s%d, s%d" % (S_T0, S_T0, S_I))
        a("s_mul_i32 s%d, s%d, %d" % (S_T0, S_T0, 32 * 1280))
        a("v_mul_u32_u24 v6, s%d, v4" % S_T1)
        a("v_lshl_add_u32 v6, v5, 7, v6")
        a("v_add_u32 v%d, s%d, v6" % (V_PF, S_T0))
        a("v_mov_b32 v%d, 0" % (V_PF + 1)); a("v_mov_b32 v%d, 0" % (V_PF + 2))
    role_branch(a, fw, fx)
    a("s_mov_b32 s%d, 0" % S_SOFF)

def entry_srd(a):
    a("s_waitcnt lgkmcnt(0)")
    a("s_cmp_eq_u32 s%d, 0" % S_BR)
    a("s_cselect_b32 s%d, s4, s10" % S_X)
    a("s_cselect_b32 s%d, s5, s11" % (S_X + 1))
    a("s_mov_b32 s%d, 2621440" % (S_X + 2))
    a("s_mov_b32 s%d, 0x20000" % (S_X + 3))
    a("s_cselect_b32 s%d, s6, s12" % S_W)
    a("s_cselect_b32 s%d, s7, s13" % (S_W + 1))
    a("s_mov_b32 s%d, 2457600" % (S_W + 2))
    a("s_mov_b32 s%d, 0x20000" % (S_W + 3))
    a("s_cmp_eq_u32 s%d, 0" % S_CS)
    a("s_cselect_b32 s%d, s%d, s%d" % (S_D, S_W, S_X))
    a("s_cselect_b32 s%d, s%d, s%d" % (S_D + 1, S_W + 1, S_X + 1))
    a("s_cselect_b32 s%d, s%d, s%d" % (S_D + 2, S_W + 2, S_X + 2))
    a("s_mov_b32 s%d, 0x20000" % (S_D + 3))

def entry_srd2(a):
    srd(a, S_WS, 20, 21, WS_SIZE)
    srd(a, S_OUT, 16, 17, 5242880)
    srd(a, S_WO, 8, 9, 819200)
    srd(a, S_WOB, 14, 15, 819200)
    if STAMPS:
        a("s_mov_b32 s101, s100")
        a("s_mov_b32 s100, s62")
        if S_ST == 4:
            for i in range(NST): a("s_mov_b32 s%d, 0" % (S_ST + 2 * i))

def pf(kind, idx, k):
    def f(a):
        if 'nopf' in OPT: return
        def body(a):
            if kind == 'x': a("s_mov_b32 s%d, %d" % (S_OFF, idx * 256)); s_, v = S_X, V_PF
            elif kind == 'w': a("s_mov_b32 s%d, %d" % (S_OFF, idx * 128 * 3840)); s_, v = S_W, V_PF + 1
            else: a("s_mov_b32 s%d, %d" % (S_OFF, idx * 256 * 3840)); s_, v = S_W, V_PF + 2
            a("buffer_load_dword v%d, v%d, s[%d:%d], s%d offen %s" % (V_PFD, v, s_, s_ + 3, S_OFF, PFL))
        on_wave(a, (4 + k) if kind == 'x' else k, body)
    return f

def dma(sig, j):
    def f(a):
        if 'nodma' in OPT and sig >= 3: return
        slot = sig % 4
        def body(a):
            a("s_add_u32 m0, s%d, %d" % (S_SB + slot, j * 1024))
            if sig < 10:
                if 1 <= j <= 3:
                    a("s_add_u32 s%d, s%d, s%d" % (S_OFF, S_SOFF, S_J + j)); so = S_OFF
                else:
                    a("s_nop 0"); so = S_SOFF
                a("buffer_load_dwordx4 v%d, s[%d:%d], s%d offen %s lds" % (V_DMA + j, S_D, S_D + 3, so, DML))
            else:
                a("s_mov_b32 s%d, %d" % (S_OFF, (sig - 10) * 128 * 3840))
                a("buffer_load_dwordx4 v%d, s[%d:%d], s%d offen %s lds" % (V_DMA2 + j, S_D, S_D + 3, S_OFF, DML))
        if sig >= 10 or j == 4: role_branch(a, body, None)
        else: body(a)
        if sig < 10 and j == 4: a("s_add_u32 s%d, s%d, s%d" % (S_SOFF, S_SOFF, S_STEP))
    return f

def img_pos(a, dst, tmp):
    a("v_lshl_add_u32 v%d, v%d, 2, v%d" % (tmp, V_KG, V_N))
    a("v_and_b32 v%d, 15, v%d" % (tmp, tmp))
    a("v_lshl_add_u32 v%d, v%d, 4, v%d" % (tmp, V_KG, tmp))
    a("v_lshlrev_b32 v%d, 4, v%d" % (dst, tmp))

def addr1_setup(a):
    a("v_and_b32 v4, 7, v%d" % V_N)
    a("s_lshl_b32 s%d, s%d, 12" % (S_T0, S_RG))
    a("v_lshlrev_b32 v5, 7, v%d" % V_N)
    a("v_xor_b32 v4, v4, v%d" % V_KG)
    a("v_lshl_add_u32 v4, v4, 4, v5")
    a("s_xor_b32 s%d, s%d, 1" % (S_T5, S_CS))
    a("s_lshl_b32 s%d, s%d, 6" % (S_T1, S_T5))
    a("s_lshl_b32 s%d, s%d, 11" % (S_T2, S_CS))
    a("s_or_b32 s%d, s%d, s%d" % (S_T1, S_T1, S_T2))
    a("s_or_b32 s%d, s%d, s%d" % (S_T1, S_T1, S_T0))
    a("v_xor_b32 v%d, s%d, v4" % (V_XA, S_T1))
    a("v_xor_b32 v%d, 0x800, v%d" % (V_XA + 1, V_XA))
    a("v_xor_b32 v%d, 64, v%d" % (V_XA + 2, V_XA))
    a("v_xor_b32 v%d, 64, v%d" % (V_XA + 3, V_XA + 1))
    a("v_and_b32 v4, 3, v%d" % V_N)
    a("v_lshrrev_b32 v8, 2, v%d" % V_N)
    a("v_and_b32 v7, 1, v%d" % V_KG)
    a("v_lshl_add_u32 v8, v%d, 3, v8" % V_KG)
    a("s_movk_i32 s%d, 320" % S_T1)
    a("v_lshlrev_b32 v7, 5, v7")
    a("v_mul_u32_u24 v8, s%d, v8" % S_T1)
    a("v_lshl_add_u32 v6, v4, 3, v7")
    a("v_add_u32 v8, %d, v8" % LDS_W)
    a("v_add_u32 v9, v8, v6")
    a("s_mul_i32 s%d, s%d, 160" % (S_T2, S_CS))
    a("s_mul_i32 s%d, s%d, 80" % (S_T3, S_CS))
    a("s_mul_i32 s%d, s%d, 10240" % (S_T0, S_T5))
    a("s_mul_i32 s%d, s%d, 10240" % (S_T1, S_CS))
    def sA(T):
        a("s_add_u32 s%d, s%d, %d" % (S_T4, S_T2, 40 * T))
        a("s_add_u32 s%d, s%d, %d" % (S_T5, S_T3, (T >> 1) * 160 + 40 * (T & 1)))
        a("s_cmp_eq_u32 s%d, 0" % S_BR)
        a("s_cselect_b32 s%d, s%d, s%d" % (S_T4, S_T4, S_T5))
    for T in range(3):
        sA(T)
        a("s_add_u32 s%d, s%d, s%d" % (S_T5, S_T4, S_T0))
        a("v_add_u32 v%d, s%d, v9" % (V_WA + T, S_T5))
        a("s_add_u32 s%d, s%d, s%d" % (S_T5, S_T4, S_T1))
        a("v_add_u32 v%d, s%d, v9" % (V_WA + 5 + T, S_T5))
    sA(3)
    a("v_add_u32 v5, s%d, v6" % S_T4)
    minwrap(a, 5, 320, V_XT)
    a("v_add_u32 v5, v5, v8")
    a("v_add_u32 v%d, s%d, v5" % (V_WA + 3, S_T0))
    a("v_add_u32 v%d, s%d, v5" % (V_WA + 8, S_T1))
    a("s_cmp_eq_u32 s%d, 0" % S_BR)
    a("s_cselect_b32 s%d, s%d, s%d" % (S_T4, S_T2, S_T3))
    a("s_cselect_b32 s%d, 0, 80" % S_T5)
    a("s_add_u32 s%d, s%d, 32" % (S_T4, S_T4))
    a("v_mul_u32_u24 v%d, 40, v4" % (V_XT + 1))
    a("v_lshrrev_b32 v5, 1, v4")
    a("v_add_u32 v%d, v%d, v7" % (V_XT + 1, V_XT + 1))
    a("v_mad_u32_u24 v5, v5, s%d, v%d" % (S_T5, V_XT + 1))
    a("v_add_u32 v5, s%d, v5" % S_T4)
    minwrap(a, 5, 320, V_XT)
    a("v_add_u32 v5, v5, v8")
    a("v_add_u32 v%d, s%d, v5" % (V_WA + 4, S_T0))
    a("v_add_u32 v%d, s%d, v5" % (V_WA + 9, S_T1))

def addr2_setup(a):
    a("s_mul_i32 s%d, s%d, 10240" % (S_T1, S_CS))
    for seg in range(2):
        for T in range(4):
            if seg == 1 and T == 3: continue
            a("s_add_u32 s%d, s%d, %d" % (S_T4, S_T1, seg * 160 + 40 * T))
            a("v_add_u32 v%d, s%d, v9" % (V_WA2 + seg * 5 + T, S_T4))
    a("v_add_u32 v5, 280, v6")
    minwrap(a, 5, 320, V_XT)
    a("v_add3_u32 v%d, v5, v8, s%d" % (V_WA2 + 8, S_T1))
    a("s_add_u32 s%d, s%d, 32" % (S_T4, S_T1))
    a("v_add3_u32 v%d, v%d, v8, s%d" % (V_WA2 + 4, V_XT + 1, S_T4))
    a("v_add_u32 v5, 192, v%d" % (V_XT + 1))
    minwrap(a, 5, 320, V_XT)
    a("v_add3_u32 v%d, v5, v8, s%d" % (V_WA2 + 9, S_T1))
    img_pos(a, V_IMG, 4)

def p1_reads(s, hf):
    if 'noread' in OPT: return ["s_nop 0"] * 12
    slot = s % 4
    wb = V_WB0 if hf == 0 else V_WB1
    L = []
    for tp in range(2):
        dst = (V_XT + 4 * tp) if hf == 0 else (V_XP + (s * 2 + tp) * 4)
        L.append("ds_read_b128 %s, v%d offset:%d" % (vr(dst, 4), V_XA + hf * 2 + tp, slot * XSLOT))
    for T in range(5):
        for rd in range(2):
            L.append("ds_read_b64_tr_b16 %s, v%d offset:%d" % (vr(wb + 4 * T + 2 * rd, 2), V_WA + hf * 5 + T, slot * WSLOT + rd * 1280))
    return L
def p1_mfmas(s, hf, first):
    if 'nomfma' in OPT: return ["s_nop 0"] * 10
    wb = V_WB0 if hf == 0 else V_WB1
    return [mfma16(V_ACC + (tp * 5 + T) * 4, (V_XT + 4 * tp) if hf == 0 else (V_XP + (s * 2 + tp) * 4), wb + 4 * T, "0" if first else None)
            for T in range(5) for tp in range(2)]
def p2_reads(u):
    v, seg = u >> 1, u & 1
    slot = (10 + v) % 4
    wb = V_WB0 if (u & 1) == 0 else V_WB1
    return ["ds_read_b64_tr_b16 %s, v%d offset:%d" % (vr(wb + 4 * T + 2 * rd, 2), V_WA2 + seg * 5 + T, slot * WSLOT + rd * 1280)
            for T in range(5) for rd in range(2)]
def p2_mfmas(u):
    wb = V_WB0 if (u & 1) == 0 else V_WB1
    return [mfma16(V_ACC2 + (tp * 5 + T) * 4, V_XP + (u * 2 + tp) * 4, wb + 4 * T, "0" if u == 0 else None)
            for T in range(5) for tp in range(2)]

def half(a, lq, mf, needs, reads, sched, extra):
    ids = []
    reads = list(reads)
    for i, m in enumerate(mf):
        lq.need(needs[i])
        a(m)
        for _ in range(sched[i]):
            if reads: ids.append(lq.issue(reads.pop(0)))
        if i in extra: emit(a, extra[i])
    while reads: ids.append(lq.issue(reads.pop(0)))
    return ids

def epi1_A(a):
    a("s_lshr_b32 s%d, s%d, 2" % (S_T0, S_G1))
    a("s_lshl_b32 s%d, s%d, 3" % (S_T0, S_T0))
    a("s_and_b32 s%d, s%d, 3" % (S_T1, S_G1))
    a("s_lshl_b32 s%d, s%d, 1" % (S_T1, S_T1))
    a("s_add_u32 s%d, s%d, s%d" % (S_T0, S_T0, S_T1))
    a("s_add_u32 s%d, s%d, s%d" % (S_T0, S_T0, S_CS))
    a("s_lshl_b32 s%d, s%d, 6" % (S_T0, S_T0))
    a("s_lshl_b32 s%d, s%d, 2" % (S_T1, S_R))
    a("s_add_u32 s%d, s%d, s%d" % (S_T0, S_T0, S_T1))
    a("s_add_u32 s%d, s%d, s%d" % (S_T0, S_T0, S_RG))
    a("s_mul_i32 s%d, s%d, 5120" % (S_T0, S_T0))
    a("s_add_u32 s%d, s%d, %d" % (S_T0, S_T0, WS_KV))
    a("s_add_u32 s%d, s%d, 4096" % (S_T1, S_T0))
    def pack(swap):
        def f(a):
            for T in range(5):
                e = V_ACC2 + T * 4
                for t in range(2):
                    tp = t ^ swap
                    d = V_ACC + (tp * 5 + T) * 4
                    a("v_cvt_pk_bf16_f32 v%d, v%d, v%d" % (e + 2 * t, d, d + 1))
                    a("v_cvt_pk_bf16_f32 v%d, v%d, v%d" % (e + 2 * t + 1, d + 2, d + 3))
                a("buffer_store_dwordx4 %s, v%d, s[%d:%d], s%d offen offset:%d %s" % (vr(e, 4), V_IMG, S_WS, S_WS + 3, S_T1 if T == 4 else S_T0, (T & 3) * 1024, ST))
                if 'dbl' in OPT:
                    a("buffer_store_dwordx4 %s, v%d, s[%d:%d], s%d offen offset:%d" % (vr(e, 4), V_IMG, S_WS, S_WS + 3, S_T1 if T == 4 else S_T0, (T & 3) * 1024))
        return f
    role_branch(a, pack(0), pack(1))
    a("s_nop 1")

def phi(a, regs, tmp):
    a("s_mov_b32 s%d, 0x%x" % (S_T4, f2u(LOG2E)))
    a("s_mov_b32 s%d, 0x%x" % (S_T5, f2u(LOG2E)))
    a("s_mov_b32 s%d, 0x%x" % (S_M2, f2u(1e-6)))
    a("s_mov_b32 s%d, 0x%x" % (S_M2 + 1, f2u(1e-6)))
    for i in range(0, len(regs), 4):
        g = regs[i:i + 4]
        assert g[0] % 2 == 0 and g[1] == g[0] + 1 and g[2] % 2 == 0 and g[3] == g[2] + 1
        for k in (0, 2): a("v_pk_mul_f32 %s, %s, s[%d:%d]" % (vr(tmp + k, 2), vr(g[k], 2), S_T4, S_T5))
        for k in range(4): a("v_exp_f32_e64 v%d, v%d clamp" % (tmp + k, tmp + k))
        for k in range(4): a("v_max_f32 v%d, 0, v%d" % (g[k], g[k]))
        for k in (0, 2): a("v_pk_add_f32 %s, %s, s[%d:%d]" % (vr(g[k], 2), vr(g[k], 2), S_M2, S_M2 + 1))
        for k in (0, 2): a("v_pk_add_f32 %s, %s, %s" % (vr(g[k], 2), vr(g[k], 2), vr(tmp + k, 2)))

def piece_decode(a):
    a("s_and_b32 s%d, s%d, 1" % (S_T0, S_WV))
    a("s_lshl_b32 s%d, s%d, 6" % (S_T0, S_T0))
    a("v_add_u32 v5, s%d, v%d" % (S_T0, V_LANE))
    a("s_movk_i32 s%d, 2731" % S_T1)
    a("v_mul_u32_u24 v6, s%d, v5" % S_T1)
    a("v_lshrrev_b32 v6, 16, v6")
    a("v_mul_u32_u24 v7, 24, v6")
    a("v_sub_u32 v7, v5, v7")

def epi1_B(a):
    acc = lambda tp, T: V_ACC + (tp * 5 + T) * 4
    raw = V_WB0
    TMP = V_ACC2
    a("s_nop 7")
    for tp in range(2):
        for k in range(4): a("v_mov_b32 v%d, v%d" % (raw + tp * 4 + k, acc(tp, 4) + k))
    regs = []
    for T in (0, 1, 4):
        for tp in range(2): regs += [acc(tp, T) + k for k in range(4)]
    phi(a, regs, TMP)
    a("s_mov_b32 s%d, 0x00ff00ff" % S_M0)
    a("s_mov_b32 s%d, 0x00ff00ff" % (S_M0 + 1))
    for tp in range(2):
        for k in range(4):
            a("v_cndmask_b32_e64 v%d, v%d, v%d, s[%d:%d]" % (acc(tp, 4) + k, raw + tp * 4 + k, acc(tp, 4) + k, S_M0, S_M0 + 1))
    P = V_WB1
    for T in range(5):
        for tp in range(2):
            d = acc(tp, T)
            a("v_cvt_pk_bf16_f32 v%d, v%d, v%d" % (P + 4 * T + 2 * tp, d, d + 1))
            a("v_cvt_pk_bf16_f32 v%d, v%d, v%d" % (P + 4 * T + 2 * tp + 1, d + 2, d + 3))
    TB = V_WB0 + 8
    a("v_mov_b32 v%d, 0x3f803f80" % TMP)
    for k in range(4):
        a("v_cndmask_b32_e64 v%d, v%d, v%d, s[%d:%d]" % (TB + k, P + 16 + k, TMP, S_M0, S_M0 + 1))
    F0, F1, V0, V1, TA = P, P + 4, P + 8, P + 12, P + 16
    D = V_ACC
    a("s_mul_i32 s%d, s%d, 7168" % (S_T0, S_WV))
    a("v_lshlrev_b32 v4, 4, v%d" % V_LANE)
    for i, (x, y) in enumerate([(F0, V0), (F1, V1), (F0, TB), (F1, TB), (TA, V0), (TA, V1), (TA, TB)]):
        a(mfma16(D + 4 * i, x, y, "0"))
    a("v_add_u32 v4, s%d, v4" % S_T0)
    piece_decode(a)
    M = TMP
    a("s_lshr_b32 s%d, s%d, 1" % (S_T2, S_WV))
    a("s_and_b32 s%d, s%d, 1" % (S_T3, S_T2))
    a("s_lshr_b32 s%d, s%d, 1" % (S_T2, S_T2))
    a("s_lshl_b32 s%d, s%d, 2" % (S_T4, S_T3))
    a("s_sub_u32 s%d, s%d, 8" % (S_T4, S_T4))
    a("v_add_u32 v8, s%d, v7" % S_T4)
    a("v_cmp_gt_u32_e64 s[%d:%d], 20, v7" % (S_M0, S_M0 + 1))
    a("v_cmp_gt_u32_e64 s[%d:%d], 16, v7" % (S_M1, S_M1 + 1))
    a("v_cmp_gt_u32_e64 s[%d:%d], 4, v6" % (S_M2, S_M2 + 1))
    a("s_barrier")
    for i in range(7):
        a("ds_write_b128 v4, %s offset:%d" % (vr(D + 4 * i, 4), i * 1024))
    a("v_cndmask_b32_e64 v8, 0, v8, s[%d:%d]" % (S_M0, S_M0 + 1))
    a("v_cndmask_b32_e64 v8, v8, v7, s[%d:%d]" % (S_M1, S_M1 + 1))
    a("v_mov_b32 v9, s%d" % S_T3)
    a("v_cndmask_b32_e64 v9, v9, v6, s[%d:%d]" % (S_M2, S_M2 + 1))
    a("v_lshl_add_u32 v8, v9, 4, v8")
    a("s_add_u32 s%d, s%d, 4" % (S_T4, S_T3))
    a("v_mov_b32 v9, s%d" % S_T4)
    a("v_mov_b32 v%d, s%d" % (M, S_T3))
    a("v_cndmask_b32_e64 v9, v9, v%d, s[%d:%d]" % (M, S_M2, S_M2 + 1))
    a("s_add_u32 s%d, s%d, 2" % (S_T4, S_T3))
    a("v_mov_b32 v%d, s%d" % (M, S_T4))
    a("v_cndmask_b32_e64 v%d, 6, v%d, s[%d:%d]" % (M, M, S_M2, S_M2 + 1))
    a("v_cndmask_b32_e64 v9, v%d, v9, s[%d:%d]" % (M, S_M1, S_M1 + 1))
    a("v_lshlrev_b32 v9, 10, v9")
    a("v_lshl_add_u32 v8, v8, 4, v9")
    a("s_mul_i32 s%d, s%d, %d" % (S_T4, S_T2, 4 * 7168))
    a("v_add_u32 v8, s%d, v8" % S_T4)
    a("v_cmp_gt_u32_e64 s[%d:%d], 21, v7" % (S_M0, S_M0 + 1))
    a("v_cmp_gt_u32_e64 s[%d:%d], 5, v6" % (S_M1, S_M1 + 1))
    a("v_min_u32 v8, %d, v8" % (8 * 7168 - 3 * 7168 - 16))
    a("s_lshl_b32 s%d, s%d, 4" % (S_T0, S_G))
    a("s_add_u32 s%d, s%d, s%d" % (S_T0, S_T0, S_R))
    a("s_lshl_b32 s%d, s%d, 13" % (S_T0, S_T0))
    a("s_lshr_b32 s%d, s%d, 1" % (S_T1, S_WV))
    a("s_lshl_b32 s%d, s%d, 11" % (S_T1, S_T1))
    a("s_add_u32 s%d, s%d, s%d" % (S_T0, S_T0, S_T1))
    a("s_add_u32 s%d, s%d, %d" % (S_T0, S_T0, WS_PART))
    a("v_lshlrev_b32 v5, 4, v5")
    a("s_waitcnt lgkmcnt(0)")
    a("s_barrier")
    a("s_and_b64 s[%d:%d], s[%d:%d], s[%d:%d]" % (S_M0, S_M0 + 1, S_M0, S_M0 + 1, S_M1, S_M1 + 1))
    E = V_ACC
    for rg in range(4): a("ds_read_b128 %s, v8 offset:%d" % (vr(E + 4 * rg, 4), rg * 7168))
    a("s_waitcnt lgkmcnt(0)")
    for k in (0, 2):
        a("v_pk_add_f32 %s, %s, %s" % (vr(E + k, 2), vr(E + k, 2), vr(E + 4 + k, 2)))
        a("v_pk_add_f32 %s, %s, %s" % (vr(E + 8 + k, 2), vr(E + 8 + k, 2), vr(E + 12 + k, 2)))
    for k in (0, 2): a("v_pk_add_f32 %s, %s, %s" % (vr(E + k, 2), vr(E + k, 2), vr(E + 8 + k, 2)))
    a("s_mov_b64 exec, s[%d:%d]" % (S_M0, S_M0 + 1))
    a("buffer_store_dwordx4 %s, v5, s[%d:%d], s%d offen %s" % (vr(E, 4), S_WS, S_WS + 3, S_T0, ST))
    a("s_mov_b64 exec, -1")

LDS_Q = 126976
def epi2(a):
    XCH = 0
    a("s_mul_i32 s%d, s%d, 5120" % (S_T0, S_WV))
    a("v_lshlrev_b32 v4, 4, v%d" % V_LANE)
    a("s_xor_b32 s%d, s%d, 4" % (S_T1, S_WV))
    a("v_add_u32 v5, s%d, v4" % S_T0)
    a("s_mul_i32 s%d, s%d, 5120" % (S_T1, S_T1))
    a("s_nop 2")
    for T in range(5): a("ds_write_b128 v5, %s offset:%d" % (vr(V_ACC2 + (5 + T) * 4, 4), XCH + T * 1024))
    a("v_add_u32 v5, s%d, v4" % S_T1)
    a("s_lshl_b32 s%d, s%d, 3" % (S_T1, S_CS))
    a("v_add_u32 v4, s%d, v%d" % (S_T1, V_IMG))
    a("s_mul_i32 s%d, s%d, 5120" % (S_T0, S_RG))
    a("s_add_u32 s%d, s%d, %d" % (S_T0, S_T0, LDS_Q))
    a("v_add_u32 v4, s%d, v4" % S_T0)
    a("s_waitcnt lgkmcnt(0)")
    a("s_barrier")
    R = V_WB0
    for T in range(5): a("ds_read_b128 %s, v5 offset:%d" % (vr(R + 4 * T, 4), XCH + T * 1024))
    regs = [V_ACC2 + T * 4 + k for T in range(5) for k in range(4)]
    for T in range(5):
        a("s_waitcnt lgkmcnt(%d)" % (4 - T))
        for k in (0, 2):
            a("v_pk_add_f32 %s, %s, %s" % (vr(V_ACC2 + 4 * T + k, 2), vr(V_ACC2 + 4 * T + k, 2), vr(R + 4 * T + k, 2)))
    def fa(a):
        a("s_mov_b32 s%d, 0x%x" % (S_T4, f2u(QSCALE)))
        a("s_mov_b32 s%d, 0x%x" % (S_T5, f2u(QSCALE)))
        for k in range(0, 20, 2): a("v_pk_mul_f32 %s, %s, s[%d:%d]" % (vr(V_ACC2 + k, 2), vr(V_ACC2 + k, 2), S_T4, S_T5))
    lb, ld = a.newlabel("e2b"), a.newlabel("e2d")
    a("s_cmp_eq_u32 s%d, 0" % S_BR)
    a("s_cbranch_scc0 %s" % lb)
    fa(a)
    a("s_branch %s" % ld)
    a.label(lb)
    phi(a, regs, V_ACC)
    a.label(ld)
    for T in range(5):
        d = V_ACC2 + T * 4
        a("v_cvt_pk_bf16_f32 v%d, v%d, v%d" % (R + 2 * T, d, d + 1))
        a("v_cvt_pk_bf16_f32 v%d, v%d, v%d" % (R + 2 * T + 1, d + 2, d + 3))
        a("ds_write_b64 v4, %s offset:%d" % (vr(R + 2 * T, 2), T * 1024))

def vm_wait_roles(a, nw, nx):
    if nw == nx: a("s_waitcnt vmcnt(%d)" % nw)
    else: role_branch(a, "s_waitcnt vmcnt(%d)" % nw, "s_waitcnt vmcnt(%d)" % nx)

def publish(a, s_off, wave=0):
    def body(a):
        a("v_mov_b32 v4, s%d" % S_NONCE)
        a("v_mov_b32 v5, 0")
        a("s_mov_b64 exec, 1")
        a("buffer_store_dword v4, v5, s[%d:%d], s%d offen sc0 sc1" % (S_WS, S_WS + 3, s_off))
        a("s_mov_b64 exec, -1")
    if wave is None: body(a)
    else: on_wave(a, wave, body)

def poll(a, voff, s_off, mask_lo, mask_hi):
    def body(a):
        lp, ld = a.newlabel("pp"), a.newlabel("pd")
        a("s_mov_b32 exec_lo, %s" % mask_lo)
        a("s_mov_b32 exec_hi, %s" % mask_hi)
        a("s_mov_b32 s%d, 0" % S_T5)
        a.label(lp)
        a("buffer_load_dword v6, v%d, s[%d:%d], s%d offen sc1" % (voff, S_WS, S_WS + 3, s_off))
        a("s_waitcnt vmcnt(0)")
        a("v_cmp_ne_u32_e64 s[%d:%d], s%d, v6" % (S_M0, S_M0 + 1, S_NONCE))
        a("s_add_u32 s%d, s%d, 1" % (S_T5, S_T5))
        a("s_nop 1")
        a("s_cmp_eq_u64 s[%d:%d], 0" % (S_M0, S_M0 + 1))
        a("s_cbranch_scc1 %s" % ld)
        a("s_sleep 1")
        a("s_cmp_lt_u32 s%d, %d" % (S_T5, SPIN_LIMIT))
        a("s_cbranch_scc1 %s" % lp)
        a.label(ld)
        a("s_mov_b64 exec, -1")
    on_wave(a, 0, body)

def wo_pf_setup(a, v):
    a("v_mul_u32_u24 v4, 52, v%d" % V_LANE); a("v_lshrrev_b32 v4, 8, v4")
    a("v_mul_u32_u24 v5, 5, v4"); a("v_sub_u32 v5, v%d, v5" % V_LANE)
    a("s_mul_i32 s%d, s%d, 20" % (S_T0, S_I))
    a("v_add_u32 v4, s%d, v4" % S_T0)
    a("s_movk_i32 s%d, 1280" % S_T1)
    a("v_mul_u32_u24 v4, s%d, v4" % S_T1)
    a("v_lshl_add_u32 v4, v5, 7, v4")
    a("s_lshr_b32 s%d, s%d, 2" % (S_T0, S_G))
    a("s_mul_i32 s%d, s%d, 640" % (S_T0, S_T0))
    a("v_add_u32 v%d, s%d, v4" % (v, S_T0))
assert all((l * 52) >> 8 == l // 5 for l in range(64))

def wo_pf_issue(a, v, srd_):
    a("buffer_load_dword v%d, v%d, s[%d:%d], 0 offen %s" % (V_PFD, v, srd_, srd_ + 3, PFL))
    a("s_mov_b32 s%d, %d" % (S_OFF, 12 * 1280))
    a("buffer_load_dword v%d, v%d, s[%d:%d], s%d offen %s" % (V_PFD, v, srd_, srd_ + 3, S_OFF, PFL))

def phase1(a):
    dma_setup(a)
    stamp(a, "dset")
    entry_srd(a)
    stamp(a, "karg")
    emit(a, [pf('x', 0, 0), pf('w', 0, 0), pf('x', 1, 1), pf('w', 1, 1), pf('x', 2, 2), pf('w', 2, 2)])
    stamp(a, "pf0")
    emit(a, [dma(0, j) for j in range(5)])
    entry_srd2(a)
    stamp(a, "g0")
    addr1_setup(a)
    emit(a, [dma(1, j) for j in range(5)])
    stamp(a, "g1")
    addr2_setup(a)
    a("v_mov_b32 v8, 0")
    a("s_mov_b32 s%d, %d" % (S_OFF, WS_FLAG))
    a("buffer_load_dword v9, v8, s[%d:%d], s%d offen sc1" % (S_WS, S_WS + 3, S_OFF))
    emit(a, [dma(2, j) for j in range(5)])
    stamp(a, "g2")
    vm_wait_roles(a, 10, 8)
    stamp(a, "g0land")
    a("s_barrier")
    stamp(a, "t0")
    lq = LQ(a)
    cur = [lq.issue(x) for x in p1_reads(0, 0)]
    SCH = {'e': [2, 1, 1, 1, 1, 2, 1, 1, 1, 1], 'f': [2, 2, 2, 2, 2, 2, 0, 0, 0, 0], 'm': [2, 2, 1, 1, 1, 1, 1, 1, 1, 1], 'g': [2, 2, 2, 1, 1, 1, 1, 1, 1, 0]}[SCHED]
    needs12 = lambda ids: [ids[2 + 2 * (i // 2) + 1] for i in range(10)]
    needs10 = lambda ids: [ids[2 * (i // 2) + 1] for i in range(10)]
    for s in range(10):
        ex0 = {}
        if s >= 1: ex0 = {2: dma(s + 2, 3), 6: dma(s + 2, 4)}
        nxt = half(a, lq, p1_mfmas(s, 0, s == 0), needs12(cur), p1_reads(s, 1), SCH, ex0)
        if s == 8: vm_wait_roles(a, 5, 0)
        elif s == 9: a("s_waitcnt vmcnt(5)")
        else: vm_wait_roles(a, 5, 4)
        a("s_barrier")
        stamp(a, "s%d" % s)
        if s == 2:
            a("v_readfirstlane_b32 s%d, v9" % S_NONCE)
            a("s_nop 3")
            a("s_add_u32 s%d, s%d, 0x9e3779b9" % (S_NONCE, S_NONCE))
        pfl = []
        if s == 0: pfl = [pf('x', 3, 3), pf('w', 3, 3)]
        if s == 2: pfl = [pf('x', 4, 0), pf('w', 4, 0)]
        if s == 4: pfl = [pf('q', 0, 1)]
        if s == 5: pfl = [pf('q', 1, 2)]
        if s == 6: pfl = [pf('q', 2, 3)]
        ex1 = {1: dma(s + 3, 0), 4: dma(s + 3, 1), 7: dma(s + 3, 2), 9: pfl}
        if s == 9: ex1 = {1: dma(12, 0), 3: dma(12, 1), 5: dma(12, 2), 7: dma(12, 3), 9: dma(12, 4)}
        rd = p1_reads(s + 1, 0) if s < 9 else p2_reads(0)
        cur = half(a, lq, p1_mfmas(s, 1, False), needs12(nxt), rd, SCH, ex1)
    stamp(a, "p1end")
    lb, ld = a.newlabel("e1b"), a.newlabel("e1d")
    a("s_cmp_eq_u32 s%d, 0" % S_BR)
    a("s_cbranch_scc0 %s" % lb)
    epi1_A(a)
    a("s_branch %s" % ld)
    a.label(lb)
    a("s_waitcnt lgkmcnt(0)")
    epi1_B(a)
    emit(a, p2_reads(0))
    a.label(ld)
    stamp(a, "e1end")
    wo_pf_setup(a, V_PF)
    def wopf(a):
        if 'nopf' in OPT: return
        def body(a):
            a("s_cmp_eq_u32 s%d, 0" % S_BR)
            l = a.newlabel("wpf")
            a("s_cbranch_scc1 %s" % l)
            wo_pf_issue(a, V_PF, S_WOB)
            a.label(l)
            wo_pf_issue(a, V_PF, S_WO)
        on_wave(a, 4, body)
    a("s_waitcnt lgkmcnt(0)")
    lq = LQ(a)
    cur = None
    SCH2 = {'e': [1] * 10, 'f': [2, 2, 2, 2, 2, 0, 0, 0, 0, 0], 'm': [2, 1, 1, 1, 1, 1, 1, 1, 1, 0], 'g': [2, 2, 1, 1, 1, 1, 1, 1, 0, 0]}[SCHED]
    for u in range(10):
        extra = {}
        rd = []
        if u + 1 < 10:
            if (u + 1) % 2 == 0:
                nx = 10 + (u + 1) // 2
                if nx == 13: vm_wait_roles(a, 5, 0)
                elif nx == 14: role_branch(a, "s_waitcnt vmcnt(0)", None)
                else:
                    nsa = 5 + (10 if 'dbl' in OPT else 5)
                    lB, lD = a.newlabel("wb"), a.newlabel("wd")
                    a("s_cmp_eq_u32 s%d, 0" % S_BR)
                    a("s_cbranch_scc0 %s" % lB)
                    a("s_waitcnt vmcnt(%d)" % nsa)
                    a("s_branch %s" % lD)
                    a.label(lB)
                    a("s_waitcnt vmcnt(6)")
                    a.label(lD)
                a("s_barrier")
                if 13 <= nx + 2 <= 14: extra = {1: dma(nx + 2, 0), 3: dma(nx + 2, 1), 5: dma(nx + 2, 2), 7: dma(nx + 2, 3), 9: dma(nx + 2, 4)}
                if nx == 13:
                    def pub(a):
                        a("s_lshl_b32 s%d, s%d, 4" % (S_T0, S_G))
                        a("s_add_u32 s%d, s%d, s%d" % (S_T0, S_T0, S_R))
                        a("s_lshl_b32 s%d, s%d, 7" % (S_T0, S_T0))
                        a("s_mul_i32 s%d, s%d, %d" % (S_T1, S_BR, F_PART - F_KV))
                        a("s_add_u32 s%d, s%d, s%d" % (S_T0, S_T0, S_T1))
                        a("s_add_u32 s%d, s%d, %d" % (S_T0, S_T0, F_KV))
                        publish(a, S_T0, 0)
                    extra[0] = [pub]
            rd = p2_reads(u + 1)
        if u == 6: extra[3] = [wopf]
        needs = needs10(cur) if cur else [0] * 10
        cur = half(a, lq, p2_mfmas(u), needs, rd, SCH2, extra)
    a("s_nop 4")
    stamp(a, "p2end")
    epi2(a)
    stamp(a, "e2end")

LDS_K, LDS_V = 0, 65536
LDS_KVR = 147456
A_KA0, A_KA1, A_KAT, A_VA0, A_VA1, A_QA0, A_QA1, A_QAT, A_OM, A_OT = 10, 11, 12, 13, 14, 15, 16, 17, 18, 19
A_AM, A_Q1, A_Q2, A_KB, A_VB, A_S, A_O = 20, 32, 36, 40, 64, 96, 240
S_TAU0 = S_U
S_EXV, S_HI, S_LO = 62, 64, 66
NEG_BIG = f2u(-3.0e38)
S_KV0, S_KV1, S_KV2 = 20, 21, 22
A_L16 = 88

def jkey(r, h):
    m, b, e = r >> 3, (r >> 2) & 1, r & 3
    return 16 * b + 8 * m + 4 * h + e
def diag_mask(r):
    return (sum(1 << i for i in range(32) if jkey(r, 0) <= i), sum(1 << i for i in range(32) if jkey(r, 1) <= i))

def p2_common_setup(a, attn):
    a("v_and_b32 v4, 1, v%d" % V_KG)
    a("v_lshrrev_b32 v5, 1, v%d" % V_KG)
    a("v_lshrrev_b32 v6, 2, v%d" % V_N)
    a("v_and_b32 v7, 3, v%d" % V_N)
    a("s_and_b32 s%d, s%d, 3" % (S_T0, S_WV))
    a("s_lshr_b32 s%d, s%d, 2" % (S_T1, S_WV))
    a("s_mul_i32 s%d, s%d, 5120" % (S_T1, S_T1))
    a("s_lshl_b32 s%d, s%d, 10" % (S_T2, S_T0))
    a("s_add_u32 s%d, s%d, s%d" % (S_T2, S_T2, S_T1))
    a("s_add_u32 s%d, s%d, 4096" % (S_T3, S_T1))
    a("s_lshl_b32 s%d, s%d, 2" % (S_T4, S_T0))
    def addr(dst, n, kgimg, tbit, sbase, extra):
        a("v_lshl_add_u32 v9, v%d, 2, v%d" % (kgimg, n))
        a("v_and_b32 v9, 15, v9")
        a("v_lshl_add_u32 v9, v%d, 4, v9" % kgimg)
        a("v_lshlrev_b32 v9, 4, v9")
        a("v_lshl_add_u32 v9, v%d, 3, v9" % tbit)
        a("s_add_u32 s%d, s%d, %d" % (S_T5, sbase, extra))
        a("v_add_u32 v%d, s%d, v9" % (dst, S_T5))
    a("v_lshl_add_u32 v8, v5, 3, v6")
    addr(A_QA0, 8, 7, 4, S_T2, LDS_Q)
    a("v_add_u32 v30, 4, v8")
    addr(A_QA1, 30, 7, 4, S_T2, LDS_Q)
    a("v_add_u32 v31, s%d, v6" % S_T4)
    addr(A_QAT, 31, 7, 4, S_T3, LDS_Q)
    if attn:
        a("v_and_b32 v28, 1, v7")
        a("v_lshl_add_u32 v28, v4, 1, v28")
        a("v_lshrrev_b32 v29, 1, v7")
        addr(A_KA0, 8, 28, 29, S_T2, LDS_K)
        addr(A_KA1, 30, 28, 29, S_T2, LDS_K)
        addr(A_KAT, 31, 28, 29, S_T3, LDS_K)
    a("v_and_b32 v4, 31, v%d" % V_LANE)
    a("v_lshrrev_b32 v5, 5, v%d" % V_LANE)
    if attn:
        a("v_cmp_gt_u32_e64 s[%d:%d], 16, v4" % (S_M0, S_M0 + 1))
        a("s_sub_u32 s%d, s%d, 16" % (S_T5, S_T4))
        a("v_add_u32 v6, s%d, v4" % S_T5)
        a("v_and_b32 v6, 15, v6")
        a("v_cndmask_b32_e64 v6, v6, v4, s[%d:%d]" % (S_M0, S_M0 + 1))
        a("v_mov_b32 v7, s%d" % S_T3)
        a("v_mov_b32 v8, s%d" % S_T2)
        a("v_cndmask_b32_e64 v7, v7, v8, s[%d:%d]" % (S_M0, S_M0 + 1))
        for m in range(2):
            a("v_add_u32 v8, %d, v5" % (2 * m))
            a("v_lshl_add_u32 v9, v8, 2, v6")
            a("v_and_b32 v9, 15, v9")
            a("v_lshl_add_u32 v9, v8, 4, v9")
            a("v_lshl_add_u32 v9, v9, 4, v7")
            a("v_add_u32 v%d, %d, v9" % (A_VA0 + m, LDS_V))
    a("s_lshl_b32 s%d, s%d, 2" % (S_T1, S_G))
    a("s_add_u32 s%d, s%d, s%d" % (S_T1, S_T1, S_T0))
    a("s_lshl_b32 s%d, s%d, 3" % (S_T2, S_R))
    a("s_lshr_b32 s%d, s%d, 2" % (S_T3, S_WV))
    a("s_lshl_b32 s%d, s%d, 1" % (S_T3, S_T3))
    a("s_add_u32 s%d, s%d, s%d" % (S_T2, S_T2, S_T3))
    a("s_mul_i32 s%d, s%d, 20480" % (S_T2, S_T2))
    a("s_mul_i32 s%d, s%d, %d" % (S_T3, S_BR, O_BR))
    a("s_add_u32 s%d, s%d, s%d" % (S_T2, S_T2, S_T3))
    a("s_add_u32 s%d, s%d, %d" % (S_T2, S_T2, WS_O))
    a("v_lshrrev_b32 v6, 4, v4")
    a("s_movk_i32 s%d, 20480" % S_T3)
    a("v_mul_u32_u24 v6, s%d, v6" % S_T3)
    a("v_and_b32 v7, 15, v4")
    a("v_lshl_add_u32 v6, v7, 4, v6")
    a("v_add_u32 v6, s%d, v6" % S_T2)
    a("s_lshr_b32 s%d, s%d, 1" % (S_T3, S_T1))
    a("s_lshl_b32 s%d, s%d, 10" % (S_T3, S_T3))
    a("s_and_b32 s%d, s%d, 1" % (S_T4, S_T1))
    a("s_lshl_b32 s%d, s%d, 9" % (S_T4, S_T4))
    a("s_add_u32 s%d, s%d, s%d" % (S_T3, S_T3, S_T4))
    a("v_lshl_add_u32 v7, v5, 8, v6")
    a("v_add_u32 v%d, s%d, v7" % (A_OM, S_T3))
    a("s_lshr_b32 s%d, s%d, 3" % (S_T3, S_T1))
    a("s_add_u32 s%d, s%d, 16" % (S_T3, S_T3))
    a("s_lshl_b32 s%d, s%d, 10" % (S_T3, S_T3))
    a("s_and_b32 s%d, s%d, 6" % (S_T4, S_T1))
    a("s_lshl_b32 s%d, s%d, 7" % (S_T4, S_T4))
    a("s_add_u32 s%d, s%d, s%d" % (S_T3, S_T3, S_T4))
    a("s_and_b32 s%d, s%d, 1" % (S_T4, S_T1))
    a("s_lshl_b32 s%d, s%d, 3" % (S_T4, S_T4))
    a("s_add_u32 s%d, s%d, s%d" % (S_T3, S_T3, S_T4))
    a("v_add_u32 v%d, s%d, v6" % (A_OT, S_T3))
    a("s_mov_b32 s%d, 0" % S_HI); a("s_mov_b32 s%d, -1" % (S_HI + 1))
    a("s_mov_b32 s%d, -1" % S_LO); a("s_mov_b32 s%d, 0" % (S_LO + 1))

def q_frag_reads():
    return ["ds_read_b64_tr_b16 %s, v%d" % (vr(A_Q1, 2), A_QA0),
            "ds_read_b64_tr_b16 %s, v%d" % (vr(A_Q1 + 2, 2), A_QA1),
            "ds_read_b64_tr_b16 %s, v%d" % (vr(A_Q2, 2), A_QAT)]
def q_frag_fix(a):
    a("v_cndmask_b32_e64 v%d, v%d, 0, s[%d:%d]" % (A_Q2, A_Q2, S_HI, S_HI + 1))
    a("v_cndmask_b32_e64 v%d, v%d, 0, s[%d:%d]" % (A_Q2 + 1, A_Q2 + 1, S_HI, S_HI + 1))

def o_epilogue(a, eps=False):
    O = A_O
    a("v_cndmask_b32_e64 v30, v%d, v%d, s[%d:%d]" % (O + 12, O + 8, S_HI, S_HI + 1))
    if eps: a("v_add_f32 v30, 0x%x, v30" % f2u(1e-6))
    a("v_rcp_f32 v30, v30")
    a("s_nop 0")
    for k in range(0, 12, 2):
        a("v_pk_mul_f32 %s, %s, v[30:31] op_sel_hi:[1,0]" % (vr(O + k, 2), vr(O + k, 2)))
    for k in range(6): a("v_cvt_pk_bf16_f32 v%d, v%d, v%d" % (O + k, O + 2 * k, O + 2 * k + 1))
    for fl in ([ST, ""] if 'dbl' in OPT else [ST]):
        a("buffer_store_dwordx4 %s, v%d, s[%d:%d], 0 offen %s" % (vr(O, 4), A_OM, S_WS, S_WS + 3, fl))
        a("s_mov_b64 exec, s[%d:%d]" % (S_LO, S_LO + 1))
        a("buffer_store_dwordx2 %s, v%d, s[%d:%d], 0 offen %s" % (vr(O + 4, 2), A_OT, S_WS, S_WS + 3, fl))
        a("s_mov_b64 exec, -1")

def attn_setup(a):
    p2_common_setup(a, True)
    for r in range(16):
        lo, hi = diag_mask(r)
        a("s_mov_b32 s%d, 0x%x" % (S_MASK + 2 * r, lo)); a("s_mov_b32 s%d, 0x%x" % (S_MASK + 2 * r + 1, hi))
    a("v_mov_b32 v30, 0xffff")
    a("v_mov_b32 v31, 0xffff0000")
    for k in range(8):
        a("v_cndmask_b32_e64 v4, 0, v30, s[%d:%d]" % (S_MASK + 4 * k, S_MASK + 4 * k + 1))
        a("v_cndmask_b32_e64 v5, 0, v31, s[%d:%d]" % (S_MASK + 4 * k + 2, S_MASK + 4 * k + 3))
        a("v_or_b32 v%d, v4, v5" % (A_AM + k))
    a("v_mov_b32 v4, 0x3f803f80")
    for k in range(24): a("v_mov_b32 v%d, v4" % (A_VB + k))
    for b in range(3):
        a("v_mov_b32 v%d, 0" % (A_KB + 8 * b + 6)); a("v_mov_b32 v%d, 0" % (A_KB + 8 * b + 7))
    a("v_mov_b32 v%d, 0" % (A_Q2 + 2)); a("v_mov_b32 v%d, 0" % (A_Q2 + 3))
    a("s_mov_b32 s%d, 0x000fffff" % S_EXV); a("s_mov_b32 s%d, 0x000fffff" % (S_EXV + 1))

def k_reads(tau, buf):
    b = A_KB + 8 * buf
    return ["ds_read_b64_tr_b16 %s, v%d offset:%d" % (vr(b, 2), A_KA0, tau * 5120),
            "ds_read_b64_tr_b16 %s, v%d offset:%d" % (vr(b + 2, 2), A_KA1, tau * 5120),
            "ds_read_b64_tr_b16 %s, v%d offset:%d" % (vr(b + 4, 2), A_KAT, tau * 5120)]
def v_reads(tau, buf):
    b = A_VB + 8 * buf
    return ["s_mov_b64 exec, s[%d:%d]" % (S_EXV, S_EXV + 1),
            "ds_read_b128 %s, v%d offset:%d" % (vr(b, 4), A_VA0, tau * 5120),
            "ds_read_b128 %s, v%d offset:%d" % (vr(b + 4, 4), A_VA1, tau * 5120),
            "s_mov_b64 exec, -1"]

def attn_unit(a, stubs, mid, qk_extra):
    S = lambda t: A_S + 16 * t
    order = [8, 0, 1, 2, 3, 4, 5, 6, 7]
    emit(a, q_frag_reads())
    emit(a, k_reads(order[0], 0)); emit(a, k_reads(order[1], 1))
    a("s_waitcnt lgkmcnt(6)")
    q_frag_fix(a)
    accs = [28, 29, 30, 31]
    acc_init = [False] * 4
    def max_ops(base):
        L = []
        for k in range(0, 16, 2):
            ai = (k // 2) % 4
            if not acc_init[ai]:
                L.append("v_max_f32 v%d, v%d, v%d" % (accs[ai], base + k, base + k + 1)); acc_init[ai] = True
            else:
                L.append("v_max3_f32 v%d, v%d, v%d, v%d" % (accs[ai], base + k, base + k + 1, accs[ai]))
        return L
    merge = ["v_cndmask_b32_e64 v%d, v%d, v%d, s[%d:%d]" % (S(0) + r, S(0) + r, S(8) + r, S_MASK + 2 * r, S_MASK + 2 * r + 1) for r in range(16)]
    for idx, tau in enumerate(order):
        buf = idx % 3
        if idx + 2 < 9: emit(a, k_reads(order[idx + 2], (idx + 2) % 3))
        a("s_waitcnt lgkmcnt(%d)" % (3 * min(2, 8 - idx)))
        kb = A_KB + 8 * buf
        if tau < 8:
            lf, lr = a.newlabel("fill"), a.newlabel("fret")
            a("s_cmp_gt_u32 s%d, %d" % (S_TAU0, tau))
            a("s_cbranch_scc1 %s" % lf)
            stubs.append((lf, lr, S(tau)))
        work = []
        if idx == 3: work = merge[:]
        if idx == 4: work = max_ops(S(0))
        if idx >= 5: work = max_ops(S(order[idx - 3]))
        a(mfma32(S(tau), kb, A_Q1, "0"))
        a(mfma32(S(tau), kb + 4, A_Q2))
        if tau < 8: a.label(lr)
        emit(a, qk_extra.get(idx))
        emit(a, work)
    emit(a, max_ops(S(5)))
    emit(a, max_ops(S(6)))
    emit(a, mid)
    emit(a, v_reads(8, 0)); emit(a, v_reads(0, 1))
    emit(a, max_ops(S(7)))
    a("v_max3_f32 v28, v28, v29, v30")
    a("v_max_f32 v28, v28, v31")
    a("v_mov_b32 v29, v28")
    a("s_nop 1")
    a("v_permlane32_swap_b32 v28, v29")
    a("s_nop 1")
    a("v_max_f32 v28, v28, v29")
    def sm_ops(base):
        L = ["v_pk_add_f32 %s, %s, v[28:29] op_sel_hi:[1,0] neg_lo:[0,1] neg_hi:[0,1]" % (vr(base + k, 2), vr(base + k, 2)) for k in range(0, 16, 2)]
        E = [["v_exp_f32 v%d, v%d" % (base + k, base + k), "v_exp_f32 v%d, v%d" % (base + k + 1, base + k + 1)] for k in range(0, 16, 2)]
        out = L[:2]
        for k in range(8):
            out += E[k]
            if k + 2 < 8: out.append(L[k + 2])
            if k >= 1: out.append("v_cvt_pk_bf16_f32 v%d, v%d, v%d" % (base + k - 1, base + 2 * (k - 1), base + 2 * (k - 1) + 1))
        out.append("s_nop 0")
        out.append("v_cvt_pk_bf16_f32 v%d, v%d, v%d" % (base + 7, base + 14, base + 15))
        return out
    emit(a, sm_ops(S(0)))
    for k in range(8): a("v_and_b32 v%d, v%d, v%d" % (S(0) + 8 + k, S(0) + k, A_AM + k))
    for k in range(8): a("v_xor_b32 v%d, v%d, v%d" % (S(0) + k, S(0) + k, S(0) + 8 + k))
    a("s_waitcnt lgkmcnt(0)")
    emit(a, v_reads(1, 2))
    def guarded(mms, tau):
        def f(a):
            l = a.newlabel("pvs")
            a("s_cmp_gt_u32 s%d, %d" % (S_TAU0, tau))
            a("s_cbranch_scc1 %s" % l)
            for x in mms: a(x)
            a.label(l)
        return f
    pv = [mfma32(A_O, A_VB + 0, S(0) + 8, "0"), mfma32(A_O, A_VB + 4, S(0) + 12),
          guarded([mfma32(A_O, A_VB + 8, S(0)), mfma32(A_O, A_VB + 12, S(0) + 4)], 0)]
    for tau in range(1, 8):
        vb = (tau + 1) % 3
        sm = sm_ops(S(tau))
        n, m, done = len(sm), len(pv), 0
        for i, x in enumerate(sm):
            emit(a, x)
            want = min(m, ((i + 1) * m + n // 2) // n) if i >= 1 else 0
            while done < want:
                emit(a, pv[done]); done += 1
        while done < m:
            emit(a, pv[done]); done += 1
        a("s_waitcnt lgkmcnt(0)")
        if tau + 1 < 8: emit(a, v_reads(tau + 1, (tau + 2) % 3))
        b = A_VB + 8 * vb
        pv = [guarded([mfma32(A_O, b, S(tau)), mfma32(A_O, b + 4, S(tau) + 4)], tau)]
    a("s_nop 1")
    emit(a, pv)
    a("s_nop 15")
    o_epilogue(a)

def round_advance(a, attn=True):
    for v in ((A_KA0, A_KA1, A_KAT, A_VA0, A_VA1) if attn else ()) + (A_QA0, A_QA1, A_QAT):
        a("v_add_u32 v%d, %d, v%d" % (v, 2 * 5120, v))
    a("v_add_u32 v%d, %d, v%d" % (A_OM, 4 * 20480, A_OM))
    a("v_add_u32 v%d, %d, v%d" % (A_OT, 4 * 20480, A_OT))

def set_tau0(a):
    a("s_lshl_b32 s%d, s%d, 2" % (S_T0, S_R))
    a("s_lshr_b32 s%d, s%d, 2" % (S_T1, S_WV))
    a("s_add_u32 s%d, s%d, s%d" % (S_T0, S_T0, S_T1))
    a("s_add_u32 s%d, s%d, s%d" % (S_T0, S_T0, S_DB))
    a("s_sub_i32 s%d, 8, s%d" % (S_TAU0, S_T0))
    a("s_max_i32 s%d, s%d, 0" % (S_TAU0, S_TAU0))

def emit_stubs(a, stubs):
    for lf, lr, base in stubs:
        a.label(lf)
        a("v_mov_b32 v%d, 0x%x" % (base, NEG_BIG))
        for k in range(1, 16): a("v_mov_b32 v%d, v%d" % (base + k, base))
        a("s_branch %s" % lr)

def kv_params(a):
    a("s_lshl_b32 s%d, s%d, 6" % (S_T0, S_G))
    a("s_lshl_b32 s%d, s%d, 2" % (S_T1, S_R))
    a("s_add_u32 s%d, s%d, s%d" % (S_T0, S_T0, S_T1))
    a("s_sub_i32 s%d, s%d, 8" % (S_T0, S_T0))
    a("s_mul_i32 s%d, s%d, 5120" % (S_T0, S_T0))
    a("s_lshl_b32 s%d, s%d, 10" % (S_KV1, S_WV))
    a("s_add_u32 s%d, s%d, s%d" % (S_KV0, S_T0, S_KV1))
    a("s_lshl_b32 s%d, s%d, 2" % (S_T3, S_R))
    a("s_sub_i32 s%d, 8, s%d" % (S_T3, S_T3))
    a("s_max_i32 s%d, s%d, 0" % (S_T3, S_T3))
    a("s_mul_i32 s%d, s%d, 5120" % (S_KV2, S_T3))
    a("v_lshlrev_b32 v%d, 4, v%d" % (A_L16, V_LANE))

def kv_load(tensor, k):
    def f(a):
        l = a.newlabel("kvl")
        a("s_add_u32 s%d, s%d, %d" % (S_T4, S_KV1, k * 8192))
        a("s_cmp_lt_u32 s%d, s%d" % (S_T4, S_KV2))
        a("s_cbranch_scc1 %s" % l)
        if k == 7:
            a("s_cmp_ge_u32 s%d, 61440" % S_T4)
            a("s_cbranch_scc1 %s" % l)
        a("s_add_u32 m0, s%d, %d" % (S_T4, LDS_K if tensor == 0 else LDS_V))
        a("s_add_u32 s%d, s%d, %d" % (S_OFF, S_KV0, WS_KV + tensor * 8 * 64 * 5120 + k * 8192))
        a("buffer_load_dwordx4 v%d, s[%d:%d], s%d offen %s lds" % (A_L16, S_WS, S_WS + 3, S_OFF, LD))
        a.label(l)
    return f

def oa_flag_off(a, dst, half_):
    a("s_lshl_b32 s%d, s%d, 1" % (dst, S_R))
    a("s_add_u32 s%d, s%d, %d" % (dst, dst, half_))
    a("s_lshl_b32 s%d, s%d, 3" % (dst, dst))
    a("s_add_u32 s%d, s%d, s%d" % (dst, dst, S_G))
    a("s_lshl_b32 s%d, s%d, 5" % (dst, dst))
    a("s_add_u32 s%d, s%d, s%d" % (dst, dst, S_WV))
    a("s_lshl_b32 s%d, s%d, 2" % (dst, dst))
    a("s_add_u32 s%d, s%d, %d" % (dst, dst, F_OA))

def phase2A(a, stubs):
    attn_setup(a)
    kv_params(a)
    a("v_and_b32 v7, 3, v%d" % V_LANE)
    a("v_lshlrev_b32 v7, 7, v7")
    a("v_lshrrev_b32 v8, 2, v%d" % V_LANE)
    a("v_lshlrev_b32 v8, 12, v8")
    a("v_sub_u32 v7, v8, v7")
    a("s_and_b32 s%d, s%d, 4" % (S_T0, S_G))
    a("s_and_b32 s%d, s%d, 3" % (S_T1, S_G))
    a("s_lshr_b32 s%d, s%d, 1" % (S_T1, S_T1))
    a("s_add_u32 s%d, s%d, s%d" % (S_T0, S_T0, S_T1))
    a("s_lshl_b32 s%d, s%d, 4" % (S_T0, S_T0))
    a("s_add_u32 s%d, s%d, s%d" % (S_T0, S_T0, S_R))
    a("s_lshl_b32 s%d, s%d, 7" % (S_T0, S_T0))
    a("s_add_u32 s%d, s%d, %d" % (S_T0, S_T0, F_KV))
    a("v_add_u32 v7, s%d, v7" % S_T0)
    a("s_min_u32 s%d, s%d, 2" % (S_T1, S_R))
    a("s_lshl_b32 s%d, 2, s%d" % (S_T1, S_T1))
    a("s_sub_u32 s%d, s%d, 1" % (S_T1, S_T1))
    a("s_mul_i32 s%d, s%d, 17" % (S_T1, S_T1))
    a("s_mov_b32 s%d, 0" % S_T2)
    stamp(a, "aset")
    poll(a, 7, S_T2, "s%d" % S_T1, "0")
    a("s_mov_b32 s%d, 0x000fffff" % S_EXV); a("s_mov_b32 s%d, 0x000fffff" % (S_EXV + 1))
    a("s_waitcnt lgkmcnt(0)")
    a("s_barrier")
    stamp(a, "poll1")
    emit(a, [kv_load(0, k) for k in range(8)])
    a("s_waitcnt vmcnt(0)")
    a("s_barrier")
    stamp(a, "kvld")
    for rnd in range(2):
        a("s_mov_b32 s%d, %d" % (S_DB, 2 * rnd))
        set_tau0(a)
        if rnd == 0:
            def mid(a):
                a("s_waitcnt vmcnt(0)")
                a("s_barrier")
                stamp(a, "vld")
            qk_extra = {i: kv_load(1, i - 0) for i in range(8)}
        else:
            def mid(a):
                a("s_waitcnt vmcnt(0)")
                oa_flag_off(a, S_T0, 0)
                publish(a, S_T0, None)
            qk_extra = {}
        attn_unit(a, stubs, mid, qk_extra)
        stamp(a, "rnd%d" % rnd)
        if rnd == 0: round_advance(a)

def apply_phase(a):
    piece_decode(a)
    a("v_cmp_gt_u32_e64 s[%d:%d], 21, v7" % (S_M0, S_M0 + 1))
    a("v_cmp_gt_u32_e64 s[%d:%d], 5, v6" % (S_M1, S_M1 + 1))
    a("s_lshl_b32 s%d, s%d, 17" % (S_T0, S_G))
    a("s_lshr_b32 s%d, s%d, 1" % (S_T1, S_WV))
    a("s_lshl_b32 s%d, s%d, 11" % (S_T1, S_T1))
    a("s_add_u32 s%d, s%d, s%d" % (S_T0, S_T0, S_T1))
    a("s_add_u32 s%d, s%d, %d" % (S_T0, S_T0, WS_PART))
    a("v_lshlrev_b32 v5, 4, v5")
    a("s_and_b64 s[%d:%d], s[%d:%d], s[%d:%d]" % (S_M0, S_M0 + 1, S_M0, S_M0 + 1, S_M1, S_M1 + 1))
    P = A_S
    a("s_mov_b64 exec, s[%d:%d]" % (S_M0, S_M0 + 1))
    for r in range(16):
        a("s_add_u32 s%d, s%d, %d" % (S_OFF, S_T0, r * 8192))
        a("buffer_load_dwordx4 %s, v5, s[%d:%d], s%d offen %s" % (vr(P + 4 * r, 4), S_WS, S_WS + 3, S_OFF, LD))
    a("s_mov_b64 exec, -1")
    a("v_add_u32 v%d, %d, v5" % (A_O, LDS_KVR))
    a("v_add_u32 v%d, s%d, v%d" % (A_O, S_T1, A_O))
    a("s_mov_b64 s[%d:%d], s[%d:%d]" % (S_MASK, S_MASK + 1, S_M0, S_M0 + 1))
    p3_dma_setup(a)
    wo_load(a, S_WOB)
    p2_common_setup(a, False)
    a("v_mov_b32 v%d, 0" % (A_Q2 + 2)); a("v_mov_b32 v%d, 0" % (A_Q2 + 3))
    a("v_and_b32 v4, 31, v%d" % V_LANE)
    a("v_min_u32 v4, 20, v4")
    a("v_lshrrev_b32 v5, 5, v%d" % V_LANE)
    a("v_mul_u32_u24 v6, 48, v5")
    a("v_add_u32 v6, v6, v4")
    a("s_and_b32 s%d, s%d, 3" % (S_T0, S_WV))
    a("s_lshl_b32 s%d, s%d, 11" % (S_T0, S_T0))
    a("s_add_u32 s%d, s%d, %d" % (S_T0, S_T0, LDS_KVR))
    a("v_lshlrev_b32 v6, 4, v6")
    a("v_add_u32 v6, s%d, v6" % S_T0)
    a("v_lshlrev_b32 v7, 4, v4")
    a("v_add_u32 v7, s%d, v7" % S_T0)
    l1, l2 = a.newlabel("pw"), a.newlabel("pd2")
    a("s_cmp_lt_u32 s%d, 4" % S_WV)
    a("s_cbranch_scc1 %s" % l1)
    a("s_waitcnt vmcnt(10)")
    a("s_branch %s" % l2)
    a.label(l1)
    a("s_waitcnt vmcnt(15)")
    a.label(l2)
    for st in (8, 4, 2, 1):
        for r in range(st):
            for k in (0, 2):
                a("v_pk_add_f32 %s, %s, %s" % (vr(P + 4 * r + k, 2), vr(P + 4 * r + k, 2), vr(P + 4 * (r + st) + k, 2)))
    a("s_mov_b64 exec, s[%d:%d]" % (S_MASK, S_MASK + 1))
    a("ds_write_b128 v%d, %s" % (A_O, vr(P, 4)))
    a("s_mov_b64 exec, -1")
    a("s_waitcnt lgkmcnt(0)")
    a("s_barrier")
    stamp(a, "kvred")
    F = A_KB
    a("ds_read_b128 %s, v6" % vr(F, 4))
    a("ds_read_b128 %s, v6 offset:%d" % (vr(F + 4, 4), 24 * 16))
    a("ds_read_b128 %s, v7 offset:%d" % (vr(F + 8, 4), 4 * 24 * 16))
    emit(a, q_frag_reads())
    a("s_waitcnt lgkmcnt(3)")
    KV1, KV2 = A_VB, A_VB + 4
    for k in range(4): a("v_cvt_pk_bf16_f32 v%d, v%d, v%d" % (KV1 + k, F + 2 * k, F + 2 * k + 1))
    for k in range(2): a("v_cvt_pk_bf16_f32 v%d, v%d, v%d" % (KV2 + k, F + 8 + 2 * k, F + 9 + 2 * k))
    a("v_mov_b32 v%d, 0" % (KV2 + 2)); a("v_mov_b32 v%d, 0" % (KV2 + 3))
    for rnd in range(2):
        a("s_waitcnt lgkmcnt(0)")
        q_frag_fix(a)
        a("s_nop 1")
        a(mfma32(A_O, KV1, A_Q1, "0"))
        a(mfma32(A_O, KV2, A_Q2))
        if rnd == 0:
            round_advance(a, False) if False else None
            for v in (A_QA0, A_QA1, A_QAT): a("v_add_u32 v%d, %d, v%d" % (v, 2 * 5120, v))
            emit(a, q_frag_reads())
            a("s_nop 9")
        else:
            a("s_nop 15")
        o_epilogue(a, eps=True)
        if rnd == 0:
            a("v_add_u32 v%d, %d, v%d" % (A_OM, 4 * 20480, A_OM))
            a("v_add_u32 v%d, %d, v%d" % (A_OT, 4 * 20480, A_OT))

C_DMA = 20
C_WA, C_WT, C_OF, C_OUT, C_XA = 10, 11, 12, 13, 14
C_O = 32
C_WB = 112
C_ACC = 172
C_R = 212

def p3_dma_setup(a):
    a("s_mul_i32 s%d, s%d, 160" % (S_T0, S_G))
    a("s_movk_i32 s%d, 6554" % S_T2)
    a("s_movk_i32 s%d, 1280" % S_T3)
    for j in range(5):
        a("v_add_u32 v4, %d, v%d" % (64 * j, V_LANE))
        a("v_mul_u32_u24 v8, s%d, v4" % S_T2)
        a("v_lshrrev_b32 v8, 16, v8")
        a("v_mul_u32_u24 v9, 10, v8")
        a("v_sub_u32 v9, v4, v9")
        a("v_mul_u32_u24 v8, s%d, v8" % S_T3)
        a("v_lshl_add_u32 v8, v9, 4, v8")
        a("v_add_u32 v%d, s%d, v8" % (C_DMA + j, S_T0))

def p3_setup(a):
    a("s_mul_i32 s%d, s%d, 160" % (S_T0, S_G))
    a("v_lshrrev_b32 v4, 1, v%d" % V_KG)
    a("v_and_b32 v5, 1, v%d" % V_KG)
    a("v_lshrrev_b32 v6, 2, v%d" % V_N)
    a("v_and_b32 v7, 3, v%d" % V_N)
    a("v_mul_u32_u24 v8, 20, v4")
    a("v_lshl_add_u32 v8, v5, 2, v8")
    a("v_add_u32 v8, v8, v6")
    a("s_movk_i32 s%d, 160" % S_T1)
    a("v_mul_u32_u24 v8, s%d, v8" % S_T1)
    a("v_lshl_add_u32 v8, v7, 3, v8")
    a("s_mul_i32 s%d, s%d, 51200" % (S_T2, S_CS))
    a("v_add_u32 v%d, s%d, v8" % (C_WA, S_T2))
    a("v_mul_u32_u24 v8, 40, v%d" % V_KG)
    a("v_add3_u32 v8, v8, v6, 16")
    a("v_mul_u32_u24 v8, s%d, v8" % S_T1)
    a("v_lshl_add_u32 v8, v7, 3, v8")
    a("v_add_u32 v%d, s%d, v8" % (C_WT, S_T2))
    a("v_lshlrev_b32 v%d, 4, v%d" % (C_OF, V_LANE))
    a("s_lshl_b32 s%d, s%d, 4" % (S_T2, S_RG))
    a("v_add_u32 v8, s%d, v%d" % (S_T2, V_N))
    a("s_movk_i32 s%d, 2560" % S_T2)
    a("v_mul_u32_u24 v8, s%d, v8" % S_T2)
    a("v_lshl_add_u32 v8, v%d, 3, v8" % V_KG)
    a("v_add_u32 v%d, s%d, v8" % (C_OUT, S_T0))
    a("s_mul_i32 s%d, s%d, 10240" % (S_T2, S_RG))
    a("s_add_u32 s%d, s%d, %d" % (S_T2, S_T2, 102400))
    a("v_add_u32 v%d, s%d, v%d" % (C_XA, S_T2, C_OF))

def wo_load(a, srd_wo):
    for k in range(3):
        l = a.newlabel("wol")
        if k == 2:
            a("s_cmp_ge_u32 s%d, 4" % S_WV)
            a("s_cbranch_scc1 %s" % l)
        a("s_add_u32 s%d, s%d, %d" % (S_T0, S_WV, 8 * k))
        a("s_mul_i32 s%d, s%d, %d" % (S_OFF, S_T0, 32 * 1280))
        a("s_mul_i32 s%d, s%d, 5120" % (S_T0, S_T0))
        for j in range(5):
            a("s_add_u32 m0, s%d, %d" % (S_T0, j * 1024))
            a("s_nop 0")
            a("buffer_load_dwordx4 v%d, s[%d:%d], s%d offen %s lds" % (C_DMA + j, srd_wo, srd_wo + 3, S_OFF, DML))
        a.label(l)

def p3_oloads(a, br, s_row0, nset):
    for k in range(nset):
        a("s_lshr_b32 s%d, s%d, 4" % (S_T0, s_row0))
        a("s_add_u32 s%d, s%d, s%d" % (S_T0, S_T0, S_RG))
        a("s_add_u32 s%d, s%d, %d" % (S_T0, S_T0, 4 * k))
        a("s_mul_i32 s%d, s%d, 20480" % (S_T0, S_T0))
        a("s_add_u32 s%d, s%d, %d" % (S_T0, S_T0, WS_O + br * O_BR))
        a("s_lshl_b32 s%d, s%d, 13" % (S_T1, S_CS))
        a("s_add_u32 s%d, s%d, s%d" % (S_T1, S_T1, S_T0))
        for i in range(8):
            a("s_add_u32 s%d, s%d, %d" % (S_OFF, S_T1, i * 1024))
            a("buffer_load_dwordx4 %s, v%d, s[%d:%d], s%d offen %s" % (vr(C_O + 40 * k + 4 * i, 4), C_OF, S_WS, S_WS + 3, S_OFF, LD))
        a("s_lshl_b32 s%d, s%d, 11" % (S_T1, S_CS))
        a("s_add_u32 s%d, s%d, s%d" % (S_T1, S_T1, S_T0))
        for i in range(2):
            a("s_add_u32 s%d, s%d, %d" % (S_OFF, S_T1, (16 + i) * 1024))
            a("buffer_load_dwordx4 %s, v%d, s[%d:%d], s%d offen %s" % (vr(C_O + 40 * k + 32 + 4 * i, 4), C_OF, S_WS, S_WS + 3, S_OFF, LD))

def p3_wreads(i):
    wb = C_WB + 20 * (i % 3)
    L = []
    for T in range(5):
        for rd in range(2):
            if i < 8: L.append("ds_read_b64_tr_b16 %s, v%d offset:%d" % (vr(wb + 4 * T + 2 * rd, 2), C_WA, i * 6400 + rd * 1280 + 32 * T))
            else: L.append("ds_read_b64_tr_b16 %s, v%d offset:%d" % (vr(wb + 4 * T + 2 * rd, 2), C_WT, (i - 8) * 25600 + rd * 3200 + 32 * T))
    return L

def p3_job(a, br, s_row0, nset, tag):
    lq = LQ(a)
    ids = {}
    ids[0] = [lq.issue(x) for x in p3_wreads(0)]
    ids[1] = [lq.issue(x) for x in p3_wreads(1)]
    for i in range(10):
        wb = C_WB + 20 * (i % 3)
        rd = p3_wreads(i + 2) if i + 2 < 10 else []
        ids[i + 2] = []
        remaining = (9 - i) if nset == 1 else None
        if nset == 1: a("s_waitcnt vmcnt(%d)" % (9 - i))
        elif i == 0: a("s_waitcnt vmcnt(%d)" % 9)
        else: a("s_waitcnt vmcnt(%d)" % (9 - i))
        mm = []
        for T in range(5):
            for k in range(nset):
                mm.append((T, mfma16(C_ACC + 20 * k + 4 * T, wb + 4 * T, C_O + 40 * k + 4 * i, "0" if i == 0 else None)))
        per = (len(rd) + len(mm) - 1) // len(mm) if rd else 0
        for (T, m) in mm:
            lq.need(ids[i][2 * T + 1])
            a(m)
            for _ in range(per):
                if rd: ids[i + 2].append(lq.issue(rd.pop(0)))
    stamp(a, "j1" + tag)
    def send(tiles):
        def f(a):
            for k in range(nset):
                for n_, T in enumerate(tiles):
                    a("ds_write_b128 v%d, %s offset:%d" % (C_XA, vr(C_ACC + 20 * k + 4 * T, 4), k * 5120 + T * 1024))
            a("s_waitcnt lgkmcnt(0)")
        return f
    def recv(tiles):
        def f(a):
            a("s_mul_i32 s%d, s%d, 2560" % (S_T0, s_row0))
            a("s_add_u32 s%d, s%d, %d" % (S_T0, S_T0, br * 1280))
            for k in range(nset):
                for n_, T in enumerate(tiles):
                    a("ds_read_b128 %s, v%d offset:%d" % (vr(C_R + 4 * n_, 4), C_XA, k * 5120 + T * 1024))
                for n_, T in enumerate(tiles):
                    a("s_waitcnt lgkmcnt(%d)" % (len(tiles) - 1 - n_))
                    d = C_ACC + 20 * k + 4 * T
                    for q in (0, 2): a("v_pk_add_f32 %s, %s, %s" % (vr(d + q, 2), vr(d + q, 2), vr(C_R + 4 * n_ + q, 2)))
                    a("v_cvt_pk_bf16_f32 v%d, v%d, v%d" % (d, d, d + 1))
                    a("v_cvt_pk_bf16_f32 v%d, v%d, v%d" % (d + 1, d + 2, d + 3))
                    a("buffer_store_dwordx2 %s, v%d, s[%d:%d], s%d offen offset:%d" % (vr(d, 2), C_OUT, S_OUT, S_OUT + 3, S_T0, 32 * T))
                if k + 1 < nset: a("s_add_u32 s%d, s%d, %d" % (S_T0, S_T0, 64 * 2560))
        return f
    a("s_nop 7")
    role_branch(a, send([3, 4]), send([0, 1, 2]))
    a("s_barrier")
    role_branch(a, recv([0, 1, 2]), recv([3, 4]))
    stamp(a, "j2" + tag)

def poll_oa(a, half_):
    a("v_lshrrev_b32 v7, 3, v%d" % V_LANE)
    a("v_and_b32 v8, 7, v%d" % V_LANE)
    a("v_lshlrev_b32 v7, 7, v7")
    a("v_lshl_add_u32 v7, v8, 2, v7")
    a("s_lshl_b32 s%d, s%d, 1" % (S_T0, S_R))
    a("s_add_u32 s%d, s%d, %d" % (S_T0, S_T0, half_))
    a("s_lshl_b32 s%d, s%d, 10" % (S_T0, S_T0))
    a("s_add_u32 s%d, s%d, %d" % (S_T0, S_T0, F_OA))
    poll(a, 7, S_T0, "-1", "-1")

S_JR = S_DB
def phase3A(a):
    p3_dma_setup(a)
    a("s_waitcnt vmcnt(0)")
    oa_flag_off(a, S_T0, 1)
    publish(a, S_T0, None)
    stamp(a, "attn")
    a("s_barrier")
    wo_load(a, S_WO)
    p3_setup(a)
    poll_oa(a, 1)
    a("s_waitcnt vmcnt(0)")
    a("s_barrier")
    stamp(a, "j0a")
    a("s_lshl_b32 s%d, s%d, 7" % (S_JR, S_R))
    a("s_add_u32 s%d, s%d, 64" % (S_JR, S_JR))
    p3_oloads(a, 0, S_JR, 1)
    p3_job(a, 0, S_JR, 1, "a")

def phaseB(a):
    a("v_lshlrev_b32 v7, 7, v%d" % V_LANE)
    a("s_lshl_b32 s%d, s%d, 11" % (S_T0, S_G))
    a("s_add_u32 s%d, s%d, %d" % (S_T0, S_T0, F_PART))
    poll(a, 7, S_T0, "0xffff", "0")
    a("s_waitcnt lgkmcnt(0)")
    a("s_barrier")
    stamp(a, "poll1")
    apply_phase(a)
    stamp(a, "kvld")
    a("s_waitcnt vmcnt(0)")
    a("s_barrier")
    a("s_lshl_b32 s%d, s%d, 3" % (S_T0, S_R))
    a("s_add_u32 s%d, s%d, s%d" % (S_T0, S_T0, S_G))
    a("s_lshl_b32 s%d, s%d, 7" % (S_T0, S_T0))
    a("s_add_u32 s%d, s%d, %d" % (S_T0, S_T0, F_OB))
    publish(a, S_T0, 0)
    stamp(a, "attn")
    p3_setup(a)
    a("v_lshlrev_b32 v7, 7, v%d" % V_LANE)
    a("s_lshl_b32 s%d, s%d, 10" % (S_T0, S_R))
    a("s_add_u32 s%d, s%d, %d" % (S_T0, S_T0, F_OB))
    poll(a, 7, S_T0, "0xff", "0")
    a("s_barrier")
    stamp(a, "j0b")
    a("s_lshl_b32 s%d, s%d, 7" % (S_JR, S_R))
    p3_oloads(a, 1, S_JR, 2)
    p3_job(a, 1, S_JR, 2, "b")
    a("s_barrier")
    wo_load(a, S_WO)
    poll_oa(a, 0)
    a("s_waitcnt vmcnt(0)")
    a("s_barrier")
    stamp(a, "j0a")
    a("s_lshl_b32 s%d, s%d, 7" % (S_JR, S_R))
    p3_oloads(a, 0, S_JR, 1)
    p3_job(a, 0, S_JR, 1, "a")

def epoch_update(a):
    l = a.newlabel("ep")
    a("s_cmp_eq_u32 s2, 0")
    a("s_cbranch_scc0 %s" % l)
    a("v_lshlrev_b32 v7, 7, v%d" % V_LANE)
    for k in range(4):
        a("s_mov_b32 s%d, %d" % (S_T0, F_KV + k * 64 * 128))
        poll(a, 7, S_T0, "-1", "-1")
    a("s_mov_b32 s%d, %d" % (S_T0, WS_FLAG))
    publish(a, S_T0, 0)
    a.label(l)

HEADER = """; sliding-window attention block + linear attention block, one fused launch (generated by gen3.py)
"""
def build():
    out = [HEADER, "; @launch grid=(256,1,1) block=(512,1,1) lds=163840\n"]
    out.append('.amdgcn_target "amdgcn-amd-amdhsa--gfx950"\n.text\n')
    a = Asm()
    stubs = []
    entry(a)
    phase1(a)
    if 'p1only' in OPT: a("s_branch L_fin2")
    lb = a.newlabel("brB")
    a("s_cmp_eq_u32 s%d, 0" % S_BR)
    a("s_cbranch_scc0 %s" % lb)
    phase2A(a, stubs)
    phase3A(a)
    a("s_branch L_fin")
    emit_stubs(a, stubs)
    a.label(lb)
    phaseB(a)
    a.label("L_fin")
    epoch_update(a)
    a.label("L_fin2")
    stamp(a, "end")
    if STAMPS: a("s_waitcnt vmcnt(0)")
    stamp_store(a)
    a.label("L_end"); a("s_endpgm")
    a.label("L_codeend")
    out.append(".globl %s\n.p2align 8\n.type %s,@function\n%s:\n" % (NAME, NAME, NAME) + a.text())
    if 'nocodepf' not in OPT:
        out.append(".set CODE_TOTAL, L_codeend - L_pcbase\n.set CODE_CHUNK, ((CODE_TOTAL / 8 + 127) / 128) * 128\n.set CODE_LAST, CODE_TOTAL - 4\n")
    out.append('.section .rodata,"a"\n.p2align 6\n')
    out.append((".amdhsa_kernel %s\n  .amdhsa_next_free_vgpr 256\n  .amdhsa_next_free_sgpr 102\n  .amdhsa_accum_offset 256\n"
                "  .amdhsa_group_segment_fixed_size 0\n  .amdhsa_kernarg_size 72\n  .amdhsa_user_sgpr_count 2\n"
                "  .amdhsa_user_sgpr_kernarg_segment_ptr 1\n  .amdhsa_system_sgpr_workgroup_id_x 1\n.end_amdhsa_kernel\n") % NAME)
    return "".join(out)

if __name__ == "__main__":
    OPT = set(sys.argv[2:])
    for x in sys.argv:
        if x.startswith("st="):
            STAMPS = True
            STMAP = {n: i for i, n in enumerate(x[3:].split(","))}
    for x in OPT:
        if x.startswith('sch='): SCHED = x[4:]
    if 'pfnt' in OPT: PFL = "nt"
    if 'dmant' in OPT: DML = "nt"
    if 'p1only' in OPT: S_ST = 84
    open(sys.argv[1], "w").write(build())
```

```python
import sys, struct
from asmlib import Asm, vr, sr

NAME = "concat_heads__sliding_block__linear_attn_block__prompt_kernel"
WS_KV   = 0x0000000
WS_O    = 0x0A00000
WS_PART = 0x0F00000
WS_FLAG = 0x1000000
WS_STAMP = 0x1080000
WS_SIZE = 0x1100000
O_BR = 128 * 20480
F_KV, F_PART, F_OA, F_OB = WS_FLAG + 0x1000, WS_FLAG + 0x5000, WS_FLAG + 0x9000, WS_FLAG + 0x11000
SPIN_LIMIT = 40000
ST, LD = "sc1", "sc1"
PFL = ""
DML = ""
STAMPS, STMAP, OPT = False, None, set()
SCHED = 'e'
WS_BASE = 0
OUTST = ''

S_NONCE = 3
S_ST = 4
S_I, S_U = 22, 23
S_X, S_W, S_WS, S_OUT, S_WO, S_WOB = 24, 28, 32, 36, 40, 44
S_BR, S_R, S_G, S_WV, S_RG, S_CS = 48, 49, 50, 51, 52, 53
S_T0, S_T1, S_T2, S_T3, S_T4, S_T5 = 54, 55, 56, 57, 58, 59
S_DB, S_OFF = 60, 61
S_M0, S_M1, S_M2 = 62, 64, 66
S_D, S_SB, S_SOFF, S_STEP, S_J = 68, 72, 76, 77, 78
S_G1 = 82
S_MASK = 68

V_IMG, V_LANE, V_N, V_KG = 0, 1, 2, 3
V_DMA, V_XA, V_WA, V_PF, V_XT, V_WB0, V_WB1 = 10, 15, 19, 29, 32, 40, 60
V_ACC, V_ACC2, V_XP, V_DMA2, V_PFD, V_WA2 = 80, 120, 160, 240, 245, 246
LDS_W = 65536
XSLOT, WSLOT = 16384, 20480
LOG2E = 1.4426950408889634
QSCALE = LOG2E / (20.0 ** 0.5)

def f2u(x): return struct.unpack("<I", struct.pack("<f", x))[0]
def mfma16(d, x, y, c=None):
    return "v_mfma_f32_16x16x32_bf16 %s, %s, %s, %s" % (vr(d, 4), vr(x, 4), vr(y, 4), vr(d, 4) if c is None else c)
def mfma32(d, x, y, c=None):
    return "v_mfma_f32_32x32x16_bf16 %s, %s, %s, %s" % (vr(d, 16), vr(x, 4), vr(y, 4), vr(d, 16) if c is None else c)
def emit(a, item):
    if item is None: return
    if callable(item): item(a)
    elif isinstance(item, (list, tuple)):
        for x in item: emit(a, x)
    else: a(item)

class LQ:
    def __init__(self, a): self.a, self.n, self.done = a, 0, 0
    def issue(self, s, cnt=1):
        emit(self.a, s); self.n += cnt; return self.n
    def need(self, idx):
        if idx > self.done:
            cnt = self.n - idx
            self.a("s_waitcnt lgkmcnt(%d)" % min(cnt, 15))
            self.done = idx if cnt <= 15 else self.n - 15
    def drain(self):
        if self.n > self.done:
            self.a("s_waitcnt lgkmcnt(0)"); self.done = self.n

NST = 8
def stamp(a, name):
    if not STAMPS or STMAP is None or name not in STMAP: return
    i = STMAP[name]
    a("%s s[%d:%d]" % ("s_memtime" if 'cyc' in OPT else "s_memrealtime", S_ST + 2 * i, S_ST + 2 * i + 1))
def stamp_dbg(a):
    a("s_memrealtime s[20:21]")
    a("s_load_dwordx2 s[24:25], s[0:1], 56")
    a("s_waitcnt lgkmcnt(0)")
    a("s_mov_b32 s26, 256"); a("s_mov_b32 s27, 0x20000")
    a("s_mov_b64 exec, 1")
    a("v_mov_b32 v4, 0")
    a("s_not_b32 s22, s101")
    for reg, slot in [(22, 0), (20, 1)] + [(S_ST + 2 * i, 2 + i) for i in range(NST)]:
        a("v_mov_b32 v5, s%d" % reg)
        a("buffer_atomic_umax v5, v4, s[24:27], 0 offen offset:%d" % (slot * 4))
    a("v_mov_b32 v5, s101")
    a("buffer_atomic_umax v5, v4, s[24:27], 0 offen offset:%d" % (10 * 4))
    a("s_mov_b64 exec, -1")

def stamp_store(a):
    if not STAMPS: return
    if 'dbg' in OPT: return stamp_dbg(a)
    a("s_memrealtime s[20:21]")
    a("s_memtime s[24:25]")
    a("s_waitcnt lgkmcnt(0)")
    a("s_lshl_b32 s%d, s2, 3" % S_T0)
    a("s_add_u32 s%d, s%d, s%d" % (S_T0, S_T0, S_WV))
    a("s_lshl_b32 s%d, s%d, 6" % (S_T0, S_T0))
    a("s_add_u32 s%d, s%d, %d" % (S_T0, S_T0, WS_STAMP))
    a("s_mov_b64 exec, 1")
    a("v_mov_b32 v4, 0")
    for i in range(NST):
        a("v_mov_b32 v5, s%d" % (S_ST + 2 * i))
        a("buffer_store_dword v5, v4, s[%d:%d], s%d offen offset:%d" % (S_WS, S_WS + 3, S_T0, i * 4))
    a("s_getreg_b32 s21, hwreg(HW_REG_XCC_ID)")
    a("s_getreg_b32 s22, hwreg(HW_REG_HW_ID)")
    for reg, slot in ((20, 15), (101, 14), (100, 13), (21, 12), (22, 11), (24, 10)):
        a("v_mov_b32 v5, s%d" % reg)
        a("buffer_store_dword v5, v4, s[%d:%d], s%d offen offset:%d" % (S_WS, S_WS + 3, S_T0, slot * 4))
    a("s_mov_b64 exec, -1")

def minwrap(a, v, m, tmp):
    a("v_subrev_u32 v%d, %d, v%d" % (tmp, m, v))
    a("v_min_u32 v%d, v%d, v%d" % (v, v, tmp))
def srd(a, d, lo, hi, size):
    a("s_mov_b32 s%d, s%d" % (d, lo)); a("s_mov_b32 s%d, s%d" % (d + 1, hi))
    a("s_mov_b32 s%d, %d" % (d + 2, size)); a("s_mov_b32 s%d, 0x20000" % (d + 3))
def role_branch(a, fw, fx):
    lx, ld = a.newlabel("rx"), a.newlabel("rd")
    a("s_cmp_eq_u32 s%d, 0" % S_CS)
    a("s_cbranch_scc0 %s" % (lx if fx else ld))
    emit(a, fw)
    if fx:
        a("s_branch %s" % ld)
        a.label(lx)
        emit(a, fx)
    a.label(ld)
def on_wave(a, wave, f):
    l = a.newlabel("ow")
    a("s_cmp_eq_u32 s%d, %d" % (S_WV, wave))
    a("s_cbranch_scc0 %s" % l)
    emit(a, f)
    a.label(l)

def entry(a):
    a("s_cmp_ge_u32 s2, 256")
    a("s_cbranch_scc1 L_end")
    if STAMPS:
        a("s_memrealtime s[100:101]")
        a("s_memtime s[62:63]")
    a("s_load_dwordx16 s[4:19], s[0:1], 0")
    a("s_load_dwordx2 s[20:21], s[0:1], 64")
    a("s_and_b32 s%d, s2, 7" % S_T0)
    a("s_lshr_b32 s%d, s2, 3" % S_I)
    a("v_lshrrev_b32 v4, 6, v0")
    a("v_and_b32 v%d, 63, v0" % V_LANE)
    a("v_and_b32 v%d, 15, v0" % V_N)
    a("v_readfirstlane_b32 s%d, v4" % S_WV)
    a("v_lshrrev_b32 v%d, 4, v%d" % (V_KG, V_LANE))
    a("s_and_b32 s%d, s%d, 1" % (S_BR, S_T0))
    a("s_lshr_b32 s%d, s%d, 1" % (S_T2, S_T0))
    a("s_and_b32 s%d, s%d, 1" % (S_T3, S_T2))
    a("s_lshl_b32 s%d, s%d, 3" % (S_T3, S_T3))
    a("s_and_b32 s%d, s%d, 7" % (S_T4, S_I))
    a("s_add_u32 s%d, s%d, s%d" % (S_R, S_T3, S_T4))
    a("s_lshr_b32 s%d, s%d, 1" % (S_T3, S_T2))
    a("s_lshr_b32 s%d, s%d, 3" % (S_T4, S_I))
    a("s_lshl_b32 s%d, s%d, 2" % (S_T5, S_T3))
    a("s_add_u32 s%d, s%d, s%d" % (S_G, S_T5, S_T4))
    a("s_lshl_b32 s%d, s%d, 1" % (S_T3, S_T3))
    a("s_and_b32 s%d, s%d, 1" % (S_T5, S_T4))
    a("s_add_u32 s%d, s%d, s%d" % (S_T3, S_T3, S_T5))
    a("s_lshr_b32 s%d, s%d, 1" % (S_T4, S_T4))
    a("s_lshl_b32 s%d, s%d, 2" % (S_T4, S_T4))
    a("s_add_u32 s%d, s%d, s%d" % (S_G1, S_T3, S_T4))
    a("s_and_b32 s%d, s%d, 3" % (S_RG, S_WV))
    a("s_lshr_b32 s%d, s%d, 2" % (S_CS, S_WV))
    if 'nocodepf' not in OPT:
        def cpf(a):
            a("s_getpc_b64 s[56:57]")
            a.label("L_pcbase")
            a("s_and_b32 s%d, s%d, 7" % (S_T4, S_I))
            a("s_mul_i32 s%d, s%d, CODE_CHUNK" % (S_T4, S_T4))
            a("v_lshlrev_b32 v4, 7, v%d" % V_LANE)
            a("v_add_u32 v4, s%d, v4" % S_T4)
            a("v_min_u32 v4, CODE_LAST, v4")
            a("global_load_dword v%d, v4, s[56:57]" % V_PFD)
        on_wave(a, 7, cpf)

def dma_setup(a):
    stamp(a, "ids")
    def fw(a):
        a("s_mul_i32 s%d, s%d, %d" % (S_T0, S_RG, 16 * 3840))
        a("s_mul_i32 s%d, s%d, 160" % (S_T1, S_G))
        a("s_mul_i32 s%d, s%d, 320" % (S_T2, S_G1))
        a("s_cmp_eq_u32 s%d, 0" % S_BR)
        a("s_cselect_b32 s%d, s%d, s%d" % (S_T2, S_T2, S_T1))
        a("s_cselect_b32 s%d, 0, 1120" % S_T5)
        a("s_add_u32 s%d, s%d, s%d" % (S_T2, S_T2, S_T0))
        a("s_add_u32 s%d, s%d, 1280" % (S_T2, S_T2))
        a("s_add_u32 s%d, s%d, s%d" % (S_T0, S_T0, S_T1))
        a("s_movk_i32 s%d, 3277" % S_T1)
        a("s_movk_i32 s%d, 3840" % S_T3)
        a("s_mov_b32 s%d, %d" % (S_T4, 245760 - 160))
        for j in range(5):
            p, kk, q, u, t = 4, 5, 6, 7, 8
            a("v_add_u32 v%d, %d, v%d" % (p, 64 * j, V_LANE))
            a("v_mul_u32_u24 v%d, s%d, v%d" % (kk, S_T1, p))
            a("v_lshrrev_b32 v%d, 16, v%d" % (kk, kk))
            a("v_mul_u32_u24 v%d, 20, v%d" % (q, kk))
            a("v_lshrrev_b32 v%d, 2, v%d" % (u, kk))
            a("v_sub_u32 v%d, v%d, v%d" % (q, p, q))
            a("v_and_b32 v%d, 2, v%d" % (u, u))
            a("v_sub_u32 v%d, v%d, v%d" % (u, q, u))
            a("v_add_u32 v%d, 20, v%d" % (t, u))
            a("v_min_u32 v%d, v%d, v%d" % (u, u, t))
            a("v_add_u32 v%d, 6, v%d" % (t, u))
            a("v_lshrrev_b32 v%d, 4, v%d" % (t, t))
            a("v_mul_u32_u24 v%d, s%d, v%d" % (kk, S_T3, kk))
            a("v_lshl_add_u32 v%d, v%d, 4, v%d" % (kk, u, kk))
            a("v_mad_u32_u24 v%d, v%d, s%d, v%d" % (q, t, S_T5, kk))
            a("v_add_u32 v%d, s%d, v%d" % (V_DMA + j, S_T2, q))
            a("v_mad_u32_u24 v%d, v%d, s%d, v%d" % (q, t, S_T4, kk))
            a("v_add_u32 v%d, s%d, v%d" % (V_DMA2 + j, S_T0, q))
        a("s_mul_i32 s%d, s%d, 5120" % (S_T0, S_RG))
        for k in range(4): a("s_add_u32 s%d, s%d, %d" % (S_SB + k, S_T0, LDS_W + k * WSLOT))
        a("s_mov_b32 s%d, %d" % (S_STEP, 64 * 3840))
        for k in range(1, 4): a("s_mov_b32 s%d, 0" % (S_J + k))
        a("v_and_b32 v4, 31, v%d" % V_LANE)
        a("v_lshrrev_b32 v5, 5, v%d" % V_LANE)
        a("v_min_u32 v4, 19, v4")
        a("s_lshr_b32 s%d, s%d, 2" % (S_T0, S_G))
        a("v_mul_u32_u24 v6, 13, v4"); a("v_lshrrev_b32 v6, 7, v6")
        a("v_mul_u32_u24 v7, 52, v4"); a("v_lshrrev_b32 v7, 8, v7")
        a("v_mul_u32_u24 v8, 5, v7"); a("v_sub_u32 v8, v4, v8")
        a("v_lshlrev_b32 v8, 7, v8")
        a("v_lshl_add_u32 v6, v5, 6, v6")
        a("s_lshl_b32 s%d, s%d, 1" % (S_T2, S_I))
        a("v_add_u32 v6, s%d, v6" % S_T2)
        a("v_mul_u32_u24 v6, s%d, v6" % S_T3)
        a("v_and_b32 v9, 1, v7")
        a("s_movk_i32 s%d, 1280" % S_T2)
        a("v_mul_u32_u24 v9, s%d, v9" % S_T2)
        a("v_add3_u32 v6, v6, v9, v8")
        a("s_mul_i32 s%d, s%d, 640" % (S_T0, S_T0))
        a("s_add_u32 s%d, s%d, 1280" % (S_T2, S_T0))
        a("v_add_u32 v%d, s%d, v6" % (V_PF + 1, S_T2))
        a("v_lshl_add_u32 v7, v5, 7, v7")
        a("s_lshl_b32 s%d, s%d, 2" % (S_T2, S_I))
        a("v_add_u32 v7, s%d, v7" % S_T2)
        a("v_mul_u32_u24 v7, s%d, v7" % S_T3)
        a("v_add3_u32 v%d, v7, v8, s%d" % (V_PF + 2, S_T0))
        a("v_mov_b32 v%d, 0" % V_PF)
    def fx(a):
        a("s_lshl_b32 s%d, s%d, 7" % (S_T0, S_R))
        a("s_lshl_b32 s%d, s%d, 5" % (S_T1, S_RG))
        a("s_add_u32 s%d, s%d, s%d" % (S_T0, S_T0, S_T1))
        a("s_mul_i32 s%d, s%d, 1280" % (S_T0, S_T0))
        a("s_movk_i32 s%d, 1280" % S_T1)
        a("v_lshrrev_b32 v4, 3, v%d" % V_LANE)
        a("v_and_b32 v5, 7, v%d" % V_LANE)
        a("v_xor_b32 v5, v5, v4")
        a("v_mul_u32_u24 v4, s%d, v4" % S_T1)
        a("v_lshl_add_u32 v4, v5, 4, v4")
        a("v_add_u32 v%d, s%d, v4" % (V_DMA, S_T0))
        for j in range(1, 5): a("v_mov_b32 v%d, v%d" % (V_DMA + j, V_DMA))
        for j in range(5): a("v_mov_b32 v%d, 0" % (V_DMA2 + j))
        a("s_lshl_b32 s%d, s%d, 12" % (S_T0, S_RG))
        for k in range(4): a("s_add_u32 s%d, s%d, %d" % (S_SB + k, S_T0, k * XSLOT))
        a("s_movk_i32 s%d, 128" % S_STEP)
        for k in range(1, 4): a("s_mov_b32 s%d, %d" % (S_J + k, k * 10240))
        a("v_and_b32 v4, 31, v%d" % V_LANE)
        a("v_lshrrev_b32 v5, 5, v%d" % V_LANE)
        a("s_lshr_b32 s%d, s%d, 3" % (S_T0, S_R))
        a("s_lshl_b32 s%d, s%d, 5" % (S_T0, S_T0))
        a("s_add_u32 s%d, s%d, s%d" % (S_T0, S_T0, S_I))
        a("s_mul_i32 s%d, s%d, %d" % (S_T0, S_T0, 32 * 1280))
        a("v_mul_u32_u24 v6, s%d, v4" % S_T1)
        a("v_lshl_add_u32 v6, v5, 7, v6")
        a("v_add_u32 v%d, s%d, v6" % (V_PF, S_T0))
        a("v_mov_b32 v%d, 0" % (V_PF + 1)); a("v_mov_b32 v%d, 0" % (V_PF + 2))
    role_branch(a, fw, fx)
    a("s_mov_b32 s%d, 0" % S_SOFF)

def entry_srd(a):
    a("s_waitcnt lgkmcnt(0)")
    a("s_cmp_eq_u32 s%d, 0" % S_BR)
    a("s_cselect_b32 s%d, s4, s10" % S_X)
    a("s_cselect_b32 s%d, s5, s11" % (S_X + 1))
    a("s_mov_b32 s%d, 2621440" % (S_X + 2))
    a("s_mov_b32 s%d, 0x20000" % (S_X + 3))
    a("s_cselect_b32 s%d, s6, s12" % S_W)
    a("s_cselect_b32 s%d, s7, s13" % (S_W + 1))
    a("s_mov_b32 s%d, 2457600" % (S_W + 2))
    a("s_mov_b32 s%d, 0x20000" % (S_W + 3))
    a("s_cmp_eq_u32 s%d, 0" % S_CS)
    a("s_cselect_b32 s%d, s%d, s%d" % (S_D, S_W, S_X))
    a("s_cselect_b32 s%d, s%d, s%d" % (S_D + 1, S_W + 1, S_X + 1))
    a("s_cselect_b32 s%d, s%d, s%d" % (S_D + 2, S_W + 2, S_X + 2))
    a("s_mov_b32 s%d, 0x20000" % (S_D + 3))

def entry_srd2(a):
    if WS_BASE:
        a("s_add_u32 s20, s20, %d" % WS_BASE)
        a("s_addc_u32 s21, s21, 0")
    srd(a, S_WS, 20, 21, WS_SIZE)
    srd(a, S_OUT, 16, 17, 5242880)
    srd(a, S_WO, 8, 9, 819200)
    srd(a, S_WOB, 14, 15, 819200)
    if STAMPS:
        a("s_mov_b32 s101, s100")
        a("s_mov_b32 s100, s62")
        if S_ST == 4:
            for i in range(NST): a("s_mov_b32 s%d, 0" % (S_ST + 2 * i))

def pf(kind, idx, k):
    def f(a):
        if 'nopf' in OPT: return
        def body(a):
            if kind == 'x': a("s_mov_b32 s%d, %d" % (S_OFF, idx * 256)); s_, v = S_X, V_PF
            elif kind == 'w': a("s_mov_b32 s%d, %d" % (S_OFF, idx * 128 * 3840)); s_, v = S_W, V_PF + 1
            else: a("s_mov_b32 s%d, %d" % (S_OFF, idx * 256 * 3840)); s_, v = S_W, V_PF + 2
            a("buffer_load_dword v%d, v%d, s[%d:%d], s%d offen %s" % (V_PFD, v, s_, s_ + 3, S_OFF, PFL))
        on_wave(a, (4 + k) if kind == 'x' else k, body)
    return f

def dma(sig, j):
    def f(a):
        if 'nodma' in OPT and sig >= 3: return
        slot = sig % 4
        def body(a):
            a("s_add_u32 m0, s%d, %d" % (S_SB + slot, j * 1024))
            if sig < 10:
                if 1 <= j <= 3:
                    a("s_add_u32 s%d, s%d, s%d" % (S_OFF, S_SOFF, S_J + j)); so = S_OFF
                else:
                    a("s_nop 0"); so = S_SOFF
                a("buffer_load_dwordx4 v%d, s[%d:%d], s%d offen %s lds" % (V_DMA + j, S_D, S_D + 3, so, DML))
            else:
                a("s_mov_b32 s%d, %d" % (S_OFF, (sig - 10) * 128 * 3840))
                a("buffer_load_dwordx4 v%d, s[%d:%d], s%d offen %s lds" % (V_DMA2 + j, S_D, S_D + 3, S_OFF, DML))
        if sig >= 10 or j == 4: role_branch(a, body, None)
        else: body(a)
        if sig < 10 and j == 4: a("s_add_u32 s%d, s%d, s%d" % (S_SOFF, S_SOFF, S_STEP))
    return f

def img_pos(a, dst, tmp):
    a("v_lshl_add_u32 v%d, v%d, 2, v%d" % (tmp, V_KG, V_N))
    a("v_and_b32 v%d, 15, v%d" % (tmp, tmp))
    a("v_lshl_add_u32 v%d, v%d, 4, v%d" % (tmp, V_KG, tmp))
    a("v_lshlrev_b32 v%d, 4, v%d" % (dst, tmp))

def addr1_setup(a):
    a("v_and_b32 v4, 7, v%d" % V_N)
    a("s_lshl_b32 s%d, s%d, 12" % (S_T0, S_RG))
    a("v_lshlrev_b32 v5, 7, v%d" % V_N)
    a("v_xor_b32 v4, v4, v%d" % V_KG)
    a("v_lshl_add_u32 v4, v4, 4, v5")
    a("s_xor_b32 s%d, s%d, 1" % (S_T5, S_CS))
    a("s_lshl_b32 s%d, s%d, 6" % (S_T1, S_T5))
    a("s_lshl_b32 s%d, s%d, 11" % (S_T2, S_CS))
    a("s_or_b32 s%d, s%d, s%d" % (S_T1, S_T1, S_T2))
    a("s_or_b32 s%d, s%d, s%d" % (S_T1, S_T1, S_T0))
    a("v_xor_b32 v%d, s%d, v4" % (V_XA, S_T1))
    a("v_xor_b32 v%d, 0x800, v%d" % (V_XA + 1, V_XA))
    a("v_xor_b32 v%d, 64, v%d" % (V_XA + 2, V_XA))
    a("v_xor_b32 v%d, 64, v%d" % (V_XA + 3, V_XA + 1))
    a("v_and_b32 v4, 3, v%d" % V_N)
    a("v_lshrrev_b32 v8, 2, v%d" % V_N)
    a("v_and_b32 v7, 1, v%d" % V_KG)
    a("v_lshl_add_u32 v8, v%d, 3, v8" % V_KG)
    a("s_movk_i32 s%d, 320" % S_T1)
    a("v_lshlrev_b32 v7, 5, v7")
    a("v_mul_u32_u24 v8, s%d, v8" % S_T1)
    a("v_lshl_add_u32 v6, v4, 3, v7")
    a("v_add_u32 v8, %d, v8" % LDS_W)
    a("v_add_u32 v9, v8, v6")
    a("s_mul_i32 s%d, s%d, 160" % (S_T2, S_CS))
    a("s_mul_i32 s%d, s%d, 80" % (S_T3, S_CS))
    a("s_mul_i32 s%d, s%d, 10240" % (S_T0, S_T5))
    a("s_mul_i32 s%d, s%d, 10240" % (S_T1, S_CS))
    def sA(T):
        a("s_add_u32 s%d, s%d, %d" % (S_T4, S_T2, 40 * T))
        a("s_add_u32 s%d, s%d, %d" % (S_T5, S_T3, (T >> 1) * 160 + 40 * (T & 1)))
        a("s_cmp_eq_u32 s%d, 0" % S_BR)
        a("s_cselect_b32 s%d, s%d, s%d" % (S_T4, S_T4, S_T5))
    for T in range(3):
        sA(T)
        a("s_add_u32 s%d, s%d, s%d" % (S_T5, S_T4, S_T0))
        a("v_add_u32 v%d, s%d, v9" % (V_WA + T, S_T5))
        a("s_add_u32 s%d, s%d, s%d" % (S_T5, S_T4, S_T1))
        a("v_add_u32 v%d, s%d, v9" % (V_WA + 5 + T, S_T5))
    sA(3)
    a("v_add_u32 v5, s%d, v6" % S_T4)
    minwrap(a, 5, 320, V_XT)
    a("v_add_u32 v5, v5, v8")
    a("v_add_u32 v%d, s%d, v5" % (V_WA + 3, S_T0))
    a("v_add_u32 v%d, s%d, v5" % (V_WA + 8, S_T1))
    a("s_cmp_eq_u32 s%d, 0" % S_BR)
    a("s_cselect_b32 s%d, s%d, s%d" % (S_T4, S_T2, S_T3))
    a("s_cselect_b32 s%d, 0, 80" % S_T5)
    a("s_add_u32 s%d, s%d, 32" % (S_T4, S_T4))
    a("v_mul_u32_u24 v%d, 40, v4" % (V_XT + 1))
    a("v_lshrrev_b32 v5, 1, v4")
    a("v_add_u32 v%d, v%d, v7" % (V_XT + 1, V_XT + 1))
    a("v_mad_u32_u24 v5, v5, s%d, v%d" % (S_T5, V_XT + 1))
    a("v_add_u32 v5, s%d, v5" % S_T4)
    minwrap(a, 5, 320, V_XT)
    a("v_add_u32 v5, v5, v8")
    a("v_add_u32 v%d, s%d, v5" % (V_WA + 4, S_T0))
    a("v_add_u32 v%d, s%d, v5" % (V_WA + 9, S_T1))

def addr2_setup(a):
    a("s_mul_i32 s%d, s%d, 10240" % (S_T1, S_CS))
    for seg in range(2):
        for T in range(4):
            if seg == 1 and T == 3: continue
            a("s_add_u32 s%d, s%d, %d" % (S_T4, S_T1, seg * 160 + 40 * T))
            a("v_add_u32 v%d, s%d, v9" % (V_WA2 + seg * 5 + T, S_T4))
    a("v_add_u32 v5, 280, v6")
    minwrap(a, 5, 320, V_XT)
    a("v_add3_u32 v%d, v5, v8, s%d" % (V_WA2 + 8, S_T1))
    a("s_add_u32 s%d, s%d, 32" % (S_T4, S_T1))
    a("v_add3_u32 v%d, v%d, v8, s%d" % (V_WA2 + 4, V_XT + 1, S_T4))
    a("v_add_u32 v5, 192, v%d" % (V_XT + 1))
    minwrap(a, 5, 320, V_XT)
    a("v_add3_u32 v%d, v5, v8, s%d" % (V_WA2 + 9, S_T1))
    img_pos(a, V_IMG, 4)

def p1_reads(s, hf):
    if 'noread' in OPT: return ["s_nop 0"] * 12
    slot = s % 4
    wb = V_WB0 if hf == 0 else V_WB1
    L = []
    for tp in range(2):
        dst = (V_XT + 4 * tp) if hf == 0 else (V_XP + (s * 2 + tp) * 4)
        L.append("ds_read_b128 %s, v%d offset:%d" % (vr(dst, 4), V_XA + hf * 2 + tp, slot * XSLOT))
    for T in range(5):
        for rd in range(2):
            L.append("ds_read_b64_tr_b16 %s, v%d offset:%d" % (vr(wb + 4 * T + 2 * rd, 2), V_WA + hf * 5 + T, slot * WSLOT + rd * 1280))
    return L
def p1_mfmas(s, hf, first):
    if 'nomfma' in OPT: return ["s_nop 0"] * 10
    wb = V_WB0 if hf == 0 else V_WB1
    return [mfma16(V_ACC + (tp * 5 + T) * 4, (V_XT + 4 * tp) if hf == 0 else (V_XP + (s * 2 + tp) * 4), wb + 4 * T, "0" if first else None)
            for T in range(5) for tp in range(2)]
def p2_reads(u):
    v, seg = u >> 1, u & 1
    slot = (10 + v) % 4
    wb = V_WB0 if (u & 1) == 0 else V_WB1
    return ["ds_read_b64_tr_b16 %s, v%d offset:%d" % (vr(wb + 4 * T + 2 * rd, 2), V_WA2 + seg * 5 + T, slot * WSLOT + rd * 1280)
            for T in range(5) for rd in range(2)]
def p2_mfmas(u):
    wb = V_WB0 if (u & 1) == 0 else V_WB1
    return [mfma16(V_ACC2 + (tp * 5 + T) * 4, V_XP + (u * 2 + tp) * 4, wb + 4 * T, "0" if u == 0 else None)
            for T in range(5) for tp in range(2)]

def half(a, lq, mf, needs, reads, sched, extra):
    ids = []
    reads = list(reads)
    for i, m in enumerate(mf):
        lq.need(needs[i])
        a(m)
        for _ in range(sched[i]):
            if reads: ids.append(lq.issue(reads.pop(0)))
        if i in extra: emit(a, extra[i])
    while reads: ids.append(lq.issue(reads.pop(0)))
    return ids

def epi1_A(a):
    a("s_lshr_b32 s%d, s%d, 2" % (S_T0, S_G1))
    a("s_lshl_b32 s%d, s%d, 3" % (S_T0, S_T0))
    a("s_and_b32 s%d, s%d, 3" % (S_T1, S_G1))
    a("s_lshl_b32 s%d, s%d, 1" % (S_T1, S_T1))
    a("s_add_u32 s%d, s%d, s%d" % (S_T0, S_T0, S_T1))
    a("s_add_u32 s%d, s%d, s%d" % (S_T0, S_T0, S_CS))
    a("s_lshl_b32 s%d, s%d, 6" % (S_T0, S_T0))
    a("s_lshl_b32 s%d, s%d, 2" % (S_T1, S_R))
    a("s_add_u32 s%d, s%d, s%d" % (S_T0, S_T0, S_T1))
    a("s_add_u32 s%d, s%d, s%d" % (S_T0, S_T0, S_RG))
    a("s_mul_i32 s%d, s%d, 5120" % (S_T0, S_T0))
    a("s_add_u32 s%d, s%d, %d" % (S_T0, S_T0, WS_KV))
    a("s_add_u32 s%d, s%d, 4096" % (S_T1, S_T0))
    def pack(swap):
        def f(a):
            for T in range(5):
                e = V_ACC2 + T * 4
                for t in range(2):
                    tp = t ^ swap
                    d = V_ACC + (tp * 5 + T) * 4
                    a("v_cvt_pk_bf16_f32 v%d, v%d, v%d" % (e + 2 * t, d, d + 1))
                    a("v_cvt_pk_bf16_f32 v%d, v%d, v%d" % (e + 2 * t + 1, d + 2, d + 3))
                a("buffer_store_dwordx4 %s, v%d, s[%d:%d], s%d offen offset:%d %s" % (vr(e, 4), V_IMG, S_WS, S_WS + 3, S_T1 if T == 4 else S_T0, (T & 3) * 1024, ST))
                if 'dbl' in OPT:
                    a("buffer_store_dwordx4 %s, v%d, s[%d:%d], s%d offen offset:%d" % (vr(e, 4), V_IMG, S_WS, S_WS + 3, S_T1 if T == 4 else S_T0, (T & 3) * 1024))
        return f
    role_branch(a, pack(0), pack(1))
    a("s_nop 1")

def phi(a, regs, tmp):
    a("s_mov_b32 s%d, 0x%x" % (S_T4, f2u(LOG2E)))
    a("s_mov_b32 s%d, 0x%x" % (S_T5, f2u(LOG2E)))
    a("s_mov_b32 s%d, 0x%x" % (S_M2, f2u(1e-6)))
    a("s_mov_b32 s%d, 0x%x" % (S_M2 + 1, f2u(1e-6)))
    for i in range(0, len(regs), 4):
        g = regs[i:i + 4]
        assert g[0] % 2 == 0 and g[1] == g[0] + 1 and g[2] % 2 == 0 and g[3] == g[2] + 1
        for k in (0, 2): a("v_pk_mul_f32 %s, %s, s[%d:%d]" % (vr(tmp + k, 2), vr(g[k], 2), S_T4, S_T5))
        for k in range(4): a("v_exp_f32_e64 v%d, v%d clamp" % (tmp + k, tmp + k))
        for k in range(4): a("v_max_f32 v%d, 0, v%d" % (g[k], g[k]))
        for k in (0, 2): a("v_pk_add_f32 %s, %s, s[%d:%d]" % (vr(g[k], 2), vr(g[k], 2), S_M2, S_M2 + 1))
        for k in (0, 2): a("v_pk_add_f32 %s, %s, %s" % (vr(g[k], 2), vr(g[k], 2), vr(tmp + k, 2)))

def piece_decode(a):
    a("s_and_b32 s%d, s%d, 1" % (S_T0, S_WV))
    a("s_lshl_b32 s%d, s%d, 6" % (S_T0, S_T0))
    a("v_add_u32 v5, s%d, v%d" % (S_T0, V_LANE))
    a("s_movk_i32 s%d, 2731" % S_T1)
    a("v_mul_u32_u24 v6, s%d, v5" % S_T1)
    a("v_lshrrev_b32 v6, 16, v6")
    a("v_mul_u32_u24 v7, 24, v6")
    a("v_sub_u32 v7, v5, v7")

def epi1_B(a):
    acc = lambda tp, T: V_ACC + (tp * 5 + T) * 4
    raw = V_WB0
    TMP = V_ACC2
    a("s_nop 7")
    for tp in range(2):
        for k in range(4): a("v_mov_b32 v%d, v%d" % (raw + tp * 4 + k, acc(tp, 4) + k))
    regs = []
    for T in (0, 1, 4):
        for tp in range(2): regs += [acc(tp, T) + k for k in range(4)]
    phi(a, regs, TMP)
    a("s_mov_b32 s%d, 0x00ff00ff" % S_M0)
    a("s_mov_b32 s%d, 0x00ff00ff" % (S_M0 + 1))
    for tp in range(2):
        for k in range(4):
            a("v_cndmask_b32_e64 v%d, v%d, v%d, s[%d:%d]" % (acc(tp, 4) + k, raw + tp * 4 + k, acc(tp, 4) + k, S_M0, S_M0 + 1))
    P = V_WB1
    for T in range(5):
        for tp in range(2):
            d = acc(tp, T)
            a("v_cvt_pk_bf16_f32 v%d, v%d, v%d" % (P + 4 * T + 2 * tp, d, d + 1))
            a("v_cvt_pk_bf16_f32 v%d, v%d, v%d" % (P + 4 * T + 2 * tp + 1, d + 2, d + 3))
    TB = V_WB0 + 8
    a("v_mov_b32 v%d, 0x3f803f80" % TMP)
    for k in range(4):
        a("v_cndmask_b32_e64 v%d, v%d, v%d, s[%d:%d]" % (TB + k, P + 16 + k, TMP, S_M0, S_M0 + 1))
    F0, F1, V0, V1, TA = P, P + 4, P + 8, P + 12, P + 16
    D = V_ACC
    a("s_mul_i32 s%d, s%d, 7168" % (S_T0, S_WV))
    a("v_lshlrev_b32 v4, 4, v%d" % V_LANE)
    for i, (x, y) in enumerate([(F0, V0), (F1, V1), (F0, TB), (F1, TB), (TA, V0), (TA, V1), (TA, TB)]):
        a(mfma16(D + 4 * i, x, y, "0"))
    a("v_add_u32 v4, s%d, v4" % S_T0)
    piece_decode(a)
    M = TMP
    a("s_lshr_b32 s%d, s%d, 1" % (S_T2, S_WV))
    a("s_and_b32 s%d, s%d, 1" % (S_T3, S_T2))
    a("s_lshr_b32 s%d, s%d, 1" % (S_T2, S_T2))
    a("s_lshl_b32 s%d, s%d, 2" % (S_T4, S_T3))
    a("s_sub_u32 s%d, s%d, 8" % (S_T4, S_T4))
    a("v_add_u32 v8, s%d, v7" % S_T4)
    a("v_cmp_gt_u32_e64 s[%d:%d], 20, v7" % (S_M0, S_M0 + 1))
    a("v_cmp_gt_u32_e64 s[%d:%d], 16, v7" % (S_M1, S_M1 + 1))
    a("v_cmp_gt_u32_e64 s[%d:%d], 4, v6" % (S_M2, S_M2 + 1))
    a("s_barrier")
    for i in range(7):
        a("ds_write_b128 v4, %s offset:%d" % (vr(D + 4 * i, 4), i * 1024))
    a("v_cndmask_b32_e64 v8, 0, v8, s[%d:%d]" % (S_M0, S_M0 + 1))
    a("v_cndmask_b32_e64 v8, v8, v7, s[%d:%d]" % (S_M1, S_M1 + 1))
    a("v_mov_b32 v9, s%d" % S_T3)
    a("v_cndmask_b32_e64 v9, v9, v6, s[%d:%d]" % (S_M2, S_M2 + 1))
    a("v_lshl_add_u32 v8, v9, 4, v8")
    a("s_add_u32 s%d, s%d, 4" % (S_T4, S_T3))
    a("v_mov_b32 v9, s%d" % S_T4)
    a("v_mov_b32 v%d, s%d" % (M, S_T3))
    a("v_cndmask_b32_e64 v9, v9, v%d, s[%d:%d]" % (M, S_M2, S_M2 + 1))
    a("s_add_u32 s%d, s%d, 2" % (S_T4, S_T3))
    a("v_mov_b32 v%d, s%d" % (M, S_T4))
    a("v_cndmask_b32_e64 v%d, 6, v%d, s[%d:%d]" % (M, M, S_M2, S_M2 + 1))
    a("v_cndmask_b32_e64 v9, v%d, v9, s[%d:%d]" % (M, S_M1, S_M1 + 1))
    a("v_lshlrev_b32 v9, 10, v9")
    a("v_lshl_add_u32 v8, v8, 4, v9")
    a("s_mul_i32 s%d, s%d, %d" % (S_T4, S_T2, 4 * 7168))
    a("v_add_u32 v8, s%d, v8" % S_T4)
    a("v_cmp_gt_u32_e64 s[%d:%d], 21, v7" % (S_M0, S_M0 + 1))
    a("v_cmp_gt_u32_e64 s[%d:%d], 5, v6" % (S_M1, S_M1 + 1))
    a("v_min_u32 v8, %d, v8" % (8 * 7168 - 3 * 7168 - 16))
    a("s_lshl_b32 s%d, s%d, 4" % (S_T0, S_G))
    a("s_add_u32 s%d, s%d, s%d" % (S_T0, S_T0, S_R))
    a("s_lshl_b32 s%d, s%d, 13" % (S_T0, S_T0))
    a("s_lshr_b32 s%d, s%d, 1" % (S_T1, S_WV))
    a("s_lshl_b32 s%d, s%d, 11" % (S_T1, S_T1))
    a("s_add_u32 s%d, s%d, s%d" % (S_T0, S_T0, S_T1))
    a("s_add_u32 s%d, s%d, %d" % (S_T0, S_T0, WS_PART))
    a("v_lshlrev_b32 v5, 4, v5")
    a("s_waitcnt lgkmcnt(0)")
    a("s_barrier")
    a("s_and_b64 s[%d:%d], s[%d:%d], s[%d:%d]" % (S_M0, S_M0 + 1, S_M0, S_M0 + 1, S_M1, S_M1 + 1))
    E = V_ACC
    for rg in range(4): a("ds_read_b128 %s, v8 offset:%d" % (vr(E + 4 * rg, 4), rg * 7168))
    a("s_waitcnt lgkmcnt(0)")
    for k in (0, 2):
        a("v_pk_add_f32 %s, %s, %s" % (vr(E + k, 2), vr(E + k, 2), vr(E + 4 + k, 2)))
        a("v_pk_add_f32 %s, %s, %s" % (vr(E + 8 + k, 2), vr(E + 8 + k, 2), vr(E + 12 + k, 2)))
    for k in (0, 2): a("v_pk_add_f32 %s, %s, %s" % (vr(E + k, 2), vr(E + k, 2), vr(E + 8 + k, 2)))
    a("s_mov_b64 exec, s[%d:%d]" % (S_M0, S_M0 + 1))
    a("buffer_store_dwordx4 %s, v5, s[%d:%d], s%d offen %s" % (vr(E, 4), S_WS, S_WS + 3, S_T0, ST))
    a("s_mov_b64 exec, -1")

LDS_Q = 126976
def epi2(a):
    XCH = 0
    a("s_mul_i32 s%d, s%d, 5120" % (S_T0, S_WV))
    a("v_lshlrev_b32 v4, 4, v%d" % V_LANE)
    a("s_xor_b32 s%d, s%d, 4" % (S_T1, S_WV))
    a("v_add_u32 v5, s%d, v4" % S_T0)
    a("s_mul_i32 s%d, s%d, 5120" % (S_T1, S_T1))
    a("s_nop 2")
    for T in range(5): a("ds_write_b128 v5, %s offset:%d" % (vr(V_ACC2 + (5 + T) * 4, 4), XCH + T * 1024))
    a("v_add_u32 v5, s%d, v4" % S_T1)
    a("s_lshl_b32 s%d, s%d, 3" % (S_T1, S_CS))
    a("v_add_u32 v4, s%d, v%d" % (S_T1, V_IMG))
    a("s_mul_i32 s%d, s%d, 5120" % (S_T0, S_RG))
    a("s_add_u32 s%d, s%d, %d" % (S_T0, S_T0, LDS_Q))
    a("v_add_u32 v4, s%d, v4" % S_T0)
    a("s_waitcnt lgkmcnt(0)")
    a("s_barrier")
    R = V_WB0
    for T in range(5): a("ds_read_b128 %s, v5 offset:%d" % (vr(R + 4 * T, 4), XCH + T * 1024))
    regs = [V_ACC2 + T * 4 + k for T in range(5) for k in range(4)]
    for T in range(5):
        a("s_waitcnt lgkmcnt(%d)" % (4 - T))
        for k in (0, 2):
            a("v_pk_add_f32 %s, %s, %s" % (vr(V_ACC2 + 4 * T + k, 2), vr(V_ACC2 + 4 * T + k, 2), vr(R + 4 * T + k, 2)))
    def fa(a):
        a("s_mov_b32 s%d, 0x%x" % (S_T4, f2u(QSCALE)))
        a("s_mov_b32 s%d, 0x%x" % (S_T5, f2u(QSCALE)))
        for k in range(0, 20, 2): a("v_pk_mul_f32 %s, %s, s[%d:%d]" % (vr(V_ACC2 + k, 2), vr(V_ACC2 + k, 2), S_T4, S_T5))
    lb, ld = a.newlabel("e2b"), a.newlabel("e2d")
    a("s_cmp_eq_u32 s%d, 0" % S_BR)
    a("s_cbranch_scc0 %s" % lb)
    fa(a)
    a("s_branch %s" % ld)
    a.label(lb)
    phi(a, regs, V_ACC)
    a.label(ld)
    for T in range(5):
        d = V_ACC2 + T * 4
        a("v_cvt_pk_bf16_f32 v%d, v%d, v%d" % (R + 2 * T, d, d + 1))
        a("v_cvt_pk_bf16_f32 v%d, v%d, v%d" % (R + 2 * T + 1, d + 2, d + 3))
        a("ds_write_b64 v4, %s offset:%d" % (vr(R + 2 * T, 2), T * 1024))

def vm_wait_roles(a, nw, nx):
    if nw == nx: a("s_waitcnt vmcnt(%d)" % nw)
    else: role_branch(a, "s_waitcnt vmcnt(%d)" % nw, "s_waitcnt vmcnt(%d)" % nx)

def publish(a, s_off, wave=0):
    def body(a):
        a("v_mov_b32 v4, s%d" % S_NONCE)
        a("v_mov_b32 v5, 0")
        a("s_mov_b64 exec, 1")
        a("buffer_store_dword v4, v5, s[%d:%d], s%d offen sc0 sc1" % (S_WS, S_WS + 3, s_off))
        a("s_mov_b64 exec, -1")
    if wave is None: body(a)
    else: on_wave(a, wave, body)

def poll(a, voff, s_off, mask_lo, mask_hi):
    def body(a):
        lp, ld = a.newlabel("pp"), a.newlabel("pd")
        a("s_mov_b32 exec_lo, %s" % mask_lo)
        a("s_mov_b32 exec_hi, %s" % mask_hi)
        a("s_mov_b32 s%d, 0" % S_T5)
        a.label(lp)
        a("buffer_load_dword v6, v%d, s[%d:%d], s%d offen sc1" % (voff, S_WS, S_WS + 3, s_off))
        a("s_waitcnt vmcnt(0)")
        a("v_cmp_ne_u32_e64 s[%d:%d], s%d, v6" % (S_M0, S_M0 + 1, S_NONCE))
        a("s_add_u32 s%d, s%d, 1" % (S_T5, S_T5))
        a("s_nop 1")
        a("s_cmp_eq_u64 s[%d:%d], 0" % (S_M0, S_M0 + 1))
        a("s_cbranch_scc1 %s" % ld)
        a("s_sleep 1")
        a("s_cmp_lt_u32 s%d, %d" % (S_T5, SPIN_LIMIT))
        a("s_cbranch_scc1 %s" % lp)
        a.label(ld)
        a("s_mov_b64 exec, -1")
    on_wave(a, 0, body)

def wo_pf_setup(a, v):
    a("v_mul_u32_u24 v4, 52, v%d" % V_LANE); a("v_lshrrev_b32 v4, 8, v4")
    a("v_mul_u32_u24 v5, 5, v4"); a("v_sub_u32 v5, v%d, v5" % V_LANE)
    a("s_mul_i32 s%d, s%d, 20" % (S_T0, S_I))
    a("v_add_u32 v4, s%d, v4" % S_T0)
    a("s_movk_i32 s%d, 1280" % S_T1)
    a("v_mul_u32_u24 v4, s%d, v4" % S_T1)
    a("v_lshl_add_u32 v4, v5, 7, v4")
    a("s_lshr_b32 s%d, s%d, 2" % (S_T0, S_G))
    a("s_mul_i32 s%d, s%d, 640" % (S_T0, S_T0))
    a("v_add_u32 v%d, s%d, v4" % (v, S_T0))
assert all((l * 52) >> 8 == l // 5 for l in range(64))

def wo_pf_issue(a, v, srd_):
    a("buffer_load_dword v%d, v%d, s[%d:%d], 0 offen %s" % (V_PFD, v, srd_, srd_ + 3, PFL))
    a("s_mov_b32 s%d, %d" % (S_OFF, 12 * 1280))
    a("buffer_load_dword v%d, v%d, s[%d:%d], s%d offen %s" % (V_PFD, v, srd_, srd_ + 3, S_OFF, PFL))

def phase1(a):
    dma_setup(a)
    stamp(a, "dset")
    entry_srd(a)
    stamp(a, "karg")
    emit(a, [pf('x', 0, 0), pf('w', 0, 0), pf('x', 1, 1), pf('w', 1, 1), pf('x', 2, 2), pf('w', 2, 2)])
    stamp(a, "pf0")
    emit(a, [dma(0, j) for j in range(5)])
    entry_srd2(a)
    stamp(a, "g0")
    addr1_setup(a)
    emit(a, [dma(1, j) for j in range(5)])
    stamp(a, "g1")
    addr2_setup(a)
    a("v_mov_b32 v8, 0")
    a("s_mov_b32 s%d, %d" % (S_OFF, WS_FLAG))
    a("buffer_load_dword v9, v8, s[%d:%d], s%d offen sc1" % (S_WS, S_WS + 3, S_OFF))
    emit(a, [dma(2, j) for j in range(5)])
    stamp(a, "g2")
    vm_wait_roles(a, 10, 8)
    stamp(a, "g0land")
    a("s_barrier")
    stamp(a, "t0")
    lq = LQ(a)
    cur = [lq.issue(x) for x in p1_reads(0, 0)]
    SCH = {'e': [2, 1, 1, 1, 1, 2, 1, 1, 1, 1], 'f': [2, 2, 2, 2, 2, 2, 0, 0, 0, 0], 'm': [2, 2, 1, 1, 1, 1, 1, 1, 1, 1], 'g': [2, 2, 2, 1, 1, 1, 1, 1, 1, 0]}[SCHED]
    needs12 = lambda ids: [ids[2 + 2 * (i // 2) + 1] for i in range(10)]
    needs10 = lambda ids: [ids[2 * (i // 2) + 1] for i in range(10)]
    for s in range(10):
        ex0 = {}
        if s >= 1: ex0 = {2: dma(s + 2, 3), 6: dma(s + 2, 4)}
        nxt = half(a, lq, p1_mfmas(s, 0, s == 0), needs12(cur), p1_reads(s, 1), SCH, ex0)
        if s == 8: vm_wait_roles(a, 5, 0)
        elif s == 9: a("s_waitcnt vmcnt(5)")
        else: vm_wait_roles(a, 5, 4)
        a("s_barrier")
        stamp(a, "s%d" % s)
        if s == 2:
            a("v_readfirstlane_b32 s%d, v9" % S_NONCE)
            a("s_nop 3")
            a("s_add_u32 s%d, s%d, 0x9e3779b9" % (S_NONCE, S_NONCE))
        pfl = []
        if s == 0: pfl = [pf('x', 3, 3), pf('w', 3, 3)]
        if s == 2: pfl = [pf('x', 4, 0), pf('w', 4, 0)]
        if s == 4: pfl = [pf('q', 0, 1)]
        if s == 5: pfl = [pf('q', 1, 2)]
        if s == 6: pfl = [pf('q', 2, 3)]
        ex1 = {1: dma(s + 3, 0), 4: dma(s + 3, 1), 7: dma(s + 3, 2), 9: pfl}
        if s == 9: ex1 = {1: dma(12, 0), 3: dma(12, 1), 5: dma(12, 2), 7: dma(12, 3), 9: dma(12, 4)}
        rd = p1_reads(s + 1, 0) if s < 9 else p2_reads(0)
        cur = half(a, lq, p1_mfmas(s, 1, False), needs12(nxt), rd, SCH, ex1)
    stamp(a, "p1end")
    lb, ld = a.newlabel("e1b"), a.newlabel("e1d")
    a("s_cmp_eq_u32 s%d, 0" % S_BR)
    a("s_cbranch_scc0 %s" % lb)
    epi1_A(a)
    a("s_branch %s" % ld)
    a.label(lb)
    a("s_waitcnt lgkmcnt(0)")
    epi1_B(a)
    emit(a, p2_reads(0))
    a.label(ld)
    stamp(a, "e1end")
    wo_pf_setup(a, V_PF)
    def wopf(a):
        if 'nopf' in OPT: return
        def body(a):
            a("s_cmp_eq_u32 s%d, 0" % S_BR)
            l = a.newlabel("wpf")
            a("s_cbranch_scc1 %s" % l)
            wo_pf_issue(a, V_PF, S_WOB)
            a.label(l)
            wo_pf_issue(a, V_PF, S_WO)
        on_wave(a, 4, body)
    a("s_waitcnt lgkmcnt(0)")
    lq = LQ(a)
    cur = None
    SCH2 = {'e': [1] * 10, 'f': [2, 2, 2, 2, 2, 0, 0, 0, 0, 0], 'm': [2, 1, 1, 1, 1, 1, 1, 1, 1, 0], 'g': [2, 2, 1, 1, 1, 1, 1, 1, 0, 0]}[SCHED]
    for u in range(10):
        extra = {}
        rd = []
        if u + 1 < 10:
            if (u + 1) % 2 == 0:
                nx = 10 + (u + 1) // 2
                if nx == 13: vm_wait_roles(a, 5, 0)
                elif nx == 14: role_branch(a, "s_waitcnt vmcnt(0)", None)
                else:
                    nsa = 5 + (10 if 'dbl' in OPT else 5)
                    lB, lD = a.newlabel("wb"), a.newlabel("wd")
                    a("s_cmp_eq_u32 s%d, 0" % S_BR)
                    a("s_cbranch_scc0 %s" % lB)
                    a("s_waitcnt vmcnt(%d)" % nsa)
                    a("s_branch %s" % lD)
                    a.label(lB)
                    a("s_waitcnt vmcnt(6)")
                    a.label(lD)
                a("s_barrier")
                if 13 <= nx + 2 <= 14: extra = {1: dma(nx + 2, 0), 3: dma(nx + 2, 1), 5: dma(nx + 2, 2), 7: dma(nx + 2, 3), 9: dma(nx + 2, 4)}
                if nx == 13:
                    def pub(a):
                        a("s_lshl_b32 s%d, s%d, 4" % (S_T0, S_G))
                        a("s_add_u32 s%d, s%d, s%d" % (S_T0, S_T0, S_R))
                        a("s_lshl_b32 s%d, s%d, 7" % (S_T0, S_T0))
                        a("s_mul_i32 s%d, s%d, %d" % (S_T1, S_BR, F_PART - F_KV))
                        a("s_add_u32 s%d, s%d, s%d" % (S_T0, S_T0, S_T1))
                        a("s_add_u32 s%d, s%d, %d" % (S_T0, S_T0, F_KV))
                        publish(a, S_T0, 0)
                    extra[0] = [pub]
            rd = p2_reads(u + 1)
        if u == 6: extra[3] = [wopf]
        needs = needs10(cur) if cur else [0] * 10
        cur = half(a, lq, p2_mfmas(u), needs, rd, SCH2, extra)
    a("s_nop 4")
    stamp(a, "p2end")
    epi2(a)
    stamp(a, "e2end")

LDS_K, LDS_V = 0, 65536
LDS_KVR = 147456
A_KA0, A_KA1, A_KAT, A_VA0, A_VA1, A_QA0, A_QA1, A_QAT, A_OM, A_OT = 10, 11, 12, 13, 14, 15, 16, 17, 18, 19
A_AM, A_Q1, A_Q2, A_KB, A_VB, A_S, A_O = 20, 32, 36, 40, 64, 96, 240
S_TAU0 = S_U
S_EXV, S_HI, S_LO = 62, 64, 66
NEG_BIG = f2u(-3.0e38)
S_KV0, S_KV1, S_KV2 = 20, 21, 22
A_L16 = 88

def jkey(r, h):
    m, b, e = r >> 3, (r >> 2) & 1, r & 3
    return 16 * b + 8 * m + 4 * h + e
def diag_mask(r):
    return (sum(1 << i for i in range(32) if jkey(r, 0) <= i), sum(1 << i for i in range(32) if jkey(r, 1) <= i))

def p2_common_setup(a, attn):
    a("v_and_b32 v4, 1, v%d" % V_KG)
    a("v_lshrrev_b32 v5, 1, v%d" % V_KG)
    a("v_lshrrev_b32 v6, 2, v%d" % V_N)
    a("v_and_b32 v7, 3, v%d" % V_N)
    a("s_and_b32 s%d, s%d, 3" % (S_T0, S_WV))
    a("s_lshr_b32 s%d, s%d, 2" % (S_T1, S_WV))
    a("s_mul_i32 s%d, s%d, 5120" % (S_T1, S_T1))
    a("s_lshl_b32 s%d, s%d, 10" % (S_T2, S_T0))
    a("s_add_u32 s%d, s%d, s%d" % (S_T2, S_T2, S_T1))
    a("s_add_u32 s%d, s%d, 4096" % (S_T3, S_T1))
    a("s_lshl_b32 s%d, s%d, 2" % (S_T4, S_T0))
    def addr(dst, n, kgimg, tbit, sbase, extra):
        a("v_lshl_add_u32 v9, v%d, 2, v%d" % (kgimg, n))
        a("v_and_b32 v9, 15, v9")
        a("v_lshl_add_u32 v9, v%d, 4, v9" % kgimg)
        a("v_lshlrev_b32 v9, 4, v9")
        a("v_lshl_add_u32 v9, v%d, 3, v9" % tbit)
        a("s_add_u32 s%d, s%d, %d" % (S_T5, sbase, extra))
        a("v_add_u32 v%d, s%d, v9" % (dst, S_T5))
    a("v_lshl_add_u32 v8, v5, 3, v6")
    addr(A_QA0, 8, 7, 4, S_T2, LDS_Q)
    a("v_add_u32 v30, 4, v8")
    addr(A_QA1, 30, 7, 4, S_T2, LDS_Q)
    a("v_add_u32 v31, s%d, v6" % S_T4)
    addr(A_QAT, 31, 7, 4, S_T3, LDS_Q)
    if attn:
        a("v_and_b32 v28, 1, v7")
        a("v_lshl_add_u32 v28, v4, 1, v28")
        a("v_lshrrev_b32 v29, 1, v7")
        addr(A_KA0, 8, 28, 29, S_T2, LDS_K)
        addr(A_KA1, 30, 28, 29, S_T2, LDS_K)
        addr(A_KAT, 31, 28, 29, S_T3, LDS_K)
    a("v_and_b32 v4, 31, v%d" % V_LANE)
    a("v_lshrrev_b32 v5, 5, v%d" % V_LANE)
    if attn:
        a("v_cmp_gt_u32_e64 s[%d:%d], 16, v4" % (S_M0, S_M0 + 1))
        a("s_sub_u32 s%d, s%d, 16" % (S_T5, S_T4))
        a("v_add_u32 v6, s%d, v4" % S_T5)
        a("v_and_b32 v6, 15, v6")
        a("v_cndmask_b32_e64 v6, v6, v4, s[%d:%d]" % (S_M0, S_M0 + 1))
        a("v_mov_b32 v7, s%d" % S_T3)
        a("v_mov_b32 v8, s%d" % S_T2)
        a("v_cndmask_b32_e64 v7, v7, v8, s[%d:%d]" % (S_M0, S_M0 + 1))
        for m in range(2):
            a("v_add_u32 v8, %d, v5" % (2 * m))
            a("v_lshl_add_u32 v9, v8, 2, v6")
            a("v_and_b32 v9, 15, v9")
            a("v_lshl_add_u32 v9, v8, 4, v9")
            a("v_lshl_add_u32 v9, v9, 4, v7")
            a("v_add_u32 v%d, %d, v9" % (A_VA0 + m, LDS_V))
    a("s_lshl_b32 s%d, s%d, 2" % (S_T1, S_G))
    a("s_add_u32 s%d, s%d, s%d" % (S_T1, S_T1, S_T0))
    a("s_lshl_b32 s%d, s%d, 3" % (S_T2, S_R))
    a("s_lshr_b32 s%d, s%d, 2" % (S_T3, S_WV))
    a("s_lshl_b32 s%d, s%d, 1" % (S_T3, S_T3))
    a("s_add_u32 s%d, s%d, s%d" % (S_T2, S_T2, S_T3))
    a("s_mul_i32 s%d, s%d, 20480" % (S_T2, S_T2))
    a("s_mul_i32 s%d, s%d, %d" % (S_T3, S_BR, O_BR))
    a("s_add_u32 s%d, s%d, s%d" % (S_T2, S_T2, S_T3))
    a("s_add_u32 s%d, s%d, %d" % (S_T2, S_T2, WS_O))
    a("v_lshrrev_b32 v6, 4, v4")
    a("s_movk_i32 s%d, 20480" % S_T3)
    a("v_mul_u32_u24 v6, s%d, v6" % S_T3)
    a("v_and_b32 v7, 15, v4")
    a("v_lshl_add_u32 v6, v7, 4, v6")
    a("v_add_u32 v6, s%d, v6" % S_T2)
    a("s_lshr_b32 s%d, s%d, 1" % (S_T3, S_T1))
    a("s_lshl_b32 s%d, s%d, 10" % (S_T3, S_T3))
    a("s_and_b32 s%d, s%d, 1" % (S_T4, S_T1))
    a("s_lshl_b32 s%d, s%d, 9" % (S_T4, S_T4))
    a("s_add_u32 s%d, s%d, s%d" % (S_T3, S_T3, S_T4))
    a("v_lshl_add_u32 v7, v5, 8, v6")
    a("v_add_u32 v%d, s%d, v7" % (A_OM, S_T3))
    a("s_lshr_b32 s%d, s%d, 3" % (S_T3, S_T1))
    a("s_add_u32 s%d, s%d, 16" % (S_T3, S_T3))
    a("s_lshl_b32 s%d, s%d, 10" % (S_T3, S_T3))
    a("s_and_b32 s%d, s%d, 6" % (S_T4, S_T1))
    a("s_lshl_b32 s%d, s%d, 7" % (S_T4, S_T4))
    a("s_add_u32 s%d, s%d, s%d" % (S_T3, S_T3, S_T4))
    a("s_and_b32 s%d, s%d, 1" % (S_T4, S_T1))
    a("s_lshl_b32 s%d, s%d, 3" % (S_T4, S_T4))
    a("s_add_u32 s%d, s%d, s%d" % (S_T3, S_T3, S_T4))
    a("v_add_u32 v%d, s%d, v6" % (A_OT, S_T3))
    a("s_mov_b32 s%d, 0" % S_HI); a("s_mov_b32 s%d, -1" % (S_HI + 1))
    a("s_mov_b32 s%d, -1" % S_LO); a("s_mov_b32 s%d, 0" % (S_LO + 1))

def q_frag_reads():
    return ["ds_read_b64_tr_b16 %s, v%d" % (vr(A_Q1, 2), A_QA0),
            "ds_read_b64_tr_b16 %s, v%d" % (vr(A_Q1 + 2, 2), A_QA1),
            "ds_read_b64_tr_b16 %s, v%d" % (vr(A_Q2, 2), A_QAT)]
def q_frag_fix(a):
    a("v_cndmask_b32_e64 v%d, v%d, 0, s[%d:%d]" % (A_Q2, A_Q2, S_HI, S_HI + 1))
    a("v_cndmask_b32_e64 v%d, v%d, 0, s[%d:%d]" % (A_Q2 + 1, A_Q2 + 1, S_HI, S_HI + 1))

def o_epilogue(a, eps=False):
    O = A_O
    a("v_cndmask_b32_e64 v30, v%d, v%d, s[%d:%d]" % (O + 12, O + 8, S_HI, S_HI + 1))
    if eps: a("v_add_f32 v30, 0x%x, v30" % f2u(1e-6))
    a("v_rcp_f32 v30, v30")
    a("s_nop 0")
    for k in range(0, 12, 2):
        a("v_pk_mul_f32 %s, %s, v[30:31] op_sel_hi:[1,0]" % (vr(O + k, 2), vr(O + k, 2)))
    for k in range(6): a("v_cvt_pk_bf16_f32 v%d, v%d, v%d" % (O + k, O + 2 * k, O + 2 * k + 1))
    for fl in ([ST, ""] if 'dbl' in OPT else [ST]):
        a("buffer_store_dwordx4 %s, v%d, s[%d:%d], 0 offen %s" % (vr(O, 4), A_OM, S_WS, S_WS + 3, fl))
        a("s_mov_b64 exec, s[%d:%d]" % (S_LO, S_LO + 1))
        a("buffer_store_dwordx2 %s, v%d, s[%d:%d], 0 offen %s" % (vr(O + 4, 2), A_OT, S_WS, S_WS + 3, fl))
        a("s_mov_b64 exec, -1")

def attn_setup(a):
    p2_common_setup(a, True)
    for r in range(16):
        lo, hi = diag_mask(r)
        a("s_mov_b32 s%d, 0x%x" % (S_MASK + 2 * r, lo)); a("s_mov_b32 s%d, 0x%x" % (S_MASK + 2 * r + 1, hi))
    a("v_mov_b32 v30, 0xffff")
    a("v_mov_b32 v31, 0xffff0000")
    for k in range(8):
        a("v_cndmask_b32_e64 v4, 0, v30, s[%d:%d]" % (S_MASK + 4 * k, S_MASK + 4 * k + 1))
        a("v_cndmask_b32_e64 v5, 0, v31, s[%d:%d]" % (S_MASK + 4 * k + 2, S_MASK + 4 * k + 3))
        a("v_or_b32 v%d, v4, v5" % (A_AM + k))
    a("v_mov_b32 v4, 0x3f803f80")
    for k in range(24): a("v_mov_b32 v%d, v4" % (A_VB + k))
    for b in range(3):
        a("v_mov_b32 v%d, 0" % (A_KB + 8 * b + 6)); a("v_mov_b32 v%d, 0" % (A_KB + 8 * b + 7))
    a("v_mov_b32 v%d, 0" % (A_Q2 + 2)); a("v_mov_b32 v%d, 0" % (A_Q2 + 3))
    a("s_mov_b32 s%d, 0x000fffff" % S_EXV); a("s_mov_b32 s%d, 0x000fffff" % (S_EXV + 1))

def k_reads(tau, buf):
    b = A_KB + 8 * buf
    return ["ds_read_b64_tr_b16 %s, v%d offset:%d" % (vr(b, 2), A_KA0, tau * 5120),
            "ds_read_b64_tr_b16 %s, v%d offset:%d" % (vr(b + 2, 2), A_KA1, tau * 5120),
            "ds_read_b64_tr_b16 %s, v%d offset:%d" % (vr(b + 4, 2), A_KAT, tau * 5120)]
def v_reads(tau, buf):
    b = A_VB + 8 * buf
    return ["s_mov_b64 exec, s[%d:%d]" % (S_EXV, S_EXV + 1),
            "ds_read_b128 %s, v%d offset:%d" % (vr(b, 4), A_VA0, tau * 5120),
            "ds_read_b128 %s, v%d offset:%d" % (vr(b + 4, 4), A_VA1, tau * 5120),
            "s_mov_b64 exec, -1"]

def attn_unit(a, stubs, mid, qk_extra):
    S = lambda t: A_S + 16 * t
    order = [8, 0, 1, 2, 3, 4, 5, 6, 7]
    emit(a, q_frag_reads())
    emit(a, k_reads(order[0], 0)); emit(a, k_reads(order[1], 1))
    a("s_waitcnt lgkmcnt(6)")
    q_frag_fix(a)
    accs = [28, 29, 30, 31]
    acc_init = [False] * 4
    def max_ops(base):
        L = []
        for k in range(0, 16, 2):
            ai = (k // 2) % 4
            if not acc_init[ai]:
                L.append("v_max_f32 v%d, v%d, v%d" % (accs[ai], base + k, base + k + 1)); acc_init[ai] = True
            else:
                L.append("v_max3_f32 v%d, v%d, v%d, v%d" % (accs[ai], base + k, base + k + 1, accs[ai]))
        return L
    merge = ["v_cndmask_b32_e64 v%d, v%d, v%d, s[%d:%d]" % (S(0) + r, S(0) + r, S(8) + r, S_MASK + 2 * r, S_MASK + 2 * r + 1) for r in range(16)]
    for idx, tau in enumerate(order):
        buf = idx % 3
        if idx + 2 < 9: emit(a, k_reads(order[idx + 2], (idx + 2) % 3))
        a("s_waitcnt lgkmcnt(%d)" % (3 * min(2, 8 - idx)))
        kb = A_KB + 8 * buf
        if tau < 8:
            lf, lr = a.newlabel("fill"), a.newlabel("fret")
            a("s_cmp_gt_u32 s%d, %d" % (S_TAU0, tau))
            a("s_cbranch_scc1 %s" % lf)
            stubs.append((lf, lr, S(tau)))
        work = []
        if idx == 3: work = merge[:]
        if idx == 4: work = max_ops(S(0))
        if idx >= 5: work = max_ops(S(order[idx - 3]))
        a(mfma32(S(tau), kb, A_Q1, "0"))
        a(mfma32(S(tau), kb + 4, A_Q2))
        if tau < 8: a.label(lr)
        emit(a, qk_extra.get(idx))
        emit(a, work)
    emit(a, max_ops(S(5)))
    emit(a, max_ops(S(6)))
    emit(a, mid)
    emit(a, v_reads(8, 0)); emit(a, v_reads(0, 1))
    emit(a, max_ops(S(7)))
    a("v_max3_f32 v28, v28, v29, v30")
    a("v_max_f32 v28, v28, v31")
    a("v_mov_b32 v29, v28")
    a("s_nop 1")
    a("v_permlane32_swap_b32 v28, v29")
    a("s_nop 1")
    a("v_max_f32 v28, v28, v29")
    def sm_ops(base):
        L = ["v_pk_add_f32 %s, %s, v[28:29] op_sel_hi:[1,0] neg_lo:[0,1] neg_hi:[0,1]" % (vr(base + k, 2), vr(base + k, 2)) for k in range(0, 16, 2)]
        E = [["v_exp_f32 v%d, v%d" % (base + k, base + k), "v_exp_f32 v%d, v%d" % (base + k + 1, base + k + 1)] for k in range(0, 16, 2)]
        out = L[:2]
        for k in range(8):
            out += E[k]
            if k + 2 < 8: out.append(L[k + 2])
            if k >= 1: out.append("v_cvt_pk_bf16_f32 v%d, v%d, v%d" % (base + k - 1, base + 2 * (k - 1), base + 2 * (k - 1) + 1))
        out.append("s_nop 0")
        out.append("v_cvt_pk_bf16_f32 v%d, v%d, v%d" % (base + 7, base + 14, base + 15))
        return out
    emit(a, sm_ops(S(0)))
    for k in range(8): a("v_and_b32 v%d, v%d, v%d" % (S(0) + 8 + k, S(0) + k, A_AM + k))
    for k in range(8): a("v_xor_b32 v%d, v%d, v%d" % (S(0) + k, S(0) + k, S(0) + 8 + k))
    a("s_waitcnt lgkmcnt(0)")
    emit(a, v_reads(1, 2))
    def guarded(mms, tau):
        def f(a):
            l = a.newlabel("pvs")
            a("s_cmp_gt_u32 s%d, %d" % (S_TAU0, tau))
            a("s_cbranch_scc1 %s" % l)
            for x in mms: a(x)
            a.label(l)
        return f
    pv = [mfma32(A_O, A_VB + 0, S(0) + 8, "0"), mfma32(A_O, A_VB + 4, S(0) + 12),
          guarded([mfma32(A_O, A_VB + 8, S(0)), mfma32(A_O, A_VB + 12, S(0) + 4)], 0)]
    for tau in range(1, 8):
        vb = (tau + 1) % 3
        sm = sm_ops(S(tau))
        n, m, done = len(sm), len(pv), 0
        for i, x in enumerate(sm):
            emit(a, x)
            want = min(m, ((i + 1) * m + n // 2) // n) if i >= 1 else 0
            while done < want:
                emit(a, pv[done]); done += 1
        while done < m:
            emit(a, pv[done]); done += 1
        a("s_waitcnt lgkmcnt(0)")
        if tau + 1 < 8: emit(a, v_reads(tau + 1, (tau + 2) % 3))
        b = A_VB + 8 * vb
        pv = [guarded([mfma32(A_O, b, S(tau)), mfma32(A_O, b + 4, S(tau) + 4)], tau)]
    a("s_nop 1")
    emit(a, pv)
    a("s_nop 15")
    o_epilogue(a)

def round_advance(a, attn=True):
    for v in ((A_KA0, A_KA1, A_KAT, A_VA0, A_VA1) if attn else ()) + (A_QA0, A_QA1, A_QAT):
        a("v_add_u32 v%d, %d, v%d" % (v, 2 * 5120, v))
    a("v_add_u32 v%d, %d, v%d" % (A_OM, 4 * 20480, A_OM))
    a("v_add_u32 v%d, %d, v%d" % (A_OT, 4 * 20480, A_OT))

def set_tau0(a):
    a("s_lshl_b32 s%d, s%d, 2" % (S_T0, S_R))
    a("s_lshr_b32 s%d, s%d, 2" % (S_T1, S_WV))
    a("s_add_u32 s%d, s%d, s%d" % (S_T0, S_T0, S_T1))
    a("s_add_u32 s%d, s%d, s%d" % (S_T0, S_T0, S_DB))
    a("s_sub_i32 s%d, 8, s%d" % (S_TAU0, S_T0))
    a("s_max_i32 s%d, s%d, 0" % (S_TAU0, S_TAU0))

def emit_stubs(a, stubs):
    for lf, lr, base in stubs:
        a.label(lf)
        a("v_mov_b32 v%d, 0x%x" % (base, NEG_BIG))
        for k in range(1, 16): a("v_mov_b32 v%d, v%d" % (base + k, base))
        a("s_branch %s" % lr)

def kv_params(a):
    a("s_lshl_b32 s%d, s%d, 6" % (S_T0, S_G))
    a("s_lshl_b32 s%d, s%d, 2" % (S_T1, S_R))
    a("s_add_u32 s%d, s%d, s%d" % (S_T0, S_T0, S_T1))
    a("s_sub_i32 s%d, s%d, 8" % (S_T0, S_T0))
    a("s_mul_i32 s%d, s%d, 5120" % (S_T0, S_T0))
    a("s_lshl_b32 s%d, s%d, 10" % (S_KV1, S_WV))
    a("s_add_u32 s%d, s%d, s%d" % (S_KV0, S_T0, S_KV1))
    a("s_lshl_b32 s%d, s%d, 2" % (S_T3, S_R))
    a("s_sub_i32 s%d, 8, s%d" % (S_T3, S_T3))
    a("s_max_i32 s%d, s%d, 0" % (S_T3, S_T3))
    a("s_mul_i32 s%d, s%d, 5120" % (S_KV2, S_T3))
    a("v_lshlrev_b32 v%d, 4, v%d" % (A_L16, V_LANE))

def kv_load(tensor, k):
    def f(a):
        l = a.newlabel("kvl")
        a("s_add_u32 s%d, s%d, %d" % (S_T4, S_KV1, k * 8192))
        a("s_cmp_lt_u32 s%d, s%d" % (S_T4, S_KV2))
        a("s_cbranch_scc1 %s" % l)
        if k == 7:
            a("s_cmp_ge_u32 s%d, 61440" % S_T4)
            a("s_cbranch_scc1 %s" % l)
        a("s_add_u32 m0, s%d, %d" % (S_T4, LDS_K if tensor == 0 else LDS_V))
        a("s_add_u32 s%d, s%d, %d" % (S_OFF, S_KV0, WS_KV + tensor * 8 * 64 * 5120 + k * 8192))
        a("buffer_load_dwordx4 v%d, s[%d:%d], s%d offen %s lds" % (A_L16, S_WS, S_WS + 3, S_OFF, LD))
        a.label(l)
    return f

def oa_flag_off(a, dst, half_):
    a("s_lshl_b32 s%d, s%d, 1" % (dst, S_R))
    a("s_add_u32 s%d, s%d, %d" % (dst, dst, half_))
    a("s_lshl_b32 s%d, s%d, 3" % (dst, dst))
    a("s_add_u32 s%d, s%d, s%d" % (dst, dst, S_G))
    a("s_lshl_b32 s%d, s%d, 5" % (dst, dst))
    a("s_add_u32 s%d, s%d, s%d" % (dst, dst, S_WV))
    a("s_lshl_b32 s%d, s%d, 2" % (dst, dst))
    a("s_add_u32 s%d, s%d, %d" % (dst, dst, F_OA))

def phase2A(a, stubs):
    attn_setup(a)
    kv_params(a)
    a("v_and_b32 v7, 3, v%d" % V_LANE)
    a("v_lshlrev_b32 v7, 7, v7")
    a("v_lshrrev_b32 v8, 2, v%d" % V_LANE)
    a("v_lshlrev_b32 v8, 12, v8")
    a("v_sub_u32 v7, v8, v7")
    a("s_and_b32 s%d, s%d, 4" % (S_T0, S_G))
    a("s_and_b32 s%d, s%d, 3" % (S_T1, S_G))
    a("s_lshr_b32 s%d, s%d, 1" % (S_T1, S_T1))
    a("s_add_u32 s%d, s%d, s%d" % (S_T0, S_T0, S_T1))
    a("s_lshl_b32 s%d, s%d, 4" % (S_T0, S_T0))
    a("s_add_u32 s%d, s%d, s%d" % (S_T0, S_T0, S_R))
    a("s_lshl_b32 s%d, s%d, 7" % (S_T0, S_T0))
    a("s_add_u32 s%d, s%d, %d" % (S_T0, S_T0, F_KV))
    a("v_add_u32 v7, s%d, v7" % S_T0)
    a("s_min_u32 s%d, s%d, 2" % (S_T1, S_R))
    a("s_lshl_b32 s%d, 2, s%d" % (S_T1, S_T1))
    a("s_sub_u32 s%d, s%d, 1" % (S_T1, S_T1))
    a("s_mul_i32 s%d, s%d, 17" % (S_T1, S_T1))
    a("s_mov_b32 s%d, 0" % S_T2)
    stamp(a, "aset")
    poll(a, 7, S_T2, "s%d" % S_T1, "0")
    a("s_mov_b32 s%d, 0x000fffff" % S_EXV); a("s_mov_b32 s%d, 0x000fffff" % (S_EXV + 1))
    a("s_waitcnt lgkmcnt(0)")
    a("s_barrier")
    stamp(a, "poll1")
    emit(a, [kv_load(0, k) for k in range(8)])
    a("s_waitcnt vmcnt(0)")
    a("s_barrier")
    stamp(a, "kvld")
    for rnd in range(2):
        a("s_mov_b32 s%d, %d" % (S_DB, 2 * rnd))
        set_tau0(a)
        if rnd == 0:
            def mid(a):
                a("s_waitcnt vmcnt(0)")
                a("s_barrier")
                stamp(a, "vld")
            qk_extra = {i: kv_load(1, i - 0) for i in range(8)}
        else:
            def mid(a):
                a("s_waitcnt vmcnt(0)")
                oa_flag_off(a, S_T0, 0)
                publish(a, S_T0, None)
            qk_extra = {}
        attn_unit(a, stubs, mid, qk_extra)
        stamp(a, "rnd%d" % rnd)
        if rnd == 0: round_advance(a)

def apply_phase(a):
    piece_decode(a)
    a("v_cmp_gt_u32_e64 s[%d:%d], 21, v7" % (S_M0, S_M0 + 1))
    a("v_cmp_gt_u32_e64 s[%d:%d], 5, v6" % (S_M1, S_M1 + 1))
    a("s_lshl_b32 s%d, s%d, 17" % (S_T0, S_G))
    a("s_lshr_b32 s%d, s%d, 1" % (S_T1, S_WV))
    a("s_lshl_b32 s%d, s%d, 11" % (S_T1, S_T1))
    a("s_add_u32 s%d, s%d, s%d" % (S_T0, S_T0, S_T1))
    a("s_add_u32 s%d, s%d, %d" % (S_T0, S_T0, WS_PART))
    a("v_lshlrev_b32 v5, 4, v5")
    a("s_and_b64 s[%d:%d], s[%d:%d], s[%d:%d]" % (S_M0, S_M0 + 1, S_M0, S_M0 + 1, S_M1, S_M1 + 1))
    P = A_S
    a("s_mov_b64 exec, s[%d:%d]" % (S_M0, S_M0 + 1))
    for r in range(16):
        a("s_add_u32 s%d, s%d, %d" % (S_OFF, S_T0, r * 8192))
        a("buffer_load_dwordx4 %s, v5, s[%d:%d], s%d offen %s" % (vr(P + 4 * r, 4), S_WS, S_WS + 3, S_OFF, LD))
    a("s_mov_b64 exec, -1")
    a("v_add_u32 v%d, %d, v5" % (A_O, LDS_KVR))
    a("v_add_u32 v%d, s%d, v%d" % (A_O, S_T1, A_O))
    a("s_mov_b64 s[%d:%d], s[%d:%d]" % (S_MASK, S_MASK + 1, S_M0, S_M0 + 1))
    p3_dma_setup(a)
    wo_load(a, S_WOB)
    p2_common_setup(a, False)
    a("v_mov_b32 v%d, 0" % (A_Q2 + 2)); a("v_mov_b32 v%d, 0" % (A_Q2 + 3))
    a("v_and_b32 v4, 31, v%d" % V_LANE)
    a("v_min_u32 v4, 20, v4")
    a("v_lshrrev_b32 v5, 5, v%d" % V_LANE)
    a("v_mul_u32_u24 v6, 48, v5")
    a("v_add_u32 v6, v6, v4")
    a("s_and_b32 s%d, s%d, 3" % (S_T0, S_WV))
    a("s_lshl_b32 s%d, s%d, 11" % (S_T0, S_T0))
    a("s_add_u32 s%d, s%d, %d" % (S_T0, S_T0, LDS_KVR))
    a("v_lshlrev_b32 v6, 4, v6")
    a("v_add_u32 v6, s%d, v6" % S_T0)
    a("v_lshlrev_b32 v7, 4, v4")
    a("v_add_u32 v7, s%d, v7" % S_T0)
    l1, l2 = a.newlabel("pw"), a.newlabel("pd2")
    a("s_cmp_lt_u32 s%d, 4" % S_WV)
    a("s_cbranch_scc1 %s" % l1)
    a("s_waitcnt vmcnt(10)")
    a("s_branch %s" % l2)
    a.label(l1)
    a("s_waitcnt vmcnt(15)")
    a.label(l2)
    for st in (8, 4, 2, 1):
        for r in range(st):
            for k in (0, 2):
                a("v_pk_add_f32 %s, %s, %s" % (vr(P + 4 * r + k, 2), vr(P + 4 * r + k, 2), vr(P + 4 * (r + st) + k, 2)))
    a("s_mov_b64 exec, s[%d:%d]" % (S_MASK, S_MASK + 1))
    a("ds_write_b128 v%d, %s" % (A_O, vr(P, 4)))
    a("s_mov_b64 exec, -1")
    a("s_waitcnt lgkmcnt(0)")
    a("s_barrier")
    stamp(a, "kvred")
    F = A_KB
    a("ds_read_b128 %s, v6" % vr(F, 4))
    a("ds_read_b128 %s, v6 offset:%d" % (vr(F + 4, 4), 24 * 16))
    a("ds_read_b128 %s, v7 offset:%d" % (vr(F + 8, 4), 4 * 24 * 16))
    emit(a, q_frag_reads())
    a("s_waitcnt lgkmcnt(3)")
    KV1, KV2 = A_VB, A_VB + 4
    for k in range(4): a("v_cvt_pk_bf16_f32 v%d, v%d, v%d" % (KV1 + k, F + 2 * k, F + 2 * k + 1))
    for k in range(2): a("v_cvt_pk_bf16_f32 v%d, v%d, v%d" % (KV2 + k, F + 8 + 2 * k, F + 9 + 2 * k))
    a("v_mov_b32 v%d, 0" % (KV2 + 2)); a("v_mov_b32 v%d, 0" % (KV2 + 3))
    for rnd in range(2):
        a("s_waitcnt lgkmcnt(0)")
        q_frag_fix(a)
        a("s_nop 1")
        a(mfma32(A_O, KV1, A_Q1, "0"))
        a(mfma32(A_O, KV2, A_Q2))
        if rnd == 0:
            round_advance(a, False) if False else None
            for v in (A_QA0, A_QA1, A_QAT): a("v_add_u32 v%d, %d, v%d" % (v, 2 * 5120, v))
            emit(a, q_frag_reads())
            a("s_nop 9")
        else:
            a("s_nop 15")
        o_epilogue(a, eps=True)
        if rnd == 0:
            a("v_add_u32 v%d, %d, v%d" % (A_OM, 4 * 20480, A_OM))
            a("v_add_u32 v%d, %d, v%d" % (A_OT, 4 * 20480, A_OT))

C_DMA = 20
C_WA, C_WT, C_OF, C_OUT, C_XA = 10, 11, 12, 13, 14
C_O = 32
C_WB = 112
C_ACC = 172
C_R = 212

def p3_dma_setup(a):
    a("s_mul_i32 s%d, s%d, 160" % (S_T0, S_G))
    a("s_movk_i32 s%d, 6554" % S_T2)
    a("s_movk_i32 s%d, 1280" % S_T3)
    for j in range(5):
        a("v_add_u32 v4, %d, v%d" % (64 * j, V_LANE))
        a("v_mul_u32_u24 v8, s%d, v4" % S_T2)
        a("v_lshrrev_b32 v8, 16, v8")
        a("v_mul_u32_u24 v9, 10, v8")
        a("v_sub_u32 v9, v4, v9")
        a("v_mul_u32_u24 v8, s%d, v8" % S_T3)
        a("v_lshl_add_u32 v8, v9, 4, v8")
        a("v_add_u32 v%d, s%d, v8" % (C_DMA + j, S_T0))

def p3_setup(a):
    a("s_mul_i32 s%d, s%d, 160" % (S_T0, S_G))
    a("v_lshrrev_b32 v4, 1, v%d" % V_KG)
    a("v_and_b32 v5, 1, v%d" % V_KG)
    a("v_lshrrev_b32 v6, 2, v%d" % V_N)
    a("v_and_b32 v7, 3, v%d" % V_N)
    a("v_mul_u32_u24 v8, 20, v4")
    a("v_lshl_add_u32 v8, v5, 2, v8")
    a("v_add_u32 v8, v8, v6")
    a("s_movk_i32 s%d, 160" % S_T1)
    a("v_mul_u32_u24 v8, s%d, v8" % S_T1)
    a("v_lshl_add_u32 v8, v7, 3, v8")
    a("s_mul_i32 s%d, s%d, 51200" % (S_T2, S_CS))
    a("v_add_u32 v%d, s%d, v8" % (C_WA, S_T2))
    a("v_mul_u32_u24 v8, 40, v%d" % V_KG)
    a("v_add3_u32 v8, v8, v6, 16")
    a("v_mul_u32_u24 v8, s%d, v8" % S_T1)
    a("v_lshl_add_u32 v8, v7, 3, v8")
    a("v_add_u32 v%d, s%d, v8" % (C_WT, S_T2))
    a("v_lshlrev_b32 v%d, 4, v%d" % (C_OF, V_LANE))
    a("s_lshl_b32 s%d, s%d, 4" % (S_T2, S_RG))
    a("v_add_u32 v8, s%d, v%d" % (S_T2, V_N))
    a("s_movk_i32 s%d, 2560" % S_T2)
    a("v_mul_u32_u24 v8, s%d, v8" % S_T2)
    a("v_lshl_add_u32 v8, v%d, 3, v8" % V_KG)
    a("v_add_u32 v%d, s%d, v8" % (C_OUT, S_T0))
    a("s_mul_i32 s%d, s%d, 10240" % (S_T2, S_RG))
    a("s_add_u32 s%d, s%d, %d" % (S_T2, S_T2, 102400))
    a("v_add_u32 v%d, s%d, v%d" % (C_XA, S_T2, C_OF))

def wo_load(a, srd_wo):
    for k in range(3):
        l = a.newlabel("wol")
        if k == 2:
            a("s_cmp_ge_u32 s%d, 4" % S_WV)
            a("s_cbranch_scc1 %s" % l)
        a("s_add_u32 s%d, s%d, %d" % (S_T0, S_WV, 8 * k))
        a("s_mul_i32 s%d, s%d, %d" % (S_OFF, S_T0, 32 * 1280))
        a("s_mul_i32 s%d, s%d, 5120" % (S_T0, S_T0))
        for j in range(5):
            a("s_add_u32 m0, s%d, %d" % (S_T0, j * 1024))
            a("s_nop 0")
            a("buffer_load_dwordx4 v%d, s[%d:%d], s%d offen %s lds" % (C_DMA + j, srd_wo, srd_wo + 3, S_OFF, DML))
        a.label(l)

def p3_oloads(a, br, s_row0, nset):
    for k in range(nset):
        a("s_lshr_b32 s%d, s%d, 4" % (S_T0, s_row0))
        a("s_add_u32 s%d, s%d, s%d" % (S_T0, S_T0, S_RG))
        a("s_add_u32 s%d, s%d, %d" % (S_T0, S_T0, 4 * k))
        a("s_mul_i32 s%d, s%d, 20480" % (S_T0, S_T0))
        a("s_add_u32 s%d, s%d, %d" % (S_T0, S_T0, WS_O + br * O_BR))
        a("s_lshl_b32 s%d, s%d, 13" % (S_T1, S_CS))
        a("s_add_u32 s%d, s%d, s%d" % (S_T1, S_T1, S_T0))
        for i in range(8):
            a("s_add_u32 s%d, s%d, %d" % (S_OFF, S_T1, i * 1024))
            a("buffer_load_dwordx4 %s, v%d, s[%d:%d], s%d offen %s" % (vr(C_O + 40 * k + 4 * i, 4), C_OF, S_WS, S_WS + 3, S_OFF, LD))
        a("s_lshl_b32 s%d, s%d, 11" % (S_T1, S_CS))
        a("s_add_u32 s%d, s%d, s%d" % (S_T1, S_T1, S_T0))
        for i in range(2):
            a("s_add_u32 s%d, s%d, %d" % (S_OFF, S_T1, (16 + i) * 1024))
            a("buffer_load_dwordx4 %s, v%d, s[%d:%d], s%d offen %s" % (vr(C_O + 40 * k + 32 + 4 * i, 4), C_OF, S_WS, S_WS + 3, S_OFF, LD))

def p3_wreads(i):
    wb = C_WB + 20 * (i % 3)
    L = []
    for T in range(5):
        for rd in range(2):
            if i < 8: L.append("ds_read_b64_tr_b16 %s, v%d offset:%d" % (vr(wb + 4 * T + 2 * rd, 2), C_WA, i * 6400 + rd * 1280 + 32 * T))
            else: L.append("ds_read_b64_tr_b16 %s, v%d offset:%d" % (vr(wb + 4 * T + 2 * rd, 2), C_WT, (i - 8) * 25600 + rd * 3200 + 32 * T))
    return L

def p3_job(a, br, s_row0, nset, tag):
    lq = LQ(a)
    ids = {}
    ids[0] = [lq.issue(x) for x in p3_wreads(0)]
    ids[1] = [lq.issue(x) for x in p3_wreads(1)]
    for i in range(10):
        wb = C_WB + 20 * (i % 3)
        rd = p3_wreads(i + 2) if i + 2 < 10 else []
        ids[i + 2] = []
        remaining = (9 - i) if nset == 1 else None
        if nset == 1: a("s_waitcnt vmcnt(%d)" % (9 - i))
        elif i == 0: a("s_waitcnt vmcnt(%d)" % 9)
        else: a("s_waitcnt vmcnt(%d)" % (9 - i))
        mm = []
        for T in range(5):
            for k in range(nset):
                mm.append((T, mfma16(C_ACC + 20 * k + 4 * T, wb + 4 * T, C_O + 40 * k + 4 * i, "0" if i == 0 else None)))
        per = (len(rd) + len(mm) - 1) // len(mm) if rd else 0
        for (T, m) in mm:
            lq.need(ids[i][2 * T + 1])
            a(m)
            for _ in range(per):
                if rd: ids[i + 2].append(lq.issue(rd.pop(0)))
    stamp(a, "j1" + tag)
    def send(tiles):
        def f(a):
            for k in range(nset):
                for n_, T in enumerate(tiles):
                    a("ds_write_b128 v%d, %s offset:%d" % (C_XA, vr(C_ACC + 20 * k + 4 * T, 4), k * 5120 + T * 1024))
            a("s_waitcnt lgkmcnt(0)")
        return f
    def recv(tiles):
        def f(a):
            a("s_mul_i32 s%d, s%d, 2560" % (S_T0, s_row0))
            a("s_add_u32 s%d, s%d, %d" % (S_T0, S_T0, br * 1280))
            for k in range(nset):
                for n_, T in enumerate(tiles):
                    a("ds_read_b128 %s, v%d offset:%d" % (vr(C_R + 4 * n_, 4), C_XA, k * 5120 + T * 1024))
                for n_, T in enumerate(tiles):
                    a("s_waitcnt lgkmcnt(%d)" % (len(tiles) - 1 - n_))
                    d = C_ACC + 20 * k + 4 * T
                    for q in (0, 2): a("v_pk_add_f32 %s, %s, %s" % (vr(d + q, 2), vr(d + q, 2), vr(C_R + 4 * n_ + q, 2)))
                    a("v_cvt_pk_bf16_f32 v%d, v%d, v%d" % (d, d, d + 1))
                    a("v_cvt_pk_bf16_f32 v%d, v%d, v%d" % (d + 1, d + 2, d + 3))
                    a("buffer_store_dwordx2 %s, v%d, s[%d:%d], s%d offen offset:%d %s" % (vr(d, 2), C_OUT, S_OUT, S_OUT + 3, S_T0, 32 * T, OUTST))
                if k + 1 < nset: a("s_add_u32 s%d, s%d, %d" % (S_T0, S_T0, 64 * 2560))
        return f
    a("s_nop 7")
    role_branch(a, send([3, 4]), send([0, 1, 2]))
    a("s_barrier")
    role_branch(a, recv([0, 1, 2]), recv([3, 4]))
    stamp(a, "j2" + tag)

def poll_oa(a, half_):
    a("v_lshrrev_b32 v7, 3, v%d" % V_LANE)
    a("v_and_b32 v8, 7, v%d" % V_LANE)
    a("v_lshlrev_b32 v7, 7, v7")
    a("v_lshl_add_u32 v7, v8, 2, v7")
    a("s_lshl_b32 s%d, s%d, 1" % (S_T0, S_R))
    a("s_add_u32 s%d, s%d, %d" % (S_T0, S_T0, half_))
    a("s_lshl_b32 s%d, s%d, 10" % (S_T0, S_T0))
    a("s_add_u32 s%d, s%d, %d" % (S_T0, S_T0, F_OA))
    poll(a, 7, S_T0, "-1", "-1")

S_JR = S_DB
def phase3A(a):
    p3_dma_setup(a)
    a("s_waitcnt vmcnt(0)")
    oa_flag_off(a, S_T0, 1)
    publish(a, S_T0, None)
    stamp(a, "attn")
    a("s_barrier")
    wo_load(a, S_WO)
    p3_setup(a)
    poll_oa(a, 1)
    a("s_waitcnt vmcnt(0)")
    a("s_barrier")
    stamp(a, "j0a")
    a("s_lshl_b32 s%d, s%d, 7" % (S_JR, S_R))
    a("s_add_u32 s%d, s%d, 64" % (S_JR, S_JR))
    p3_oloads(a, 0, S_JR, 1)
    p3_job(a, 0, S_JR, 1, "a")

def phaseB(a):
    a("v_lshlrev_b32 v7, 7, v%d" % V_LANE)
    a("s_lshl_b32 s%d, s%d, 11" % (S_T0, S_G))
    a("s_add_u32 s%d, s%d, %d" % (S_T0, S_T0, F_PART))
    poll(a, 7, S_T0, "0xffff", "0")
    a("s_waitcnt lgkmcnt(0)")
    a("s_barrier")
    stamp(a, "poll1")
    apply_phase(a)
    stamp(a, "kvld")
    a("s_waitcnt vmcnt(0)")
    a("s_barrier")
    a("s_lshl_b32 s%d, s%d, 3" % (S_T0, S_R))
    a("s_add_u32 s%d, s%d, s%d" % (S_T0, S_T0, S_G))
    a("s_lshl_b32 s%d, s%d, 7" % (S_T0, S_T0))
    a("s_add_u32 s%d, s%d, %d" % (S_T0, S_T0, F_OB))
    publish(a, S_T0, 0)
    stamp(a, "attn")
    p3_setup(a)
    a("v_lshlrev_b32 v7, 7, v%d" % V_LANE)
    a("s_lshl_b32 s%d, s%d, 10" % (S_T0, S_R))
    a("s_add_u32 s%d, s%d, %d" % (S_T0, S_T0, F_OB))
    poll(a, 7, S_T0, "0xff", "0")
    a("s_barrier")
    stamp(a, "j0b")
    a("s_lshl_b32 s%d, s%d, 7" % (S_JR, S_R))
    p3_oloads(a, 1, S_JR, 2)
    p3_job(a, 1, S_JR, 2, "b")
    a("s_barrier")
    wo_load(a, S_WO)
    poll_oa(a, 0)
    a("s_waitcnt vmcnt(0)")
    a("s_barrier")
    stamp(a, "j0a")
    a("s_lshl_b32 s%d, s%d, 7" % (S_JR, S_R))
    p3_oloads(a, 0, S_JR, 1)
    p3_job(a, 0, S_JR, 1, "a")

def epoch_update(a):
    l = a.newlabel("ep")
    a("s_cmp_eq_u32 s2, 0")
    a("s_cbranch_scc0 %s" % l)
    a("v_lshlrev_b32 v7, 7, v%d" % V_LANE)
    for k in range(4):
        a("s_mov_b32 s%d, %d" % (S_T0, F_KV + k * 64 * 128))
        poll(a, 7, S_T0, "-1", "-1")
    a("s_mov_b32 s%d, %d" % (S_T0, WS_FLAG))
    publish(a, S_T0, 0)
    a.label(l)

HEADER = """; sliding-window attention block + linear attention block, one fused launch (generated by gen3.py)
"""
def build():
    out = [HEADER, "; @launch grid=(256,1,1) block=(512,1,1) lds=163840\n"]
    out.append('.amdgcn_target "amdgcn-amd-amdhsa--gfx950"\n.text\n')
    a = Asm()
    stubs = []
    entry(a)
    phase1(a)
    if 'p1only' in OPT: a("s_branch L_fin2")
    lb = a.newlabel("brB")
    a("s_cmp_eq_u32 s%d, 0" % S_BR)
    a("s_cbranch_scc0 %s" % lb)
    phase2A(a, stubs)
    phase3A(a)
    a("s_branch L_fin")
    emit_stubs(a, stubs)
    a.label(lb)
    phaseB(a)
    a.label("L_fin")
    epoch_update(a)
    a.label("L_fin2")
    stamp(a, "end")
    if STAMPS: a("s_waitcnt vmcnt(0)")
    stamp_store(a)
    a.label("L_end"); a("s_endpgm")
    a.label("L_codeend")
    out.append(".globl %s\n.p2align 8\n.type %s,@function\n%s:\n" % (NAME, NAME, NAME) + a.text())
    if 'nocodepf' not in OPT:
        out.append(".set CODE_TOTAL, L_codeend - L_pcbase\n.set CODE_CHUNK, ((CODE_TOTAL / 8 + 127) / 128) * 128\n.set CODE_LAST, CODE_TOTAL - 4\n")
    out.append('.section .rodata,"a"\n.p2align 6\n')
    out.append((".amdhsa_kernel %s\n  .amdhsa_next_free_vgpr 256\n  .amdhsa_next_free_sgpr 102\n  .amdhsa_accum_offset 256\n"
                "  .amdhsa_group_segment_fixed_size 0\n  .amdhsa_kernarg_size 72\n  .amdhsa_user_sgpr_count 2\n"
                "  .amdhsa_user_sgpr_kernarg_segment_ptr 1\n  .amdhsa_system_sgpr_workgroup_id_x 1\n.end_amdhsa_kernel\n") % NAME)
    return "".join(out)

if __name__ == "__main__":
    OPT = set(sys.argv[2:])
    for x in sys.argv:
        if x.startswith("st="):
            STAMPS = True
            STMAP = {n: i for i, n in enumerate(x[3:].split(","))}
    for x in OPT:
        if x.startswith('sch='): SCHED = x[4:]
        if x.startswith('wsb='): WS_BASE = int(x[4:]) << 20
        if x.startswith('outst='): OUTST = x[6:].replace('+', ' ')
    if 'pfnt' in OPT: PFL = "nt"
    if 'dmant' in OPT: DML = "nt"
    if 'p1only' in OPT: S_ST = 84
    open(sys.argv[1], "w").write(build())
```

```python
import sys, struct
from asmlib import Asm, vr, sr

NAME = "concat_heads__sliding_block__linear_attn_block__prompt_kernel"
WS_KV   = 0x0000000
WS_O    = 0x0A00000
WS_PART = 0x0F00000
WS_FLAG = 0x1000000
WS_STAMP = 0x1080000
WS_SIZE = 0x1100000
O_BR = 128 * 20480
F_KV, F_PART, F_OA, F_OB = WS_FLAG + 0x1000, WS_FLAG + 0x5000, WS_FLAG + 0x9000, WS_FLAG + 0x11000
SPIN_LIMIT = 40000
ST, LD = "sc1", "sc1"
PFL = ""
DML = ""
STAMPS, STMAP, OPT = False, None, set()
SCHED = 'e'
WS_BASE = 0
OUTST = ''

S_NONCE = 3
S_ST = 4
S_I, S_U = 22, 23
S_X, S_W, S_WS, S_OUT, S_WO, S_WOB = 24, 28, 32, 36, 40, 44
S_BR, S_R, S_G, S_WV, S_RG, S_CS = 48, 49, 50, 51, 52, 53
S_T0, S_T1, S_T2, S_T3, S_T4, S_T5 = 54, 55, 56, 57, 58, 59
S_DB, S_OFF = 60, 61
S_M0, S_M1, S_M2 = 62, 64, 66
S_D, S_SB, S_SOFF, S_STEP, S_J = 68, 72, 76, 77, 78
S_G1 = 82
S_MASK = 68

V_IMG, V_LANE, V_N, V_KG = 0, 1, 2, 3
V_DMA, V_XA, V_WA, V_PF, V_XT, V_WB0, V_WB1 = 10, 15, 19, 29, 32, 40, 60
V_ACC, V_ACC2, V_XP, V_DMA2, V_PFD, V_WA2 = 80, 120, 160, 240, 245, 246
LDS_W = 65536
XSLOT, WSLOT = 16384, 20480
LOG2E = 1.4426950408889634
QSCALE = LOG2E / (20.0 ** 0.5)

def f2u(x): return struct.unpack("<I", struct.pack("<f", x))[0]
def mfma16(d, x, y, c=None):
    return "v_mfma_f32_16x16x32_bf16 %s, %s, %s, %s" % (vr(d, 4), vr(x, 4), vr(y, 4), vr(d, 4) if c is None else c)
def mfma32(d, x, y, c=None):
    return "v_mfma_f32_32x32x16_bf16 %s, %s, %s, %s" % (vr(d, 16), vr(x, 4), vr(y, 4), vr(d, 16) if c is None else c)
def emit(a, item):
    if item is None: return
    if callable(item): item(a)
    elif isinstance(item, (list, tuple)):
        for x in item: emit(a, x)
    else: a(item)

class LQ:
    def __init__(self, a): self.a, self.n, self.done = a, 0, 0
    def issue(self, s, cnt=1):
        emit(self.a, s); self.n += cnt; return self.n
    def need(self, idx):
        if idx > self.done:
            cnt = self.n - idx
            self.a("s_waitcnt lgkmcnt(%d)" % min(cnt, 15))
            self.done = idx if cnt <= 15 else self.n - 15
    def drain(self):
        if self.n > self.done:
            self.a("s_waitcnt lgkmcnt(0)"); self.done = self.n

NST = 8
def rec(f, *args):
    r = Asm(); r.nlab = 900000; f(r, *args)
    return [l.strip() for l in r.lines]
def stamp(a, name):
    if not STAMPS or STMAP is None or name not in STMAP: return
    i = STMAP[name]
    a("%s s[%d:%d]" % ("s_memtime" if 'cyc' in OPT else "s_memrealtime", S_ST + 2 * i, S_ST + 2 * i + 1))
def stamp_dbg(a):
    a("s_memrealtime s[20:21]")
    a("s_load_dwordx2 s[24:25], s[0:1], 56")
    a("s_waitcnt lgkmcnt(0)")
    a("s_mov_b32 s26, 256"); a("s_mov_b32 s27, 0x20000")
    a("s_mov_b64 exec, 1")
    a("v_mov_b32 v4, 0")
    a("s_not_b32 s22, s101")
    for reg, slot in [(22, 0), (20, 1)] + [(S_ST + 2 * i, 2 + i) for i in range(NST)]:
        a("v_mov_b32 v5, s%d" % reg)
        a("buffer_atomic_umax v5, v4, s[24:27], 0 offen offset:%d" % (slot * 4))
    a("v_mov_b32 v5, s101")
    a("buffer_atomic_umax v5, v4, s[24:27], 0 offen offset:%d" % (10 * 4))
    a("s_mov_b64 exec, -1")

def stamp_store(a):
    if not STAMPS: return
    if 'dbg' in OPT: return stamp_dbg(a)
    a("s_memrealtime s[20:21]")
    a("s_memtime s[24:25]")
    a("s_waitcnt lgkmcnt(0)")
    a("s_lshl_b32 s%d, s2, 3" % S_T0)
    a("s_add_u32 s%d, s%d, s%d" % (S_T0, S_T0, S_WV))
    a("s_lshl_b32 s%d, s%d, 6" % (S_T0, S_T0))
    a("s_add_u32 s%d, s%d, %d" % (S_T0, S_T0, WS_STAMP))
    a("s_mov_b64 exec, 1")
    a("v_mov_b32 v4, 0")
    for i in range(NST):
        a("v_mov_b32 v5, s%d" % (S_ST + 2 * i))
        a("buffer_store_dword v5, v4, s[%d:%d], s%d offen offset:%d" % (S_WS, S_WS + 3, S_T0, i * 4))
    a("s_getreg_b32 s21, hwreg(HW_REG_XCC_ID)")
    a("s_getreg_b32 s22, hwreg(HW_REG_HW_ID)")
    for reg, slot in ((20, 15), (101, 14), (100, 13), (21, 12), (22, 11), (24, 10)):
        a("v_mov_b32 v5, s%d" % reg)
        a("buffer_store_dword v5, v4, s[%d:%d], s%d offen offset:%d" % (S_WS, S_WS + 3, S_T0, slot * 4))
    a("s_mov_b64 exec, -1")

def minwrap(a, v, m, tmp):
    a("v_subrev_u32 v%d, %d, v%d" % (tmp, m, v))
    a("v_min_u32 v%d, v%d, v%d" % (v, v, tmp))
def srd(a, d, lo, hi, size):
    a("s_mov_b32 s%d, s%d" % (d, lo)); a("s_mov_b32 s%d, s%d" % (d + 1, hi))
    a("s_mov_b32 s%d, %d" % (d + 2, size)); a("s_mov_b32 s%d, 0x20000" % (d + 3))
def role_branch(a, fw, fx):
    lx, ld = a.newlabel("rx"), a.newlabel("rd")
    a("s_cmp_eq_u32 s%d, 0" % S_CS)
    a("s_cbranch_scc0 %s" % (lx if fx else ld))
    emit(a, fw)
    if fx:
        a("s_branch %s" % ld)
        a.label(lx)
        emit(a, fx)
    a.label(ld)
def on_wave(a, wave, f):
    l = a.newlabel("ow")
    a("s_cmp_eq_u32 s%d, %d" % (S_WV, wave))
    a("s_cbranch_scc0 %s" % l)
    emit(a, f)
    a.label(l)

def entry(a):
    a("s_cmp_ge_u32 s2, 256")
    a("s_cbranch_scc1 L_end")
    if STAMPS:
        a("s_memrealtime s[100:101]")
        a("s_memtime s[62:63]")
    a("s_load_dwordx16 s[4:19], s[0:1], 0")
    a("s_load_dwordx2 s[20:21], s[0:1], 64")
    a("s_and_b32 s%d, s2, 7" % S_T0)
    a("s_lshr_b32 s%d, s2, 3" % S_I)
    a("v_lshrrev_b32 v4, 6, v0")
    a("v_and_b32 v%d, 63, v0" % V_LANE)
    a("v_and_b32 v%d, 15, v0" % V_N)
    a("v_readfirstlane_b32 s%d, v4" % S_WV)
    a("v_lshrrev_b32 v%d, 4, v%d" % (V_KG, V_LANE))
    a("s_and_b32 s%d, s%d, 1" % (S_BR, S_T0))
    a("s_lshr_b32 s%d, s%d, 1" % (S_T2, S_T0))
    a("s_and_b32 s%d, s%d, 1" % (S_T3, S_T2))
    a("s_lshl_b32 s%d, s%d, 3" % (S_T3, S_T3))
    a("s_and_b32 s%d, s%d, 7" % (S_T4, S_I))
    a("s_add_u32 s%d, s%d, s%d" % (S_R, S_T3, S_T4))
    a("s_lshr_b32 s%d, s%d, 1" % (S_T3, S_T2))
    a("s_lshr_b32 s%d, s%d, 3" % (S_T4, S_I))
    a("s_lshl_b32 s%d, s%d, 2" % (S_T5, S_T3))
    a("s_add_u32 s%d, s%d, s%d" % (S_G, S_T5, S_T4))
    a("s_lshl_b32 s%d, s%d, 1" % (S_T3, S_T3))
    a("s_and_b32 s%d, s%d, 1" % (S_T5, S_T4))
    a("s_add_u32 s%d, s%d, s%d" % (S_T3, S_T3, S_T5))
    a("s_lshr_b32 s%d, s%d, 1" % (S_T4, S_T4))
    a("s_lshl_b32 s%d, s%d, 2" % (S_T4, S_T4))
    a("s_add_u32 s%d, s%d, s%d" % (S_G1, S_T3, S_T4))
    a("s_and_b32 s%d, s%d, 3" % (S_RG, S_WV))
    a("s_lshr_b32 s%d, s%d, 2" % (S_CS, S_WV))
    if 'nocodepf' not in OPT:
        def cpf(a):
            a("s_getpc_b64 s[56:57]")
            a.label("L_pcbase")
            a("s_and_b32 s%d, s%d, 7" % (S_T4, S_I))
            a("s_mul_i32 s%d, s%d, CODE_CHUNK" % (S_T4, S_T4))
            a("v_lshlrev_b32 v4, 7, v%d" % V_LANE)
            a("v_add_u32 v4, s%d, v4" % S_T4)
            a("v_min_u32 v4, CODE_LAST, v4")
            a("global_load_dword v%d, v4, s[56:57]" % V_PFD)
        on_wave(a, 7, cpf)

def dma_setup(a):
    stamp(a, "ids")
    def fw(a):
        a("s_mul_i32 s%d, s%d, %d" % (S_T0, S_RG, 16 * 3840))
        a("s_mul_i32 s%d, s%d, 160" % (S_T1, S_G))
        a("s_mul_i32 s%d, s%d, 320" % (S_T2, S_G1))
        a("s_cmp_eq_u32 s%d, 0" % S_BR)
        a("s_cselect_b32 s%d, s%d, s%d" % (S_T2, S_T2, S_T1))
        a("s_cselect_b32 s%d, 0, 1120" % S_T5)
        a("s_add_u32 s%d, s%d, s%d" % (S_T2, S_T2, S_T0))
        a("s_add_u32 s%d, s%d, 1280" % (S_T2, S_T2))
        a("s_add_u32 s%d, s%d, s%d" % (S_T0, S_T0, S_T1))
        a("s_movk_i32 s%d, 3277" % S_T1)
        a("s_movk_i32 s%d, 3840" % S_T3)
        a("s_mov_b32 s%d, %d" % (S_T4, 245760 - 160))
        for j in range(5):
            p, kk, q, u, t = 4, 5, 6, 7, 8
            a("v_add_u32 v%d, %d, v%d" % (p, 64 * j, V_LANE))
            a("v_mul_u32_u24 v%d, s%d, v%d" % (kk, S_T1, p))
            a("v_lshrrev_b32 v%d, 16, v%d" % (kk, kk))
            a("v_mul_u32_u24 v%d, 20, v%d" % (q, kk))
            a("v_lshrrev_b32 v%d, 2, v%d" % (u, kk))
            a("v_sub_u32 v%d, v%d, v%d" % (q, p, q))
            a("v_and_b32 v%d, 2, v%d" % (u, u))
            a("v_sub_u32 v%d, v%d, v%d" % (u, q, u))
            a("v_add_u32 v%d, 20, v%d" % (t, u))
            a("v_min_u32 v%d, v%d, v%d" % (u, u, t))
            a("v_add_u32 v%d, 6, v%d" % (t, u))
            a("v_lshrrev_b32 v%d, 4, v%d" % (t, t))
            a("v_mul_u32_u24 v%d, s%d, v%d" % (kk, S_T3, kk))
            a("v_lshl_add_u32 v%d, v%d, 4, v%d" % (kk, u, kk))
            a("v_mad_u32_u24 v%d, v%d, s%d, v%d" % (q, t, S_T5, kk))
            a("v_add_u32 v%d, s%d, v%d" % (V_DMA + j, S_T2, q))
            a("v_mad_u32_u24 v%d, v%d, s%d, v%d" % (q, t, S_T4, kk))
            a("v_add_u32 v%d, s%d, v%d" % (V_DMA2 + j, S_T0, q))
        a("s_mul_i32 s%d, s%d, 5120" % (S_T0, S_RG))
        for k in range(4): a("s_add_u32 s%d, s%d, %d" % (S_SB + k, S_T0, LDS_W + k * WSLOT))
        a("s_mov_b32 s%d, %d" % (S_STEP, 64 * 3840))
        for k in range(1, 4): a("s_mov_b32 s%d, 0" % (S_J + k))
        a("v_and_b32 v4, 31, v%d" % V_LANE)
        a("v_lshrrev_b32 v5, 5, v%d" % V_LANE)
        a("v_min_u32 v4, 19, v4")
        a("s_lshr_b32 s%d, s%d, 2" % (S_T0, S_G))
        a("v_mul_u32_u24 v6, 13, v4"); a("v_lshrrev_b32 v6, 7, v6")
        a("v_mul_u32_u24 v7, 52, v4"); a("v_lshrrev_b32 v7, 8, v7")
        a("v_mul_u32_u24 v8, 5, v7"); a("v_sub_u32 v8, v4, v8")
        a("v_lshlrev_b32 v8, 7, v8")
        a("v_lshl_add_u32 v6, v5, 6, v6")
        a("s_lshl_b32 s%d, s%d, 1" % (S_T2, S_I))
        a("v_add_u32 v6, s%d, v6" % S_T2)
        a("v_mul_u32_u24 v6, s%d, v6" % S_T3)
        a("v_and_b32 v9, 1, v7")
        a("s_movk_i32 s%d, 1280" % S_T2)
        a("v_mul_u32_u24 v9, s%d, v9" % S_T2)
        a("v_add3_u32 v6, v6, v9, v8")
        a("s_mul_i32 s%d, s%d, 640" % (S_T0, S_T0))
        a("s_add_u32 s%d, s%d, 1280" % (S_T2, S_T0))
        a("v_add_u32 v%d, s%d, v6" % (V_PF + 1, S_T2))
        a("v_lshl_add_u32 v7, v5, 7, v7")
        a("s_lshl_b32 s%d, s%d, 2" % (S_T2, S_I))
        a("v_add_u32 v7, s%d, v7" % S_T2)
        a("v_mul_u32_u24 v7, s%d, v7" % S_T3)
        a("v_add3_u32 v%d, v7, v8, s%d" % (V_PF + 2, S_T0))
        a("v_mov_b32 v%d, 0" % V_PF)
    def fx(a):
        a("s_lshl_b32 s%d, s%d, 7" % (S_T0, S_R))
        a("s_lshl_b32 s%d, s%d, 5" % (S_T1, S_RG))
        a("s_add_u32 s%d, s%d, s%d" % (S_T0, S_T0, S_T1))
        a("s_mul_i32 s%d, s%d, 1280" % (S_T0, S_T0))
        a("s_movk_i32 s%d, 1280" % S_T1)
        a("v_lshrrev_b32 v4, 3, v%d" % V_LANE)
        a("v_and_b32 v5, 7, v%d" % V_LANE)
        a("v_xor_b32 v5, v5, v4")
        a("v_mul_u32_u24 v4, s%d, v4" % S_T1)
        a("v_lshl_add_u32 v4, v5, 4, v4")
        a("v_add_u32 v%d, s%d, v4" % (V_DMA, S_T0))
        for j in range(1, 5): a("v_mov_b32 v%d, v%d" % (V_DMA + j, V_DMA))
        for j in range(5): a("v_mov_b32 v%d, 0" % (V_DMA2 + j))
        a("s_lshl_b32 s%d, s%d, 12" % (S_T0, S_RG))
        for k in range(4): a("s_add_u32 s%d, s%d, %d" % (S_SB + k, S_T0, k * XSLOT))
        a("s_movk_i32 s%d, 128" % S_STEP)
        for k in range(1, 4): a("s_mov_b32 s%d, %d" % (S_J + k, k * 10240))
        a("v_and_b32 v4, 31, v%d" % V_LANE)
        a("v_lshrrev_b32 v5, 5, v%d" % V_LANE)
        a("s_lshr_b32 s%d, s%d, 3" % (S_T0, S_R))
        a("s_lshl_b32 s%d, s%d, 5" % (S_T0, S_T0))
        a("s_add_u32 s%d, s%d, s%d" % (S_T0, S_T0, S_I))
        a("s_mul_i32 s%d, s%d, %d" % (S_T0, S_T0, 32 * 1280))
        a("v_mul_u32_u24 v6, s%d, v4" % S_T1)
        a("v_lshl_add_u32 v6, v5, 7, v6")
        a("v_add_u32 v%d, s%d, v6" % (V_PF, S_T0))
        a("v_mov_b32 v%d, 0" % (V_PF + 1)); a("v_mov_b32 v%d, 0" % (V_PF + 2))
    role_branch(a, fw, fx)
    a("s_mov_b32 s%d, 0" % S_SOFF)

def entry_srd(a):
    a("s_waitcnt lgkmcnt(0)")
    a("s_cmp_eq_u32 s%d, 0" % S_BR)
    a("s_cselect_b32 s%d, s4, s10" % S_X)
    a("s_cselect_b32 s%d, s5, s11" % (S_X + 1))
    a("s_mov_b32 s%d, 2621440" % (S_X + 2))
    a("s_mov_b32 s%d, 0x20000" % (S_X + 3))
    a("s_cselect_b32 s%d, s6, s12" % S_W)
    a("s_cselect_b32 s%d, s7, s13" % (S_W + 1))
    a("s_mov_b32 s%d, 2457600" % (S_W + 2))
    a("s_mov_b32 s%d, 0x20000" % (S_W + 3))
    a("s_cmp_eq_u32 s%d, 0" % S_CS)
    a("s_cselect_b32 s%d, s%d, s%d" % (S_D, S_W, S_X))
    a("s_cselect_b32 s%d, s%d, s%d" % (S_D + 1, S_W + 1, S_X + 1))
    a("s_cselect_b32 s%d, s%d, s%d" % (S_D + 2, S_W + 2, S_X + 2))
    a("s_mov_b32 s%d, 0x20000" % (S_D + 3))

def entry_srd2(a):
    if WS_BASE:
        a("s_add_u32 s20, s20, %d" % WS_BASE)
        a("s_addc_u32 s21, s21, 0")
    srd(a, S_WS, 20, 21, WS_SIZE)
    srd(a, S_OUT, 16, 17, 5242880)
    srd(a, S_WO, 8, 9, 819200)
    srd(a, S_WOB, 14, 15, 819200)
    if STAMPS:
        a("s_mov_b32 s101, s100")
        a("s_mov_b32 s100, s62")
        if S_ST == 4:
            for i in range(NST): a("s_mov_b32 s%d, 0" % (S_ST + 2 * i))

def pf(kind, idx, k):
    def f(a):
        if 'nopf' in OPT: return
        def body(a):
            if kind == 'x': a("s_mov_b32 s%d, %d" % (S_OFF, idx * 256)); s_, v = S_X, V_PF
            elif kind == 'w': a("s_mov_b32 s%d, %d" % (S_OFF, idx * 128 * 3840)); s_, v = S_W, V_PF + 1
            else: a("s_mov_b32 s%d, %d" % (S_OFF, idx * 256 * 3840)); s_, v = S_W, V_PF + 2
            a("buffer_load_dword v%d, v%d, s[%d:%d], s%d offen %s" % (V_PFD, v, s_, s_ + 3, S_OFF, PFL))
        on_wave(a, (4 + k) if kind == 'x' else k, body)
    return f

def dma(sig, j):
    def f(a):
        if 'nodma' in OPT and sig >= 3: return
        slot = sig % 4
        def body(a):
            a("s_add_u32 m0, s%d, %d" % (S_SB + slot, j * 1024))
            if sig < 10:
                if 1 <= j <= 3:
                    a("s_add_u32 s%d, s%d, s%d" % (S_OFF, S_SOFF, S_J + j)); so = S_OFF
                else:
                    a("s_nop 0"); so = S_SOFF
                a("buffer_load_dwordx4 v%d, s[%d:%d], s%d offen %s lds" % (V_DMA + j, S_D, S_D + 3, so, DML))
            else:
                a("s_mov_b32 s%d, %d" % (S_OFF, (sig - 10) * 128 * 3840))
                a("buffer_load_dwordx4 v%d, s[%d:%d], s%d offen %s lds" % (V_DMA2 + j, S_D, S_D + 3, S_OFF, DML))
        if sig >= 10 or j == 4: role_branch(a, body, None)
        else: body(a)
        if sig < 10 and j == 4: a("s_add_u32 s%d, s%d, s%d" % (S_SOFF, S_SOFF, S_STEP))
    return f

def img_pos(a, dst, tmp):
    a("v_lshl_add_u32 v%d, v%d, 2, v%d" % (tmp, V_KG, V_N))
    a("v_and_b32 v%d, 15, v%d" % (tmp, tmp))
    a("v_lshl_add_u32 v%d, v%d, 4, v%d" % (tmp, V_KG, tmp))
    a("v_lshlrev_b32 v%d, 4, v%d" % (dst, tmp))

E_, RP, BB, W4, TM = V_ACC2, V_ACC2 + 1, V_ACC2 + 2, V_ACC2 + 3, V_ACC2 + 4
def addr1_setup(a):
    a("v_and_b32 v4, 7, v%d" % V_N)
    a("s_lshl_b32 s%d, s%d, 12" % (S_T0, S_RG))
    a("v_lshlrev_b32 v5, 7, v%d" % V_N)
    a("v_xor_b32 v4, v4, v%d" % V_KG)
    a("v_lshl_add_u32 v4, v4, 4, v5")
    a("s_xor_b32 s%d, s%d, 1" % (S_T5, S_CS))
    a("s_lshl_b32 s%d, s%d, 6" % (S_T1, S_T5))
    a("s_lshl_b32 s%d, s%d, 11" % (S_T2, S_CS))
    a("s_or_b32 s%d, s%d, s%d" % (S_T1, S_T1, S_T2))
    a("s_or_b32 s%d, s%d, s%d" % (S_T1, S_T1, S_T0))
    a("v_xor_b32 v%d, s%d, v4" % (V_XA, S_T1))
    a("v_xor_b32 v%d, 0x800, v%d" % (V_XA + 1, V_XA))
    a("v_xor_b32 v%d, 64, v%d" % (V_XA + 2, V_XA))
    a("v_xor_b32 v%d, 64, v%d" % (V_XA + 3, V_XA + 1))
    a("v_and_b32 v4, 3, v%d" % V_N)
    a("v_lshrrev_b32 v%d, 2, v%d" % (RP, V_N))
    a("v_and_b32 v7, 1, v%d" % V_KG)
    a("v_lshl_add_u32 v%d, v%d, 3, v%d" % (RP, V_KG, RP))
    a("s_movk_i32 s%d, 320" % S_T1)
    a("v_lshlrev_b32 v7, 5, v7")
    a("v_mul_u32_u24 v%d, s%d, v%d" % (RP, S_T1, RP))
    a("v_lshl_add_u32 v%d, v4, 3, v7" % E_)
    a("v_add_u32 v%d, %d, v%d" % (RP, LDS_W, RP))
    a("v_add_u32 v%d, v%d, v%d" % (BB, RP, E_))
    a("s_mul_i32 s%d, s%d, 160" % (S_T2, S_CS))
    a("s_mul_i32 s%d, s%d, 80" % (S_T3, S_CS))
    a("s_mul_i32 s%d, s%d, 10240" % (S_T0, S_T5))
    a("s_mul_i32 s%d, s%d, 10240" % (S_T1, S_CS))
    def sA(T):
        a("s_add_u32 s%d, s%d, %d" % (S_T4, S_T2, 40 * T))
        a("s_add_u32 s%d, s%d, %d" % (S_T5, S_T3, (T >> 1) * 160 + 40 * (T & 1)))
        a("s_cmp_eq_u32 s%d, 0" % S_BR)
        a("s_cselect_b32 s%d, s%d, s%d" % (S_T4, S_T4, S_T5))
    for T in range(3):
        sA(T)
        a("s_add_u32 s%d, s%d, s%d" % (S_T5, S_T4, S_T0))
        a("v_add_u32 v%d, s%d, v%d" % (V_WA + T, S_T5, BB))
        a("s_add_u32 s%d, s%d, s%d" % (S_T5, S_T4, S_T1))
        a("v_add_u32 v%d, s%d, v%d" % (V_WA + 5 + T, S_T5, BB))
    sA(3)
    a("v_add_u32 v5, s%d, v%d" % (S_T4, E_))
    minwrap(a, 5, 320, TM)
    a("v_add_u32 v5, v5, v%d" % RP)
    a("v_add_u32 v%d, s%d, v5" % (V_WA + 3, S_T0))
    a("v_add_u32 v%d, s%d, v5" % (V_WA + 8, S_T1))
    a("s_cmp_eq_u32 s%d, 0" % S_BR)
    a("s_cselect_b32 s%d, s%d, s%d" % (S_T4, S_T2, S_T3))
    a("s_cselect_b32 s%d, 0, 80" % S_T5)
    a("s_add_u32 s%d, s%d, 32" % (S_T4, S_T4))
    a("v_mul_u32_u24 v%d, 40, v4" % (W4))
    a("v_lshrrev_b32 v5, 1, v4")
    a("v_add_u32 v%d, v%d, v7" % (W4, W4))
    a("v_mad_u32_u24 v5, v5, s%d, v%d" % (S_T5, W4))
    a("v_add_u32 v5, s%d, v5" % S_T4)
    minwrap(a, 5, 320, TM)
    a("v_add_u32 v5, v5, v%d" % RP)
    a("v_add_u32 v%d, s%d, v5" % (V_WA + 4, S_T0))
    a("v_add_u32 v%d, s%d, v5" % (V_WA + 9, S_T1))

def addr2_setup(a):
    a("s_mul_i32 s%d, s%d, 10240" % (S_T1, S_CS))
    for seg in range(2):
        for T in range(4):
            if seg == 1 and T == 3: continue
            a("s_add_u32 s%d, s%d, %d" % (S_T4, S_T1, seg * 160 + 40 * T))
            a("v_add_u32 v%d, s%d, v%d" % (V_WA2 + seg * 5 + T, S_T4, BB))
    a("v_add_u32 v5, 280, v%d" % E_)
    minwrap(a, 5, 320, TM)
    a("v_add3_u32 v%d, v5, v%d, s%d" % (V_WA2 + 8, RP, S_T1))
    a("s_add_u32 s%d, s%d, 32" % (S_T4, S_T1))
    a("v_add3_u32 v%d, v%d, v%d, s%d" % (V_WA2 + 4, W4, RP, S_T4))
    a("v_add_u32 v5, 192, v%d" % (W4))
    minwrap(a, 5, 320, TM)
    a("v_add3_u32 v%d, v5, v%d, s%d" % (V_WA2 + 9, RP, S_T1))
    img_pos(a, V_IMG, 4)

def p1_reads(s, hf):
    if 'noread' in OPT: return ["s_nop 0"] * 12
    slot = s % 4
    wb = V_WB0 if hf == 0 else V_WB1
    L = []
    for tp in range(2):
        dst = (V_XT + 4 * tp) if hf == 0 else (V_XP + (s * 2 + tp) * 4)
        L.append("ds_read_b128 %s, v%d offset:%d" % (vr(dst, 4), V_XA + hf * 2 + tp, slot * XSLOT))
    for T in range(5):
        for rd in range(2):
            L.append("ds_read_b64_tr_b16 %s, v%d offset:%d" % (vr(wb + 4 * T + 2 * rd, 2), V_WA + hf * 5 + T, slot * WSLOT + rd * 1280))
    return L
def p1_mfmas(s, hf, first):
    if 'nomfma' in OPT: return ["s_nop 0"] * 10
    wb = V_WB0 if hf == 0 else V_WB1
    return [mfma16(V_ACC + (tp * 5 + T) * 4, (V_XT + 4 * tp) if hf == 0 else (V_XP + (s * 2 + tp) * 4), wb + 4 * T, "0" if first else None)
            for T in range(5) for tp in range(2)]
def p2_reads(u):
    v, seg = u >> 1, u & 1
    slot = (10 + v) % 4
    wb = V_WB0 if (u & 1) == 0 else V_WB1
    return ["ds_read_b64_tr_b16 %s, v%d offset:%d" % (vr(wb + 4 * T + 2 * rd, 2), V_WA2 + seg * 5 + T, slot * WSLOT + rd * 1280)
            for T in range(5) for rd in range(2)]
def p2_mfmas(u):
    wb = V_WB0 if (u & 1) == 0 else V_WB1
    return [mfma16(V_ACC2 + (tp * 5 + T) * 4, V_XP + (u * 2 + tp) * 4, wb + 4 * T, "0" if u == 0 else None)
            for T in range(5) for tp in range(2)]

def half(a, lq, mf, needs, reads, sched, extra):
    ids = []
    reads = list(reads)
    for i, m in enumerate(mf):
        lq.need(needs[i])
        a(m)
        for _ in range(sched[i]):
            if reads: ids.append(lq.issue(reads.pop(0)))
        if i in extra: emit(a, extra[i])
    while reads: ids.append(lq.issue(reads.pop(0)))
    return ids

def epi1_A(a):
    a("s_lshr_b32 s%d, s%d, 2" % (S_T0, S_G1))
    a("s_lshl_b32 s%d, s%d, 3" % (S_T0, S_T0))
    a("s_and_b32 s%d, s%d, 3" % (S_T1, S_G1))
    a("s_lshl_b32 s%d, s%d, 1" % (S_T1, S_T1))
    a("s_add_u32 s%d, s%d, s%d" % (S_T0, S_T0, S_T1))
    a("s_add_u32 s%d, s%d, s%d" % (S_T0, S_T0, S_CS))
    a("s_lshl_b32 s%d, s%d, 6" % (S_T0, S_T0))
    a("s_lshl_b32 s%d, s%d, 2" % (S_T1, S_R))
    a("s_add_u32 s%d, s%d, s%d" % (S_T0, S_T0, S_T1))
    a("s_add_u32 s%d, s%d, s%d" % (S_T0, S_T0, S_RG))
    a("s_mul_i32 s%d, s%d, 5120" % (S_T0, S_T0))
    a("s_add_u32 s%d, s%d, %d" % (S_T0, S_T0, WS_KV))
    a("s_add_u32 s%d, s%d, 4096" % (S_T1, S_T0))
    def pack(swap):
        def f(a):
            for T in range(5):
                e = V_ACC2 + T * 4
                for t in range(2):
                    tp = t ^ swap
                    d = V_ACC + (tp * 5 + T) * 4
                    a("v_cvt_pk_bf16_f32 v%d, v%d, v%d" % (e + 2 * t, d, d + 1))
                    a("v_cvt_pk_bf16_f32 v%d, v%d, v%d" % (e + 2 * t + 1, d + 2, d + 3))
                a("buffer_store_dwordx4 %s, v%d, s[%d:%d], s%d offen offset:%d %s" % (vr(e, 4), V_IMG, S_WS, S_WS + 3, S_T1 if T == 4 else S_T0, (T & 3) * 1024, ST))
                if 'dbl' in OPT:
                    a("buffer_store_dwordx4 %s, v%d, s[%d:%d], s%d offen offset:%d" % (vr(e, 4), V_IMG, S_WS, S_WS + 3, S_T1 if T == 4 else S_T0, (T & 3) * 1024))
        return f
    role_branch(a, pack(0), pack(1))
    a("s_nop 1")

def phi(a, regs, tmp):
    a("s_mov_b32 s%d, 0x%x" % (S_T4, f2u(LOG2E)))
    a("s_mov_b32 s%d, 0x%x" % (S_T5, f2u(LOG2E)))
    a("s_mov_b32 s%d, 0x%x" % (S_M2, f2u(1e-6)))
    a("s_mov_b32 s%d, 0x%x" % (S_M2 + 1, f2u(1e-6)))
    for i in range(0, len(regs), 4):
        g = regs[i:i + 4]
        assert g[0] % 2 == 0 and g[1] == g[0] + 1 and g[2] % 2 == 0 and g[3] == g[2] + 1
        for k in (0, 2): a("v_pk_mul_f32 %s, %s, s[%d:%d]" % (vr(tmp + k, 2), vr(g[k], 2), S_T4, S_T5))
        for k in range(4): a("v_exp_f32_e64 v%d, v%d clamp" % (tmp + k, tmp + k))
        for k in range(4): a("v_max_f32 v%d, 0, v%d" % (g[k], g[k]))
        for k in (0, 2): a("v_pk_add_f32 %s, %s, s[%d:%d]" % (vr(g[k], 2), vr(g[k], 2), S_M2, S_M2 + 1))
        for k in (0, 2): a("v_pk_add_f32 %s, %s, %s" % (vr(g[k], 2), vr(g[k], 2), vr(tmp + k, 2)))

def piece_decode(a):
    a("s_and_b32 s%d, s%d, 1" % (S_T0, S_WV))
    a("s_lshl_b32 s%d, s%d, 6" % (S_T0, S_T0))
    a("v_add_u32 v5, s%d, v%d" % (S_T0, V_LANE))
    a("s_movk_i32 s%d, 2731" % S_T1)
    a("v_mul_u32_u24 v6, s%d, v5" % S_T1)
    a("v_lshrrev_b32 v6, 16, v6")
    a("v_mul_u32_u24 v7, 24, v6")
    a("v_sub_u32 v7, v5, v7")

def epi1_B(a):
    acc = lambda tp, T: V_ACC + (tp * 5 + T) * 4
    raw = V_WB0
    TMP = V_ACC2
    a("s_nop 7")
    for tp in range(2):
        for k in range(4): a("v_mov_b32 v%d, v%d" % (raw + tp * 4 + k, acc(tp, 4) + k))
    regs = []
    for T in (0, 1, 4):
        for tp in range(2): regs += [acc(tp, T) + k for k in range(4)]
    phi(a, regs, TMP)
    a("s_mov_b32 s%d, 0x00ff00ff" % S_M0)
    a("s_mov_b32 s%d, 0x00ff00ff" % (S_M0 + 1))
    for tp in range(2):
        for k in range(4):
            a("v_cndmask_b32_e64 v%d, v%d, v%d, s[%d:%d]" % (acc(tp, 4) + k, raw + tp * 4 + k, acc(tp, 4) + k, S_M0, S_M0 + 1))
    P = V_WB1
    for T in range(5):
        for tp in range(2):
            d = acc(tp, T)
            a("v_cvt_pk_bf16_f32 v%d, v%d, v%d" % (P + 4 * T + 2 * tp, d, d + 1))
            a("v_cvt_pk_bf16_f32 v%d, v%d, v%d" % (P + 4 * T + 2 * tp + 1, d + 2, d + 3))
    TB = V_WB0 + 8
    a("v_mov_b32 v%d, 0x3f803f80" % TMP)
    for k in range(4):
        a("v_cndmask_b32_e64 v%d, v%d, v%d, s[%d:%d]" % (TB + k, P + 16 + k, TMP, S_M0, S_M0 + 1))
    F0, F1, V0, V1, TA = P, P + 4, P + 8, P + 12, P + 16
    D = V_ACC
    a("s_mul_i32 s%d, s%d, 7168" % (S_T0, S_WV))
    a("v_lshlrev_b32 v4, 4, v%d" % V_LANE)
    for i, (x, y) in enumerate([(F0, V0), (F1, V1), (F0, TB), (F1, TB), (TA, V0), (TA, V1), (TA, TB)]):
        a(mfma16(D + 4 * i, x, y, "0"))
    a("v_add_u32 v4, s%d, v4" % S_T0)
    piece_decode(a)
    M = TMP
    a("s_lshr_b32 s%d, s%d, 1" % (S_T2, S_WV))
    a("s_and_b32 s%d, s%d, 1" % (S_T3, S_T2))
    a("s_lshr_b32 s%d, s%d, 1" % (S_T2, S_T2))
    a("s_lshl_b32 s%d, s%d, 2" % (S_T4, S_T3))
    a("s_sub_u32 s%d, s%d, 8" % (S_T4, S_T4))
    a("v_add_u32 v8, s%d, v7" % S_T4)
    a("v_cmp_gt_u32_e64 s[%d:%d], 20, v7" % (S_M0, S_M0 + 1))
    a("v_cmp_gt_u32_e64 s[%d:%d], 16, v7" % (S_M1, S_M1 + 1))
    a("v_cmp_gt_u32_e64 s[%d:%d], 4, v6" % (S_M2, S_M2 + 1))
    a("s_barrier")
    for i in range(7):
        a("ds_write_b128 v4, %s offset:%d" % (vr(D + 4 * i, 4), i * 1024))
    a("v_cndmask_b32_e64 v8, 0, v8, s[%d:%d]" % (S_M0, S_M0 + 1))
    a("v_cndmask_b32_e64 v8, v8, v7, s[%d:%d]" % (S_M1, S_M1 + 1))
    a("v_mov_b32 v9, s%d" % S_T3)
    a("v_cndmask_b32_e64 v9, v9, v6, s[%d:%d]" % (S_M2, S_M2 + 1))
    a("v_lshl_add_u32 v8, v9, 4, v8")
    a("s_add_u32 s%d, s%d, 4" % (S_T4, S_T3))
    a("v_mov_b32 v9, s%d" % S_T4)
    a("v_mov_b32 v%d, s%d" % (M, S_T3))
    a("v_cndmask_b32_e64 v9, v9, v%d, s[%d:%d]" % (M, S_M2, S_M2 + 1))
    a("s_add_u32 s%d, s%d, 2" % (S_T4, S_T3))
    a("v_mov_b32 v%d, s%d" % (M, S_T4))
    a("v_cndmask_b32_e64 v%d, 6, v%d, s[%d:%d]" % (M, M, S_M2, S_M2 + 1))
    a("v_cndmask_b32_e64 v9, v%d, v9, s[%d:%d]" % (M, S_M1, S_M1 + 1))
    a("v_lshlrev_b32 v9, 10, v9")
    a("v_lshl_add_u32 v8, v8, 4, v9")
    a("s_mul_i32 s%d, s%d, %d" % (S_T4, S_T2, 4 * 7168))
    a("v_add_u32 v8, s%d, v8" % S_T4)
    a("v_cmp_gt_u32_e64 s[%d:%d], 21, v7" % (S_M0, S_M0 + 1))
    a("v_cmp_gt_u32_e64 s[%d:%d], 5, v6" % (S_M1, S_M1 + 1))
    a("v_min_u32 v8, %d, v8" % (8 * 7168 - 3 * 7168 - 16))
    a("s_lshl_b32 s%d, s%d, 4" % (S_T0, S_G))
    a("s_add_u32 s%d, s%d, s%d" % (S_T0, S_T0, S_R))
    a("s_lshl_b32 s%d, s%d, 13" % (S_T0, S_T0))
    a("s_lshr_b32 s%d, s%d, 1" % (S_T1, S_WV))
    a("s_lshl_b32 s%d, s%d, 11" % (S_T1, S_T1))
    a("s_add_u32 s%d, s%d, s%d" % (S_T0, S_T0, S_T1))
    a("s_add_u32 s%d, s%d, %d" % (S_T0, S_T0, WS_PART))
    a("v_lshlrev_b32 v5, 4, v5")
    a("s_waitcnt lgkmcnt(0)")
    a("s_barrier")
    a("s_and_b64 s[%d:%d], s[%d:%d], s[%d:%d]" % (S_M0, S_M0 + 1, S_M0, S_M0 + 1, S_M1, S_M1 + 1))
    E = V_ACC
    for rg in range(4): a("ds_read_b128 %s, v8 offset:%d" % (vr(E + 4 * rg, 4), rg * 7168))
    a("s_waitcnt lgkmcnt(0)")
    for k in (0, 2):
        a("v_pk_add_f32 %s, %s, %s" % (vr(E + k, 2), vr(E + k, 2), vr(E + 4 + k, 2)))
        a("v_pk_add_f32 %s, %s, %s" % (vr(E + 8 + k, 2), vr(E + 8 + k, 2), vr(E + 12 + k, 2)))
    for k in (0, 2): a("v_pk_add_f32 %s, %s, %s" % (vr(E + k, 2), vr(E + k, 2), vr(E + 8 + k, 2)))
    a("s_mov_b64 exec, s[%d:%d]" % (S_M0, S_M0 + 1))
    a("buffer_store_dwordx4 %s, v5, s[%d:%d], s%d offen %s" % (vr(E, 4), S_WS, S_WS + 3, S_T0, ST))
    a("s_mov_b64 exec, -1")

LDS_Q = 143360
def epi2(a):
    XCH = 102400
    a("s_mul_i32 s%d, s%d, 5120" % (S_T0, S_WV))
    a("s_add_u32 s%d, s%d, %d" % (S_T0, S_T0, XCH))
    a("v_lshlrev_b32 v4, 4, v%d" % V_LANE)
    a("s_xor_b32 s%d, s%d, 4" % (S_T1, S_WV))
    a("v_add_u32 v5, s%d, v4" % S_T0)
    a("s_mul_i32 s%d, s%d, 5120" % (S_T1, S_T1))
    a("s_add_u32 s%d, s%d, %d" % (S_T1, S_T1, XCH))
    a("s_barrier")
    for T in range(5): a("ds_write_b128 v5, %s offset:%d" % (vr(V_ACC2 + (5 + T) * 4, 4), T * 1024))
    lw = a.newlabel("e2w")
    a("s_cmp_eq_u32 s%d, 0" % S_BR)
    a("s_cbranch_scc1 %s" % lw)
    a("s_mov_b32 s%d, s%d" % (S_T2, S_T1))
    wo_load(a, S_WOB, first=12)
    a("s_mov_b32 s%d, s%d" % (S_T1, S_T2))
    a.label(lw)
    a("v_add_u32 v5, s%d, v4" % S_T1)
    a("s_lshl_b32 s%d, s%d, 3" % (S_T1, S_CS))
    a("v_add_u32 v4, s%d, v%d" % (S_T1, V_IMG))
    a("s_mul_i32 s%d, s%d, 5120" % (S_T0, S_RG))
    a("s_add_u32 s%d, s%d, %d" % (S_T0, S_T0, LDS_Q))
    a("v_add_u32 v4, s%d, v4" % S_T0)
    a("s_waitcnt lgkmcnt(0)")
    a("s_barrier")
    R = V_WB0
    for T in range(5): a("ds_read_b128 %s, v5 offset:%d" % (vr(R + 4 * T, 4), T * 1024))
    regs = [V_ACC2 + T * 4 + k for T in range(5) for k in range(4)]
    for T in range(5):
        a("s_waitcnt lgkmcnt(%d)" % (4 - T))
        for k in (0, 2):
            a("v_pk_add_f32 %s, %s, %s" % (vr(V_ACC2 + 4 * T + k, 2), vr(V_ACC2 + 4 * T + k, 2), vr(R + 4 * T + k, 2)))
    def fa(a):
        a("s_mov_b32 s%d, 0x%x" % (S_T4, f2u(QSCALE)))
        a("s_mov_b32 s%d, 0x%x" % (S_T5, f2u(QSCALE)))
        for k in range(0, 20, 2): a("v_pk_mul_f32 %s, %s, s[%d:%d]" % (vr(V_ACC2 + k, 2), vr(V_ACC2 + k, 2), S_T4, S_T5))
    lb, ld = a.newlabel("e2b"), a.newlabel("e2d")
    a("s_cmp_eq_u32 s%d, 0" % S_BR)
    a("s_cbranch_scc0 %s" % lb)
    fa(a)
    a("s_branch %s" % ld)
    a.label(lb)
    phi(a, regs, V_ACC)
    a.label(ld)
    for T in range(5):
        d = V_ACC2 + T * 4
        a("v_cvt_pk_bf16_f32 v%d, v%d, v%d" % (R + 2 * T, d, d + 1))
        a("v_cvt_pk_bf16_f32 v%d, v%d, v%d" % (R + 2 * T + 1, d + 2, d + 3))
        a("ds_write_b64 v4, %s offset:%d" % (vr(R + 2 * T, 2), T * 1024))

def vm_wait_roles(a, nw, nx):
    if nw == nx: a("s_waitcnt vmcnt(%d)" % nw)
    else: role_branch(a, "s_waitcnt vmcnt(%d)" % nw, "s_waitcnt vmcnt(%d)" % nx)

def publish(a, s_off, wave=0):
    def body(a):
        a("v_mov_b32 v4, s%d" % S_NONCE)
        a("v_mov_b32 v5, 0")
        a("s_mov_b64 exec, 1")
        a("buffer_store_dword v4, v5, s[%d:%d], s%d offen sc0 sc1" % (S_WS, S_WS + 3, s_off))
        a("s_mov_b64 exec, -1")
    if wave is None: body(a)
    else: on_wave(a, wave, body)

def poll(a, voff, s_off, mask_lo, mask_hi):
    def body(a):
        lp, ld = a.newlabel("pp"), a.newlabel("pd")
        a("s_mov_b32 exec_lo, %s" % mask_lo)
        a("s_mov_b32 exec_hi, %s" % mask_hi)
        a("s_mov_b32 s%d, 0" % S_T5)
        a.label(lp)
        a("buffer_load_dword v6, v%d, s[%d:%d], s%d offen sc1" % (voff, S_WS, S_WS + 3, s_off))
        a("s_waitcnt vmcnt(0)")
        a("v_cmp_ne_u32_e64 s[%d:%d], s%d, v6" % (S_M0, S_M0 + 1, S_NONCE))
        a("s_add_u32 s%d, s%d, 1" % (S_T5, S_T5))
        a("s_nop 1")
        a("s_cmp_eq_u64 s[%d:%d], 0" % (S_M0, S_M0 + 1))
        a("s_cbranch_scc1 %s" % ld)
        a("s_sleep 1")
        a("s_cmp_lt_u32 s%d, %d" % (S_T5, SPIN_LIMIT))
        a("s_cbranch_scc1 %s" % lp)
        a.label(ld)
        a("s_mov_b64 exec, -1")
    on_wave(a, 0, body)

def wo_pf_setup(a, v):
    a("v_mul_u32_u24 v4, 52, v%d" % V_LANE); a("v_lshrrev_b32 v4, 8, v4")
    a("v_mul_u32_u24 v5, 5, v4"); a("v_sub_u32 v5, v%d, v5" % V_LANE)
    a("s_mul_i32 s%d, s%d, 20" % (S_T0, S_I))
    a("v_add_u32 v4, s%d, v4" % S_T0)
    a("s_movk_i32 s%d, 1280" % S_T1)
    a("v_mul_u32_u24 v4, s%d, v4" % S_T1)
    a("v_lshl_add_u32 v4, v5, 7, v4")
    a("s_lshr_b32 s%d, s%d, 2" % (S_T0, S_G))
    a("s_mul_i32 s%d, s%d, 640" % (S_T0, S_T0))
    a("v_add_u32 v%d, s%d, v4" % (v, S_T0))
assert all((l * 52) >> 8 == l // 5 for l in range(64))

def wo_pf_issue(a, v, srd_):
    a("buffer_load_dword v%d, v%d, s[%d:%d], 0 offen %s" % (V_PFD, v, srd_, srd_ + 3, PFL))
    a("s_mov_b32 s%d, %d" % (S_OFF, 12 * 1280))
    a("buffer_load_dword v%d, v%d, s[%d:%d], s%d offen %s" % (V_PFD, v, srd_, srd_ + 3, S_OFF, PFL))

def phase1(a):
    dma_setup(a)
    stamp(a, "dset")
    entry_srd(a)
    stamp(a, "karg")
    emit(a, [pf('x', 0, 0), pf('w', 0, 0), pf('x', 1, 1), pf('w', 1, 1)])
    stamp(a, "pf0")
    emit(a, [dma(0, j) for j in range(5)])
    entry_srd2(a)
    stamp(a, "g0")
    addr1_setup(a)
    emit(a, [dma(1, j) for j in range(5)])
    emit(a, [pf('x', 2, 2), pf('w', 2, 2)])
    a("v_mov_b32 v8, 0")
    a("s_mov_b32 s%d, %d" % (S_OFF, WS_FLAG))
    a("buffer_load_dword v9, v8, s[%d:%d], s%d offen sc1" % (S_WS, S_WS + 3, S_OFF))
    stamp(a, "g1")
    vm_wait_roles(a, 6, 5)
    stamp(a, "g0land")
    a("s_barrier")
    stamp(a, "t0")
    lq = LQ(a)
    cur = [lq.issue(x) for x in p1_reads(0, 0)]
    SCH = {'e': [2, 1, 1, 1, 1, 2, 1, 1, 1, 1], 'f': [2, 2, 2, 2, 2, 2, 0, 0, 0, 0], 'm': [2, 2, 1, 1, 1, 1, 1, 1, 1, 1], 'g': [2, 2, 2, 1, 1, 1, 1, 1, 1, 0]}[SCHED]
    needs12 = lambda ids: [ids[2 + 2 * (i // 2) + 1] for i in range(10)]
    needs10 = lambda ids: [ids[2 * (i // 2) + 1] for i in range(10)]
    for s in range(10):
        ex0 = {}
        if s >= 1: ex0 = {2: dma(s + 2, 3), 6: dma(s + 2, 4)}
        if s == 0: ex0 = {0: dma(2, 0), 2: dma(2, 1), 4: dma(2, 2), 6: dma(2, 3), 8: dma(2, 4)}
        if s == 5:
            lines = rec(addr2_setup)
            for k_, pos in enumerate((1, 3, 4, 5, 7, 8, 9)):
                ex0[pos] = [ex0.get(pos), lines[k_ * len(lines) // 7:(k_ + 1) * len(lines) // 7]]
        nxt = half(a, lq, p1_mfmas(s, 0, s == 0), needs12(cur), p1_reads(s, 1), SCH, ex0)
        if s == 0: vm_wait_roles(a, 6, 5)
        elif s == 8: vm_wait_roles(a, 5, 0)
        elif s == 9: a("s_waitcnt vmcnt(5)")
        else: vm_wait_roles(a, 5, 4)
        a("s_barrier")
        stamp(a, "s%d" % s)
        if s == 2:
            a("v_readfirstlane_b32 s%d, v9" % S_NONCE)
            a("s_nop 3")
            a("s_add_u32 s%d, s%d, 0x9e3779b9" % (S_NONCE, S_NONCE))
        pfl = []
        if s == 0: pfl = [pf('x', 3, 3), pf('w', 3, 3)]
        if s == 2: pfl = [pf('x', 4, 0), pf('w', 4, 0)]
        if s == 3: pfl = [lambda a: wo_pf_setup(a, V_PF)]
        def wopf_own(a):
            if 'nopf' in OPT: return
            def body(a):
                l, l2 = a.newlabel("wpf"), a.newlabel("wpf2")
                a("s_cmp_eq_u32 s%d, 0" % S_BR)
                a("s_cbranch_scc1 %s" % l)
                wo_pf_issue(a, V_PF, S_WOB)
                a("s_branch %s" % l2)
                a.label(l)
                wo_pf_issue(a, V_PF, S_WO)
                a.label(l2)
            on_wave(a, 5, body)
        if s == 4: pfl = [pf('q', 0, 1), wopf_own]
        if s == 5: pfl = [pf('q', 1, 2)]
        if s == 6: pfl = [pf('q', 2, 3)]
        ex1 = {1: dma(s + 3, 0), 4: dma(s + 3, 1), 7: dma(s + 3, 2), 9: pfl}
        if s == 9: ex1 = {1: dma(12, 0), 3: dma(12, 1), 5: dma(12, 2), 7: dma(12, 3), 9: dma(12, 4)}
        rd = p1_reads(s + 1, 0) if s < 9 else p2_reads(0)
        cur = half(a, lq, p1_mfmas(s, 1, False), needs12(nxt), rd, SCH, ex1)
    stamp(a, "p1end")
    lb, ld = a.newlabel("e1b"), a.newlabel("e1d")
    a("s_cmp_eq_u32 s%d, 0" % S_BR)
    a("s_cbranch_scc0 %s" % lb)
    epi1_A(a)
    a("s_branch %s" % ld)
    a.label(lb)
    a("s_waitcnt lgkmcnt(0)")
    epi1_B(a)
    emit(a, p2_reads(0))
    a.label(ld)
    stamp(a, "e1end")
    p3_dma_setup(a)
    S_WBF, S_WB1, S_WB2 = S_SOFF, S_STEP, S_J + 1
    a("s_and_b32 s%d, s%d, s%d" % (S_WBF, S_BR, S_CS))
    a("s_mul_i32 s%d, s%d, %d" % (S_WB1, S_RG, 3 * 5120))
    a("s_mul_i32 s%d, s%d, %d" % (S_WB2, S_RG, 3 * 32 * 1280))
    def wob(q):
        def f(a):
            l = a.newlabel("wob")
            a("s_cmp_eq_u32 s%d, 0" % S_WBF)
            a("s_cbranch_scc1 %s" % l)
            a("s_add_u32 m0, s%d, %d" % (S_WB1, (q // 5) * 5120 + (q % 5) * 1024))
            a("s_add_u32 s%d, s%d, %d" % (S_OFF, S_WB2, (q // 5) * 32 * 1280))
            a("buffer_load_dwordx4 v%d, s[%d:%d], s%d offen %s lds" % (C_DMA + q % 5, S_WOB, S_WOB + 3, S_OFF, DML))
            a.label(l)
        return f
    WOB_N = [2, 1, 2, 1, 2, 1, 2, 1, 2, 1]
    def wopf(a):
        if 'nopf' in OPT: return
        def body(a):
            l = a.newlabel("wpf")
            a("s_cmp_eq_u32 s%d, 0" % S_BR)
            a("s_cbranch_scc1 %s" % l)
            wo_pf_issue(a, V_PF, S_WO)
            a.label(l)
        on_wave(a, 0, body)
    a("s_waitcnt lgkmcnt(0)")
    lq = LQ(a)
    cur = None
    SCH2 = {'e': [1] * 10, 'f': [2, 2, 2, 2, 2, 0, 0, 0, 0, 0], 'm': [2, 1, 1, 1, 1, 1, 1, 1, 1, 0], 'g': [2, 2, 1, 1, 1, 1, 1, 1, 0, 0]}[SCHED]
    for u in range(10):
        extra = {}
        rd = []
        if u + 1 < 10:
            if (u + 1) % 2 == 0:
                nx = 10 + (u + 1) // 2
                def by_branch(na, nb):
                    def f(a):
                        lB, lD = a.newlabel("wb"), a.newlabel("wd")
                        a("s_cmp_eq_u32 s%d, 0" % S_BR)
                        a("s_cbranch_scc0 %s" % lB)
                        a("s_waitcnt vmcnt(%d)" % na)
                        a("s_branch %s" % lD)
                        a.label(lB)
                        a("s_waitcnt vmcnt(%d)" % nb)
                        a.label(lD)
                    return f
                if nx == 13: role_branch(a, "s_waitcnt vmcnt(5)", by_branch(0, sum(WOB_N[:5])))
                elif nx == 14: role_branch(a, "s_waitcnt vmcnt(0)", None)
                else: role_branch(a, by_branch(5 + (10 if 'dbl' in OPT else 5), 6), None)
                a("s_barrier")
                if 13 <= nx + 2 <= 14: extra = {1: dma(nx + 2, 0), 3: dma(nx + 2, 1), 5: dma(nx + 2, 2), 7: dma(nx + 2, 3), 9: dma(nx + 2, 4)}
                if nx == 13:
                    def pub(a):
                        a("s_lshl_b32 s%d, s%d, 4" % (S_T0, S_G))
                        a("s_add_u32 s%d, s%d, s%d" % (S_T0, S_T0, S_R))
                        a("s_lshl_b32 s%d, s%d, 7" % (S_T0, S_T0))
                        a("s_mul_i32 s%d, s%d, %d" % (S_T1, S_BR, F_PART - F_KV))
                        a("s_add_u32 s%d, s%d, s%d" % (S_T0, S_T0, S_T1))
                        a("s_add_u32 s%d, s%d, %d" % (S_T0, S_T0, F_KV))
                        publish(a, S_T0, 0)
                    extra[0] = [pub]
            rd = p2_reads(u + 1)
        if u == 8: extra[3] = [wopf]
        q0 = sum(WOB_N[:u])
        for n_ in range(WOB_N[u]):
            pos = (2, 6)[n_]
            extra[pos] = [extra.get(pos), wob(q0 + n_)]
        needs = needs10(cur) if cur else [0] * 10
        cur = half(a, lq, p2_mfmas(u), needs, rd, SCH2, extra)
    a("s_nop 4")
    stamp(a, "p2end")
    epi2(a)
    stamp(a, "e2end")

LDS_K, LDS_V = 0, 65536
LDS_KVR = 135168
A_KA0, A_KA1, A_KAT, A_VA0, A_VA1, A_QA0, A_QA1, A_QAT, A_OM, A_OT = 10, 11, 12, 13, 14, 15, 16, 17, 18, 19
A_AM, A_Q1, A_Q2, A_KB, A_VB, A_S, A_O = 20, 32, 36, 40, 64, 96, 240
S_TAU0 = S_U
S_EXV, S_HI, S_LO = 62, 64, 66
NEG_BIG = f2u(-3.0e38)
S_KV0, S_KV1, S_KV2 = 20, 21, 22
A_L16 = 88

def jkey(r, h):
    m, b, e = r >> 3, (r >> 2) & 1, r & 3
    return 16 * b + 8 * m + 4 * h + e
def diag_mask(r):
    return (sum(1 << i for i in range(32) if jkey(r, 0) <= i), sum(1 << i for i in range(32) if jkey(r, 1) <= i))

def p2_common_setup(a, attn):
    a("v_and_b32 v4, 1, v%d" % V_KG)
    a("v_lshrrev_b32 v5, 1, v%d" % V_KG)
    a("v_lshrrev_b32 v6, 2, v%d" % V_N)
    a("v_and_b32 v7, 3, v%d" % V_N)
    a("s_and_b32 s%d, s%d, 3" % (S_T0, S_WV))
    a("s_lshr_b32 s%d, s%d, 2" % (S_T1, S_WV))
    a("s_mul_i32 s%d, s%d, 5120" % (S_T1, S_T1))
    a("s_lshl_b32 s%d, s%d, 10" % (S_T2, S_T0))
    a("s_add_u32 s%d, s%d, s%d" % (S_T2, S_T2, S_T1))
    a("s_add_u32 s%d, s%d, 4096" % (S_T3, S_T1))
    a("s_lshl_b32 s%d, s%d, 2" % (S_T4, S_T0))
    def addr(dst, n, kgimg, tbit, sbase, extra):
        a("v_lshl_add_u32 v9, v%d, 2, v%d" % (kgimg, n))
        a("v_and_b32 v9, 15, v9")
        a("v_lshl_add_u32 v9, v%d, 4, v9" % kgimg)
        a("v_lshlrev_b32 v9, 4, v9")
        a("v_lshl_add_u32 v9, v%d, 3, v9" % tbit)
        a("s_add_u32 s%d, s%d, %d" % (S_T5, sbase, extra))
        a("v_add_u32 v%d, s%d, v9" % (dst, S_T5))
    a("v_lshl_add_u32 v8, v5, 3, v6")
    addr(A_QA0, 8, 7, 4, S_T2, LDS_Q)
    a("v_add_u32 v30, 4, v8")
    addr(A_QA1, 30, 7, 4, S_T2, LDS_Q)
    a("v_add_u32 v31, s%d, v6" % S_T4)
    addr(A_QAT, 31, 7, 4, S_T3, LDS_Q)
    if attn:
        a("v_and_b32 v28, 1, v7")
        a("v_lshl_add_u32 v28, v4, 1, v28")
        a("v_lshrrev_b32 v29, 1, v7")
        addr(A_KA0, 8, 28, 29, S_T2, LDS_K)
        addr(A_KA1, 30, 28, 29, S_T2, LDS_K)
        addr(A_KAT, 31, 28, 29, S_T3, LDS_K)
    a("v_and_b32 v4, 31, v%d" % V_LANE)
    a("v_lshrrev_b32 v5, 5, v%d" % V_LANE)
    if attn:
        a("v_cmp_gt_u32_e64 s[%d:%d], 16, v4" % (S_M0, S_M0 + 1))
        a("s_sub_u32 s%d, s%d, 16" % (S_T5, S_T4))
        a("v_add_u32 v6, s%d, v4" % S_T5)
        a("v_and_b32 v6, 15, v6")
        a("v_cndmask_b32_e64 v6, v6, v4, s[%d:%d]" % (S_M0, S_M0 + 1))
        a("v_mov_b32 v7, s%d" % S_T3)
        a("v_mov_b32 v8, s%d" % S_T2)
        a("v_cndmask_b32_e64 v7, v7, v8, s[%d:%d]" % (S_M0, S_M0 + 1))
        for m in range(2):
            a("v_add_u32 v8, %d, v5" % (2 * m))
            a("v_lshl_add_u32 v9, v8, 2, v6")
            a("v_and_b32 v9, 15, v9")
            a("v_lshl_add_u32 v9, v8, 4, v9")
            a("v_lshl_add_u32 v9, v9, 4, v7")
            a("v_add_u32 v%d, %d, v9" % (A_VA0 + m, LDS_V))
    a("s_lshl_b32 s%d, s%d, 2" % (S_T1, S_G))
    a("s_add_u32 s%d, s%d, s%d" % (S_T1, S_T1, S_T0))
    a("s_lshl_b32 s%d, s%d, 3" % (S_T2, S_R))
    a("s_lshr_b32 s%d, s%d, 2" % (S_T3, S_WV))
    a("s_lshl_b32 s%d, s%d, 1" % (S_T3, S_T3))
    a("s_add_u32 s%d, s%d, s%d" % (S_T2, S_T2, S_T3))
    a("s_mul_i32 s%d, s%d, 20480" % (S_T2, S_T2))
    a("s_mul_i32 s%d, s%d, %d" % (S_T3, S_BR, O_BR))
    a("s_add_u32 s%d, s%d, s%d" % (S_T2, S_T2, S_T3))
    a("s_add_u32 s%d, s%d, %d" % (S_T2, S_T2, WS_O))
    a("v_lshrrev_b32 v6, 4, v4")
    a("s_movk_i32 s%d, 20480" % S_T3)
    a("v_mul_u32_u24 v6, s%d, v6" % S_T3)
    a("v_and_b32 v7, 15, v4")
    a("v_lshl_add_u32 v6, v7, 4, v6")
    a("v_add_u32 v6, s%d, v6" % S_T2)
    a("s_lshr_b32 s%d, s%d, 1" % (S_T3, S_T1))
    a("s_lshl_b32 s%d, s%d, 10" % (S_T3, S_T3))
    a("s_and_b32 s%d, s%d, 1" % (S_T4, S_T1))
    a("s_lshl_b32 s%d, s%d, 9" % (S_T4, S_T4))
    a("s_add_u32 s%d, s%d, s%d" % (S_T3, S_T3, S_T4))
    a("v_lshl_add_u32 v7, v5, 8, v6")
    a("v_add_u32 v%d, s%d, v7" % (A_OM, S_T3))
    a("s_lshr_b32 s%d, s%d, 3" % (S_T3, S_T1))
    a("s_add_u32 s%d, s%d, 16" % (S_T3, S_T3))
    a("s_lshl_b32 s%d, s%d, 10" % (S_T3, S_T3))
    a("s_and_b32 s%d, s%d, 6" % (S_T4, S_T1))
    a("s_lshl_b32 s%d, s%d, 7" % (S_T4, S_T4))
    a("s_add_u32 s%d, s%d, s%d" % (S_T3, S_T3, S_T4))
    a("s_and_b32 s%d, s%d, 1" % (S_T4, S_T1))
    a("s_lshl_b32 s%d, s%d, 3" % (S_T4, S_T4))
    a("s_add_u32 s%d, s%d, s%d" % (S_T3, S_T3, S_T4))
    a("v_add_u32 v%d, s%d, v6" % (A_OT, S_T3))
    a("s_mov_b32 s%d, 0" % S_HI); a("s_mov_b32 s%d, -1" % (S_HI + 1))
    a("s_mov_b32 s%d, -1" % S_LO); a("s_mov_b32 s%d, 0" % (S_LO + 1))

def q_frag_reads():
    return ["ds_read_b64_tr_b16 %s, v%d" % (vr(A_Q1, 2), A_QA0),
            "ds_read_b64_tr_b16 %s, v%d" % (vr(A_Q1 + 2, 2), A_QA1),
            "ds_read_b64_tr_b16 %s, v%d" % (vr(A_Q2, 2), A_QAT)]
def q_frag_fix(a):
    a("v_cndmask_b32_e64 v%d, v%d, 0, s[%d:%d]" % (A_Q2, A_Q2, S_HI, S_HI + 1))
    a("v_cndmask_b32_e64 v%d, v%d, 0, s[%d:%d]" % (A_Q2 + 1, A_Q2 + 1, S_HI, S_HI + 1))

def o_epilogue(a, eps=False):
    O = A_O
    a("v_cndmask_b32_e64 v30, v%d, v%d, s[%d:%d]" % (O + 12, O + 8, S_HI, S_HI + 1))
    if eps: a("v_add_f32 v30, 0x%x, v30" % f2u(1e-6))
    a("v_rcp_f32 v30, v30")
    a("s_nop 0")
    for k in range(0, 12, 2):
        a("v_pk_mul_f32 %s, %s, v[30:31] op_sel_hi:[1,0]" % (vr(O + k, 2), vr(O + k, 2)))
    for k in range(6): a("v_cvt_pk_bf16_f32 v%d, v%d, v%d" % (O + k, O + 2 * k, O + 2 * k + 1))
    for fl in ([ST, ""] if 'dbl' in OPT else [ST]):
        a("buffer_store_dwordx4 %s, v%d, s[%d:%d], 0 offen %s" % (vr(O, 4), A_OM, S_WS, S_WS + 3, fl))
        a("s_mov_b64 exec, s[%d:%d]" % (S_LO, S_LO + 1))
        a("buffer_store_dwordx2 %s, v%d, s[%d:%d], 0 offen %s" % (vr(O + 4, 2), A_OT, S_WS, S_WS + 3, fl))
        a("s_mov_b64 exec, -1")

def attn_setup(a):
    p2_common_setup(a, True)
    for r in range(16):
        lo, hi = diag_mask(r)
        a("s_mov_b32 s%d, 0x%x" % (S_MASK + 2 * r, lo)); a("s_mov_b32 s%d, 0x%x" % (S_MASK + 2 * r + 1, hi))
    a("v_mov_b32 v30, 0xffff")
    a("v_mov_b32 v31, 0xffff0000")
    for k in range(8):
        a("v_cndmask_b32_e64 v4, 0, v30, s[%d:%d]" % (S_MASK + 4 * k, S_MASK + 4 * k + 1))
        a("v_cndmask_b32_e64 v5, 0, v31, s[%d:%d]" % (S_MASK + 4 * k + 2, S_MASK + 4 * k + 3))
        a("v_or_b32 v%d, v4, v5" % (A_AM + k))
    a("v_mov_b32 v4, 0x3f803f80")
    for k in range(24): a("v_mov_b32 v%d, v4" % (A_VB + k))
    for b in range(3):
        a("v_mov_b32 v%d, 0" % (A_KB + 8 * b + 6)); a("v_mov_b32 v%d, 0" % (A_KB + 8 * b + 7))
    a("v_mov_b32 v%d, 0" % (A_Q2 + 2)); a("v_mov_b32 v%d, 0" % (A_Q2 + 3))
    a("s_mov_b32 s%d, 0x000fffff" % S_EXV); a("s_mov_b32 s%d, 0x000fffff" % (S_EXV + 1))

def k_reads(tau, buf):
    b = A_KB + 8 * buf
    return ["ds_read_b64_tr_b16 %s, v%d offset:%d" % (vr(b, 2), A_KA0, tau * 5120),
            "ds_read_b64_tr_b16 %s, v%d offset:%d" % (vr(b + 2, 2), A_KA1, tau * 5120),
            "ds_read_b64_tr_b16 %s, v%d offset:%d" % (vr(b + 4, 2), A_KAT, tau * 5120)]
def v_reads(tau, buf):
    b = A_VB + 8 * buf
    return ["s_mov_b64 exec, s[%d:%d]" % (S_EXV, S_EXV + 1),
            "ds_read_b128 %s, v%d offset:%d" % (vr(b, 4), A_VA0, tau * 5120),
            "ds_read_b128 %s, v%d offset:%d" % (vr(b + 4, 4), A_VA1, tau * 5120),
            "s_mov_b64 exec, -1"]

def attn_unit(a, stubs, mid, qk_extra):
    S = lambda t: A_S + 16 * t
    order = [8, 0, 1, 2, 3, 4, 5, 6, 7]
    emit(a, q_frag_reads())
    emit(a, k_reads(order[0], 0)); emit(a, k_reads(order[1], 1))
    a("s_waitcnt lgkmcnt(6)")
    q_frag_fix(a)
    accs = [28, 29, 30, 31]
    acc_init = [False] * 4
    def max_ops(base):
        L = []
        for k in range(0, 16, 2):
            ai = (k // 2) % 4
            if not acc_init[ai]:
                L.append("v_max_f32 v%d, v%d, v%d" % (accs[ai], base + k, base + k + 1)); acc_init[ai] = True
            else:
                L.append("v_max3_f32 v%d, v%d, v%d, v%d" % (accs[ai], base + k, base + k + 1, accs[ai]))
        return L
    merge = ["v_cndmask_b32_e64 v%d, v%d, v%d, s[%d:%d]" % (S(0) + r, S(0) + r, S(8) + r, S_MASK + 2 * r, S_MASK + 2 * r + 1) for r in range(16)]
    for idx, tau in enumerate(order):
        buf = idx % 3
        if idx + 2 < 9: emit(a, k_reads(order[idx + 2], (idx + 2) % 3))
        a("s_waitcnt lgkmcnt(%d)" % (3 * min(2, 8 - idx)))
        kb = A_KB + 8 * buf
        if tau < 8:
            lf, lr = a.newlabel("fill"), a.newlabel("fret")
            a("s_cmp_gt_u32 s%d, %d" % (S_TAU0, tau))
            a("s_cbranch_scc1 %s" % lf)
            stubs.append((lf, lr, S(tau)))
        work = []
        if idx == 3: work = merge[:]
        if idx == 4: work = max_ops(S(0))
        if idx >= 5: work = max_ops(S(order[idx - 3]))
        a(mfma32(S(tau), kb, A_Q1, "0"))
        a(mfma32(S(tau), kb + 4, A_Q2))
        if tau < 8: a.label(lr)
        emit(a, qk_extra.get(idx))
        emit(a, work)
    emit(a, max_ops(S(5)))
    emit(a, max_ops(S(6)))
    emit(a, mid)
    emit(a, v_reads(8, 0)); emit(a, v_reads(0, 1))
    emit(a, max_ops(S(7)))
    a("v_max3_f32 v28, v28, v29, v30")
    a("v_max_f32 v28, v28, v31")
    a("v_mov_b32 v29, v28")
    a("s_nop 1")
    a("v_permlane32_swap_b32 v28, v29")
    a("s_nop 1")
    a("v_max_f32 v28, v28, v29")
    def sm_ops(base):
        L = ["v_pk_add_f32 %s, %s, v[28:29] op_sel_hi:[1,0] neg_lo:[0,1] neg_hi:[0,1]" % (vr(base + k, 2), vr(base + k, 2)) for k in range(0, 16, 2)]
        E = [["v_exp_f32 v%d, v%d" % (base + k, base + k), "v_exp_f32 v%d, v%d" % (base + k + 1, base + k + 1)] for k in range(0, 16, 2)]
        out = L[:2]
        for k in range(8):
            out += E[k]
            if k + 2 < 8: out.append(L[k + 2])
            if k >= 1: out.append("v_cvt_pk_bf16_f32 v%d, v%d, v%d" % (base + k - 1, base + 2 * (k - 1), base + 2 * (k - 1) + 1))
        out.append("s_nop 0")
        out.append("v_cvt_pk_bf16_f32 v%d, v%d, v%d" % (base + 7, base + 14, base + 15))
        return out
    emit(a, sm_ops(S(0)))
    for k in range(8): a("v_and_b32 v%d, v%d, v%d" % (S(0) + 8 + k, S(0) + k, A_AM + k))
    for k in range(8): a("v_xor_b32 v%d, v%d, v%d" % (S(0) + k, S(0) + k, S(0) + 8 + k))
    a("s_waitcnt lgkmcnt(0)")
    emit(a, v_reads(1, 2))
    def guarded(mms, tau):
        def f(a):
            l = a.newlabel("pvs")
            a("s_cmp_gt_u32 s%d, %d" % (S_TAU0, tau))
            a("s_cbranch_scc1 %s" % l)
            for x in mms: a(x)
            a.label(l)
        return f
    pv = [mfma32(A_O, A_VB + 0, S(0) + 8, "0"), mfma32(A_O, A_VB + 4, S(0) + 12),
          guarded([mfma32(A_O, A_VB + 8, S(0)), mfma32(A_O, A_VB + 12, S(0) + 4)], 0)]
    for tau in range(1, 8):
        vb = (tau + 1) % 3
        sm = sm_ops(S(tau))
        n, m, done = len(sm), len(pv), 0
        for i, x in enumerate(sm):
            emit(a, x)
            want = min(m, ((i + 1) * m + n // 2) // n) if i >= 1 else 0
            while done < want:
                emit(a, pv[done]); done += 1
        while done < m:
            emit(a, pv[done]); done += 1
        a("s_waitcnt lgkmcnt(0)")
        if tau + 1 < 8: emit(a, v_reads(tau + 1, (tau + 2) % 3))
        b = A_VB + 8 * vb
        pv = [guarded([mfma32(A_O, b, S(tau)), mfma32(A_O, b + 4, S(tau) + 4)], tau)]
    a("s_nop 1")
    emit(a, pv)
    a("s_nop 15")
    o_epilogue(a)

def round_advance(a, attn=True):
    for v in ((A_KA0, A_KA1, A_KAT, A_VA0, A_VA1) if attn else ()) + (A_QA0, A_QA1, A_QAT):
        a("v_add_u32 v%d, %d, v%d" % (v, 2 * 5120, v))
    a("v_add_u32 v%d, %d, v%d" % (A_OM, 4 * 20480, A_OM))
    a("v_add_u32 v%d, %d, v%d" % (A_OT, 4 * 20480, A_OT))

def set_tau0(a):
    a("s_lshl_b32 s%d, s%d, 2" % (S_T0, S_R))
    a("s_lshr_b32 s%d, s%d, 2" % (S_T1, S_WV))
    a("s_add_u32 s%d, s%d, s%d" % (S_T0, S_T0, S_T1))
    a("s_add_u32 s%d, s%d, s%d" % (S_T0, S_T0, S_DB))
    a("s_sub_i32 s%d, 8, s%d" % (S_TAU0, S_T0))
    a("s_max_i32 s%d, s%d, 0" % (S_TAU0, S_TAU0))

def emit_stubs(a, stubs):
    for lf, lr, base in stubs:
        a.label(lf)
        a("v_mov_b32 v%d, 0x%x" % (base, NEG_BIG))
        for k in range(1, 16): a("v_mov_b32 v%d, v%d" % (base + k, base))
        a("s_branch %s" % lr)

def kv_params(a):
    a("s_lshl_b32 s%d, s%d, 6" % (S_T0, S_G))
    a("s_lshl_b32 s%d, s%d, 2" % (S_T1, S_R))
    a("s_add_u32 s%d, s%d, s%d" % (S_T0, S_T0, S_T1))
    a("s_sub_i32 s%d, s%d, 8" % (S_T0, S_T0))
    a("s_mul_i32 s%d, s%d, 5120" % (S_T0, S_T0))
    a("s_lshl_b32 s%d, s%d, 10" % (S_KV1, S_WV))
    a("s_add_u32 s%d, s%d, s%d" % (S_KV0, S_T0, S_KV1))
    a("s_lshl_b32 s%d, s%d, 2" % (S_T3, S_R))
    a("s_sub_i32 s%d, 8, s%d" % (S_T3, S_T3))
    a("s_max_i32 s%d, s%d, 0" % (S_T3, S_T3))
    a("s_mul_i32 s%d, s%d, 5120" % (S_KV2, S_T3))
    a("v_lshlrev_b32 v%d, 4, v%d" % (A_L16, V_LANE))

def kv_load(tensor, k):
    def f(a):
        l = a.newlabel("kvl")
        a("s_add_u32 s%d, s%d, %d" % (S_T4, S_KV1, k * 8192))
        a("s_cmp_lt_u32 s%d, s%d" % (S_T4, S_KV2))
        a("s_cbranch_scc1 %s" % l)
        if k == 7:
            a("s_cmp_ge_u32 s%d, 61440" % S_T4)
            a("s_cbranch_scc1 %s" % l)
        a("s_add_u32 m0, s%d, %d" % (S_T4, LDS_K if tensor == 0 else LDS_V))
        a("s_add_u32 s%d, s%d, %d" % (S_OFF, S_KV0, WS_KV + tensor * 8 * 64 * 5120 + k * 8192))
        a("buffer_load_dwordx4 v%d, s[%d:%d], s%d offen %s lds" % (A_L16, S_WS, S_WS + 3, S_OFF, LD))
        a.label(l)
    return f

def oa_flag_off(a, dst, half_):
    a("s_lshl_b32 s%d, s%d, 1" % (dst, S_R))
    a("s_add_u32 s%d, s%d, %d" % (dst, dst, half_))
    a("s_lshl_b32 s%d, s%d, 3" % (dst, dst))
    a("s_add_u32 s%d, s%d, s%d" % (dst, dst, S_G))
    a("s_lshl_b32 s%d, s%d, 5" % (dst, dst))
    a("s_add_u32 s%d, s%d, s%d" % (dst, dst, S_WV))
    a("s_lshl_b32 s%d, s%d, 2" % (dst, dst))
    a("s_add_u32 s%d, s%d, %d" % (dst, dst, F_OA))

def phase2A(a, stubs):
    attn_setup(a)
    kv_params(a)
    a("v_and_b32 v7, 3, v%d" % V_LANE)
    a("v_lshlrev_b32 v7, 7, v7")
    a("v_lshrrev_b32 v8, 2, v%d" % V_LANE)
    a("v_lshlrev_b32 v8, 12, v8")
    a("v_sub_u32 v7, v8, v7")
    a("s_and_b32 s%d, s%d, 4" % (S_T0, S_G))
    a("s_and_b32 s%d, s%d, 3" % (S_T1, S_G))
    a("s_lshr_b32 s%d, s%d, 1" % (S_T1, S_T1))
    a("s_add_u32 s%d, s%d, s%d" % (S_T0, S_T0, S_T1))
    a("s_lshl_b32 s%d, s%d, 4" % (S_T0, S_T0))
    a("s_add_u32 s%d, s%d, s%d" % (S_T0, S_T0, S_R))
    a("s_lshl_b32 s%d, s%d, 7" % (S_T0, S_T0))
    a("s_add_u32 s%d, s%d, %d" % (S_T0, S_T0, F_KV))
    a("v_add_u32 v7, s%d, v7" % S_T0)
    a("s_min_u32 s%d, s%d, 2" % (S_T1, S_R))
    a("s_lshl_b32 s%d, 2, s%d" % (S_T1, S_T1))
    a("s_sub_u32 s%d, s%d, 1" % (S_T1, S_T1))
    a("s_mul_i32 s%d, s%d, 17" % (S_T1, S_T1))
    a("s_mov_b32 s%d, 0" % S_T2)
    stamp(a, "aset")
    poll(a, 7, S_T2, "s%d" % S_T1, "0")
    a("s_mov_b32 s%d, 0x000fffff" % S_EXV); a("s_mov_b32 s%d, 0x000fffff" % (S_EXV + 1))
    a("s_waitcnt lgkmcnt(0)")
    a("s_barrier")
    stamp(a, "poll1")
    emit(a, [kv_load(0, k) for k in range(8)])
    a("s_waitcnt vmcnt(0)")
    a("s_barrier")
    stamp(a, "kvld")
    for rnd in range(2):
        a("s_mov_b32 s%d, %d" % (S_DB, 2 * rnd))
        set_tau0(a)
        if rnd == 0:
            def mid(a):
                a("s_waitcnt vmcnt(0)")
                a("s_barrier")
                stamp(a, "vld")
            qk_extra = {i: kv_load(1, i - 0) for i in range(8)}
        else:
            def mid(a):
                a("s_waitcnt vmcnt(0)")
                oa_flag_off(a, S_T0, 0)
                publish(a, S_T0, None)
            qk_extra = {}
        attn_unit(a, stubs, mid, qk_extra)
        stamp(a, "rnd%d" % rnd)
        if rnd == 0: round_advance(a)

def apply_phase(a):
    piece_decode(a)
    a("v_cmp_gt_u32_e64 s[%d:%d], 21, v7" % (S_M0, S_M0 + 1))
    a("v_cmp_gt_u32_e64 s[%d:%d], 5, v6" % (S_M1, S_M1 + 1))
    a("s_lshl_b32 s%d, s%d, 17" % (S_T0, S_G))
    a("s_lshr_b32 s%d, s%d, 1" % (S_T1, S_WV))
    a("s_lshl_b32 s%d, s%d, 11" % (S_T1, S_T1))
    a("s_add_u32 s%d, s%d, s%d" % (S_T0, S_T0, S_T1))
    a("s_add_u32 s%d, s%d, %d" % (S_T0, S_T0, WS_PART))
    a("v_lshlrev_b32 v5, 4, v5")
    a("s_and_b64 s[%d:%d], s[%d:%d], s[%d:%d]" % (S_M0, S_M0 + 1, S_M0, S_M0 + 1, S_M1, S_M1 + 1))
    P = A_S
    a("s_mov_b64 exec, s[%d:%d]" % (S_M0, S_M0 + 1))
    for r in range(16):
        a("s_add_u32 s%d, s%d, %d" % (S_OFF, S_T0, r * 8192))
        a("buffer_load_dwordx4 %s, v5, s[%d:%d], s%d offen %s" % (vr(P + 4 * r, 4), S_WS, S_WS + 3, S_OFF, LD))
    a("s_mov_b64 exec, -1")
    a("v_add_u32 v%d, %d, v5" % (A_O, LDS_KVR))
    a("v_add_u32 v%d, s%d, v%d" % (A_O, S_T1, A_O))
    a("s_mov_b64 s[%d:%d], s[%d:%d]" % (S_MASK, S_MASK + 1, S_M0, S_M0 + 1))
    p2_common_setup(a, False)
    a("v_mov_b32 v%d, 0" % (A_Q2 + 2)); a("v_mov_b32 v%d, 0" % (A_Q2 + 3))
    a("v_and_b32 v4, 31, v%d" % V_LANE)
    a("v_min_u32 v4, 20, v4")
    a("v_lshrrev_b32 v5, 5, v%d" % V_LANE)
    a("v_mul_u32_u24 v6, 48, v5")
    a("v_add_u32 v6, v6, v4")
    a("s_and_b32 s%d, s%d, 3" % (S_T0, S_WV))
    a("s_lshl_b32 s%d, s%d, 11" % (S_T0, S_T0))
    a("s_add_u32 s%d, s%d, %d" % (S_T0, S_T0, LDS_KVR))
    a("v_lshlrev_b32 v6, 4, v6")
    a("v_add_u32 v6, s%d, v6" % S_T0)
    a("v_lshlrev_b32 v7, 4, v4")
    a("v_add_u32 v7, s%d, v7" % S_T0)
    a("s_waitcnt vmcnt(0)")
    for st in (8, 4, 2, 1):
        for r in range(st):
            for k in (0, 2):
                a("v_pk_add_f32 %s, %s, %s" % (vr(P + 4 * r + k, 2), vr(P + 4 * r + k, 2), vr(P + 4 * (r + st) + k, 2)))
    a("s_mov_b64 exec, s[%d:%d]" % (S_MASK, S_MASK + 1))
    a("ds_write_b128 v%d, %s" % (A_O, vr(P, 4)))
    a("s_mov_b64 exec, -1")
    a("s_waitcnt lgkmcnt(0)")
    a("s_barrier")
    stamp(a, "kvred")
    F = A_KB
    a("ds_read_b128 %s, v6" % vr(F, 4))
    a("ds_read_b128 %s, v6 offset:%d" % (vr(F + 4, 4), 24 * 16))
    a("ds_read_b128 %s, v7 offset:%d" % (vr(F + 8, 4), 4 * 24 * 16))
    emit(a, q_frag_reads())
    a("s_waitcnt lgkmcnt(3)")
    KV1, KV2 = A_VB, A_VB + 4
    for k in range(4): a("v_cvt_pk_bf16_f32 v%d, v%d, v%d" % (KV1 + k, F + 2 * k, F + 2 * k + 1))
    for k in range(2): a("v_cvt_pk_bf16_f32 v%d, v%d, v%d" % (KV2 + k, F + 8 + 2 * k, F + 9 + 2 * k))
    a("v_mov_b32 v%d, 0" % (KV2 + 2)); a("v_mov_b32 v%d, 0" % (KV2 + 3))
    for rnd in range(2):
        a("s_waitcnt lgkmcnt(0)")
        q_frag_fix(a)
        a("s_nop 1")
        a(mfma32(A_O, KV1, A_Q1, "0"))
        a(mfma32(A_O, KV2, A_Q2))
        if rnd == 0:
            round_advance(a, False) if False else None
            for v in (A_QA0, A_QA1, A_QAT): a("v_add_u32 v%d, %d, v%d" % (v, 2 * 5120, v))
            emit(a, q_frag_reads())
            a("s_nop 9")
        else:
            a("s_nop 15")
        o_epilogue(a, eps=True)
        if rnd == 0:
            a("v_add_u32 v%d, %d, v%d" % (A_OM, 4 * 20480, A_OM))
            a("v_add_u32 v%d, %d, v%d" % (A_OT, 4 * 20480, A_OT))

C_DMA = 10
C_WA, C_WT, C_OF, C_OUT, C_XA = 20, 21, 22, 23, 24
C_O = 32
C_WB = 112
C_ACC = 172
C_R = 212

def p3_dma_setup(a):
    a("s_mul_i32 s%d, s%d, 160" % (S_T0, S_G))
    a("s_movk_i32 s%d, 6554" % S_T2)
    a("s_movk_i32 s%d, 1280" % S_T3)
    for j in range(5):
        a("v_add_u32 v4, %d, v%d" % (64 * j, V_LANE))
        a("v_mul_u32_u24 v8, s%d, v4" % S_T2)
        a("v_lshrrev_b32 v8, 16, v8")
        a("v_mul_u32_u24 v9, 10, v8")
        a("v_sub_u32 v9, v4, v9")
        a("v_mul_u32_u24 v8, s%d, v8" % S_T3)
        a("v_lshl_add_u32 v8, v9, 4, v8")
        a("v_add_u32 v%d, s%d, v8" % (C_DMA + j, S_T0))

def p3_setup(a):
    a("s_mul_i32 s%d, s%d, 160" % (S_T0, S_G))
    a("v_lshrrev_b32 v4, 1, v%d" % V_KG)
    a("v_and_b32 v5, 1, v%d" % V_KG)
    a("v_lshrrev_b32 v6, 2, v%d" % V_N)
    a("v_and_b32 v7, 3, v%d" % V_N)
    a("v_mul_u32_u24 v8, 20, v4")
    a("v_lshl_add_u32 v8, v5, 2, v8")
    a("v_add_u32 v8, v8, v6")
    a("s_movk_i32 s%d, 160" % S_T1)
    a("v_mul_u32_u24 v8, s%d, v8" % S_T1)
    a("v_lshl_add_u32 v8, v7, 3, v8")
    a("s_mul_i32 s%d, s%d, 51200" % (S_T2, S_CS))
    a("v_add_u32 v%d, s%d, v8" % (C_WA, S_T2))
    a("v_mul_u32_u24 v8, 40, v%d" % V_KG)
    a("v_add3_u32 v8, v8, v6, 16")
    a("v_mul_u32_u24 v8, s%d, v8" % S_T1)
    a("v_lshl_add_u32 v8, v7, 3, v8")
    a("v_add_u32 v%d, s%d, v8" % (C_WT, S_T2))
    a("v_lshlrev_b32 v%d, 4, v%d" % (C_OF, V_LANE))
    a("s_lshl_b32 s%d, s%d, 4" % (S_T2, S_RG))
    a("v_add_u32 v8, s%d, v%d" % (S_T2, V_N))
    a("s_movk_i32 s%d, 2560" % S_T2)
    a("v_mul_u32_u24 v8, s%d, v8" % S_T2)
    a("v_lshl_add_u32 v8, v%d, 3, v8" % V_KG)
    a("v_add_u32 v%d, s%d, v8" % (C_OUT, S_T0))
    a("s_mul_i32 s%d, s%d, 10240" % (S_T2, S_RG))
    a("s_add_u32 s%d, s%d, %d" % (S_T2, S_T2, XCH3))
    a("v_add_u32 v%d, s%d, v%d" % (C_XA, S_T2, C_OF))

def wo_block(a, srd_wo):
    a("s_mul_i32 s%d, s%d, %d" % (S_OFF, S_T0, 32 * 1280))
    a("s_mul_i32 s%d, s%d, 5120" % (S_T0, S_T0))
    for j in range(5):
        a("s_add_u32 m0, s%d, %d" % (S_T0, j * 1024))
        a("s_nop 0")
        a("buffer_load_dwordx4 v%d, s[%d:%d], s%d offen %s lds" % (C_DMA + j, srd_wo, srd_wo + 3, S_OFF, DML))

def wo_load(a, srd_wo, skip0=False, first=0):
    nw = 7 if skip0 else 8
    nb = 20 - first
    for k in range((nb + nw - 1) // nw):
        l = a.newlabel("wol")
        if skip0:
            a("s_cmp_eq_u32 s%d, 0" % S_WV)
            a("s_cbranch_scc1 %s" % l)
        a("s_add_u32 s%d, s%d, %d" % (S_T0, S_WV, first + nw * k))
        if skip0: a("s_sub_u32 s%d, s%d, 1" % (S_T0, S_T0))
        if first + nw * k + nw > 20:
            a("s_cmp_ge_u32 s%d, 20" % S_T0)
            a("s_cbranch_scc1 %s" % l)
        wo_block(a, srd_wo)
        a.label(l)

def p3_oloads(a, br, s_row0, k):
    a("s_lshr_b32 s%d, s%d, 4" % (S_T0, s_row0))
    a("s_add_u32 s%d, s%d, s%d" % (S_T0, S_T0, S_RG))
    a("s_add_u32 s%d, s%d, %d" % (S_T0, S_T0, 4 * k))
    a("s_mul_i32 s%d, s%d, 20480" % (S_T0, S_T0))
    a("s_add_u32 s%d, s%d, %d" % (S_T0, S_T0, WS_O + br * O_BR))
    a("s_lshl_b32 s%d, s%d, 13" % (S_T1, S_CS))
    a("s_add_u32 s%d, s%d, s%d" % (S_T1, S_T1, S_T0))
    for i in range(8):
        a("s_add_u32 s%d, s%d, %d" % (S_OFF, S_T1, i * 1024))
        a("buffer_load_dwordx4 %s, v%d, s[%d:%d], s%d offen %s" % (vr(C_O + 40 * k + 4 * i, 4), C_OF, S_WS, S_WS + 3, S_OFF, LD))
    a("s_lshl_b32 s%d, s%d, 11" % (S_T1, S_CS))
    a("s_add_u32 s%d, s%d, s%d" % (S_T1, S_T1, S_T0))
    for i in range(2):
        a("s_add_u32 s%d, s%d, %d" % (S_OFF, S_T1, (16 + i) * 1024))
        a("buffer_load_dwordx4 %s, v%d, s[%d:%d], s%d offen %s" % (vr(C_O + 40 * k + 32 + 4 * i, 4), C_OF, S_WS, S_WS + 3, S_OFF, LD))

def p3_wreads(i):
    wb = C_WB + 20 * (i % 3)
    L = []
    for T in range(5):
        for rd in range(2):
            if i < 8: L.append("ds_read_b64_tr_b16 %s, v%d offset:%d" % (vr(wb + 4 * T + 2 * rd, 2), C_WA, i * 6400 + rd * 1280 + 32 * T))
            else: L.append("ds_read_b64_tr_b16 %s, v%d offset:%d" % (vr(wb + 4 * T + 2 * rd, 2), C_WT, (i - 8) * 25600 + rd * 3200 + 32 * T))
    return L

def p3_mm(a, sets, vm_after, extra={}):
    lq = LQ(a)
    ids = {}
    ids[0] = [lq.issue(x) for x in p3_wreads(0)]
    ids[1] = [lq.issue(x) for x in p3_wreads(1)]
    for i in range(10):
        wb = C_WB + 20 * (i % 3)
        rd = p3_wreads(i + 2) if i + 2 < 10 else []
        ids[i + 2] = []
        n = vm_after(i)
        if n is not None: a("s_waitcnt vmcnt(%d)" % n)
        emit(a, extra.get(i))
        mm = [(T, mfma16(C_ACC + 20 * k + 4 * T, wb + 4 * T, C_O + 40 * sets[k] + 4 * i, "0" if i == 0 else None)) for T in range(5) for k in range(len(sets))]
        per = (len(rd) + len(mm) - 1) // len(mm) if rd else 0
        for (T, m) in mm:
            lq.need(ids[i][2 * T + 1])
            a(m)
            for _ in range(per):
                if rd: ids[i + 2].append(lq.issue(rd.pop(0)))

XCH3 = 102400
OTILE = 0
def p3_epilogue(a, br, s_row0, nset):
    npieces = 640 * nset
    nround = (npieces + 511) // 512
    last_waves = (npieces - 512 * (nround - 1)) // 64
    def send(tiles):
        def f(a):
            for k in range(nset):
                for T in tiles:
                    a("ds_write_b128 v%d, %s offset:%d" % (C_XA, vr(C_ACC + 20 * k + 4 * T, 4), k * 5120 + T * 1024))
        return f
    a("s_lshl_b32 s%d, s%d, 4" % (S_T0, S_RG))
    a("v_add_u32 v4, s%d, v%d" % (S_T0, V_N))
    a("s_movk_i32 s%d, 176" % S_T1)
    a("v_mul_u32_u24 v4, s%d, v4" % S_T1)
    a("v_lshl_add_u32 v4, v%d, 3, v4" % V_KG)
    a("s_nop 3")
    role_branch(a, send([3, 4]), send([0, 1, 2]))
    a("s_lshl_b32 s%d, s%d, 6" % (S_T0, S_WV))
    a("v_add_u32 v5, s%d, v%d" % (S_T0, V_LANE))
    a("s_movk_i32 s%d, 6554" % S_T2)
    a("s_movk_i32 s%d, 2560" % S_T3)
    a("s_mul_i32 s%d, s%d, 160" % (S_T4, S_G))
    for m in range(nround):
        a("v_add_u32 v6, %d, v5" % (512 * m))
        a("v_mul_u32_u24 v7, s%d, v6" % S_T2)
        a("v_lshrrev_b32 v7, 16, v7")
        a("v_mul_u32_u24 v8, 10, v7")
        a("v_sub_u32 v8, v6, v8")
        a("v_mul_u32_u24 v9, s%d, v7" % S_T1)
        a("v_lshl_add_u32 v%d, v8, 4, v9" % (C_R + m))
        a("v_mul_u32_u24 v9, s%d, v7" % S_T3)
        a("v_lshl_add_u32 v9, v8, 4, v9")
        a("v_add_u32 v%d, s%d, v9" % (C_R + 4 + m, S_T4))
    a("s_waitcnt lgkmcnt(0)")
    a("s_barrier")
    def recv(tiles):
        def f(a):
            for k in range(nset):
                for n_, T in enumerate(tiles):
                    a("ds_read_b128 %s, v%d offset:%d" % (vr(C_WB + 12 * k + 4 * n_, 4), C_XA, k * 5120 + T * 1024))
            a("s_waitcnt lgkmcnt(0)")
            for k in range(nset):
                for n_, T in enumerate(tiles):
                    d = C_ACC + 20 * k + 4 * T
                    r = C_WB + 12 * k + 4 * n_
                    for q in (0, 2): a("v_pk_add_f32 %s, %s, %s" % (vr(d + q, 2), vr(d + q, 2), vr(r + q, 2)))
                    a("v_cvt_pk_bf16_f32 v%d, v%d, v%d" % (d, d, d + 1))
                    a("v_cvt_pk_bf16_f32 v%d, v%d, v%d" % (d + 1, d + 2, d + 3))
                    a("ds_write_b64 v4, %s offset:%d" % (vr(d, 2), OTILE + k * 64 * 176 + 32 * T))
        return f
    role_branch(a, recv([0, 1, 2]), recv([3, 4]))
    a("s_mul_i32 s%d, s%d, 2560" % (S_T0, s_row0))
    a("s_add_u32 s%d, s%d, %d" % (S_T0, S_T0, br * 1280))
    a("s_waitcnt lgkmcnt(0)")
    a("s_barrier")
    for m in range(nround):
        l = a.newlabel("fr")
        if m == nround - 1 and last_waves < 8:
            a("s_cmp_ge_u32 s%d, %d" % (S_WV, last_waves))
            a("s_cbranch_scc1 %s" % l)
        a("ds_read_b128 %s, v%d offset:%d" % (vr(C_O + 4 * m, 4), C_R + m, OTILE))
        a.label(l)
    a("s_waitcnt lgkmcnt(0)")
    for m in range(nround):
        l = a.newlabel("fs")
        if m == nround - 1 and last_waves < 8:
            a("s_cmp_ge_u32 s%d, %d" % (S_WV, last_waves))
            a("s_cbranch_scc1 %s" % l)
        a("buffer_store_dwordx4 %s, v%d, s[%d:%d], s%d offen %s" % (vr(C_O + 4 * m, 4), C_R + 4 + m, S_OUT, S_OUT + 3, S_T0, OUTST))
        a.label(l)
assert all((p * 6554) >> 16 == p // 10 for p in range(1536))

def poll_oa(a, half_):
    a("v_lshrrev_b32 v7, 3, v%d" % V_LANE)
    a("v_and_b32 v8, 7, v%d" % V_LANE)
    a("v_lshlrev_b32 v7, 7, v7")
    a("v_lshl_add_u32 v7, v8, 2, v7")
    a("s_lshl_b32 s%d, s%d, 1" % (S_T0, S_R))
    a("s_add_u32 s%d, s%d, %d" % (S_T0, S_T0, half_))
    a("s_lshl_b32 s%d, s%d, 10" % (S_T0, S_T0))
    a("s_add_u32 s%d, s%d, %d" % (S_T0, S_T0, F_OA))
    poll(a, 7, S_T0, "-1", "-1")

S_JR = S_DB
def phase3A(a):
    p3_dma_setup(a)
    p3_setup(a)
    a("s_waitcnt vmcnt(0)")
    oa_flag_off(a, S_T0, 1)
    publish(a, S_T0, None)
    poll_oa(a, 0)
    a("s_barrier")
    stamp(a, "attn")
    a("s_lshl_b32 s%d, s%d, 7" % (S_JR, S_R))
    p3_oloads(a, 0, S_JR, 0)
    wo_load(a, S_WO)
    a("s_waitcnt vmcnt(0)")
    a("s_barrier")
    stamp(a, "j0a")
    p3_mm(a, [0], lambda i: None)
    stamp(a, "j1a")
    p3_epilogue(a, 0, S_JR, 1)
    stamp(a, "j2a")

def phaseB(a):
    a("v_lshlrev_b32 v7, 7, v%d" % V_LANE)
    a("s_lshl_b32 s%d, s%d, 11" % (S_T0, S_G))
    a("s_add_u32 s%d, s%d, %d" % (S_T0, S_T0, F_PART))
    poll(a, 7, S_T0, "0xffff", "0")
    a("s_waitcnt lgkmcnt(0)")
    a("s_barrier")
    stamp(a, "poll1")
    apply_phase(a)
    stamp(a, "kvld")
    p3_setup(a)
    a("s_waitcnt vmcnt(0)")
    a("s_barrier")
    a("s_lshl_b32 s%d, s%d, 3" % (S_T0, S_R))
    a("s_add_u32 s%d, s%d, s%d" % (S_T0, S_T0, S_G))
    a("s_lshl_b32 s%d, s%d, 7" % (S_T0, S_T0))
    a("s_add_u32 s%d, s%d, %d" % (S_T0, S_T0, F_OB))
    publish(a, S_T0, 0)
    stamp(a, "attn")
    a("v_lshlrev_b32 v7, 7, v%d" % V_LANE)
    a("s_lshl_b32 s%d, s%d, 10" % (S_T0, S_R))
    a("s_add_u32 s%d, s%d, %d" % (S_T0, S_T0, F_OB))
    poll(a, 7, S_T0, "0xff", "0")
    a("s_barrier")
    stamp(a, "j0b")
    a("s_lshl_b32 s%d, s%d, 7" % (S_JR, S_R))
    p3_oloads(a, 1, S_JR, 0)
    p3_oloads(a, 1, S_JR, 1)
    p3_mm(a, [0, 1], lambda i: 9 - i)
    stamp(a, "j1b")
    p3_epilogue(a, 1, S_JR, 2)
    stamp(a, "j2b")
    a("s_barrier")
    wo_load(a, S_WO, skip0=True)
    poll_oa(a, 1)
    a("s_waitcnt vmcnt(0)")
    a("s_barrier")
    stamp(a, "j0a")
    a("s_lshl_b32 s%d, s%d, 7" % (S_JR, S_R))
    a("s_add_u32 s%d, s%d, 64" % (S_JR, S_JR))
    p3_oloads(a, 0, S_JR, 0)
    p3_mm(a, [0], lambda i: 9 - i)
    stamp(a, "j1a")
    p3_epilogue(a, 0, S_JR, 1)
    stamp(a, "j2a")

def epoch_update(a):
    l = a.newlabel("ep")
    a("s_cmp_eq_u32 s2, 0")
    a("s_cbranch_scc0 %s" % l)
    a("v_lshlrev_b32 v7, 7, v%d" % V_LANE)
    for k in range(4):
        a("s_mov_b32 s%d, %d" % (S_T0, F_KV + k * 64 * 128))
        poll(a, 7, S_T0, "-1", "-1")
    a("s_mov_b32 s%d, %d" % (S_T0, WS_FLAG))
    publish(a, S_T0, 0)
    a.label(l)

HEADER = """; sliding-window attention block + linear attention block, one fused launch (generated by gen3.py)
"""
def build():
    out = [HEADER, "; @launch grid=(256,1,1) block=(512,1,1) lds=163840\n"]
    out.append('.amdgcn_target "amdgcn-amd-amdhsa--gfx950"\n.text\n')
    a = Asm()
    stubs = []
    entry(a)
    phase1(a)
    if 'p1only' in OPT: a("s_branch L_fin2")
    lb = a.newlabel("brB")
    a("s_cmp_eq_u32 s%d, 0" % S_BR)
    a("s_cbranch_scc0 %s" % lb)
    phase2A(a, stubs)
    phase3A(a)
    a("s_branch L_fin")
    emit_stubs(a, stubs)
    a.label(lb)
    phaseB(a)
    a.label("L_fin")
    epoch_update(a)
    a.label("L_fin2")
    stamp(a, "end")
    if STAMPS: a("s_waitcnt vmcnt(0)")
    stamp_store(a)
    a.label("L_end"); a("s_endpgm")
    a.label("L_codeend")
    out.append(".globl %s\n.p2align 8\n.type %s,@function\n%s:\n" % (NAME, NAME, NAME) + a.text())
    if 'nocodepf' not in OPT:
        out.append(".set CODE_TOTAL, L_codeend - L_pcbase\n.set CODE_CHUNK, ((CODE_TOTAL / 8 + 127) / 128) * 128\n.set CODE_LAST, CODE_TOTAL - 4\n")
    out.append('.section .rodata,"a"\n.p2align 6\n')
    out.append((".amdhsa_kernel %s\n  .amdhsa_next_free_vgpr 256\n  .amdhsa_next_free_sgpr 102\n  .amdhsa_accum_offset 256\n"
                "  .amdhsa_group_segment_fixed_size 0\n  .amdhsa_kernarg_size 72\n  .amdhsa_user_sgpr_count 2\n"
                "  .amdhsa_user_sgpr_kernarg_segment_ptr 1\n  .amdhsa_system_sgpr_workgroup_id_x 1\n.end_amdhsa_kernel\n") % NAME)
    return "".join(out)

if __name__ == "__main__":
    OPT = set(sys.argv[2:])
    for x in sys.argv:
        if x.startswith("st="):
            STAMPS = True
            STMAP = {n: i for i, n in enumerate(x[3:].split(","))}
    for x in OPT:
        if x.startswith('sch='): SCHED = x[4:]
        if x.startswith('wsb='): WS_BASE = int(x[4:]) << 20
        if x.startswith('outst='): OUTST = x[6:].replace('+', ' ')
    if 'pfnt' in OPT: PFL = "nt"
    if 'dmant' in OPT: DML = "nt"
    if 'p1only' in OPT: S_ST = 84
    open(sys.argv[1], "w").write(build())
```

```python
import sys, struct
from asmlib import Asm, vr, sr

NAME = "concat_heads__sliding_block__linear_attn_block__prompt_kernel"
WS_KV   = 0x0000000
WS_O    = 0x0A00000
WS_PART = 0x0F00000
WS_FLAG = 0x1000000
WS_STAMP = 0x1080000
WS_SIZE = 0x1100000
O_BR = 128 * 20480
F_KV, F_PART, F_OA, F_OB = WS_FLAG + 0x1000, WS_FLAG + 0x5000, WS_FLAG + 0x9000, WS_FLAG + 0x11000
SPIN_LIMIT = 40000
ST, LD = "sc1", "sc1"
PFL = ""
DML = ""
STAMPS, STMAP, OPT = False, None, set()
SCHED = 'e'
WS_BASE = 0
OUTST = ''

S_NONCE = 3
S_ST = 4
S_I, S_U = 22, 23
S_X, S_W, S_WS, S_OUT, S_WO, S_WOB = 24, 28, 32, 36, 40, 44
S_BR, S_R, S_G, S_WV, S_RG, S_CS = 48, 49, 50, 51, 52, 53
S_T0, S_T1, S_T2, S_T3, S_T4, S_T5 = 54, 55, 56, 57, 58, 59
S_DB, S_OFF = 60, 61
S_M0, S_M1, S_M2 = 62, 64, 66
S_D, S_SB, S_SOFF, S_STEP, S_J = 68, 72, 76, 77, 78
S_G1 = 82
S_MASK = 68

V_IMG, V_LANE, V_N, V_KG = 0, 1, 2, 3
V_DMA, V_XA, V_WA, V_PF, V_XT, V_WB0, V_WB1 = 10, 15, 19, 29, 32, 40, 60
V_ACC, V_ACC2, V_XP, V_DMA2, V_PFD, V_WA2 = 80, 120, 160, 240, 245, 246
LDS_W = 65536
XSLOT, WSLOT = 16384, 20480
LOG2E = 1.4426950408889634
QSCALE = LOG2E / (20.0 ** 0.5)

def f2u(x): return struct.unpack("<I", struct.pack("<f", x))[0]
def mfma16(d, x, y, c=None):
    return "v_mfma_f32_16x16x32_bf16 %s, %s, %s, %s" % (vr(d, 4), vr(x, 4), vr(y, 4), vr(d, 4) if c is None else c)
def mfma32(d, x, y, c=None):
    return "v_mfma_f32_32x32x16_bf16 %s, %s, %s, %s" % (vr(d, 16), vr(x, 4), vr(y, 4), vr(d, 16) if c is None else c)
def emit(a, item):
    if item is None: return
    if callable(item): item(a)
    elif isinstance(item, (list, tuple)):
        for x in item: emit(a, x)
    else: a(item)

class LQ:
    def __init__(self, a): self.a, self.n, self.done = a, 0, 0
    def issue(self, s, cnt=1):
        emit(self.a, s); self.n += cnt; return self.n
    def need(self, idx):
        if idx > self.done:
            cnt = self.n - idx
            self.a("s_waitcnt lgkmcnt(%d)" % min(cnt, 15))
            self.done = idx if cnt <= 15 else self.n - 15
    def drain(self):
        if self.n > self.done:
            self.a("s_waitcnt lgkmcnt(0)"); self.done = self.n

NST = 8
def rec(f, *args):
    r = Asm(); r.nlab = 900000; f(r, *args)
    return [l.strip() for l in r.lines]
def stamp(a, name):
    if not STAMPS or STMAP is None or name not in STMAP: return
    i = STMAP[name]
    a("%s s[%d:%d]" % ("s_memtime" if 'cyc' in OPT else "s_memrealtime", S_ST + 2 * i, S_ST + 2 * i + 1))
def stamp_dbg(a):
    a("s_memrealtime s[20:21]")
    a("s_load_dwordx2 s[24:25], s[0:1], 56")
    a("s_waitcnt lgkmcnt(0)")
    a("s_mov_b32 s26, 256"); a("s_mov_b32 s27, 0x20000")
    a("s_mov_b64 exec, 1")
    a("v_mov_b32 v4, 0")
    a("s_not_b32 s22, s101")
    for reg, slot in [(22, 0), (20, 1)] + [(S_ST + 2 * i, 2 + i) for i in range(NST)]:
        a("v_mov_b32 v5, s%d" % reg)
        a("buffer_atomic_umax v5, v4, s[24:27], 0 offen offset:%d" % (slot * 4))
    a("v_mov_b32 v5, s101")
    a("buffer_atomic_umax v5, v4, s[24:27], 0 offen offset:%d" % (10 * 4))
    a("s_mov_b64 exec, -1")

def stamp_store(a):
    if not STAMPS: return
    if 'dbg' in OPT: return stamp_dbg(a)
    a("s_memrealtime s[20:21]")
    a("s_memtime s[24:25]")
    a("s_waitcnt lgkmcnt(0)")
    a("s_lshl_b32 s%d, s2, 3" % S_T0)
    a("s_add_u32 s%d, s%d, s%d" % (S_T0, S_T0, S_WV))
    a("s_lshl_b32 s%d, s%d, 6" % (S_T0, S_T0))
    a("s_add_u32 s%d, s%d, %d" % (S_T0, S_T0, WS_STAMP))
    a("s_mov_b64 exec, 1")
    a("v_mov_b32 v4, 0")
    for i in range(NST):
        a("v_mov_b32 v5, s%d" % (S_ST + 2 * i))
        a("buffer_store_dword v5, v4, s[%d:%d], s%d offen offset:%d" % (S_WS, S_WS + 3, S_T0, i * 4))
    a("s_getreg_b32 s21, hwreg(HW_REG_XCC_ID)")
    a("s_getreg_b32 s22, hwreg(HW_REG_HW_ID)")
    for reg, slot in ((20, 15), (101, 14), (100, 13), (21, 12), (22, 11), (24, 10)):
        a("v_mov_b32 v5, s%d" % reg)
        a("buffer_store_dword v5, v4, s[%d:%d], s%d offen offset:%d" % (S_WS, S_WS + 3, S_T0, slot * 4))
    a("s_mov_b64 exec, -1")

def minwrap(a, v, m, tmp):
    a("v_subrev_u32 v%d, %d, v%d" % (tmp, m, v))
    a("v_min_u32 v%d, v%d, v%d" % (v, v, tmp))
def srd(a, d, lo, hi, size):
    a("s_mov_b32 s%d, s%d" % (d, lo)); a("s_mov_b32 s%d, s%d" % (d + 1, hi))
    a("s_mov_b32 s%d, %d" % (d + 2, size)); a("s_mov_b32 s%d, 0x20000" % (d + 3))
def role_branch(a, fw, fx):
    lx, ld = a.newlabel("rx"), a.newlabel("rd")
    a("s_cmp_eq_u32 s%d, 0" % S_CS)
    a("s_cbranch_scc0 %s" % (lx if fx else ld))
    emit(a, fw)
    if fx:
        a("s_branch %s" % ld)
        a.label(lx)
        emit(a, fx)
    a.label(ld)
def on_wave(a, wave, f):
    l = a.newlabel("ow")
    a("s_cmp_eq_u32 s%d, %d" % (S_WV, wave))
    a("s_cbranch_scc0 %s" % l)
    emit(a, f)
    a.label(l)

def entry(a):
    a("s_cmp_ge_u32 s2, 256")
    a("s_cbranch_scc1 L_end")
    if STAMPS:
        a("s_memrealtime s[100:101]")
        a("s_memtime s[62:63]")
    a("s_load_dwordx16 s[4:19], s[0:1], 0")
    a("s_load_dwordx2 s[20:21], s[0:1], 64")
    a("s_and_b32 s%d, s2, 7" % S_T0)
    a("s_lshr_b32 s%d, s2, 3" % S_I)
    a("v_lshrrev_b32 v4, 6, v0")
    a("v_and_b32 v%d, 63, v0" % V_LANE)
    a("v_and_b32 v%d, 15, v0" % V_N)
    a("v_readfirstlane_b32 s%d, v4" % S_WV)
    a("v_lshrrev_b32 v%d, 4, v%d" % (V_KG, V_LANE))
    a("s_and_b32 s%d, s%d, 1" % (S_BR, S_T0))
    a("s_lshr_b32 s%d, s%d, 1" % (S_T2, S_T0))
    a("s_and_b32 s%d, s%d, 1" % (S_T3, S_T2))
    a("s_lshl_b32 s%d, s%d, 3" % (S_T3, S_T3))
    a("s_and_b32 s%d, s%d, 7" % (S_T4, S_I))
    a("s_add_u32 s%d, s%d, s%d" % (S_R, S_T3, S_T4))
    a("s_lshr_b32 s%d, s%d, 1" % (S_T3, S_T2))
    a("s_lshr_b32 s%d, s%d, 3" % (S_T4, S_I))
    a("s_lshl_b32 s%d, s%d, 2" % (S_T5, S_T3))
    a("s_add_u32 s%d, s%d, s%d" % (S_G, S_T5, S_T4))
    a("s_lshl_b32 s%d, s%d, 1" % (S_T3, S_T3))
    a("s_and_b32 s%d, s%d, 1" % (S_T5, S_T4))
    a("s_add_u32 s%d, s%d, s%d" % (S_T3, S_T3, S_T5))
    a("s_lshr_b32 s%d, s%d, 1" % (S_T4, S_T4))
    a("s_lshl_b32 s%d, s%d, 2" % (S_T4, S_T4))
    a("s_add_u32 s%d, s%d, s%d" % (S_G1, S_T3, S_T4))
    a("s_and_b32 s%d, s%d, 3" % (S_RG, S_WV))
    a("s_lshr_b32 s%d, s%d, 2" % (S_CS, S_WV))
    if 'nocodepf' not in OPT:
        def cpf(a):
            a("s_getpc_b64 s[56:57]")
            a.label("L_pcbase")
            a("s_and_b32 s%d, s%d, 7" % (S_T4, S_I))
            a("s_mul_i32 s%d, s%d, CODE_CHUNK" % (S_T4, S_T4))
            a("v_lshlrev_b32 v4, 7, v%d" % V_LANE)
            a("v_add_u32 v4, s%d, v4" % S_T4)
            a("v_min_u32 v4, CODE_LAST, v4")
            a("global_load_dword v%d, v4, s[56:57]" % V_PFD)
        on_wave(a, 7, cpf)

def dma_setup(a):
    stamp(a, "ids")
    def fw(a):
        a("s_mul_i32 s%d, s%d, %d" % (S_T0, S_RG, 16 * 3840))
        a("s_mul_i32 s%d, s%d, 160" % (S_T1, S_G))
        a("s_mul_i32 s%d, s%d, 320" % (S_T2, S_G1))
        a("s_cmp_eq_u32 s%d, 0" % S_BR)
        a("s_cselect_b32 s%d, s%d, s%d" % (S_T2, S_T2, S_T1))
        a("s_cselect_b32 s%d, 0, 1120" % S_T5)
        a("s_add_u32 s%d, s%d, s%d" % (S_T2, S_T2, S_T0))
        a("s_add_u32 s%d, s%d, 1280" % (S_T2, S_T2))
        a("s_add_u32 s%d, s%d, s%d" % (S_T0, S_T0, S_T1))
        a("s_movk_i32 s%d, 3277" % S_T1)
        a("s_movk_i32 s%d, 3840" % S_T3)
        a("s_mov_b32 s%d, %d" % (S_T4, 245760 - 160))
        for j in range(5):
            p, kk, q, u, t = 4, 5, 6, 7, 8
            a("v_add_u32 v%d, %d, v%d" % (p, 64 * j, V_LANE))
            a("v_mul_u32_u24 v%d, s%d, v%d" % (kk, S_T1, p))
            a("v_lshrrev_b32 v%d, 16, v%d" % (kk, kk))
            a("v_mul_u32_u24 v%d, 20, v%d" % (q, kk))
            a("v_lshrrev_b32 v%d, 2, v%d" % (u, kk))
            a("v_sub_u32 v%d, v%d, v%d" % (q, p, q))
            a("v_and_b32 v%d, 2, v%d" % (u, u))
            a("v_sub_u32 v%d, v%d, v%d" % (u, q, u))
            a("v_add_u32 v%d, 20, v%d" % (t, u))
            a("v_min_u32 v%d, v%d, v%d" % (u, u, t))
            a("v_add_u32 v%d, 6, v%d" % (t, u))
            a("v_lshrrev_b32 v%d, 4, v%d" % (t, t))
            a("v_mul_u32_u24 v%d, s%d, v%d" % (kk, S_T3, kk))
            a("v_lshl_add_u32 v%d, v%d, 4, v%d" % (kk, u, kk))
            a("v_mad_u32_u24 v%d, v%d, s%d, v%d" % (q, t, S_T5, kk))
            a("v_add_u32 v%d, s%d, v%d" % (V_DMA + j, S_T2, q))
            a("v_mad_u32_u24 v%d, v%d, s%d, v%d" % (q, t, S_T4, kk))
            a("v_add_u32 v%d, s%d, v%d" % (V_DMA2 + j, S_T0, q))
        a("s_mul_i32 s%d, s%d, 5120" % (S_T0, S_RG))
        for k in range(4): a("s_add_u32 s%d, s%d, %d" % (S_SB + k, S_T0, LDS_W + k * WSLOT))
        a("s_mov_b32 s%d, %d" % (S_STEP, 64 * 3840))
        for k in range(1, 4): a("s_mov_b32 s%d, 0" % (S_J + k))
        a("v_and_b32 v4, 31, v%d" % V_LANE)
        a("v_lshrrev_b32 v5, 5, v%d" % V_LANE)
        a("v_min_u32 v4, 19, v4")
        a("s_lshr_b32 s%d, s%d, 2" % (S_T0, S_G))
        a("v_mul_u32_u24 v6, 13, v4"); a("v_lshrrev_b32 v6, 7, v6")
        a("v_mul_u32_u24 v7, 52, v4"); a("v_lshrrev_b32 v7, 8, v7")
        a("v_mul_u32_u24 v8, 5, v7"); a("v_sub_u32 v8, v4, v8")
        a("v_lshlrev_b32 v8, 7, v8")
        a("v_lshl_add_u32 v6, v5, 6, v6")
        a("s_lshl_b32 s%d, s%d, 1" % (S_T2, S_I))
        a("v_add_u32 v6, s%d, v6" % S_T2)
        a("v_mul_u32_u24 v6, s%d, v6" % S_T3)
        a("v_and_b32 v9, 1, v7")
        a("s_movk_i32 s%d, 1280" % S_T2)
        a("v_mul_u32_u24 v9, s%d, v9" % S_T2)
        a("v_add3_u32 v6, v6, v9, v8")
        a("s_mul_i32 s%d, s%d, 640" % (S_T0, S_T0))
        a("s_add_u32 s%d, s%d, 1280" % (S_T2, S_T0))
        a("v_add_u32 v%d, s%d, v6" % (V_PF + 1, S_T2))
        a("v_lshl_add_u32 v7, v5, 7, v7")
        a("s_lshl_b32 s%d, s%d, 2" % (S_T2, S_I))
        a("v_add_u32 v7, s%d, v7" % S_T2)
        a("v_mul_u32_u24 v7, s%d, v7" % S_T3)
        a("v_add3_u32 v%d, v7, v8, s%d" % (V_PF + 2, S_T0))
        a("v_mov_b32 v%d, 0" % V_PF)
    def fx(a):
        a("s_lshl_b32 s%d, s%d, 7" % (S_T0, S_R))
        a("s_lshl_b32 s%d, s%d, 5" % (S_T1, S_RG))
        a("s_add_u32 s%d, s%d, s%d" % (S_T0, S_T0, S_T1))
        a("s_mul_i32 s%d, s%d, 1280" % (S_T0, S_T0))
        a("s_movk_i32 s%d, 1280" % S_T1)
        a("v_lshrrev_b32 v4, 3, v%d" % V_LANE)
        a("v_and_b32 v5, 7, v%d" % V_LANE)
        a("v_xor_b32 v5, v5, v4")
        a("v_mul_u32_u24 v4, s%d, v4" % S_T1)
        a("v_lshl_add_u32 v4, v5, 4, v4")
        a("v_add_u32 v%d, s%d, v4" % (V_DMA, S_T0))
        for j in range(1, 5): a("v_mov_b32 v%d, v%d" % (V_DMA + j, V_DMA))
        for j in range(5): a("v_mov_b32 v%d, 0" % (V_DMA2 + j))
        a("s_lshl_b32 s%d, s%d, 12" % (S_T0, S_RG))
        for k in range(4): a("s_add_u32 s%d, s%d, %d" % (S_SB + k, S_T0, k * XSLOT))
        a("s_movk_i32 s%d, 128" % S_STEP)
        for k in range(1, 4): a("s_mov_b32 s%d, %d" % (S_J + k, k * 10240))
        a("v_and_b32 v4, 31, v%d" % V_LANE)
        a("v_lshrrev_b32 v5, 5, v%d" % V_LANE)
        a("s_lshr_b32 s%d, s%d, 3" % (S_T0, S_R))
        a("s_lshl_b32 s%d, s%d, 5" % (S_T0, S_T0))
        a("s_add_u32 s%d, s%d, s%d" % (S_T0, S_T0, S_I))
        a("s_mul_i32 s%d, s%d, %d" % (S_T0, S_T0, 32 * 1280))
        a("v_mul_u32_u24 v6, s%d, v4" % S_T1)
        a("v_lshl_add_u32 v6, v5, 7, v6")
        a("v_add_u32 v%d, s%d, v6" % (V_PF, S_T0))
        a("v_mov_b32 v%d, 0" % (V_PF + 1)); a("v_mov_b32 v%d, 0" % (V_PF + 2))
    role_branch(a, fw, fx)
    a("s_mov_b32 s%d, 0" % S_SOFF)

def entry_srd(a):
    a("s_waitcnt lgkmcnt(0)")
    a("s_cmp_eq_u32 s%d, 0" % S_BR)
    a("s_cselect_b32 s%d, s4, s10" % S_X)
    a("s_cselect_b32 s%d, s5, s11" % (S_X + 1))
    a("s_mov_b32 s%d, 2621440" % (S_X + 2))
    a("s_mov_b32 s%d, 0x20000" % (S_X + 3))
    a("s_cselect_b32 s%d, s6, s12" % S_W)
    a("s_cselect_b32 s%d, s7, s13" % (S_W + 1))
    a("s_mov_b32 s%d, 2457600" % (S_W + 2))
    a("s_mov_b32 s%d, 0x20000" % (S_W + 3))
    a("s_cmp_eq_u32 s%d, 0" % S_CS)
    a("s_cselect_b32 s%d, s%d, s%d" % (S_D, S_W, S_X))
    a("s_cselect_b32 s%d, s%d, s%d" % (S_D + 1, S_W + 1, S_X + 1))
    a("s_cselect_b32 s%d, s%d, s%d" % (S_D + 2, S_W + 2, S_X + 2))
    a("s_mov_b32 s%d, 0x20000" % (S_D + 3))

def entry_srd2(a):
    if WS_BASE:
        a("s_add_u32 s20, s20, %d" % WS_BASE)
        a("s_addc_u32 s21, s21, 0")
    srd(a, S_WS, 20, 21, WS_SIZE)
    srd(a, S_OUT, 16, 17, 5242880)
    srd(a, S_WO, 8, 9, 819200)
    srd(a, S_WOB, 14, 15, 819200)
    if STAMPS:
        a("s_mov_b32 s101, s100")
        a("s_mov_b32 s100, s62")
        if S_ST == 4:
            for i in range(NST): a("s_mov_b32 s%d, 0" % (S_ST + 2 * i))

def pf(kind, idx, k):
    def f(a):
        if 'nopf' in OPT: return
        def body(a):
            if kind == 'x': a("s_mov_b32 s%d, %d" % (S_OFF, idx * 256)); s_, v = S_X, V_PF
            elif kind == 'w': a("s_mov_b32 s%d, %d" % (S_OFF, idx * 128 * 3840)); s_, v = S_W, V_PF + 1
            else: a("s_mov_b32 s%d, %d" % (S_OFF, idx * 256 * 3840)); s_, v = S_W, V_PF + 2
            a("buffer_load_dword v%d, v%d, s[%d:%d], s%d offen %s" % (V_PFD, v, s_, s_ + 3, S_OFF, PFL))
        on_wave(a, (4 + k) if kind == 'x' else k, body)
    return f

def dma(sig, j):
    def f(a):
        if 'nodma' in OPT and sig >= 3: return
        slot = sig % 4
        def body(a):
            a("s_add_u32 m0, s%d, %d" % (S_SB + slot, j * 1024))
            if sig < 10:
                if 1 <= j <= 3:
                    a("s_add_u32 s%d, s%d, s%d" % (S_OFF, S_SOFF, S_J + j)); so = S_OFF
                else:
                    a("s_nop 0"); so = S_SOFF
                a("buffer_load_dwordx4 v%d, s[%d:%d], s%d offen %s lds" % (V_DMA + j, S_D, S_D + 3, so, DML))
            else:
                a("s_mov_b32 s%d, %d" % (S_OFF, (sig - 10) * 128 * 3840))
                a("buffer_load_dwordx4 v%d, s[%d:%d], s%d offen %s lds" % (V_DMA2 + j, S_D, S_D + 3, S_OFF, DML))
        if sig >= 10 or j == 4: role_branch(a, body, None)
        else: body(a)
        if sig < 10 and j == 4: a("s_add_u32 s%d, s%d, s%d" % (S_SOFF, S_SOFF, S_STEP))
    return f

def img_pos(a, dst, tmp):
    a("v_lshl_add_u32 v%d, v%d, 2, v%d" % (tmp, V_KG, V_N))
    a("v_and_b32 v%d, 15, v%d" % (tmp, tmp))
    a("v_lshl_add_u32 v%d, v%d, 4, v%d" % (tmp, V_KG, tmp))
    a("v_lshlrev_b32 v%d, 4, v%d" % (dst, tmp))

E_, RP, BB, W4, TM = V_ACC2, V_ACC2 + 1, V_ACC2 + 2, V_ACC2 + 3, V_ACC2 + 4
def addr1_setup(a):
    a("v_and_b32 v4, 7, v%d" % V_N)
    a("s_lshl_b32 s%d, s%d, 12" % (S_T0, S_RG))
    a("v_lshlrev_b32 v5, 7, v%d" % V_N)
    a("v_xor_b32 v4, v4, v%d" % V_KG)
    a("v_lshl_add_u32 v4, v4, 4, v5")
    a("s_xor_b32 s%d, s%d, 1" % (S_T5, S_CS))
    a("s_lshl_b32 s%d, s%d, 6" % (S_T1, S_T5))
    a("s_lshl_b32 s%d, s%d, 11" % (S_T2, S_CS))
    a("s_or_b32 s%d, s%d, s%d" % (S_T1, S_T1, S_T2))
    a("s_or_b32 s%d, s%d, s%d" % (S_T1, S_T1, S_T0))
    a("v_xor_b32 v%d, s%d, v4" % (V_XA, S_T1))
    a("v_xor_b32 v%d, 0x800, v%d" % (V_XA + 1, V_XA))
    a("v_xor_b32 v%d, 64, v%d" % (V_XA + 2, V_XA))
    a("v_xor_b32 v%d, 64, v%d" % (V_XA + 3, V_XA + 1))
    a("v_and_b32 v4, 3, v%d" % V_N)
    a("v_lshrrev_b32 v%d, 2, v%d" % (RP, V_N))
    a("v_and_b32 v7, 1, v%d" % V_KG)
    a("v_lshl_add_u32 v%d, v%d, 3, v%d" % (RP, V_KG, RP))
    a("s_movk_i32 s%d, 320" % S_T1)
    a("v_lshlrev_b32 v7, 5, v7")
    a("v_mul_u32_u24 v%d, s%d, v%d" % (RP, S_T1, RP))
    a("v_lshl_add_u32 v%d, v4, 3, v7" % E_)
    a("v_add_u32 v%d, %d, v%d" % (RP, LDS_W, RP))
    a("v_add_u32 v%d, v%d, v%d" % (BB, RP, E_))
    a("s_mul_i32 s%d, s%d, 160" % (S_T2, S_CS))
    a("s_mul_i32 s%d, s%d, 80" % (S_T3, S_CS))
    a("s_mul_i32 s%d, s%d, 10240" % (S_T0, S_T5))
    a("s_mul_i32 s%d, s%d, 10240" % (S_T1, S_CS))
    def sA(T):
        a("s_add_u32 s%d, s%d, %d" % (S_T4, S_T2, 40 * T))
        a("s_add_u32 s%d, s%d, %d" % (S_T5, S_T3, (T >> 1) * 160 + 40 * (T & 1)))
        a("s_cmp_eq_u32 s%d, 0" % S_BR)
        a("s_cselect_b32 s%d, s%d, s%d" % (S_T4, S_T4, S_T5))
    for T in range(3):
        sA(T)
        a("s_add_u32 s%d, s%d, s%d" % (S_T5, S_T4, S_T0))
        a("v_add_u32 v%d, s%d, v%d" % (V_WA + T, S_T5, BB))
        a("s_add_u32 s%d, s%d, s%d" % (S_T5, S_T4, S_T1))
        a("v_add_u32 v%d, s%d, v%d" % (V_WA + 5 + T, S_T5, BB))
    sA(3)
    a("v_add_u32 v5, s%d, v%d" % (S_T4, E_))
    minwrap(a, 5, 320, TM)
    a("v_add_u32 v5, v5, v%d" % RP)
    a("v_add_u32 v%d, s%d, v5" % (V_WA + 3, S_T0))
    a("v_add_u32 v%d, s%d, v5" % (V_WA + 8, S_T1))
    a("s_cmp_eq_u32 s%d, 0" % S_BR)
    a("s_cselect_b32 s%d, s%d, s%d" % (S_T4, S_T2, S_T3))
    a("s_cselect_b32 s%d, 0, 80" % S_T5)
    a("s_add_u32 s%d, s%d, 32" % (S_T4, S_T4))
    a("v_mul_u32_u24 v%d, 40, v4" % (W4))
    a("v_lshrrev_b32 v5, 1, v4")
    a("v_add_u32 v%d, v%d, v7" % (W4, W4))
    a("v_mad_u32_u24 v5, v5, s%d, v%d" % (S_T5, W4))
    a("v_add_u32 v5, s%d, v5" % S_T4)
    minwrap(a, 5, 320, TM)
    a("v_add_u32 v5, v5, v%d" % RP)
    a("v_add_u32 v%d, s%d, v5" % (V_WA + 4, S_T0))
    a("v_add_u32 v%d, s%d, v5" % (V_WA + 9, S_T1))

def addr2_setup(a):
    a("s_mul_i32 s%d, s%d, 10240" % (S_T1, S_CS))
    for seg in range(2):
        for T in range(4):
            if seg == 1 and T == 3: continue
            a("s_add_u32 s%d, s%d, %d" % (S_T4, S_T1, seg * 160 + 40 * T))
            a("v_add_u32 v%d, s%d, v%d" % (V_WA2 + seg * 5 + T, S_T4, BB))
    a("v_add_u32 v5, 280, v%d" % E_)
    minwrap(a, 5, 320, TM)
    a("v_add3_u32 v%d, v5, v%d, s%d" % (V_WA2 + 8, RP, S_T1))
    a("s_add_u32 s%d, s%d, 32" % (S_T4, S_T1))
    a("v_add3_u32 v%d, v%d, v%d, s%d" % (V_WA2 + 4, W4, RP, S_T4))
    a("v_add_u32 v5, 192, v%d" % (W4))
    minwrap(a, 5, 320, TM)
    a("v_add3_u32 v%d, v5, v%d, s%d" % (V_WA2 + 9, RP, S_T1))
    img_pos(a, V_IMG, 4)

def p1_reads(s, hf):
    if 'noread' in OPT: return ["s_nop 0"] * 12
    slot = s % 4
    wb = V_WB0 if hf == 0 else V_WB1
    L = []
    for tp in range(2):
        dst = (V_XT + 4 * tp) if hf == 0 else (V_XP + (s * 2 + tp) * 4)
        L.append("ds_read_b128 %s, v%d offset:%d" % (vr(dst, 4), V_XA + hf * 2 + tp, slot * XSLOT))
    for T in range(5):
        for rd in range(2):
            L.append("ds_read_b64_tr_b16 %s, v%d offset:%d" % (vr(wb + 4 * T + 2 * rd, 2), V_WA + hf * 5 + T, slot * WSLOT + rd * 1280))
    return L
def p1_mfmas(s, hf, first):
    if 'nomfma' in OPT: return ["s_nop 0"] * 10
    wb = V_WB0 if hf == 0 else V_WB1
    return [mfma16(V_ACC + (tp * 5 + T) * 4, (V_XT + 4 * tp) if hf == 0 else (V_XP + (s * 2 + tp) * 4), wb + 4 * T, "0" if first else None)
            for T in range(5) for tp in range(2)]
def p2_reads(u):
    v, seg = u >> 1, u & 1
    slot = (10 + v) % 4
    wb = V_WB0 if (u & 1) == 0 else V_WB1
    return ["ds_read_b64_tr_b16 %s, v%d offset:%d" % (vr(wb + 4 * T + 2 * rd, 2), V_WA2 + seg * 5 + T, slot * WSLOT + rd * 1280)
            for T in range(5) for rd in range(2)]
def p2_mfmas(u):
    wb = V_WB0 if (u & 1) == 0 else V_WB1
    return [mfma16(V_ACC2 + (tp * 5 + T) * 4, V_XP + (u * 2 + tp) * 4, wb + 4 * T, "0" if u == 0 else None)
            for T in range(5) for tp in range(2)]

def half(a, lq, mf, needs, reads, sched, extra):
    ids = []
    reads = list(reads)
    for i, m in enumerate(mf):
        lq.need(needs[i])
        a(m)
        for _ in range(sched[i]):
            if reads: ids.append(lq.issue(reads.pop(0)))
        if i in extra: emit(a, extra[i])
    while reads: ids.append(lq.issue(reads.pop(0)))
    return ids

def epi1_A(a):
    a("s_lshr_b32 s%d, s%d, 2" % (S_T0, S_G1))
    a("s_lshl_b32 s%d, s%d, 3" % (S_T0, S_T0))
    a("s_and_b32 s%d, s%d, 3" % (S_T1, S_G1))
    a("s_lshl_b32 s%d, s%d, 1" % (S_T1, S_T1))
    a("s_add_u32 s%d, s%d, s%d" % (S_T0, S_T0, S_T1))
    a("s_add_u32 s%d, s%d, s%d" % (S_T0, S_T0, S_CS))
    a("s_lshl_b32 s%d, s%d, 6" % (S_T0, S_T0))
    a("s_lshl_b32 s%d, s%d, 2" % (S_T1, S_R))
    a("s_add_u32 s%d, s%d, s%d" % (S_T0, S_T0, S_T1))
    a("s_add_u32 s%d, s%d, s%d" % (S_T0, S_T0, S_RG))
    a("s_mul_i32 s%d, s%d, 5120" % (S_T0, S_T0))
    a("s_add_u32 s%d, s%d, %d" % (S_T0, S_T0, WS_KV))
    a("s_add_u32 s%d, s%d, 4096" % (S_T1, S_T0))
    def pack(swap):
        def f(a):
            for T in range(5):
                e = V_ACC2 + T * 4
                for t in range(2):
                    tp = t ^ swap
                    d = V_ACC + (tp * 5 + T) * 4
                    a("v_cvt_pk_bf16_f32 v%d, v%d, v%d" % (e + 2 * t, d, d + 1))
                    a("v_cvt_pk_bf16_f32 v%d, v%d, v%d" % (e + 2 * t + 1, d + 2, d + 3))
                a("buffer_store_dwordx4 %s, v%d, s[%d:%d], s%d offen offset:%d %s" % (vr(e, 4), V_IMG, S_WS, S_WS + 3, S_T1 if T == 4 else S_T0, (T & 3) * 1024, ST))
                if 'dbl' in OPT:
                    a("buffer_store_dwordx4 %s, v%d, s[%d:%d], s%d offen offset:%d" % (vr(e, 4), V_IMG, S_WS, S_WS + 3, S_T1 if T == 4 else S_T0, (T & 3) * 1024))
        return f
    role_branch(a, pack(0), pack(1))
    a("s_nop 1")

def phi(a, regs, tmp):
    a("s_mov_b32 s%d, 0x%x" % (S_T4, f2u(LOG2E)))
    a("s_mov_b32 s%d, 0x%x" % (S_T5, f2u(LOG2E)))
    a("s_mov_b32 s%d, 0x%x" % (S_M2, f2u(1e-6)))
    a("s_mov_b32 s%d, 0x%x" % (S_M2 + 1, f2u(1e-6)))
    for i in range(0, len(regs), 4):
        g = regs[i:i + 4]
        assert g[0] % 2 == 0 and g[1] == g[0] + 1 and g[2] % 2 == 0 and g[3] == g[2] + 1
        for k in (0, 2): a("v_pk_mul_f32 %s, %s, s[%d:%d]" % (vr(tmp + k, 2), vr(g[k], 2), S_T4, S_T5))
        for k in range(4): a("v_exp_f32_e64 v%d, v%d clamp" % (tmp + k, tmp + k))
        for k in range(4): a("v_max_f32 v%d, 0, v%d" % (g[k], g[k]))
        for k in (0, 2): a("v_pk_add_f32 %s, %s, s[%d:%d]" % (vr(g[k], 2), vr(g[k], 2), S_M2, S_M2 + 1))
        for k in (0, 2): a("v_pk_add_f32 %s, %s, %s" % (vr(g[k], 2), vr(g[k], 2), vr(tmp + k, 2)))

def piece_decode(a):
    a("s_and_b32 s%d, s%d, 1" % (S_T0, S_WV))
    a("s_lshl_b32 s%d, s%d, 6" % (S_T0, S_T0))
    a("v_add_u32 v5, s%d, v%d" % (S_T0, V_LANE))
    a("s_movk_i32 s%d, 2731" % S_T1)
    a("v_mul_u32_u24 v6, s%d, v5" % S_T1)
    a("v_lshrrev_b32 v6, 16, v6")
    a("v_mul_u32_u24 v7, 24, v6")
    a("v_sub_u32 v7, v5, v7")

def epi1_B(a):
    acc = lambda tp, T: V_ACC + (tp * 5 + T) * 4
    raw = V_WB0
    TMP = V_ACC2
    a("s_nop 7")
    for tp in range(2):
        for k in range(4): a("v_mov_b32 v%d, v%d" % (raw + tp * 4 + k, acc(tp, 4) + k))
    regs = []
    for T in (0, 1, 4):
        for tp in range(2): regs += [acc(tp, T) + k for k in range(4)]
    phi(a, regs, TMP)
    a("s_mov_b32 s%d, 0x00ff00ff" % S_M0)
    a("s_mov_b32 s%d, 0x00ff00ff" % (S_M0 + 1))
    for tp in range(2):
        for k in range(4):
            a("v_cndmask_b32_e64 v%d, v%d, v%d, s[%d:%d]" % (acc(tp, 4) + k, raw + tp * 4 + k, acc(tp, 4) + k, S_M0, S_M0 + 1))
    P = V_WB1
    for T in range(5):
        for tp in range(2):
            d = acc(tp, T)
            a("v_cvt_pk_bf16_f32 v%d, v%d, v%d" % (P + 4 * T + 2 * tp, d, d + 1))
            a("v_cvt_pk_bf16_f32 v%d, v%d, v%d" % (P + 4 * T + 2 * tp + 1, d + 2, d + 3))
    TB = V_WB0 + 8
    a("v_mov_b32 v%d, 0x3f803f80" % TMP)
    for k in range(4):
        a("v_cndmask_b32_e64 v%d, v%d, v%d, s[%d:%d]" % (TB + k, P + 16 + k, TMP, S_M0, S_M0 + 1))
    F0, F1, V0, V1, TA = P, P + 4, P + 8, P + 12, P + 16
    D = V_ACC
    a("s_mul_i32 s%d, s%d, 7168" % (S_T0, S_WV))
    a("v_lshlrev_b32 v4, 4, v%d" % V_LANE)
    for i, (x, y) in enumerate([(F0, V0), (F1, V1), (F0, TB), (F1, TB), (TA, V0), (TA, V1), (TA, TB)]):
        a(mfma16(D + 4 * i, x, y, "0"))
    a("v_add_u32 v4, s%d, v4" % S_T0)
    piece_decode(a)
    M = TMP
    a("s_lshr_b32 s%d, s%d, 1" % (S_T2, S_WV))
    a("s_and_b32 s%d, s%d, 1" % (S_T3, S_T2))
    a("s_lshr_b32 s%d, s%d, 1" % (S_T2, S_T2))
    a("s_lshl_b32 s%d, s%d, 2" % (S_T4, S_T3))
    a("s_sub_u32 s%d, s%d, 8" % (S_T4, S_T4))
    a("v_add_u32 v8, s%d, v7" % S_T4)
    a("v_cmp_gt_u32_e64 s[%d:%d], 20, v7" % (S_M0, S_M0 + 1))
    a("v_cmp_gt_u32_e64 s[%d:%d], 16, v7" % (S_M1, S_M1 + 1))
    a("v_cmp_gt_u32_e64 s[%d:%d], 4, v6" % (S_M2, S_M2 + 1))
    a("s_barrier")
    for i in range(7):
        a("ds_write_b128 v4, %s offset:%d" % (vr(D + 4 * i, 4), i * 1024))
    a("v_cndmask_b32_e64 v8, 0, v8, s[%d:%d]" % (S_M0, S_M0 + 1))
    a("v_cndmask_b32_e64 v8, v8, v7, s[%d:%d]" % (S_M1, S_M1 + 1))
    a("v_mov_b32 v9, s%d" % S_T3)
    a("v_cndmask_b32_e64 v9, v9, v6, s[%d:%d]" % (S_M2, S_M2 + 1))
    a("v_lshl_add_u32 v8, v9, 4, v8")
    a("s_add_u32 s%d, s%d, 4" % (S_T4, S_T3))
    a("v_mov_b32 v9, s%d" % S_T4)
    a("v_mov_b32 v%d, s%d" % (M, S_T3))
    a("v_cndmask_b32_e64 v9, v9, v%d, s[%d:%d]" % (M, S_M2, S_M2 + 1))
    a("s_add_u32 s%d, s%d, 2" % (S_T4, S_T3))
    a("v_mov_b32 v%d, s%d" % (M, S_T4))
    a("v_cndmask_b32_e64 v%d, 6, v%d, s[%d:%d]" % (M, M, S_M2, S_M2 + 1))
    a("v_cndmask_b32_e64 v9, v%d, v9, s[%d:%d]" % (M, S_M1, S_M1 + 1))
    a("v_lshlrev_b32 v9, 10, v9")
    a("v_lshl_add_u32 v8, v8, 4, v9")
    a("s_mul_i32 s%d, s%d, %d" % (S_T4, S_T2, 4 * 7168))
    a("v_add_u32 v8, s%d, v8" % S_T4)
    a("v_cmp_gt_u32_e64 s[%d:%d], 21, v7" % (S_M0, S_M0 + 1))
    a("v_cmp_gt_u32_e64 s[%d:%d], 5, v6" % (S_M1, S_M1 + 1))
    a("v_min_u32 v8, %d, v8" % (8 * 7168 - 3 * 7168 - 16))
    a("s_lshl_b32 s%d, s%d, 4" % (S_T0, S_G))
    a("s_add_u32 s%d, s%d, s%d" % (S_T0, S_T0, S_R))
    a("s_lshl_b32 s%d, s%d, 13" % (S_T0, S_T0))
    a("s_lshr_b32 s%d, s%d, 1" % (S_T1, S_WV))
    a("s_lshl_b32 s%d, s%d, 11" % (S_T1, S_T1))
    a("s_add_u32 s%d, s%d, s%d" % (S_T0, S_T0, S_T1))
    a("s_add_u32 s%d, s%d, %d" % (S_T0, S_T0, WS_PART))
    a("v_lshlrev_b32 v5, 4, v5")
    a("s_waitcnt lgkmcnt(0)")
    a("s_barrier")
    a("s_and_b64 s[%d:%d], s[%d:%d], s[%d:%d]" % (S_M0, S_M0 + 1, S_M0, S_M0 + 1, S_M1, S_M1 + 1))
    E = V_ACC
    for rg in range(4): a("ds_read_b128 %s, v8 offset:%d" % (vr(E + 4 * rg, 4), rg * 7168))
    a("s_waitcnt lgkmcnt(0)")
    for k in (0, 2):
        a("v_pk_add_f32 %s, %s, %s" % (vr(E + k, 2), vr(E + k, 2), vr(E + 4 + k, 2)))
        a("v_pk_add_f32 %s, %s, %s" % (vr(E + 8 + k, 2), vr(E + 8 + k, 2), vr(E + 12 + k, 2)))
    for k in (0, 2): a("v_pk_add_f32 %s, %s, %s" % (vr(E + k, 2), vr(E + k, 2), vr(E + 8 + k, 2)))
    a("s_mov_b64 exec, s[%d:%d]" % (S_M0, S_M0 + 1))
    a("buffer_store_dwordx4 %s, v5, s[%d:%d], s%d offen %s" % (vr(E, 4), S_WS, S_WS + 3, S_T0, ST))
    a("s_mov_b64 exec, -1")

LDS_Q = 143360
def epi2(a):
    XCH = 102400
    a("s_mul_i32 s%d, s%d, 5120" % (S_T0, S_WV))
    a("s_add_u32 s%d, s%d, %d" % (S_T0, S_T0, XCH))
    a("v_lshlrev_b32 v4, 4, v%d" % V_LANE)
    a("s_xor_b32 s%d, s%d, 4" % (S_T1, S_WV))
    a("v_add_u32 v5, s%d, v4" % S_T0)
    a("s_mul_i32 s%d, s%d, 5120" % (S_T1, S_T1))
    a("s_add_u32 s%d, s%d, %d" % (S_T1, S_T1, XCH))
    a("s_barrier")
    for T in range(5): a("ds_write_b128 v5, %s offset:%d" % (vr(V_ACC2 + (5 + T) * 4, 4), T * 1024))
    lw = a.newlabel("e2w")
    a("s_cmp_eq_u32 s%d, 0" % S_BR)
    a("s_cbranch_scc1 %s" % lw)
    a("s_mov_b32 s%d, s%d" % (S_T2, S_T1))
    wo_load(a, S_WOB, first=12)
    a("s_mov_b32 s%d, s%d" % (S_T1, S_T2))
    a.label(lw)
    a("v_add_u32 v5, s%d, v4" % S_T1)
    a("s_lshl_b32 s%d, s%d, 3" % (S_T1, S_CS))
    a("v_add_u32 v4, s%d, v%d" % (S_T1, V_IMG))
    a("s_mul_i32 s%d, s%d, 5120" % (S_T0, S_RG))
    a("s_add_u32 s%d, s%d, %d" % (S_T0, S_T0, LDS_Q))
    a("v_add_u32 v4, s%d, v4" % S_T0)
    a("s_waitcnt lgkmcnt(0)")
    a("s_barrier")
    R = V_WB0
    for T in range(5): a("ds_read_b128 %s, v5 offset:%d" % (vr(R + 4 * T, 4), T * 1024))
    regs = [V_ACC2 + T * 4 + k for T in range(5) for k in range(4)]
    for T in range(5):
        a("s_waitcnt lgkmcnt(%d)" % (4 - T))
        for k in (0, 2):
            a("v_pk_add_f32 %s, %s, %s" % (vr(V_ACC2 + 4 * T + k, 2), vr(V_ACC2 + 4 * T + k, 2), vr(R + 4 * T + k, 2)))
    def fa(a):
        a("s_mov_b32 s%d, 0x%x" % (S_T4, f2u(QSCALE)))
        a("s_mov_b32 s%d, 0x%x" % (S_T5, f2u(QSCALE)))
        for k in range(0, 20, 2): a("v_pk_mul_f32 %s, %s, s[%d:%d]" % (vr(V_ACC2 + k, 2), vr(V_ACC2 + k, 2), S_T4, S_T5))
    lb, ld = a.newlabel("e2b"), a.newlabel("e2d")
    a("s_cmp_eq_u32 s%d, 0" % S_BR)
    a("s_cbranch_scc0 %s" % lb)
    fa(a)
    a("s_branch %s" % ld)
    a.label(lb)
    phi(a, regs, V_ACC)
    a.label(ld)
    for T in range(5):
        d = V_ACC2 + T * 4
        a("v_cvt_pk_bf16_f32 v%d, v%d, v%d" % (R + 2 * T, d, d + 1))
        a("v_cvt_pk_bf16_f32 v%d, v%d, v%d" % (R + 2 * T + 1, d + 2, d + 3))
        a("ds_write_b64 v4, %s offset:%d" % (vr(R + 2 * T, 2), T * 1024))

def vm_wait_roles(a, nw, nx):
    if nw == nx: a("s_waitcnt vmcnt(%d)" % nw)
    else: role_branch(a, "s_waitcnt vmcnt(%d)" % nw, "s_waitcnt vmcnt(%d)" % nx)

def publish(a, s_off, wave=0):
    def body(a):
        a("v_mov_b32 v4, s%d" % S_NONCE)
        a("v_mov_b32 v5, 0")
        a("s_mov_b64 exec, 1")
        a("buffer_store_dword v4, v5, s[%d:%d], s%d offen sc0 sc1" % (S_WS, S_WS + 3, s_off))
        a("s_mov_b64 exec, -1")
    if wave is None: body(a)
    else: on_wave(a, wave, body)

def poll(a, voff, s_off, mask_lo, mask_hi):
    def body(a):
        lp, ld = a.newlabel("pp"), a.newlabel("pd")
        a("s_mov_b32 exec_lo, %s" % mask_lo)
        a("s_mov_b32 exec_hi, %s" % mask_hi)
        a("s_mov_b32 s%d, 0" % S_T5)
        a.label(lp)
        a("buffer_load_dword v6, v%d, s[%d:%d], s%d offen sc1" % (voff, S_WS, S_WS + 3, s_off))
        a("s_waitcnt vmcnt(0)")
        a("v_cmp_ne_u32_e64 s[%d:%d], s%d, v6" % (S_M0, S_M0 + 1, S_NONCE))
        a("s_add_u32 s%d, s%d, 1" % (S_T5, S_T5))
        a("s_nop 1")
        a("s_cmp_eq_u64 s[%d:%d], 0" % (S_M0, S_M0 + 1))
        a("s_cbranch_scc1 %s" % ld)
        a("s_sleep 1")
        a("s_cmp_lt_u32 s%d, %d" % (S_T5, SPIN_LIMIT))
        a("s_cbranch_scc1 %s" % lp)
        a.label(ld)
        a("s_mov_b64 exec, -1")
    on_wave(a, 0, body)

def wo_pf_setup(a, v):
    a("v_mul_u32_u24 v4, 52, v%d" % V_LANE); a("v_lshrrev_b32 v4, 8, v4")
    a("v_mul_u32_u24 v5, 5, v4"); a("v_sub_u32 v5, v%d, v5" % V_LANE)
    a("s_mul_i32 s%d, s%d, 20" % (S_T0, S_I))
    a("v_add_u32 v4, s%d, v4" % S_T0)
    a("s_movk_i32 s%d, 1280" % S_T1)
    a("v_mul_u32_u24 v4, s%d, v4" % S_T1)
    a("v_lshl_add_u32 v4, v5, 7, v4")
    a("s_lshr_b32 s%d, s%d, 2" % (S_T0, S_G))
    a("s_mul_i32 s%d, s%d, 640" % (S_T0, S_T0))
    a("v_add_u32 v%d, s%d, v4" % (v, S_T0))
assert all((l * 52) >> 8 == l // 5 for l in range(64))

def wo_pf_issue(a, v, srd_):
    a("buffer_load_dword v%d, v%d, s[%d:%d], 0 offen %s" % (V_PFD, v, srd_, srd_ + 3, PFL))
    a("s_mov_b32 s%d, %d" % (S_OFF, 12 * 1280))
    a("buffer_load_dword v%d, v%d, s[%d:%d], s%d offen %s" % (V_PFD, v, srd_, srd_ + 3, S_OFF, PFL))

def phase1(a):
    dma_setup(a)
    stamp(a, "dset")
    entry_srd(a)
    stamp(a, "karg")
    if 'g0first' in OPT:
        emit(a, [dma(0, j) for j in range(5)])
        emit(a, [pf('x', 0, 0), pf('w', 0, 0), pf('x', 1, 1), pf('w', 1, 1)])
    elif 'pf1' in OPT:
        emit(a, [pf('x', 0, 0), pf('w', 0, 0)])
        emit(a, [dma(0, j) for j in range(5)])
        emit(a, [pf('x', 1, 1), pf('w', 1, 1)])
    else:
        emit(a, [pf('x', 0, 0), pf('w', 0, 0), pf('x', 1, 1), pf('w', 1, 1)])
        stamp(a, "pf0")
        emit(a, [dma(0, j) for j in range(5)])
    entry_srd2(a)
    stamp(a, "g0")
    addr1_setup(a)
    emit(a, [dma(1, j) for j in range(5)])
    emit(a, [pf('x', 2, 2), pf('w', 2, 2)])
    a("v_mov_b32 v8, 0")
    a("s_mov_b32 s%d, %d" % (S_OFF, WS_FLAG))
    a("buffer_load_dword v9, v8, s[%d:%d], s%d offen sc1" % (S_WS, S_WS + 3, S_OFF))
    stamp(a, "g1")
    vm_wait_roles(a, 6, 5)
    stamp(a, "g0land")
    a("s_barrier")
    stamp(a, "t0")
    lq = LQ(a)
    cur = [lq.issue(x) for x in p1_reads(0, 0)]
    SCH = {'e': [2, 1, 1, 1, 1, 2, 1, 1, 1, 1], 'f': [2, 2, 2, 2, 2, 2, 0, 0, 0, 0], 'm': [2, 2, 1, 1, 1, 1, 1, 1, 1, 1], 'g': [2, 2, 2, 1, 1, 1, 1, 1, 1, 0]}[SCHED]
    needs12 = lambda ids: [ids[2 + 2 * (i // 2) + 1] for i in range(10)]
    needs10 = lambda ids: [ids[2 * (i // 2) + 1] for i in range(10)]
    for s in range(10):
        ex0 = {}
        if s >= 1: ex0 = {2: dma(s + 2, 3), 6: dma(s + 2, 4)}
        if s == 0: ex0 = {0: dma(2, 0), 2: dma(2, 1), 4: dma(2, 2), 6: dma(2, 3), 8: dma(2, 4)}
        if s == 5:
            lines = rec(addr2_setup)
            for k_, pos in enumerate((1, 3, 4, 5, 7, 8, 9)):
                ex0[pos] = [ex0.get(pos), lines[k_ * len(lines) // 7:(k_ + 1) * len(lines) // 7]]
        nxt = half(a, lq, p1_mfmas(s, 0, s == 0), needs12(cur), p1_reads(s, 1), SCH, ex0)
        if s == 0: vm_wait_roles(a, 6, 5)
        elif s == 8: vm_wait_roles(a, 5, 0)
        elif s == 9: a("s_waitcnt vmcnt(5)")
        else: vm_wait_roles(a, 5, 4)
        a("s_barrier")
        stamp(a, "s%d" % s)
        if s == 2:
            a("v_readfirstlane_b32 s%d, v9" % S_NONCE)
            a("s_nop 3")
            a("s_add_u32 s%d, s%d, 0x9e3779b9" % (S_NONCE, S_NONCE))
        pfl = []
        if s == 0: pfl = [pf('x', 3, 3), pf('w', 3, 3)]
        if s == 2: pfl = [pf('x', 4, 0), pf('w', 4, 0)]
        if s == 3: pfl = [lambda a: wo_pf_setup(a, V_PF)]
        def wopf_own(a):
            if 'nopf' in OPT: return
            def body(a):
                l, l2 = a.newlabel("wpf"), a.newlabel("wpf2")
                a("s_cmp_eq_u32 s%d, 0" % S_BR)
                a("s_cbranch_scc1 %s" % l)
                wo_pf_issue(a, V_PF, S_WOB)
                a("s_branch %s" % l2)
                a.label(l)
                wo_pf_issue(a, V_PF, S_WO)
                a.label(l2)
            on_wave(a, 5, body)
        if s == 4: pfl = [pf('q', 0, 1), wopf_own]
        if s == 5: pfl = [pf('q', 1, 2)]
        if s == 6: pfl = [pf('q', 2, 3)]
        ex1 = {1: dma(s + 3, 0), 4: dma(s + 3, 1), 7: dma(s + 3, 2), 9: pfl}
        if s == 9: ex1 = {1: dma(12, 0), 3: dma(12, 1), 5: dma(12, 2), 7: dma(12, 3), 9: dma(12, 4)}
        rd = p1_reads(s + 1, 0) if s < 9 else p2_reads(0)
        cur = half(a, lq, p1_mfmas(s, 1, False), needs12(nxt), rd, SCH, ex1)
    stamp(a, "p1end")
    lb, ld = a.newlabel("e1b"), a.newlabel("e1d")
    a("s_cmp_eq_u32 s%d, 0" % S_BR)
    a("s_cbranch_scc0 %s" % lb)
    epi1_A(a)
    a("s_branch %s" % ld)
    a.label(lb)
    a("s_waitcnt lgkmcnt(0)")
    epi1_B(a)
    emit(a, p2_reads(0))
    a.label(ld)
    stamp(a, "e1end")
    p3_dma_setup(a)
    S_WBF, S_WB1, S_WB2 = S_SOFF, S_STEP, S_J + 1
    a("s_and_b32 s%d, s%d, s%d" % (S_WBF, S_BR, S_CS))
    a("s_mul_i32 s%d, s%d, %d" % (S_WB1, S_RG, 3 * 5120))
    a("s_mul_i32 s%d, s%d, %d" % (S_WB2, S_RG, 3 * 32 * 1280))
    def wob(q):
        def f(a):
            l = a.newlabel("wob")
            a("s_cmp_eq_u32 s%d, 0" % S_WBF)
            a("s_cbranch_scc1 %s" % l)
            a("s_add_u32 m0, s%d, %d" % (S_WB1, (q // 5) * 5120 + (q % 5) * 1024))
            a("s_add_u32 s%d, s%d, %d" % (S_OFF, S_WB2, (q // 5) * 32 * 1280))
            a("buffer_load_dwordx4 v%d, s[%d:%d], s%d offen %s lds" % (C_DMA + q % 5, S_WOB, S_WOB + 3, S_OFF, DML))
            a.label(l)
        return f
    WOB_N = [2, 1, 2, 1, 2, 1, 2, 1, 2, 1]
    def wopf(a):
        if 'nopf' in OPT: return
        def body(a):
            l = a.newlabel("wpf")
            a("s_cmp_eq_u32 s%d, 0" % S_BR)
            a("s_cbranch_scc1 %s" % l)
            wo_pf_issue(a, V_PF, S_WO)
            a.label(l)
        on_wave(a, 0, body)
    a("s_waitcnt lgkmcnt(0)")
    lq = LQ(a)
    cur = None
    SCH2 = {'e': [1] * 10, 'f': [2, 2, 2, 2, 2, 0, 0, 0, 0, 0], 'm': [2, 1, 1, 1, 1, 1, 1, 1, 1, 0], 'g': [2, 2, 1, 1, 1, 1, 1, 1, 0, 0]}[SCHED]
    for u in range(10):
        extra = {}
        rd = []
        if u + 1 < 10:
            if (u + 1) % 2 == 0:
                nx = 10 + (u + 1) // 2
                def by_branch(na, nb):
                    def f(a):
                        lB, lD = a.newlabel("wb"), a.newlabel("wd")
                        a("s_cmp_eq_u32 s%d, 0" % S_BR)
                        a("s_cbranch_scc0 %s" % lB)
                        a("s_waitcnt vmcnt(%d)" % na)
                        a("s_branch %s" % lD)
                        a.label(lB)
                        a("s_waitcnt vmcnt(%d)" % nb)
                        a.label(lD)
                    return f
                if nx == 13: role_branch(a, "s_waitcnt vmcnt(5)", by_branch(0, sum(WOB_N[:5])))
                elif nx == 14: role_branch(a, "s_waitcnt vmcnt(0)", None)
                else: role_branch(a, by_branch(5 + (10 if 'dbl' in OPT else 5), 6), None)
                a("s_barrier")
                if 13 <= nx + 2 <= 14: extra = {1: dma(nx + 2, 0), 3: dma(nx + 2, 1), 5: dma(nx + 2, 2), 7: dma(nx + 2, 3), 9: dma(nx + 2, 4)}
                if nx == 13:
                    def pub(a):
                        a("s_lshl_b32 s%d, s%d, 4" % (S_T0, S_G))
                        a("s_add_u32 s%d, s%d, s%d" % (S_T0, S_T0, S_R))
                        a("s_lshl_b32 s%d, s%d, 7" % (S_T0, S_T0))
                        a("s_mul_i32 s%d, s%d, %d" % (S_T1, S_BR, F_PART - F_KV))
                        a("s_add_u32 s%d, s%d, s%d" % (S_T0, S_T0, S_T1))
                        a("s_add_u32 s%d, s%d, %d" % (S_T0, S_T0, F_KV))
                        publish(a, S_T0, 0)
                    extra[0] = [pub]
            rd = p2_reads(u + 1)
        if u == 8: extra[3] = [wopf]
        q0 = sum(WOB_N[:u])
        for n_ in range(WOB_N[u]):
            pos = (2, 6)[n_]
            extra[pos] = [extra.get(pos), wob(q0 + n_)]
        needs = needs10(cur) if cur else [0] * 10
        cur = half(a, lq, p2_mfmas(u), needs, rd, SCH2, extra)
    a("s_nop 4")
    stamp(a, "p2end")
    epi2(a)
    stamp(a, "e2end")

LDS_K, LDS_V = 0, 65536
LDS_KVR = 135168
A_KA0, A_KA1, A_KAT, A_VA0, A_VA1, A_QA0, A_QA1, A_QAT, A_OM, A_OT = 10, 11, 12, 13, 14, 15, 16, 17, 18, 19
A_AM, A_Q1, A_Q2, A_KB, A_VB, A_S, A_O = 20, 32, 36, 40, 64, 96, 240
S_TAU0 = S_U
S_EXV, S_HI, S_LO = 62, 64, 66
NEG_BIG = f2u(-3.0e38)
S_KV0, S_KV1, S_KV2 = 20, 21, 22
A_L16 = 88

def jkey(r, h):
    m, b, e = r >> 3, (r >> 2) & 1, r & 3
    return 16 * b + 8 * m + 4 * h + e
def diag_mask(r):
    return (sum(1 << i for i in range(32) if jkey(r, 0) <= i), sum(1 << i for i in range(32) if jkey(r, 1) <= i))

def p2_common_setup(a, attn):
    a("v_and_b32 v4, 1, v%d" % V_KG)
    a("v_lshrrev_b32 v5, 1, v%d" % V_KG)
    a("v_lshrrev_b32 v6, 2, v%d" % V_N)
    a("v_and_b32 v7, 3, v%d" % V_N)
    a("s_and_b32 s%d, s%d, 3" % (S_T0, S_WV))
    a("s_lshr_b32 s%d, s%d, 2" % (S_T1, S_WV))
    a("s_mul_i32 s%d, s%d, 5120" % (S_T1, S_T1))
    a("s_lshl_b32 s%d, s%d, 10" % (S_T2, S_T0))
    a("s_add_u32 s%d, s%d, s%d" % (S_T2, S_T2, S_T1))
    a("s_add_u32 s%d, s%d, 4096" % (S_T3, S_T1))
    a("s_lshl_b32 s%d, s%d, 2" % (S_T4, S_T0))
    def addr(dst, n, kgimg, tbit, sbase, extra):
        a("v_lshl_add_u32 v9, v%d, 2, v%d" % (kgimg, n))
        a("v_and_b32 v9, 15, v9")
        a("v_lshl_add_u32 v9, v%d, 4, v9" % kgimg)
        a("v_lshlrev_b32 v9, 4, v9")
        a("v_lshl_add_u32 v9, v%d, 3, v9" % tbit)
        a("s_add_u32 s%d, s%d, %d" % (S_T5, sbase, extra))
        a("v_add_u32 v%d, s%d, v9" % (dst, S_T5))
    a("v_lshl_add_u32 v8, v5, 3, v6")
    addr(A_QA0, 8, 7, 4, S_T2, LDS_Q)
    a("v_add_u32 v30, 4, v8")
    addr(A_QA1, 30, 7, 4, S_T2, LDS_Q)
    a("v_add_u32 v31, s%d, v6" % S_T4)
    addr(A_QAT, 31, 7, 4, S_T3, LDS_Q)
    if attn:
        a("v_and_b32 v28, 1, v7")
        a("v_lshl_add_u32 v28, v4, 1, v28")
        a("v_lshrrev_b32 v29, 1, v7")
        addr(A_KA0, 8, 28, 29, S_T2, LDS_K)
        addr(A_KA1, 30, 28, 29, S_T2, LDS_K)
        addr(A_KAT, 31, 28, 29, S_T3, LDS_K)
    a("v_and_b32 v4, 31, v%d" % V_LANE)
    a("v_lshrrev_b32 v5, 5, v%d" % V_LANE)
    if attn:
        a("v_cmp_gt_u32_e64 s[%d:%d], 16, v4" % (S_M0, S_M0 + 1))
        a("s_sub_u32 s%d, s%d, 16" % (S_T5, S_T4))
        a("v_add_u32 v6, s%d, v4" % S_T5)
        a("v_and_b32 v6, 15, v6")
        a("v_cndmask_b32_e64 v6, v6, v4, s[%d:%d]" % (S_M0, S_M0 + 1))
        a("v_mov_b32 v7, s%d" % S_T3)
        a("v_mov_b32 v8, s%d" % S_T2)
        a("v_cndmask_b32_e64 v7, v7, v8, s[%d:%d]" % (S_M0, S_M0 + 1))
        for m in range(2):
            a("v_add_u32 v8, %d, v5" % (2 * m))
            a("v_lshl_add_u32 v9, v8, 2, v6")
            a("v_and_b32 v9, 15, v9")
            a("v_lshl_add_u32 v9, v8, 4, v9")
            a("v_lshl_add_u32 v9, v9, 4, v7")
            a("v_add_u32 v%d, %d, v9" % (A_VA0 + m, LDS_V))
    a("s_lshl_b32 s%d, s%d, 2" % (S_T1, S_G))
    a("s_add_u32 s%d, s%d, s%d" % (S_T1, S_T1, S_T0))
    a("s_lshl_b32 s%d, s%d, 3" % (S_T2, S_R))
    a("s_lshr_b32 s%d, s%d, 2" % (S_T3, S_WV))
    a("s_lshl_b32 s%d, s%d, 1" % (S_T3, S_T3))
    a("s_add_u32 s%d, s%d, s%d" % (S_T2, S_T2, S_T3))
    a("s_mul_i32 s%d, s%d, 20480" % (S_T2, S_T2))
    a("s_mul_i32 s%d, s%d, %d" % (S_T3, S_BR, O_BR))
    a("s_add_u32 s%d, s%d, s%d" % (S_T2, S_T2, S_T3))
    a("s_add_u32 s%d, s%d, %d" % (S_T2, S_T2, WS_O))
    a("v_lshrrev_b32 v6, 4, v4")
    a("s_movk_i32 s%d, 20480" % S_T3)
    a("v_mul_u32_u24 v6, s%d, v6" % S_T3)
    a("v_and_b32 v7, 15, v4")
    a("v_lshl_add_u32 v6, v7, 4, v6")
    a("v_add_u32 v6, s%d, v6" % S_T2)
    a("s_lshr_b32 s%d, s%d, 1" % (S_T3, S_T1))
    a("s_lshl_b32 s%d, s%d, 10" % (S_T3, S_T3))
    a("s_and_b32 s%d, s%d, 1" % (S_T4, S_T1))
    a("s_lshl_b32 s%d, s%d, 9" % (S_T4, S_T4))
    a("s_add_u32 s%d, s%d, s%d" % (S_T3, S_T3, S_T4))
    a("v_lshl_add_u32 v7, v5, 8, v6")
    a("v_add_u32 v%d, s%d, v7" % (A_OM, S_T3))
    a("s_lshr_b32 s%d, s%d, 3" % (S_T3, S_T1))
    a("s_add_u32 s%d, s%d, 16" % (S_T3, S_T3))
    a("s_lshl_b32 s%d, s%d, 10" % (S_T3, S_T3))
    a("s_and_b32 s%d, s%d, 6" % (S_T4, S_T1))
    a("s_lshl_b32 s%d, s%d, 7" % (S_T4, S_T4))
    a("s_add_u32 s%d, s%d, s%d" % (S_T3, S_T3, S_T4))
    a("s_and_b32 s%d, s%d, 1" % (S_T4, S_T1))
    a("s_lshl_b32 s%d, s%d, 3" % (S_T4, S_T4))
    a("s_add_u32 s%d, s%d, s%d" % (S_T3, S_T3, S_T4))
    a("v_add_u32 v%d, s%d, v6" % (A_OT, S_T3))
    a("s_mov_b32 s%d, 0" % S_HI); a("s_mov_b32 s%d, -1" % (S_HI + 1))
    a("s_mov_b32 s%d, -1" % S_LO); a("s_mov_b32 s%d, 0" % (S_LO + 1))

def q_frag_reads():
    return ["ds_read_b64_tr_b16 %s, v%d" % (vr(A_Q1, 2), A_QA0),
            "ds_read_b64_tr_b16 %s, v%d" % (vr(A_Q1 + 2, 2), A_QA1),
            "ds_read_b64_tr_b16 %s, v%d" % (vr(A_Q2, 2), A_QAT)]
def q_frag_fix(a):
    a("v_cndmask_b32_e64 v%d, v%d, 0, s[%d:%d]" % (A_Q2, A_Q2, S_HI, S_HI + 1))
    a("v_cndmask_b32_e64 v%d, v%d, 0, s[%d:%d]" % (A_Q2 + 1, A_Q2 + 1, S_HI, S_HI + 1))

def o_epilogue(a, eps=False):
    O = A_O
    a("v_cndmask_b32_e64 v30, v%d, v%d, s[%d:%d]" % (O + 12, O + 8, S_HI, S_HI + 1))
    if eps: a("v_add_f32 v30, 0x%x, v30" % f2u(1e-6))
    a("v_rcp_f32 v30, v30")
    a("s_nop 0")
    for k in range(0, 12, 2):
        a("v_pk_mul_f32 %s, %s, v[30:31] op_sel_hi:[1,0]" % (vr(O + k, 2), vr(O + k, 2)))
    for k in range(6): a("v_cvt_pk_bf16_f32 v%d, v%d, v%d" % (O + k, O + 2 * k, O + 2 * k + 1))
    for fl in ([ST, ""] if 'dbl' in OPT else [ST]):
        a("buffer_store_dwordx4 %s, v%d, s[%d:%d], 0 offen %s" % (vr(O, 4), A_OM, S_WS, S_WS + 3, fl))
        a("s_mov_b64 exec, s[%d:%d]" % (S_LO, S_LO + 1))
        a("buffer_store_dwordx2 %s, v%d, s[%d:%d], 0 offen %s" % (vr(O + 4, 2), A_OT, S_WS, S_WS + 3, fl))
        a("s_mov_b64 exec, -1")

def attn_setup(a):
    p2_common_setup(a, True)
    for r in range(16):
        lo, hi = diag_mask(r)
        a("s_mov_b32 s%d, 0x%x" % (S_MASK + 2 * r, lo)); a("s_mov_b32 s%d, 0x%x" % (S_MASK + 2 * r + 1, hi))
    a("v_mov_b32 v30, 0xffff")
    a("v_mov_b32 v31, 0xffff0000")
    for k in range(8):
        a("v_cndmask_b32_e64 v4, 0, v30, s[%d:%d]" % (S_MASK + 4 * k, S_MASK + 4 * k + 1))
        a("v_cndmask_b32_e64 v5, 0, v31, s[%d:%d]" % (S_MASK + 4 * k + 2, S_MASK + 4 * k + 3))
        a("v_or_b32 v%d, v4, v5" % (A_AM + k))
    a("v_mov_b32 v4, 0x3f803f80")
    for k in range(24): a("v_mov_b32 v%d, v4" % (A_VB + k))
    for b in range(3):
        a("v_mov_b32 v%d, 0" % (A_KB + 8 * b + 6)); a("v_mov_b32 v%d, 0" % (A_KB + 8 * b + 7))
    a("v_mov_b32 v%d, 0" % (A_Q2 + 2)); a("v_mov_b32 v%d, 0" % (A_Q2 + 3))
    a("s_mov_b32 s%d, 0x000fffff" % S_EXV); a("s_mov_b32 s%d, 0x000fffff" % (S_EXV + 1))

def k_reads(tau, buf):
    b = A_KB + 8 * buf
    return ["ds_read_b64_tr_b16 %s, v%d offset:%d" % (vr(b, 2), A_KA0, tau * 5120),
            "ds_read_b64_tr_b16 %s, v%d offset:%d" % (vr(b + 2, 2), A_KA1, tau * 5120),
            "ds_read_b64_tr_b16 %s, v%d offset:%d" % (vr(b + 4, 2), A_KAT, tau * 5120)]
def v_reads(tau, buf):
    b = A_VB + 8 * buf
    return ["s_mov_b64 exec, s[%d:%d]" % (S_EXV, S_EXV + 1),
            "ds_read_b128 %s, v%d offset:%d" % (vr(b, 4), A_VA0, tau * 5120),
            "ds_read_b128 %s, v%d offset:%d" % (vr(b + 4, 4), A_VA1, tau * 5120),
            "s_mov_b64 exec, -1"]

def attn_unit(a, stubs, mid, qk_extra):
    S = lambda t: A_S + 16 * t
    order = [8, 0, 1, 2, 3, 4, 5, 6, 7]
    emit(a, q_frag_reads())
    emit(a, k_reads(order[0], 0)); emit(a, k_reads(order[1], 1))
    a("s_waitcnt lgkmcnt(6)")
    q_frag_fix(a)
    accs = [28, 29, 30, 31]
    acc_init = [False] * 4
    def max_ops(base):
        L = []
        for k in range(0, 16, 2):
            ai = (k // 2) % 4
            if not acc_init[ai]:
                L.append("v_max_f32 v%d, v%d, v%d" % (accs[ai], base + k, base + k + 1)); acc_init[ai] = True
            else:
                L.append("v_max3_f32 v%d, v%d, v%d, v%d" % (accs[ai], base + k, base + k + 1, accs[ai]))
        return L
    merge = ["v_cndmask_b32_e64 v%d, v%d, v%d, s[%d:%d]" % (S(0) + r, S(0) + r, S(8) + r, S_MASK + 2 * r, S_MASK + 2 * r + 1) for r in range(16)]
    for idx, tau in enumerate(order):
        buf = idx % 3
        if idx + 2 < 9: emit(a, k_reads(order[idx + 2], (idx + 2) % 3))
        a("s_waitcnt lgkmcnt(%d)" % (3 * min(2, 8 - idx)))
        kb = A_KB + 8 * buf
        if tau < 8:
            lf, lr = a.newlabel("fill"), a.newlabel("fret")
            a("s_cmp_gt_u32 s%d, %d" % (S_TAU0, tau))
            a("s_cbranch_scc1 %s" % lf)
            stubs.append((lf, lr, S(tau)))
        work = []
        if idx == 3: work = merge[:]
        if idx == 4: work = max_ops(S(0))
        if idx >= 5: work = max_ops(S(order[idx - 3]))
        a(mfma32(S(tau), kb, A_Q1, "0"))
        a(mfma32(S(tau), kb + 4, A_Q2))
        if tau < 8: a.label(lr)
        emit(a, qk_extra.get(idx))
        emit(a, work)
    emit(a, max_ops(S(5)))
    emit(a, max_ops(S(6)))
    emit(a, mid)
    emit(a, v_reads(8, 0)); emit(a, v_reads(0, 1))
    emit(a, max_ops(S(7)))
    a("v_max3_f32 v28, v28, v29, v30")
    a("v_max_f32 v28, v28, v31")
    a("v_mov_b32 v29, v28")
    a("s_nop 1")
    a("v_permlane32_swap_b32 v28, v29")
    a("s_nop 1")
    a("v_max_f32 v28, v28, v29")
    def sm_ops(base):
        L = ["v_pk_add_f32 %s, %s, v[28:29] op_sel_hi:[1,0] neg_lo:[0,1] neg_hi:[0,1]" % (vr(base + k, 2), vr(base + k, 2)) for k in range(0, 16, 2)]
        E = [["v_exp_f32 v%d, v%d" % (base + k, base + k), "v_exp_f32 v%d, v%d" % (base + k + 1, base + k + 1)] for k in range(0, 16, 2)]
        out = L[:2]
        for k in range(8):
            out += E[k]
            if k + 2 < 8: out.append(L[k + 2])
            if k >= 1: out.append("v_cvt_pk_bf16_f32 v%d, v%d, v%d" % (base + k - 1, base + 2 * (k - 1), base + 2 * (k - 1) + 1))
        out.append("s_nop 0")
        out.append("v_cvt_pk_bf16_f32 v%d, v%d, v%d" % (base + 7, base + 14, base + 15))
        return out
    emit(a, sm_ops(S(0)))
    for k in range(8): a("v_and_b32 v%d, v%d, v%d" % (S(0) + 8 + k, S(0) + k, A_AM + k))
    for k in range(8): a("v_xor_b32 v%d, v%d, v%d" % (S(0) + k, S(0) + k, S(0) + 8 + k))
    a("s_waitcnt lgkmcnt(0)")
    emit(a, v_reads(1, 2))
    def guarded(mms, tau):
        def f(a):
            l = a.newlabel("pvs")
            a("s_cmp_gt_u32 s%d, %d" % (S_TAU0, tau))
            a("s_cbranch_scc1 %s" % l)
            for x in mms: a(x)
            a.label(l)
        return f
    pv = [mfma32(A_O, A_VB + 0, S(0) + 8, "0"), mfma32(A_O, A_VB + 4, S(0) + 12),
          guarded([mfma32(A_O, A_VB + 8, S(0)), mfma32(A_O, A_VB + 12, S(0) + 4)], 0)]
    for tau in range(1, 8):
        vb = (tau + 1) % 3
        sm = sm_ops(S(tau))
        n, m, done = len(sm), len(pv), 0
        for i, x in enumerate(sm):
            emit(a, x)
            want = min(m, ((i + 1) * m + n // 2) // n) if i >= 1 else 0
            while done < want:
                emit(a, pv[done]); done += 1
        while done < m:
            emit(a, pv[done]); done += 1
        a("s_waitcnt lgkmcnt(0)")
        if tau + 1 < 8: emit(a, v_reads(tau + 1, (tau + 2) % 3))
        b = A_VB + 8 * vb
        pv = [guarded([mfma32(A_O, b, S(tau)), mfma32(A_O, b + 4, S(tau) + 4)], tau)]
    a("s_nop 1")
    emit(a, pv)
    a("s_nop 15")
    o_epilogue(a)

def round_advance(a, attn=True):
    for v in ((A_KA0, A_KA1, A_KAT, A_VA0, A_VA1) if attn else ()) + (A_QA0, A_QA1, A_QAT):
        a("v_add_u32 v%d, %d, v%d" % (v, 2 * 5120, v))
    a("v_add_u32 v%d, %d, v%d" % (A_OM, 4 * 20480, A_OM))
    a("v_add_u32 v%d, %d, v%d" % (A_OT, 4 * 20480, A_OT))

def set_tau0(a):
    a("s_lshl_b32 s%d, s%d, 2" % (S_T0, S_R))
    a("s_lshr_b32 s%d, s%d, 2" % (S_T1, S_WV))
    a("s_add_u32 s%d, s%d, s%d" % (S_T0, S_T0, S_T1))
    a("s_add_u32 s%d, s%d, s%d" % (S_T0, S_T0, S_DB))
    a("s_sub_i32 s%d, 8, s%d" % (S_TAU0, S_T0))
    a("s_max_i32 s%d, s%d, 0" % (S_TAU0, S_TAU0))

def emit_stubs(a, stubs):
    for lf, lr, base in stubs:
        a.label(lf)
        a("v_mov_b32 v%d, 0x%x" % (base, NEG_BIG))
        for k in range(1, 16): a("v_mov_b32 v%d, v%d" % (base + k, base))
        a("s_branch %s" % lr)

def kv_params(a):
    a("s_lshl_b32 s%d, s%d, 6" % (S_T0, S_G))
    a("s_lshl_b32 s%d, s%d, 2" % (S_T1, S_R))
    a("s_add_u32 s%d, s%d, s%d" % (S_T0, S_T0, S_T1))
    a("s_sub_i32 s%d, s%d, 8" % (S_T0, S_T0))
    a("s_mul_i32 s%d, s%d, 5120" % (S_T0, S_T0))
    a("s_lshl_b32 s%d, s%d, 10" % (S_KV1, S_WV))
    a("s_add_u32 s%d, s%d, s%d" % (S_KV0, S_T0, S_KV1))
    a("s_lshl_b32 s%d, s%d, 2" % (S_T3, S_R))
    a("s_sub_i32 s%d, 8, s%d" % (S_T3, S_T3))
    a("s_max_i32 s%d, s%d, 0" % (S_T3, S_T3))
    a("s_mul_i32 s%d, s%d, 5120" % (S_KV2, S_T3))
    a("v_lshlrev_b32 v%d, 4, v%d" % (A_L16, V_LANE))

def kv_load(tensor, k):
    def f(a):
        l = a.newlabel("kvl")
        a("s_add_u32 s%d, s%d, %d" % (S_T4, S_KV1, k * 8192))
        a("s_cmp_lt_u32 s%d, s%d" % (S_T4, S_KV2))
        a("s_cbranch_scc1 %s" % l)
        if k == 7:
            a("s_cmp_ge_u32 s%d, 61440" % S_T4)
            a("s_cbranch_scc1 %s" % l)
        a("s_add_u32 m0, s%d, %d" % (S_T4, LDS_K if tensor == 0 else LDS_V))
        a("s_add_u32 s%d, s%d, %d" % (S_OFF, S_KV0, WS_KV + tensor * 8 * 64 * 5120 + k * 8192))
        a("buffer_load_dwordx4 v%d, s[%d:%d], s%d offen %s lds" % (A_L16, S_WS, S_WS + 3, S_OFF, LD))
        a.label(l)
    return f

def oa_flag_off(a, dst, half_):
    a("s_lshl_b32 s%d, s%d, 1" % (dst, S_R))
    a("s_add_u32 s%d, s%d, %d" % (dst, dst, half_))
    a("s_lshl_b32 s%d, s%d, 3" % (dst, dst))
    a("s_add_u32 s%d, s%d, s%d" % (dst, dst, S_G))
    a("s_lshl_b32 s%d, s%d, 5" % (dst, dst))
    a("s_add_u32 s%d, s%d, s%d" % (dst, dst, S_WV))
    a("s_lshl_b32 s%d, s%d, 2" % (dst, dst))
    a("s_add_u32 s%d, s%d, %d" % (dst, dst, F_OA))

def phase2A(a, stubs):
    attn_setup(a)
    kv_params(a)
    a("v_and_b32 v7, 3, v%d" % V_LANE)
    a("v_lshlrev_b32 v7, 7, v7")
    a("v_lshrrev_b32 v8, 2, v%d" % V_LANE)
    a("v_lshlrev_b32 v8, 12, v8")
    a("v_sub_u32 v7, v8, v7")
    a("s_and_b32 s%d, s%d, 4" % (S_T0, S_G))
    a("s_and_b32 s%d, s%d, 3" % (S_T1, S_G))
    a("s_lshr_b32 s%d, s%d, 1" % (S_T1, S_T1))
    a("s_add_u32 s%d, s%d, s%d" % (S_T0, S_T0, S_T1))
    a("s_lshl_b32 s%d, s%d, 4" % (S_T0, S_T0))
    a("s_add_u32 s%d, s%d, s%d" % (S_T0, S_T0, S_R))
    a("s_lshl_b32 s%d, s%d, 7" % (S_T0, S_T0))
    a("s_add_u32 s%d, s%d, %d" % (S_T0, S_T0, F_KV))
    a("v_add_u32 v7, s%d, v7" % S_T0)
    a("s_min_u32 s%d, s%d, 2" % (S_T1, S_R))
    a("s_lshl_b32 s%d, 2, s%d" % (S_T1, S_T1))
    a("s_sub_u32 s%d, s%d, 1" % (S_T1, S_T1))
    a("s_mul_i32 s%d, s%d, 17" % (S_T1, S_T1))
    a("s_mov_b32 s%d, 0" % S_T2)
    stamp(a, "aset")
    poll(a, 7, S_T2, "s%d" % S_T1, "0")
    a("s_mov_b32 s%d, 0x000fffff" % S_EXV); a("s_mov_b32 s%d, 0x000fffff" % (S_EXV + 1))
    a("s_waitcnt lgkmcnt(0)")
    a("s_barrier")
    stamp(a, "poll1")
    emit(a, [kv_load(0, k) for k in range(8)])
    a("s_waitcnt vmcnt(0)")
    a("s_barrier")
    stamp(a, "kvld")
    for rnd in range(2):
        a("s_mov_b32 s%d, %d" % (S_DB, 2 * rnd))
        set_tau0(a)
        if rnd == 0:
            def mid(a):
                a("s_waitcnt vmcnt(0)")
                a("s_barrier")
                stamp(a, "vld")
            qk_extra = {i: kv_load(1, i - 0) for i in range(8)}
        else:
            def mid(a):
                a("s_waitcnt vmcnt(0)")
                oa_flag_off(a, S_T0, 0)
                publish(a, S_T0, None)
            qk_extra = {}
        attn_unit(a, stubs, mid, qk_extra)
        stamp(a, "rnd%d" % rnd)
        if rnd == 0: round_advance(a)

def apply_phase(a):
    piece_decode(a)
    a("v_cmp_gt_u32_e64 s[%d:%d], 21, v7" % (S_M0, S_M0 + 1))
    a("v_cmp_gt_u32_e64 s[%d:%d], 5, v6" % (S_M1, S_M1 + 1))
    a("s_lshl_b32 s%d, s%d, 17" % (S_T0, S_G))
    a("s_lshr_b32 s%d, s%d, 1" % (S_T1, S_WV))
    a("s_lshl_b32 s%d, s%d, 11" % (S_T1, S_T1))
    a("s_add_u32 s%d, s%d, s%d" % (S_T0, S_T0, S_T1))
    a("s_add_u32 s%d, s%d, %d" % (S_T0, S_T0, WS_PART))
    a("v_lshlrev_b32 v5, 4, v5")
    a("s_and_b64 s[%d:%d], s[%d:%d], s[%d:%d]" % (S_M0, S_M0 + 1, S_M0, S_M0 + 1, S_M1, S_M1 + 1))
    P = A_S
    a("s_mov_b64 exec, s[%d:%d]" % (S_M0, S_M0 + 1))
    for r in range(16):
        a("s_add_u32 s%d, s%d, %d" % (S_OFF, S_T0, r * 8192))
        a("buffer_load_dwordx4 %s, v5, s[%d:%d], s%d offen %s" % (vr(P + 4 * r, 4), S_WS, S_WS + 3, S_OFF, LD))
    a("s_mov_b64 exec, -1")
    a("v_add_u32 v%d, %d, v5" % (A_O, LDS_KVR))
    a("v_add_u32 v%d, s%d, v%d" % (A_O, S_T1, A_O))
    a("s_mov_b64 s[%d:%d], s[%d:%d]" % (S_MASK, S_MASK + 1, S_M0, S_M0 + 1))
    p2_common_setup(a, False)
    a("v_mov_b32 v%d, 0" % (A_Q2 + 2)); a("v_mov_b32 v%d, 0" % (A_Q2 + 3))
    a("v_and_b32 v4, 31, v%d" % V_LANE)
    a("v_min_u32 v4, 20, v4")
    a("v_lshrrev_b32 v5, 5, v%d" % V_LANE)
    a("v_mul_u32_u24 v6, 48, v5")
    a("v_add_u32 v6, v6, v4")
    a("s_and_b32 s%d, s%d, 3" % (S_T0, S_WV))
    a("s_lshl_b32 s%d, s%d, 11" % (S_T0, S_T0))
    a("s_add_u32 s%d, s%d, %d" % (S_T0, S_T0, LDS_KVR))
    a("v_lshlrev_b32 v6, 4, v6")
    a("v_add_u32 v6, s%d, v6" % S_T0)
    a("v_lshlrev_b32 v7, 4, v4")
    a("v_add_u32 v7, s%d, v7" % S_T0)
    a("s_waitcnt vmcnt(0)")
    for st in (8, 4, 2, 1):
        for r in range(st):
            for k in (0, 2):
                a("v_pk_add_f32 %s, %s, %s" % (vr(P + 4 * r + k, 2), vr(P + 4 * r + k, 2), vr(P + 4 * (r + st) + k, 2)))
    a("s_mov_b64 exec, s[%d:%d]" % (S_MASK, S_MASK + 1))
    a("ds_write_b128 v%d, %s" % (A_O, vr(P, 4)))
    a("s_mov_b64 exec, -1")
    a("s_waitcnt lgkmcnt(0)")
    a("s_barrier")
    stamp(a, "kvred")
    F = A_KB
    a("ds_read_b128 %s, v6" % vr(F, 4))
    a("ds_read_b128 %s, v6 offset:%d" % (vr(F + 4, 4), 24 * 16))
    a("ds_read_b128 %s, v7 offset:%d" % (vr(F + 8, 4), 4 * 24 * 16))
    emit(a, q_frag_reads())
    a("s_waitcnt lgkmcnt(3)")
    KV1, KV2 = A_VB, A_VB + 4
    for k in range(4): a("v_cvt_pk_bf16_f32 v%d, v%d, v%d" % (KV1 + k, F + 2 * k, F + 2 * k + 1))
    for k in range(2): a("v_cvt_pk_bf16_f32 v%d, v%d, v%d" % (KV2 + k, F + 8 + 2 * k, F + 9 + 2 * k))
    a("v_mov_b32 v%d, 0" % (KV2 + 2)); a("v_mov_b32 v%d, 0" % (KV2 + 3))
    for rnd in range(2):
        a("s_waitcnt lgkmcnt(0)")
        q_frag_fix(a)
        a("s_nop 1")
        a(mfma32(A_O, KV1, A_Q1, "0"))
        a(mfma32(A_O, KV2, A_Q2))
        if rnd == 0:
            round_advance(a, False) if False else None
            for v in (A_QA0, A_QA1, A_QAT): a("v_add_u32 v%d, %d, v%d" % (v, 2 * 5120, v))
            emit(a, q_frag_reads())
            a("s_nop 9")
        else:
            a("s_nop 15")
        o_epilogue(a, eps=True)
        if rnd == 0:
            a("v_add_u32 v%d, %d, v%d" % (A_OM, 4 * 20480, A_OM))
            a("v_add_u32 v%d, %d, v%d" % (A_OT, 4 * 20480, A_OT))

C_DMA = 10
C_WA, C_WT, C_OF, C_OUT, C_XA = 20, 21, 22, 23, 24
C_O = 32
C_WB = 112
C_ACC = 172
C_R = 212

def p3_dma_setup(a):
    a("s_mul_i32 s%d, s%d, 160" % (S_T0, S_G))
    a("s_movk_i32 s%d, 6554" % S_T2)
    a("s_movk_i32 s%d, 1280" % S_T3)
    for j in range(5):
        a("v_add_u32 v4, %d, v%d" % (64 * j, V_LANE))
        a("v_mul_u32_u24 v8, s%d, v4" % S_T2)
        a("v_lshrrev_b32 v8, 16, v8")
        a("v_mul_u32_u24 v9, 10, v8")
        a("v_sub_u32 v9, v4, v9")
        a("v_mul_u32_u24 v8, s%d, v8" % S_T3)
        a("v_lshl_add_u32 v8, v9, 4, v8")
        a("v_add_u32 v%d, s%d, v8" % (C_DMA + j, S_T0))

def p3_setup(a):
    a("s_mul_i32 s%d, s%d, 160" % (S_T0, S_G))
    a("v_lshrrev_b32 v4, 1, v%d" % V_KG)
    a("v_and_b32 v5, 1, v%d" % V_KG)
    a("v_lshrrev_b32 v6, 2, v%d" % V_N)
    a("v_and_b32 v7, 3, v%d" % V_N)
    a("v_mul_u32_u24 v8, 20, v4")
    a("v_lshl_add_u32 v8, v5, 2, v8")
    a("v_add_u32 v8, v8, v6")
    a("s_movk_i32 s%d, 160" % S_T1)
    a("v_mul_u32_u24 v8, s%d, v8" % S_T1)
    a("v_lshl_add_u32 v8, v7, 3, v8")
    a("s_mul_i32 s%d, s%d, 51200" % (S_T2, S_CS))
    a("v_add_u32 v%d, s%d, v8" % (C_WA, S_T2))
    a("v_mul_u32_u24 v8, 40, v%d" % V_KG)
    a("v_add3_u32 v8, v8, v6, 16")
    a("v_mul_u32_u24 v8, s%d, v8" % S_T1)
    a("v_lshl_add_u32 v8, v7, 3, v8")
    a("v_add_u32 v%d, s%d, v8" % (C_WT, S_T2))
    a("v_lshlrev_b32 v%d, 4, v%d" % (C_OF, V_LANE))
    a("s_lshl_b32 s%d, s%d, 4" % (S_T2, S_RG))
    a("v_add_u32 v8, s%d, v%d" % (S_T2, V_N))
    a("s_movk_i32 s%d, 2560" % S_T2)
    a("v_mul_u32_u24 v8, s%d, v8" % S_T2)
    a("v_lshl_add_u32 v8, v%d, 3, v8" % V_KG)
    a("v_add_u32 v%d, s%d, v8" % (C_OUT, S_T0))
    a("s_mul_i32 s%d, s%d, 10240" % (S_T2, S_RG))
    a("s_add_u32 s%d, s%d, %d" % (S_T2, S_T2, XCH3))
    a("v_add_u32 v%d, s%d, v%d" % (C_XA, S_T2, C_OF))

def wo_block(a, srd_wo):
    a("s_mul_i32 s%d, s%d, %d" % (S_OFF, S_T0, 32 * 1280))
    a("s_mul_i32 s%d, s%d, 5120" % (S_T0, S_T0))
    for j in range(5):
        a("s_add_u32 m0, s%d, %d" % (S_T0, j * 1024))
        a("s_nop 0")
        a("buffer_load_dwordx4 v%d, s[%d:%d], s%d offen %s lds" % (C_DMA + j, srd_wo, srd_wo + 3, S_OFF, DML))

def wo_load(a, srd_wo, skip0=False, first=0):
    nw = 7 if skip0 else 8
    nb = 20 - first
    for k in range((nb + nw - 1) // nw):
        l = a.newlabel("wol")
        if skip0:
            a("s_cmp_eq_u32 s%d, 0" % S_WV)
            a("s_cbranch_scc1 %s" % l)
        a("s_add_u32 s%d, s%d, %d" % (S_T0, S_WV, first + nw * k))
        if skip0: a("s_sub_u32 s%d, s%d, 1" % (S_T0, S_T0))
        if first + nw * k + nw > 20:
            a("s_cmp_ge_u32 s%d, 20" % S_T0)
            a("s_cbranch_scc1 %s" % l)
        wo_block(a, srd_wo)
        a.label(l)

def p3_oloads(a, br, s_row0, k):
    a("s_lshr_b32 s%d, s%d, 4" % (S_T0, s_row0))
    a("s_add_u32 s%d, s%d, s%d" % (S_T0, S_T0, S_RG))
    a("s_add_u32 s%d, s%d, %d" % (S_T0, S_T0, 4 * k))
    a("s_mul_i32 s%d, s%d, 20480" % (S_T0, S_T0))
    a("s_add_u32 s%d, s%d, %d" % (S_T0, S_T0, WS_O + br * O_BR))
    a("s_lshl_b32 s%d, s%d, 13" % (S_T1, S_CS))
    a("s_add_u32 s%d, s%d, s%d" % (S_T1, S_T1, S_T0))
    for i in range(8):
        a("s_add_u32 s%d, s%d, %d" % (S_OFF, S_T1, i * 1024))
        a("buffer_load_dwordx4 %s, v%d, s[%d:%d], s%d offen %s" % (vr(C_O + 40 * k + 4 * i, 4), C_OF, S_WS, S_WS + 3, S_OFF, LD))
    a("s_lshl_b32 s%d, s%d, 11" % (S_T1, S_CS))
    a("s_add_u32 s%d, s%d, s%d" % (S_T1, S_T1, S_T0))
    for i in range(2):
        a("s_add_u32 s%d, s%d, %d" % (S_OFF, S_T1, (16 + i) * 1024))
        a("buffer_load_dwordx4 %s, v%d, s[%d:%d], s%d offen %s" % (vr(C_O + 40 * k + 32 + 4 * i, 4), C_OF, S_WS, S_WS + 3, S_OFF, LD))

def p3_wreads(i):
    wb = C_WB + 20 * (i % 3)
    L = []
    for T in range(5):
        for rd in range(2):
            if i < 8: L.append("ds_read_b64_tr_b16 %s, v%d offset:%d" % (vr(wb + 4 * T + 2 * rd, 2), C_WA, i * 6400 + rd * 1280 + 32 * T))
            else: L.append("ds_read_b64_tr_b16 %s, v%d offset:%d" % (vr(wb + 4 * T + 2 * rd, 2), C_WT, (i - 8) * 25600 + rd * 3200 + 32 * T))
    return L

def p3_mm(a, sets, vm_after, extra={}):
    lq = LQ(a)
    ids = {}
    ids[0] = [lq.issue(x) for x in p3_wreads(0)]
    ids[1] = [lq.issue(x) for x in p3_wreads(1)]
    for i in range(10):
        wb = C_WB + 20 * (i % 3)
        rd = p3_wreads(i + 2) if i + 2 < 10 else []
        ids[i + 2] = []
        n = vm_after(i)
        if n is not None: a("s_waitcnt vmcnt(%d)" % n)
        emit(a, extra.get(i))
        mm = [(T, mfma16(C_ACC + 20 * k + 4 * T, wb + 4 * T, C_O + 40 * sets[k] + 4 * i, "0" if i == 0 else None)) for T in range(5) for k in range(len(sets))]
        per = (len(rd) + len(mm) - 1) // len(mm) if rd else 0
        for (T, m) in mm:
            lq.need(ids[i][2 * T + 1])
            a(m)
            for _ in range(per):
                if rd: ids[i + 2].append(lq.issue(rd.pop(0)))

XCH3 = 102400
OTILE = 0
def p3_epilogue(a, br, s_row0, nset):
    npieces = 640 * nset
    nround = (npieces + 511) // 512
    last_waves = (npieces - 512 * (nround - 1)) // 64
    def send(tiles):
        def f(a):
            for k in range(nset):
                for T in tiles:
                    a("ds_write_b128 v%d, %s offset:%d" % (C_XA, vr(C_ACC + 20 * k + 4 * T, 4), k * 5120 + T * 1024))
        return f
    a("s_lshl_b32 s%d, s%d, 4" % (S_T0, S_RG))
    a("v_add_u32 v4, s%d, v%d" % (S_T0, V_N))
    a("s_movk_i32 s%d, 176" % S_T1)
    a("v_mul_u32_u24 v4, s%d, v4" % S_T1)
    a("v_lshl_add_u32 v4, v%d, 3, v4" % V_KG)
    a("s_nop 3")
    role_branch(a, send([3, 4]), send([0, 1, 2]))
    a("s_lshl_b32 s%d, s%d, 6" % (S_T0, S_WV))
    a("v_add_u32 v5, s%d, v%d" % (S_T0, V_LANE))
    a("s_movk_i32 s%d, 6554" % S_T2)
    a("s_movk_i32 s%d, 2560" % S_T3)
    a("s_mul_i32 s%d, s%d, 160" % (S_T4, S_G))
    for m in range(nround):
        a("v_add_u32 v6, %d, v5" % (512 * m))
        a("v_mul_u32_u24 v7, s%d, v6" % S_T2)
        a("v_lshrrev_b32 v7, 16, v7")
        a("v_mul_u32_u24 v8, 10, v7")
        a("v_sub_u32 v8, v6, v8")
        a("v_mul_u32_u24 v9, s%d, v7" % S_T1)
        a("v_lshl_add_u32 v%d, v8, 4, v9" % (C_R + m))
        a("v_mul_u32_u24 v9, s%d, v7" % S_T3)
        a("v_lshl_add_u32 v9, v8, 4, v9")
        a("v_add_u32 v%d, s%d, v9" % (C_R + 4 + m, S_T4))
    a("s_waitcnt lgkmcnt(0)")
    a("s_barrier")
    def recv(tiles):
        def f(a):
            for k in range(nset):
                for n_, T in enumerate(tiles):
                    a("ds_read_b128 %s, v%d offset:%d" % (vr(C_WB + 12 * k + 4 * n_, 4), C_XA, k * 5120 + T * 1024))
            a("s_waitcnt lgkmcnt(0)")
            for k in range(nset):
                for n_, T in enumerate(tiles):
                    d = C_ACC + 20 * k + 4 * T
                    r = C_WB + 12 * k + 4 * n_
                    for q in (0, 2): a("v_pk_add_f32 %s, %s, %s" % (vr(d + q, 2), vr(d + q, 2), vr(r + q, 2)))
                    a("v_cvt_pk_bf16_f32 v%d, v%d, v%d" % (d, d, d + 1))
                    a("v_cvt_pk_bf16_f32 v%d, v%d, v%d" % (d + 1, d + 2, d + 3))
                    a("ds_write_b64 v4, %s offset:%d" % (vr(d, 2), OTILE + k * 64 * 176 + 32 * T))
        return f
    role_branch(a, recv([0, 1, 2]), recv([3, 4]))
    a("s_mul_i32 s%d, s%d, 2560" % (S_T0, s_row0))
    a("s_add_u32 s%d, s%d, %d" % (S_T0, S_T0, br * 1280))
    a("s_waitcnt lgkmcnt(0)")
    a("s_barrier")
    for m in range(nround):
        l = a.newlabel("fr")
        if m == nround - 1 and last_waves < 8:
            a("s_cmp_ge_u32 s%d, %d" % (S_WV, last_waves))
            a("s_cbranch_scc1 %s" % l)
        a("ds_read_b128 %s, v%d offset:%d" % (vr(C_O + 4 * m, 4), C_R + m, OTILE))
        a.label(l)
    a("s_waitcnt lgkmcnt(0)")
    for m in range(nround):
        l = a.newlabel("fs")
        if m == nround - 1 and last_waves < 8:
            a("s_cmp_ge_u32 s%d, %d" % (S_WV, last_waves))
            a("s_cbranch_scc1 %s" % l)
        a("buffer_store_dwordx4 %s, v%d, s[%d:%d], s%d offen %s" % (vr(C_O + 4 * m, 4), C_R + 4 + m, S_OUT, S_OUT + 3, S_T0, OUTST))
        a.label(l)
assert all((p * 6554) >> 16 == p // 10 for p in range(1536))

def poll_oa(a, half_):
    a("v_lshrrev_b32 v7, 3, v%d" % V_LANE)
    a("v_and_b32 v8, 7, v%d" % V_LANE)
    a("v_lshlrev_b32 v7, 7, v7")
    a("v_lshl_add_u32 v7, v8, 2, v7")
    a("s_lshl_b32 s%d, s%d, 1" % (S_T0, S_R))
    a("s_add_u32 s%d, s%d, %d" % (S_T0, S_T0, half_))
    a("s_lshl_b32 s%d, s%d, 10" % (S_T0, S_T0))
    a("s_add_u32 s%d, s%d, %d" % (S_T0, S_T0, F_OA))
    poll(a, 7, S_T0, "-1", "-1")

S_JR = S_DB
def phase3A(a):
    p3_dma_setup(a)
    p3_setup(a)
    a("s_waitcnt vmcnt(0)")
    oa_flag_off(a, S_T0, 1)
    publish(a, S_T0, None)
    poll_oa(a, 0)
    a("s_barrier")
    stamp(a, "attn")
    a("s_lshl_b32 s%d, s%d, 7" % (S_JR, S_R))
    p3_oloads(a, 0, S_JR, 0)
    wo_load(a, S_WO)
    a("s_waitcnt vmcnt(0)")
    a("s_barrier")
    stamp(a, "j0a")
    p3_mm(a, [0], lambda i: None)
    stamp(a, "j1a")
    p3_epilogue(a, 0, S_JR, 1)
    stamp(a, "j2a")

def phaseB(a):
    a("v_lshlrev_b32 v7, 7, v%d" % V_LANE)
    a("s_lshl_b32 s%d, s%d, 11" % (S_T0, S_G))
    a("s_add_u32 s%d, s%d, %d" % (S_T0, S_T0, F_PART))
    poll(a, 7, S_T0, "0xffff", "0")
    a("s_waitcnt lgkmcnt(0)")
    a("s_barrier")
    stamp(a, "poll1")
    apply_phase(a)
    stamp(a, "kvld")
    p3_setup(a)
    a("s_waitcnt vmcnt(0)")
    a("s_barrier")
    a("s_lshl_b32 s%d, s%d, 3" % (S_T0, S_R))
    a("s_add_u32 s%d, s%d, s%d" % (S_T0, S_T0, S_G))
    a("s_lshl_b32 s%d, s%d, 7" % (S_T0, S_T0))
    a("s_add_u32 s%d, s%d, %d" % (S_T0, S_T0, F_OB))
    publish(a, S_T0, 0)
    stamp(a, "attn")
    a("v_lshlrev_b32 v7, 7, v%d" % V_LANE)
    a("s_lshl_b32 s%d, s%d, 10" % (S_T0, S_R))
    a("s_add_u32 s%d, s%d, %d" % (S_T0, S_T0, F_OB))
    poll(a, 7, S_T0, "0xff", "0")
    a("s_barrier")
    stamp(a, "j0b")
    a("s_lshl_b32 s%d, s%d, 7" % (S_JR, S_R))
    p3_oloads(a, 1, S_JR, 0)
    p3_oloads(a, 1, S_JR, 1)
    p3_mm(a, [0, 1], lambda i: 9 - i)
    stamp(a, "j1b")
    p3_epilogue(a, 1, S_JR, 2)
    stamp(a, "j2b")
    a("s_barrier")
    wo_load(a, S_WO, skip0=True)
    poll_oa(a, 1)
    a("s_waitcnt vmcnt(0)")
    a("s_barrier")
    stamp(a, "j0a")
    a("s_lshl_b32 s%d, s%d, 7" % (S_JR, S_R))
    a("s_add_u32 s%d, s%d, 64" % (S_JR, S_JR))
    p3_oloads(a, 0, S_JR, 0)
    p3_mm(a, [0], lambda i: 9 - i)
    stamp(a, "j1a")
    p3_epilogue(a, 0, S_JR, 1)
    stamp(a, "j2a")

def epoch_update(a):
    l = a.newlabel("ep")
    a("s_cmp_eq_u32 s2, 0")
    a("s_cbranch_scc0 %s" % l)
    a("v_lshlrev_b32 v7, 7, v%d" % V_LANE)
    for k in range(4):
        a("s_mov_b32 s%d, %d" % (S_T0, F_KV + k * 64 * 128))
        poll(a, 7, S_T0, "-1", "-1")
    a("s_mov_b32 s%d, %d" % (S_T0, WS_FLAG))
    publish(a, S_T0, 0)
    a.label(l)

HEADER = """; sliding-window attention block + linear attention block, one fused launch (generated by gen3.py)
"""
def build():
    out = [HEADER, "; @launch grid=(256,1,1) block=(512,1,1) lds=163840\n"]
    out.append('.amdgcn_target "amdgcn-amd-amdhsa--gfx950"\n.text\n')
    a = Asm()
    stubs = []
    entry(a)
    phase1(a)
    if 'p1only' in OPT: a("s_branch L_fin2")
    lb = a.newlabel("brB")
    a("s_cmp_eq_u32 s%d, 0" % S_BR)
    a("s_cbranch_scc0 %s" % lb)
    phase2A(a, stubs)
    phase3A(a)
    a("s_branch L_fin")
    emit_stubs(a, stubs)
    a.label(lb)
    phaseB(a)
    a.label("L_fin")
    epoch_update(a)
    a.label("L_fin2")
    stamp(a, "end")
    if STAMPS: a("s_waitcnt vmcnt(0)")
    stamp_store(a)
    a.label("L_end"); a("s_endpgm")
    a.label("L_codeend")
    out.append(".globl %s\n.p2align 8\n.type %s,@function\n%s:\n" % (NAME, NAME, NAME) + a.text())
    if 'nocodepf' not in OPT:
        out.append(".set CODE_TOTAL, L_codeend - L_pcbase\n.set CODE_CHUNK, ((CODE_TOTAL / 8 + 127) / 128) * 128\n.set CODE_LAST, CODE_TOTAL - 4\n")
    out.append('.section .rodata,"a"\n.p2align 6\n')
    out.append((".amdhsa_kernel %s\n  .amdhsa_next_free_vgpr 256\n  .amdhsa_next_free_sgpr 102\n  .amdhsa_accum_offset 256\n"
                "  .amdhsa_group_segment_fixed_size 0\n  .amdhsa_kernarg_size 72\n  .amdhsa_user_sgpr_count 2\n"
                "  .amdhsa_user_sgpr_kernarg_segment_ptr 1\n  .amdhsa_system_sgpr_workgroup_id_x 1\n.end_amdhsa_kernel\n") % NAME)
    return "".join(out)

if __name__ == "__main__":
    OPT = set(sys.argv[2:])
    for x in sys.argv:
        if x.startswith("st="):
            STAMPS = True
            STMAP = {n: i for i, n in enumerate(x[3:].split(","))}
    for x in OPT:
        if x.startswith('sch='): SCHED = x[4:]
        if x.startswith('wsb='): WS_BASE = int(x[4:]) << 20
        if x.startswith('outst='): OUTST = x[6:].replace('+', ' ')
    if 'pfnt' in OPT: PFL = "nt"
    if 'dmant' in OPT: DML = "nt"
    if 'p1only' in OPT: S_ST = 84
    open(sys.argv[1], "w").write(build())
```

```python
import sys, struct
from asmlib import Asm, vr, sr

NAME = "concat_heads__sliding_block__linear_attn_block__prompt_kernel"
WS_KV   = 0x0000000
WS_O    = 0x0A00000
WS_PART = 0x0F00000
WS_FLAG = 0x1000000
WS_STAMP = 0x1080000
WS_SIZE = 0x1100000
O_BR = 128 * 20480
F_KV, F_PART, F_OA, F_OB = WS_FLAG + 0x1000, WS_FLAG + 0x5000, WS_FLAG + 0x9000, WS_FLAG + 0x11000
SPIN_LIMIT = 40000
ST, LD = "sc1", "sc1"
PFL = ""
DML = ""
STAMPS, STMAP, OPT = False, None, set()
SCHED = 'e'
WS_BASE = 0
OUTST = ''

S_NONCE = 3
S_ST = 4
S_I, S_U = 22, 23
S_X, S_W, S_WS, S_OUT, S_WO, S_WOB = 24, 28, 32, 36, 40, 44
S_BR, S_R, S_G, S_WV, S_RG, S_CS = 48, 49, 50, 51, 52, 53
S_T0, S_T1, S_T2, S_T3, S_T4, S_T5 = 54, 55, 56, 57, 58, 59
S_DB, S_OFF = 60, 61
S_M0, S_M1, S_M2 = 62, 64, 66
S_D, S_SB, S_SOFF, S_STEP, S_J = 68, 72, 76, 77, 78
S_G1 = 82
S_MASK = 68

V_IMG, V_LANE, V_N, V_KG = 0, 1, 2, 3
V_DMA, V_XA, V_WA, V_PF, V_XT, V_WB0, V_WB1 = 10, 15, 19, 29, 32, 40, 60
V_ACC, V_ACC2, V_XP, V_DMA2, V_PFD, V_WA2 = 80, 120, 160, 240, 245, 246
LDS_W = 65536
XSLOT, WSLOT = 16384, 20480
LOG2E = 1.4426950408889634
QSCALE = LOG2E / (20.0 ** 0.5)

def f2u(x): return struct.unpack("<I", struct.pack("<f", x))[0]
def mfma16(d, x, y, c=None):
    return "v_mfma_f32_16x16x32_bf16 %s, %s, %s, %s" % (vr(d, 4), vr(x, 4), vr(y, 4), vr(d, 4) if c is None else c)
def mfma32(d, x, y, c=None):
    return "v_mfma_f32_32x32x16_bf16 %s, %s, %s, %s" % (vr(d, 16), vr(x, 4), vr(y, 4), vr(d, 16) if c is None else c)
def emit(a, item):
    if item is None: return
    if callable(item): item(a)
    elif isinstance(item, (list, tuple)):
        for x in item: emit(a, x)
    else: a(item)

class LQ:
    def __init__(self, a): self.a, self.n, self.done = a, 0, 0
    def issue(self, s, cnt=1):
        emit(self.a, s); self.n += cnt; return self.n
    def need(self, idx):
        if idx > self.done:
            cnt = self.n - idx
            self.a("s_waitcnt lgkmcnt(%d)" % min(cnt, 15))
            self.done = idx if cnt <= 15 else self.n - 15
    def drain(self):
        if self.n > self.done:
            self.a("s_waitcnt lgkmcnt(0)"); self.done = self.n

NST = 8
def rec(f, *args):
    r = Asm(); r.nlab = 900000; f(r, *args)
    return [l.strip() for l in r.lines]
def stamp(a, name):
    if not STAMPS or STMAP is None or name not in STMAP: return
    i = STMAP[name]
    a("%s s[%d:%d]" % ("s_memtime" if 'cyc' in OPT else "s_memrealtime", S_ST + 2 * i, S_ST + 2 * i + 1))
def stamp_dbg(a):
    a("s_memrealtime s[20:21]")
    a("s_load_dwordx2 s[24:25], s[0:1], 56")
    a("s_waitcnt lgkmcnt(0)")
    a("s_mov_b32 s26, 256"); a("s_mov_b32 s27, 0x20000")
    a("s_mov_b64 exec, 1")
    a("v_mov_b32 v4, 0")
    a("s_not_b32 s22, s101")
    for reg, slot in [(22, 0), (20, 1)] + [(S_ST + 2 * i, 2 + i) for i in range(NST)]:
        a("v_mov_b32 v5, s%d" % reg)
        a("buffer_atomic_umax v5, v4, s[24:27], 0 offen offset:%d" % (slot * 4))
    a("v_mov_b32 v5, s101")
    a("buffer_atomic_umax v5, v4, s[24:27], 0 offen offset:%d" % (10 * 4))
    a("s_mov_b64 exec, -1")

def stamp_store(a):
    if not STAMPS: return
    if 'dbg' in OPT: return stamp_dbg(a)
    a("s_memrealtime s[20:21]")
    a("s_memtime s[24:25]")
    a("s_waitcnt lgkmcnt(0)")
    a("s_lshl_b32 s%d, s2, 3" % S_T0)
    a("s_add_u32 s%d, s%d, s%d" % (S_T0, S_T0, S_WV))
    a("s_lshl_b32 s%d, s%d, 6" % (S_T0, S_T0))
    a("s_add_u32 s%d, s%d, %d" % (S_T0, S_T0, WS_STAMP))
    a("s_mov_b64 exec, 1")
    a("v_mov_b32 v4, 0")
    for i in range(NST):
        a("v_mov_b32 v5, s%d" % (S_ST + 2 * i))
        a("buffer_store_dword v5, v4, s[%d:%d], s%d offen offset:%d" % (S_WS, S_WS + 3, S_T0, i * 4))
    a("s_getreg_b32 s21, hwreg(HW_REG_XCC_ID)")
    a("s_getreg_b32 s22, hwreg(HW_REG_HW_ID)")
    for reg, slot in ((20, 15), (101, 14), (100, 13), (21, 12), (22, 11), (24, 10)):
        a("v_mov_b32 v5, s%d" % reg)
        a("buffer_store_dword v5, v4, s[%d:%d], s%d offen offset:%d" % (S_WS, S_WS + 3, S_T0, slot * 4))
    a("s_mov_b64 exec, -1")

def minwrap(a, v, m, tmp):
    a("v_subrev_u32 v%d, %d, v%d" % (tmp, m, v))
    a("v_min_u32 v%d, v%d, v%d" % (v, v, tmp))
def srd(a, d, lo, hi, size):
    a("s_mov_b32 s%d, s%d" % (d, lo)); a("s_mov_b32 s%d, s%d" % (d + 1, hi))
    a("s_mov_b32 s%d, %d" % (d + 2, size)); a("s_mov_b32 s%d, 0x20000" % (d + 3))
def role_branch(a, fw, fx):
    lx, ld = a.newlabel("rx"), a.newlabel("rd")
    a("s_cmp_eq_u32 s%d, 0" % S_CS)
    a("s_cbranch_scc0 %s" % (lx if fx else ld))
    emit(a, fw)
    if fx:
        a("s_branch %s" % ld)
        a.label(lx)
        emit(a, fx)
    a.label(ld)
def on_wave(a, wave, f):
    l = a.newlabel("ow")
    a("s_cmp_eq_u32 s%d, %d" % (S_WV, wave))
    a("s_cbranch_scc0 %s" % l)
    emit(a, f)
    a.label(l)

def entry(a):
    a("s_cmp_ge_u32 s2, 256")
    a("s_cbranch_scc1 L_end")
    if STAMPS:
        a("s_memrealtime s[100:101]")
        a("s_memtime s[62:63]")
    a("s_load_dwordx16 s[4:19], s[0:1], 0")
    a("s_load_dwordx2 s[20:21], s[0:1], 64")
    if 'badmap' in OPT:
        a("s_lshr_b32 s%d, s2, 5" % S_T0)
        a("s_and_b32 s%d, s2, 31" % S_I)
    else:
        a("s_and_b32 s%d, s2, 7" % S_T0)
        a("s_lshr_b32 s%d, s2, 3" % S_I)
    a("v_lshrrev_b32 v4, 6, v0")
    a("v_and_b32 v%d, 63, v0" % V_LANE)
    a("v_and_b32 v%d, 15, v0" % V_N)
    a("v_readfirstlane_b32 s%d, v4" % S_WV)
    a("v_lshrrev_b32 v%d, 4, v%d" % (V_KG, V_LANE))
    a("s_and_b32 s%d, s%d, 1" % (S_BR, S_T0))
    a("s_lshr_b32 s%d, s%d, 1" % (S_T2, S_T0))
    a("s_and_b32 s%d, s%d, 1" % (S_T3, S_T2))
    a("s_lshl_b32 s%d, s%d, 3" % (S_T3, S_T3))
    a("s_and_b32 s%d, s%d, 7" % (S_T4, S_I))
    a("s_add_u32 s%d, s%d, s%d" % (S_R, S_T3, S_T4))
    a("s_lshr_b32 s%d, s%d, 1" % (S_T3, S_T2))
    a("s_lshr_b32 s%d, s%d, 3" % (S_T4, S_I))
    a("s_lshl_b32 s%d, s%d, 2" % (S_T5, S_T3))
    a("s_add_u32 s%d, s%d, s%d" % (S_G, S_T5, S_T4))
    a("s_lshl_b32 s%d, s%d, 1" % (S_T3, S_T3))
    a("s_and_b32 s%d, s%d, 1" % (S_T5, S_T4))
    a("s_add_u32 s%d, s%d, s%d" % (S_T3, S_T3, S_T5))
    a("s_lshr_b32 s%d, s%d, 1" % (S_T4, S_T4))
    a("s_lshl_b32 s%d, s%d, 2" % (S_T4, S_T4))
    a("s_add_u32 s%d, s%d, s%d" % (S_G1, S_T3, S_T4))
    a("s_and_b32 s%d, s%d, 3" % (S_RG, S_WV))
    a("s_lshr_b32 s%d, s%d, 2" % (S_CS, S_WV))
    if 'nocodepf' not in OPT:
        def cpf(a):
            a("s_getpc_b64 s[56:57]")
            a.label("L_pcbase")
            a("s_and_b32 s%d, s%d, 7" % (S_T4, S_I))
            a("s_mul_i32 s%d, s%d, CODE_CHUNK" % (S_T4, S_T4))
            a("v_lshlrev_b32 v4, 7, v%d" % V_LANE)
            a("v_add_u32 v4, s%d, v4" % S_T4)
            a("v_min_u32 v4, CODE_LAST, v4")
            a("global_load_dword v%d, v4, s[56:57]" % V_PFD)
        on_wave(a, 7, cpf)

def dma_setup(a):
    stamp(a, "ids")
    def fw(a):
        a("s_mul_i32 s%d, s%d, %d" % (S_T0, S_RG, 16 * 3840))
        a("s_mul_i32 s%d, s%d, 160" % (S_T1, S_G))
        a("s_mul_i32 s%d, s%d, 320" % (S_T2, S_G1))
        a("s_cmp_eq_u32 s%d, 0" % S_BR)
        a("s_cselect_b32 s%d, s%d, s%d" % (S_T2, S_T2, S_T1))
        a("s_cselect_b32 s%d, 0, 1120" % S_T5)
        a("s_add_u32 s%d, s%d, s%d" % (S_T2, S_T2, S_T0))
        a("s_add_u32 s%d, s%d, 1280" % (S_T2, S_T2))
        a("s_add_u32 s%d, s%d, s%d" % (S_T0, S_T0, S_T1))
        a("s_movk_i32 s%d, 3277" % S_T1)
        a("s_movk_i32 s%d, 3840" % S_T3)
        a("s_mov_b32 s%d, %d" % (S_T4, 245760 - 160))
        for j in range(5):
            p, kk, q, u, t = 4, 5, 6, 7, 8
            a("v_add_u32 v%d, %d, v%d" % (p, 64 * j, V_LANE))
            a("v_mul_u32_u24 v%d, s%d, v%d" % (kk, S_T1, p))
            a("v_lshrrev_b32 v%d, 16, v%d" % (kk, kk))
            a("v_mul_u32_u24 v%d, 20, v%d" % (q, kk))
            a("v_lshrrev_b32 v%d, 2, v%d" % (u, kk))
            a("v_sub_u32 v%d, v%d, v%d" % (q, p, q))
            a("v_and_b32 v%d, 2, v%d" % (u, u))
            a("v_sub_u32 v%d, v%d, v%d" % (u, q, u))
            a("v_add_u32 v%d, 20, v%d" % (t, u))
            a("v_min_u32 v%d, v%d, v%d" % (u, u, t))
            a("v_add_u32 v%d, 6, v%d" % (t, u))
            a("v_lshrrev_b32 v%d, 4, v%d" % (t, t))
            a("v_mul_u32_u24 v%d, s%d, v%d" % (kk, S_T3, kk))
            a("v_lshl_add_u32 v%d, v%d, 4, v%d" % (kk, u, kk))
            a("v_mad_u32_u24 v%d, v%d, s%d, v%d" % (q, t, S_T5, kk))
            a("v_add_u32 v%d, s%d, v%d" % (V_DMA + j, S_T2, q))
            a("v_mad_u32_u24 v%d, v%d, s%d, v%d" % (q, t, S_T4, kk))
            a("v_add_u32 v%d, s%d, v%d" % (V_DMA2 + j, S_T0, q))
        a("s_mul_i32 s%d, s%d, 5120" % (S_T0, S_RG))
        for k in range(4): a("s_add_u32 s%d, s%d, %d" % (S_SB + k, S_T0, LDS_W + k * WSLOT))
        a("s_mov_b32 s%d, %d" % (S_STEP, 64 * 3840))
        for k in range(1, 4): a("s_mov_b32 s%d, 0" % (S_J + k))
        a("v_and_b32 v4, 31, v%d" % V_LANE)
        a("v_lshrrev_b32 v5, 5, v%d" % V_LANE)
        a("v_min_u32 v4, 19, v4")
        a("s_lshr_b32 s%d, s%d, 2" % (S_T0, S_G))
        a("v_mul_u32_u24 v6, 13, v4"); a("v_lshrrev_b32 v6, 7, v6")
        a("v_mul_u32_u24 v7, 52, v4"); a("v_lshrrev_b32 v7, 8, v7")
        a("v_mul_u32_u24 v8, 5, v7"); a("v_sub_u32 v8, v4, v8")
        a("v_lshlrev_b32 v8, 7, v8")
        a("v_lshl_add_u32 v6, v5, 6, v6")
        a("s_lshl_b32 s%d, s%d, 1" % (S_T2, S_I))
        a("v_add_u32 v6, s%d, v6" % S_T2)
        a("v_mul_u32_u24 v6, s%d, v6" % S_T3)
        a("v_and_b32 v9, 1, v7")
        a("s_movk_i32 s%d, 1280" % S_T2)
        a("v_mul_u32_u24 v9, s%d, v9" % S_T2)
        a("v_add3_u32 v6, v6, v9, v8")
        a("s_mul_i32 s%d, s%d, 640" % (S_T0, S_T0))
        a("s_add_u32 s%d, s%d, 1280" % (S_T2, S_T0))
        a("v_add_u32 v%d, s%d, v6" % (V_PF + 1, S_T2))
        a("v_lshl_add_u32 v7, v5, 7, v7")
        a("s_lshl_b32 s%d, s%d, 2" % (S_T2, S_I))
        a("v_add_u32 v7, s%d, v7" % S_T2)
        a("v_mul_u32_u24 v7, s%d, v7" % S_T3)
        a("v_add3_u32 v%d, v7, v8, s%d" % (V_PF + 2, S_T0))
        a("v_mov_b32 v%d, 0" % V_PF)
    def fx(a):
        a("s_lshl_b32 s%d, s%d, 7" % (S_T0, S_R))
        a("s_lshl_b32 s%d, s%d, 5" % (S_T1, S_RG))
        a("s_add_u32 s%d, s%d, s%d" % (S_T0, S_T0, S_T1))
        a("s_mul_i32 s%d, s%d, 1280" % (S_T0, S_T0))
        a("s_movk_i32 s%d, 1280" % S_T1)
        a("v_lshrrev_b32 v4, 3, v%d" % V_LANE)
        a("v_and_b32 v5, 7, v%d" % V_LANE)
        a("v_xor_b32 v5, v5, v4")
        a("v_mul_u32_u24 v4, s%d, v4" % S_T1)
        a("v_lshl_add_u32 v4, v5, 4, v4")
        a("v_add_u32 v%d, s%d, v4" % (V_DMA, S_T0))
        for j in range(1, 5): a("v_mov_b32 v%d, v%d" % (V_DMA + j, V_DMA))
        for j in range(5): a("v_mov_b32 v%d, 0" % (V_DMA2 + j))
        a("s_lshl_b32 s%d, s%d, 12" % (S_T0, S_RG))
        for k in range(4): a("s_add_u32 s%d, s%d, %d" % (S_SB + k, S_T0, k * XSLOT))
        a("s_movk_i32 s%d, 128" % S_STEP)
        for k in range(1, 4): a("s_mov_b32 s%d, %d" % (S_J + k, k * 10240))
        a("v_and_b32 v4, 31, v%d" % V_LANE)
        a("v_lshrrev_b32 v5, 5, v%d" % V_LANE)
        a("s_lshr_b32 s%d, s%d, 3" % (S_T0, S_R))
        a("s_lshl_b32 s%d, s%d, 5" % (S_T0, S_T0))
        a("s_add_u32 s%d, s%d, s%d" % (S_T0, S_T0, S_I))
        a("s_mul_i32 s%d, s%d, %d" % (S_T0, S_T0, 32 * 1280))
        a("v_mul_u32_u24 v6, s%d, v4" % S_T1)
        a("v_lshl_add_u32 v6, v5, 7, v6")
        a("v_add_u32 v%d, s%d, v6" % (V_PF, S_T0))
        a("v_mov_b32 v%d, 0" % (V_PF + 1)); a("v_mov_b32 v%d, 0" % (V_PF + 2))
    role_branch(a, fw, fx)
    a("s_mov_b32 s%d, 0" % S_SOFF)

def entry_srd(a):
    a("s_waitcnt lgkmcnt(0)")
    a("s_cmp_eq_u32 s%d, 0" % S_BR)
    a("s_cselect_b32 s%d, s4, s10" % S_X)
    a("s_cselect_b32 s%d, s5, s11" % (S_X + 1))
    a("s_mov_b32 s%d, 2621440" % (S_X + 2))
    a("s_mov_b32 s%d, 0x20000" % (S_X + 3))
    a("s_cselect_b32 s%d, s6, s12" % S_W)
    a("s_cselect_b32 s%d, s7, s13" % (S_W + 1))
    a("s_mov_b32 s%d, 2457600" % (S_W + 2))
    a("s_mov_b32 s%d, 0x20000" % (S_W + 3))
    a("s_cmp_eq_u32 s%d, 0" % S_CS)
    a("s_cselect_b32 s%d, s%d, s%d" % (S_D, S_W, S_X))
    a("s_cselect_b32 s%d, s%d, s%d" % (S_D + 1, S_W + 1, S_X + 1))
    a("s_cselect_b32 s%d, s%d, s%d" % (S_D + 2, S_W + 2, S_X + 2))
    a("s_mov_b32 s%d, 0x20000" % (S_D + 3))

def entry_srd2(a):
    if WS_BASE:
        a("s_add_u32 s20, s20, %d" % WS_BASE)
        a("s_addc_u32 s21, s21, 0")
    srd(a, S_WS, 20, 21, WS_SIZE)
    srd(a, S_OUT, 16, 17, 5242880)
    srd(a, S_WO, 8, 9, 819200)
    srd(a, S_WOB, 14, 15, 819200)
    if STAMPS:
        a("s_mov_b32 s101, s100")
        a("s_mov_b32 s100, s62")
        if S_ST == 4:
            for i in range(NST): a("s_mov_b32 s%d, 0" % (S_ST + 2 * i))

def pf(kind, idx, k):
    def f(a):
        if 'nopf' in OPT: return
        def body(a):
            if kind == 'x': a("s_mov_b32 s%d, %d" % (S_OFF, idx * 256)); s_, v = S_X, V_PF
            elif kind == 'w': a("s_mov_b32 s%d, %d" % (S_OFF, idx * 128 * 3840)); s_, v = S_W, V_PF + 1
            else: a("s_mov_b32 s%d, %d" % (S_OFF, idx * 256 * 3840)); s_, v = S_W, V_PF + 2
            a("buffer_load_dword v%d, v%d, s[%d:%d], s%d offen %s" % (V_PFD, v, s_, s_ + 3, S_OFF, PFL))
        on_wave(a, (4 + k) if kind == 'x' else k, body)
    return f

def dma(sig, j):
    def f(a):
        if 'nodma' in OPT and sig >= 3: return
        slot = sig % 4
        def body(a):
            a("s_add_u32 m0, s%d, %d" % (S_SB + slot, j * 1024))
            if sig < 10:
                if 1 <= j <= 3:
                    a("s_add_u32 s%d, s%d, s%d" % (S_OFF, S_SOFF, S_J + j)); so = S_OFF
                else:
                    a("s_nop 0"); so = S_SOFF
                a("buffer_load_dwordx4 v%d, s[%d:%d], s%d offen %s lds" % (V_DMA + j, S_D, S_D + 3, so, DML))
            else:
                a("s_mov_b32 s%d, %d" % (S_OFF, (sig - 10) * 128 * 3840))
                a("buffer_load_dwordx4 v%d, s[%d:%d], s%d offen %s lds" % (V_DMA2 + j, S_D, S_D + 3, S_OFF, DML))
        if sig >= 10 or j == 4: role_branch(a, body, None)
        else: body(a)
        if sig < 10 and j == 4: a("s_add_u32 s%d, s%d, s%d" % (S_SOFF, S_SOFF, S_STEP))
    return f

def img_pos(a, dst, tmp):
    a("v_lshl_add_u32 v%d, v%d, 2, v%d" % (tmp, V_KG, V_N))
    a("v_and_b32 v%d, 15, v%d" % (tmp, tmp))
    a("v_lshl_add_u32 v%d, v%d, 4, v%d" % (tmp, V_KG, tmp))
    a("v_lshlrev_b32 v%d, 4, v%d" % (dst, tmp))

E_, RP, BB, W4, TM = V_ACC2, V_ACC2 + 1, V_ACC2 + 2, V_ACC2 + 3, V_ACC2 + 4
def addr1_setup(a):
    a("v_and_b32 v4, 7, v%d" % V_N)
    a("s_lshl_b32 s%d, s%d, 12" % (S_T0, S_RG))
    a("v_lshlrev_b32 v5, 7, v%d" % V_N)
    a("v_xor_b32 v4, v4, v%d" % V_KG)
    a("v_lshl_add_u32 v4, v4, 4, v5")
    a("s_xor_b32 s%d, s%d, 1" % (S_T5, S_CS))
    a("s_lshl_b32 s%d, s%d, 6" % (S_T1, S_T5))
    a("s_lshl_b32 s%d, s%d, 11" % (S_T2, S_CS))
    a("s_or_b32 s%d, s%d, s%d" % (S_T1, S_T1, S_T2))
    a("s_or_b32 s%d, s%d, s%d" % (S_T1, S_T1, S_T0))
    a("v_xor_b32 v%d, s%d, v4" % (V_XA, S_T1))
    a("v_xor_b32 v%d, 0x800, v%d" % (V_XA + 1, V_XA))
    a("v_xor_b32 v%d, 64, v%d" % (V_XA + 2, V_XA))
    a("v_xor_b32 v%d, 64, v%d" % (V_XA + 3, V_XA + 1))
    a("v_and_b32 v4, 3, v%d" % V_N)
    a("v_lshrrev_b32 v%d, 2, v%d" % (RP, V_N))
    a("v_and_b32 v7, 1, v%d" % V_KG)
    a("v_lshl_add_u32 v%d, v%d, 3, v%d" % (RP, V_KG, RP))
    a("s_movk_i32 s%d, 320" % S_T1)
    a("v_lshlrev_b32 v7, 5, v7")
    a("v_mul_u32_u24 v%d, s%d, v%d" % (RP, S_T1, RP))
    a("v_lshl_add_u32 v%d, v4, 3, v7" % E_)
    a("v_add_u32 v%d, %d, v%d" % (RP, LDS_W, RP))
    a("v_add_u32 v%d, v%d, v%d" % (BB, RP, E_))
    a("s_mul_i32 s%d, s%d, 160" % (S_T2, S_CS))
    a("s_mul_i32 s%d, s%d, 80" % (S_T3, S_CS))
    a("s_mul_i32 s%d, s%d, 10240" % (S_T0, S_T5))
    a("s_mul_i32 s%d, s%d, 10240" % (S_T1, S_CS))
    def sA(T):
        a("s_add_u32 s%d, s%d, %d" % (S_T4, S_T2, 40 * T))
        a("s_add_u32 s%d, s%d, %d" % (S_T5, S_T3, (T >> 1) * 160 + 40 * (T & 1)))
        a("s_cmp_eq_u32 s%d, 0" % S_BR)
        a("s_cselect_b32 s%d, s%d, s%d" % (S_T4, S_T4, S_T5))
    for T in range(3):
        sA(T)
        a("s_add_u32 s%d, s%d, s%d" % (S_T5, S_T4, S_T0))
        a("v_add_u32 v%d, s%d, v%d" % (V_WA + T, S_T5, BB))
        a("s_add_u32 s%d, s%d, s%d" % (S_T5, S_T4, S_T1))
        a("v_add_u32 v%d, s%d, v%d" % (V_WA + 5 + T, S_T5, BB))
    sA(3)
    a("v_add_u32 v5, s%d, v%d" % (S_T4, E_))
    minwrap(a, 5, 320, TM)
    a("v_add_u32 v5, v5, v%d" % RP)
    a("v_add_u32 v%d, s%d, v5" % (V_WA + 3, S_T0))
    a("v_add_u32 v%d, s%d, v5" % (V_WA + 8, S_T1))
    a("s_cmp_eq_u32 s%d, 0" % S_BR)
    a("s_cselect_b32 s%d, s%d, s%d" % (S_T4, S_T2, S_T3))
    a("s_cselect_b32 s%d, 0, 80" % S_T5)
    a("s_add_u32 s%d, s%d, 32" % (S_T4, S_T4))
    a("v_mul_u32_u24 v%d, 40, v4" % (W4))
    a("v_lshrrev_b32 v5, 1, v4")
    a("v_add_u32 v%d, v%d, v7" % (W4, W4))
    a("v_mad_u32_u24 v5, v5, s%d, v%d" % (S_T5, W4))
    a("v_add_u32 v5, s%d, v5" % S_T4)
    minwrap(a, 5, 320, TM)
    a("v_add_u32 v5, v5, v%d" % RP)
    a("v_add_u32 v%d, s%d, v5" % (V_WA + 4, S_T0))
    a("v_add_u32 v%d, s%d, v5" % (V_WA + 9, S_T1))

def addr2_setup(a):
    a("s_mul_i32 s%d, s%d, 10240" % (S_T1, S_CS))
    for seg in range(2):
        for T in range(4):
            if seg == 1 and T == 3: continue
            a("s_add_u32 s%d, s%d, %d" % (S_T4, S_T1, seg * 160 + 40 * T))
            a("v_add_u32 v%d, s%d, v%d" % (V_WA2 + seg * 5 + T, S_T4, BB))
    a("v_add_u32 v5, 280, v%d" % E_)
    minwrap(a, 5, 320, TM)
    a("v_add3_u32 v%d, v5, v%d, s%d" % (V_WA2 + 8, RP, S_T1))
    a("s_add_u32 s%d, s%d, 32" % (S_T4, S_T1))
    a("v_add3_u32 v%d, v%d, v%d, s%d" % (V_WA2 + 4, W4, RP, S_T4))
    a("v_add_u32 v5, 192, v%d" % (W4))
    minwrap(a, 5, 320, TM)
    a("v_add3_u32 v%d, v5, v%d, s%d" % (V_WA2 + 9, RP, S_T1))
    img_pos(a, V_IMG, 4)

def p1_reads(s, hf):
    if 'noread' in OPT: return ["s_nop 0"] * 12
    slot = s % 4
    wb = V_WB0 if hf == 0 else V_WB1
    L = []
    for tp in range(2):
        dst = (V_XT + 4 * tp) if hf == 0 else (V_XP + (s * 2 + tp) * 4)
        L.append("ds_read_b128 %s, v%d offset:%d" % (vr(dst, 4), V_XA + hf * 2 + tp, slot * XSLOT))
    for T in range(5):
        for rd in range(2):
            L.append("ds_read_b64_tr_b16 %s, v%d offset:%d" % (vr(wb + 4 * T + 2 * rd, 2), V_WA + hf * 5 + T, slot * WSLOT + rd * 1280))
    return L
def p1_mfmas(s, hf, first):
    if 'nomfma' in OPT: return ["s_nop 0"] * 10
    wb = V_WB0 if hf == 0 else V_WB1
    return [mfma16(V_ACC + (tp * 5 + T) * 4, (V_XT + 4 * tp) if hf == 0 else (V_XP + (s * 2 + tp) * 4), wb + 4 * T, "0" if first else None)
            for T in range(5) for tp in range(2)]
def p2_reads(u):
    v, seg = u >> 1, u & 1
    slot = (10 + v) % 4
    wb = V_WB0 if (u & 1) == 0 else V_WB1
    return ["ds_read_b64_tr_b16 %s, v%d offset:%d" % (vr(wb + 4 * T + 2 * rd, 2), V_WA2 + seg * 5 + T, slot * WSLOT + rd * 1280)
            for T in range(5) for rd in range(2)]
def p2_mfmas(u):
    wb = V_WB0 if (u & 1) == 0 else V_WB1
    return [mfma16(V_ACC2 + (tp * 5 + T) * 4, V_XP + (u * 2 + tp) * 4, wb + 4 * T, "0" if u == 0 else None)
            for T in range(5) for tp in range(2)]

def half(a, lq, mf, needs, reads, sched, extra):
    ids = []
    reads = list(reads)
    for i, m in enumerate(mf):
        lq.need(needs[i])
        a(m)
        for _ in range(sched[i]):
            if reads: ids.append(lq.issue(reads.pop(0)))
        if i in extra: emit(a, extra[i])
    while reads: ids.append(lq.issue(reads.pop(0)))
    return ids

def epi1_A(a):
    a("s_lshr_b32 s%d, s%d, 2" % (S_T0, S_G1))
    a("s_lshl_b32 s%d, s%d, 3" % (S_T0, S_T0))
    a("s_and_b32 s%d, s%d, 3" % (S_T1, S_G1))
    a("s_lshl_b32 s%d, s%d, 1" % (S_T1, S_T1))
    a("s_add_u32 s%d, s%d, s%d" % (S_T0, S_T0, S_T1))
    a("s_add_u32 s%d, s%d, s%d" % (S_T0, S_T0, S_CS))
    a("s_lshl_b32 s%d, s%d, 6" % (S_T0, S_T0))
    a("s_lshl_b32 s%d, s%d, 2" % (S_T1, S_R))
    a("s_add_u32 s%d, s%d, s%d" % (S_T0, S_T0, S_T1))
    a("s_add_u32 s%d, s%d, s%d" % (S_T0, S_T0, S_RG))
    a("s_mul_i32 s%d, s%d, 5120" % (S_T0, S_T0))
    a("s_add_u32 s%d, s%d, %d" % (S_T0, S_T0, WS_KV))
    a("s_add_u32 s%d, s%d, 4096" % (S_T1, S_T0))
    def pack(swap):
        def f(a):
            for T in range(5):
                e = V_ACC2 + T * 4
                for t in range(2):
                    tp = t ^ swap
                    d = V_ACC + (tp * 5 + T) * 4
                    a("v_cvt_pk_bf16_f32 v%d, v%d, v%d" % (e + 2 * t, d, d + 1))
                    a("v_cvt_pk_bf16_f32 v%d, v%d, v%d" % (e + 2 * t + 1, d + 2, d + 3))
                a("buffer_store_dwordx4 %s, v%d, s[%d:%d], s%d offen offset:%d %s" % (vr(e, 4), V_IMG, S_WS, S_WS + 3, S_T1 if T == 4 else S_T0, (T & 3) * 1024, ST))
                if 'dbl' in OPT:
                    a("buffer_store_dwordx4 %s, v%d, s[%d:%d], s%d offen offset:%d" % (vr(e, 4), V_IMG, S_WS, S_WS + 3, S_T1 if T == 4 else S_T0, (T & 3) * 1024))
        return f
    role_branch(a, pack(0), pack(1))
    a("s_nop 1")

def phi(a, regs, tmp):
    a("s_mov_b32 s%d, 0x%x" % (S_T4, f2u(LOG2E)))
    a("s_mov_b32 s%d, 0x%x" % (S_T5, f2u(LOG2E)))
    a("s_mov_b32 s%d, 0x%x" % (S_M2, f2u(1e-6)))
    a("s_mov_b32 s%d, 0x%x" % (S_M2 + 1, f2u(1e-6)))
    for i in range(0, len(regs), 4):
        g = regs[i:i + 4]
        assert g[0] % 2 == 0 and g[1] == g[0] + 1 and g[2] % 2 == 0 and g[3] == g[2] + 1
        for k in (0, 2): a("v_pk_mul_f32 %s, %s, s[%d:%d]" % (vr(tmp + k, 2), vr(g[k], 2), S_T4, S_T5))
        for k in range(4): a("v_exp_f32_e64 v%d, v%d clamp" % (tmp + k, tmp + k))
        for k in range(4): a("v_max_f32 v%d, 0, v%d" % (g[k], g[k]))
        for k in (0, 2): a("v_pk_add_f32 %s, %s, s[%d:%d]" % (vr(g[k], 2), vr(g[k], 2), S_M2, S_M2 + 1))
        for k in (0, 2): a("v_pk_add_f32 %s, %s, %s" % (vr(g[k], 2), vr(g[k], 2), vr(tmp + k, 2)))

def piece_decode(a):
    a("s_and_b32 s%d, s%d, 1" % (S_T0, S_WV))
    a("s_lshl_b32 s%d, s%d, 6" % (S_T0, S_T0))
    a("v_add_u32 v5, s%d, v%d" % (S_T0, V_LANE))
    a("s_movk_i32 s%d, 2731" % S_T1)
    a("v_mul_u32_u24 v6, s%d, v5" % S_T1)
    a("v_lshrrev_b32 v6, 16, v6")
    a("v_mul_u32_u24 v7, 24, v6")
    a("v_sub_u32 v7, v5, v7")

def epi1_B(a):
    acc = lambda tp, T: V_ACC + (tp * 5 + T) * 4
    raw = V_WB0
    TMP = V_ACC2
    a("s_nop 7")
    for tp in range(2):
        for k in range(4): a("v_mov_b32 v%d, v%d" % (raw + tp * 4 + k, acc(tp, 4) + k))
    regs = []
    for T in (0, 1, 4):
        for tp in range(2): regs += [acc(tp, T) + k for k in range(4)]
    phi(a, regs, TMP)
    a("s_mov_b32 s%d, 0x00ff00ff" % S_M0)
    a("s_mov_b32 s%d, 0x00ff00ff" % (S_M0 + 1))
    for tp in range(2):
        for k in range(4):
            a("v_cndmask_b32_e64 v%d, v%d, v%d, s[%d:%d]" % (acc(tp, 4) + k, raw + tp * 4 + k, acc(tp, 4) + k, S_M0, S_M0 + 1))
    P = V_WB1
    for T in range(5):
        for tp in range(2):
            d = acc(tp, T)
            a("v_cvt_pk_bf16_f32 v%d, v%d, v%d" % (P + 4 * T + 2 * tp, d, d + 1))
            a("v_cvt_pk_bf16_f32 v%d, v%d, v%d" % (P + 4 * T + 2 * tp + 1, d + 2, d + 3))
    TB = V_WB0 + 8
    a("v_mov_b32 v%d, 0x3f803f80" % TMP)
    for k in range(4):
        a("v_cndmask_b32_e64 v%d, v%d, v%d, s[%d:%d]" % (TB + k, P + 16 + k, TMP, S_M0, S_M0 + 1))
    F0, F1, V0, V1, TA = P, P + 4, P + 8, P + 12, P + 16
    D = V_ACC
    a("s_mul_i32 s%d, s%d, 7168" % (S_T0, S_WV))
    a("v_lshlrev_b32 v4, 4, v%d" % V_LANE)
    for i, (x, y) in enumerate([(F0, V0), (F1, V1), (F0, TB), (F1, TB), (TA, V0), (TA, V1), (TA, TB)]):
        a(mfma16(D + 4 * i, x, y, "0"))
    a("v_add_u32 v4, s%d, v4" % S_T0)
    piece_decode(a)
    M = TMP
    a("s_lshr_b32 s%d, s%d, 1" % (S_T2, S_WV))
    a("s_and_b32 s%d, s%d, 1" % (S_T3, S_T2))
    a("s_lshr_b32 s%d, s%d, 1" % (S_T2, S_T2))
    a("s_lshl_b32 s%d, s%d, 2" % (S_T4, S_T3))
    a("s_sub_u32 s%d, s%d, 8" % (S_T4, S_T4))
    a("v_add_u32 v8, s%d, v7" % S_T4)
    a("v_cmp_gt_u32_e64 s[%d:%d], 20, v7" % (S_M0, S_M0 + 1))
    a("v_cmp_gt_u32_e64 s[%d:%d], 16, v7" % (S_M1, S_M1 + 1))
    a("v_cmp_gt_u32_e64 s[%d:%d], 4, v6" % (S_M2, S_M2 + 1))
    a("s_barrier")
    for i in range(7):
        a("ds_write_b128 v4, %s offset:%d" % (vr(D + 4 * i, 4), i * 1024))
    a("v_cndmask_b32_e64 v8, 0, v8, s[%d:%d]" % (S_M0, S_M0 + 1))
    a("v_cndmask_b32_e64 v8, v8, v7, s[%d:%d]" % (S_M1, S_M1 + 1))
    a("v_mov_b32 v9, s%d" % S_T3)
    a("v_cndmask_b32_e64 v9, v9, v6, s[%d:%d]" % (S_M2, S_M2 + 1))
    a("v_lshl_add_u32 v8, v9, 4, v8")
    a("s_add_u32 s%d, s%d, 4" % (S_T4, S_T3))
    a("v_mov_b32 v9, s%d" % S_T4)
    a("v_mov_b32 v%d, s%d" % (M, S_T3))
    a("v_cndmask_b32_e64 v9, v9, v%d, s[%d:%d]" % (M, S_M2, S_M2 + 1))
    a("s_add_u32 s%d, s%d, 2" % (S_T4, S_T3))
    a("v_mov_b32 v%d, s%d" % (M, S_T4))
    a("v_cndmask_b32_e64 v%d, 6, v%d, s[%d:%d]" % (M, M, S_M2, S_M2 + 1))
    a("v_cndmask_b32_e64 v9, v%d, v9, s[%d:%d]" % (M, S_M1, S_M1 + 1))
    a("v_lshlrev_b32 v9, 10, v9")
    a("v_lshl_add_u32 v8, v8, 4, v9")
    a("s_mul_i32 s%d, s%d, %d" % (S_T4, S_T2, 4 * 7168))
    a("v_add_u32 v8, s%d, v8" % S_T4)
    a("v_cmp_gt_u32_e64 s[%d:%d], 21, v7" % (S_M0, S_M0 + 1))
    a("v_cmp_gt_u32_e64 s[%d:%d], 5, v6" % (S_M1, S_M1 + 1))
    a("v_min_u32 v8, %d, v8" % (8 * 7168 - 3 * 7168 - 16))
    a("s_lshl_b32 s%d, s%d, 4" % (S_T0, S_G))
    a("s_add_u32 s%d, s%d, s%d" % (S_T0, S_T0, S_R))
    a("s_lshl_b32 s%d, s%d, 13" % (S_T0, S_T0))
    a("s_lshr_b32 s%d, s%d, 1" % (S_T1, S_WV))
    a("s_lshl_b32 s%d, s%d, 11" % (S_T1, S_T1))
    a("s_add_u32 s%d, s%d, s%d" % (S_T0, S_T0, S_T1))
    a("s_add_u32 s%d, s%d, %d" % (S_T0, S_T0, WS_PART))
    a("v_lshlrev_b32 v5, 4, v5")
    a("s_waitcnt lgkmcnt(0)")
    a("s_barrier")
    a("s_and_b64 s[%d:%d], s[%d:%d], s[%d:%d]" % (S_M0, S_M0 + 1, S_M0, S_M0 + 1, S_M1, S_M1 + 1))
    E = V_ACC
    for rg in range(4): a("ds_read_b128 %s, v8 offset:%d" % (vr(E + 4 * rg, 4), rg * 7168))
    a("s_waitcnt lgkmcnt(0)")
    for k in (0, 2):
        a("v_pk_add_f32 %s, %s, %s" % (vr(E + k, 2), vr(E + k, 2), vr(E + 4 + k, 2)))
        a("v_pk_add_f32 %s, %s, %s" % (vr(E + 8 + k, 2), vr(E + 8 + k, 2), vr(E + 12 + k, 2)))
    for k in (0, 2): a("v_pk_add_f32 %s, %s, %s" % (vr(E + k, 2), vr(E + k, 2), vr(E + 8 + k, 2)))
    a("s_mov_b64 exec, s[%d:%d]" % (S_M0, S_M0 + 1))
    a("buffer_store_dwordx4 %s, v5, s[%d:%d], s%d offen %s" % (vr(E, 4), S_WS, S_WS + 3, S_T0, ST))
    a("s_mov_b64 exec, -1")

LDS_Q = 143360
def epi2(a):
    XCH = 102400
    a("s_mul_i32 s%d, s%d, 5120" % (S_T0, S_WV))
    a("s_add_u32 s%d, s%d, %d" % (S_T0, S_T0, XCH))
    a("v_lshlrev_b32 v4, 4, v%d" % V_LANE)
    a("s_xor_b32 s%d, s%d, 4" % (S_T1, S_WV))
    a("v_add_u32 v5, s%d, v4" % S_T0)
    a("s_mul_i32 s%d, s%d, 5120" % (S_T1, S_T1))
    a("s_add_u32 s%d, s%d, %d" % (S_T1, S_T1, XCH))
    a("s_barrier")
    for T in range(5): a("ds_write_b128 v5, %s offset:%d" % (vr(V_ACC2 + (5 + T) * 4, 4), T * 1024))
    lw = a.newlabel("e2w")
    a("s_cmp_eq_u32 s%d, 0" % S_BR)
    a("s_cbranch_scc1 %s" % lw)
    a("s_mov_b32 s%d, s%d" % (S_T2, S_T1))
    wo_load(a, S_WOB, first=12)
    a("s_mov_b32 s%d, s%d" % (S_T1, S_T2))
    a.label(lw)
    a("v_add_u32 v5, s%d, v4" % S_T1)
    a("s_lshl_b32 s%d, s%d, 3" % (S_T1, S_CS))
    a("v_add_u32 v4, s%d, v%d" % (S_T1, V_IMG))
    a("s_mul_i32 s%d, s%d, 5120" % (S_T0, S_RG))
    a("s_add_u32 s%d, s%d, %d" % (S_T0, S_T0, LDS_Q))
    a("v_add_u32 v4, s%d, v4" % S_T0)
    a("s_waitcnt lgkmcnt(0)")
    a("s_barrier")
    R = V_WB0
    for T in range(5): a("ds_read_b128 %s, v5 offset:%d" % (vr(R + 4 * T, 4), T * 1024))
    regs = [V_ACC2 + T * 4 + k for T in range(5) for k in range(4)]
    for T in range(5):
        a("s_waitcnt lgkmcnt(%d)" % (4 - T))
        for k in (0, 2):
            a("v_pk_add_f32 %s, %s, %s" % (vr(V_ACC2 + 4 * T + k, 2), vr(V_ACC2 + 4 * T + k, 2), vr(R + 4 * T + k, 2)))
    def fa(a):
        a("s_mov_b32 s%d, 0x%x" % (S_T4, f2u(QSCALE)))
        a("s_mov_b32 s%d, 0x%x" % (S_T5, f2u(QSCALE)))
        for k in range(0, 20, 2): a("v_pk_mul_f32 %s, %s, s[%d:%d]" % (vr(V_ACC2 + k, 2), vr(V_ACC2 + k, 2), S_T4, S_T5))
    lb, ld = a.newlabel("e2b"), a.newlabel("e2d")
    a("s_cmp_eq_u32 s%d, 0" % S_BR)
    a("s_cbranch_scc0 %s" % lb)
    fa(a)
    a("s_branch %s" % ld)
    a.label(lb)
    phi(a, regs, V_ACC)
    a.label(ld)
    for T in range(5):
        d = V_ACC2 + T * 4
        a("v_cvt_pk_bf16_f32 v%d, v%d, v%d" % (R + 2 * T, d, d + 1))
        a("v_cvt_pk_bf16_f32 v%d, v%d, v%d" % (R + 2 * T + 1, d + 2, d + 3))
        a("ds_write_b64 v4, %s offset:%d" % (vr(R + 2 * T, 2), T * 1024))

def vm_wait_roles(a, nw, nx):
    if nw == nx: a("s_waitcnt vmcnt(%d)" % nw)
    else: role_branch(a, "s_waitcnt vmcnt(%d)" % nw, "s_waitcnt vmcnt(%d)" % nx)

def publish(a, s_off, wave=0):
    def body(a):
        a("v_mov_b32 v4, s%d" % S_NONCE)
        a("v_mov_b32 v5, 0")
        a("s_mov_b64 exec, 1")
        a("buffer_store_dword v4, v5, s[%d:%d], s%d offen sc0 sc1" % (S_WS, S_WS + 3, s_off))
        a("s_mov_b64 exec, -1")
    if wave is None: body(a)
    else: on_wave(a, wave, body)

def poll(a, voff, s_off, mask_lo, mask_hi):
    def body(a):
        lp, ld = a.newlabel("pp"), a.newlabel("pd")
        a("s_mov_b32 exec_lo, %s" % mask_lo)
        a("s_mov_b32 exec_hi, %s" % mask_hi)
        a("s_mov_b32 s%d, 0" % S_T5)
        a.label(lp)
        a("buffer_load_dword v6, v%d, s[%d:%d], s%d offen sc1" % (voff, S_WS, S_WS + 3, s_off))
        a("s_waitcnt vmcnt(0)")
        a("v_cmp_ne_u32_e64 s[%d:%d], s%d, v6" % (S_M0, S_M0 + 1, S_NONCE))
        a("s_add_u32 s%d, s%d, 1" % (S_T5, S_T5))
        a("s_nop 1")
        a("s_cmp_eq_u64 s[%d:%d], 0" % (S_M0, S_M0 + 1))
        a("s_cbranch_scc1 %s" % ld)
        a("s_sleep 1")
        a("s_cmp_lt_u32 s%d, %d" % (S_T5, SPIN_LIMIT))
        a("s_cbranch_scc1 %s" % lp)
        a.label(ld)
        a("s_mov_b64 exec, -1")
    on_wave(a, 0, body)

def wo_pf_setup(a, v):
    a("v_mul_u32_u24 v4, 52, v%d" % V_LANE); a("v_lshrrev_b32 v4, 8, v4")
    a("v_mul_u32_u24 v5, 5, v4"); a("v_sub_u32 v5, v%d, v5" % V_LANE)
    a("s_mul_i32 s%d, s%d, 20" % (S_T0, S_I))
    a("v_add_u32 v4, s%d, v4" % S_T0)
    a("s_movk_i32 s%d, 1280" % S_T1)
    a("v_mul_u32_u24 v4, s%d, v4" % S_T1)
    a("v_lshl_add_u32 v4, v5, 7, v4")
    a("s_lshr_b32 s%d, s%d, 2" % (S_T0, S_G))
    a("s_mul_i32 s%d, s%d, 640" % (S_T0, S_T0))
    a("v_add_u32 v%d, s%d, v4" % (v, S_T0))
assert all((l * 52) >> 8 == l // 5 for l in range(64))

def wo_pf_issue(a, v, srd_):
    a("buffer_load_dword v%d, v%d, s[%d:%d], 0 offen %s" % (V_PFD, v, srd_, srd_ + 3, PFL))
    a("s_mov_b32 s%d, %d" % (S_OFF, 12 * 1280))
    a("buffer_load_dword v%d, v%d, s[%d:%d], s%d offen %s" % (V_PFD, v, srd_, srd_ + 3, S_OFF, PFL))

def phase1(a):
    dma_setup(a)
    stamp(a, "dset")
    entry_srd(a)
    stamp(a, "karg")
    if 'pffirst' not in OPT and 'pf1' not in OPT:
        emit(a, [dma(0, j) for j in range(5)])
        emit(a, [pf('x', 0, 0), pf('w', 0, 0), pf('x', 1, 1), pf('w', 1, 1)])
    elif 'pf1' in OPT:
        emit(a, [pf('x', 0, 0), pf('w', 0, 0)])
        emit(a, [dma(0, j) for j in range(5)])
        emit(a, [pf('x', 1, 1), pf('w', 1, 1)])
    else:
        emit(a, [pf('x', 0, 0), pf('w', 0, 0), pf('x', 1, 1), pf('w', 1, 1)])
        stamp(a, "pf0")
        emit(a, [dma(0, j) for j in range(5)])
    entry_srd2(a)
    stamp(a, "g0")
    addr1_setup(a)
    emit(a, [dma(1, j) for j in range(5)])
    emit(a, [pf('x', 2, 2), pf('w', 2, 2)])
    a("v_mov_b32 v8, 0")
    a("s_mov_b32 s%d, %d" % (S_OFF, WS_FLAG))
    a("buffer_load_dword v9, v8, s[%d:%d], s%d offen sc1" % (S_WS, S_WS + 3, S_OFF))
    stamp(a, "g1")
    vm_wait_roles(a, 6, 5)
    stamp(a, "g0land")
    a("s_barrier")
    stamp(a, "t0")
    lq = LQ(a)
    cur = [lq.issue(x) for x in p1_reads(0, 0)]
    SCH = {'e': [2, 1, 1, 1, 1, 2, 1, 1, 1, 1], 'f': [2, 2, 2, 2, 2, 2, 0, 0, 0, 0], 'm': [2, 2, 1, 1, 1, 1, 1, 1, 1, 1], 'g': [2, 2, 2, 1, 1, 1, 1, 1, 1, 0]}[SCHED]
    needs12 = lambda ids: [ids[2 + 2 * (i // 2) + 1] for i in range(10)]
    needs10 = lambda ids: [ids[2 * (i // 2) + 1] for i in range(10)]
    for s in range(10):
        ex0 = {}
        if s >= 1: ex0 = {2: dma(s + 2, 3), 6: dma(s + 2, 4)}
        if s == 0: ex0 = {0: dma(2, 0), 2: dma(2, 1), 4: dma(2, 2), 6: dma(2, 3), 8: dma(2, 4)}
        if s == 5:
            lines = rec(addr2_setup)
            for k_, pos in enumerate((1, 3, 4, 5, 7, 8, 9)):
                ex0[pos] = [ex0.get(pos), lines[k_ * len(lines) // 7:(k_ + 1) * len(lines) // 7]]
        nxt = half(a, lq, p1_mfmas(s, 0, s == 0), needs12(cur), p1_reads(s, 1), SCH, ex0)
        if s == 0: vm_wait_roles(a, 6, 5)
        elif s == 8: vm_wait_roles(a, 5, 0)
        elif s == 9: a("s_waitcnt vmcnt(5)")
        else: vm_wait_roles(a, 5, 4)
        a("s_barrier")
        stamp(a, "s%d" % s)
        if s == 2:
            a("v_readfirstlane_b32 s%d, v9" % S_NONCE)
            a("s_nop 3")
            a("s_add_u32 s%d, s%d, 0x9e3779b9" % (S_NONCE, S_NONCE))
        pfl = []
        if s == 0: pfl = [pf('x', 3, 3), pf('w', 3, 3)]
        if s == 2: pfl = [pf('x', 4, 0), pf('w', 4, 0)]
        if s == 3: pfl = [lambda a: wo_pf_setup(a, V_PF)]
        def wopf_own(a):
            if 'nopf' in OPT: return
            def body(a):
                l, l2 = a.newlabel("wpf"), a.newlabel("wpf2")
                a("s_cmp_eq_u32 s%d, 0" % S_BR)
                a("s_cbranch_scc1 %s" % l)
                wo_pf_issue(a, V_PF, S_WOB)
                a("s_branch %s" % l2)
                a.label(l)
                wo_pf_issue(a, V_PF, S_WO)
                a.label(l2)
            on_wave(a, 5, body)
        if s == 4: pfl = [pf('q', 0, 1), wopf_own]
        if s == 5: pfl = [pf('q', 1, 2)]
        if s == 6: pfl = [pf('q', 2, 3)]
        ex1 = {1: dma(s + 3, 0), 4: dma(s + 3, 1), 7: dma(s + 3, 2), 9: pfl}
        if s == 9: ex1 = {1: dma(12, 0), 3: dma(12, 1), 5: dma(12, 2), 7: dma(12, 3), 9: dma(12, 4)}
        rd = p1_reads(s + 1, 0) if s < 9 else p2_reads(0)
        cur = half(a, lq, p1_mfmas(s, 1, False), needs12(nxt), rd, SCH, ex1)
    stamp(a, "p1end")
    lb, ld = a.newlabel("e1b"), a.newlabel("e1d")
    a("s_cmp_eq_u32 s%d, 0" % S_BR)
    a("s_cbranch_scc0 %s" % lb)
    epi1_A(a)
    a("s_branch %s" % ld)
    a.label(lb)
    a("s_waitcnt lgkmcnt(0)")
    epi1_B(a)
    emit(a, p2_reads(0))
    a.label(ld)
    stamp(a, "e1end")
    p3_dma_setup(a)
    S_WBF, S_WB1, S_WB2 = S_SOFF, S_STEP, S_J + 1
    a("s_and_b32 s%d, s%d, s%d" % (S_WBF, S_BR, S_CS))
    a("s_mul_i32 s%d, s%d, %d" % (S_WB1, S_RG, 3 * 5120))
    a("s_mul_i32 s%d, s%d, %d" % (S_WB2, S_RG, 3 * 32 * 1280))
    def wob(q):
        def f(a):
            l = a.newlabel("wob")
            a("s_cmp_eq_u32 s%d, 0" % S_WBF)
            a("s_cbranch_scc1 %s" % l)
            a("s_add_u32 m0, s%d, %d" % (S_WB1, (q // 5) * 5120 + (q % 5) * 1024))
            a("s_add_u32 s%d, s%d, %d" % (S_OFF, S_WB2, (q // 5) * 32 * 1280))
            a("buffer_load_dwordx4 v%d, s[%d:%d], s%d offen %s lds" % (C_DMA + q % 5, S_WOB, S_WOB + 3, S_OFF, DML))
            a.label(l)
        return f
    WOB_N = [2, 1, 2, 1, 2, 1, 2, 1, 2, 1]
    def wopf(a):
        if 'nopf' in OPT: return
        def body(a):
            l = a.newlabel("wpf")
            a("s_cmp_eq_u32 s%d, 0" % S_BR)
            a("s_cbranch_scc1 %s" % l)
            wo_pf_issue(a, V_PF, S_WO)
            a.label(l)
        on_wave(a, 0, body)
    a("s_waitcnt lgkmcnt(0)")
    lq = LQ(a)
    cur = None
    SCH2 = {'e': [1] * 10, 'f': [2, 2, 2, 2, 2, 0, 0, 0, 0, 0], 'm': [2, 1, 1, 1, 1, 1, 1, 1, 1, 0], 'g': [2, 2, 1, 1, 1, 1, 1, 1, 0, 0]}[SCHED]
    for u in range(10):
        extra = {}
        rd = []
        if u + 1 < 10:
            if (u + 1) % 2 == 0:
                nx = 10 + (u + 1) // 2
                def by_branch(na, nb):
                    def f(a):
                        lB, lD = a.newlabel("wb"), a.newlabel("wd")
                        a("s_cmp_eq_u32 s%d, 0" % S_BR)
                        a("s_cbranch_scc0 %s" % lB)
                        a("s_waitcnt vmcnt(%d)" % na)
                        a("s_branch %s" % lD)
                        a.label(lB)
                        a("s_waitcnt vmcnt(%d)" % nb)
                        a.label(lD)
                    return f
                if nx == 13: role_branch(a, "s_waitcnt vmcnt(5)", by_branch(0, sum(WOB_N[:5])))
                elif nx == 14: role_branch(a, "s_waitcnt vmcnt(0)", None)
                else: role_branch(a, by_branch(5 + (10 if 'dbl' in OPT else 5), 6), None)
                a("s_barrier")
                if 13 <= nx + 2 <= 14: extra = {1: dma(nx + 2, 0), 3: dma(nx + 2, 1), 5: dma(nx + 2, 2), 7: dma(nx + 2, 3), 9: dma(nx + 2, 4)}
                if nx == 13:
                    def pub(a):
                        a("s_lshl_b32 s%d, s%d, 4" % (S_T0, S_G))
                        a("s_add_u32 s%d, s%d, s%d" % (S_T0, S_T0, S_R))
                        a("s_lshl_b32 s%d, s%d, 7" % (S_T0, S_T0))
                        a("s_mul_i32 s%d, s%d, %d" % (S_T1, S_BR, F_PART - F_KV))
                        a("s_add_u32 s%d, s%d, s%d" % (S_T0, S_T0, S_T1))
                        a("s_add_u32 s%d, s%d, %d" % (S_T0, S_T0, F_KV))
                        publish(a, S_T0, 0)
                    extra[0] = [pub]
            rd = p2_reads(u + 1)
        if u == 8: extra[3] = [wopf]
        q0 = sum(WOB_N[:u])
        for n_ in range(WOB_N[u]):
            pos = (2, 6)[n_]
            extra[pos] = [extra.get(pos), wob(q0 + n_)]
        needs = needs10(cur) if cur else [0] * 10
        cur = half(a, lq, p2_mfmas(u), needs, rd, SCH2, extra)
    a("s_nop 4")
    stamp(a, "p2end")
    epi2(a)
    stamp(a, "e2end")

LDS_K, LDS_V = 0, 65536
LDS_KVR = 135168
A_KA0, A_KA1, A_KAT, A_VA0, A_VA1, A_QA0, A_QA1, A_QAT, A_OM, A_OT = 10, 11, 12, 13, 14, 15, 16, 17, 18, 19
A_AM, A_Q1, A_Q2, A_KB, A_VB, A_S, A_O = 20, 32, 36, 40, 64, 96, 240
S_TAU0 = S_U
S_EXV, S_HI, S_LO = 62, 64, 66
NEG_BIG = f2u(-3.0e38)
S_KV0, S_KV1, S_KV2 = 20, 21, 22
A_L16 = 88

def jkey(r, h):
    m, b, e = r >> 3, (r >> 2) & 1, r & 3
    return 16 * b + 8 * m + 4 * h + e
def diag_mask(r):
    return (sum(1 << i for i in range(32) if jkey(r, 0) <= i), sum(1 << i for i in range(32) if jkey(r, 1) <= i))

def p2_common_setup(a, attn):
    a("v_and_b32 v4, 1, v%d" % V_KG)
    a("v_lshrrev_b32 v5, 1, v%d" % V_KG)
    a("v_lshrrev_b32 v6, 2, v%d" % V_N)
    a("v_and_b32 v7, 3, v%d" % V_N)
    a("s_and_b32 s%d, s%d, 3" % (S_T0, S_WV))
    a("s_lshr_b32 s%d, s%d, 2" % (S_T1, S_WV))
    a("s_mul_i32 s%d, s%d, 5120" % (S_T1, S_T1))
    a("s_lshl_b32 s%d, s%d, 10" % (S_T2, S_T0))
    a("s_add_u32 s%d, s%d, s%d" % (S_T2, S_T2, S_T1))
    a("s_add_u32 s%d, s%d, 4096" % (S_T3, S_T1))
    a("s_lshl_b32 s%d, s%d, 2" % (S_T4, S_T0))
    def addr(dst, n, kgimg, tbit, sbase, extra):
        a("v_lshl_add_u32 v9, v%d, 2, v%d" % (kgimg, n))
        a("v_and_b32 v9, 15, v9")
        a("v_lshl_add_u32 v9, v%d, 4, v9" % kgimg)
        a("v_lshlrev_b32 v9, 4, v9")
        a("v_lshl_add_u32 v9, v%d, 3, v9" % tbit)
        a("s_add_u32 s%d, s%d, %d" % (S_T5, sbase, extra))
        a("v_add_u32 v%d, s%d, v9" % (dst, S_T5))
    a("v_lshl_add_u32 v8, v5, 3, v6")
    addr(A_QA0, 8, 7, 4, S_T2, LDS_Q)
    a("v_add_u32 v30, 4, v8")
    addr(A_QA1, 30, 7, 4, S_T2, LDS_Q)
    a("v_add_u32 v31, s%d, v6" % S_T4)
    addr(A_QAT, 31, 7, 4, S_T3, LDS_Q)
    if attn:
        a("v_and_b32 v28, 1, v7")
        a("v_lshl_add_u32 v28, v4, 1, v28")
        a("v_lshrrev_b32 v29, 1, v7")
        addr(A_KA0, 8, 28, 29, S_T2, LDS_K)
        addr(A_KA1, 30, 28, 29, S_T2, LDS_K)
        addr(A_KAT, 31, 28, 29, S_T3, LDS_K)
    a("v_and_b32 v4, 31, v%d" % V_LANE)
    a("v_lshrrev_b32 v5, 5, v%d" % V_LANE)
    if attn:
        a("v_cmp_gt_u32_e64 s[%d:%d], 16, v4" % (S_M0, S_M0 + 1))
        a("s_sub_u32 s%d, s%d, 16" % (S_T5, S_T4))
        a("v_add_u32 v6, s%d, v4" % S_T5)
        a("v_and_b32 v6, 15, v6")
        a("v_cndmask_b32_e64 v6, v6, v4, s[%d:%d]" % (S_M0, S_M0 + 1))
        a("v_mov_b32 v7, s%d" % S_T3)
        a("v_mov_b32 v8, s%d" % S_T2)
        a("v_cndmask_b32_e64 v7, v7, v8, s[%d:%d]" % (S_M0, S_M0 + 1))
        for m in range(2):
            a("v_add_u32 v8, %d, v5" % (2 * m))
            a("v_lshl_add_u32 v9, v8, 2, v6")
            a("v_and_b32 v9, 15, v9")
            a("v_lshl_add_u32 v9, v8, 4, v9")
            a("v_lshl_add_u32 v9, v9, 4, v7")
            a("v_add_u32 v%d, %d, v9" % (A_VA0 + m, LDS_V))
    a("s_lshl_b32 s%d, s%d, 2" % (S_T1, S_G))
    a("s_add_u32 s%d, s%d, s%d" % (S_T1, S_T1, S_T0))
    a("s_lshl_b32 s%d, s%d, 3" % (S_T2, S_R))
    a("s_lshr_b32 s%d, s%d, 2" % (S_T3, S_WV))
    a("s_lshl_b32 s%d, s%d, 1" % (S_T3, S_T3))
    a("s_add_u32 s%d, s%d, s%d" % (S_T2, S_T2, S_T3))
    a("s_mul_i32 s%d, s%d, 20480" % (S_T2, S_T2))
    a("s_mul_i32 s%d, s%d, %d" % (S_T3, S_BR, O_BR))
    a("s_add_u32 s%d, s%d, s%d" % (S_T2, S_T2, S_T3))
    a("s_add_u32 s%d, s%d, %d" % (S_T2, S_T2, WS_O))
    a("v_lshrrev_b32 v6, 4, v4")
    a("s_movk_i32 s%d, 20480" % S_T3)
    a("v_mul_u32_u24 v6, s%d, v6" % S_T3)
    a("v_and_b32 v7, 15, v4")
    a("v_lshl_add_u32 v6, v7, 4, v6")
    a("v_add_u32 v6, s%d, v6" % S_T2)
    a("s_lshr_b32 s%d, s%d, 1" % (S_T3, S_T1))
    a("s_lshl_b32 s%d, s%d, 10" % (S_T3, S_T3))
    a("s_and_b32 s%d, s%d, 1" % (S_T4, S_T1))
    a("s_lshl_b32 s%d, s%d, 9" % (S_T4, S_T4))
    a("s_add_u32 s%d, s%d, s%d" % (S_T3, S_T3, S_T4))
    a("v_lshl_add_u32 v7, v5, 8, v6")
    a("v_add_u32 v%d, s%d, v7" % (A_OM, S_T3))
    a("s_lshr_b32 s%d, s%d, 3" % (S_T3, S_T1))
    a("s_add_u32 s%d, s%d, 16" % (S_T3, S_T3))
    a("s_lshl_b32 s%d, s%d, 10" % (S_T3, S_T3))
    a("s_and_b32 s%d, s%d, 6" % (S_T4, S_T1))
    a("s_lshl_b32 s%d, s%d, 7" % (S_T4, S_T4))
    a("s_add_u32 s%d, s%d, s%d" % (S_T3, S_T3, S_T4))
    a("s_and_b32 s%d, s%d, 1" % (S_T4, S_T1))
    a("s_lshl_b32 s%d, s%d, 3" % (S_T4, S_T4))
    a("s_add_u32 s%d, s%d, s%d" % (S_T3, S_T3, S_T4))
    a("v_add_u32 v%d, s%d, v6" % (A_OT, S_T3))
    a("s_mov_b32 s%d, 0" % S_HI); a("s_mov_b32 s%d, -1" % (S_HI + 1))
    a("s_mov_b32 s%d, -1" % S_LO); a("s_mov_b32 s%d, 0" % (S_LO + 1))

def q_frag_reads():
    return ["ds_read_b64_tr_b16 %s, v%d" % (vr(A_Q1, 2), A_QA0),
            "ds_read_b64_tr_b16 %s, v%d" % (vr(A_Q1 + 2, 2), A_QA1),
            "ds_read_b64_tr_b16 %s, v%d" % (vr(A_Q2, 2), A_QAT)]
def q_frag_fix(a):
    a("v_cndmask_b32_e64 v%d, v%d, 0, s[%d:%d]" % (A_Q2, A_Q2, S_HI, S_HI + 1))
    a("v_cndmask_b32_e64 v%d, v%d, 0, s[%d:%d]" % (A_Q2 + 1, A_Q2 + 1, S_HI, S_HI + 1))

def o_epilogue(a, eps=False):
    O = A_O
    a("v_cndmask_b32_e64 v30, v%d, v%d, s[%d:%d]" % (O + 12, O + 8, S_HI, S_HI + 1))
    if eps: a("v_add_f32 v30, 0x%x, v30" % f2u(1e-6))
    a("v_rcp_f32 v30, v30")
    a("s_nop 0")
    for k in range(0, 12, 2):
        a("v_pk_mul_f32 %s, %s, v[30:31] op_sel_hi:[1,0]" % (vr(O + k, 2), vr(O + k, 2)))
    for k in range(6): a("v_cvt_pk_bf16_f32 v%d, v%d, v%d" % (O + k, O + 2 * k, O + 2 * k + 1))
    for fl in ([ST, ""] if 'dbl' in OPT else [ST]):
        a("buffer_store_dwordx4 %s, v%d, s[%d:%d], 0 offen %s" % (vr(O, 4), A_OM, S_WS, S_WS + 3, fl))
        a("s_mov_b64 exec, s[%d:%d]" % (S_LO, S_LO + 1))
        a("buffer_store_dwordx2 %s, v%d, s[%d:%d], 0 offen %s" % (vr(O + 4, 2), A_OT, S_WS, S_WS + 3, fl))
        a("s_mov_b64 exec, -1")

def attn_setup(a):
    p2_common_setup(a, True)
    for r in range(16):
        lo, hi = diag_mask(r)
        a("s_mov_b32 s%d, 0x%x" % (S_MASK + 2 * r, lo)); a("s_mov_b32 s%d, 0x%x" % (S_MASK + 2 * r + 1, hi))
    a("v_mov_b32 v30, 0xffff")
    a("v_mov_b32 v31, 0xffff0000")
    for k in range(8):
        a("v_cndmask_b32_e64 v4, 0, v30, s[%d:%d]" % (S_MASK + 4 * k, S_MASK + 4 * k + 1))
        a("v_cndmask_b32_e64 v5, 0, v31, s[%d:%d]" % (S_MASK + 4 * k + 2, S_MASK + 4 * k + 3))
        a("v_or_b32 v%d, v4, v5" % (A_AM + k))
    a("v_mov_b32 v4, 0x3f803f80")
    for k in range(24): a("v_mov_b32 v%d, v4" % (A_VB + k))
    for b in range(3):
        a("v_mov_b32 v%d, 0" % (A_KB + 8 * b + 6)); a("v_mov_b32 v%d, 0" % (A_KB + 8 * b + 7))
    a("v_mov_b32 v%d, 0" % (A_Q2 + 2)); a("v_mov_b32 v%d, 0" % (A_Q2 + 3))
    a("s_mov_b32 s%d, 0x000fffff" % S_EXV); a("s_mov_b32 s%d, 0x000fffff" % (S_EXV + 1))

def k_reads(tau, buf):
    b = A_KB + 8 * buf
    return ["ds_read_b64_tr_b16 %s, v%d offset:%d" % (vr(b, 2), A_KA0, tau * 5120),
            "ds_read_b64_tr_b16 %s, v%d offset:%d" % (vr(b + 2, 2), A_KA1, tau * 5120),
            "ds_read_b64_tr_b16 %s, v%d offset:%d" % (vr(b + 4, 2), A_KAT, tau * 5120)]
def v_reads(tau, buf):
    b = A_VB + 8 * buf
    return ["s_mov_b64 exec, s[%d:%d]" % (S_EXV, S_EXV + 1),
            "ds_read_b128 %s, v%d offset:%d" % (vr(b, 4), A_VA0, tau * 5120),
            "ds_read_b128 %s, v%d offset:%d" % (vr(b + 4, 4), A_VA1, tau * 5120),
            "s_mov_b64 exec, -1"]

def attn_unit(a, stubs, mid, qk_extra):
    S = lambda t: A_S + 16 * t
    order = [8, 0, 1, 2, 3, 4, 5, 6, 7]
    emit(a, q_frag_reads())
    emit(a, k_reads(order[0], 0)); emit(a, k_reads(order[1], 1))
    a("s_waitcnt lgkmcnt(6)")
    q_frag_fix(a)
    accs = [28, 29, 30, 31]
    acc_init = [False] * 4
    def max_ops(base):
        L = []
        for k in range(0, 16, 2):
            ai = (k // 2) % 4
            if not acc_init[ai]:
                L.append("v_max_f32 v%d, v%d, v%d" % (accs[ai], base + k, base + k + 1)); acc_init[ai] = True
            else:
                L.append("v_max3_f32 v%d, v%d, v%d, v%d" % (accs[ai], base + k, base + k + 1, accs[ai]))
        return L
    merge = ["v_cndmask_b32_e64 v%d, v%d, v%d, s[%d:%d]" % (S(0) + r, S(0) + r, S(8) + r, S_MASK + 2 * r, S_MASK + 2 * r + 1) for r in range(16)]
    for idx, tau in enumerate(order):
        buf = idx % 3
        if idx + 2 < 9: emit(a, k_reads(order[idx + 2], (idx + 2) % 3))
        a("s_waitcnt lgkmcnt(%d)" % (3 * min(2, 8 - idx)))
        kb = A_KB + 8 * buf
        if tau < 8:
            lf, lr = a.newlabel("fill"), a.newlabel("fret")
            a("s_cmp_gt_u32 s%d, %d" % (S_TAU0, tau))
            a("s_cbranch_scc1 %s" % lf)
            stubs.append((lf, lr, S(tau)))
        work = []
        if idx == 3: work = merge[:]
        if idx == 4: work = max_ops(S(0))
        if idx >= 5: work = max_ops(S(order[idx - 3]))
        a(mfma32(S(tau), kb, A_Q1, "0"))
        a(mfma32(S(tau), kb + 4, A_Q2))
        if tau < 8: a.label(lr)
        emit(a, qk_extra.get(idx))
        emit(a, work)
    emit(a, max_ops(S(5)))
    emit(a, max_ops(S(6)))
    emit(a, mid)
    emit(a, v_reads(8, 0)); emit(a, v_reads(0, 1))
    emit(a, max_ops(S(7)))
    a("v_max3_f32 v28, v28, v29, v30")
    a("v_max_f32 v28, v28, v31")
    a("v_mov_b32 v29, v28")
    a("s_nop 1")
    a("v_permlane32_swap_b32 v28, v29")
    a("s_nop 1")
    a("v_max_f32 v28, v28, v29")
    def sm_ops(base):
        L = ["v_pk_add_f32 %s, %s, v[28:29] op_sel_hi:[1,0] neg_lo:[0,1] neg_hi:[0,1]" % (vr(base + k, 2), vr(base + k, 2)) for k in range(0, 16, 2)]
        E = [["v_exp_f32 v%d, v%d" % (base + k, base + k), "v_exp_f32 v%d, v%d" % (base + k + 1, base + k + 1)] for k in range(0, 16, 2)]
        out = L[:2]
        for k in range(8):
            out += E[k]
            if k + 2 < 8: out.append(L[k + 2])
            if k >= 1: out.append("v_cvt_pk_bf16_f32 v%d, v%d, v%d" % (base + k - 1, base + 2 * (k - 1), base + 2 * (k - 1) + 1))
        out.append("s_nop 0")
        out.append("v_cvt_pk_bf16_f32 v%d, v%d, v%d" % (base + 7, base + 14, base + 15))
        return out
    emit(a, sm_ops(S(0)))
    for k in range(8): a("v_and_b32 v%d, v%d, v%d" % (S(0) + 8 + k, S(0) + k, A_AM + k))
    for k in range(8): a("v_xor_b32 v%d, v%d, v%d" % (S(0) + k, S(0) + k, S(0) + 8 + k))
    a("s_waitcnt lgkmcnt(0)")
    emit(a, v_reads(1, 2))
    def guarded(mms, tau):
        def f(a):
            l = a.newlabel("pvs")
            a("s_cmp_gt_u32 s%d, %d" % (S_TAU0, tau))
            a("s_cbranch_scc1 %s" % l)
            for x in mms: a(x)
            a.label(l)
        return f
    pv = [mfma32(A_O, A_VB + 0, S(0) + 8, "0"), mfma32(A_O, A_VB + 4, S(0) + 12),
          guarded([mfma32(A_O, A_VB + 8, S(0)), mfma32(A_O, A_VB + 12, S(0) + 4)], 0)]
    for tau in range(1, 8):
        vb = (tau + 1) % 3
        sm = sm_ops(S(tau))
        n, m, done = len(sm), len(pv), 0
        for i, x in enumerate(sm):
            emit(a, x)
            want = min(m, ((i + 1) * m + n // 2) // n) if i >= 1 else 0
            while done < want:
                emit(a, pv[done]); done += 1
        while done < m:
            emit(a, pv[done]); done += 1
        a("s_waitcnt lgkmcnt(0)")
        if tau + 1 < 8: emit(a, v_reads(tau + 1, (tau + 2) % 3))
        b = A_VB + 8 * vb
        pv = [guarded([mfma32(A_O, b, S(tau)), mfma32(A_O, b + 4, S(tau) + 4)], tau)]
    a("s_nop 1")
    emit(a, pv)
    a("s_nop 15")
    o_epilogue(a)

def round_advance(a, attn=True):
    for v in ((A_KA0, A_KA1, A_KAT, A_VA0, A_VA1) if attn else ()) + (A_QA0, A_QA1, A_QAT):
        a("v_add_u32 v%d, %d, v%d" % (v, 2 * 5120, v))
    a("v_add_u32 v%d, %d, v%d" % (A_OM, 4 * 20480, A_OM))
    a("v_add_u32 v%d, %d, v%d" % (A_OT, 4 * 20480, A_OT))

def set_tau0(a):
    a("s_lshl_b32 s%d, s%d, 2" % (S_T0, S_R))
    a("s_lshr_b32 s%d, s%d, 2" % (S_T1, S_WV))
    a("s_add_u32 s%d, s%d, s%d" % (S_T0, S_T0, S_T1))
    a("s_add_u32 s%d, s%d, s%d" % (S_T0, S_T0, S_DB))
    a("s_sub_i32 s%d, 8, s%d" % (S_TAU0, S_T0))
    a("s_max_i32 s%d, s%d, 0" % (S_TAU0, S_TAU0))

def emit_stubs(a, stubs):
    for lf, lr, base in stubs:
        a.label(lf)
        a("v_mov_b32 v%d, 0x%x" % (base, NEG_BIG))
        for k in range(1, 16): a("v_mov_b32 v%d, v%d" % (base + k, base))
        a("s_branch %s" % lr)

def kv_params(a):
    a("s_lshl_b32 s%d, s%d, 6" % (S_T0, S_G))
    a("s_lshl_b32 s%d, s%d, 2" % (S_T1, S_R))
    a("s_add_u32 s%d, s%d, s%d" % (S_T0, S_T0, S_T1))
    a("s_sub_i32 s%d, s%d, 8" % (S_T0, S_T0))
    a("s_mul_i32 s%d, s%d, 5120" % (S_T0, S_T0))
    a("s_lshl_b32 s%d, s%d, 10" % (S_KV1, S_WV))
    a("s_add_u32 s%d, s%d, s%d" % (S_KV0, S_T0, S_KV1))
    a("s_lshl_b32 s%d, s%d, 2" % (S_T3, S_R))
    a("s_sub_i32 s%d, 8, s%d" % (S_T3, S_T3))
    a("s_max_i32 s%d, s%d, 0" % (S_T3, S_T3))
    a("s_mul_i32 s%d, s%d, 5120" % (S_KV2, S_T3))
    a("v_lshlrev_b32 v%d, 4, v%d" % (A_L16, V_LANE))

def kv_load(tensor, k):
    def f(a):
        l = a.newlabel("kvl")
        a("s_add_u32 s%d, s%d, %d" % (S_T4, S_KV1, k * 8192))
        a("s_cmp_lt_u32 s%d, s%d" % (S_T4, S_KV2))
        a("s_cbranch_scc1 %s" % l)
        if k == 7:
            a("s_cmp_ge_u32 s%d, 61440" % S_T4)
            a("s_cbranch_scc1 %s" % l)
        a("s_add_u32 m0, s%d, %d" % (S_T4, LDS_K if tensor == 0 else LDS_V))
        a("s_add_u32 s%d, s%d, %d" % (S_OFF, S_KV0, WS_KV + tensor * 8 * 64 * 5120 + k * 8192))
        a("buffer_load_dwordx4 v%d, s[%d:%d], s%d offen %s lds" % (A_L16, S_WS, S_WS + 3, S_OFF, LD))
        a.label(l)
    return f

def oa_flag_off(a, dst, half_):
    a("s_lshl_b32 s%d, s%d, 1" % (dst, S_R))
    a("s_add_u32 s%d, s%d, %d" % (dst, dst, half_))
    a("s_lshl_b32 s%d, s%d, 3" % (dst, dst))
    a("s_add_u32 s%d, s%d, s%d" % (dst, dst, S_G))
    a("s_lshl_b32 s%d, s%d, 5" % (dst, dst))
    a("s_add_u32 s%d, s%d, s%d" % (dst, dst, S_WV))
    a("s_lshl_b32 s%d, s%d, 2" % (dst, dst))
    a("s_add_u32 s%d, s%d, %d" % (dst, dst, F_OA))

def phase2A(a, stubs):
    attn_setup(a)
    kv_params(a)
    a("v_and_b32 v7, 3, v%d" % V_LANE)
    a("v_lshlrev_b32 v7, 7, v7")
    a("v_lshrrev_b32 v8, 2, v%d" % V_LANE)
    a("v_lshlrev_b32 v8, 12, v8")
    a("v_sub_u32 v7, v8, v7")
    a("s_and_b32 s%d, s%d, 4" % (S_T0, S_G))
    a("s_and_b32 s%d, s%d, 3" % (S_T1, S_G))
    a("s_lshr_b32 s%d, s%d, 1" % (S_T1, S_T1))
    a("s_add_u32 s%d, s%d, s%d" % (S_T0, S_T0, S_T1))
    a("s_lshl_b32 s%d, s%d, 4" % (S_T0, S_T0))
    a("s_add_u32 s%d, s%d, s%d" % (S_T0, S_T0, S_R))
    a("s_lshl_b32 s%d, s%d, 7" % (S_T0, S_T0))
    a("s_add_u32 s%d, s%d, %d" % (S_T0, S_T0, F_KV))
    a("v_add_u32 v7, s%d, v7" % S_T0)
    a("s_min_u32 s%d, s%d, 2" % (S_T1, S_R))
    a("s_lshl_b32 s%d, 2, s%d" % (S_T1, S_T1))
    a("s_sub_u32 s%d, s%d, 1" % (S_T1, S_T1))
    a("s_mul_i32 s%d, s%d, 17" % (S_T1, S_T1))
    a("s_mov_b32 s%d, 0" % S_T2)
    stamp(a, "aset")
    poll(a, 7, S_T2, "s%d" % S_T1, "0")
    a("s_mov_b32 s%d, 0x000fffff" % S_EXV); a("s_mov_b32 s%d, 0x000fffff" % (S_EXV + 1))
    a("s_waitcnt lgkmcnt(0)")
    a("s_barrier")
    stamp(a, "poll1")
    emit(a, [kv_load(0, k) for k in range(8)])
    a("s_waitcnt vmcnt(0)")
    a("s_barrier")
    stamp(a, "kvld")
    for rnd in range(2):
        a("s_mov_b32 s%d, %d" % (S_DB, 2 * rnd))
        set_tau0(a)
        if rnd == 0:
            def mid(a):
                a("s_waitcnt vmcnt(0)")
                a("s_barrier")
                stamp(a, "vld")
            qk_extra = {i: kv_load(1, i - 0) for i in range(8)}
        else:
            def mid(a):
                a("s_waitcnt vmcnt(0)")
                oa_flag_off(a, S_T0, 0)
                publish(a, S_T0, None)
            qk_extra = {}
        attn_unit(a, stubs, mid, qk_extra)
        stamp(a, "rnd%d" % rnd)
        if rnd == 0: round_advance(a)

def apply_phase(a):
    piece_decode(a)
    a("v_cmp_gt_u32_e64 s[%d:%d], 21, v7" % (S_M0, S_M0 + 1))
    a("v_cmp_gt_u32_e64 s[%d:%d], 5, v6" % (S_M1, S_M1 + 1))
    a("s_lshl_b32 s%d, s%d, 17" % (S_T0, S_G))
    a("s_lshr_b32 s%d, s%d, 1" % (S_T1, S_WV))
    a("s_lshl_b32 s%d, s%d, 11" % (S_T1, S_T1))
    a("s_add_u32 s%d, s%d, s%d" % (S_T0, S_T0, S_T1))
    a("s_add_u32 s%d, s%d, %d" % (S_T0, S_T0, WS_PART))
    a("v_lshlrev_b32 v5, 4, v5")
    a("s_and_b64 s[%d:%d], s[%d:%d], s[%d:%d]" % (S_M0, S_M0 + 1, S_M0, S_M0 + 1, S_M1, S_M1 + 1))
    P = A_S
    a("s_mov_b64 exec, s[%d:%d]" % (S_M0, S_M0 + 1))
    for r in range(16):
        a("s_add_u32 s%d, s%d, %d" % (S_OFF, S_T0, r * 8192))
        a("buffer_load_dwordx4 %s, v5, s[%d:%d], s%d offen %s" % (vr(P + 4 * r, 4), S_WS, S_WS + 3, S_OFF, LD))
    a("s_mov_b64 exec, -1")
    a("v_add_u32 v%d, %d, v5" % (A_O, LDS_KVR))
    a("v_add_u32 v%d, s%d, v%d" % (A_O, S_T1, A_O))
    a("s_mov_b64 s[%d:%d], s[%d:%d]" % (S_MASK, S_MASK + 1, S_M0, S_M0 + 1))
    p2_common_setup(a, False)
    a("v_mov_b32 v%d, 0" % (A_Q2 + 2)); a("v_mov_b32 v%d, 0" % (A_Q2 + 3))
    a("v_and_b32 v4, 31, v%d" % V_LANE)
    a("v_min_u32 v4, 20, v4")
    a("v_lshrrev_b32 v5, 5, v%d" % V_LANE)
    a("v_mul_u32_u24 v6, 48, v5")
    a("v_add_u32 v6, v6, v4")
    a("s_and_b32 s%d, s%d, 3" % (S_T0, S_WV))
    a("s_lshl_b32 s%d, s%d, 11" % (S_T0, S_T0))
    a("s_add_u32 s%d, s%d, %d" % (S_T0, S_T0, LDS_KVR))
    a("v_lshlrev_b32 v6, 4, v6")
    a("v_add_u32 v6, s%d, v6" % S_T0)
    a("v_lshlrev_b32 v7, 4, v4")
    a("v_add_u32 v7, s%d, v7" % S_T0)
    a("s_waitcnt vmcnt(0)")
    for st in (8, 4, 2, 1):
        for r in range(st):
            for k in (0, 2):
                a("v_pk_add_f32 %s, %s, %s" % (vr(P + 4 * r + k, 2), vr(P + 4 * r + k, 2), vr(P + 4 * (r + st) + k, 2)))
    a("s_mov_b64 exec, s[%d:%d]" % (S_MASK, S_MASK + 1))
    a("ds_write_b128 v%d, %s" % (A_O, vr(P, 4)))
    a("s_mov_b64 exec, -1")
    a("s_waitcnt lgkmcnt(0)")
    a("s_barrier")
    stamp(a, "kvred")
    F = A_KB
    a("ds_read_b128 %s, v6" % vr(F, 4))
    a("ds_read_b128 %s, v6 offset:%d" % (vr(F + 4, 4), 24 * 16))
    a("ds_read_b128 %s, v7 offset:%d" % (vr(F + 8, 4), 4 * 24 * 16))
    emit(a, q_frag_reads())
    a("s_waitcnt lgkmcnt(3)")
    KV1, KV2 = A_VB, A_VB + 4
    for k in range(4): a("v_cvt_pk_bf16_f32 v%d, v%d, v%d" % (KV1 + k, F + 2 * k, F + 2 * k + 1))
    for k in range(2): a("v_cvt_pk_bf16_f32 v%d, v%d, v%d" % (KV2 + k, F + 8 + 2 * k, F + 9 + 2 * k))
    a("v_mov_b32 v%d, 0" % (KV2 + 2)); a("v_mov_b32 v%d, 0" % (KV2 + 3))
    for rnd in range(2):
        a("s_waitcnt lgkmcnt(0)")
        q_frag_fix(a)
        a("s_nop 1")
        a(mfma32(A_O, KV1, A_Q1, "0"))
        a(mfma32(A_O, KV2, A_Q2))
        if rnd == 0:
            round_advance(a, False) if False else None
            for v in (A_QA0, A_QA1, A_QAT): a("v_add_u32 v%d, %d, v%d" % (v, 2 * 5120, v))
            emit(a, q_frag_reads())
            a("s_nop 9")
        else:
            a("s_nop 15")
        o_epilogue(a, eps=True)
        if rnd == 0:
            a("v_add_u32 v%d, %d, v%d" % (A_OM, 4 * 20480, A_OM))
            a("v_add_u32 v%d, %d, v%d" % (A_OT, 4 * 20480, A_OT))

C_DMA = 10
C_WA, C_WT, C_OF, C_OUT, C_XA = 20, 21, 22, 23, 24
C_O = 32
C_WB = 112
C_ACC = 172
C_R = 212

def p3_dma_setup(a):
    a("s_mul_i32 s%d, s%d, 160" % (S_T0, S_G))
    a("s_movk_i32 s%d, 6554" % S_T2)
    a("s_movk_i32 s%d, 1280" % S_T3)
    for j in range(5):
        a("v_add_u32 v4, %d, v%d" % (64 * j, V_LANE))
        a("v_mul_u32_u24 v8, s%d, v4" % S_T2)
        a("v_lshrrev_b32 v8, 16, v8")
        a("v_mul_u32_u24 v9, 10, v8")
        a("v_sub_u32 v9, v4, v9")
        a("v_mul_u32_u24 v8, s%d, v8" % S_T3)
        a("v_lshl_add_u32 v8, v9, 4, v8")
        a("v_add_u32 v%d, s%d, v8" % (C_DMA + j, S_T0))

def p3_setup(a):
    a("s_mul_i32 s%d, s%d, 160" % (S_T0, S_G))
    a("v_lshrrev_b32 v4, 1, v%d" % V_KG)
    a("v_and_b32 v5, 1, v%d" % V_KG)
    a("v_lshrrev_b32 v6, 2, v%d" % V_N)
    a("v_and_b32 v7, 3, v%d" % V_N)
    a("v_mul_u32_u24 v8, 20, v4")
    a("v_lshl_add_u32 v8, v5, 2, v8")
    a("v_add_u32 v8, v8, v6")
    a("s_movk_i32 s%d, 160" % S_T1)
    a("v_mul_u32_u24 v8, s%d, v8" % S_T1)
    a("v_lshl_add_u32 v8, v7, 3, v8")
    a("s_mul_i32 s%d, s%d, 51200" % (S_T2, S_CS))
    a("v_add_u32 v%d, s%d, v8" % (C_WA, S_T2))
    a("v_mul_u32_u24 v8, 40, v%d" % V_KG)
    a("v_add3_u32 v8, v8, v6, 16")
    a("v_mul_u32_u24 v8, s%d, v8" % S_T1)
    a("v_lshl_add_u32 v8, v7, 3, v8")
    a("v_add_u32 v%d, s%d, v8" % (C_WT, S_T2))
    a("v_lshlrev_b32 v%d, 4, v%d" % (C_OF, V_LANE))
    a("s_lshl_b32 s%d, s%d, 4" % (S_T2, S_RG))
    a("v_add_u32 v8, s%d, v%d" % (S_T2, V_N))
    a("s_movk_i32 s%d, 2560" % S_T2)
    a("v_mul_u32_u24 v8, s%d, v8" % S_T2)
    a("v_lshl_add_u32 v8, v%d, 3, v8" % V_KG)
    a("v_add_u32 v%d, s%d, v8" % (C_OUT, S_T0))
    a("s_mul_i32 s%d, s%d, 10240" % (S_T2, S_RG))
    a("s_add_u32 s%d, s%d, %d" % (S_T2, S_T2, XCH3))
    a("v_add_u32 v%d, s%d, v%d" % (C_XA, S_T2, C_OF))

def wo_block(a, srd_wo):
    a("s_mul_i32 s%d, s%d, %d" % (S_OFF, S_T0, 32 * 1280))
    a("s_mul_i32 s%d, s%d, 5120" % (S_T0, S_T0))
    for j in range(5):
        a("s_add_u32 m0, s%d, %d" % (S_T0, j * 1024))
        a("s_nop 0")
        a("buffer_load_dwordx4 v%d, s[%d:%d], s%d offen %s lds" % (C_DMA + j, srd_wo, srd_wo + 3, S_OFF, DML))

def wo_load(a, srd_wo, skip0=False, first=0):
    nw = 7 if skip0 else 8
    nb = 20 - first
    for k in range((nb + nw - 1) // nw):
        l = a.newlabel("wol")
        if skip0:
            a("s_cmp_eq_u32 s%d, 0" % S_WV)
            a("s_cbranch_scc1 %s" % l)
        a("s_add_u32 s%d, s%d, %d" % (S_T0, S_WV, first + nw * k))
        if skip0: a("s_sub_u32 s%d, s%d, 1" % (S_T0, S_T0))
        if first + nw * k + nw > 20:
            a("s_cmp_ge_u32 s%d, 20" % S_T0)
            a("s_cbranch_scc1 %s" % l)
        wo_block(a, srd_wo)
        a.label(l)

def p3_oloads(a, br, s_row0, k):
    a("s_lshr_b32 s%d, s%d, 4" % (S_T0, s_row0))
    a("s_add_u32 s%d, s%d, s%d" % (S_T0, S_T0, S_RG))
    a("s_add_u32 s%d, s%d, %d" % (S_T0, S_T0, 4 * k))
    a("s_mul_i32 s%d, s%d, 20480" % (S_T0, S_T0))
    a("s_add_u32 s%d, s%d, %d" % (S_T0, S_T0, WS_O + br * O_BR))
    a("s_lshl_b32 s%d, s%d, 13" % (S_T1, S_CS))
    a("s_add_u32 s%d, s%d, s%d" % (S_T1, S_T1, S_T0))
    for i in range(8):
        a("s_add_u32 s%d, s%d, %d" % (S_OFF, S_T1, i * 1024))
        a("buffer_load_dwordx4 %s, v%d, s[%d:%d], s%d offen %s" % (vr(C_O + 40 * k + 4 * i, 4), C_OF, S_WS, S_WS + 3, S_OFF, LD))
    a("s_lshl_b32 s%d, s%d, 11" % (S_T1, S_CS))
    a("s_add_u32 s%d, s%d, s%d" % (S_T1, S_T1, S_T0))
    for i in range(2):
        a("s_add_u32 s%d, s%d, %d" % (S_OFF, S_T1, (16 + i) * 1024))
        a("buffer_load_dwordx4 %s, v%d, s[%d:%d], s%d offen %s" % (vr(C_O + 40 * k + 32 + 4 * i, 4), C_OF, S_WS, S_WS + 3, S_OFF, LD))

def p3_wreads(i):
    wb = C_WB + 20 * (i % 3)
    L = []
    for T in range(5):
        for rd in range(2):
            if i < 8: L.append("ds_read_b64_tr_b16 %s, v%d offset:%d" % (vr(wb + 4 * T + 2 * rd, 2), C_WA, i * 6400 + rd * 1280 + 32 * T))
            else: L.append("ds_read_b64_tr_b16 %s, v%d offset:%d" % (vr(wb + 4 * T + 2 * rd, 2), C_WT, (i - 8) * 25600 + rd * 3200 + 32 * T))
    return L

def p3_mm(a, sets, vm_after, extra={}):
    lq = LQ(a)
    ids = {}
    ids[0] = [lq.issue(x) for x in p3_wreads(0)]
    ids[1] = [lq.issue(x) for x in p3_wreads(1)]
    for i in range(10):
        wb = C_WB + 20 * (i % 3)
        rd = p3_wreads(i + 2) if i + 2 < 10 else []
        ids[i + 2] = []
        n = vm_after(i)
        if n is not None: a("s_waitcnt vmcnt(%d)" % n)
        emit(a, extra.get(i))
        mm = [(T, mfma16(C_ACC + 20 * k + 4 * T, wb + 4 * T, C_O + 40 * sets[k] + 4 * i, "0" if i == 0 else None)) for T in range(5) for k in range(len(sets))]
        per = (len(rd) + len(mm) - 1) // len(mm) if rd else 0
        for (T, m) in mm:
            lq.need(ids[i][2 * T + 1])
            a(m)
            for _ in range(per):
                if rd: ids[i + 2].append(lq.issue(rd.pop(0)))

XCH3 = 102400
OTILE = 0
def p3_epilogue(a, br, s_row0, nset):
    npieces = 640 * nset
    nround = (npieces + 511) // 512
    last_waves = (npieces - 512 * (nround - 1)) // 64
    def send(tiles):
        def f(a):
            for k in range(nset):
                for T in tiles:
                    a("ds_write_b128 v%d, %s offset:%d" % (C_XA, vr(C_ACC + 20 * k + 4 * T, 4), k * 5120 + T * 1024))
        return f
    a("s_lshl_b32 s%d, s%d, 4" % (S_T0, S_RG))
    a("v_add_u32 v4, s%d, v%d" % (S_T0, V_N))
    a("s_movk_i32 s%d, 176" % S_T1)
    a("v_mul_u32_u24 v4, s%d, v4" % S_T1)
    a("v_lshl_add_u32 v4, v%d, 3, v4" % V_KG)
    a("s_nop 3")
    role_branch(a, send([3, 4]), send([0, 1, 2]))
    a("s_lshl_b32 s%d, s%d, 6" % (S_T0, S_WV))
    a("v_add_u32 v5, s%d, v%d" % (S_T0, V_LANE))
    a("s_movk_i32 s%d, 6554" % S_T2)
    a("s_movk_i32 s%d, 2560" % S_T3)
    a("s_mul_i32 s%d, s%d, 160" % (S_T4, S_G))
    for m in range(nround):
        a("v_add_u32 v6, %d, v5" % (512 * m))
        a("v_mul_u32_u24 v7, s%d, v6" % S_T2)
        a("v_lshrrev_b32 v7, 16, v7")
        a("v_mul_u32_u24 v8, 10, v7")
        a("v_sub_u32 v8, v6, v8")
        a("v_mul_u32_u24 v9, s%d, v7" % S_T1)
        a("v_lshl_add_u32 v%d, v8, 4, v9" % (C_R + m))
        a("v_mul_u32_u24 v9, s%d, v7" % S_T3)
        a("v_lshl_add_u32 v9, v8, 4, v9")
        a("v_add_u32 v%d, s%d, v9" % (C_R + 4 + m, S_T4))
    a("s_waitcnt lgkmcnt(0)")
    a("s_barrier")
    def recv(tiles):
        def f(a):
            for k in range(nset):
                for n_, T in enumerate(tiles):
                    a("ds_read_b128 %s, v%d offset:%d" % (vr(C_WB + 12 * k + 4 * n_, 4), C_XA, k * 5120 + T * 1024))
            a("s_waitcnt lgkmcnt(0)")
            for k in range(nset):
                for n_, T in enumerate(tiles):
                    d = C_ACC + 20 * k + 4 * T
                    r = C_WB + 12 * k + 4 * n_
                    for q in (0, 2): a("v_pk_add_f32 %s, %s, %s" % (vr(d + q, 2), vr(d + q, 2), vr(r + q, 2)))
                    a("v_cvt_pk_bf16_f32 v%d, v%d, v%d" % (d, d, d + 1))
                    a("v_cvt_pk_bf16_f32 v%d, v%d, v%d" % (d + 1, d + 2, d + 3))
                    a("ds_write_b64 v4, %s offset:%d" % (vr(d, 2), OTILE + k * 64 * 176 + 32 * T))
        return f
    role_branch(a, recv([0, 1, 2]), recv([3, 4]))
    a("s_mul_i32 s%d, s%d, 2560" % (S_T0, s_row0))
    a("s_add_u32 s%d, s%d, %d" % (S_T0, S_T0, br * 1280))
    a("s_waitcnt lgkmcnt(0)")
    a("s_barrier")
    for m in range(nround):
        l = a.newlabel("fr")
        if m == nround - 1 and last_waves < 8:
            a("s_cmp_ge_u32 s%d, %d" % (S_WV, last_waves))
            a("s_cbranch_scc1 %s" % l)
        a("ds_read_b128 %s, v%d offset:%d" % (vr(C_O + 4 * m, 4), C_R + m, OTILE))
        a.label(l)
    a("s_waitcnt lgkmcnt(0)")
    for m in range(nround):
        l = a.newlabel("fs")
        if m == nround - 1 and last_waves < 8:
            a("s_cmp_ge_u32 s%d, %d" % (S_WV, last_waves))
            a("s_cbranch_scc1 %s" % l)
        a("buffer_store_dwordx4 %s, v%d, s[%d:%d], s%d offen %s" % (vr(C_O + 4 * m, 4), C_R + 4 + m, S_OUT, S_OUT + 3, S_T0, OUTST))
        a.label(l)
assert all((p * 6554) >> 16 == p // 10 for p in range(1536))

def poll_oa(a, half_):
    a("v_lshrrev_b32 v7, 3, v%d" % V_LANE)
    a("v_and_b32 v8, 7, v%d" % V_LANE)
    a("v_lshlrev_b32 v7, 7, v7")
    a("v_lshl_add_u32 v7, v8, 2, v7")
    a("s_lshl_b32 s%d, s%d, 1" % (S_T0, S_R))
    a("s_add_u32 s%d, s%d, %d" % (S_T0, S_T0, half_))
    a("s_lshl_b32 s%d, s%d, 10" % (S_T0, S_T0))
    a("s_add_u32 s%d, s%d, %d" % (S_T0, S_T0, F_OA))
    poll(a, 7, S_T0, "-1", "-1")

S_JR = S_DB
def phase3A(a):
    p3_dma_setup(a)
    p3_setup(a)
    a("s_waitcnt vmcnt(0)")
    oa_flag_off(a, S_T0, 1)
    publish(a, S_T0, None)
    poll_oa(a, 0)
    a("s_barrier")
    stamp(a, "attn")
    a("s_lshl_b32 s%d, s%d, 7" % (S_JR, S_R))
    p3_oloads(a, 0, S_JR, 0)
    wo_load(a, S_WO)
    a("s_waitcnt vmcnt(0)")
    a("s_barrier")
    stamp(a, "j0a")
    p3_mm(a, [0], lambda i: None)
    stamp(a, "j1a")
    p3_epilogue(a, 0, S_JR, 1)
    stamp(a, "j2a")

def phaseB(a):
    a("v_lshlrev_b32 v7, 7, v%d" % V_LANE)
    a("s_lshl_b32 s%d, s%d, 11" % (S_T0, S_G))
    a("s_add_u32 s%d, s%d, %d" % (S_T0, S_T0, F_PART))
    poll(a, 7, S_T0, "0xffff", "0")
    a("s_waitcnt lgkmcnt(0)")
    a("s_barrier")
    stamp(a, "poll1")
    apply_phase(a)
    stamp(a, "kvld")
    p3_setup(a)
    a("s_waitcnt vmcnt(0)")
    a("s_barrier")
    a("s_lshl_b32 s%d, s%d, 3" % (S_T0, S_R))
    a("s_add_u32 s%d, s%d, s%d" % (S_T0, S_T0, S_G))
    a("s_lshl_b32 s%d, s%d, 7" % (S_T0, S_T0))
    a("s_add_u32 s%d, s%d, %d" % (S_T0, S_T0, F_OB))
    publish(a, S_T0, 0)
    stamp(a, "attn")
    a("v_lshlrev_b32 v7, 7, v%d" % V_LANE)
    a("s_lshl_b32 s%d, s%d, 10" % (S_T0, S_R))
    a("s_add_u32 s%d, s%d, %d" % (S_T0, S_T0, F_OB))
    poll(a, 7, S_T0, "0xff", "0")
    a("s_barrier")
    stamp(a, "j0b")
    a("s_lshl_b32 s%d, s%d, 7" % (S_JR, S_R))
    p3_oloads(a, 1, S_JR, 0)
    p3_oloads(a, 1, S_JR, 1)
    p3_mm(a, [0, 1], lambda i: 9 - i)
    stamp(a, "j1b")
    p3_epilogue(a, 1, S_JR, 2)
    stamp(a, "j2b")
    a("s_barrier")
    wo_load(a, S_WO, skip0=True)
    poll_oa(a, 1)
    a("s_waitcnt vmcnt(0)")
    a("s_barrier")
    stamp(a, "j0a")
    a("s_lshl_b32 s%d, s%d, 7" % (S_JR, S_R))
    a("s_add_u32 s%d, s%d, 64" % (S_JR, S_JR))
    p3_oloads(a, 0, S_JR, 0)
    p3_mm(a, [0], lambda i: 9 - i)
    stamp(a, "j1a")
    p3_epilogue(a, 0, S_JR, 1)
    stamp(a, "j2a")

def epoch_update(a):
    l = a.newlabel("ep")
    a("s_cmp_eq_u32 s2, 0")
    a("s_cbranch_scc0 %s" % l)
    a("v_lshlrev_b32 v7, 7, v%d" % V_LANE)
    for k in range(4):
        a("s_mov_b32 s%d, %d" % (S_T0, F_KV + k * 64 * 128))
        poll(a, 7, S_T0, "-1", "-1")
    a("s_mov_b32 s%d, %d" % (S_T0, WS_FLAG))
    publish(a, S_T0, 0)
    a.label(l)

HEADER = """; sliding-window attention block + linear attention block, one fused launch (generated by gen3.py)
"""
def build():
    out = [HEADER, "; @launch grid=(256,1,1) block=(512,1,1) lds=163840\n"]
    out.append('.amdgcn_target "amdgcn-amd-amdhsa--gfx950"\n.text\n')
    a = Asm()
    stubs = []
    entry(a)
    phase1(a)
    if 'p1only' in OPT: a("s_branch L_fin2")
    lb = a.newlabel("brB")
    a("s_cmp_eq_u32 s%d, 0" % S_BR)
    a("s_cbranch_scc0 %s" % lb)
    phase2A(a, stubs)
    phase3A(a)
    a("s_branch L_fin")
    emit_stubs(a, stubs)
    a.label(lb)
    phaseB(a)
    a.label("L_fin")
    epoch_update(a)
    a.label("L_fin2")
    stamp(a, "end")
    if STAMPS: a("s_waitcnt vmcnt(0)")
    stamp_store(a)
    a.label("L_end"); a("s_endpgm")
    a.label("L_codeend")
    out.append(".globl %s\n.p2align 8\n.type %s,@function\n%s:\n" % (NAME, NAME, NAME) + a.text())
    if 'nocodepf' not in OPT:
        out.append(".set CODE_TOTAL, L_codeend - L_pcbase\n.set CODE_CHUNK, ((CODE_TOTAL / 8 + 127) / 128) * 128\n.set CODE_LAST, CODE_TOTAL - 4\n")
    out.append('.section .rodata,"a"\n.p2align 6\n')
    out.append((".amdhsa_kernel %s\n  .amdhsa_next_free_vgpr 256\n  .amdhsa_next_free_sgpr 102\n  .amdhsa_accum_offset 256\n"
                "  .amdhsa_group_segment_fixed_size 0\n  .amdhsa_kernarg_size 72\n  .amdhsa_user_sgpr_count 2\n"
                "  .amdhsa_user_sgpr_kernarg_segment_ptr 1\n  .amdhsa_system_sgpr_workgroup_id_x 1\n.end_amdhsa_kernel\n") % NAME)
    return "".join(out)

if __name__ == "__main__":
    OPT = set(sys.argv[2:])
    for x in sys.argv:
        if x.startswith("st="):
            STAMPS = True
            STMAP = {n: i for i, n in enumerate(x[3:].split(","))}
    for x in OPT:
        if x.startswith('sch='): SCHED = x[4:]
        if x.startswith('wsb='): WS_BASE = int(x[4:]) << 20
        if x.startswith('outst='): OUTST = x[6:].replace('+', ' ')
    if 'pfnt' in OPT: PFL = "nt"
    if 'dmant' in OPT: DML = "nt"
    if 'p1only' in OPT: S_ST = 84
    open(sys.argv[1], "w").write(build())
```

```python
import sys, struct
from asmlib import Asm, vr, sr

NAME = "concat_heads__sliding_block__linear_attn_block__prompt_kernel"
WS_KV   = 0x0000000
WS_O    = 0x0A00000
WS_PART = 0x0F00000
WS_FLAG = 0x1000000
WS_STAMP = 0x1080000
WS_SIZE = 0x1100000
O_BR = 128 * 20480
F_KV, F_PART, F_OA, F_OB = WS_FLAG + 0x1000, WS_FLAG + 0x5000, WS_FLAG + 0x9000, WS_FLAG + 0x11000
SPIN_LIMIT = 40000
ST, LD = "sc1", "sc1"
PFL = ""
DML = ""
STAMPS, STMAP, OPT = False, None, set()
SCHED = 'e'
WS_BASE = 0
OUTST = ''

S_NONCE = 3
S_ST = 4
S_I, S_U = 22, 23
S_X, S_W, S_WS, S_OUT, S_WO, S_WOB = 24, 28, 32, 36, 40, 44
S_BR, S_R, S_G, S_WV, S_RG, S_CS = 48, 49, 50, 51, 52, 53
S_T0, S_T1, S_T2, S_T3, S_T4, S_T5 = 54, 55, 56, 57, 58, 59
S_DB, S_OFF = 60, 61
S_M0, S_M1, S_M2 = 62, 64, 66
S_D, S_SB, S_SOFF, S_STEP, S_J = 68, 72, 76, 77, 78
S_G1 = 82
S_MASK = 68

V_IMG, V_LANE, V_N, V_KG = 0, 1, 2, 3
V_DMA, V_XA, V_WA, V_PF, V_XT, V_WB0, V_WB1 = 10, 15, 19, 29, 32, 40, 60
V_ACC, V_ACC2, V_XP, V_DMA2, V_PFD, V_WA2 = 80, 120, 160, 240, 245, 246
LDS_W = 65536
XSLOT, WSLOT = 16384, 20480
LOG2E = 1.4426950408889634
QSCALE = LOG2E / (20.0 ** 0.5)

def f2u(x): return struct.unpack("<I", struct.pack("<f", x))[0]
def mfma16(d, x, y, c=None):
    return "v_mfma_f32_16x16x32_bf16 %s, %s, %s, %s" % (vr(d, 4), vr(x, 4), vr(y, 4), vr(d, 4) if c is None else c)
def mfma32(d, x, y, c=None):
    return "v_mfma_f32_32x32x16_bf16 %s, %s, %s, %s" % (vr(d, 16), vr(x, 4), vr(y, 4), vr(d, 16) if c is None else c)
def emit(a, item):
    if item is None: return
    if callable(item): item(a)
    elif isinstance(item, (list, tuple)):
        for x in item: emit(a, x)
    else: a(item)

class LQ:
    def __init__(self, a): self.a, self.n, self.done = a, 0, 0
    def issue(self, s, cnt=1):
        emit(self.a, s); self.n += cnt; return self.n
    def need(self, idx):
        if idx > self.done:
            cnt = self.n - idx
            self.a("s_waitcnt lgkmcnt(%d)" % min(cnt, 15))
            self.done = idx if cnt <= 15 else self.n - 15
    def drain(self):
        if self.n > self.done:
            self.a("s_waitcnt lgkmcnt(0)"); self.done = self.n

NST = 8
def rec(f, *args):
    r = Asm(); r.nlab = 900000; f(r, *args)
    return [l.strip() for l in r.lines]
def stamp(a, name):
    if not STAMPS or STMAP is None or name not in STMAP: return
    i = STMAP[name]
    a("%s s[%d:%d]" % ("s_memtime" if 'cyc' in OPT else "s_memrealtime", S_ST + 2 * i, S_ST + 2 * i + 1))
def stamp_dbg(a):
    a("s_memrealtime s[20:21]")
    a("s_load_dwordx2 s[24:25], s[0:1], 56")
    a("s_waitcnt lgkmcnt(0)")
    a("s_mov_b32 s26, 256"); a("s_mov_b32 s27, 0x20000")
    a("s_mov_b64 exec, 1")
    a("v_mov_b32 v4, 0")
    a("s_not_b32 s22, s101")
    for reg, slot in [(22, 0), (20, 1)] + [(S_ST + 2 * i, 2 + i) for i in range(NST)]:
        a("v_mov_b32 v5, s%d" % reg)
        a("buffer_atomic_umax v5, v4, s[24:27], 0 offen offset:%d" % (slot * 4))
    a("v_mov_b32 v5, s101")
    a("buffer_atomic_umax v5, v4, s[24:27], 0 offen offset:%d" % (10 * 4))
    a("s_mov_b64 exec, -1")

def stamp_store(a):
    if not STAMPS: return
    if 'dbg' in OPT: return stamp_dbg(a)
    a("s_memrealtime s[20:21]")
    a("s_memtime s[24:25]")
    a("s_waitcnt lgkmcnt(0)")
    a("s_lshl_b32 s%d, s2, 3" % S_T0)
    a("s_add_u32 s%d, s%d, s%d" % (S_T0, S_T0, S_WV))
    a("s_lshl_b32 s%d, s%d, 6" % (S_T0, S_T0))
    a("s_add_u32 s%d, s%d, %d" % (S_T0, S_T0, WS_STAMP))
    a("s_mov_b64 exec, 1")
    a("v_mov_b32 v4, 0")
    for i in range(NST):
        a("v_mov_b32 v5, s%d" % (S_ST + 2 * i))
        a("buffer_store_dword v5, v4, s[%d:%d], s%d offen offset:%d" % (S_WS, S_WS + 3, S_T0, i * 4))
    a("s_getreg_b32 s21, hwreg(HW_REG_XCC_ID)")
    a("s_getreg_b32 s22, hwreg(HW_REG_HW_ID)")
    for reg, slot in ((20, 15), (101, 14), (100, 13), (21, 12), (22, 11), (24, 10)):
        a("v_mov_b32 v5, s%d" % reg)
        a("buffer_store_dword v5, v4, s[%d:%d], s%d offen offset:%d" % (S_WS, S_WS + 3, S_T0, slot * 4))
    a("s_mov_b64 exec, -1")

def minwrap(a, v, m, tmp):
    a("v_subrev_u32 v%d, %d, v%d" % (tmp, m, v))
    a("v_min_u32 v%d, v%d, v%d" % (v, v, tmp))
def srd(a, d, lo, hi, size):
    a("s_mov_b32 s%d, s%d" % (d, lo)); a("s_mov_b32 s%d, s%d" % (d + 1, hi))
    a("s_mov_b32 s%d, %d" % (d + 2, size)); a("s_mov_b32 s%d, 0x20000" % (d + 3))
def role_branch(a, fw, fx):
    lx, ld = a.newlabel("rx"), a.newlabel("rd")
    a("s_cmp_eq_u32 s%d, 0" % S_CS)
    a("s_cbranch_scc0 %s" % (lx if fx else ld))
    emit(a, fw)
    if fx:
        a("s_branch %s" % ld)
        a.label(lx)
        emit(a, fx)
    a.label(ld)
def on_wave(a, wave, f):
    l = a.newlabel("ow")
    a("s_cmp_eq_u32 s%d, %d" % (S_WV, wave))
    a("s_cbranch_scc0 %s" % l)
    emit(a, f)
    a.label(l)

def entry(a):
    a("s_cmp_ge_u32 s2, 256")
    a("s_cbranch_scc1 L_end")
    if STAMPS:
        a("s_memrealtime s[100:101]")
        a("s_memtime s[62:63]")
    a("s_load_dwordx16 s[4:19], s[0:1], 0")
    a("s_load_dwordx2 s[20:21], s[0:1], 64")
    if 'badmap' in OPT:
        a("s_lshr_b32 s%d, s2, 5" % S_T0)
        a("s_and_b32 s%d, s2, 31" % S_I)
    else:
        a("s_and_b32 s%d, s2, 7" % S_T0)
        a("s_lshr_b32 s%d, s2, 3" % S_I)
    a("v_lshrrev_b32 v4, 6, v0")
    a("v_and_b32 v%d, 63, v0" % V_LANE)
    a("v_and_b32 v%d, 15, v0" % V_N)
    a("v_readfirstlane_b32 s%d, v4" % S_WV)
    a("v_lshrrev_b32 v%d, 4, v%d" % (V_KG, V_LANE))
    a("s_and_b32 s%d, s%d, 1" % (S_BR, S_T0))
    a("s_lshr_b32 s%d, s%d, 1" % (S_T2, S_T0))
    a("s_and_b32 s%d, s%d, 1" % (S_T3, S_T2))
    a("s_lshl_b32 s%d, s%d, 3" % (S_T3, S_T3))
    a("s_and_b32 s%d, s%d, 7" % (S_T4, S_I))
    a("s_add_u32 s%d, s%d, s%d" % (S_R, S_T3, S_T4))
    a("s_lshr_b32 s%d, s%d, 1" % (S_T3, S_T2))
    a("s_lshr_b32 s%d, s%d, 3" % (S_T4, S_I))
    a("s_lshl_b32 s%d, s%d, 2" % (S_T5, S_T3))
    a("s_add_u32 s%d, s%d, s%d" % (S_G, S_T5, S_T4))
    a("s_lshl_b32 s%d, s%d, 1" % (S_T3, S_T3))
    a("s_and_b32 s%d, s%d, 1" % (S_T5, S_T4))
    a("s_add_u32 s%d, s%d, s%d" % (S_T3, S_T3, S_T5))
    a("s_lshr_b32 s%d, s%d, 1" % (S_T4, S_T4))
    a("s_lshl_b32 s%d, s%d, 2" % (S_T4, S_T4))
    a("s_add_u32 s%d, s%d, s%d" % (S_G1, S_T3, S_T4))
    a("s_and_b32 s%d, s%d, 3" % (S_RG, S_WV))
    a("s_lshr_b32 s%d, s%d, 2" % (S_CS, S_WV))
    if 'nocodepf' not in OPT:
        def cpf(a):
            a("s_getpc_b64 s[56:57]")
            a.label("L_pcbase")
            a("s_and_b32 s%d, s%d, 7" % (S_T4, S_I))
            a("s_mul_i32 s%d, s%d, CODE_CHUNK" % (S_T4, S_T4))
            a("v_lshlrev_b32 v4, 7, v%d" % V_LANE)
            a("v_add_u32 v4, s%d, v4" % S_T4)
            a("v_min_u32 v4, CODE_LAST, v4")
            a("global_load_dword v%d, v4, s[56:57]" % V_PFD)
        on_wave(a, 7, cpf)

def dma_setup(a):
    stamp(a, "ids")
    def fw(a):
        a("s_mul_i32 s%d, s%d, %d" % (S_T0, S_RG, 16 * 3840))
        a("s_mul_i32 s%d, s%d, 160" % (S_T1, S_G))
        a("s_mul_i32 s%d, s%d, 320" % (S_T2, S_G1))
        a("s_cmp_eq_u32 s%d, 0" % S_BR)
        a("s_cselect_b32 s%d, s%d, s%d" % (S_T2, S_T2, S_T1))
        a("s_cselect_b32 s%d, 0, 1120" % S_T5)
        a("s_add_u32 s%d, s%d, s%d" % (S_T2, S_T2, S_T0))
        a("s_add_u32 s%d, s%d, 1280" % (S_T2, S_T2))
        a("s_add_u32 s%d, s%d, s%d" % (S_T0, S_T0, S_T1))
        a("s_movk_i32 s%d, 3277" % S_T1)
        a("s_movk_i32 s%d, 3840" % S_T3)
        a("s_mov_b32 s%d, %d" % (S_T4, 245760 - 160))
        for j in range(5):
            p, kk, q, u, t = 4, 5, 6, 7, 8
            a("v_add_u32 v%d, %d, v%d" % (p, 64 * j, V_LANE))
            a("v_mul_u32_u24 v%d, s%d, v%d" % (kk, S_T1, p))
            a("v_lshrrev_b32 v%d, 16, v%d" % (kk, kk))
            a("v_mul_u32_u24 v%d, 20, v%d" % (q, kk))
            a("v_lshrrev_b32 v%d, 2, v%d" % (u, kk))
            a("v_sub_u32 v%d, v%d, v%d" % (q, p, q))
            a("v_and_b32 v%d, 2, v%d" % (u, u))
            a("v_sub_u32 v%d, v%d, v%d" % (u, q, u))
            a("v_add_u32 v%d, 20, v%d" % (t, u))
            a("v_min_u32 v%d, v%d, v%d" % (u, u, t))
            a("v_add_u32 v%d, 6, v%d" % (t, u))
            a("v_lshrrev_b32 v%d, 4, v%d" % (t, t))
            a("v_mul_u32_u24 v%d, s%d, v%d" % (kk, S_T3, kk))
            a("v_lshl_add_u32 v%d, v%d, 4, v%d" % (kk, u, kk))
            a("v_mad_u32_u24 v%d, v%d, s%d, v%d" % (q, t, S_T5, kk))
            a("v_add_u32 v%d, s%d, v%d" % (V_DMA + j, S_T2, q))
            a("v_mad_u32_u24 v%d, v%d, s%d, v%d" % (q, t, S_T4, kk))
            a("v_add_u32 v%d, s%d, v%d" % (V_DMA2 + j, S_T0, q))
        a("s_mul_i32 s%d, s%d, 5120" % (S_T0, S_RG))
        for k in range(4): a("s_add_u32 s%d, s%d, %d" % (S_SB + k, S_T0, LDS_W + k * WSLOT))
        a("s_mov_b32 s%d, %d" % (S_STEP, 64 * 3840))
        for k in range(1, 4): a("s_mov_b32 s%d, 0" % (S_J + k))
        a("v_and_b32 v4, 31, v%d" % V_LANE)
        a("v_lshrrev_b32 v5, 5, v%d" % V_LANE)
        a("v_min_u32 v4, 19, v4")
        a("s_lshr_b32 s%d, s%d, 2" % (S_T0, S_G))
        a("v_mul_u32_u24 v6, 13, v4"); a("v_lshrrev_b32 v6, 7, v6")
        a("v_mul_u32_u24 v7, 52, v4"); a("v_lshrrev_b32 v7, 8, v7")
        a("v_mul_u32_u24 v8, 5, v7"); a("v_sub_u32 v8, v4, v8")
        a("v_lshlrev_b32 v8, 7, v8")
        a("v_lshl_add_u32 v6, v5, 6, v6")
        a("s_lshl_b32 s%d, s%d, 1" % (S_T2, S_I))
        a("v_add_u32 v6, s%d, v6" % S_T2)
        a("v_mul_u32_u24 v6, s%d, v6" % S_T3)
        a("v_and_b32 v9, 1, v7")
        a("s_movk_i32 s%d, 1280" % S_T2)
        a("v_mul_u32_u24 v9, s%d, v9" % S_T2)
        a("v_add3_u32 v6, v6, v9, v8")
        a("s_mul_i32 s%d, s%d, 640" % (S_T0, S_T0))
        a("s_add_u32 s%d, s%d, 1280" % (S_T2, S_T0))
        a("v_add_u32 v%d, s%d, v6" % (V_PF + 1, S_T2))
        a("v_lshl_add_u32 v7, v5, 7, v7")
        a("s_lshl_b32 s%d, s%d, 2" % (S_T2, S_I))
        a("v_add_u32 v7, s%d, v7" % S_T2)
        a("v_mul_u32_u24 v7, s%d, v7" % S_T3)
        a("v_add3_u32 v%d, v7, v8, s%d" % (V_PF + 2, S_T0))
        a("v_mov_b32 v%d, 0" % V_PF)
    def fx(a):
        a("s_lshl_b32 s%d, s%d, 7" % (S_T0, S_R))
        a("s_lshl_b32 s%d, s%d, 5" % (S_T1, S_RG))
        a("s_add_u32 s%d, s%d, s%d" % (S_T0, S_T0, S_T1))
        a("s_mul_i32 s%d, s%d, 1280" % (S_T0, S_T0))
        a("s_movk_i32 s%d, 1280" % S_T1)
        a("v_lshrrev_b32 v4, 3, v%d" % V_LANE)
        a("v_and_b32 v5, 7, v%d" % V_LANE)
        a("v_xor_b32 v5, v5, v4")
        a("v_mul_u32_u24 v4, s%d, v4" % S_T1)
        a("v_lshl_add_u32 v4, v5, 4, v4")
        a("v_add_u32 v%d, s%d, v4" % (V_DMA, S_T0))
        for j in range(1, 5): a("v_mov_b32 v%d, v%d" % (V_DMA + j, V_DMA))
        for j in range(5): a("v_mov_b32 v%d, 0" % (V_DMA2 + j))
        a("s_lshl_b32 s%d, s%d, 12" % (S_T0, S_RG))
        for k in range(4): a("s_add_u32 s%d, s%d, %d" % (S_SB + k, S_T0, k * XSLOT))
        a("s_movk_i32 s%d, 128" % S_STEP)
        for k in range(1, 4): a("s_mov_b32 s%d, %d" % (S_J + k, k * 10240))
        a("v_and_b32 v4, 31, v%d" % V_LANE)
        a("v_lshrrev_b32 v5, 5, v%d" % V_LANE)
        a("s_lshr_b32 s%d, s%d, 3" % (S_T0, S_R))
        a("s_lshl_b32 s%d, s%d, 5" % (S_T0, S_T0))
        a("s_add_u32 s%d, s%d, s%d" % (S_T0, S_T0, S_I))
        a("s_mul_i32 s%d, s%d, %d" % (S_T0, S_T0, 32 * 1280))
        a("v_mul_u32_u24 v6, s%d, v4" % S_T1)
        a("v_lshl_add_u32 v6, v5, 7, v6")
        a("v_add_u32 v%d, s%d, v6" % (V_PF, S_T0))
        a("v_mov_b32 v%d, 0" % (V_PF + 1)); a("v_mov_b32 v%d, 0" % (V_PF + 2))
    role_branch(a, fw, fx)
    a("s_mov_b32 s%d, 0" % S_SOFF)

def entry_srd(a):
    a("s_waitcnt lgkmcnt(0)")
    a("s_cmp_eq_u32 s%d, 0" % S_BR)
    a("s_cselect_b32 s%d, s4, s10" % S_X)
    a("s_cselect_b32 s%d, s5, s11" % (S_X + 1))
    a("s_mov_b32 s%d, 2621440" % (S_X + 2))
    a("s_mov_b32 s%d, 0x20000" % (S_X + 3))
    a("s_cselect_b32 s%d, s6, s12" % S_W)
    a("s_cselect_b32 s%d, s7, s13" % (S_W + 1))
    a("s_mov_b32 s%d, 2457600" % (S_W + 2))
    a("s_mov_b32 s%d, 0x20000" % (S_W + 3))
    a("s_cmp_eq_u32 s%d, 0" % S_CS)
    a("s_cselect_b32 s%d, s%d, s%d" % (S_D, S_W, S_X))
    a("s_cselect_b32 s%d, s%d, s%d" % (S_D + 1, S_W + 1, S_X + 1))
    a("s_cselect_b32 s%d, s%d, s%d" % (S_D + 2, S_W + 2, S_X + 2))
    a("s_mov_b32 s%d, 0x20000" % (S_D + 3))

def entry_srd2(a):
    if WS_BASE:
        a("s_add_u32 s20, s20, %d" % WS_BASE)
        a("s_addc_u32 s21, s21, 0")
    srd(a, S_WS, 20, 21, WS_SIZE)
    srd(a, S_OUT, 16, 17, 5242880)
    srd(a, S_WO, 8, 9, 819200)
    srd(a, S_WOB, 14, 15, 819200)
    if STAMPS:
        a("s_mov_b32 s101, s100")
        a("s_mov_b32 s100, s62")
        if S_ST == 4:
            for i in range(NST): a("s_mov_b32 s%d, 0" % (S_ST + 2 * i))

def pf(kind, idx, k):
    def f(a):
        if 'nopf' in OPT: return
        def body(a):
            if kind == 'x': a("s_mov_b32 s%d, %d" % (S_OFF, idx * 256)); s_, v = S_X, V_PF
            elif kind == 'w': a("s_mov_b32 s%d, %d" % (S_OFF, idx * 128 * 3840)); s_, v = S_W, V_PF + 1
            else: a("s_mov_b32 s%d, %d" % (S_OFF, idx * 256 * 3840)); s_, v = S_W, V_PF + 2
            a("buffer_load_dword v%d, v%d, s[%d:%d], s%d offen %s" % (V_PFD, v, s_, s_ + 3, S_OFF, PFL))
        on_wave(a, (4 + k) if kind == 'x' else k, body)
    return f

def dma(sig, j):
    def f(a):
        if 'nodma' in OPT and sig >= 3: return
        slot = sig % 4
        def body(a):
            a("s_add_u32 m0, s%d, %d" % (S_SB + slot, j * 1024))
            if sig < 10:
                if 1 <= j <= 3:
                    a("s_add_u32 s%d, s%d, s%d" % (S_OFF, S_SOFF, S_J + j)); so = S_OFF
                else:
                    a("s_nop 0"); so = S_SOFF
                a("buffer_load_dwordx4 v%d, s[%d:%d], s%d offen %s lds" % (V_DMA + j, S_D, S_D + 3, so, DML))
            else:
                a("s_mov_b32 s%d, %d" % (S_OFF, (sig - 10) * 128 * 3840))
                a("buffer_load_dwordx4 v%d, s[%d:%d], s%d offen %s lds" % (V_DMA2 + j, S_D, S_D + 3, S_OFF, DML))
        if sig >= 10 or j == 4: role_branch(a, body, None)
        else: body(a)
        if sig < 10 and j == 4: a("s_add_u32 s%d, s%d, s%d" % (S_SOFF, S_SOFF, S_STEP))
    return f

def img_pos(a, dst, tmp):
    a("v_lshl_add_u32 v%d, v%d, 2, v%d" % (tmp, V_KG, V_N))
    a("v_and_b32 v%d, 15, v%d" % (tmp, tmp))
    a("v_lshl_add_u32 v%d, v%d, 4, v%d" % (tmp, V_KG, tmp))
    a("v_lshlrev_b32 v%d, 4, v%d" % (dst, tmp))

E_, RP, BB, W4, TM = V_ACC2, V_ACC2 + 1, V_ACC2 + 2, V_ACC2 + 3, V_ACC2 + 4
def addr1_setup(a):
    a("v_and_b32 v4, 7, v%d" % V_N)
    a("s_lshl_b32 s%d, s%d, 12" % (S_T0, S_RG))
    a("v_lshlrev_b32 v5, 7, v%d" % V_N)
    a("v_xor_b32 v4, v4, v%d" % V_KG)
    a("v_lshl_add_u32 v4, v4, 4, v5")
    a("s_xor_b32 s%d, s%d, 1" % (S_T5, S_CS))
    a("s_lshl_b32 s%d, s%d, 6" % (S_T1, S_T5))
    a("s_lshl_b32 s%d, s%d, 11" % (S_T2, S_CS))
    a("s_or_b32 s%d, s%d, s%d" % (S_T1, S_T1, S_T2))
    a("s_or_b32 s%d, s%d, s%d" % (S_T1, S_T1, S_T0))
    a("v_xor_b32 v%d, s%d, v4" % (V_XA, S_T1))
    a("v_xor_b32 v%d, 0x800, v%d" % (V_XA + 1, V_XA))
    a("v_xor_b32 v%d, 64, v%d" % (V_XA + 2, V_XA))
    a("v_xor_b32 v%d, 64, v%d" % (V_XA + 3, V_XA + 1))
    a("v_and_b32 v4, 3, v%d" % V_N)
    a("v_lshrrev_b32 v%d, 2, v%d" % (RP, V_N))
    a("v_and_b32 v7, 1, v%d" % V_KG)
    a("v_lshl_add_u32 v%d, v%d, 3, v%d" % (RP, V_KG, RP))
    a("s_movk_i32 s%d, 320" % S_T1)
    a("v_lshlrev_b32 v7, 5, v7")
    a("v_mul_u32_u24 v%d, s%d, v%d" % (RP, S_T1, RP))
    a("v_lshl_add_u32 v%d, v4, 3, v7" % E_)
    a("v_add_u32 v%d, %d, v%d" % (RP, LDS_W, RP))
    a("v_add_u32 v%d, v%d, v%d" % (BB, RP, E_))
    a("s_mul_i32 s%d, s%d, 160" % (S_T2, S_CS))
    a("s_mul_i32 s%d, s%d, 80" % (S_T3, S_CS))
    a("s_mul_i32 s%d, s%d, 10240" % (S_T0, S_T5))
    a("s_mul_i32 s%d, s%d, 10240" % (S_T1, S_CS))
    def sA(T):
        a("s_add_u32 s%d, s%d, %d" % (S_T4, S_T2, 40 * T))
        a("s_add_u32 s%d, s%d, %d" % (S_T5, S_T3, (T >> 1) * 160 + 40 * (T & 1)))
        a("s_cmp_eq_u32 s%d, 0" % S_BR)
        a("s_cselect_b32 s%d, s%d, s%d" % (S_T4, S_T4, S_T5))
    for T in range(3):
        sA(T)
        a("s_add_u32 s%d, s%d, s%d" % (S_T5, S_T4, S_T0))
        a("v_add_u32 v%d, s%d, v%d" % (V_WA + T, S_T5, BB))
        a("s_add_u32 s%d, s%d, s%d" % (S_T5, S_T4, S_T1))
        a("v_add_u32 v%d, s%d, v%d" % (V_WA + 5 + T, S_T5, BB))
    sA(3)
    a("v_add_u32 v5, s%d, v%d" % (S_T4, E_))
    minwrap(a, 5, 320, TM)
    a("v_add_u32 v5, v5, v%d" % RP)
    a("v_add_u32 v%d, s%d, v5" % (V_WA + 3, S_T0))
    a("v_add_u32 v%d, s%d, v5" % (V_WA + 8, S_T1))
    a("s_cmp_eq_u32 s%d, 0" % S_BR)
    a("s_cselect_b32 s%d, s%d, s%d" % (S_T4, S_T2, S_T3))
    a("s_cselect_b32 s%d, 0, 80" % S_T5)
    a("s_add_u32 s%d, s%d, 32" % (S_T4, S_T4))
    a("v_mul_u32_u24 v%d, 40, v4" % (W4))
    a("v_lshrrev_b32 v5, 1, v4")
    a("v_add_u32 v%d, v%d, v7" % (W4, W4))
    a("v_mad_u32_u24 v5, v5, s%d, v%d" % (S_T5, W4))
    a("v_add_u32 v5, s%d, v5" % S_T4)
    minwrap(a, 5, 320, TM)
    a("v_add_u32 v5, v5, v%d" % RP)
    a("v_add_u32 v%d, s%d, v5" % (V_WA + 4, S_T0))
    a("v_add_u32 v%d, s%d, v5" % (V_WA + 9, S_T1))

def addr2_setup(a):
    a("s_mul_i32 s%d, s%d, 10240" % (S_T1, S_CS))
    for seg in range(2):
        for T in range(4):
            if seg == 1 and T == 3: continue
            a("s_add_u32 s%d, s%d, %d" % (S_T4, S_T1, seg * 160 + 40 * T))
            a("v_add_u32 v%d, s%d, v%d" % (V_WA2 + seg * 5 + T, S_T4, BB))
    a("v_add_u32 v5, 280, v%d" % E_)
    minwrap(a, 5, 320, TM)
    a("v_add3_u32 v%d, v5, v%d, s%d" % (V_WA2 + 8, RP, S_T1))
    a("s_add_u32 s%d, s%d, 32" % (S_T4, S_T1))
    a("v_add3_u32 v%d, v%d, v%d, s%d" % (V_WA2 + 4, W4, RP, S_T4))
    a("v_add_u32 v5, 192, v%d" % (W4))
    minwrap(a, 5, 320, TM)
    a("v_add3_u32 v%d, v5, v%d, s%d" % (V_WA2 + 9, RP, S_T1))
    img_pos(a, V_IMG, 4)

def p1_reads(s, hf):
    if 'noread' in OPT: return ["s_nop 0"] * 12
    slot = s % 4
    wb = V_WB0 if hf == 0 else V_WB1
    L = []
    for tp in range(2):
        dst = (V_XT + 4 * tp) if hf == 0 else (V_XP + (s * 2 + tp) * 4)
        L.append("ds_read_b128 %s, v%d offset:%d" % (vr(dst, 4), V_XA + hf * 2 + tp, slot * XSLOT))
    for T in range(5):
        for rd in range(2):
            L.append("ds_read_b64_tr_b16 %s, v%d offset:%d" % (vr(wb + 4 * T + 2 * rd, 2), V_WA + hf * 5 + T, slot * WSLOT + rd * 1280))
    return L
def p1_mfmas(s, hf, first):
    if 'nomfma' in OPT: return ["s_nop 0"] * 10
    wb = V_WB0 if hf == 0 else V_WB1
    return [mfma16(V_ACC + (tp * 5 + T) * 4, (V_XT + 4 * tp) if hf == 0 else (V_XP + (s * 2 + tp) * 4), wb + 4 * T, "0" if first else None)
            for T in range(5) for tp in range(2)]
def p2_reads(u):
    v, seg = u >> 1, u & 1
    slot = (10 + v) % 4
    wb = V_WB0 if (u & 1) == 0 else V_WB1
    return ["ds_read_b64_tr_b16 %s, v%d offset:%d" % (vr(wb + 4 * T + 2 * rd, 2), V_WA2 + seg * 5 + T, slot * WSLOT + rd * 1280)
            for T in range(5) for rd in range(2)]
def p2_mfmas(u):
    wb = V_WB0 if (u & 1) == 0 else V_WB1
    return [mfma16(V_ACC2 + (tp * 5 + T) * 4, V_XP + (u * 2 + tp) * 4, wb + 4 * T, "0" if u == 0 else None)
            for T in range(5) for tp in range(2)]

def half(a, lq, mf, needs, reads, sched, extra):
    ids = []
    reads = list(reads)
    for i, m in enumerate(mf):
        lq.need(needs[i])
        a(m)
        for _ in range(sched[i]):
            if reads: ids.append(lq.issue(reads.pop(0)))
        if i in extra: emit(a, extra[i])
    while reads: ids.append(lq.issue(reads.pop(0)))
    return ids

def epi1_A(a):
    a("s_lshr_b32 s%d, s%d, 2" % (S_T0, S_G1))
    a("s_lshl_b32 s%d, s%d, 3" % (S_T0, S_T0))
    a("s_and_b32 s%d, s%d, 3" % (S_T1, S_G1))
    a("s_lshl_b32 s%d, s%d, 1" % (S_T1, S_T1))
    a("s_add_u32 s%d, s%d, s%d" % (S_T0, S_T0, S_T1))
    a("s_add_u32 s%d, s%d, s%d" % (S_T0, S_T0, S_CS))
    a("s_lshl_b32 s%d, s%d, 6" % (S_T0, S_T0))
    a("s_lshl_b32 s%d, s%d, 2" % (S_T1, S_R))
    a("s_add_u32 s%d, s%d, s%d" % (S_T0, S_T0, S_T1))
    a("s_add_u32 s%d, s%d, s%d" % (S_T0, S_T0, S_RG))
    a("s_mul_i32 s%d, s%d, 5120" % (S_T0, S_T0))
    a("s_add_u32 s%d, s%d, %d" % (S_T0, S_T0, WS_KV))
    a("s_add_u32 s%d, s%d, 4096" % (S_T1, S_T0))
    def pack(swap):
        def f(a):
            for T in range(5):
                e = V_ACC2 + T * 4
                for t in range(2):
                    tp = t ^ swap
                    d = V_ACC + (tp * 5 + T) * 4
                    a("v_cvt_pk_bf16_f32 v%d, v%d, v%d" % (e + 2 * t, d, d + 1))
                    a("v_cvt_pk_bf16_f32 v%d, v%d, v%d" % (e + 2 * t + 1, d + 2, d + 3))
                a("buffer_store_dwordx4 %s, v%d, s[%d:%d], s%d offen offset:%d %s" % (vr(e, 4), V_IMG, S_WS, S_WS + 3, S_T1 if T == 4 else S_T0, (T & 3) * 1024, ST))
                if 'dbl' in OPT:
                    a("buffer_store_dwordx4 %s, v%d, s[%d:%d], s%d offen offset:%d" % (vr(e, 4), V_IMG, S_WS, S_WS + 3, S_T1 if T == 4 else S_T0, (T & 3) * 1024))
        return f
    role_branch(a, pack(0), pack(1))
    a("s_nop 1")

def phi(a, regs, tmp):
    a("s_mov_b32 s%d, 0x%x" % (S_T4, f2u(LOG2E)))
    a("s_mov_b32 s%d, 0x%x" % (S_T5, f2u(LOG2E)))
    a("s_mov_b32 s%d, 0x%x" % (S_M2, f2u(1e-6)))
    a("s_mov_b32 s%d, 0x%x" % (S_M2 + 1, f2u(1e-6)))
    for i in range(0, len(regs), 4):
        g = regs[i:i + 4]
        assert g[0] % 2 == 0 and g[1] == g[0] + 1 and g[2] % 2 == 0 and g[3] == g[2] + 1
        for k in (0, 2): a("v_pk_mul_f32 %s, %s, s[%d:%d]" % (vr(tmp + k, 2), vr(g[k], 2), S_T4, S_T5))
        for k in range(4): a("v_exp_f32_e64 v%d, v%d clamp" % (tmp + k, tmp + k))
        for k in range(4): a("v_max_f32 v%d, 0, v%d" % (g[k], g[k]))
        for k in (0, 2): a("v_pk_add_f32 %s, %s, s[%d:%d]" % (vr(g[k], 2), vr(g[k], 2), S_M2, S_M2 + 1))
        for k in (0, 2): a("v_pk_add_f32 %s, %s, %s" % (vr(g[k], 2), vr(g[k], 2), vr(tmp + k, 2)))

def piece_decode(a):
    a("s_and_b32 s%d, s%d, 1" % (S_T0, S_WV))
    a("s_lshl_b32 s%d, s%d, 6" % (S_T0, S_T0))
    a("v_add_u32 v5, s%d, v%d" % (S_T0, V_LANE))
    a("s_movk_i32 s%d, 2731" % S_T1)
    a("v_mul_u32_u24 v6, s%d, v5" % S_T1)
    a("v_lshrrev_b32 v6, 16, v6")
    a("v_mul_u32_u24 v7, 24, v6")
    a("v_sub_u32 v7, v5, v7")

def epi1_B(a):
    acc = lambda tp, T: V_ACC + (tp * 5 + T) * 4
    raw = V_WB0
    TMP = V_ACC2
    a("s_nop 7")
    for tp in range(2):
        for k in range(4): a("v_mov_b32 v%d, v%d" % (raw + tp * 4 + k, acc(tp, 4) + k))
    regs = []
    for T in (0, 1, 4):
        for tp in range(2): regs += [acc(tp, T) + k for k in range(4)]
    phi(a, regs, TMP)
    a("s_mov_b32 s%d, 0x00ff00ff" % S_M0)
    a("s_mov_b32 s%d, 0x00ff00ff" % (S_M0 + 1))
    for tp in range(2):
        for k in range(4):
            a("v_cndmask_b32_e64 v%d, v%d, v%d, s[%d:%d]" % (acc(tp, 4) + k, raw + tp * 4 + k, acc(tp, 4) + k, S_M0, S_M0 + 1))
    P = V_WB1
    for T in range(5):
        for tp in range(2):
            d = acc(tp, T)
            a("v_cvt_pk_bf16_f32 v%d, v%d, v%d" % (P + 4 * T + 2 * tp, d, d + 1))
            a("v_cvt_pk_bf16_f32 v%d, v%d, v%d" % (P + 4 * T + 2 * tp + 1, d + 2, d + 3))
    TB = V_WB0 + 8
    a("v_mov_b32 v%d, 0x3f803f80" % TMP)
    for k in range(4):
        a("v_cndmask_b32_e64 v%d, v%d, v%d, s[%d:%d]" % (TB + k, P + 16 + k, TMP, S_M0, S_M0 + 1))
    F0, F1, V0, V1, TA = P, P + 4, P + 8, P + 12, P + 16
    D = V_ACC
    a("s_mul_i32 s%d, s%d, 7168" % (S_T0, S_WV))
    a("v_lshlrev_b32 v4, 4, v%d" % V_LANE)
    for i, (x, y) in enumerate([(F0, V0), (F1, V1), (F0, TB), (F1, TB), (TA, V0), (TA, V1), (TA, TB)]):
        a(mfma16(D + 4 * i, x, y, "0"))
    a("v_add_u32 v4, s%d, v4" % S_T0)
    piece_decode(a)
    M = TMP
    a("s_lshr_b32 s%d, s%d, 1" % (S_T2, S_WV))
    a("s_and_b32 s%d, s%d, 1" % (S_T3, S_T2))
    a("s_lshr_b32 s%d, s%d, 1" % (S_T2, S_T2))
    a("s_lshl_b32 s%d, s%d, 2" % (S_T4, S_T3))
    a("s_sub_u32 s%d, s%d, 8" % (S_T4, S_T4))
    a("v_add_u32 v8, s%d, v7" % S_T4)
    a("v_cmp_gt_u32_e64 s[%d:%d], 20, v7" % (S_M0, S_M0 + 1))
    a("v_cmp_gt_u32_e64 s[%d:%d], 16, v7" % (S_M1, S_M1 + 1))
    a("v_cmp_gt_u32_e64 s[%d:%d], 4, v6" % (S_M2, S_M2 + 1))
    a("s_barrier")
    for i in range(7):
        a("ds_write_b128 v4, %s offset:%d" % (vr(D + 4 * i, 4), i * 1024))
    a("v_cndmask_b32_e64 v8, 0, v8, s[%d:%d]" % (S_M0, S_M0 + 1))
    a("v_cndmask_b32_e64 v8, v8, v7, s[%d:%d]" % (S_M1, S_M1 + 1))
    a("v_mov_b32 v9, s%d" % S_T3)
    a("v_cndmask_b32_e64 v9, v9, v6, s[%d:%d]" % (S_M2, S_M2 + 1))
    a("v_lshl_add_u32 v8, v9, 4, v8")
    a("s_add_u32 s%d, s%d, 4" % (S_T4, S_T3))
    a("v_mov_b32 v9, s%d" % S_T4)
    a("v_mov_b32 v%d, s%d" % (M, S_T3))
    a("v_cndmask_b32_e64 v9, v9, v%d, s[%d:%d]" % (M, S_M2, S_M2 + 1))
    a("s_add_u32 s%d, s%d, 2" % (S_T4, S_T3))
    a("v_mov_b32 v%d, s%d" % (M, S_T4))
    a("v_cndmask_b32_e64 v%d, 6, v%d, s[%d:%d]" % (M, M, S_M2, S_M2 + 1))
    a("v_cndmask_b32_e64 v9, v%d, v9, s[%d:%d]" % (M, S_M1, S_M1 + 1))
    a("v_lshlrev_b32 v9, 10, v9")
    a("v_lshl_add_u32 v8, v8, 4, v9")
    a("s_mul_i32 s%d, s%d, %d" % (S_T4, S_T2, 4 * 7168))
    a("v_add_u32 v8, s%d, v8" % S_T4)
    a("v_cmp_gt_u32_e64 s[%d:%d], 21, v7" % (S_M0, S_M0 + 1))
    a("v_cmp_gt_u32_e64 s[%d:%d], 5, v6" % (S_M1, S_M1 + 1))
    a("v_min_u32 v8, %d, v8" % (8 * 7168 - 3 * 7168 - 16))
    a("s_lshl_b32 s%d, s%d, 4" % (S_T0, S_G))
    a("s_add_u32 s%d, s%d, s%d" % (S_T0, S_T0, S_R))
    a("s_lshl_b32 s%d, s%d, 13" % (S_T0, S_T0))
    a("s_lshr_b32 s%d, s%d, 1" % (S_T1, S_WV))
    a("s_lshl_b32 s%d, s%d, 11" % (S_T1, S_T1))
    a("s_add_u32 s%d, s%d, s%d" % (S_T0, S_T0, S_T1))
    a("s_add_u32 s%d, s%d, %d" % (S_T0, S_T0, WS_PART))
    a("v_lshlrev_b32 v5, 4, v5")
    a("s_waitcnt lgkmcnt(0)")
    a("s_barrier")
    a("s_and_b64 s[%d:%d], s[%d:%d], s[%d:%d]" % (S_M0, S_M0 + 1, S_M0, S_M0 + 1, S_M1, S_M1 + 1))
    E = V_ACC
    for rg in range(4): a("ds_read_b128 %s, v8 offset:%d" % (vr(E + 4 * rg, 4), rg * 7168))
    a("s_waitcnt lgkmcnt(0)")
    for k in (0, 2):
        a("v_pk_add_f32 %s, %s, %s" % (vr(E + k, 2), vr(E + k, 2), vr(E + 4 + k, 2)))
        a("v_pk_add_f32 %s, %s, %s" % (vr(E + 8 + k, 2), vr(E + 8 + k, 2), vr(E + 12 + k, 2)))
    for k in (0, 2): a("v_pk_add_f32 %s, %s, %s" % (vr(E + k, 2), vr(E + k, 2), vr(E + 8 + k, 2)))
    a("s_mov_b64 exec, s[%d:%d]" % (S_M0, S_M0 + 1))
    a("buffer_store_dwordx4 %s, v5, s[%d:%d], s%d offen %s" % (vr(E, 4), S_WS, S_WS + 3, S_T0, ST))
    a("s_mov_b64 exec, -1")

LDS_Q = 143360
def epi2(a):
    XCH = 102400
    a("s_mul_i32 s%d, s%d, 5120" % (S_T0, S_WV))
    a("s_add_u32 s%d, s%d, %d" % (S_T0, S_T0, XCH))
    a("v_lshlrev_b32 v4, 4, v%d" % V_LANE)
    a("s_xor_b32 s%d, s%d, 4" % (S_T1, S_WV))
    a("v_add_u32 v5, s%d, v4" % S_T0)
    a("s_mul_i32 s%d, s%d, 5120" % (S_T1, S_T1))
    a("s_add_u32 s%d, s%d, %d" % (S_T1, S_T1, XCH))
    a("s_barrier")
    for T in range(5): a("ds_write_b128 v5, %s offset:%d" % (vr(V_ACC2 + (5 + T) * 4, 4), T * 1024))
    lw = a.newlabel("e2w")
    a("s_cmp_eq_u32 s%d, 0" % S_BR)
    a("s_cbranch_scc1 %s" % lw)
    a("s_mov_b32 s%d, s%d" % (S_T2, S_T1))
    wo_load(a, S_WOB, first=12)
    a("s_mov_b32 s%d, s%d" % (S_T1, S_T2))
    a.label(lw)
    a("v_add_u32 v5, s%d, v4" % S_T1)
    a("s_lshl_b32 s%d, s%d, 3" % (S_T1, S_CS))
    a("v_add_u32 v4, s%d, v%d" % (S_T1, V_IMG))
    a("s_mul_i32 s%d, s%d, 5120" % (S_T0, S_RG))
    a("s_add_u32 s%d, s%d, %d" % (S_T0, S_T0, LDS_Q))
    a("v_add_u32 v4, s%d, v4" % S_T0)
    a("s_waitcnt lgkmcnt(0)")
    a("s_barrier")
    R = V_WB0
    for T in range(5): a("ds_read_b128 %s, v5 offset:%d" % (vr(R + 4 * T, 4), T * 1024))
    regs = [V_ACC2 + T * 4 + k for T in range(5) for k in range(4)]
    for T in range(5):
        a("s_waitcnt lgkmcnt(%d)" % (4 - T))
        for k in (0, 2):
            a("v_pk_add_f32 %s, %s, %s" % (vr(V_ACC2 + 4 * T + k, 2), vr(V_ACC2 + 4 * T + k, 2), vr(R + 4 * T + k, 2)))
    def fa(a):
        a("s_mov_b32 s%d, 0x%x" % (S_T4, f2u(QSCALE)))
        a("s_mov_b32 s%d, 0x%x" % (S_T5, f2u(QSCALE)))
        for k in range(0, 20, 2): a("v_pk_mul_f32 %s, %s, s[%d:%d]" % (vr(V_ACC2 + k, 2), vr(V_ACC2 + k, 2), S_T4, S_T5))
    lb, ld = a.newlabel("e2b"), a.newlabel("e2d")
    a("s_cmp_eq_u32 s%d, 0" % S_BR)
    a("s_cbranch_scc0 %s" % lb)
    fa(a)
    a("s_branch %s" % ld)
    a.label(lb)
    phi(a, regs, V_ACC)
    a.label(ld)
    for T in range(5):
        d = V_ACC2 + T * 4
        a("v_cvt_pk_bf16_f32 v%d, v%d, v%d" % (R + 2 * T, d, d + 1))
        a("v_cvt_pk_bf16_f32 v%d, v%d, v%d" % (R + 2 * T + 1, d + 2, d + 3))
        a("ds_write_b64 v4, %s offset:%d" % (vr(R + 2 * T, 2), T * 1024))

def vm_wait_roles(a, nw, nx):
    if nw == nx: a("s_waitcnt vmcnt(%d)" % nw)
    else: role_branch(a, "s_waitcnt vmcnt(%d)" % nw, "s_waitcnt vmcnt(%d)" % nx)

def publish(a, s_off, wave=0):
    def body(a):
        a("v_mov_b32 v4, s%d" % S_NONCE)
        a("v_mov_b32 v5, 0")
        a("s_mov_b64 exec, 1")
        a("buffer_store_dword v4, v5, s[%d:%d], s%d offen sc0 sc1" % (S_WS, S_WS + 3, s_off))
        a("s_mov_b64 exec, -1")
    if wave is None: body(a)
    else: on_wave(a, wave, body)

def poll(a, voff, s_off, mask_lo, mask_hi):
    def body(a):
        lp, ld = a.newlabel("pp"), a.newlabel("pd")
        a("s_mov_b32 exec_lo, %s" % mask_lo)
        a("s_mov_b32 exec_hi, %s" % mask_hi)
        a("s_mov_b32 s%d, 0" % S_T5)
        a.label(lp)
        a("buffer_load_dword v6, v%d, s[%d:%d], s%d offen sc1" % (voff, S_WS, S_WS + 3, s_off))
        a("s_waitcnt vmcnt(0)")
        a("v_cmp_ne_u32_e64 s[%d:%d], s%d, v6" % (S_M0, S_M0 + 1, S_NONCE))
        a("s_add_u32 s%d, s%d, 1" % (S_T5, S_T5))
        a("s_nop 1")
        a("s_cmp_eq_u64 s[%d:%d], 0" % (S_M0, S_M0 + 1))
        a("s_cbranch_scc1 %s" % ld)
        a("s_sleep 1")
        a("s_cmp_lt_u32 s%d, %d" % (S_T5, SPIN_LIMIT))
        a("s_cbranch_scc1 %s" % lp)
        a.label(ld)
        a("s_mov_b64 exec, -1")
    on_wave(a, 0, body)

def wo_pf_setup(a, v):
    a("v_mul_u32_u24 v4, 52, v%d" % V_LANE); a("v_lshrrev_b32 v4, 8, v4")
    a("v_mul_u32_u24 v5, 5, v4"); a("v_sub_u32 v5, v%d, v5" % V_LANE)
    a("s_mul_i32 s%d, s%d, 20" % (S_T0, S_I))
    a("v_add_u32 v4, s%d, v4" % S_T0)
    a("s_movk_i32 s%d, 1280" % S_T1)
    a("v_mul_u32_u24 v4, s%d, v4" % S_T1)
    a("v_lshl_add_u32 v4, v5, 7, v4")
    a("s_lshr_b32 s%d, s%d, 2" % (S_T0, S_G))
    a("s_mul_i32 s%d, s%d, 640" % (S_T0, S_T0))
    a("v_add_u32 v%d, s%d, v4" % (v, S_T0))
assert all((l * 52) >> 8 == l // 5 for l in range(64))

def wo_pf_issue(a, v, srd_):
    a("buffer_load_dword v%d, v%d, s[%d:%d], 0 offen %s" % (V_PFD, v, srd_, srd_ + 3, PFL))
    a("s_mov_b32 s%d, %d" % (S_OFF, 12 * 1280))
    a("buffer_load_dword v%d, v%d, s[%d:%d], s%d offen %s" % (V_PFD, v, srd_, srd_ + 3, S_OFF, PFL))

def phase1(a):
    dma_setup(a)
    stamp(a, "dset")
    entry_srd(a)
    stamp(a, "karg")
    if 'allpf' in OPT:
        emit(a, [pf('x', 0, 0), pf('w', 0, 0), pf('x', 1, 1), pf('w', 1, 1), pf('x', 2, 2), pf('w', 2, 2), pf('x', 3, 3), pf('w', 3, 3), pf('x', 4, 0), pf('w', 4, 0)])
        emit(a, [dma(0, j) for j in range(5)])
    elif 'allpf2' in OPT:
        emit(a, [dma(0, j) for j in range(5)])
        emit(a, [pf('x', 0, 0), pf('w', 0, 0), pf('x', 1, 1), pf('w', 1, 1), pf('x', 2, 2), pf('w', 2, 2), pf('x', 3, 3), pf('w', 3, 3), pf('x', 4, 0), pf('w', 4, 0)])
    else:
        emit(a, [dma(0, j) for j in range(5)])
        emit(a, [pf('x', 0, 0), pf('w', 0, 0), pf('x', 1, 1), pf('w', 1, 1)])
    entry_srd2(a)
    stamp(a, "g0")
    addr1_setup(a)
    emit(a, [dma(1, j) for j in range(5)])
    if not ('allpf' in OPT or 'allpf2' in OPT): emit(a, [pf('x', 2, 2), pf('w', 2, 2)])
    a("v_mov_b32 v8, 0")
    a("s_mov_b32 s%d, %d" % (S_OFF, WS_FLAG))
    a("buffer_load_dword v9, v8, s[%d:%d], s%d offen sc1" % (S_WS, S_WS + 3, S_OFF))
    stamp(a, "g1")
    vm_wait_roles(a, 6, 5)
    stamp(a, "g0land")
    a("s_barrier")
    stamp(a, "t0")
    lq = LQ(a)
    cur = [lq.issue(x) for x in p1_reads(0, 0)]
    SCH = {'e': [2, 1, 1, 1, 1, 2, 1, 1, 1, 1], 'f': [2, 2, 2, 2, 2, 2, 0, 0, 0, 0], 'm': [2, 2, 1, 1, 1, 1, 1, 1, 1, 1], 'g': [2, 2, 2, 1, 1, 1, 1, 1, 1, 0]}[SCHED]
    needs12 = lambda ids: [ids[2 + 2 * (i // 2) + 1] for i in range(10)]
    needs10 = lambda ids: [ids[2 * (i // 2) + 1] for i in range(10)]
    for s in range(10):
        ex0 = {}
        if s >= 1: ex0 = {2: dma(s + 2, 3), 6: dma(s + 2, 4)}
        if s == 0: ex0 = {0: dma(2, 0), 2: dma(2, 1), 4: dma(2, 2), 6: dma(2, 3), 8: dma(2, 4)}
        if s == 5:
            lines = rec(addr2_setup)
            for k_, pos in enumerate((1, 3, 4, 5, 7, 8, 9)):
                ex0[pos] = [ex0.get(pos), lines[k_ * len(lines) // 7:(k_ + 1) * len(lines) // 7]]
        nxt = half(a, lq, p1_mfmas(s, 0, s == 0), needs12(cur), p1_reads(s, 1), SCH, ex0)
        if s == 0: vm_wait_roles(a, 6, 5)
        elif s == 8: vm_wait_roles(a, 5, 0)
        elif s == 9: a("s_waitcnt vmcnt(5)")
        else: vm_wait_roles(a, 5, 4)
        a("s_barrier")
        stamp(a, "s%d" % s)
        if s == 2:
            a("v_readfirstlane_b32 s%d, v9" % S_NONCE)
            a("s_nop 3")
            a("s_add_u32 s%d, s%d, 0x9e3779b9" % (S_NONCE, S_NONCE))
        pfl = []
        allp = 'allpf' in OPT or 'allpf2' in OPT
        if s == 0 and not allp: pfl = [pf('x', 3, 3), pf('w', 3, 3)]
        if s == 0 and allp: pfl = [pf('q', 0, 1), pf('q', 1, 2), pf('q', 2, 3)]
        if s == 2 and not allp: pfl = [pf('x', 4, 0), pf('w', 4, 0)]
        if s == 3: pfl = [lambda a: wo_pf_setup(a, V_PF)]
        def wopf_own(a):
            if 'nopf' in OPT: return
            def body(a):
                l, l2 = a.newlabel("wpf"), a.newlabel("wpf2")
                a("s_cmp_eq_u32 s%d, 0" % S_BR)
                a("s_cbranch_scc1 %s" % l)
                wo_pf_issue(a, V_PF, S_WOB)
                a("s_branch %s" % l2)
                a.label(l)
                wo_pf_issue(a, V_PF, S_WO)
                a.label(l2)
            on_wave(a, 5, body)
        if s == 4: pfl = [wopf_own] if allp else [pf('q', 0, 1), wopf_own]
        if s == 5 and not allp: pfl = [pf('q', 1, 2)]
        if s == 6 and not allp: pfl = [pf('q', 2, 3)]
        ex1 = {1: dma(s + 3, 0), 4: dma(s + 3, 1), 7: dma(s + 3, 2), 9: pfl}
        if s == 9: ex1 = {1: dma(12, 0), 3: dma(12, 1), 5: dma(12, 2), 7: dma(12, 3), 9: dma(12, 4)}
        rd = p1_reads(s + 1, 0) if s < 9 else p2_reads(0)
        cur = half(a, lq, p1_mfmas(s, 1, False), needs12(nxt), rd, SCH, ex1)
    stamp(a, "p1end")
    lb, ld = a.newlabel("e1b"), a.newlabel("e1d")
    a("s_cmp_eq_u32 s%d, 0" % S_BR)
    a("s_cbranch_scc0 %s" % lb)
    epi1_A(a)
    a("s_branch %s" % ld)
    a.label(lb)
    a("s_waitcnt lgkmcnt(0)")
    epi1_B(a)
    emit(a, p2_reads(0))
    a.label(ld)
    stamp(a, "e1end")
    p3_dma_setup(a)
    S_WBF, S_WB1, S_WB2 = S_SOFF, S_STEP, S_J + 1
    a("s_and_b32 s%d, s%d, s%d" % (S_WBF, S_BR, S_CS))
    a("s_mul_i32 s%d, s%d, %d" % (S_WB1, S_RG, 3 * 5120))
    a("s_mul_i32 s%d, s%d, %d" % (S_WB2, S_RG, 3 * 32 * 1280))
    def wob(q):
        def f(a):
            l = a.newlabel("wob")
            a("s_cmp_eq_u32 s%d, 0" % S_WBF)
            a("s_cbranch_scc1 %s" % l)
            a("s_add_u32 m0, s%d, %d" % (S_WB1, (q // 5) * 5120 + (q % 5) * 1024))
            a("s_add_u32 s%d, s%d, %d" % (S_OFF, S_WB2, (q // 5) * 32 * 1280))
            a("buffer_load_dwordx4 v%d, s[%d:%d], s%d offen %s lds" % (C_DMA + q % 5, S_WOB, S_WOB + 3, S_OFF, DML))
            a.label(l)
        return f
    WOB_N = [2, 1, 2, 1, 2, 1, 2, 1, 2, 1]
    def wopf(a):
        if 'nopf' in OPT: return
        def body(a):
            l = a.newlabel("wpf")
            a("s_cmp_eq_u32 s%d, 0" % S_BR)
            a("s_cbranch_scc1 %s" % l)
            wo_pf_issue(a, V_PF, S_WO)
            a.label(l)
        on_wave(a, 0, body)
    a("s_waitcnt lgkmcnt(0)")
    lq = LQ(a)
    cur = None
    SCH2 = {'e': [1] * 10, 'f': [2, 2, 2, 2, 2, 0, 0, 0, 0, 0], 'm': [2, 1, 1, 1, 1, 1, 1, 1, 1, 0], 'g': [2, 2, 1, 1, 1, 1, 1, 1, 0, 0]}[SCHED]
    for u in range(10):
        extra = {}
        rd = []
        if u + 1 < 10:
            if (u + 1) % 2 == 0:
                nx = 10 + (u + 1) // 2
                def by_branch(na, nb):
                    def f(a):
                        lB, lD = a.newlabel("wb"), a.newlabel("wd")
                        a("s_cmp_eq_u32 s%d, 0" % S_BR)
                        a("s_cbranch_scc0 %s" % lB)
                        a("s_waitcnt vmcnt(%d)" % na)
                        a("s_branch %s" % lD)
                        a.label(lB)
                        a("s_waitcnt vmcnt(%d)" % nb)
                        a.label(lD)
                    return f
                if nx == 13: role_branch(a, "s_waitcnt vmcnt(5)", by_branch(0, sum(WOB_N[:5])))
                elif nx == 14: role_branch(a, "s_waitcnt vmcnt(0)", None)
                else: role_branch(a, by_branch(5 + (10 if 'dbl' in OPT else 5), 6), None)
                a("s_barrier")
                if 13 <= nx + 2 <= 14: extra = {1: dma(nx + 2, 0), 3: dma(nx + 2, 1), 5: dma(nx + 2, 2), 7: dma(nx + 2, 3), 9: dma(nx + 2, 4)}
                if nx == 13:
                    def pub(a):
                        a("s_lshl_b32 s%d, s%d, 4" % (S_T0, S_G))
                        a("s_add_u32 s%d, s%d, s%d" % (S_T0, S_T0, S_R))
                        a("s_lshl_b32 s%d, s%d, 7" % (S_T0, S_T0))
                        a("s_mul_i32 s%d, s%d, %d" % (S_T1, S_BR, F_PART - F_KV))
                        a("s_add_u32 s%d, s%d, s%d" % (S_T0, S_T0, S_T1))
                        a("s_add_u32 s%d, s%d, %d" % (S_T0, S_T0, F_KV))
                        publish(a, S_T0, 0)
                    extra[0] = [pub]
            rd = p2_reads(u + 1)
        if u == 8: extra[3] = [wopf]
        q0 = sum(WOB_N[:u])
        for n_ in range(WOB_N[u]):
            pos = (2, 6)[n_]
            extra[pos] = [extra.get(pos), wob(q0 + n_)]
        needs = needs10(cur) if cur else [0] * 10
        cur = half(a, lq, p2_mfmas(u), needs, rd, SCH2, extra)
    a("s_nop 4")
    stamp(a, "p2end")
    epi2(a)
    stamp(a, "e2end")

LDS_K, LDS_V = 0, 65536
LDS_KVR = 135168
A_KA0, A_KA1, A_KAT, A_VA0, A_VA1, A_QA0, A_QA1, A_QAT, A_OM, A_OT = 10, 11, 12, 13, 14, 15, 16, 17, 18, 19
A_AM, A_Q1, A_Q2, A_KB, A_VB, A_S, A_O = 20, 32, 36, 40, 64, 96, 240
S_TAU0 = S_U
S_EXV, S_HI, S_LO = 62, 64, 66
NEG_BIG = f2u(-3.0e38)
S_KV0, S_KV1, S_KV2 = 20, 21, 22
A_L16 = 88

def jkey(r, h):
    m, b, e = r >> 3, (r >> 2) & 1, r & 3
    return 16 * b + 8 * m + 4 * h + e
def diag_mask(r):
    return (sum(1 << i for i in range(32) if jkey(r, 0) <= i), sum(1 << i for i in range(32) if jkey(r, 1) <= i))

def p2_common_setup(a, attn):
    a("v_and_b32 v4, 1, v%d" % V_KG)
    a("v_lshrrev_b32 v5, 1, v%d" % V_KG)
    a("v_lshrrev_b32 v6, 2, v%d" % V_N)
    a("v_and_b32 v7, 3, v%d" % V_N)
    a("s_and_b32 s%d, s%d, 3" % (S_T0, S_WV))
    a("s_lshr_b32 s%d, s%d, 2" % (S_T1, S_WV))
    a("s_mul_i32 s%d, s%d, 5120" % (S_T1, S_T1))
    a("s_lshl_b32 s%d, s%d, 10" % (S_T2, S_T0))
    a("s_add_u32 s%d, s%d, s%d" % (S_T2, S_T2, S_T1))
    a("s_add_u32 s%d, s%d, 4096" % (S_T3, S_T1))
    a("s_lshl_b32 s%d, s%d, 2" % (S_T4, S_T0))
    def addr(dst, n, kgimg, tbit, sbase, extra):
        a("v_lshl_add_u32 v9, v%d, 2, v%d" % (kgimg, n))
        a("v_and_b32 v9, 15, v9")
        a("v_lshl_add_u32 v9, v%d, 4, v9" % kgimg)
        a("v_lshlrev_b32 v9, 4, v9")
        a("v_lshl_add_u32 v9, v%d, 3, v9" % tbit)
        a("s_add_u32 s%d, s%d, %d" % (S_T5, sbase, extra))
        a("v_add_u32 v%d, s%d, v9" % (dst, S_T5))
    a("v_lshl_add_u32 v8, v5, 3, v6")
    addr(A_QA0, 8, 7, 4, S_T2, LDS_Q)
    a("v_add_u32 v30, 4, v8")
    addr(A_QA1, 30, 7, 4, S_T2, LDS_Q)
    a("v_add_u32 v31, s%d, v6" % S_T4)
    addr(A_QAT, 31, 7, 4, S_T3, LDS_Q)
    if attn:
        a("v_and_b32 v28, 1, v7")
        a("v_lshl_add_u32 v28, v4, 1, v28")
        a("v_lshrrev_b32 v29, 1, v7")
        addr(A_KA0, 8, 28, 29, S_T2, LDS_K)
        addr(A_KA1, 30, 28, 29, S_T2, LDS_K)
        addr(A_KAT, 31, 28, 29, S_T3, LDS_K)
    a("v_and_b32 v4, 31, v%d" % V_LANE)
    a("v_lshrrev_b32 v5, 5, v%d" % V_LANE)
    if attn:
        a("v_cmp_gt_u32_e64 s[%d:%d], 16, v4" % (S_M0, S_M0 + 1))
        a("s_sub_u32 s%d, s%d, 16" % (S_T5, S_T4))
        a("v_add_u32 v6, s%d, v4" % S_T5)
        a("v_and_b32 v6, 15, v6")
        a("v_cndmask_b32_e64 v6, v6, v4, s[%d:%d]" % (S_M0, S_M0 + 1))
        a("v_mov_b32 v7, s%d" % S_T3)
        a("v_mov_b32 v8, s%d" % S_T2)
        a("v_cndmask_b32_e64 v7, v7, v8, s[%d:%d]" % (S_M0, S_M0 + 1))
        for m in range(2):
            a("v_add_u32 v8, %d, v5" % (2 * m))
            a("v_lshl_add_u32 v9, v8, 2, v6")
            a("v_and_b32 v9, 15, v9")
            a("v_lshl_add_u32 v9, v8, 4, v9")
            a("v_lshl_add_u32 v9, v9, 4, v7")
            a("v_add_u32 v%d, %d, v9" % (A_VA0 + m, LDS_V))
    a("s_lshl_b32 s%d, s%d, 2" % (S_T1, S_G))
    a("s_add_u32 s%d, s%d, s%d" % (S_T1, S_T1, S_T0))
    a("s_lshl_b32 s%d, s%d, 3" % (S_T2, S_R))
    a("s_lshr_b32 s%d, s%d, 2" % (S_T3, S_WV))
    a("s_lshl_b32 s%d, s%d, 1" % (S_T3, S_T3))
    a("s_add_u32 s%d, s%d, s%d" % (S_T2, S_T2, S_T3))
    a("s_mul_i32 s%d, s%d, 20480" % (S_T2, S_T2))
    a("s_mul_i32 s%d, s%d, %d" % (S_T3, S_BR, O_BR))
    a("s_add_u32 s%d, s%d, s%d" % (S_T2, S_T2, S_T3))
    a("s_add_u32 s%d, s%d, %d" % (S_T2, S_T2, WS_O))
    a("v_lshrrev_b32 v6, 4, v4")
    a("s_movk_i32 s%d, 20480" % S_T3)
    a("v_mul_u32_u24 v6, s%d, v6" % S_T3)
    a("v_and_b32 v7, 15, v4")
    a("v_lshl_add_u32 v6, v7, 4, v6")
    a("v_add_u32 v6, s%d, v6" % S_T2)
    a("s_lshr_b32 s%d, s%d, 1" % (S_T3, S_T1))
    a("s_lshl_b32 s%d, s%d, 10" % (S_T3, S_T3))
    a("s_and_b32 s%d, s%d, 1" % (S_T4, S_T1))
    a("s_lshl_b32 s%d, s%d, 9" % (S_T4, S_T4))
    a("s_add_u32 s%d, s%d, s%d" % (S_T3, S_T3, S_T4))
    a("v_lshl_add_u32 v7, v5, 8, v6")
    a("v_add_u32 v%d, s%d, v7" % (A_OM, S_T3))
    a("s_lshr_b32 s%d, s%d, 3" % (S_T3, S_T1))
    a("s_add_u32 s%d, s%d, 16" % (S_T3, S_T3))
    a("s_lshl_b32 s%d, s%d, 10" % (S_T3, S_T3))
    a("s_and_b32 s%d, s%d, 6" % (S_T4, S_T1))
    a("s_lshl_b32 s%d, s%d, 7" % (S_T4, S_T4))
    a("s_add_u32 s%d, s%d, s%d" % (S_T3, S_T3, S_T4))
    a("s_and_b32 s%d, s%d, 1" % (S_T4, S_T1))
    a("s_lshl_b32 s%d, s%d, 3" % (S_T4, S_T4))
    a("s_add_u32 s%d, s%d, s%d" % (S_T3, S_T3, S_T4))
    a("v_add_u32 v%d, s%d, v6" % (A_OT, S_T3))
    a("s_mov_b32 s%d, 0" % S_HI); a("s_mov_b32 s%d, -1" % (S_HI + 1))
    a("s_mov_b32 s%d, -1" % S_LO); a("s_mov_b32 s%d, 0" % (S_LO + 1))

def q_frag_reads():
    return ["ds_read_b64_tr_b16 %s, v%d" % (vr(A_Q1, 2), A_QA0),
            "ds_read_b64_tr_b16 %s, v%d" % (vr(A_Q1 + 2, 2), A_QA1),
            "ds_read_b64_tr_b16 %s, v%d" % (vr(A_Q2, 2), A_QAT)]
def q_frag_fix(a):
    a("v_cndmask_b32_e64 v%d, v%d, 0, s[%d:%d]" % (A_Q2, A_Q2, S_HI, S_HI + 1))
    a("v_cndmask_b32_e64 v%d, v%d, 0, s[%d:%d]" % (A_Q2 + 1, A_Q2 + 1, S_HI, S_HI + 1))

def o_epilogue(a, eps=False):
    O = A_O
    a("v_cndmask_b32_e64 v30, v%d, v%d, s[%d:%d]" % (O + 12, O + 8, S_HI, S_HI + 1))
    if eps: a("v_add_f32 v30, 0x%x, v30" % f2u(1e-6))
    a("v_rcp_f32 v30, v30")
    a("s_nop 0")
    for k in range(0, 12, 2):
        a("v_pk_mul_f32 %s, %s, v[30:31] op_sel_hi:[1,0]" % (vr(O + k, 2), vr(O + k, 2)))
    for k in range(6): a("v_cvt_pk_bf16_f32 v%d, v%d, v%d" % (O + k, O + 2 * k, O + 2 * k + 1))
    for fl in ([ST, ""] if 'dbl' in OPT else [ST]):
        a("buffer_store_dwordx4 %s, v%d, s[%d:%d], 0 offen %s" % (vr(O, 4), A_OM, S_WS, S_WS + 3, fl))
        a("s_mov_b64 exec, s[%d:%d]" % (S_LO, S_LO + 1))
        a("buffer_store_dwordx2 %s, v%d, s[%d:%d], 0 offen %s" % (vr(O + 4, 2), A_OT, S_WS, S_WS + 3, fl))
        a("s_mov_b64 exec, -1")

def attn_setup(a):
    p2_common_setup(a, True)
    for r in range(16):
        lo, hi = diag_mask(r)
        a("s_mov_b32 s%d, 0x%x" % (S_MASK + 2 * r, lo)); a("s_mov_b32 s%d, 0x%x" % (S_MASK + 2 * r + 1, hi))
    a("v_mov_b32 v30, 0xffff")
    a("v_mov_b32 v31, 0xffff0000")
    for k in range(8):
        a("v_cndmask_b32_e64 v4, 0, v30, s[%d:%d]" % (S_MASK + 4 * k, S_MASK + 4 * k + 1))
        a("v_cndmask_b32_e64 v5, 0, v31, s[%d:%d]" % (S_MASK + 4 * k + 2, S_MASK + 4 * k + 3))
        a("v_or_b32 v%d, v4, v5" % (A_AM + k))
    a("v_mov_b32 v4, 0x3f803f80")
    for k in range(24): a("v_mov_b32 v%d, v4" % (A_VB + k))
    for b in range(3):
        a("v_mov_b32 v%d, 0" % (A_KB + 8 * b + 6)); a("v_mov_b32 v%d, 0" % (A_KB + 8 * b + 7))
    a("v_mov_b32 v%d, 0" % (A_Q2 + 2)); a("v_mov_b32 v%d, 0" % (A_Q2 + 3))
    a("s_mov_b32 s%d, 0x000fffff" % S_EXV); a("s_mov_b32 s%d, 0x000fffff" % (S_EXV + 1))

def k_reads(tau, buf):
    b = A_KB + 8 * buf
    return ["ds_read_b64_tr_b16 %s, v%d offset:%d" % (vr(b, 2), A_KA0, tau * 5120),
            "ds_read_b64_tr_b16 %s, v%d offset:%d" % (vr(b + 2, 2), A_KA1, tau * 5120),
            "ds_read_b64_tr_b16 %s, v%d offset:%d" % (vr(b + 4, 2), A_KAT, tau * 5120)]
def v_reads(tau, buf):
    b = A_VB + 8 * buf
    return ["s_mov_b64 exec, s[%d:%d]" % (S_EXV, S_EXV + 1),
            "ds_read_b128 %s, v%d offset:%d" % (vr(b, 4), A_VA0, tau * 5120),
            "ds_read_b128 %s, v%d offset:%d" % (vr(b + 4, 4), A_VA1, tau * 5120),
            "s_mov_b64 exec, -1"]

def attn_unit(a, stubs, mid, qk_extra):
    S = lambda t: A_S + 16 * t
    order = [8, 0, 1, 2, 3, 4, 5, 6, 7]
    emit(a, q_frag_reads())
    emit(a, k_reads(order[0], 0)); emit(a, k_reads(order[1], 1))
    a("s_waitcnt lgkmcnt(6)")
    q_frag_fix(a)
    accs = [28, 29, 30, 31]
    acc_init = [False] * 4
    def max_ops(base):
        L = []
        for k in range(0, 16, 2):
            ai = (k // 2) % 4
            if not acc_init[ai]:
                L.append("v_max_f32 v%d, v%d, v%d" % (accs[ai], base + k, base + k + 1)); acc_init[ai] = True
            else:
                L.append("v_max3_f32 v%d, v%d, v%d, v%d" % (accs[ai], base + k, base + k + 1, accs[ai]))
        return L
    merge = ["v_cndmask_b32_e64 v%d, v%d, v%d, s[%d:%d]" % (S(0) + r, S(0) + r, S(8) + r, S_MASK + 2 * r, S_MASK + 2 * r + 1) for r in range(16)]
    for idx, tau in enumerate(order):
        buf = idx % 3
        if idx + 2 < 9: emit(a, k_reads(order[idx + 2], (idx + 2) % 3))
        a("s_waitcnt lgkmcnt(%d)" % (3 * min(2, 8 - idx)))
        kb = A_KB + 8 * buf
        if tau < 8:
            lf, lr = a.newlabel("fill"), a.newlabel("fret")
            a("s_cmp_gt_u32 s%d, %d" % (S_TAU0, tau))
            a("s_cbranch_scc1 %s" % lf)
            stubs.append((lf, lr, S(tau)))
        work = []
        if idx == 3: work = merge[:]
        if idx == 4: work = max_ops(S(0))
        if idx >= 5: work = max_ops(S(order[idx - 3]))
        a(mfma32(S(tau), kb, A_Q1, "0"))
        a(mfma32(S(tau), kb + 4, A_Q2))
        if tau < 8: a.label(lr)
        emit(a, qk_extra.get(idx))
        emit(a, work)
    emit(a, max_ops(S(5)))
    emit(a, max_ops(S(6)))
    emit(a, mid)
    emit(a, v_reads(8, 0)); emit(a, v_reads(0, 1))
    emit(a, max_ops(S(7)))
    a("v_max3_f32 v28, v28, v29, v30")
    a("v_max_f32 v28, v28, v31")
    a("v_mov_b32 v29, v28")
    a("s_nop 1")
    a("v_permlane32_swap_b32 v28, v29")
    a("s_nop 1")
    a("v_max_f32 v28, v28, v29")
    def sm_ops(base):
        L = ["v_pk_add_f32 %s, %s, v[28:29] op_sel_hi:[1,0] neg_lo:[0,1] neg_hi:[0,1]" % (vr(base + k, 2), vr(base + k, 2)) for k in range(0, 16, 2)]
        E = [["v_exp_f32 v%d, v%d" % (base + k, base + k), "v_exp_f32 v%d, v%d" % (base + k + 1, base + k + 1)] for k in range(0, 16, 2)]
        out = L[:2]
        for k in range(8):
            out += E[k]
            if k + 2 < 8: out.append(L[k + 2])
            if k >= 1: out.append("v_cvt_pk_bf16_f32 v%d, v%d, v%d" % (base + k - 1, base + 2 * (k - 1), base + 2 * (k - 1) + 1))
        out.append("s_nop 0")
        out.append("v_cvt_pk_bf16_f32 v%d, v%d, v%d" % (base + 7, base + 14, base + 15))
        return out
    emit(a, sm_ops(S(0)))
    for k in range(8): a("v_and_b32 v%d, v%d, v%d" % (S(0) + 8 + k, S(0) + k, A_AM + k))
    for k in range(8): a("v_xor_b32 v%d, v%d, v%d" % (S(0) + k, S(0) + k, S(0) + 8 + k))
    a("s_waitcnt lgkmcnt(0)")
    emit(a, v_reads(1, 2))
    def guarded(mms, tau):
        def f(a):
            l = a.newlabel("pvs")
            a("s_cmp_gt_u32 s%d, %d" % (S_TAU0, tau))
            a("s_cbranch_scc1 %s" % l)
            for x in mms: a(x)
            a.label(l)
        return f
    pv = [mfma32(A_O, A_VB + 0, S(0) + 8, "0"), mfma32(A_O, A_VB + 4, S(0) + 12),
          guarded([mfma32(A_O, A_VB + 8, S(0)), mfma32(A_O, A_VB + 12, S(0) + 4)], 0)]
    for tau in range(1, 8):
        vb = (tau + 1) % 3
        sm = sm_ops(S(tau))
        n, m, done = len(sm), len(pv), 0
        for i, x in enumerate(sm):
            emit(a, x)
            want = min(m, ((i + 1) * m + n // 2) // n) if i >= 1 else 0
            while done < want:
                emit(a, pv[done]); done += 1
        while done < m:
            emit(a, pv[done]); done += 1
        a("s_waitcnt lgkmcnt(0)")
        if tau + 1 < 8: emit(a, v_reads(tau + 1, (tau + 2) % 3))
        b = A_VB + 8 * vb
        pv = [guarded([mfma32(A_O, b, S(tau)), mfma32(A_O, b + 4, S(tau) + 4)], tau)]
    a("s_nop 1")
    emit(a, pv)
    a("s_nop 15")
    o_epilogue(a)

def round_advance(a, attn=True):
    for v in ((A_KA0, A_KA1, A_KAT, A_VA0, A_VA1) if attn else ()) + (A_QA0, A_QA1, A_QAT):
        a("v_add_u32 v%d, %d, v%d" % (v, 2 * 5120, v))
    a("v_add_u32 v%d, %d, v%d" % (A_OM, 4 * 20480, A_OM))
    a("v_add_u32 v%d, %d, v%d" % (A_OT, 4 * 20480, A_OT))

def set_tau0(a):
    a("s_lshl_b32 s%d, s%d, 2" % (S_T0, S_R))
    a("s_lshr_b32 s%d, s%d, 2" % (S_T1, S_WV))
    a("s_add_u32 s%d, s%d, s%d" % (S_T0, S_T0, S_T1))
    a("s_add_u32 s%d, s%d, s%d" % (S_T0, S_T0, S_DB))
    a("s_sub_i32 s%d, 8, s%d" % (S_TAU0, S_T0))
    a("s_max_i32 s%d, s%d, 0" % (S_TAU0, S_TAU0))

def emit_stubs(a, stubs):
    for lf, lr, base in stubs:
        a.label(lf)
        a("v_mov_b32 v%d, 0x%x" % (base, NEG_BIG))
        for k in range(1, 16): a("v_mov_b32 v%d, v%d" % (base + k, base))
        a("s_branch %s" % lr)

def kv_params(a):
    a("s_lshl_b32 s%d, s%d, 6" % (S_T0, S_G))
    a("s_lshl_b32 s%d, s%d, 2" % (S_T1, S_R))
    a("s_add_u32 s%d, s%d, s%d" % (S_T0, S_T0, S_T1))
    a("s_sub_i32 s%d, s%d, 8" % (S_T0, S_T0))
    a("s_mul_i32 s%d, s%d, 5120" % (S_T0, S_T0))
    a("s_lshl_b32 s%d, s%d, 10" % (S_KV1, S_WV))
    a("s_add_u32 s%d, s%d, s%d" % (S_KV0, S_T0, S_KV1))
    a("s_lshl_b32 s%d, s%d, 2" % (S_T3, S_R))
    a("s_sub_i32 s%d, 8, s%d" % (S_T3, S_T3))
    a("s_max_i32 s%d, s%d, 0" % (S_T3, S_T3))
    a("s_mul_i32 s%d, s%d, 5120" % (S_KV2, S_T3))
    a("v_lshlrev_b32 v%d, 4, v%d" % (A_L16, V_LANE))

def kv_load(tensor, k):
    def f(a):
        l = a.newlabel("kvl")
        a("s_add_u32 s%d, s%d, %d" % (S_T4, S_KV1, k * 8192))
        a("s_cmp_lt_u32 s%d, s%d" % (S_T4, S_KV2))
        a("s_cbranch_scc1 %s" % l)
        if k == 7:
            a("s_cmp_ge_u32 s%d, 61440" % S_T4)
            a("s_cbranch_scc1 %s" % l)
        a("s_add_u32 m0, s%d, %d" % (S_T4, LDS_K if tensor == 0 else LDS_V))
        a("s_add_u32 s%d, s%d, %d" % (S_OFF, S_KV0, WS_KV + tensor * 8 * 64 * 5120 + k * 8192))
        a("buffer_load_dwordx4 v%d, s[%d:%d], s%d offen %s lds" % (A_L16, S_WS, S_WS + 3, S_OFF, LD))
        a.label(l)
    return f

def oa_flag_off(a, dst, half_):
    a("s_lshl_b32 s%d, s%d, 1" % (dst, S_R))
    a("s_add_u32 s%d, s%d, %d" % (dst, dst, half_))
    a("s_lshl_b32 s%d, s%d, 3" % (dst, dst))
    a("s_add_u32 s%d, s%d, s%d" % (dst, dst, S_G))
    a("s_lshl_b32 s%d, s%d, 5" % (dst, dst))
    a("s_add_u32 s%d, s%d, s%d" % (dst, dst, S_WV))
    a("s_lshl_b32 s%d, s%d, 2" % (dst, dst))
    a("s_add_u32 s%d, s%d, %d" % (dst, dst, F_OA))

def phase2A(a, stubs):
    attn_setup(a)
    kv_params(a)
    a("v_and_b32 v7, 3, v%d" % V_LANE)
    a("v_lshlrev_b32 v7, 7, v7")
    a("v_lshrrev_b32 v8, 2, v%d" % V_LANE)
    a("v_lshlrev_b32 v8, 12, v8")
    a("v_sub_u32 v7, v8, v7")
    a("s_and_b32 s%d, s%d, 4" % (S_T0, S_G))
    a("s_and_b32 s%d, s%d, 3" % (S_T1, S_G))
    a("s_lshr_b32 s%d, s%d, 1" % (S_T1, S_T1))
    a("s_add_u32 s%d, s%d, s%d" % (S_T0, S_T0, S_T1))
    a("s_lshl_b32 s%d, s%d, 4" % (S_T0, S_T0))
    a("s_add_u32 s%d, s%d, s%d" % (S_T0, S_T0, S_R))
    a("s_lshl_b32 s%d, s%d, 7" % (S_T0, S_T0))
    a("s_add_u32 s%d, s%d, %d" % (S_T0, S_T0, F_KV))
    a("v_add_u32 v7, s%d, v7" % S_T0)
    a("s_min_u32 s%d, s%d, 2" % (S_T1, S_R))
    a("s_lshl_b32 s%d, 2, s%d" % (S_T1, S_T1))
    a("s_sub_u32 s%d, s%d, 1" % (S_T1, S_T1))
    a("s_mul_i32 s%d, s%d, 17" % (S_T1, S_T1))
    a("s_mov_b32 s%d, 0" % S_T2)
    stamp(a, "aset")
    poll(a, 7, S_T2, "s%d" % S_T1, "0")
    a("s_mov_b32 s%d, 0x000fffff" % S_EXV); a("s_mov_b32 s%d, 0x000fffff" % (S_EXV + 1))
    a("s_waitcnt lgkmcnt(0)")
    a("s_barrier")
    stamp(a, "poll1")
    emit(a, [kv_load(0, k) for k in range(8)])
    a("s_waitcnt vmcnt(0)")
    a("s_barrier")
    stamp(a, "kvld")
    for rnd in range(2):
        a("s_mov_b32 s%d, %d" % (S_DB, 2 * rnd))
        set_tau0(a)
        if rnd == 0:
            def mid(a):
                a("s_waitcnt vmcnt(0)")
                a("s_barrier")
                stamp(a, "vld")
            qk_extra = {i: kv_load(1, i - 0) for i in range(8)}
        else:
            def mid(a):
                a("s_waitcnt vmcnt(0)")
                oa_flag_off(a, S_T0, 0)
                publish(a, S_T0, None)
            qk_extra = {}
        attn_unit(a, stubs, mid, qk_extra)
        stamp(a, "rnd%d" % rnd)
        if rnd == 0: round_advance(a)

def apply_phase(a):
    piece_decode(a)
    a("v_cmp_gt_u32_e64 s[%d:%d], 21, v7" % (S_M0, S_M0 + 1))
    a("v_cmp_gt_u32_e64 s[%d:%d], 5, v6" % (S_M1, S_M1 + 1))
    a("s_lshl_b32 s%d, s%d, 17" % (S_T0, S_G))
    a("s_lshr_b32 s%d, s%d, 1" % (S_T1, S_WV))
    a("s_lshl_b32 s%d, s%d, 11" % (S_T1, S_T1))
    a("s_add_u32 s%d, s%d, s%d" % (S_T0, S_T0, S_T1))
    a("s_add_u32 s%d, s%d, %d" % (S_T0, S_T0, WS_PART))
    a("v_lshlrev_b32 v5, 4, v5")
    a("s_and_b64 s[%d:%d], s[%d:%d], s[%d:%d]" % (S_M0, S_M0 + 1, S_M0, S_M0 + 1, S_M1, S_M1 + 1))
    P = A_S
    a("s_mov_b64 exec, s[%d:%d]" % (S_M0, S_M0 + 1))
    for r in range(16):
        a("s_add_u32 s%d, s%d, %d" % (S_OFF, S_T0, r * 8192))
        a("buffer_load_dwordx4 %s, v5, s[%d:%d], s%d offen %s" % (vr(P + 4 * r, 4), S_WS, S_WS + 3, S_OFF, LD))
    a("s_mov_b64 exec, -1")
    a("v_add_u32 v%d, %d, v5" % (A_O, LDS_KVR))
    a("v_add_u32 v%d, s%d, v%d" % (A_O, S_T1, A_O))
    a("s_mov_b64 s[%d:%d], s[%d:%d]" % (S_MASK, S_MASK + 1, S_M0, S_M0 + 1))
    p2_common_setup(a, False)
    a("v_mov_b32 v%d, 0" % (A_Q2 + 2)); a("v_mov_b32 v%d, 0" % (A_Q2 + 3))
    a("v_and_b32 v4, 31, v%d" % V_LANE)
    a("v_min_u32 v4, 20, v4")
    a("v_lshrrev_b32 v5, 5, v%d" % V_LANE)
    a("v_mul_u32_u24 v6, 48, v5")
    a("v_add_u32 v6, v6, v4")
    a("s_and_b32 s%d, s%d, 3" % (S_T0, S_WV))
    a("s_lshl_b32 s%d, s%d, 11" % (S_T0, S_T0))
    a("s_add_u32 s%d, s%d, %d" % (S_T0, S_T0, LDS_KVR))
    a("v_lshlrev_b32 v6, 4, v6")
    a("v_add_u32 v6, s%d, v6" % S_T0)
    a("v_lshlrev_b32 v7, 4, v4")
    a("v_add_u32 v7, s%d, v7" % S_T0)
    a("s_waitcnt vmcnt(0)")
    for st in (8, 4, 2, 1):
        for r in range(st):
            for k in (0, 2):
                a("v_pk_add_f32 %s, %s, %s" % (vr(P + 4 * r + k, 2), vr(P + 4 * r + k, 2), vr(P + 4 * (r + st) + k, 2)))
    a("s_mov_b64 exec, s[%d:%d]" % (S_MASK, S_MASK + 1))
    a("ds_write_b128 v%d, %s" % (A_O, vr(P, 4)))
    a("s_mov_b64 exec, -1")
    a("s_waitcnt lgkmcnt(0)")
    a("s_barrier")
    stamp(a, "kvred")
    F = A_KB
    a("ds_read_b128 %s, v6" % vr(F, 4))
    a("ds_read_b128 %s, v6 offset:%d" % (vr(F + 4, 4), 24 * 16))
    a("ds_read_b128 %s, v7 offset:%d" % (vr(F + 8, 4), 4 * 24 * 16))
    emit(a, q_frag_reads())
    a("s_waitcnt lgkmcnt(3)")
    KV1, KV2 = A_VB, A_VB + 4
    for k in range(4): a("v_cvt_pk_bf16_f32 v%d, v%d, v%d" % (KV1 + k, F + 2 * k, F + 2 * k + 1))
    for k in range(2): a("v_cvt_pk_bf16_f32 v%d, v%d, v%d" % (KV2 + k, F + 8 + 2 * k, F + 9 + 2 * k))
    a("v_mov_b32 v%d, 0" % (KV2 + 2)); a("v_mov_b32 v%d, 0" % (KV2 + 3))
    for rnd in range(2):
        a("s_waitcnt lgkmcnt(0)")
        q_frag_fix(a)
        a("s_nop 1")
        a(mfma32(A_O, KV1, A_Q1, "0"))
        a(mfma32(A_O, KV2, A_Q2))
        if rnd == 0:
            round_advance(a, False) if False else None
            for v in (A_QA0, A_QA1, A_QAT): a("v_add_u32 v%d, %d, v%d" % (v, 2 * 5120, v))
            emit(a, q_frag_reads())
            a("s_nop 9")
        else:
            a("s_nop 15")
        o_epilogue(a, eps=True)
        if rnd == 0:
            a("v_add_u32 v%d, %d, v%d" % (A_OM, 4 * 20480, A_OM))
            a("v_add_u32 v%d, %d, v%d" % (A_OT, 4 * 20480, A_OT))

C_DMA = 10
C_WA, C_WT, C_OF, C_OUT, C_XA = 20, 21, 22, 23, 24
C_O = 32
C_WB = 112
C_ACC = 172
C_R = 212

def p3_dma_setup(a):
    a("s_mul_i32 s%d, s%d, 160" % (S_T0, S_G))
    a("s_movk_i32 s%d, 6554" % S_T2)
    a("s_movk_i32 s%d, 1280" % S_T3)
    for j in range(5):
        a("v_add_u32 v4, %d, v%d" % (64 * j, V_LANE))
        a("v_mul_u32_u24 v8, s%d, v4" % S_T2)
        a("v_lshrrev_b32 v8, 16, v8")
        a("v_mul_u32_u24 v9, 10, v8")
        a("v_sub_u32 v9, v4, v9")
        a("v_mul_u32_u24 v8, s%d, v8" % S_T3)
        a("v_lshl_add_u32 v8, v9, 4, v8")
        a("v_add_u32 v%d, s%d, v8" % (C_DMA + j, S_T0))

def p3_setup(a):
    a("s_mul_i32 s%d, s%d, 160" % (S_T0, S_G))
    a("v_lshrrev_b32 v4, 1, v%d" % V_KG)
    a("v_and_b32 v5, 1, v%d" % V_KG)
    a("v_lshrrev_b32 v6, 2, v%d" % V_N)
    a("v_and_b32 v7, 3, v%d" % V_N)
    a("v_mul_u32_u24 v8, 20, v4")
    a("v_lshl_add_u32 v8, v5, 2, v8")
    a("v_add_u32 v8, v8, v6")
    a("s_movk_i32 s%d, 160" % S_T1)
    a("v_mul_u32_u24 v8, s%d, v8" % S_T1)
    a("v_lshl_add_u32 v8, v7, 3, v8")
    a("s_mul_i32 s%d, s%d, 51200" % (S_T2, S_CS))
    a("v_add_u32 v%d, s%d, v8" % (C_WA, S_T2))
    a("v_mul_u32_u24 v8, 40, v%d" % V_KG)
    a("v_add3_u32 v8, v8, v6, 16")
    a("v_mul_u32_u24 v8, s%d, v8" % S_T1)
    a("v_lshl_add_u32 v8, v7, 3, v8")
    a("v_add_u32 v%d, s%d, v8" % (C_WT, S_T2))
    a("v_lshlrev_b32 v%d, 4, v%d" % (C_OF, V_LANE))
    a("s_lshl_b32 s%d, s%d, 4" % (S_T2, S_RG))
    a("v_add_u32 v8, s%d, v%d" % (S_T2, V_N))
    a("s_movk_i32 s%d, 2560" % S_T2)
    a("v_mul_u32_u24 v8, s%d, v8" % S_T2)
    a("v_lshl_add_u32 v8, v%d, 3, v8" % V_KG)
    a("v_add_u32 v%d, s%d, v8" % (C_OUT, S_T0))
    a("s_mul_i32 s%d, s%d, 10240" % (S_T2, S_RG))
    a("s_add_u32 s%d, s%d, %d" % (S_T2, S_T2, XCH3))
    a("v_add_u32 v%d, s%d, v%d" % (C_XA, S_T2, C_OF))

def wo_block(a, srd_wo):
    a("s_mul_i32 s%d, s%d, %d" % (S_OFF, S_T0, 32 * 1280))
    a("s_mul_i32 s%d, s%d, 5120" % (S_T0, S_T0))
    for j in range(5):
        a("s_add_u32 m0, s%d, %d" % (S_T0, j * 1024))
        a("s_nop 0")
        a("buffer_load_dwordx4 v%d, s[%d:%d], s%d offen %s lds" % (C_DMA + j, srd_wo, srd_wo + 3, S_OFF, DML))

def wo_load(a, srd_wo, skip0=False, first=0):
    nw = 7 if skip0 else 8
    nb = 20 - first
    for k in range((nb + nw - 1) // nw):
        l = a.newlabel("wol")
        if skip0:
            a("s_cmp_eq_u32 s%d, 0" % S_WV)
            a("s_cbranch_scc1 %s" % l)
        a("s_add_u32 s%d, s%d, %d" % (S_T0, S_WV, first + nw * k))
        if skip0: a("s_sub_u32 s%d, s%d, 1" % (S_T0, S_T0))
        if first + nw * k + nw > 20:
            a("s_cmp_ge_u32 s%d, 20" % S_T0)
            a("s_cbranch_scc1 %s" % l)
        wo_block(a, srd_wo)
        a.label(l)

def p3_oloads(a, br, s_row0, k):
    a("s_lshr_b32 s%d, s%d, 4" % (S_T0, s_row0))
    a("s_add_u32 s%d, s%d, s%d" % (S_T0, S_T0, S_RG))
    a("s_add_u32 s%d, s%d, %d" % (S_T0, S_T0, 4 * k))
    a("s_mul_i32 s%d, s%d, 20480" % (S_T0, S_T0))
    a("s_add_u32 s%d, s%d, %d" % (S_T0, S_T0, WS_O + br * O_BR))
    a("s_lshl_b32 s%d, s%d, 13" % (S_T1, S_CS))
    a("s_add_u32 s%d, s%d, s%d" % (S_T1, S_T1, S_T0))
    for i in range(8):
        a("s_add_u32 s%d, s%d, %d" % (S_OFF, S_T1, i * 1024))
        a("buffer_load_dwordx4 %s, v%d, s[%d:%d], s%d offen %s" % (vr(C_O + 40 * k + 4 * i, 4), C_OF, S_WS, S_WS + 3, S_OFF, LD))
    a("s_lshl_b32 s%d, s%d, 11" % (S_T1, S_CS))
    a("s_add_u32 s%d, s%d, s%d" % (S_T1, S_T1, S_T0))
    for i in range(2):
        a("s_add_u32 s%d, s%d, %d" % (S_OFF, S_T1, (16 + i) * 1024))
        a("buffer_load_dwordx4 %s, v%d, s[%d:%d], s%d offen %s" % (vr(C_O + 40 * k + 32 + 4 * i, 4), C_OF, S_WS, S_WS + 3, S_OFF, LD))

def p3_wreads(i):
    wb = C_WB + 20 * (i % 3)
    L = []
    for T in range(5):
        for rd in range(2):
            if i < 8: L.append("ds_read_b64_tr_b16 %s, v%d offset:%d" % (vr(wb + 4 * T + 2 * rd, 2), C_WA, i * 6400 + rd * 1280 + 32 * T))
            else: L.append("ds_read_b64_tr_b16 %s, v%d offset:%d" % (vr(wb + 4 * T + 2 * rd, 2), C_WT, (i - 8) * 25600 + rd * 3200 + 32 * T))
    return L

def p3_mm(a, sets, vm_after, extra={}):
    lq = LQ(a)
    ids = {}
    ids[0] = [lq.issue(x) for x in p3_wreads(0)]
    ids[1] = [lq.issue(x) for x in p3_wreads(1)]
    for i in range(10):
        wb = C_WB + 20 * (i % 3)
        rd = p3_wreads(i + 2) if i + 2 < 10 else []
        ids[i + 2] = []
        n = vm_after(i)
        if n is not None: a("s_waitcnt vmcnt(%d)" % n)
        emit(a, extra.get(i))
        mm = [(T, mfma16(C_ACC + 20 * k + 4 * T, wb + 4 * T, C_O + 40 * sets[k] + 4 * i, "0" if i == 0 else None)) for T in range(5) for k in range(len(sets))]
        per = (len(rd) + len(mm) - 1) // len(mm) if rd else 0
        for (T, m) in mm:
            lq.need(ids[i][2 * T + 1])
            a(m)
            for _ in range(per):
                if rd: ids[i + 2].append(lq.issue(rd.pop(0)))

XCH3 = 102400
OTILE = 0
def p3_epilogue(a, br, s_row0, nset):
    npieces = 640 * nset
    nround = (npieces + 511) // 512
    last_waves = (npieces - 512 * (nround - 1)) // 64
    def send(tiles):
        def f(a):
            for k in range(nset):
                for T in tiles:
                    a("ds_write_b128 v%d, %s offset:%d" % (C_XA, vr(C_ACC + 20 * k + 4 * T, 4), k * 5120 + T * 1024))
        return f
    a("s_lshl_b32 s%d, s%d, 4" % (S_T0, S_RG))
    a("v_add_u32 v4, s%d, v%d" % (S_T0, V_N))
    a("s_movk_i32 s%d, 176" % S_T1)
    a("v_mul_u32_u24 v4, s%d, v4" % S_T1)
    a("v_lshl_add_u32 v4, v%d, 3, v4" % V_KG)
    a("s_nop 3")
    role_branch(a, send([3, 4]), send([0, 1, 2]))
    a("s_lshl_b32 s%d, s%d, 6" % (S_T0, S_WV))
    a("v_add_u32 v5, s%d, v%d" % (S_T0, V_LANE))
    a("s_movk_i32 s%d, 6554" % S_T2)
    a("s_movk_i32 s%d, 2560" % S_T3)
    a("s_mul_i32 s%d, s%d, 160" % (S_T4, S_G))
    for m in range(nround):
        a("v_add_u32 v6, %d, v5" % (512 * m))
        a("v_mul_u32_u24 v7, s%d, v6" % S_T2)
        a("v_lshrrev_b32 v7, 16, v7")
        a("v_mul_u32_u24 v8, 10, v7")
        a("v_sub_u32 v8, v6, v8")
        a("v_mul_u32_u24 v9, s%d, v7" % S_T1)
        a("v_lshl_add_u32 v%d, v8, 4, v9" % (C_R + m))
        a("v_mul_u32_u24 v9, s%d, v7" % S_T3)
        a("v_lshl_add_u32 v9, v8, 4, v9")
        a("v_add_u32 v%d, s%d, v9" % (C_R + 4 + m, S_T4))
    a("s_waitcnt lgkmcnt(0)")
    a("s_barrier")
    def recv(tiles):
        def f(a):
            for k in range(nset):
                for n_, T in enumerate(tiles):
                    a("ds_read_b128 %s, v%d offset:%d" % (vr(C_WB + 12 * k + 4 * n_, 4), C_XA, k * 5120 + T * 1024))
            a("s_waitcnt lgkmcnt(0)")
            for k in range(nset):
                for n_, T in enumerate(tiles):
                    d = C_ACC + 20 * k + 4 * T
                    r = C_WB + 12 * k + 4 * n_
                    for q in (0, 2): a("v_pk_add_f32 %s, %s, %s" % (vr(d + q, 2), vr(d + q, 2), vr(r + q, 2)))
                    a("v_cvt_pk_bf16_f32 v%d, v%d, v%d" % (d, d, d + 1))
                    a("v_cvt_pk_bf16_f32 v%d, v%d, v%d" % (d + 1, d + 2, d + 3))
                    a("ds_write_b64 v4, %s offset:%d" % (vr(d, 2), OTILE + k * 64 * 176 + 32 * T))
        return f
    role_branch(a, recv([0, 1, 2]), recv([3, 4]))
    a("s_mul_i32 s%d, s%d, 2560" % (S_T0, s_row0))
    a("s_add_u32 s%d, s%d, %d" % (S_T0, S_T0, br * 1280))
    a("s_waitcnt lgkmcnt(0)")
    a("s_barrier")
    for m in range(nround):
        l = a.newlabel("fr")
        if m == nround - 1 and last_waves < 8:
            a("s_cmp_ge_u32 s%d, %d" % (S_WV, last_waves))
            a("s_cbranch_scc1 %s" % l)
        a("ds_read_b128 %s, v%d offset:%d" % (vr(C_O + 4 * m, 4), C_R + m, OTILE))
        a.label(l)
    a("s_waitcnt lgkmcnt(0)")
    for m in range(nround):
        l = a.newlabel("fs")
        if m == nround - 1 and last_waves < 8:
            a("s_cmp_ge_u32 s%d, %d" % (S_WV, last_waves))
            a("s_cbranch_scc1 %s" % l)
        a("buffer_store_dwordx4 %s, v%d, s[%d:%d], s%d offen %s" % (vr(C_O + 4 * m, 4), C_R + 4 + m, S_OUT, S_OUT + 3, S_T0, OUTST))
        a.label(l)
assert all((p * 6554) >> 16 == p // 10 for p in range(1536))

def poll_oa(a, half_):
    a("v_lshrrev_b32 v7, 3, v%d" % V_LANE)
    a("v_and_b32 v8, 7, v%d" % V_LANE)
    a("v_lshlrev_b32 v7, 7, v7")
    a("v_lshl_add_u32 v7, v8, 2, v7")
    a("s_lshl_b32 s%d, s%d, 1" % (S_T0, S_R))
    a("s_add_u32 s%d, s%d, %d" % (S_T0, S_T0, half_))
    a("s_lshl_b32 s%d, s%d, 10" % (S_T0, S_T0))
    a("s_add_u32 s%d, s%d, %d" % (S_T0, S_T0, F_OA))
    poll(a, 7, S_T0, "-1", "-1")

S_JR = S_DB
def phase3A(a):
    p3_dma_setup(a)
    p3_setup(a)
    a("s_waitcnt vmcnt(0)")
    oa_flag_off(a, S_T0, 1)
    publish(a, S_T0, None)
    poll_oa(a, 0)
    a("s_barrier")
    stamp(a, "attn")
    a("s_lshl_b32 s%d, s%d, 7" % (S_JR, S_R))
    p3_oloads(a, 0, S_JR, 0)
    wo_load(a, S_WO)
    a("s_waitcnt vmcnt(0)")
    a("s_barrier")
    stamp(a, "j0a")
    p3_mm(a, [0], lambda i: None)
    stamp(a, "j1a")
    p3_epilogue(a, 0, S_JR, 1)
    stamp(a, "j2a")

def phaseB(a):
    a("v_lshlrev_b32 v7, 7, v%d" % V_LANE)
    a("s_lshl_b32 s%d, s%d, 11" % (S_T0, S_G))
    a("s_add_u32 s%d, s%d, %d" % (S_T0, S_T0, F_PART))
    poll(a, 7, S_T0, "0xffff", "0")
    a("s_waitcnt lgkmcnt(0)")
    a("s_barrier")
    stamp(a, "poll1")
    apply_phase(a)
    stamp(a, "kvld")
    p3_setup(a)
    a("s_waitcnt vmcnt(0)")
    a("s_barrier")
    a("s_lshl_b32 s%d, s%d, 3" % (S_T0, S_R))
    a("s_add_u32 s%d, s%d, s%d" % (S_T0, S_T0, S_G))
    a("s_lshl_b32 s%d, s%d, 7" % (S_T0, S_T0))
    a("s_add_u32 s%d, s%d, %d" % (S_T0, S_T0, F_OB))
    publish(a, S_T0, 0)
    stamp(a, "attn")
    a("v_lshlrev_b32 v7, 7, v%d" % V_LANE)
    a("s_lshl_b32 s%d, s%d, 10" % (S_T0, S_R))
    a("s_add_u32 s%d, s%d, %d" % (S_T0, S_T0, F_OB))
    poll(a, 7, S_T0, "0xff", "0")
    a("s_barrier")
    stamp(a, "j0b")
    a("s_lshl_b32 s%d, s%d, 7" % (S_JR, S_R))
    p3_oloads(a, 1, S_JR, 0)
    p3_oloads(a, 1, S_JR, 1)
    p3_mm(a, [0, 1], lambda i: 9 - i)
    stamp(a, "j1b")
    p3_epilogue(a, 1, S_JR, 2)
    stamp(a, "j2b")
    a("s_barrier")
    wo_load(a, S_WO, skip0=True)
    poll_oa(a, 1)
    a("s_waitcnt vmcnt(0)")
    a("s_barrier")
    stamp(a, "j0a")
    a("s_lshl_b32 s%d, s%d, 7" % (S_JR, S_R))
    a("s_add_u32 s%d, s%d, 64" % (S_JR, S_JR))
    p3_oloads(a, 0, S_JR, 0)
    p3_mm(a, [0], lambda i: 9 - i)
    stamp(a, "j1a")
    p3_epilogue(a, 0, S_JR, 1)
    stamp(a, "j2a")

def epoch_update(a):
    l = a.newlabel("ep")
    a("s_cmp_eq_u32 s2, 0")
    a("s_cbranch_scc0 %s" % l)
    a("v_lshlrev_b32 v7, 7, v%d" % V_LANE)
    for k in range(4):
        a("s_mov_b32 s%d, %d" % (S_T0, F_KV + k * 64 * 128))
        poll(a, 7, S_T0, "-1", "-1")
    a("s_mov_b32 s%d, %d" % (S_T0, WS_FLAG))
    publish(a, S_T0, 0)
    a.label(l)

HEADER = """; sliding-window attention block + linear attention block, one fused launch (generated by gen3.py)
"""
def build():
    out = [HEADER, "; @launch grid=(256,1,1) block=(512,1,1) lds=163840\n"]
    out.append('.amdgcn_target "amdgcn-amd-amdhsa--gfx950"\n.text\n')
    a = Asm()
    stubs = []
    entry(a)
    phase1(a)
    if 'p1only' in OPT: a("s_branch L_fin2")
    lb = a.newlabel("brB")
    a("s_cmp_eq_u32 s%d, 0" % S_BR)
    a("s_cbranch_scc0 %s" % lb)
    phase2A(a, stubs)
    phase3A(a)
    a("s_branch L_fin")
    emit_stubs(a, stubs)
    a.label(lb)
    phaseB(a)
    a.label("L_fin")
    epoch_update(a)
    a.label("L_fin2")
    stamp(a, "end")
    if STAMPS: a("s_waitcnt vmcnt(0)")
    stamp_store(a)
    a.label("L_end"); a("s_endpgm")
    a.label("L_codeend")
    out.append(".globl %s\n.p2align 8\n.type %s,@function\n%s:\n" % (NAME, NAME, NAME) + a.text())
    if 'nocodepf' not in OPT:
        out.append(".set CODE_TOTAL, L_codeend - L_pcbase\n.set CODE_CHUNK, ((CODE_TOTAL / 8 + 127) / 128) * 128\n.set CODE_LAST, CODE_TOTAL - 4\n")
    out.append('.section .rodata,"a"\n.p2align 6\n')
    out.append((".amdhsa_kernel %s\n  .amdhsa_next_free_vgpr 256\n  .amdhsa_next_free_sgpr 102\n  .amdhsa_accum_offset 256\n"
                "  .amdhsa_group_segment_fixed_size 0\n  .amdhsa_kernarg_size 72\n  .amdhsa_user_sgpr_count 2\n"
                "  .amdhsa_user_sgpr_kernarg_segment_ptr 1\n  .amdhsa_system_sgpr_workgroup_id_x 1\n.end_amdhsa_kernel\n") % NAME)
    return "".join(out)

if __name__ == "__main__":
    OPT = set(sys.argv[2:])
    for x in sys.argv:
        if x.startswith("st="):
            STAMPS = True
            STMAP = {n: i for i, n in enumerate(x[3:].split(","))}
    for x in OPT:
        if x.startswith('sch='): SCHED = x[4:]
        if x.startswith('wsb='): WS_BASE = int(x[4:]) << 20
        if x.startswith('outst='): OUTST = x[6:].replace('+', ' ')
    if 'pfnt' in OPT: PFL = "nt"
    if 'dmant' in OPT: DML = "nt"
    if 'p1only' in OPT: S_ST = 84
    open(sys.argv[1], "w").write(build())
```

```python
import sys, struct
from asmlib import Asm, vr, sr

NAME = "concat_heads__sliding_block__linear_attn_block__prompt_kernel"
WS_KV   = 0x0000000
WS_O    = 0x0A00000
WS_PART = 0x0F00000
WS_FLAG = 0x1000000
WS_STAMP = 0x1080000
WS_SIZE = 0x1100000
O_BR = 128 * 20480
F_KV, F_PART, F_OA, F_OB = WS_FLAG + 0x1000, WS_FLAG + 0x5000, WS_FLAG + 0x9000, WS_FLAG + 0x11000
SPIN_LIMIT = 40000
ST, LD = "sc1", "sc1"
PFL = ""
DML = ""
STAMPS, STMAP, OPT = False, None, set()
SCHED = 'e'
WS_BASE = 0
OUTST = ''

S_NONCE = 3
S_ST = 4
S_I, S_U = 22, 23
S_X, S_W, S_WS, S_OUT, S_WO, S_WOB = 24, 28, 32, 36, 40, 44
S_BR, S_R, S_G, S_WV, S_RG, S_CS = 48, 49, 50, 51, 52, 53
S_T0, S_T1, S_T2, S_T3, S_T4, S_T5 = 54, 55, 56, 57, 58, 59
S_DB, S_OFF = 60, 61
S_M0, S_M1, S_M2 = 62, 64, 66
S_D, S_SB, S_SOFF, S_STEP, S_J = 68, 72, 76, 77, 78
S_G1 = 82
S_MASK = 68

V_IMG, V_LANE, V_N, V_KG = 0, 1, 2, 3
V_DMA, V_XA, V_WA, V_PF, V_XT, V_WB0, V_WB1 = 10, 15, 19, 29, 32, 40, 60
V_ACC, V_ACC2, V_XP, V_DMA2, V_PFD, V_WA2 = 80, 120, 160, 240, 245, 246
LDS_W = 65536
XSLOT, WSLOT = 16384, 20480
LOG2E = 1.4426950408889634
QSCALE = LOG2E / (20.0 ** 0.5)

def f2u(x): return struct.unpack("<I", struct.pack("<f", x))[0]
def mfma16(d, x, y, c=None):
    return "v_mfma_f32_16x16x32_bf16 %s, %s, %s, %s" % (vr(d, 4), vr(x, 4), vr(y, 4), vr(d, 4) if c is None else c)
def mfma32(d, x, y, c=None):
    return "v_mfma_f32_32x32x16_bf16 %s, %s, %s, %s" % (vr(d, 16), vr(x, 4), vr(y, 4), vr(d, 16) if c is None else c)
def emit(a, item):
    if item is None: return
    if callable(item): item(a)
    elif isinstance(item, (list, tuple)):
        for x in item: emit(a, x)
    else: a(item)

class LQ:
    def __init__(self, a): self.a, self.n, self.done = a, 0, 0
    def issue(self, s, cnt=1):
        emit(self.a, s); self.n += cnt; return self.n
    def need(self, idx):
        if idx > self.done:
            cnt = self.n - idx
            self.a("s_waitcnt lgkmcnt(%d)" % min(cnt, 15))
            self.done = idx if cnt <= 15 else self.n - 15
    def drain(self):
        if self.n > self.done:
            self.a("s_waitcnt lgkmcnt(0)"); self.done = self.n

NST = 8
def rec(f, *args):
    r = Asm(); r.nlab = 900000; f(r, *args)
    return [l.strip() for l in r.lines]
def stamp(a, name):
    if not STAMPS or STMAP is None or name not in STMAP: return
    i = STMAP[name]
    if 'both' in OPT:
        a("s_memrealtime s[%d:%d]" % (S_ST + 4 * i, S_ST + 4 * i + 1))
        a("s_memtime s[%d:%d]" % (S_ST + 4 * i + 2, S_ST + 4 * i + 3))
        return
    a("%s s[%d:%d]" % ("s_memtime" if 'cyc' in OPT else "s_memrealtime", S_ST + 2 * i, S_ST + 2 * i + 1))
def stamp_dbg(a):
    a("s_memrealtime s[20:21]")
    a("s_load_dwordx2 s[24:25], s[0:1], 56")
    a("s_waitcnt lgkmcnt(0)")
    a("s_mov_b32 s26, 256"); a("s_mov_b32 s27, 0x20000")
    a("s_mov_b64 exec, 1")
    a("v_mov_b32 v4, 0")
    a("s_not_b32 s22, s101")
    for reg, slot in [(22, 0), (20, 1)] + [(S_ST + 2 * i, 2 + i) for i in range(NST)]:
        a("v_mov_b32 v5, s%d" % reg)
        a("buffer_atomic_umax v5, v4, s[24:27], 0 offen offset:%d" % (slot * 4))
    a("v_mov_b32 v5, s101")
    a("buffer_atomic_umax v5, v4, s[24:27], 0 offen offset:%d" % (10 * 4))
    a("s_mov_b64 exec, -1")

def stamp_store(a):
    if not STAMPS: return
    if 'dbg' in OPT: return stamp_dbg(a)
    a("s_memrealtime s[20:21]")
    a("s_memtime s[24:25]")
    a("s_waitcnt lgkmcnt(0)")
    a("s_lshl_b32 s%d, s2, 3" % S_T0)
    a("s_add_u32 s%d, s%d, s%d" % (S_T0, S_T0, S_WV))
    a("s_lshl_b32 s%d, s%d, 6" % (S_T0, S_T0))
    a("s_add_u32 s%d, s%d, %d" % (S_T0, S_T0, WS_STAMP))
    a("s_mov_b64 exec, 1")
    a("v_mov_b32 v4, 0")
    for i in range(NST):
        a("v_mov_b32 v5, s%d" % (S_ST + 2 * i))
        a("buffer_store_dword v5, v4, s[%d:%d], s%d offen offset:%d" % (S_WS, S_WS + 3, S_T0, i * 4))
    a("s_getreg_b32 s21, hwreg(HW_REG_XCC_ID)")
    a("s_getreg_b32 s22, hwreg(HW_REG_HW_ID)")
    for reg, slot in ((20, 15), (101, 14), (100, 13), (21, 12), (22, 11), (24, 10)):
        a("v_mov_b32 v5, s%d" % reg)
        a("buffer_store_dword v5, v4, s[%d:%d], s%d offen offset:%d" % (S_WS, S_WS + 3, S_T0, slot * 4))
    a("s_mov_b64 exec, -1")

def minwrap(a, v, m, tmp):
    a("v_subrev_u32 v%d, %d, v%d" % (tmp, m, v))
    a("v_min_u32 v%d, v%d, v%d" % (v, v, tmp))
def srd(a, d, lo, hi, size):
    a("s_mov_b32 s%d, s%d" % (d, lo)); a("s_mov_b32 s%d, s%d" % (d + 1, hi))
    a("s_mov_b32 s%d, %d" % (d + 2, size)); a("s_mov_b32 s%d, 0x20000" % (d + 3))
def role_branch(a, fw, fx):
    lx, ld = a.newlabel("rx"), a.newlabel("rd")
    a("s_cmp_eq_u32 s%d, 0" % S_CS)
    a("s_cbranch_scc0 %s" % (lx if fx else ld))
    emit(a, fw)
    if fx:
        a("s_branch %s" % ld)
        a.label(lx)
        emit(a, fx)
    a.label(ld)
def on_wave(a, wave, f):
    l = a.newlabel("ow")
    a("s_cmp_eq_u32 s%d, %d" % (S_WV, wave))
    a("s_cbranch_scc0 %s" % l)
    emit(a, f)
    a.label(l)

def entry(a):
    a("s_cmp_ge_u32 s2, 256")
    a("s_cbranch_scc1 L_end")
    if STAMPS:
        a("s_memrealtime s[100:101]")
        a("s_memtime s[62:63]")
    a("s_load_dwordx16 s[4:19], s[0:1], 0")
    a("s_load_dwordx2 s[20:21], s[0:1], 64")
    if 'badmap' in OPT:
        a("s_lshr_b32 s%d, s2, 5" % S_T0)
        a("s_and_b32 s%d, s2, 31" % S_I)
    else:
        a("s_and_b32 s%d, s2, 7" % S_T0)
        a("s_lshr_b32 s%d, s2, 3" % S_I)
    a("v_lshrrev_b32 v4, 6, v0")
    a("v_and_b32 v%d, 63, v0" % V_LANE)
    a("v_and_b32 v%d, 15, v0" % V_N)
    a("v_readfirstlane_b32 s%d, v4" % S_WV)
    a("v_lshrrev_b32 v%d, 4, v%d" % (V_KG, V_LANE))
    if 'brlo' in OPT:
        a("s_lshr_b32 s%d, s%d, 2" % (S_BR, S_T0))
        a("s_and_b32 s%d, s%d, 3" % (S_T2, S_T0))
    else:
        a("s_and_b32 s%d, s%d, 1" % (S_BR, S_T0))
        a("s_lshr_b32 s%d, s%d, 1" % (S_T2, S_T0))
    a("s_and_b32 s%d, s%d, 1" % (S_T3, S_T2))
    a("s_lshl_b32 s%d, s%d, 3" % (S_T3, S_T3))
    a("s_and_b32 s%d, s%d, 7" % (S_T4, S_I))
    a("s_add_u32 s%d, s%d, s%d" % (S_R, S_T3, S_T4))
    a("s_lshr_b32 s%d, s%d, 1" % (S_T3, S_T2))
    a("s_lshr_b32 s%d, s%d, 3" % (S_T4, S_I))
    a("s_lshl_b32 s%d, s%d, 2" % (S_T5, S_T3))
    a("s_add_u32 s%d, s%d, s%d" % (S_G, S_T5, S_T4))
    a("s_lshl_b32 s%d, s%d, 1" % (S_T3, S_T3))
    a("s_and_b32 s%d, s%d, 1" % (S_T5, S_T4))
    a("s_add_u32 s%d, s%d, s%d" % (S_T3, S_T3, S_T5))
    a("s_lshr_b32 s%d, s%d, 1" % (S_T4, S_T4))
    a("s_lshl_b32 s%d, s%d, 2" % (S_T4, S_T4))
    a("s_add_u32 s%d, s%d, s%d" % (S_G1, S_T3, S_T4))
    a("s_and_b32 s%d, s%d, 3" % (S_RG, S_WV))
    a("s_lshr_b32 s%d, s%d, 2" % (S_CS, S_WV))
    if 'nocodepf' not in OPT:
        def cpf(a):
            a("s_getpc_b64 s[56:57]")
            a.label("L_pcbase")
            a("s_and_b32 s%d, s%d, 7" % (S_T4, S_I))
            a("s_mul_i32 s%d, s%d, CODE_CHUNK" % (S_T4, S_T4))
            a("v_lshlrev_b32 v4, 7, v%d" % V_LANE)
            a("v_add_u32 v4, s%d, v4" % S_T4)
            a("v_min_u32 v4, CODE_LAST, v4")
            a("global_load_dword v%d, v4, s[56:57]" % V_PFD)
        on_wave(a, 7, cpf)

def dma_setup(a):
    stamp(a, "ids")
    def fw(a):
        a("s_mul_i32 s%d, s%d, %d" % (S_T0, S_RG, 16 * 3840))
        a("s_mul_i32 s%d, s%d, 160" % (S_T1, S_G))
        a("s_mul_i32 s%d, s%d, 320" % (S_T2, S_G1))
        a("s_cmp_eq_u32 s%d, 0" % S_BR)
        a("s_cselect_b32 s%d, s%d, s%d" % (S_T2, S_T2, S_T1))
        a("s_cselect_b32 s%d, 0, 1120" % S_T5)
        a("s_add_u32 s%d, s%d, s%d" % (S_T2, S_T2, S_T0))
        a("s_add_u32 s%d, s%d, 1280" % (S_T2, S_T2))
        a("s_add_u32 s%d, s%d, s%d" % (S_T0, S_T0, S_T1))
        a("s_movk_i32 s%d, 3277" % S_T1)
        a("s_movk_i32 s%d, 3840" % S_T3)
        a("s_mov_b32 s%d, %d" % (S_T4, 245760 - 160))
        for j in range(5):
            p, kk, q, u, t = 4, 5, 6, 7, 8
            a("v_add_u32 v%d, %d, v%d" % (p, 64 * j, V_LANE))
            a("v_mul_u32_u24 v%d, s%d, v%d" % (kk, S_T1, p))
            a("v_lshrrev_b32 v%d, 16, v%d" % (kk, kk))
            a("v_mul_u32_u24 v%d, 20, v%d" % (q, kk))
            a("v_lshrrev_b32 v%d, 2, v%d" % (u, kk))
            a("v_sub_u32 v%d, v%d, v%d" % (q, p, q))
            a("v_and_b32 v%d, 2, v%d" % (u, u))
            a("v_sub_u32 v%d, v%d, v%d" % (u, q, u))
            a("v_add_u32 v%d, 20, v%d" % (t, u))
            a("v_min_u32 v%d, v%d, v%d" % (u, u, t))
            a("v_add_u32 v%d, 6, v%d" % (t, u))
            a("v_lshrrev_b32 v%d, 4, v%d" % (t, t))
            a("v_mul_u32_u24 v%d, s%d, v%d" % (kk, S_T3, kk))
            a("v_lshl_add_u32 v%d, v%d, 4, v%d" % (kk, u, kk))
            a("v_mad_u32_u24 v%d, v%d, s%d, v%d" % (q, t, S_T5, kk))
            a("v_add_u32 v%d, s%d, v%d" % (V_DMA + j, S_T2, q))
            a("v_mad_u32_u24 v%d, v%d, s%d, v%d" % (q, t, S_T4, kk))
            a("v_add_u32 v%d, s%d, v%d" % (V_DMA2 + j, S_T0, q))
        a("s_mul_i32 s%d, s%d, 5120" % (S_T0, S_RG))
        for k in range(4): a("s_add_u32 s%d, s%d, %d" % (S_SB + k, S_T0, LDS_W + k * WSLOT))
        a("s_mov_b32 s%d, %d" % (S_STEP, 64 * 3840))
        for k in range(1, 4): a("s_mov_b32 s%d, 0" % (S_J + k))
        a("v_and_b32 v4, 31, v%d" % V_LANE)
        a("v_lshrrev_b32 v5, 5, v%d" % V_LANE)
        a("v_min_u32 v4, 19, v4")
        a("s_lshr_b32 s%d, s%d, 2" % (S_T0, S_G))
        a("v_mul_u32_u24 v6, 13, v4"); a("v_lshrrev_b32 v6, 7, v6")
        a("v_mul_u32_u24 v7, 52, v4"); a("v_lshrrev_b32 v7, 8, v7")
        a("v_mul_u32_u24 v8, 5, v7"); a("v_sub_u32 v8, v4, v8")
        a("v_lshlrev_b32 v8, 7, v8")
        a("v_lshl_add_u32 v6, v5, 6, v6")
        a("s_lshl_b32 s%d, s%d, 1" % (S_T2, S_I))
        a("v_add_u32 v6, s%d, v6" % S_T2)
        a("v_mul_u32_u24 v6, s%d, v6" % S_T3)
        a("v_and_b32 v9, 1, v7")
        a("s_movk_i32 s%d, 1280" % S_T2)
        a("v_mul_u32_u24 v9, s%d, v9" % S_T2)
        a("v_add3_u32 v6, v6, v9, v8")
        a("s_mul_i32 s%d, s%d, 640" % (S_T0, S_T0))
        a("s_add_u32 s%d, s%d, 1280" % (S_T2, S_T0))
        a("v_add_u32 v%d, s%d, v6" % (V_PF + 1, S_T2))
        a("v_lshl_add_u32 v7, v5, 7, v7")
        a("s_lshl_b32 s%d, s%d, 2" % (S_T2, S_I))
        a("v_add_u32 v7, s%d, v7" % S_T2)
        a("v_mul_u32_u24 v7, s%d, v7" % S_T3)
        a("v_add3_u32 v%d, v7, v8, s%d" % (V_PF + 2, S_T0))
        a("v_mov_b32 v%d, 0" % V_PF)
    def fx(a):
        a("s_lshl_b32 s%d, s%d, 7" % (S_T0, S_R))
        a("s_lshl_b32 s%d, s%d, 5" % (S_T1, S_RG))
        a("s_add_u32 s%d, s%d, s%d" % (S_T0, S_T0, S_T1))
        a("s_mul_i32 s%d, s%d, 1280" % (S_T0, S_T0))
        a("s_movk_i32 s%d, 1280" % S_T1)
        a("v_lshrrev_b32 v4, 3, v%d" % V_LANE)
        a("v_and_b32 v5, 7, v%d" % V_LANE)
        a("v_xor_b32 v5, v5, v4")
        a("v_mul_u32_u24 v4, s%d, v4" % S_T1)
        a("v_lshl_add_u32 v4, v5, 4, v4")
        a("v_add_u32 v%d, s%d, v4" % (V_DMA, S_T0))
        for j in range(1, 5): a("v_mov_b32 v%d, v%d" % (V_DMA + j, V_DMA))
        for j in range(5): a("v_mov_b32 v%d, 0" % (V_DMA2 + j))
        a("s_lshl_b32 s%d, s%d, 12" % (S_T0, S_RG))
        for k in range(4): a("s_add_u32 s%d, s%d, %d" % (S_SB + k, S_T0, k * XSLOT))
        a("s_movk_i32 s%d, 128" % S_STEP)
        for k in range(1, 4): a("s_mov_b32 s%d, %d" % (S_J + k, k * 10240))
        a("v_and_b32 v4, 31, v%d" % V_LANE)
        a("v_lshrrev_b32 v5, 5, v%d" % V_LANE)
        a("s_lshr_b32 s%d, s%d, 3" % (S_T0, S_R))
        a("s_lshl_b32 s%d, s%d, 5" % (S_T0, S_T0))
        a("s_add_u32 s%d, s%d, s%d" % (S_T0, S_T0, S_I))
        a("s_mul_i32 s%d, s%d, %d" % (S_T0, S_T0, 32 * 1280))
        a("v_mul_u32_u24 v6, s%d, v4" % S_T1)
        a("v_lshl_add_u32 v6, v5, 7, v6")
        a("v_add_u32 v%d, s%d, v6" % (V_PF, S_T0))
        a("v_mov_b32 v%d, 0" % (V_PF + 1)); a("v_mov_b32 v%d, 0" % (V_PF + 2))
    role_branch(a, fw, fx)
    a("s_mov_b32 s%d, 0" % S_SOFF)

def entry_srd(a):
    a("s_waitcnt lgkmcnt(0)")
    a("s_cmp_eq_u32 s%d, 0" % S_BR)
    a("s_cselect_b32 s%d, s4, s10" % S_X)
    a("s_cselect_b32 s%d, s5, s11" % (S_X + 1))
    a("s_mov_b32 s%d, 2621440" % (S_X + 2))
    a("s_mov_b32 s%d, 0x20000" % (S_X + 3))
    a("s_cselect_b32 s%d, s6, s12" % S_W)
    a("s_cselect_b32 s%d, s7, s13" % (S_W + 1))
    a("s_mov_b32 s%d, 2457600" % (S_W + 2))
    a("s_mov_b32 s%d, 0x20000" % (S_W + 3))
    a("s_cmp_eq_u32 s%d, 0" % S_CS)
    a("s_cselect_b32 s%d, s%d, s%d" % (S_D, S_W, S_X))
    a("s_cselect_b32 s%d, s%d, s%d" % (S_D + 1, S_W + 1, S_X + 1))
    a("s_cselect_b32 s%d, s%d, s%d" % (S_D + 2, S_W + 2, S_X + 2))
    a("s_mov_b32 s%d, 0x20000" % (S_D + 3))

def entry_srd2(a):
    if WS_BASE:
        a("s_add_u32 s20, s20, %d" % WS_BASE)
        a("s_addc_u32 s21, s21, 0")
    srd(a, S_WS, 20, 21, WS_SIZE)
    srd(a, S_OUT, 16, 17, 5242880)
    srd(a, S_WO, 8, 9, 819200)
    srd(a, S_WOB, 14, 15, 819200)
    if STAMPS:
        a("s_mov_b32 s101, s100")
        a("s_mov_b32 s100, s62")
        if S_ST == 4:
            for i in range(NST): a("s_mov_b32 s%d, 0" % (S_ST + 2 * i))

def pf(kind, idx, k):
    def f(a):
        if 'nopf' in OPT: return
        def body(a):
            if kind == 'x': a("s_mov_b32 s%d, %d" % (S_OFF, idx * 256)); s_, v = S_X, V_PF
            elif kind == 'w': a("s_mov_b32 s%d, %d" % (S_OFF, idx * 128 * 3840)); s_, v = S_W, V_PF + 1
            else: a("s_mov_b32 s%d, %d" % (S_OFF, idx * 256 * 3840)); s_, v = S_W, V_PF + 2
            a("buffer_load_dword v%d, v%d, s[%d:%d], s%d offen %s" % (V_PFD, v, s_, s_ + 3, S_OFF, PFL))
        on_wave(a, (4 + k) if kind == 'x' else k, body)
    return f

def dma(sig, j):
    def f(a):
        if 'nodma' in OPT and sig >= 3: return
        slot = sig % 4
        def body(a):
            a("s_add_u32 m0, s%d, %d" % (S_SB + slot, j * 1024))
            if sig < 10:
                if 1 <= j <= 3:
                    a("s_add_u32 s%d, s%d, s%d" % (S_OFF, S_SOFF, S_J + j)); so = S_OFF
                else:
                    a("s_nop 0"); so = S_SOFF
                a("buffer_load_dwordx4 v%d, s[%d:%d], s%d offen %s lds" % (V_DMA + j, S_D, S_D + 3, so, DML))
            else:
                a("s_mov_b32 s%d, %d" % (S_OFF, (sig - 10) * 128 * 3840))
                a("buffer_load_dwordx4 v%d, s[%d:%d], s%d offen %s lds" % (V_DMA2 + j, S_D, S_D + 3, S_OFF, DML))
        if sig >= 10 or j == 4: role_branch(a, body, None)
        else: body(a)
        if sig < 10 and j == 4: a("s_add_u32 s%d, s%d, s%d" % (S_SOFF, S_SOFF, S_STEP))
    return f

def img_pos(a, dst, tmp):
    a("v_lshl_add_u32 v%d, v%d, 2, v%d" % (tmp, V_KG, V_N))
    a("v_and_b32 v%d, 15, v%d" % (tmp, tmp))
    a("v_lshl_add_u32 v%d, v%d, 4, v%d" % (tmp, V_KG, tmp))
    a("v_lshlrev_b32 v%d, 4, v%d" % (dst, tmp))

E_, RP, BB, W4, TM = V_ACC2, V_ACC2 + 1, V_ACC2 + 2, V_ACC2 + 3, V_ACC2 + 4
def addr1_setup(a):
    a("v_and_b32 v4, 7, v%d" % V_N)
    a("s_lshl_b32 s%d, s%d, 12" % (S_T0, S_RG))
    a("v_lshlrev_b32 v5, 7, v%d" % V_N)
    a("v_xor_b32 v4, v4, v%d" % V_KG)
    a("v_lshl_add_u32 v4, v4, 4, v5")
    a("s_xor_b32 s%d, s%d, 1" % (S_T5, S_CS))
    a("s_lshl_b32 s%d, s%d, 6" % (S_T1, S_T5))
    a("s_lshl_b32 s%d, s%d, 11" % (S_T2, S_CS))
    a("s_or_b32 s%d, s%d, s%d" % (S_T1, S_T1, S_T2))
    a("s_or_b32 s%d, s%d, s%d" % (S_T1, S_T1, S_T0))
    a("v_xor_b32 v%d, s%d, v4" % (V_XA, S_T1))
    a("v_xor_b32 v%d, 0x800, v%d" % (V_XA + 1, V_XA))
    a("v_xor_b32 v%d, 64, v%d" % (V_XA + 2, V_XA))
    a("v_xor_b32 v%d, 64, v%d" % (V_XA + 3, V_XA + 1))
    a("v_and_b32 v4, 3, v%d" % V_N)
    a("v_lshrrev_b32 v%d, 2, v%d" % (RP, V_N))
    a("v_and_b32 v7, 1, v%d" % V_KG)
    a("v_lshl_add_u32 v%d, v%d, 3, v%d" % (RP, V_KG, RP))
    a("s_movk_i32 s%d, 320" % S_T1)
    a("v_lshlrev_b32 v7, 5, v7")
    a("v_mul_u32_u24 v%d, s%d, v%d" % (RP, S_T1, RP))
    a("v_lshl_add_u32 v%d, v4, 3, v7" % E_)
    a("v_add_u32 v%d, %d, v%d" % (RP, LDS_W, RP))
    a("v_add_u32 v%d, v%d, v%d" % (BB, RP, E_))
    a("s_mul_i32 s%d, s%d, 160" % (S_T2, S_CS))
    a("s_mul_i32 s%d, s%d, 80" % (S_T3, S_CS))
    a("s_mul_i32 s%d, s%d, 10240" % (S_T0, S_T5))
    a("s_mul_i32 s%d, s%d, 10240" % (S_T1, S_CS))
    def sA(T):
        a("s_add_u32 s%d, s%d, %d" % (S_T4, S_T2, 40 * T))
        a("s_add_u32 s%d, s%d, %d" % (S_T5, S_T3, (T >> 1) * 160 + 40 * (T & 1)))
        a("s_cmp_eq_u32 s%d, 0" % S_BR)
        a("s_cselect_b32 s%d, s%d, s%d" % (S_T4, S_T4, S_T5))
    for T in range(3):
        sA(T)
        a("s_add_u32 s%d, s%d, s%d" % (S_T5, S_T4, S_T0))
        a("v_add_u32 v%d, s%d, v%d" % (V_WA + T, S_T5, BB))
        a("s_add_u32 s%d, s%d, s%d" % (S_T5, S_T4, S_T1))
        a("v_add_u32 v%d, s%d, v%d" % (V_WA + 5 + T, S_T5, BB))
    sA(3)
    a("v_add_u32 v5, s%d, v%d" % (S_T4, E_))
    minwrap(a, 5, 320, TM)
    a("v_add_u32 v5, v5, v%d" % RP)
    a("v_add_u32 v%d, s%d, v5" % (V_WA + 3, S_T0))
    a("v_add_u32 v%d, s%d, v5" % (V_WA + 8, S_T1))
    a("s_cmp_eq_u32 s%d, 0" % S_BR)
    a("s_cselect_b32 s%d, s%d, s%d" % (S_T4, S_T2, S_T3))
    a("s_cselect_b32 s%d, 0, 80" % S_T5)
    a("s_add_u32 s%d, s%d, 32" % (S_T4, S_T4))
    a("v_mul_u32_u24 v%d, 40, v4" % (W4))
    a("v_lshrrev_b32 v5, 1, v4")
    a("v_add_u32 v%d, v%d, v7" % (W4, W4))
    a("v_mad_u32_u24 v5, v5, s%d, v%d" % (S_T5, W4))
    a("v_add_u32 v5, s%d, v5" % S_T4)
    minwrap(a, 5, 320, TM)
    a("v_add_u32 v5, v5, v%d" % RP)
    a("v_add_u32 v%d, s%d, v5" % (V_WA + 4, S_T0))
    a("v_add_u32 v%d, s%d, v5" % (V_WA + 9, S_T1))

def addr2_setup(a):
    a("s_mul_i32 s%d, s%d, 10240" % (S_T1, S_CS))
    for seg in range(2):
        for T in range(4):
            if seg == 1 and T == 3: continue
            a("s_add_u32 s%d, s%d, %d" % (S_T4, S_T1, seg * 160 + 40 * T))
            a("v_add_u32 v%d, s%d, v%d" % (V_WA2 + seg * 5 + T, S_T4, BB))
    a("v_add_u32 v5, 280, v%d" % E_)
    minwrap(a, 5, 320, TM)
    a("v_add3_u32 v%d, v5, v%d, s%d" % (V_WA2 + 8, RP, S_T1))
    a("s_add_u32 s%d, s%d, 32" % (S_T4, S_T1))
    a("v_add3_u32 v%d, v%d, v%d, s%d" % (V_WA2 + 4, W4, RP, S_T4))
    a("v_add_u32 v5, 192, v%d" % (W4))
    minwrap(a, 5, 320, TM)
    a("v_add3_u32 v%d, v5, v%d, s%d" % (V_WA2 + 9, RP, S_T1))
    img_pos(a, V_IMG, 4)

def p1_reads(s, hf):
    if 'noread' in OPT: return ["s_nop 0"] * 12
    slot = s % 4
    wb = V_WB0 if hf == 0 else V_WB1
    L = []
    for tp in range(2):
        dst = (V_XT + 4 * tp) if hf == 0 else (V_XP + (s * 2 + tp) * 4)
        L.append("ds_read_b128 %s, v%d offset:%d" % (vr(dst, 4), V_XA + hf * 2 + tp, slot * XSLOT))
    for T in range(5):
        for rd in range(2):
            L.append("ds_read_b64_tr_b16 %s, v%d offset:%d" % (vr(wb + 4 * T + 2 * rd, 2), V_WA + hf * 5 + T, slot * WSLOT + rd * 1280))
    return L
def p1_mfmas(s, hf, first):
    if 'nomfma' in OPT: return ["s_nop 0"] * 10
    wb = V_WB0 if hf == 0 else V_WB1
    return [mfma16(V_ACC + (tp * 5 + T) * 4, (V_XT + 4 * tp) if hf == 0 else (V_XP + (s * 2 + tp) * 4), wb + 4 * T, "0" if first else None)
            for T in range(5) for tp in range(2)]
def p2_reads(u):
    v, seg = u >> 1, u & 1
    slot = (10 + v) % 4
    wb = V_WB0 if (u & 1) == 0 else V_WB1
    return ["ds_read_b64_tr_b16 %s, v%d offset:%d" % (vr(wb + 4 * T + 2 * rd, 2), V_WA2 + seg * 5 + T, slot * WSLOT + rd * 1280)
            for T in range(5) for rd in range(2)]
def p2_mfmas(u):
    wb = V_WB0 if (u & 1) == 0 else V_WB1
    return [mfma16(V_ACC2 + (tp * 5 + T) * 4, V_XP + (u * 2 + tp) * 4, wb + 4 * T, "0" if u == 0 else None)
            for T in range(5) for tp in range(2)]

def half(a, lq, mf, needs, reads, sched, extra):
    ids = []
    reads = list(reads)
    for i, m in enumerate(mf):
        lq.need(needs[i])
        a(m)
        for _ in range(sched[i]):
            if reads: ids.append(lq.issue(reads.pop(0)))
        if i in extra: emit(a, extra[i])
    while reads: ids.append(lq.issue(reads.pop(0)))
    return ids

def epi1_A(a):
    a("s_lshr_b32 s%d, s%d, 2" % (S_T0, S_G1))
    a("s_lshl_b32 s%d, s%d, 3" % (S_T0, S_T0))
    a("s_and_b32 s%d, s%d, 3" % (S_T1, S_G1))
    a("s_lshl_b32 s%d, s%d, 1" % (S_T1, S_T1))
    a("s_add_u32 s%d, s%d, s%d" % (S_T0, S_T0, S_T1))
    a("s_add_u32 s%d, s%d, s%d" % (S_T0, S_T0, S_CS))
    a("s_lshl_b32 s%d, s%d, 6" % (S_T0, S_T0))
    a("s_lshl_b32 s%d, s%d, 2" % (S_T1, S_R))
    a("s_add_u32 s%d, s%d, s%d" % (S_T0, S_T0, S_T1))
    a("s_add_u32 s%d, s%d, s%d" % (S_T0, S_T0, S_RG))
    a("s_mul_i32 s%d, s%d, 5120" % (S_T0, S_T0))
    a("s_add_u32 s%d, s%d, %d" % (S_T0, S_T0, WS_KV))
    a("s_add_u32 s%d, s%d, 4096" % (S_T1, S_T0))
    def pack(swap):
        def f(a):
            for T in range(5):
                e = V_ACC2 + T * 4
                for t in range(2):
                    tp = t ^ swap
                    d = V_ACC + (tp * 5 + T) * 4
                    a("v_cvt_pk_bf16_f32 v%d, v%d, v%d" % (e + 2 * t, d, d + 1))
                    a("v_cvt_pk_bf16_f32 v%d, v%d, v%d" % (e + 2 * t + 1, d + 2, d + 3))
                a("buffer_store_dwordx4 %s, v%d, s[%d:%d], s%d offen offset:%d %s" % (vr(e, 4), V_IMG, S_WS, S_WS + 3, S_T1 if T == 4 else S_T0, (T & 3) * 1024, ST))
                if 'dbl' in OPT:
                    a("buffer_store_dwordx4 %s, v%d, s[%d:%d], s%d offen offset:%d" % (vr(e, 4), V_IMG, S_WS, S_WS + 3, S_T1 if T == 4 else S_T0, (T & 3) * 1024))
        return f
    role_branch(a, pack(0), pack(1))
    a("s_nop 1")

def phi(a, regs, tmp):
    a("s_mov_b32 s%d, 0x%x" % (S_T4, f2u(LOG2E)))
    a("s_mov_b32 s%d, 0x%x" % (S_T5, f2u(LOG2E)))
    a("s_mov_b32 s%d, 0x%x" % (S_M2, f2u(1e-6)))
    a("s_mov_b32 s%d, 0x%x" % (S_M2 + 1, f2u(1e-6)))
    for i in range(0, len(regs), 4):
        g = regs[i:i + 4]
        assert g[0] % 2 == 0 and g[1] == g[0] + 1 and g[2] % 2 == 0 and g[3] == g[2] + 1
        for k in (0, 2): a("v_pk_mul_f32 %s, %s, s[%d:%d]" % (vr(tmp + k, 2), vr(g[k], 2), S_T4, S_T5))
        for k in range(4): a("v_exp_f32_e64 v%d, v%d clamp" % (tmp + k, tmp + k))
        for k in range(4): a("v_max_f32 v%d, 0, v%d" % (g[k], g[k]))
        for k in (0, 2): a("v_pk_add_f32 %s, %s, s[%d:%d]" % (vr(g[k], 2), vr(g[k], 2), S_M2, S_M2 + 1))
        for k in (0, 2): a("v_pk_add_f32 %s, %s, %s" % (vr(g[k], 2), vr(g[k], 2), vr(tmp + k, 2)))

def piece_decode(a):
    a("s_and_b32 s%d, s%d, 1" % (S_T0, S_WV))
    a("s_lshl_b32 s%d, s%d, 6" % (S_T0, S_T0))
    a("v_add_u32 v5, s%d, v%d" % (S_T0, V_LANE))
    a("s_movk_i32 s%d, 2731" % S_T1)
    a("v_mul_u32_u24 v6, s%d, v5" % S_T1)
    a("v_lshrrev_b32 v6, 16, v6")
    a("v_mul_u32_u24 v7, 24, v6")
    a("v_sub_u32 v7, v5, v7")

def epi1_B(a):
    acc = lambda tp, T: V_ACC + (tp * 5 + T) * 4
    raw = V_WB0
    TMP = V_ACC2
    a("s_nop 7")
    for tp in range(2):
        for k in range(4): a("v_mov_b32 v%d, v%d" % (raw + tp * 4 + k, acc(tp, 4) + k))
    regs = []
    for T in (0, 1, 4):
        for tp in range(2): regs += [acc(tp, T) + k for k in range(4)]
    phi(a, regs, TMP)
    a("s_mov_b32 s%d, 0x00ff00ff" % S_M0)
    a("s_mov_b32 s%d, 0x00ff00ff" % (S_M0 + 1))
    for tp in range(2):
        for k in range(4):
            a("v_cndmask_b32_e64 v%d, v%d, v%d, s[%d:%d]" % (acc(tp, 4) + k, raw + tp * 4 + k, acc(tp, 4) + k, S_M0, S_M0 + 1))
    P = V_WB1
    for T in range(5):
        for tp in range(2):
            d = acc(tp, T)
            a("v_cvt_pk_bf16_f32 v%d, v%d, v%d" % (P + 4 * T + 2 * tp, d, d + 1))
            a("v_cvt_pk_bf16_f32 v%d, v%d, v%d" % (P + 4 * T + 2 * tp + 1, d + 2, d + 3))
    TB = V_WB0 + 8
    a("v_mov_b32 v%d, 0x3f803f80" % TMP)
    for k in range(4):
        a("v_cndmask_b32_e64 v%d, v%d, v%d, s[%d:%d]" % (TB + k, P + 16 + k, TMP, S_M0, S_M0 + 1))
    F0, F1, V0, V1, TA = P, P + 4, P + 8, P + 12, P + 16
    D = V_ACC
    a("s_mul_i32 s%d, s%d, 7168" % (S_T0, S_WV))
    a("v_lshlrev_b32 v4, 4, v%d" % V_LANE)
    for i, (x, y) in enumerate([(F0, V0), (F1, V1), (F0, TB), (F1, TB), (TA, V0), (TA, V1), (TA, TB)]):
        a(mfma16(D + 4 * i, x, y, "0"))
    a("v_add_u32 v4, s%d, v4" % S_T0)
    piece_decode(a)
    M = TMP
    a("s_lshr_b32 s%d, s%d, 1" % (S_T2, S_WV))
    a("s_and_b32 s%d, s%d, 1" % (S_T3, S_T2))
    a("s_lshr_b32 s%d, s%d, 1" % (S_T2, S_T2))
    a("s_lshl_b32 s%d, s%d, 2" % (S_T4, S_T3))
    a("s_sub_u32 s%d, s%d, 8" % (S_T4, S_T4))
    a("v_add_u32 v8, s%d, v7" % S_T4)
    a("v_cmp_gt_u32_e64 s[%d:%d], 20, v7" % (S_M0, S_M0 + 1))
    a("v_cmp_gt_u32_e64 s[%d:%d], 16, v7" % (S_M1, S_M1 + 1))
    a("v_cmp_gt_u32_e64 s[%d:%d], 4, v6" % (S_M2, S_M2 + 1))
    a("s_barrier")
    for i in range(7):
        a("ds_write_b128 v4, %s offset:%d" % (vr(D + 4 * i, 4), i * 1024))
    a("v_cndmask_b32_e64 v8, 0, v8, s[%d:%d]" % (S_M0, S_M0 + 1))
    a("v_cndmask_b32_e64 v8, v8, v7, s[%d:%d]" % (S_M1, S_M1 + 1))
    a("v_mov_b32 v9, s%d" % S_T3)
    a("v_cndmask_b32_e64 v9, v9, v6, s[%d:%d]" % (S_M2, S_M2 + 1))
    a("v_lshl_add_u32 v8, v9, 4, v8")
    a("s_add_u32 s%d, s%d, 4" % (S_T4, S_T3))
    a("v_mov_b32 v9, s%d" % S_T4)
    a("v_mov_b32 v%d, s%d" % (M, S_T3))
    a("v_cndmask_b32_e64 v9, v9, v%d, s[%d:%d]" % (M, S_M2, S_M2 + 1))
    a("s_add_u32 s%d, s%d, 2" % (S_T4, S_T3))
    a("v_mov_b32 v%d, s%d" % (M, S_T4))
    a("v_cndmask_b32_e64 v%d, 6, v%d, s[%d:%d]" % (M, M, S_M2, S_M2 + 1))
    a("v_cndmask_b32_e64 v9, v%d, v9, s[%d:%d]" % (M, S_M1, S_M1 + 1))
    a("v_lshlrev_b32 v9, 10, v9")
    a("v_lshl_add_u32 v8, v8, 4, v9")
    a("s_mul_i32 s%d, s%d, %d" % (S_T4, S_T2, 4 * 7168))
    a("v_add_u32 v8, s%d, v8" % S_T4)
    a("v_cmp_gt_u32_e64 s[%d:%d], 21, v7" % (S_M0, S_M0 + 1))
    a("v_cmp_gt_u32_e64 s[%d:%d], 5, v6" % (S_M1, S_M1 + 1))
    a("v_min_u32 v8, %d, v8" % (8 * 7168 - 3 * 7168 - 16))
    a("s_lshl_b32 s%d, s%d, 4" % (S_T0, S_G))
    a("s_add_u32 s%d, s%d, s%d" % (S_T0, S_T0, S_R))
    a("s_lshl_b32 s%d, s%d, 13" % (S_T0, S_T0))
    a("s_lshr_b32 s%d, s%d, 1" % (S_T1, S_WV))
    a("s_lshl_b32 s%d, s%d, 11" % (S_T1, S_T1))
    a("s_add_u32 s%d, s%d, s%d" % (S_T0, S_T0, S_T1))
    a("s_add_u32 s%d, s%d, %d" % (S_T0, S_T0, WS_PART))
    a("v_lshlrev_b32 v5, 4, v5")
    a("s_waitcnt lgkmcnt(0)")
    a("s_barrier")
    a("s_and_b64 s[%d:%d], s[%d:%d], s[%d:%d]" % (S_M0, S_M0 + 1, S_M0, S_M0 + 1, S_M1, S_M1 + 1))
    E = V_ACC
    for rg in range(4): a("ds_read_b128 %s, v8 offset:%d" % (vr(E + 4 * rg, 4), rg * 7168))
    a("s_waitcnt lgkmcnt(0)")
    for k in (0, 2):
        a("v_pk_add_f32 %s, %s, %s" % (vr(E + k, 2), vr(E + k, 2), vr(E + 4 + k, 2)))
        a("v_pk_add_f32 %s, %s, %s" % (vr(E + 8 + k, 2), vr(E + 8 + k, 2), vr(E + 12 + k, 2)))
    for k in (0, 2): a("v_pk_add_f32 %s, %s, %s" % (vr(E + k, 2), vr(E + k, 2), vr(E + 8 + k, 2)))
    a("s_mov_b64 exec, s[%d:%d]" % (S_M0, S_M0 + 1))
    a("buffer_store_dwordx4 %s, v5, s[%d:%d], s%d offen %s" % (vr(E, 4), S_WS, S_WS + 3, S_T0, ST))
    a("s_mov_b64 exec, -1")

LDS_Q = 143360
def epi2(a):
    XCH = 102400
    a("s_mul_i32 s%d, s%d, 5120" % (S_T0, S_WV))
    a("s_add_u32 s%d, s%d, %d" % (S_T0, S_T0, XCH))
    a("v_lshlrev_b32 v4, 4, v%d" % V_LANE)
    a("s_xor_b32 s%d, s%d, 4" % (S_T1, S_WV))
    a("v_add_u32 v5, s%d, v4" % S_T0)
    a("s_mul_i32 s%d, s%d, 5120" % (S_T1, S_T1))
    a("s_add_u32 s%d, s%d, %d" % (S_T1, S_T1, XCH))
    a("s_barrier")
    for T in range(5): a("ds_write_b128 v5, %s offset:%d" % (vr(V_ACC2 + (5 + T) * 4, 4), T * 1024))
    lw = a.newlabel("e2w")
    a("s_cmp_eq_u32 s%d, 0" % S_BR)
    a("s_cbranch_scc1 %s" % lw)
    a("s_mov_b32 s%d, s%d" % (S_T2, S_T1))
    wo_load(a, S_WOB, first=12)
    a("s_mov_b32 s%d, s%d" % (S_T1, S_T2))
    a.label(lw)
    a("v_add_u32 v5, s%d, v4" % S_T1)
    a("s_lshl_b32 s%d, s%d, 3" % (S_T1, S_CS))
    a("v_add_u32 v4, s%d, v%d" % (S_T1, V_IMG))
    a("s_mul_i32 s%d, s%d, 5120" % (S_T0, S_RG))
    a("s_add_u32 s%d, s%d, %d" % (S_T0, S_T0, LDS_Q))
    a("v_add_u32 v4, s%d, v4" % S_T0)
    a("s_waitcnt lgkmcnt(0)")
    a("s_barrier")
    R = V_WB0
    for T in range(5): a("ds_read_b128 %s, v5 offset:%d" % (vr(R + 4 * T, 4), T * 1024))
    regs = [V_ACC2 + T * 4 + k for T in range(5) for k in range(4)]
    for T in range(5):
        a("s_waitcnt lgkmcnt(%d)" % (4 - T))
        for k in (0, 2):
            a("v_pk_add_f32 %s, %s, %s" % (vr(V_ACC2 + 4 * T + k, 2), vr(V_ACC2 + 4 * T + k, 2), vr(R + 4 * T + k, 2)))
    def fa(a):
        a("s_mov_b32 s%d, 0x%x" % (S_T4, f2u(QSCALE)))
        a("s_mov_b32 s%d, 0x%x" % (S_T5, f2u(QSCALE)))
        for k in range(0, 20, 2): a("v_pk_mul_f32 %s, %s, s[%d:%d]" % (vr(V_ACC2 + k, 2), vr(V_ACC2 + k, 2), S_T4, S_T5))
    lb, ld = a.newlabel("e2b"), a.newlabel("e2d")
    a("s_cmp_eq_u32 s%d, 0" % S_BR)
    a("s_cbranch_scc0 %s" % lb)
    fa(a)
    a("s_branch %s" % ld)
    a.label(lb)
    phi(a, regs, V_ACC)
    a.label(ld)
    for T in range(5):
        d = V_ACC2 + T * 4
        a("v_cvt_pk_bf16_f32 v%d, v%d, v%d" % (R + 2 * T, d, d + 1))
        a("v_cvt_pk_bf16_f32 v%d, v%d, v%d" % (R + 2 * T + 1, d + 2, d + 3))
        a("ds_write_b64 v4, %s offset:%d" % (vr(R + 2 * T, 2), T * 1024))

def vm_wait_roles(a, nw, nx):
    if nw == nx: a("s_waitcnt vmcnt(%d)" % nw)
    else: role_branch(a, "s_waitcnt vmcnt(%d)" % nw, "s_waitcnt vmcnt(%d)" % nx)

def publish(a, s_off, wave=0):
    def body(a):
        a("v_mov_b32 v4, s%d" % S_NONCE)
        a("v_mov_b32 v5, 0")
        a("s_mov_b64 exec, 1")
        a("buffer_store_dword v4, v5, s[%d:%d], s%d offen sc0 sc1" % (S_WS, S_WS + 3, s_off))
        a("s_mov_b64 exec, -1")
    if wave is None: body(a)
    else: on_wave(a, wave, body)

def poll(a, voff, s_off, mask_lo, mask_hi):
    def body(a):
        lp, ld = a.newlabel("pp"), a.newlabel("pd")
        a("s_mov_b32 exec_lo, %s" % mask_lo)
        a("s_mov_b32 exec_hi, %s" % mask_hi)
        a("s_mov_b32 s%d, 0" % S_T5)
        a.label(lp)
        a("buffer_load_dword v6, v%d, s[%d:%d], s%d offen sc1" % (voff, S_WS, S_WS + 3, s_off))
        a("s_waitcnt vmcnt(0)")
        a("v_cmp_ne_u32_e64 s[%d:%d], s%d, v6" % (S_M0, S_M0 + 1, S_NONCE))
        a("s_add_u32 s%d, s%d, 1" % (S_T5, S_T5))
        a("s_nop 1")
        a("s_cmp_eq_u64 s[%d:%d], 0" % (S_M0, S_M0 + 1))
        a("s_cbranch_scc1 %s" % ld)
        a("s_sleep 1")
        a("s_cmp_lt_u32 s%d, %d" % (S_T5, SPIN_LIMIT))
        a("s_cbranch_scc1 %s" % lp)
        a.label(ld)
        a("s_mov_b64 exec, -1")
    on_wave(a, 0, body)

def wo_pf_setup(a, v):
    a("v_mul_u32_u24 v4, 52, v%d" % V_LANE); a("v_lshrrev_b32 v4, 8, v4")
    a("v_mul_u32_u24 v5, 5, v4"); a("v_sub_u32 v5, v%d, v5" % V_LANE)
    a("s_mul_i32 s%d, s%d, 20" % (S_T0, S_I))
    a("v_add_u32 v4, s%d, v4" % S_T0)
    a("s_movk_i32 s%d, 1280" % S_T1)
    a("v_mul_u32_u24 v4, s%d, v4" % S_T1)
    a("v_lshl_add_u32 v4, v5, 7, v4")
    a("s_lshr_b32 s%d, s%d, 2" % (S_T0, S_G))
    a("s_mul_i32 s%d, s%d, 640" % (S_T0, S_T0))
    a("v_add_u32 v%d, s%d, v4" % (v, S_T0))
assert all((l * 52) >> 8 == l // 5 for l in range(64))

def wo_pf_issue(a, v, srd_):
    a("buffer_load_dword v%d, v%d, s[%d:%d], 0 offen %s" % (V_PFD, v, srd_, srd_ + 3, PFL))
    a("s_mov_b32 s%d, %d" % (S_OFF, 12 * 1280))
    a("buffer_load_dword v%d, v%d, s[%d:%d], s%d offen %s" % (V_PFD, v, srd_, srd_ + 3, S_OFF, PFL))

def phase1(a):
    dma_setup(a)
    stamp(a, "dset")
    entry_srd(a)
    stamp(a, "karg")
    if 'allpf' in OPT:
        emit(a, [pf('x', 0, 0), pf('w', 0, 0), pf('x', 1, 1), pf('w', 1, 1), pf('x', 2, 2), pf('w', 2, 2), pf('x', 3, 3), pf('w', 3, 3), pf('x', 4, 0), pf('w', 4, 0)])
        emit(a, [dma(0, j) for j in range(5)])
    elif 'allpf2' in OPT:
        emit(a, [dma(0, j) for j in range(5)])
        emit(a, [pf('x', 0, 0), pf('w', 0, 0), pf('x', 1, 1), pf('w', 1, 1), pf('x', 2, 2), pf('w', 2, 2), pf('x', 3, 3), pf('w', 3, 3), pf('x', 4, 0), pf('w', 4, 0)])
    else:
        emit(a, [dma(0, j) for j in range(5)])
        emit(a, [pf('x', 0, 0), pf('w', 0, 0), pf('x', 1, 1), pf('w', 1, 1)])
    entry_srd2(a)
    stamp(a, "g0")
    addr1_setup(a)
    emit(a, [dma(1, j) for j in range(5)])
    if not ('allpf' in OPT or 'allpf2' in OPT): emit(a, [pf('x', 2, 2), pf('w', 2, 2)])
    a("v_mov_b32 v8, 0")
    a("s_mov_b32 s%d, %d" % (S_OFF, WS_FLAG))
    a("buffer_load_dword v9, v8, s[%d:%d], s%d offen sc1" % (S_WS, S_WS + 3, S_OFF))
    stamp(a, "g1")
    vm_wait_roles(a, 6, 5)
    stamp(a, "g0land")
    a("s_barrier")
    stamp(a, "t0")
    lq = LQ(a)
    cur = [lq.issue(x) for x in p1_reads(0, 0)]
    SCH = {'e': [2, 1, 1, 1, 1, 2, 1, 1, 1, 1], 'f': [2, 2, 2, 2, 2, 2, 0, 0, 0, 0], 'm': [2, 2, 1, 1, 1, 1, 1, 1, 1, 1], 'g': [2, 2, 2, 1, 1, 1, 1, 1, 1, 0]}[SCHED]
    needs12 = lambda ids: [ids[2 + 2 * (i // 2) + 1] for i in range(10)]
    needs10 = lambda ids: [ids[2 * (i // 2) + 1] for i in range(10)]
    for s in range(10):
        ex0 = {}
        if s >= 1: ex0 = {2: dma(s + 2, 3), 6: dma(s + 2, 4)}
        if s == 0: ex0 = {0: dma(2, 0), 2: dma(2, 1), 4: dma(2, 2), 6: dma(2, 3), 8: dma(2, 4)}
        if s == 5:
            lines = rec(addr2_setup)
            for k_, pos in enumerate((1, 3, 4, 5, 7, 8, 9)):
                ex0[pos] = [ex0.get(pos), lines[k_ * len(lines) // 7:(k_ + 1) * len(lines) // 7]]
        nxt = half(a, lq, p1_mfmas(s, 0, s == 0), needs12(cur), p1_reads(s, 1), SCH, ex0)
        if s == 0: vm_wait_roles(a, 6, 5)
        elif s == 8: vm_wait_roles(a, 5, 0)
        elif s == 9: a("s_waitcnt vmcnt(5)")
        else: vm_wait_roles(a, 5, 4)
        a("s_barrier")
        stamp(a, "s%d" % s)
        if s == 2:
            a("v_readfirstlane_b32 s%d, v9" % S_NONCE)
            a("s_nop 3")
            a("s_add_u32 s%d, s%d, 0x9e3779b9" % (S_NONCE, S_NONCE))
        pfl = []
        allp = 'allpf' in OPT or 'allpf2' in OPT
        if s == 0 and not allp: pfl = [pf('x', 3, 3), pf('w', 3, 3)]
        if s == 0 and allp: pfl = [pf('q', 0, 1), pf('q', 1, 2), pf('q', 2, 3)]
        if s == 2 and not allp: pfl = [pf('x', 4, 0), pf('w', 4, 0)]
        if s == 3: pfl = [lambda a: wo_pf_setup(a, V_PF)]
        def wopf_own(a):
            if 'nopf' in OPT: return
            def body(a):
                l, l2 = a.newlabel("wpf"), a.newlabel("wpf2")
                a("s_cmp_eq_u32 s%d, 0" % S_BR)
                a("s_cbranch_scc1 %s" % l)
                wo_pf_issue(a, V_PF, S_WOB)
                a("s_branch %s" % l2)
                a.label(l)
                wo_pf_issue(a, V_PF, S_WO)
                a.label(l2)
            on_wave(a, 5, body)
        if s == 4: pfl = [wopf_own] if allp else [pf('q', 0, 1), wopf_own]
        if s == 5 and not allp: pfl = [pf('q', 1, 2)]
        if s == 6 and not allp: pfl = [pf('q', 2, 3)]
        ex1 = {1: dma(s + 3, 0), 4: dma(s + 3, 1), 7: dma(s + 3, 2), 9: pfl}
        if s == 9: ex1 = {1: dma(12, 0), 3: dma(12, 1), 5: dma(12, 2), 7: dma(12, 3), 9: dma(12, 4)}
        rd = p1_reads(s + 1, 0) if s < 9 else p2_reads(0)
        cur = half(a, lq, p1_mfmas(s, 1, False), needs12(nxt), rd, SCH, ex1)
    stamp(a, "p1end")
    lb, ld = a.newlabel("e1b"), a.newlabel("e1d")
    a("s_cmp_eq_u32 s%d, 0" % S_BR)
    a("s_cbranch_scc0 %s" % lb)
    epi1_A(a)
    a("s_branch %s" % ld)
    a.label(lb)
    a("s_waitcnt lgkmcnt(0)")
    epi1_B(a)
    emit(a, p2_reads(0))
    a.label(ld)
    stamp(a, "e1end")
    p3_dma_setup(a)
    S_WBF, S_WB1, S_WB2 = S_SOFF, S_STEP, S_J + 1
    a("s_and_b32 s%d, s%d, s%d" % (S_WBF, S_BR, S_CS))
    a("s_mul_i32 s%d, s%d, %d" % (S_WB1, S_RG, 3 * 5120))
    a("s_mul_i32 s%d, s%d, %d" % (S_WB2, S_RG, 3 * 32 * 1280))
    def wob(q):
        def f(a):
            l = a.newlabel("wob")
            a("s_cmp_eq_u32 s%d, 0" % S_WBF)
            a("s_cbranch_scc1 %s" % l)
            a("s_add_u32 m0, s%d, %d" % (S_WB1, (q // 5) * 5120 + (q % 5) * 1024))
            a("s_add_u32 s%d, s%d, %d" % (S_OFF, S_WB2, (q // 5) * 32 * 1280))
            a("buffer_load_dwordx4 v%d, s[%d:%d], s%d offen %s lds" % (C_DMA + q % 5, S_WOB, S_WOB + 3, S_OFF, DML))
            a.label(l)
        return f
    WOB_N = [2, 1, 2, 1, 2, 1, 2, 1, 2, 1]
    def wopf(a):
        if 'nopf' in OPT: return
        def body(a):
            l = a.newlabel("wpf")
            a("s_cmp_eq_u32 s%d, 0" % S_BR)
            a("s_cbranch_scc1 %s" % l)
            wo_pf_issue(a, V_PF, S_WO)
            a.label(l)
        on_wave(a, 0, body)
    a("s_waitcnt lgkmcnt(0)")
    lq = LQ(a)
    cur = None
    SCH2 = {'e': [1] * 10, 'f': [2, 2, 2, 2, 2, 0, 0, 0, 0, 0], 'm': [2, 1, 1, 1, 1, 1, 1, 1, 1, 0], 'g': [2, 2, 1, 1, 1, 1, 1, 1, 0, 0]}[SCHED]
    for u in range(10):
        extra = {}
        rd = []
        if u + 1 < 10:
            if (u + 1) % 2 == 0:
                nx = 10 + (u + 1) // 2
                def by_branch(na, nb):
                    def f(a):
                        lB, lD = a.newlabel("wb"), a.newlabel("wd")
                        a("s_cmp_eq_u32 s%d, 0" % S_BR)
                        a("s_cbranch_scc0 %s" % lB)
                        a("s_waitcnt vmcnt(%d)" % na)
                        a("s_branch %s" % lD)
                        a.label(lB)
                        a("s_waitcnt vmcnt(%d)" % nb)
                        a.label(lD)
                    return f
                if nx == 13: role_branch(a, "s_waitcnt vmcnt(5)", by_branch(0, sum(WOB_N[:5])))
                elif nx == 14: role_branch(a, "s_waitcnt vmcnt(0)", None)
                else: role_branch(a, by_branch(5 + (10 if 'dbl' in OPT else 5), 6), None)
                a("s_barrier")
                if 13 <= nx + 2 <= 14: extra = {1: dma(nx + 2, 0), 3: dma(nx + 2, 1), 5: dma(nx + 2, 2), 7: dma(nx + 2, 3), 9: dma(nx + 2, 4)}
                if nx == 13:
                    def pub(a):
                        a("s_lshl_b32 s%d, s%d, 4" % (S_T0, S_G))
                        a("s_add_u32 s%d, s%d, s%d" % (S_T0, S_T0, S_R))
                        a("s_lshl_b32 s%d, s%d, 7" % (S_T0, S_T0))
                        a("s_mul_i32 s%d, s%d, %d" % (S_T1, S_BR, F_PART - F_KV))
                        a("s_add_u32 s%d, s%d, s%d" % (S_T0, S_T0, S_T1))
                        a("s_add_u32 s%d, s%d, %d" % (S_T0, S_T0, F_KV))
                        publish(a, S_T0, 0)
                    extra[0] = [pub]
            rd = p2_reads(u + 1)
        if u == 8: extra[3] = [wopf]
        q0 = sum(WOB_N[:u])
        for n_ in range(WOB_N[u]):
            pos = (2, 6)[n_]
            extra[pos] = [extra.get(pos), wob(q0 + n_)]
        needs = needs10(cur) if cur else [0] * 10
        cur = half(a, lq, p2_mfmas(u), needs, rd, SCH2, extra)
    a("s_nop 4")
    stamp(a, "p2end")
    epi2(a)
    stamp(a, "e2end")

LDS_K, LDS_V = 0, 65536
LDS_KVR = 135168
A_KA0, A_KA1, A_KAT, A_VA0, A_VA1, A_QA0, A_QA1, A_QAT, A_OM, A_OT = 10, 11, 12, 13, 14, 15, 16, 17, 18, 19
A_AM, A_Q1, A_Q2, A_KB, A_VB, A_S, A_O = 20, 32, 36, 40, 64, 96, 240
S_TAU0 = S_U
S_EXV, S_HI, S_LO = 62, 64, 66
NEG_BIG = f2u(-3.0e38)
S_KV0, S_KV1, S_KV2 = 20, 21, 22
A_L16 = 88

def jkey(r, h):
    m, b, e = r >> 3, (r >> 2) & 1, r & 3
    return 16 * b + 8 * m + 4 * h + e
def diag_mask(r):
    return (sum(1 << i for i in range(32) if jkey(r, 0) <= i), sum(1 << i for i in range(32) if jkey(r, 1) <= i))

def p2_common_setup(a, attn):
    a("v_and_b32 v4, 1, v%d" % V_KG)
    a("v_lshrrev_b32 v5, 1, v%d" % V_KG)
    a("v_lshrrev_b32 v6, 2, v%d" % V_N)
    a("v_and_b32 v7, 3, v%d" % V_N)
    a("s_and_b32 s%d, s%d, 3" % (S_T0, S_WV))
    a("s_lshr_b32 s%d, s%d, 2" % (S_T1, S_WV))
    a("s_mul_i32 s%d, s%d, 5120" % (S_T1, S_T1))
    a("s_lshl_b32 s%d, s%d, 10" % (S_T2, S_T0))
    a("s_add_u32 s%d, s%d, s%d" % (S_T2, S_T2, S_T1))
    a("s_add_u32 s%d, s%d, 4096" % (S_T3, S_T1))
    a("s_lshl_b32 s%d, s%d, 2" % (S_T4, S_T0))
    def addr(dst, n, kgimg, tbit, sbase, extra):
        a("v_lshl_add_u32 v9, v%d, 2, v%d" % (kgimg, n))
        a("v_and_b32 v9, 15, v9")
        a("v_lshl_add_u32 v9, v%d, 4, v9" % kgimg)
        a("v_lshlrev_b32 v9, 4, v9")
        a("v_lshl_add_u32 v9, v%d, 3, v9" % tbit)
        a("s_add_u32 s%d, s%d, %d" % (S_T5, sbase, extra))
        a("v_add_u32 v%d, s%d, v9" % (dst, S_T5))
    a("v_lshl_add_u32 v8, v5, 3, v6")
    addr(A_QA0, 8, 7, 4, S_T2, LDS_Q)
    a("v_add_u32 v30, 4, v8")
    addr(A_QA1, 30, 7, 4, S_T2, LDS_Q)
    a("v_add_u32 v31, s%d, v6" % S_T4)
    addr(A_QAT, 31, 7, 4, S_T3, LDS_Q)
    if attn:
        a("v_and_b32 v28, 1, v7")
        a("v_lshl_add_u32 v28, v4, 1, v28")
        a("v_lshrrev_b32 v29, 1, v7")
        addr(A_KA0, 8, 28, 29, S_T2, LDS_K)
        addr(A_KA1, 30, 28, 29, S_T2, LDS_K)
        addr(A_KAT, 31, 28, 29, S_T3, LDS_K)
    a("v_and_b32 v4, 31, v%d" % V_LANE)
    a("v_lshrrev_b32 v5, 5, v%d" % V_LANE)
    if attn:
        a("v_cmp_gt_u32_e64 s[%d:%d], 16, v4" % (S_M0, S_M0 + 1))
        a("s_sub_u32 s%d, s%d, 16" % (S_T5, S_T4))
        a("v_add_u32 v6, s%d, v4" % S_T5)
        a("v_and_b32 v6, 15, v6")
        a("v_cndmask_b32_e64 v6, v6, v4, s[%d:%d]" % (S_M0, S_M0 + 1))
        a("v_mov_b32 v7, s%d" % S_T3)
        a("v_mov_b32 v8, s%d" % S_T2)
        a("v_cndmask_b32_e64 v7, v7, v8, s[%d:%d]" % (S_M0, S_M0 + 1))
        for m in range(2):
            a("v_add_u32 v8, %d, v5" % (2 * m))
            a("v_lshl_add_u32 v9, v8, 2, v6")
            a("v_and_b32 v9, 15, v9")
            a("v_lshl_add_u32 v9, v8, 4, v9")
            a("v_lshl_add_u32 v9, v9, 4, v7")
            a("v_add_u32 v%d, %d, v9" % (A_VA0 + m, LDS_V))
    a("s_lshl_b32 s%d, s%d, 2" % (S_T1, S_G))
    a("s_add_u32 s%d, s%d, s%d" % (S_T1, S_T1, S_T0))
    a("s_lshl_b32 s%d, s%d, 3" % (S_T2, S_R))
    a("s_lshr_b32 s%d, s%d, 2" % (S_T3, S_WV))
    a("s_lshl_b32 s%d, s%d, 1" % (S_T3, S_T3))
    a("s_add_u32 s%d, s%d, s%d" % (S_T2, S_T2, S_T3))
    a("s_mul_i32 s%d, s%d, 20480" % (S_T2, S_T2))
    a("s_mul_i32 s%d, s%d, %d" % (S_T3, S_BR, O_BR))
    a("s_add_u32 s%d, s%d, s%d" % (S_T2, S_T2, S_T3))
    a("s_add_u32 s%d, s%d, %d" % (S_T2, S_T2, WS_O))
    a("v_lshrrev_b32 v6, 4, v4")
    a("s_movk_i32 s%d, 20480" % S_T3)
    a("v_mul_u32_u24 v6, s%d, v6" % S_T3)
    a("v_and_b32 v7, 15, v4")
    a("v_lshl_add_u32 v6, v7, 4, v6")
    a("v_add_u32 v6, s%d, v6" % S_T2)
    a("s_lshr_b32 s%d, s%d, 1" % (S_T3, S_T1))
    a("s_lshl_b32 s%d, s%d, 10" % (S_T3, S_T3))
    a("s_and_b32 s%d, s%d, 1" % (S_T4, S_T1))
    a("s_lshl_b32 s%d, s%d, 9" % (S_T4, S_T4))
    a("s_add_u32 s%d, s%d, s%d" % (S_T3, S_T3, S_T4))
    a("v_lshl_add_u32 v7, v5, 8, v6")
    a("v_add_u32 v%d, s%d, v7" % (A_OM, S_T3))
    a("s_lshr_b32 s%d, s%d, 3" % (S_T3, S_T1))
    a("s_add_u32 s%d, s%d, 16" % (S_T3, S_T3))
    a("s_lshl_b32 s%d, s%d, 10" % (S_T3, S_T3))
    a("s_and_b32 s%d, s%d, 6" % (S_T4, S_T1))
    a("s_lshl_b32 s%d, s%d, 7" % (S_T4, S_T4))
    a("s_add_u32 s%d, s%d, s%d" % (S_T3, S_T3, S_T4))
    a("s_and_b32 s%d, s%d, 1" % (S_T4, S_T1))
    a("s_lshl_b32 s%d, s%d, 3" % (S_T4, S_T4))
    a("s_add_u32 s%d, s%d, s%d" % (S_T3, S_T3, S_T4))
    a("v_add_u32 v%d, s%d, v6" % (A_OT, S_T3))
    a("s_mov_b32 s%d, 0" % S_HI); a("s_mov_b32 s%d, -1" % (S_HI + 1))
    a("s_mov_b32 s%d, -1" % S_LO); a("s_mov_b32 s%d, 0" % (S_LO + 1))

def q_frag_reads():
    return ["ds_read_b64_tr_b16 %s, v%d" % (vr(A_Q1, 2), A_QA0),
            "ds_read_b64_tr_b16 %s, v%d" % (vr(A_Q1 + 2, 2), A_QA1),
            "ds_read_b64_tr_b16 %s, v%d" % (vr(A_Q2, 2), A_QAT)]
def q_frag_fix(a):
    a("v_cndmask_b32_e64 v%d, v%d, 0, s[%d:%d]" % (A_Q2, A_Q2, S_HI, S_HI + 1))
    a("v_cndmask_b32_e64 v%d, v%d, 0, s[%d:%d]" % (A_Q2 + 1, A_Q2 + 1, S_HI, S_HI + 1))

def o_epilogue(a, eps=False):
    O = A_O
    a("v_cndmask_b32_e64 v30, v%d, v%d, s[%d:%d]" % (O + 12, O + 8, S_HI, S_HI + 1))
    if eps: a("v_add_f32 v30, 0x%x, v30" % f2u(1e-6))
    a("v_rcp_f32 v30, v30")
    a("s_nop 0")
    for k in range(0, 12, 2):
        a("v_pk_mul_f32 %s, %s, v[30:31] op_sel_hi:[1,0]" % (vr(O + k, 2), vr(O + k, 2)))
    for k in range(6): a("v_cvt_pk_bf16_f32 v%d, v%d, v%d" % (O + k, O + 2 * k, O + 2 * k + 1))
    for fl in ([ST, ""] if 'dbl' in OPT else [ST]):
        a("buffer_store_dwordx4 %s, v%d, s[%d:%d], 0 offen %s" % (vr(O, 4), A_OM, S_WS, S_WS + 3, fl))
        a("s_mov_b64 exec, s[%d:%d]" % (S_LO, S_LO + 1))
        a("buffer_store_dwordx2 %s, v%d, s[%d:%d], 0 offen %s" % (vr(O + 4, 2), A_OT, S_WS, S_WS + 3, fl))
        a("s_mov_b64 exec, -1")

def attn_setup(a):
    p2_common_setup(a, True)
    for r in range(16):
        lo, hi = diag_mask(r)
        a("s_mov_b32 s%d, 0x%x" % (S_MASK + 2 * r, lo)); a("s_mov_b32 s%d, 0x%x" % (S_MASK + 2 * r + 1, hi))
    a("v_mov_b32 v30, 0xffff")
    a("v_mov_b32 v31, 0xffff0000")
    for k in range(8):
        a("v_cndmask_b32_e64 v4, 0, v30, s[%d:%d]" % (S_MASK + 4 * k, S_MASK + 4 * k + 1))
        a("v_cndmask_b32_e64 v5, 0, v31, s[%d:%d]" % (S_MASK + 4 * k + 2, S_MASK + 4 * k + 3))
        a("v_or_b32 v%d, v4, v5" % (A_AM + k))
    a("v_mov_b32 v4, 0x3f803f80")
    for k in range(24): a("v_mov_b32 v%d, v4" % (A_VB + k))
    for b in range(3):
        a("v_mov_b32 v%d, 0" % (A_KB + 8 * b + 6)); a("v_mov_b32 v%d, 0" % (A_KB + 8 * b + 7))
    a("v_mov_b32 v%d, 0" % (A_Q2 + 2)); a("v_mov_b32 v%d, 0" % (A_Q2 + 3))
    a("s_mov_b32 s%d, 0x000fffff" % S_EXV); a("s_mov_b32 s%d, 0x000fffff" % (S_EXV + 1))

def k_reads(tau, buf):
    b = A_KB + 8 * buf
    return ["ds_read_b64_tr_b16 %s, v%d offset:%d" % (vr(b, 2), A_KA0, tau * 5120),
            "ds_read_b64_tr_b16 %s, v%d offset:%d" % (vr(b + 2, 2), A_KA1, tau * 5120),
            "ds_read_b64_tr_b16 %s, v%d offset:%d" % (vr(b + 4, 2), A_KAT, tau * 5120)]
def v_reads(tau, buf):
    b = A_VB + 8 * buf
    return ["s_mov_b64 exec, s[%d:%d]" % (S_EXV, S_EXV + 1),
            "ds_read_b128 %s, v%d offset:%d" % (vr(b, 4), A_VA0, tau * 5120),
            "ds_read_b128 %s, v%d offset:%d" % (vr(b + 4, 4), A_VA1, tau * 5120),
            "s_mov_b64 exec, -1"]

def attn_unit(a, stubs, mid, qk_extra):
    S = lambda t: A_S + 16 * t
    order = [8, 0, 1, 2, 3, 4, 5, 6, 7]
    emit(a, q_frag_reads())
    emit(a, k_reads(order[0], 0)); emit(a, k_reads(order[1], 1))
    a("s_waitcnt lgkmcnt(6)")
    q_frag_fix(a)
    accs = [28, 29, 30, 31]
    acc_init = [False] * 4
    def max_ops(base):
        L = []
        for k in range(0, 16, 2):
            ai = (k // 2) % 4
            if not acc_init[ai]:
                L.append("v_max_f32 v%d, v%d, v%d" % (accs[ai], base + k, base + k + 1)); acc_init[ai] = True
            else:
                L.append("v_max3_f32 v%d, v%d, v%d, v%d" % (accs[ai], base + k, base + k + 1, accs[ai]))
        return L
    merge = ["v_cndmask_b32_e64 v%d, v%d, v%d, s[%d:%d]" % (S(0) + r, S(0) + r, S(8) + r, S_MASK + 2 * r, S_MASK + 2 * r + 1) for r in range(16)]
    for idx, tau in enumerate(order):
        buf = idx % 3
        if idx + 2 < 9: emit(a, k_reads(order[idx + 2], (idx + 2) % 3))
        a("s_waitcnt lgkmcnt(%d)" % (3 * min(2, 8 - idx)))
        kb = A_KB + 8 * buf
        if tau < 8:
            lf, lr = a.newlabel("fill"), a.newlabel("fret")
            a("s_cmp_gt_u32 s%d, %d" % (S_TAU0, tau))
            a("s_cbranch_scc1 %s" % lf)
            stubs.append((lf, lr, S(tau)))
        work = []
        if idx == 3: work = merge[:]
        if idx == 4: work = max_ops(S(0))
        if idx >= 5: work = max_ops(S(order[idx - 3]))
        a(mfma32(S(tau), kb, A_Q1, "0"))
        a(mfma32(S(tau), kb + 4, A_Q2))
        if tau < 8: a.label(lr)
        emit(a, qk_extra.get(idx))
        emit(a, work)
    emit(a, max_ops(S(5)))
    emit(a, max_ops(S(6)))
    emit(a, mid)
    emit(a, v_reads(8, 0)); emit(a, v_reads(0, 1))
    emit(a, max_ops(S(7)))
    a("v_max3_f32 v28, v28, v29, v30")
    a("v_max_f32 v28, v28, v31")
    a("v_mov_b32 v29, v28")
    a("s_nop 1")
    a("v_permlane32_swap_b32 v28, v29")
    a("s_nop 1")
    a("v_max_f32 v28, v28, v29")
    def sm_ops(base):
        L = ["v_pk_add_f32 %s, %s, v[28:29] op_sel_hi:[1,0] neg_lo:[0,1] neg_hi:[0,1]" % (vr(base + k, 2), vr(base + k, 2)) for k in range(0, 16, 2)]
        E = [["v_exp_f32 v%d, v%d" % (base + k, base + k), "v_exp_f32 v%d, v%d" % (base + k + 1, base + k + 1)] for k in range(0, 16, 2)]
        out = L[:2]
        for k in range(8):
            out += E[k]
            if k + 2 < 8: out.append(L[k + 2])
            if k >= 1: out.append("v_cvt_pk_bf16_f32 v%d, v%d, v%d" % (base + k - 1, base + 2 * (k - 1), base + 2 * (k - 1) + 1))
        out.append("s_nop 0")
        out.append("v_cvt_pk_bf16_f32 v%d, v%d, v%d" % (base + 7, base + 14, base + 15))
        return out
    emit(a, sm_ops(S(0)))
    for k in range(8): a("v_and_b32 v%d, v%d, v%d" % (S(0) + 8 + k, S(0) + k, A_AM + k))
    for k in range(8): a("v_xor_b32 v%d, v%d, v%d" % (S(0) + k, S(0) + k, S(0) + 8 + k))
    a("s_waitcnt lgkmcnt(0)")
    emit(a, v_reads(1, 2))
    def guarded(mms, tau):
        def f(a):
            l = a.newlabel("pvs")
            a("s_cmp_gt_u32 s%d, %d" % (S_TAU0, tau))
            a("s_cbranch_scc1 %s" % l)
            for x in mms: a(x)
            a.label(l)
        return f
    pv = [mfma32(A_O, A_VB + 0, S(0) + 8, "0"), mfma32(A_O, A_VB + 4, S(0) + 12),
          guarded([mfma32(A_O, A_VB + 8, S(0)), mfma32(A_O, A_VB + 12, S(0) + 4)], 0)]
    for tau in range(1, 8):
        vb = (tau + 1) % 3
        sm = sm_ops(S(tau))
        n, m, done = len(sm), len(pv), 0
        for i, x in enumerate(sm):
            emit(a, x)
            want = min(m, ((i + 1) * m + n // 2) // n) if i >= 1 else 0
            while done < want:
                emit(a, pv[done]); done += 1
        while done < m:
            emit(a, pv[done]); done += 1
        a("s_waitcnt lgkmcnt(0)")
        if tau + 1 < 8: emit(a, v_reads(tau + 1, (tau + 2) % 3))
        b = A_VB + 8 * vb
        pv = [guarded([mfma32(A_O, b, S(tau)), mfma32(A_O, b + 4, S(tau) + 4)], tau)]
    a("s_nop 1")
    emit(a, pv)
    a("s_nop 15")
    o_epilogue(a)

def round_advance(a, attn=True):
    for v in ((A_KA0, A_KA1, A_KAT, A_VA0, A_VA1) if attn else ()) + (A_QA0, A_QA1, A_QAT):
        a("v_add_u32 v%d, %d, v%d" % (v, 2 * 5120, v))
    a("v_add_u32 v%d, %d, v%d" % (A_OM, 4 * 20480, A_OM))
    a("v_add_u32 v%d, %d, v%d" % (A_OT, 4 * 20480, A_OT))

def set_tau0(a):
    a("s_lshl_b32 s%d, s%d, 2" % (S_T0, S_R))
    a("s_lshr_b32 s%d, s%d, 2" % (S_T1, S_WV))
    a("s_add_u32 s%d, s%d, s%d" % (S_T0, S_T0, S_T1))
    a("s_add_u32 s%d, s%d, s%d" % (S_T0, S_T0, S_DB))
    a("s_sub_i32 s%d, 8, s%d" % (S_TAU0, S_T0))
    a("s_max_i32 s%d, s%d, 0" % (S_TAU0, S_TAU0))

def emit_stubs(a, stubs):
    for lf, lr, base in stubs:
        a.label(lf)
        a("v_mov_b32 v%d, 0x%x" % (base, NEG_BIG))
        for k in range(1, 16): a("v_mov_b32 v%d, v%d" % (base + k, base))
        a("s_branch %s" % lr)

def kv_params(a):
    a("s_lshl_b32 s%d, s%d, 6" % (S_T0, S_G))
    a("s_lshl_b32 s%d, s%d, 2" % (S_T1, S_R))
    a("s_add_u32 s%d, s%d, s%d" % (S_T0, S_T0, S_T1))
    a("s_sub_i32 s%d, s%d, 8" % (S_T0, S_T0))
    a("s_mul_i32 s%d, s%d, 5120" % (S_T0, S_T0))
    a("s_lshl_b32 s%d, s%d, 10" % (S_KV1, S_WV))
    a("s_add_u32 s%d, s%d, s%d" % (S_KV0, S_T0, S_KV1))
    a("s_lshl_b32 s%d, s%d, 2" % (S_T3, S_R))
    a("s_sub_i32 s%d, 8, s%d" % (S_T3, S_T3))
    a("s_max_i32 s%d, s%d, 0" % (S_T3, S_T3))
    a("s_mul_i32 s%d, s%d, 5120" % (S_KV2, S_T3))
    a("v_lshlrev_b32 v%d, 4, v%d" % (A_L16, V_LANE))

def kv_load(tensor, k):
    def f(a):
        l = a.newlabel("kvl")
        a("s_add_u32 s%d, s%d, %d" % (S_T4, S_KV1, k * 8192))
        a("s_cmp_lt_u32 s%d, s%d" % (S_T4, S_KV2))
        a("s_cbranch_scc1 %s" % l)
        if k == 7:
            a("s_cmp_ge_u32 s%d, 61440" % S_T4)
            a("s_cbranch_scc1 %s" % l)
        a("s_add_u32 m0, s%d, %d" % (S_T4, LDS_K if tensor == 0 else LDS_V))
        a("s_add_u32 s%d, s%d, %d" % (S_OFF, S_KV0, WS_KV + tensor * 8 * 64 * 5120 + k * 8192))
        a("buffer_load_dwordx4 v%d, s[%d:%d], s%d offen %s lds" % (A_L16, S_WS, S_WS + 3, S_OFF, LD))
        a.label(l)
    return f

def oa_flag_off(a, dst, half_):
    a("s_lshl_b32 s%d, s%d, 1" % (dst, S_R))
    a("s_add_u32 s%d, s%d, %d" % (dst, dst, half_))
    a("s_lshl_b32 s%d, s%d, 3" % (dst, dst))
    a("s_add_u32 s%d, s%d, s%d" % (dst, dst, S_G))
    a("s_lshl_b32 s%d, s%d, 5" % (dst, dst))
    a("s_add_u32 s%d, s%d, s%d" % (dst, dst, S_WV))
    a("s_lshl_b32 s%d, s%d, 2" % (dst, dst))
    a("s_add_u32 s%d, s%d, %d" % (dst, dst, F_OA))

def phase2A(a, stubs):
    attn_setup(a)
    kv_params(a)
    a("v_and_b32 v7, 3, v%d" % V_LANE)
    a("v_lshlrev_b32 v7, 7, v7")
    a("v_lshrrev_b32 v8, 2, v%d" % V_LANE)
    a("v_lshlrev_b32 v8, 12, v8")
    a("v_sub_u32 v7, v8, v7")
    a("s_and_b32 s%d, s%d, 4" % (S_T0, S_G))
    a("s_and_b32 s%d, s%d, 3" % (S_T1, S_G))
    a("s_lshr_b32 s%d, s%d, 1" % (S_T1, S_T1))
    a("s_add_u32 s%d, s%d, s%d" % (S_T0, S_T0, S_T1))
    a("s_lshl_b32 s%d, s%d, 4" % (S_T0, S_T0))
    a("s_add_u32 s%d, s%d, s%d" % (S_T0, S_T0, S_R))
    a("s_lshl_b32 s%d, s%d, 7" % (S_T0, S_T0))
    a("s_add_u32 s%d, s%d, %d" % (S_T0, S_T0, F_KV))
    a("v_add_u32 v7, s%d, v7" % S_T0)
    a("s_min_u32 s%d, s%d, 2" % (S_T1, S_R))
    a("s_lshl_b32 s%d, 2, s%d" % (S_T1, S_T1))
    a("s_sub_u32 s%d, s%d, 1" % (S_T1, S_T1))
    a("s_mul_i32 s%d, s%d, 17" % (S_T1, S_T1))
    a("s_mov_b32 s%d, 0" % S_T2)
    stamp(a, "aset")
    poll(a, 7, S_T2, "s%d" % S_T1, "0")
    a("s_mov_b32 s%d, 0x000fffff" % S_EXV); a("s_mov_b32 s%d, 0x000fffff" % (S_EXV + 1))
    a("s_waitcnt lgkmcnt(0)")
    a("s_barrier")
    stamp(a, "poll1")
    emit(a, [kv_load(0, k) for k in range(8)])
    a("s_waitcnt vmcnt(0)")
    a("s_barrier")
    stamp(a, "kvld")
    for rnd in range(2):
        a("s_mov_b32 s%d, %d" % (S_DB, 2 * rnd))
        set_tau0(a)
        if rnd == 0:
            def mid(a):
                a("s_waitcnt vmcnt(0)")
                a("s_barrier")
                stamp(a, "vld")
            qk_extra = {i: kv_load(1, i - 0) for i in range(8)}
        else:
            def mid(a):
                a("s_waitcnt vmcnt(0)")
                oa_flag_off(a, S_T0, 0)
                publish(a, S_T0, None)
            qk_extra = {}
        attn_unit(a, stubs, mid, qk_extra)
        stamp(a, "rnd%d" % rnd)
        if rnd == 0: round_advance(a)

def apply_phase(a):
    piece_decode(a)
    a("v_cmp_gt_u32_e64 s[%d:%d], 21, v7" % (S_M0, S_M0 + 1))
    a("v_cmp_gt_u32_e64 s[%d:%d], 5, v6" % (S_M1, S_M1 + 1))
    a("s_lshl_b32 s%d, s%d, 17" % (S_T0, S_G))
    a("s_lshr_b32 s%d, s%d, 1" % (S_T1, S_WV))
    a("s_lshl_b32 s%d, s%d, 11" % (S_T1, S_T1))
    a("s_add_u32 s%d, s%d, s%d" % (S_T0, S_T0, S_T1))
    a("s_add_u32 s%d, s%d, %d" % (S_T0, S_T0, WS_PART))
    a("v_lshlrev_b32 v5, 4, v5")
    a("s_and_b64 s[%d:%d], s[%d:%d], s[%d:%d]" % (S_M0, S_M0 + 1, S_M0, S_M0 + 1, S_M1, S_M1 + 1))
    P = A_S
    a("s_mov_b64 exec, s[%d:%d]" % (S_M0, S_M0 + 1))
    for r in range(16):
        a("s_add_u32 s%d, s%d, %d" % (S_OFF, S_T0, r * 8192))
        a("buffer_load_dwordx4 %s, v5, s[%d:%d], s%d offen %s" % (vr(P + 4 * r, 4), S_WS, S_WS + 3, S_OFF, LD))
    a("s_mov_b64 exec, -1")
    a("v_add_u32 v%d, %d, v5" % (A_O, LDS_KVR))
    a("v_add_u32 v%d, s%d, v%d" % (A_O, S_T1, A_O))
    a("s_mov_b64 s[%d:%d], s[%d:%d]" % (S_MASK, S_MASK + 1, S_M0, S_M0 + 1))
    p2_common_setup(a, False)
    a("v_mov_b32 v%d, 0" % (A_Q2 + 2)); a("v_mov_b32 v%d, 0" % (A_Q2 + 3))
    a("v_and_b32 v4, 31, v%d" % V_LANE)
    a("v_min_u32 v4, 20, v4")
    a("v_lshrrev_b32 v5, 5, v%d" % V_LANE)
    a("v_mul_u32_u24 v6, 48, v5")
    a("v_add_u32 v6, v6, v4")
    a("s_and_b32 s%d, s%d, 3" % (S_T0, S_WV))
    a("s_lshl_b32 s%d, s%d, 11" % (S_T0, S_T0))
    a("s_add_u32 s%d, s%d, %d" % (S_T0, S_T0, LDS_KVR))
    a("v_lshlrev_b32 v6, 4, v6")
    a("v_add_u32 v6, s%d, v6" % S_T0)
    a("v_lshlrev_b32 v7, 4, v4")
    a("v_add_u32 v7, s%d, v7" % S_T0)
    a("s_waitcnt vmcnt(0)")
    for st in (8, 4, 2, 1):
        for r in range(st):
            for k in (0, 2):
                a("v_pk_add_f32 %s, %s, %s" % (vr(P + 4 * r + k, 2), vr(P + 4 * r + k, 2), vr(P + 4 * (r + st) + k, 2)))
    a("s_mov_b64 exec, s[%d:%d]" % (S_MASK, S_MASK + 1))
    a("ds_write_b128 v%d, %s" % (A_O, vr(P, 4)))
    a("s_mov_b64 exec, -1")
    a("s_waitcnt lgkmcnt(0)")
    a("s_barrier")
    stamp(a, "kvred")
    F = A_KB
    a("ds_read_b128 %s, v6" % vr(F, 4))
    a("ds_read_b128 %s, v6 offset:%d" % (vr(F + 4, 4), 24 * 16))
    a("ds_read_b128 %s, v7 offset:%d" % (vr(F + 8, 4), 4 * 24 * 16))
    emit(a, q_frag_reads())
    a("s_waitcnt lgkmcnt(3)")
    KV1, KV2 = A_VB, A_VB + 4
    for k in range(4): a("v_cvt_pk_bf16_f32 v%d, v%d, v%d" % (KV1 + k, F + 2 * k, F + 2 * k + 1))
    for k in range(2): a("v_cvt_pk_bf16_f32 v%d, v%d, v%d" % (KV2 + k, F + 8 + 2 * k, F + 9 + 2 * k))
    a("v_mov_b32 v%d, 0" % (KV2 + 2)); a("v_mov_b32 v%d, 0" % (KV2 + 3))
    for rnd in range(2):
        a("s_waitcnt lgkmcnt(0)")
        q_frag_fix(a)
        a("s_nop 1")
        a(mfma32(A_O, KV1, A_Q1, "0"))
        a(mfma32(A_O, KV2, A_Q2))
        if rnd == 0:
            round_advance(a, False) if False else None
            for v in (A_QA0, A_QA1, A_QAT): a("v_add_u32 v%d, %d, v%d" % (v, 2 * 5120, v))
            emit(a, q_frag_reads())
            a("s_nop 9")
        else:
            a("s_nop 15")
        o_epilogue(a, eps=True)
        if rnd == 0:
            a("v_add_u32 v%d, %d, v%d" % (A_OM, 4 * 20480, A_OM))
            a("v_add_u32 v%d, %d, v%d" % (A_OT, 4 * 20480, A_OT))

C_DMA = 10
C_WA, C_WT, C_OF, C_OUT, C_XA = 20, 21, 22, 23, 24
C_O = 32
C_WB = 112
C_ACC = 172
C_R = 212

def p3_dma_setup(a):
    a("s_mul_i32 s%d, s%d, 160" % (S_T0, S_G))
    a("s_movk_i32 s%d, 6554" % S_T2)
    a("s_movk_i32 s%d, 1280" % S_T3)
    for j in range(5):
        a("v_add_u32 v4, %d, v%d" % (64 * j, V_LANE))
        a("v_mul_u32_u24 v8, s%d, v4" % S_T2)
        a("v_lshrrev_b32 v8, 16, v8")
        a("v_mul_u32_u24 v9, 10, v8")
        a("v_sub_u32 v9, v4, v9")
        a("v_mul_u32_u24 v8, s%d, v8" % S_T3)
        a("v_lshl_add_u32 v8, v9, 4, v8")
        a("v_add_u32 v%d, s%d, v8" % (C_DMA + j, S_T0))

def p3_setup(a):
    a("s_mul_i32 s%d, s%d, 160" % (S_T0, S_G))
    a("v_lshrrev_b32 v4, 1, v%d" % V_KG)
    a("v_and_b32 v5, 1, v%d" % V_KG)
    a("v_lshrrev_b32 v6, 2, v%d" % V_N)
    a("v_and_b32 v7, 3, v%d" % V_N)
    a("v_mul_u32_u24 v8, 20, v4")
    a("v_lshl_add_u32 v8, v5, 2, v8")
    a("v_add_u32 v8, v8, v6")
    a("s_movk_i32 s%d, 160" % S_T1)
    a("v_mul_u32_u24 v8, s%d, v8" % S_T1)
    a("v_lshl_add_u32 v8, v7, 3, v8")
    a("s_mul_i32 s%d, s%d, 51200" % (S_T2, S_CS))
    a("v_add_u32 v%d, s%d, v8" % (C_WA, S_T2))
    a("v_mul_u32_u24 v8, 40, v%d" % V_KG)
    a("v_add3_u32 v8, v8, v6, 16")
    a("v_mul_u32_u24 v8, s%d, v8" % S_T1)
    a("v_lshl_add_u32 v8, v7, 3, v8")
    a("v_add_u32 v%d, s%d, v8" % (C_WT, S_T2))
    a("v_lshlrev_b32 v%d, 4, v%d" % (C_OF, V_LANE))
    a("s_lshl_b32 s%d, s%d, 4" % (S_T2, S_RG))
    a("v_add_u32 v8, s%d, v%d" % (S_T2, V_N))
    a("s_movk_i32 s%d, 2560" % S_T2)
    a("v_mul_u32_u24 v8, s%d, v8" % S_T2)
    a("v_lshl_add_u32 v8, v%d, 3, v8" % V_KG)
    a("v_add_u32 v%d, s%d, v8" % (C_OUT, S_T0))
    a("s_mul_i32 s%d, s%d, 10240" % (S_T2, S_RG))
    a("s_add_u32 s%d, s%d, %d" % (S_T2, S_T2, XCH3))
    a("v_add_u32 v%d, s%d, v%d" % (C_XA, S_T2, C_OF))

def wo_block(a, srd_wo):
    a("s_mul_i32 s%d, s%d, %d" % (S_OFF, S_T0, 32 * 1280))
    a("s_mul_i32 s%d, s%d, 5120" % (S_T0, S_T0))
    for j in range(5):
        a("s_add_u32 m0, s%d, %d" % (S_T0, j * 1024))
        a("s_nop 0")
        a("buffer_load_dwordx4 v%d, s[%d:%d], s%d offen %s lds" % (C_DMA + j, srd_wo, srd_wo + 3, S_OFF, DML))

def wo_load(a, srd_wo, skip0=False, first=0):
    nw = 7 if skip0 else 8
    nb = 20 - first
    for k in range((nb + nw - 1) // nw):
        l = a.newlabel("wol")
        if skip0:
            a("s_cmp_eq_u32 s%d, 0" % S_WV)
            a("s_cbranch_scc1 %s" % l)
        a("s_add_u32 s%d, s%d, %d" % (S_T0, S_WV, first + nw * k))
        if skip0: a("s_sub_u32 s%d, s%d, 1" % (S_T0, S_T0))
        if first + nw * k + nw > 20:
            a("s_cmp_ge_u32 s%d, 20" % S_T0)
            a("s_cbranch_scc1 %s" % l)
        wo_block(a, srd_wo)
        a.label(l)

def p3_oloads(a, br, s_row0, k):
    a("s_lshr_b32 s%d, s%d, 4" % (S_T0, s_row0))
    a("s_add_u32 s%d, s%d, s%d" % (S_T0, S_T0, S_RG))
    a("s_add_u32 s%d, s%d, %d" % (S_T0, S_T0, 4 * k))
    a("s_mul_i32 s%d, s%d, 20480" % (S_T0, S_T0))
    a("s_add_u32 s%d, s%d, %d" % (S_T0, S_T0, WS_O + br * O_BR))
    a("s_lshl_b32 s%d, s%d, 13" % (S_T1, S_CS))
    a("s_add_u32 s%d, s%d, s%d" % (S_T1, S_T1, S_T0))
    for i in range(8):
        a("s_add_u32 s%d, s%d, %d" % (S_OFF, S_T1, i * 1024))
        a("buffer_load_dwordx4 %s, v%d, s[%d:%d], s%d offen %s" % (vr(C_O + 40 * k + 4 * i, 4), C_OF, S_WS, S_WS + 3, S_OFF, LD))
    a("s_lshl_b32 s%d, s%d, 11" % (S_T1, S_CS))
    a("s_add_u32 s%d, s%d, s%d" % (S_T1, S_T1, S_T0))
    for i in range(2):
        a("s_add_u32 s%d, s%d, %d" % (S_OFF, S_T1, (16 + i) * 1024))
        a("buffer_load_dwordx4 %s, v%d, s[%d:%d], s%d offen %s" % (vr(C_O + 40 * k + 32 + 4 * i, 4), C_OF, S_WS, S_WS + 3, S_OFF, LD))

def p3_wreads(i):
    wb = C_WB + 20 * (i % 3)
    L = []
    for T in range(5):
        for rd in range(2):
            if i < 8: L.append("ds_read_b64_tr_b16 %s, v%d offset:%d" % (vr(wb + 4 * T + 2 * rd, 2), C_WA, i * 6400 + rd * 1280 + 32 * T))
            else: L.append("ds_read_b64_tr_b16 %s, v%d offset:%d" % (vr(wb + 4 * T + 2 * rd, 2), C_WT, (i - 8) * 25600 + rd * 3200 + 32 * T))
    return L

def p3_mm(a, sets, vm_after, extra={}):
    lq = LQ(a)
    ids = {}
    ids[0] = [lq.issue(x) for x in p3_wreads(0)]
    ids[1] = [lq.issue(x) for x in p3_wreads(1)]
    for i in range(10):
        wb = C_WB + 20 * (i % 3)
        rd = p3_wreads(i + 2) if i + 2 < 10 else []
        ids[i + 2] = []
        n = vm_after(i)
        if n is not None: a("s_waitcnt vmcnt(%d)" % n)
        emit(a, extra.get(i))
        mm = [(T, mfma16(C_ACC + 20 * k + 4 * T, wb + 4 * T, C_O + 40 * sets[k] + 4 * i, "0" if i == 0 else None)) for T in range(5) for k in range(len(sets))]
        per = (len(rd) + len(mm) - 1) // len(mm) if rd else 0
        for (T, m) in mm:
            lq.need(ids[i][2 * T + 1])
            a(m)
            for _ in range(per):
                if rd: ids[i + 2].append(lq.issue(rd.pop(0)))

XCH3 = 102400
OTILE = 0
def p3_epilogue(a, br, s_row0, nset):
    npieces = 640 * nset
    nround = (npieces + 511) // 512
    last_waves = (npieces - 512 * (nround - 1)) // 64
    def send(tiles):
        def f(a):
            for k in range(nset):
                for T in tiles:
                    a("ds_write_b128 v%d, %s offset:%d" % (C_XA, vr(C_ACC + 20 * k + 4 * T, 4), k * 5120 + T * 1024))
        return f
    a("s_lshl_b32 s%d, s%d, 4" % (S_T0, S_RG))
    a("v_add_u32 v4, s%d, v%d" % (S_T0, V_N))
    a("s_movk_i32 s%d, 176" % S_T1)
    a("v_mul_u32_u24 v4, s%d, v4" % S_T1)
    a("v_lshl_add_u32 v4, v%d, 3, v4" % V_KG)
    a("s_nop 3")
    role_branch(a, send([3, 4]), send([0, 1, 2]))
    a("s_lshl_b32 s%d, s%d, 6" % (S_T0, S_WV))
    a("v_add_u32 v5, s%d, v%d" % (S_T0, V_LANE))
    a("s_movk_i32 s%d, 6554" % S_T2)
    a("s_movk_i32 s%d, 2560" % S_T3)
    a("s_mul_i32 s%d, s%d, 160" % (S_T4, S_G))
    for m in range(nround):
        a("v_add_u32 v6, %d, v5" % (512 * m))
        a("v_mul_u32_u24 v7, s%d, v6" % S_T2)
        a("v_lshrrev_b32 v7, 16, v7")
        a("v_mul_u32_u24 v8, 10, v7")
        a("v_sub_u32 v8, v6, v8")
        a("v_mul_u32_u24 v9, s%d, v7" % S_T1)
        a("v_lshl_add_u32 v%d, v8, 4, v9" % (C_R + m))
        a("v_mul_u32_u24 v9, s%d, v7" % S_T3)
        a("v_lshl_add_u32 v9, v8, 4, v9")
        a("v_add_u32 v%d, s%d, v9" % (C_R + 4 + m, S_T4))
    a("s_waitcnt lgkmcnt(0)")
    a("s_barrier")
    def recv(tiles):
        def f(a):
            for k in range(nset):
                for n_, T in enumerate(tiles):
                    a("ds_read_b128 %s, v%d offset:%d" % (vr(C_WB + 12 * k + 4 * n_, 4), C_XA, k * 5120 + T * 1024))
            a("s_waitcnt lgkmcnt(0)")
            for k in range(nset):
                for n_, T in enumerate(tiles):
                    d = C_ACC + 20 * k + 4 * T
                    r = C_WB + 12 * k + 4 * n_
                    for q in (0, 2): a("v_pk_add_f32 %s, %s, %s" % (vr(d + q, 2), vr(d + q, 2), vr(r + q, 2)))
                    a("v_cvt_pk_bf16_f32 v%d, v%d, v%d" % (d, d, d + 1))
                    a("v_cvt_pk_bf16_f32 v%d, v%d, v%d" % (d + 1, d + 2, d + 3))
                    a("ds_write_b64 v4, %s offset:%d" % (vr(d, 2), OTILE + k * 64 * 176 + 32 * T))
        return f
    role_branch(a, recv([0, 1, 2]), recv([3, 4]))
    a("s_mul_i32 s%d, s%d, 2560" % (S_T0, s_row0))
    a("s_add_u32 s%d, s%d, %d" % (S_T0, S_T0, br * 1280))
    a("s_waitcnt lgkmcnt(0)")
    a("s_barrier")
    for m in range(nround):
        l = a.newlabel("fr")
        if m == nround - 1 and last_waves < 8:
            a("s_cmp_ge_u32 s%d, %d" % (S_WV, last_waves))
            a("s_cbranch_scc1 %s" % l)
        a("ds_read_b128 %s, v%d offset:%d" % (vr(C_O + 4 * m, 4), C_R + m, OTILE))
        a.label(l)
    a("s_waitcnt lgkmcnt(0)")
    for m in range(nround):
        l = a.newlabel("fs")
        if m == nround - 1 and last_waves < 8:
            a("s_cmp_ge_u32 s%d, %d" % (S_WV, last_waves))
            a("s_cbranch_scc1 %s" % l)
        a("buffer_store_dwordx4 %s, v%d, s[%d:%d], s%d offen %s" % (vr(C_O + 4 * m, 4), C_R + 4 + m, S_OUT, S_OUT + 3, S_T0, OUTST))
        a.label(l)
assert all((p * 6554) >> 16 == p // 10 for p in range(1536))

def poll_oa(a, half_):
    a("v_lshrrev_b32 v7, 3, v%d" % V_LANE)
    a("v_and_b32 v8, 7, v%d" % V_LANE)
    a("v_lshlrev_b32 v7, 7, v7")
    a("v_lshl_add_u32 v7, v8, 2, v7")
    a("s_lshl_b32 s%d, s%d, 1" % (S_T0, S_R))
    a("s_add_u32 s%d, s%d, %d" % (S_T0, S_T0, half_))
    a("s_lshl_b32 s%d, s%d, 10" % (S_T0, S_T0))
    a("s_add_u32 s%d, s%d, %d" % (S_T0, S_T0, F_OA))
    poll(a, 7, S_T0, "-1", "-1")

S_JR = S_DB
def phase3A(a):
    p3_dma_setup(a)
    p3_setup(a)
    a("s_waitcnt vmcnt(0)")
    oa_flag_off(a, S_T0, 1)
    publish(a, S_T0, None)
    poll_oa(a, 0)
    a("s_barrier")
    stamp(a, "attn")
    a("s_lshl_b32 s%d, s%d, 7" % (S_JR, S_R))
    p3_oloads(a, 0, S_JR, 0)
    wo_load(a, S_WO)
    a("s_waitcnt vmcnt(0)")
    a("s_barrier")
    stamp(a, "j0a")
    p3_mm(a, [0], lambda i: None)
    stamp(a, "j1a")
    p3_epilogue(a, 0, S_JR, 1)
    stamp(a, "j2a")

def phaseB(a):
    a("v_lshlrev_b32 v7, 7, v%d" % V_LANE)
    a("s_lshl_b32 s%d, s%d, 11" % (S_T0, S_G))
    a("s_add_u32 s%d, s%d, %d" % (S_T0, S_T0, F_PART))
    poll(a, 7, S_T0, "0xffff", "0")
    a("s_waitcnt lgkmcnt(0)")
    a("s_barrier")
    stamp(a, "poll1")
    apply_phase(a)
    stamp(a, "kvld")
    p3_setup(a)
    a("s_waitcnt vmcnt(0)")
    a("s_barrier")
    a("s_lshl_b32 s%d, s%d, 3" % (S_T0, S_R))
    a("s_add_u32 s%d, s%d, s%d" % (S_T0, S_T0, S_G))
    a("s_lshl_b32 s%d, s%d, 7" % (S_T0, S_T0))
    a("s_add_u32 s%d, s%d, %d" % (S_T0, S_T0, F_OB))
    publish(a, S_T0, 0)
    stamp(a, "attn")
    a("v_lshlrev_b32 v7, 7, v%d" % V_LANE)
    a("s_lshl_b32 s%d, s%d, 10" % (S_T0, S_R))
    a("s_add_u32 s%d, s%d, %d" % (S_T0, S_T0, F_OB))
    poll(a, 7, S_T0, "0xff", "0")
    a("s_barrier")
    stamp(a, "j0b")
    a("s_lshl_b32 s%d, s%d, 7" % (S_JR, S_R))
    p3_oloads(a, 1, S_JR, 0)
    p3_oloads(a, 1, S_JR, 1)
    p3_mm(a, [0, 1], lambda i: 9 - i)
    stamp(a, "j1b")
    p3_epilogue(a, 1, S_JR, 2)
    stamp(a, "j2b")
    a("s_barrier")
    wo_load(a, S_WO, skip0=True)
    poll_oa(a, 1)
    a("s_waitcnt vmcnt(0)")
    a("s_barrier")
    stamp(a, "j0a")
    a("s_lshl_b32 s%d, s%d, 7" % (S_JR, S_R))
    a("s_add_u32 s%d, s%d, 64" % (S_JR, S_JR))
    p3_oloads(a, 0, S_JR, 0)
    p3_mm(a, [0], lambda i: 9 - i)
    stamp(a, "j1a")
    p3_epilogue(a, 0, S_JR, 1)
    stamp(a, "j2a")

def epoch_update(a):
    l = a.newlabel("ep")
    a("s_cmp_eq_u32 s2, 0")
    a("s_cbranch_scc0 %s" % l)
    a("v_lshlrev_b32 v7, 7, v%d" % V_LANE)
    for k in range(4):
        a("s_mov_b32 s%d, %d" % (S_T0, F_KV + k * 64 * 128))
        poll(a, 7, S_T0, "-1", "-1")
    a("s_mov_b32 s%d, %d" % (S_T0, WS_FLAG))
    publish(a, S_T0, 0)
    a.label(l)

HEADER = """; sliding-window attention block + linear attention block, one fused launch (generated by gen3.py)
"""
def build():
    out = [HEADER, "; @launch grid=(256,1,1) block=(512,1,1) lds=163840\n"]
    out.append('.amdgcn_target "amdgcn-amd-amdhsa--gfx950"\n.text\n')
    a = Asm()
    stubs = []
    entry(a)
    phase1(a)
    if 'p1only' in OPT: a("s_branch L_fin2")
    lb = a.newlabel("brB")
    a("s_cmp_eq_u32 s%d, 0" % S_BR)
    a("s_cbranch_scc0 %s" % lb)
    phase2A(a, stubs)
    phase3A(a)
    a("s_branch L_fin")
    emit_stubs(a, stubs)
    a.label(lb)
    phaseB(a)
    a.label("L_fin")
    epoch_update(a)
    a.label("L_fin2")
    stamp(a, "end")
    if STAMPS: a("s_waitcnt vmcnt(0)")
    stamp_store(a)
    a.label("L_end"); a("s_endpgm")
    a.label("L_codeend")
    out.append(".globl %s\n.p2align 8\n.type %s,@function\n%s:\n" % (NAME, NAME, NAME) + a.text())
    if 'nocodepf' not in OPT:
        out.append(".set CODE_TOTAL, L_codeend - L_pcbase\n.set CODE_CHUNK, ((CODE_TOTAL / 8 + 127) / 128) * 128\n.set CODE_LAST, CODE_TOTAL - 4\n")
    out.append('.section .rodata,"a"\n.p2align 6\n')
    out.append((".amdhsa_kernel %s\n  .amdhsa_next_free_vgpr 256\n  .amdhsa_next_free_sgpr 102\n  .amdhsa_accum_offset 256\n"
                "  .amdhsa_group_segment_fixed_size 0\n  .amdhsa_kernarg_size 72\n  .amdhsa_user_sgpr_count 2\n"
                "  .amdhsa_user_sgpr_kernarg_segment_ptr 1\n  .amdhsa_system_sgpr_workgroup_id_x 1\n.end_amdhsa_kernel\n") % NAME)
    return "".join(out)

if __name__ == "__main__":
    OPT = set(sys.argv[2:])
    for x in sys.argv:
        if x.startswith("st="):
            STAMPS = True
            STMAP = {n: i for i, n in enumerate(x[3:].split(","))}
    for x in OPT:
        if x.startswith('sch='): SCHED = x[4:]
        if x.startswith('wsb='): WS_BASE = int(x[4:]) << 20
        if x.startswith('outst='): OUTST = x[6:].replace('+', ' ')
    if 'pfnt' in OPT: PFL = "nt"
    if 'dmant' in OPT: DML = "nt"
    if 'p1only' in OPT: S_ST = 84
    open(sys.argv[1], "w").write(build())
```

```python
import sys, struct
from asmlib import Asm, vr, sr

NAME = "concat_heads__sliding_block__linear_attn_block__prompt_kernel"
WS_KV   = 0x0000000
WS_O    = 0x0A00000
WS_PART = 0x0F00000
WS_FLAG = 0x1000000
WS_STAMP = 0x1080000
WS_SIZE = 0x1100000
O_BR = 128 * 20480
F_KV, F_PART, F_OA, F_OB = WS_FLAG + 0x1000, WS_FLAG + 0x5000, WS_FLAG + 0x9000, WS_FLAG + 0x11000
SPIN_LIMIT = 40000
ST, LD = "sc1", "sc1"
PFL = ""
DML = ""
STAMPS, STMAP, OPT = False, None, set()
SCHED = 'e'
WS_BASE = 0
OUTST = 'nt'

S_NONCE = 3
S_ST = 4
S_I, S_U = 22, 23
S_X, S_W, S_WS, S_OUT, S_WO, S_WOB = 24, 28, 32, 36, 40, 44
S_BR, S_R, S_G, S_WV, S_RG, S_CS = 48, 49, 50, 51, 52, 53
S_T0, S_T1, S_T2, S_T3, S_T4, S_T5 = 54, 55, 56, 57, 58, 59
S_DB, S_OFF = 60, 61
S_M0, S_M1, S_M2 = 62, 64, 66
S_D, S_SB, S_SOFF, S_STEP, S_J = 68, 72, 76, 77, 78
S_G1 = 82
S_MASK = 68

V_IMG, V_LANE, V_N, V_KG = 0, 1, 2, 3
V_DMA, V_XA, V_WA, V_PF, V_XT, V_WB0, V_WB1 = 10, 15, 19, 29, 32, 40, 60
V_ACC, V_ACC2, V_XP, V_DMA2, V_PFD, V_WA2 = 80, 120, 160, 240, 245, 246
LDS_W = 65536
XSLOT, WSLOT = 16384, 20480
LOG2E = 1.4426950408889634
QSCALE = LOG2E / (20.0 ** 0.5)

def f2u(x): return struct.unpack("<I", struct.pack("<f", x))[0]
def mfma16(d, x, y, c=None):
    return "v_mfma_f32_16x16x32_bf16 %s, %s, %s, %s" % (vr(d, 4), vr(x, 4), vr(y, 4), vr(d, 4) if c is None else c)
def mfma32(d, x, y, c=None):
    return "v_mfma_f32_32x32x16_bf16 %s, %s, %s, %s" % (vr(d, 16), vr(x, 4), vr(y, 4), vr(d, 16) if c is None else c)
def emit(a, item):
    if item is None: return
    if callable(item): item(a)
    elif isinstance(item, (list, tuple)):
        for x in item: emit(a, x)
    else: a(item)

class LQ:
    def __init__(self, a): self.a, self.n, self.done = a, 0, 0
    def issue(self, s, cnt=1):
        emit(self.a, s); self.n += cnt; return self.n
    def need(self, idx):
        if idx > self.done:
            cnt = self.n - idx
            self.a("s_waitcnt lgkmcnt(%d)" % min(cnt, 15))
            self.done = idx if cnt <= 15 else self.n - 15
    def drain(self):
        if self.n > self.done:
            self.a("s_waitcnt lgkmcnt(0)"); self.done = self.n

NST = 8
def rec(f, *args):
    r = Asm(); r.nlab = 900000; f(r, *args)
    return [l.strip() for l in r.lines]
def stamp(a, name):
    if not STAMPS or STMAP is None or name not in STMAP: return
    i = STMAP[name]
    a("%s s[%d:%d]" % ("s_memtime" if 'cyc' in OPT else "s_memrealtime", S_ST + 2 * i, S_ST + 2 * i + 1))
def stamp_dbg(a):
    a("s_memrealtime s[20:21]")
    a("s_load_dwordx2 s[24:25], s[0:1], 56")
    a("s_waitcnt lgkmcnt(0)")
    a("s_mov_b32 s26, 256"); a("s_mov_b32 s27, 0x20000")
    a("s_mov_b64 exec, 1")
    a("v_mov_b32 v4, 0")
    a("s_not_b32 s22, s101")
    for reg, slot in [(22, 0), (20, 1)] + [(S_ST + 2 * i, 2 + i) for i in range(NST)]:
        a("v_mov_b32 v5, s%d" % reg)
        a("buffer_atomic_umax v5, v4, s[24:27], 0 offen offset:%d" % (slot * 4))
    a("v_mov_b32 v5, s101")
    a("buffer_atomic_umax v5, v4, s[24:27], 0 offen offset:%d" % (10 * 4))
    a("s_mov_b64 exec, -1")

def stamp_store(a):
    if not STAMPS: return
    if 'dbg' in OPT: return stamp_dbg(a)
    a("s_memrealtime s[20:21]")
    a("s_memtime s[24:25]")
    a("s_waitcnt lgkmcnt(0)")
    a("s_lshl_b32 s%d, s2, 3" % S_T0)
    a("s_add_u32 s%d, s%d, s%d" % (S_T0, S_T0, S_WV))
    a("s_lshl_b32 s%d, s%d, 6" % (S_T0, S_T0))
    a("s_add_u32 s%d, s%d, %d" % (S_T0, S_T0, WS_STAMP))
    a("s_mov_b64 exec, 1")
    a("v_mov_b32 v4, 0")
    for i in range(NST):
        a("v_mov_b32 v5, s%d" % (S_ST + 2 * i))
        a("buffer_store_dword v5, v4, s[%d:%d], s%d offen offset:%d" % (S_WS, S_WS + 3, S_T0, i * 4))
    a("s_getreg_b32 s21, hwreg(HW_REG_XCC_ID)")
    a("s_getreg_b32 s22, hwreg(HW_REG_HW_ID)")
    for reg, slot in ((20, 15), (101, 14), (100, 13), (21, 12), (22, 11), (24, 10)):
        a("v_mov_b32 v5, s%d" % reg)
        a("buffer_store_dword v5, v4, s[%d:%d], s%d offen offset:%d" % (S_WS, S_WS + 3, S_T0, slot * 4))
    a("s_mov_b64 exec, -1")

def minwrap(a, v, m, tmp):
    a("v_subrev_u32 v%d, %d, v%d" % (tmp, m, v))
    a("v_min_u32 v%d, v%d, v%d" % (v, v, tmp))
def srd(a, d, lo, hi, size):
    a("s_mov_b32 s%d, s%d" % (d, lo)); a("s_mov_b32 s%d, s%d" % (d + 1, hi))
    a("s_mov_b32 s%d, %d" % (d + 2, size)); a("s_mov_b32 s%d, 0x20000" % (d + 3))
def role_branch(a, fw, fx):
    lx, ld = a.newlabel("rx"), a.newlabel("rd")
    a("s_cmp_eq_u32 s%d, 0" % S_CS)
    a("s_cbranch_scc0 %s" % (lx if fx else ld))
    emit(a, fw)
    if fx:
        a("s_branch %s" % ld)
        a.label(lx)
        emit(a, fx)
    a.label(ld)
def on_wave(a, wave, f):
    l = a.newlabel("ow")
    a("s_cmp_eq_u32 s%d, %d" % (S_WV, wave))
    a("s_cbranch_scc0 %s" % l)
    emit(a, f)
    a.label(l)

def entry(a):
    a("s_cmp_ge_u32 s2, 256")
    a("s_cbranch_scc1 L_end")
    if STAMPS:
        a("s_memrealtime s[100:101]")
        a("s_memtime s[62:63]")
    a("s_load_dwordx16 s[4:19], s[0:1], 0")
    a("s_load_dwordx2 s[20:21], s[0:1], 64")
    if 'badmap' in OPT:
        a("s_lshr_b32 s%d, s2, 5" % S_T0)
        a("s_and_b32 s%d, s2, 31" % S_I)
    else:
        a("s_and_b32 s%d, s2, 7" % S_T0)
        a("s_lshr_b32 s%d, s2, 3" % S_I)
    a("v_lshrrev_b32 v4, 6, v0")
    a("v_and_b32 v%d, 63, v0" % V_LANE)
    a("v_and_b32 v%d, 15, v0" % V_N)
    a("v_readfirstlane_b32 s%d, v4" % S_WV)
    a("v_lshrrev_b32 v%d, 4, v%d" % (V_KG, V_LANE))
    if 'brlo' in OPT or 'brhi' in OPT:
        a("s_lshr_b32 s%d, s%d, 2" % (S_BR, S_T0))
        if 'brhi' in OPT: a("s_xor_b32 s%d, s%d, 1" % (S_BR, S_BR))
        a("s_and_b32 s%d, s%d, 3" % (S_T2, S_T0))
    else:
        a("s_and_b32 s%d, s%d, 1" % (S_BR, S_T0))
        a("s_lshr_b32 s%d, s%d, 1" % (S_T2, S_T0))
    a("s_and_b32 s%d, s%d, 1" % (S_T3, S_T2))
    a("s_lshl_b32 s%d, s%d, 3" % (S_T3, S_T3))
    a("s_and_b32 s%d, s%d, 7" % (S_T4, S_I))
    a("s_add_u32 s%d, s%d, s%d" % (S_R, S_T3, S_T4))
    a("s_lshr_b32 s%d, s%d, 1" % (S_T3, S_T2))
    a("s_lshr_b32 s%d, s%d, 3" % (S_T4, S_I))
    a("s_lshl_b32 s%d, s%d, 2" % (S_T5, S_T3))
    a("s_add_u32 s%d, s%d, s%d" % (S_G, S_T5, S_T4))
    a("s_lshl_b32 s%d, s%d, 1" % (S_T3, S_T3))
    a("s_and_b32 s%d, s%d, 1" % (S_T5, S_T4))
    a("s_add_u32 s%d, s%d, s%d" % (S_T3, S_T3, S_T5))
    a("s_lshr_b32 s%d, s%d, 1" % (S_T4, S_T4))
    a("s_lshl_b32 s%d, s%d, 2" % (S_T4, S_T4))
    a("s_add_u32 s%d, s%d, s%d" % (S_G1, S_T3, S_T4))
    a("s_and_b32 s%d, s%d, 3" % (S_RG, S_WV))
    a("s_lshr_b32 s%d, s%d, 2" % (S_CS, S_WV))
    if 'nocodepf' not in OPT:
        def cpf(a):
            a("s_getpc_b64 s[56:57]")
            a.label("L_pcbase")
            a("s_and_b32 s%d, s%d, 7" % (S_T4, S_I))
            a("s_mul_i32 s%d, s%d, CODE_CHUNK" % (S_T4, S_T4))
            a("v_lshlrev_b32 v4, 7, v%d" % V_LANE)
            a("v_add_u32 v4, s%d, v4" % S_T4)
            a("v_min_u32 v4, CODE_LAST, v4")
            a("global_load_dword v%d, v4, s[56:57]" % V_PFD)
        on_wave(a, 7, cpf)

def dma_setup(a):
    stamp(a, "ids")
    def fw(a):
        a("s_mul_i32 s%d, s%d, %d" % (S_T0, S_RG, 16 * 3840))
        a("s_mul_i32 s%d, s%d, 160" % (S_T1, S_G))
        a("s_mul_i32 s%d, s%d, 320" % (S_T2, S_G1))
        a("s_cmp_eq_u32 s%d, 0" % S_BR)
        a("s_cselect_b32 s%d, s%d, s%d" % (S_T2, S_T2, S_T1))
        a("s_cselect_b32 s%d, 0, 1120" % S_T5)
        a("s_add_u32 s%d, s%d, s%d" % (S_T2, S_T2, S_T0))
        a("s_add_u32 s%d, s%d, 1280" % (S_T2, S_T2))
        a("s_add_u32 s%d, s%d, s%d" % (S_T0, S_T0, S_T1))
        a("s_movk_i32 s%d, 3277" % S_T1)
        a("s_movk_i32 s%d, 3840" % S_T3)
        a("s_mov_b32 s%d, %d" % (S_T4, 245760 - 160))
        for j in range(5):
            p, kk, q, u, t = 4, 5, 6, 7, 8
            a("v_add_u32 v%d, %d, v%d" % (p, 64 * j, V_LANE))
            a("v_mul_u32_u24 v%d, s%d, v%d" % (kk, S_T1, p))
            a("v_lshrrev_b32 v%d, 16, v%d" % (kk, kk))
            a("v_mul_u32_u24 v%d, 20, v%d" % (q, kk))
            a("v_lshrrev_b32 v%d, 2, v%d" % (u, kk))
            a("v_sub_u32 v%d, v%d, v%d" % (q, p, q))
            a("v_and_b32 v%d, 2, v%d" % (u, u))
            a("v_sub_u32 v%d, v%d, v%d" % (u, q, u))
            a("v_add_u32 v%d, 20, v%d" % (t, u))
            a("v_min_u32 v%d, v%d, v%d" % (u, u, t))
            a("v_add_u32 v%d, 6, v%d" % (t, u))
            a("v_lshrrev_b32 v%d, 4, v%d" % (t, t))
            a("v_mul_u32_u24 v%d, s%d, v%d" % (kk, S_T3, kk))
            a("v_lshl_add_u32 v%d, v%d, 4, v%d" % (kk, u, kk))
            a("v_mad_u32_u24 v%d, v%d, s%d, v%d" % (q, t, S_T5, kk))
            a("v_add_u32 v%d, s%d, v%d" % (V_DMA + j, S_T2, q))
            a("v_mad_u32_u24 v%d, v%d, s%d, v%d" % (q, t, S_T4, kk))
            a("v_add_u32 v%d, s%d, v%d" % (V_DMA2 + j, S_T0, q))
        a("s_mul_i32 s%d, s%d, 5120" % (S_T0, S_RG))
        for k in range(4): a("s_add_u32 s%d, s%d, %d" % (S_SB + k, S_T0, LDS_W + k * WSLOT))
        a("s_mov_b32 s%d, %d" % (S_STEP, 64 * 3840))
        for k in range(1, 4): a("s_mov_b32 s%d, 0" % (S_J + k))
        a("v_and_b32 v4, 31, v%d" % V_LANE)
        a("v_lshrrev_b32 v5, 5, v%d" % V_LANE)
        a("v_min_u32 v4, 19, v4")
        a("s_lshr_b32 s%d, s%d, 2" % (S_T0, S_G))
        a("v_mul_u32_u24 v6, 13, v4"); a("v_lshrrev_b32 v6, 7, v6")
        a("v_mul_u32_u24 v7, 52, v4"); a("v_lshrrev_b32 v7, 8, v7")
        a("v_mul_u32_u24 v8, 5, v7"); a("v_sub_u32 v8, v4, v8")
        a("v_lshlrev_b32 v8, 7, v8")
        a("v_lshl_add_u32 v6, v5, 6, v6")
        a("s_lshl_b32 s%d, s%d, 1" % (S_T2, S_I))
        a("v_add_u32 v6, s%d, v6" % S_T2)
        a("v_mul_u32_u24 v6, s%d, v6" % S_T3)
        a("v_and_b32 v9, 1, v7")
        a("s_movk_i32 s%d, 1280" % S_T2)
        a("v_mul_u32_u24 v9, s%d, v9" % S_T2)
        a("v_add3_u32 v6, v6, v9, v8")
        a("s_mul_i32 s%d, s%d, 640" % (S_T0, S_T0))
        a("s_add_u32 s%d, s%d, 1280" % (S_T2, S_T0))
        a("v_add_u32 v%d, s%d, v6" % (V_PF + 1, S_T2))
        a("v_lshl_add_u32 v7, v5, 7, v7")
        a("s_lshl_b32 s%d, s%d, 2" % (S_T2, S_I))
        a("v_add_u32 v7, s%d, v7" % S_T2)
        a("v_mul_u32_u24 v7, s%d, v7" % S_T3)
        a("v_add3_u32 v%d, v7, v8, s%d" % (V_PF + 2, S_T0))
        a("v_mov_b32 v%d, 0" % V_PF)
    def fx(a):
        a("s_lshl_b32 s%d, s%d, 7" % (S_T0, S_R))
        a("s_lshl_b32 s%d, s%d, 5" % (S_T1, S_RG))
        a("s_add_u32 s%d, s%d, s%d" % (S_T0, S_T0, S_T1))
        a("s_mul_i32 s%d, s%d, 1280" % (S_T0, S_T0))
        a("s_movk_i32 s%d, 1280" % S_T1)
        a("v_lshrrev_b32 v4, 3, v%d" % V_LANE)
        a("v_and_b32 v5, 7, v%d" % V_LANE)
        a("v_xor_b32 v5, v5, v4")
        a("v_mul_u32_u24 v4, s%d, v4" % S_T1)
        a("v_lshl_add_u32 v4, v5, 4, v4")
        a("v_add_u32 v%d, s%d, v4" % (V_DMA, S_T0))
        for j in range(1, 5): a("v_mov_b32 v%d, v%d" % (V_DMA + j, V_DMA))
        for j in range(5): a("v_mov_b32 v%d, 0" % (V_DMA2 + j))
        a("s_lshl_b32 s%d, s%d, 12" % (S_T0, S_RG))
        for k in range(4): a("s_add_u32 s%d, s%d, %d" % (S_SB + k, S_T0, k * XSLOT))
        a("s_movk_i32 s%d, 128" % S_STEP)
        for k in range(1, 4): a("s_mov_b32 s%d, %d" % (S_J + k, k * 10240))
        a("v_and_b32 v4, 31, v%d" % V_LANE)
        a("v_lshrrev_b32 v5, 5, v%d" % V_LANE)
        a("s_lshr_b32 s%d, s%d, 3" % (S_T0, S_R))
        a("s_lshl_b32 s%d, s%d, 5" % (S_T0, S_T0))
        a("s_add_u32 s%d, s%d, s%d" % (S_T0, S_T0, S_I))
        a("s_mul_i32 s%d, s%d, %d" % (S_T0, S_T0, 32 * 1280))
        a("v_mul_u32_u24 v6, s%d, v4" % S_T1)
        a("v_lshl_add_u32 v6, v5, 7, v6")
        a("v_add_u32 v%d, s%d, v6" % (V_PF, S_T0))
        a("v_mov_b32 v%d, 0" % (V_PF + 1)); a("v_mov_b32 v%d, 0" % (V_PF + 2))
    role_branch(a, fw, fx)
    a("s_mov_b32 s%d, 0" % S_SOFF)

def entry_srd(a):
    a("s_waitcnt lgkmcnt(0)")
    a("s_cmp_eq_u32 s%d, 0" % S_BR)
    a("s_cselect_b32 s%d, s4, s10" % S_X)
    a("s_cselect_b32 s%d, s5, s11" % (S_X + 1))
    a("s_mov_b32 s%d, 2621440" % (S_X + 2))
    a("s_mov_b32 s%d, 0x20000" % (S_X + 3))
    a("s_cselect_b32 s%d, s6, s12" % S_W)
    a("s_cselect_b32 s%d, s7, s13" % (S_W + 1))
    a("s_mov_b32 s%d, 2457600" % (S_W + 2))
    a("s_mov_b32 s%d, 0x20000" % (S_W + 3))
    a("s_cmp_eq_u32 s%d, 0" % S_CS)
    a("s_cselect_b32 s%d, s%d, s%d" % (S_D, S_W, S_X))
    a("s_cselect_b32 s%d, s%d, s%d" % (S_D + 1, S_W + 1, S_X + 1))
    a("s_cselect_b32 s%d, s%d, s%d" % (S_D + 2, S_W + 2, S_X + 2))
    a("s_mov_b32 s%d, 0x20000" % (S_D + 3))

def entry_srd2(a):
    if WS_BASE:
        a("s_add_u32 s20, s20, %d" % WS_BASE)
        a("s_addc_u32 s21, s21, 0")
    srd(a, S_WS, 20, 21, WS_SIZE)
    srd(a, S_OUT, 16, 17, 5242880)
    srd(a, S_WO, 8, 9, 819200)
    srd(a, S_WOB, 14, 15, 819200)
    if STAMPS:
        a("s_mov_b32 s101, s100")
        a("s_mov_b32 s100, s62")
        if S_ST == 4:
            for i in range(NST): a("s_mov_b32 s%d, 0" % (S_ST + 2 * i))

def pf(kind, idx, k):
    def f(a):
        if 'nopf' in OPT: return
        def body(a):
            if kind == 'x': a("s_mov_b32 s%d, %d" % (S_OFF, idx * 256)); s_, v = S_X, V_PF
            elif kind == 'w': a("s_mov_b32 s%d, %d" % (S_OFF, idx * 128 * 3840)); s_, v = S_W, V_PF + 1
            else: a("s_mov_b32 s%d, %d" % (S_OFF, idx * 256 * 3840)); s_, v = S_W, V_PF + 2
            if 'pfhalf' in OPT and kind == 'x': a("s_mov_b32 exec_hi, 0")
            if 'nopfx' in OPT and kind == 'x': return
            if 'nopfw' in OPT and kind != 'x': return
            a("buffer_load_dword v%d, v%d, s[%d:%d], s%d offen %s" % (V_PFD, v, s_, s_ + 3, S_OFF, PFL))
            if 'pfhalf' in OPT and kind == 'x': a("s_mov_b32 exec_hi, -1")
        on_wave(a, (4 + k) if kind == 'x' else k, body)
    return f

def dma(sig, j):
    def f(a):
        if 'nodma' in OPT and sig >= 3: return
        slot = sig % 4
        def body(a):
            a("s_add_u32 m0, s%d, %d" % (S_SB + slot, j * 1024))
            if sig < 10:
                if 1 <= j <= 3:
                    a("s_add_u32 s%d, s%d, s%d" % (S_OFF, S_SOFF, S_J + j)); so = S_OFF
                else:
                    a("s_nop 0"); so = S_SOFF
                a("buffer_load_dwordx4 v%d, s[%d:%d], s%d offen %s lds" % (V_DMA + j, S_D, S_D + 3, so, DML))
            else:
                a("s_mov_b32 s%d, %d" % (S_OFF, (sig - 10) * 128 * 3840))
                a("buffer_load_dwordx4 v%d, s[%d:%d], s%d offen %s lds" % (V_DMA2 + j, S_D, S_D + 3, S_OFF, DML))
        if sig >= 10 or j == 4: role_branch(a, body, None)
        else: body(a)
        if sig < 10 and j == 4: a("s_add_u32 s%d, s%d, s%d" % (S_SOFF, S_SOFF, S_STEP))
    return f

def img_pos(a, dst, tmp):
    a("v_lshl_add_u32 v%d, v%d, 2, v%d" % (tmp, V_KG, V_N))
    a("v_and_b32 v%d, 15, v%d" % (tmp, tmp))
    a("v_lshl_add_u32 v%d, v%d, 4, v%d" % (tmp, V_KG, tmp))
    a("v_lshlrev_b32 v%d, 4, v%d" % (dst, tmp))

E_, RP, BB, W4, TM = V_ACC2, V_ACC2 + 1, V_ACC2 + 2, V_ACC2 + 3, V_ACC2 + 4
def addr1_setup(a):
    a("v_and_b32 v4, 7, v%d" % V_N)
    a("s_lshl_b32 s%d, s%d, 12" % (S_T0, S_RG))
    a("v_lshlrev_b32 v5, 7, v%d" % V_N)
    a("v_xor_b32 v4, v4, v%d" % V_KG)
    a("v_lshl_add_u32 v4, v4, 4, v5")
    a("s_xor_b32 s%d, s%d, 1" % (S_T5, S_CS))
    a("s_lshl_b32 s%d, s%d, 6" % (S_T1, S_T5))
    a("s_lshl_b32 s%d, s%d, 11" % (S_T2, S_CS))
    a("s_or_b32 s%d, s%d, s%d" % (S_T1, S_T1, S_T2))
    a("s_or_b32 s%d, s%d, s%d" % (S_T1, S_T1, S_T0))
    a("v_xor_b32 v%d, s%d, v4" % (V_XA, S_T1))
    a("v_xor_b32 v%d, 0x800, v%d" % (V_XA + 1, V_XA))
    a("v_xor_b32 v%d, 64, v%d" % (V_XA + 2, V_XA))
    a("v_xor_b32 v%d, 64, v%d" % (V_XA + 3, V_XA + 1))
    a("v_and_b32 v4, 3, v%d" % V_N)
    a("v_lshrrev_b32 v%d, 2, v%d" % (RP, V_N))
    a("v_and_b32 v7, 1, v%d" % V_KG)
    a("v_lshl_add_u32 v%d, v%d, 3, v%d" % (RP, V_KG, RP))
    a("s_movk_i32 s%d, 320" % S_T1)
    a("v_lshlrev_b32 v7, 5, v7")
    a("v_mul_u32_u24 v%d, s%d, v%d" % (RP, S_T1, RP))
    a("v_lshl_add_u32 v%d, v4, 3, v7" % E_)
    a("v_add_u32 v%d, %d, v%d" % (RP, LDS_W, RP))
    a("v_add_u32 v%d, v%d, v%d" % (BB, RP, E_))
    a("s_mul_i32 s%d, s%d, 160" % (S_T2, S_CS))
    a("s_mul_i32 s%d, s%d, 80" % (S_T3, S_CS))
    a("s_mul_i32 s%d, s%d, 10240" % (S_T0, S_T5))
    a("s_mul_i32 s%d, s%d, 10240" % (S_T1, S_CS))
    def sA(T):
        a("s_add_u32 s%d, s%d, %d" % (S_T4, S_T2, 40 * T))
        a("s_add_u32 s%d, s%d, %d" % (S_T5, S_T3, (T >> 1) * 160 + 40 * (T & 1)))
        a("s_cmp_eq_u32 s%d, 0" % S_BR)
        a("s_cselect_b32 s%d, s%d, s%d" % (S_T4, S_T4, S_T5))
    for T in range(3):
        sA(T)
        a("s_add_u32 s%d, s%d, s%d" % (S_T5, S_T4, S_T0))
        a("v_add_u32 v%d, s%d, v%d" % (V_WA + T, S_T5, BB))
        a("s_add_u32 s%d, s%d, s%d" % (S_T5, S_T4, S_T1))
        a("v_add_u32 v%d, s%d, v%d" % (V_WA + 5 + T, S_T5, BB))
    sA(3)
    a("v_add_u32 v5, s%d, v%d" % (S_T4, E_))
    minwrap(a, 5, 320, TM)
    a("v_add_u32 v5, v5, v%d" % RP)
    a("v_add_u32 v%d, s%d, v5" % (V_WA + 3, S_T0))
    a("v_add_u32 v%d, s%d, v5" % (V_WA + 8, S_T1))
    a("s_cmp_eq_u32 s%d, 0" % S_BR)
    a("s_cselect_b32 s%d, s%d, s%d" % (S_T4, S_T2, S_T3))
    a("s_cselect_b32 s%d, 0, 80" % S_T5)
    a("s_add_u32 s%d, s%d, 32" % (S_T4, S_T4))
    a("v_mul_u32_u24 v%d, 40, v4" % (W4))
    a("v_lshrrev_b32 v5, 1, v4")
    a("v_add_u32 v%d, v%d, v7" % (W4, W4))
    a("v_mad_u32_u24 v5, v5, s%d, v%d" % (S_T5, W4))
    a("v_add_u32 v5, s%d, v5" % S_T4)
    minwrap(a, 5, 320, TM)
    a("v_add_u32 v5, v5, v%d" % RP)
    a("v_add_u32 v%d, s%d, v5" % (V_WA + 4, S_T0))
    a("v_add_u32 v%d, s%d, v5" % (V_WA + 9, S_T1))

def addr2_setup(a):
    a("s_mul_i32 s%d, s%d, 10240" % (S_T1, S_CS))
    for seg in range(2):
        for T in range(4):
            if seg == 1 and T == 3: continue
            a("s_add_u32 s%d, s%d, %d" % (S_T4, S_T1, seg * 160 + 40 * T))
            a("v_add_u32 v%d, s%d, v%d" % (V_WA2 + seg * 5 + T, S_T4, BB))
    a("v_add_u32 v5, 280, v%d" % E_)
    minwrap(a, 5, 320, TM)
    a("v_add3_u32 v%d, v5, v%d, s%d" % (V_WA2 + 8, RP, S_T1))
    a("s_add_u32 s%d, s%d, 32" % (S_T4, S_T1))
    a("v_add3_u32 v%d, v%d, v%d, s%d" % (V_WA2 + 4, W4, RP, S_T4))
    a("v_add_u32 v5, 192, v%d" % (W4))
    minwrap(a, 5, 320, TM)
    a("v_add3_u32 v%d, v5, v%d, s%d" % (V_WA2 + 9, RP, S_T1))
    img_pos(a, V_IMG, 4)

def p1_reads(s, hf):
    if 'noread' in OPT: return ["s_nop 0"] * 12
    slot = s % 4
    wb = V_WB0 if hf == 0 else V_WB1
    L = []
    for tp in range(2):
        dst = (V_XT + 4 * tp) if hf == 0 else (V_XP + (s * 2 + tp) * 4)
        L.append("ds_read_b128 %s, v%d offset:%d" % (vr(dst, 4), V_XA + hf * 2 + tp, slot * XSLOT))
    for T in range(5):
        for rd in range(2):
            L.append("ds_read_b64_tr_b16 %s, v%d offset:%d" % (vr(wb + 4 * T + 2 * rd, 2), V_WA + hf * 5 + T, slot * WSLOT + rd * 1280))
    return L
def p1_mfmas(s, hf, first):
    if 'nomfma' in OPT: return ["s_nop 0"] * 10
    wb = V_WB0 if hf == 0 else V_WB1
    return [mfma16(V_ACC + (tp * 5 + T) * 4, (V_XT + 4 * tp) if hf == 0 else (V_XP + (s * 2 + tp) * 4), wb + 4 * T, "0" if first else None)
            for T in range(5) for tp in range(2)]
def p2_reads(u):
    v, seg = u >> 1, u & 1
    slot = (10 + v) % 4
    wb = V_WB0 if (u & 1) == 0 else V_WB1
    return ["ds_read_b64_tr_b16 %s, v%d offset:%d" % (vr(wb + 4 * T + 2 * rd, 2), V_WA2 + seg * 5 + T, slot * WSLOT + rd * 1280)
            for T in range(5) for rd in range(2)]
def p2_mfmas(u):
    wb = V_WB0 if (u & 1) == 0 else V_WB1
    return [mfma16(V_ACC2 + (tp * 5 + T) * 4, V_XP + (u * 2 + tp) * 4, wb + 4 * T, "0" if u == 0 else None)
            for T in range(5) for tp in range(2)]

def half(a, lq, mf, needs, reads, sched, extra):
    ids = []
    reads = list(reads)
    for i, m in enumerate(mf):
        lq.need(needs[i])
        a(m)
        for _ in range(sched[i]):
            if reads: ids.append(lq.issue(reads.pop(0)))
        if i in extra: emit(a, extra[i])
    while reads: ids.append(lq.issue(reads.pop(0)))
    return ids

def epi1_A(a):
    a("s_lshr_b32 s%d, s%d, 2" % (S_T0, S_G1))
    a("s_lshl_b32 s%d, s%d, 3" % (S_T0, S_T0))
    a("s_and_b32 s%d, s%d, 3" % (S_T1, S_G1))
    a("s_lshl_b32 s%d, s%d, 1" % (S_T1, S_T1))
    a("s_add_u32 s%d, s%d, s%d" % (S_T0, S_T0, S_T1))
    a("s_add_u32 s%d, s%d, s%d" % (S_T0, S_T0, S_CS))
    a("s_lshl_b32 s%d, s%d, 6" % (S_T0, S_T0))
    a("s_lshl_b32 s%d, s%d, 2" % (S_T1, S_R))
    a("s_add_u32 s%d, s%d, s%d" % (S_T0, S_T0, S_T1))
    a("s_add_u32 s%d, s%d, s%d" % (S_T0, S_T0, S_RG))
    a("s_mul_i32 s%d, s%d, 5120" % (S_T0, S_T0))
    a("s_add_u32 s%d, s%d, %d" % (S_T0, S_T0, WS_KV))
    a("s_add_u32 s%d, s%d, 4096" % (S_T1, S_T0))
    def pack(swap):
        def f(a):
            for T in range(5):
                e = V_ACC2 + T * 4
                for t in range(2):
                    tp = t ^ swap
                    d = V_ACC + (tp * 5 + T) * 4
                    a("v_cvt_pk_bf16_f32 v%d, v%d, v%d" % (e + 2 * t, d, d + 1))
                    a("v_cvt_pk_bf16_f32 v%d, v%d, v%d" % (e + 2 * t + 1, d + 2, d + 3))
                a("buffer_store_dwordx4 %s, v%d, s[%d:%d], s%d offen offset:%d %s" % (vr(e, 4), V_IMG, S_WS, S_WS + 3, S_T1 if T == 4 else S_T0, (T & 3) * 1024, ST))
                if 'dbl' in OPT:
                    a("buffer_store_dwordx4 %s, v%d, s[%d:%d], s%d offen offset:%d" % (vr(e, 4), V_IMG, S_WS, S_WS + 3, S_T1 if T == 4 else S_T0, (T & 3) * 1024))
        return f
    role_branch(a, pack(0), pack(1))
    a("s_nop 1")

def phi(a, regs, tmp):
    a("s_mov_b32 s%d, 0x%x" % (S_T4, f2u(LOG2E)))
    a("s_mov_b32 s%d, 0x%x" % (S_T5, f2u(LOG2E)))
    a("s_mov_b32 s%d, 0x%x" % (S_M2, f2u(1e-6)))
    a("s_mov_b32 s%d, 0x%x" % (S_M2 + 1, f2u(1e-6)))
    for i in range(0, len(regs), 4):
        g = regs[i:i + 4]
        assert g[0] % 2 == 0 and g[1] == g[0] + 1 and g[2] % 2 == 0 and g[3] == g[2] + 1
        for k in (0, 2): a("v_pk_mul_f32 %s, %s, s[%d:%d]" % (vr(tmp + k, 2), vr(g[k], 2), S_T4, S_T5))
        for k in range(4): a("v_exp_f32_e64 v%d, v%d clamp" % (tmp + k, tmp + k))
        for k in range(4): a("v_max_f32 v%d, 0, v%d" % (g[k], g[k]))
        for k in (0, 2): a("v_pk_add_f32 %s, %s, s[%d:%d]" % (vr(g[k], 2), vr(g[k], 2), S_M2, S_M2 + 1))
        for k in (0, 2): a("v_pk_add_f32 %s, %s, %s" % (vr(g[k], 2), vr(g[k], 2), vr(tmp + k, 2)))

def piece_decode(a):
    a("s_and_b32 s%d, s%d, 1" % (S_T0, S_WV))
    a("s_lshl_b32 s%d, s%d, 6" % (S_T0, S_T0))
    a("v_add_u32 v5, s%d, v%d" % (S_T0, V_LANE))
    a("s_movk_i32 s%d, 2731" % S_T1)
    a("v_mul_u32_u24 v6, s%d, v5" % S_T1)
    a("v_lshrrev_b32 v6, 16, v6")
    a("v_mul_u32_u24 v7, 24, v6")
    a("v_sub_u32 v7, v5, v7")

def epi1_B(a):
    acc = lambda tp, T: V_ACC + (tp * 5 + T) * 4
    raw = V_WB0
    TMP = V_ACC2
    a("s_nop 7")
    for tp in range(2):
        for k in range(4): a("v_mov_b32 v%d, v%d" % (raw + tp * 4 + k, acc(tp, 4) + k))
    regs = []
    for T in (0, 1, 4):
        for tp in range(2): regs += [acc(tp, T) + k for k in range(4)]
    phi(a, regs, TMP)
    a("s_mov_b32 s%d, 0x00ff00ff" % S_M0)
    a("s_mov_b32 s%d, 0x00ff00ff" % (S_M0 + 1))
    for tp in range(2):
        for k in range(4):
            a("v_cndmask_b32_e64 v%d, v%d, v%d, s[%d:%d]" % (acc(tp, 4) + k, raw + tp * 4 + k, acc(tp, 4) + k, S_M0, S_M0 + 1))
    P = V_WB1
    for T in range(5):
        for tp in range(2):
            d = acc(tp, T)
            a("v_cvt_pk_bf16_f32 v%d, v%d, v%d" % (P + 4 * T + 2 * tp, d, d + 1))
            a("v_cvt_pk_bf16_f32 v%d, v%d, v%d" % (P + 4 * T + 2 * tp + 1, d + 2, d + 3))
    TB = V_WB0 + 8
    a("v_mov_b32 v%d, 0x3f803f80" % TMP)
    for k in range(4):
        a("v_cndmask_b32_e64 v%d, v%d, v%d, s[%d:%d]" % (TB + k, P + 16 + k, TMP, S_M0, S_M0 + 1))
    F0, F1, V0, V1, TA = P, P + 4, P + 8, P + 12, P + 16
    D = V_ACC
    a("s_mul_i32 s%d, s%d, 7168" % (S_T0, S_WV))
    a("v_lshlrev_b32 v4, 4, v%d" % V_LANE)
    for i, (x, y) in enumerate([(F0, V0), (F1, V1), (F0, TB), (F1, TB), (TA, V0), (TA, V1), (TA, TB)]):
        a(mfma16(D + 4 * i, x, y, "0"))
    a("v_add_u32 v4, s%d, v4" % S_T0)
    piece_decode(a)
    M = TMP
    a("s_lshr_b32 s%d, s%d, 1" % (S_T2, S_WV))
    a("s_and_b32 s%d, s%d, 1" % (S_T3, S_T2))
    a("s_lshr_b32 s%d, s%d, 1" % (S_T2, S_T2))
    a("s_lshl_b32 s%d, s%d, 2" % (S_T4, S_T3))
    a("s_sub_u32 s%d, s%d, 8" % (S_T4, S_T4))
    a("v_add_u32 v8, s%d, v7" % S_T4)
    a("v_cmp_gt_u32_e64 s[%d:%d], 20, v7" % (S_M0, S_M0 + 1))
    a("v_cmp_gt_u32_e64 s[%d:%d], 16, v7" % (S_M1, S_M1 + 1))
    a("v_cmp_gt_u32_e64 s[%d:%d], 4, v6" % (S_M2, S_M2 + 1))
    a("s_barrier")
    for i in range(7):
        a("ds_write_b128 v4, %s offset:%d" % (vr(D + 4 * i, 4), i * 1024))
    a("v_cndmask_b32_e64 v8, 0, v8, s[%d:%d]" % (S_M0, S_M0 + 1))
    a("v_cndmask_b32_e64 v8, v8, v7, s[%d:%d]" % (S_M1, S_M1 + 1))
    a("v_mov_b32 v9, s%d" % S_T3)
    a("v_cndmask_b32_e64 v9, v9, v6, s[%d:%d]" % (S_M2, S_M2 + 1))
    a("v_lshl_add_u32 v8, v9, 4, v8")
    a("s_add_u32 s%d, s%d, 4" % (S_T4, S_T3))
    a("v_mov_b32 v9, s%d" % S_T4)
    a("v_mov_b32 v%d, s%d" % (M, S_T3))
    a("v_cndmask_b32_e64 v9, v9, v%d, s[%d:%d]" % (M, S_M2, S_M2 + 1))
    a("s_add_u32 s%d, s%d, 2" % (S_T4, S_T3))
    a("v_mov_b32 v%d, s%d" % (M, S_T4))
    a("v_cndmask_b32_e64 v%d, 6, v%d, s[%d:%d]" % (M, M, S_M2, S_M2 + 1))
    a("v_cndmask_b32_e64 v9, v%d, v9, s[%d:%d]" % (M, S_M1, S_M1 + 1))
    a("v_lshlrev_b32 v9, 10, v9")
    a("v_lshl_add_u32 v8, v8, 4, v9")
    a("s_mul_i32 s%d, s%d, %d" % (S_T4, S_T2, 4 * 7168))
    a("v_add_u32 v8, s%d, v8" % S_T4)
    a("v_cmp_gt_u32_e64 s[%d:%d], 21, v7" % (S_M0, S_M0 + 1))
    a("v_cmp_gt_u32_e64 s[%d:%d], 5, v6" % (S_M1, S_M1 + 1))
    a("v_min_u32 v8, %d, v8" % (8 * 7168 - 3 * 7168 - 16))
    a("s_lshl_b32 s%d, s%d, 4" % (S_T0, S_G))
    a("s_add_u32 s%d, s%d, s%d" % (S_T0, S_T0, S_R))
    a("s_lshl_b32 s%d, s%d, 12" % (S_T0, S_T0))
    a("s_lshr_b32 s%d, s%d, 1" % (S_T1, S_WV))
    a("s_lshl_b32 s%d, s%d, 10" % (S_T1, S_T1))
    a("s_add_u32 s%d, s%d, s%d" % (S_T0, S_T0, S_T1))
    a("s_add_u32 s%d, s%d, %d" % (S_T0, S_T0, WS_PART))
    a("v_lshlrev_b32 v5, 3, v5")
    a("s_waitcnt lgkmcnt(0)")
    a("s_barrier")
    a("s_and_b64 s[%d:%d], s[%d:%d], s[%d:%d]" % (S_M0, S_M0 + 1, S_M0, S_M0 + 1, S_M1, S_M1 + 1))
    E = V_ACC
    for rg in range(4): a("ds_read_b128 %s, v8 offset:%d" % (vr(E + 4 * rg, 4), rg * 7168))
    a("s_waitcnt lgkmcnt(0)")
    for k in (0, 2):
        a("v_pk_add_f32 %s, %s, %s" % (vr(E + k, 2), vr(E + k, 2), vr(E + 4 + k, 2)))
        a("v_pk_add_f32 %s, %s, %s" % (vr(E + 8 + k, 2), vr(E + 8 + k, 2), vr(E + 12 + k, 2)))
    for k in (0, 2): a("v_pk_add_f32 %s, %s, %s" % (vr(E + k, 2), vr(E + k, 2), vr(E + 8 + k, 2)))
    a("v_cvt_pk_bf16_f32 v%d, v%d, v%d" % (E, E, E + 1))
    a("v_cvt_pk_bf16_f32 v%d, v%d, v%d" % (E + 1, E + 2, E + 3))
    a("s_mov_b64 exec, s[%d:%d]" % (S_M0, S_M0 + 1))
    a("buffer_store_dwordx2 %s, v5, s[%d:%d], s%d offen %s" % (vr(E, 2), S_WS, S_WS + 3, S_T0, ST))
    a("s_mov_b64 exec, -1")

LDS_Q = 143360
S_PM, S_PB = 80, 82
V_PO = 88
P_SUM = V_XP
def pre2(a):
    lb, ld = a.newlabel("p2b"), a.newlabel("p2d")
    a("s_cmp_eq_u32 s%d, 0" % S_BR)
    a("s_cbranch_scc0 %s" % lb)
    kv_params(a)
    a("v_and_b32 v7, 7, v%d" % V_LANE)
    a("v_lshrrev_b32 v8, 3, v%d" % V_LANE)
    a("v_and_b32 v9, 3, v8")
    a("v_lshrrev_b32 v8, 2, v8")
    a("v_lshlrev_b32 v8, 12, v8")
    a("v_lshlrev_b32 v9, 7, v9")
    a("v_sub_u32 v8, v8, v9")
    a("v_lshl_add_u32 v7, v7, 2, v8")
    a("s_and_b32 s%d, s%d, 4" % (S_T0, S_G))
    a("s_and_b32 s%d, s%d, 3" % (S_T1, S_G))
    a("s_lshr_b32 s%d, s%d, 1" % (S_T1, S_T1))
    a("s_add_u32 s%d, s%d, s%d" % (S_T0, S_T0, S_T1))
    a("s_lshl_b32 s%d, s%d, 4" % (S_T0, S_T0))
    a("s_add_u32 s%d, s%d, s%d" % (S_T0, S_T0, S_R))
    a("s_lshl_b32 s%d, s%d, 7" % (S_T0, S_T0))
    a("s_add_u32 s%d, s%d, %d" % (S_T0, S_T0, F_KV))
    a("v_add_u32 v7, s%d, v7" % S_T0)
    a("s_min_u32 s%d, s%d, 2" % (S_T1, S_R))
    a("s_lshl_b32 s%d, s%d, 3" % (S_T1, S_T1))
    a("s_lshl_b32 s%d, 0x100, s%d" % (S_T1, S_T1))
    a("s_sub_u32 s%d, s%d, 1" % (S_T1, S_T1))
    a("s_mov_b32 s%d, 0" % S_T2)
    poll(a, 7, S_T2, "s%d" % S_T1, "s%d" % S_T1)
    a("s_branch %s" % ld)
    a.label(lb)
    piece_decode(a)
    a("v_cmp_gt_u32_e64 s[%d:%d], 21, v7" % (S_M0, S_M0 + 1))
    a("v_cmp_gt_u32_e64 s[%d:%d], 5, v6" % (S_M1, S_M1 + 1))
    a("s_lshl_b32 s%d, s%d, 16" % (S_PB, S_G))
    a("s_lshr_b32 s%d, s%d, 1" % (S_T1, S_WV))
    a("s_lshl_b32 s%d, s%d, 10" % (S_T1, S_T1))
    a("s_add_u32 s%d, s%d, s%d" % (S_PB, S_PB, S_T1))
    a("s_add_u32 s%d, s%d, %d" % (S_PB, S_PB, WS_PART))
    a("v_lshlrev_b32 v%d, 3, v5" % V_PO)
    a("s_and_b64 s[%d:%d], s[%d:%d], s[%d:%d]" % (S_PM, S_PM + 1, S_M0, S_M0 + 1, S_M1, S_M1 + 1))
    a("v_and_b32 v7, 7, v%d" % V_LANE)
    a("v_lshrrev_b32 v8, 3, v%d" % V_LANE)
    a("v_lshlrev_b32 v8, 7, v8")
    a("v_lshl_add_u32 v7, v7, 2, v8")
    a("s_lshl_b32 s%d, s%d, 11" % (S_T0, S_G))
    a("s_add_u32 s%d, s%d, %d" % (S_T0, S_T0, F_PART))
    poll(a, 7, S_T0, "-1", "-1")
    a("s_add_u32 s%d, s%d, 1024" % (S_T0, S_T0))
    poll(a, 7, S_T0, "-1", "-1")
    a.label(ld)

def early_load(k):
    def f(a):
        lb, ld = a.newlabel("elb"), a.newlabel("eld")
        a("s_cmp_eq_u32 s%d, 0" % S_BR)
        a("s_cbranch_scc0 %s" % lb)
        kv_load(0, k)(a)
        a("s_branch %s" % ld)
        a.label(lb)
        a("s_mov_b64 exec, s[%d:%d]" % (S_PM, S_PM + 1))
        for r in (2 * k, 2 * k + 1):
            a("s_add_u32 s%d, s%d, %d" % (S_OFF, S_PB, r * 4096))
            a("buffer_load_dwordx2 %s, v%d, s[%d:%d], s%d offen %s" % (vr(P_SUM + 2 * r, 2), V_PO, S_WS, S_WS + 3, S_OFF, LD))
        a("s_mov_b64 exec, -1")
        a.label(ld)
    return f

def epi2(a):
    XCH = 102400
    pre2(a)
    stamp(a, "poll1")
    a("s_mul_i32 s%d, s%d, 5120" % (S_T0, S_WV))
    a("s_add_u32 s%d, s%d, %d" % (S_T0, S_T0, XCH))
    a("v_lshlrev_b32 v4, 4, v%d" % V_LANE)
    a("s_xor_b32 s%d, s%d, 4" % (S_T1, S_WV))
    a("v_add_u32 v5, s%d, v4" % S_T0)
    a("s_mul_i32 s%d, s%d, 5120" % (S_T1, S_T1))
    a("s_add_u32 s%d, s%d, %d" % (S_T1, S_T1, XCH))
    a("s_barrier")
    for T in range(5): a("ds_write_b128 v5, %s offset:%d" % (vr(V_ACC2 + (5 + T) * 4, 4), T * 1024))
    early_load(0)(a)
    a("v_add_u32 v5, s%d, v4" % S_T1)
    a("s_lshl_b32 s%d, s%d, 3" % (S_T1, S_CS))
    a("v_add_u32 v4, s%d, v%d" % (S_T1, V_IMG))
    a("s_mul_i32 s%d, s%d, 5120" % (S_T0, S_RG))
    a("s_add_u32 s%d, s%d, %d" % (S_T0, S_T0, LDS_Q))
    a("v_add_u32 v4, s%d, v4" % S_T0)
    a("s_waitcnt lgkmcnt(0)")
    a("s_barrier")
    R = V_WB0
    for T in range(5): a("ds_read_b128 %s, v5 offset:%d" % (vr(R + 4 * T, 4), T * 1024))
    early_load(1)(a)
    regs = [V_ACC2 + T * 4 + k for T in range(5) for k in range(4)]
    for T in range(5):
        a("s_waitcnt lgkmcnt(%d)" % (4 - T))
        for k in (0, 2):
            a("v_pk_add_f32 %s, %s, %s" % (vr(V_ACC2 + 4 * T + k, 2), vr(V_ACC2 + 4 * T + k, 2), vr(R + 4 * T + k, 2)))
    early_load(2)(a)
    lb, ld = a.newlabel("e2b"), a.newlabel("e2d")
    a("s_cmp_eq_u32 s%d, 0" % S_BR)
    a("s_cbranch_scc0 %s" % lb)
    a("s_mov_b32 s%d, 0x%x" % (S_T2, f2u(QSCALE)))
    a("s_mov_b32 s%d, 0x%x" % (S_T3, f2u(QSCALE)))
    for k in range(0, 20, 2): a("v_pk_mul_f32 %s, %s, s[%d:%d]" % (vr(V_ACC2 + k, 2), vr(V_ACC2 + k, 2), S_T2, S_T3))
    a("s_branch %s" % ld)
    a.label(lb)
    for gi in range(5):
        phi(a, regs[4 * gi:4 * gi + 4], V_ACC)
        if gi in (0, 2, 4): early_load_B(3 + gi // 2)(a)
    a.label(ld)
    for T in range(5):
        d = V_ACC2 + T * 4
        a("v_cvt_pk_bf16_f32 v%d, v%d, v%d" % (R + 2 * T, d, d + 1))
        a("v_cvt_pk_bf16_f32 v%d, v%d, v%d" % (R + 2 * T + 1, d + 2, d + 3))
        a("ds_write_b64 v4, %s offset:%d" % (vr(R + 2 * T, 2), T * 1024))
        if T in (0, 2, 4): early_load_A(3 + T // 2)(a)
    early_load(6)(a)

def early_load_A(k):
    def f(a):
        l = a.newlabel("ela")
        a("s_cmp_eq_u32 s%d, 0" % S_BR)
        a("s_cbranch_scc0 %s" % l)
        kv_load(0, k)(a)
        a.label(l)
    return f
def early_load_B(k):
    def f(a):
        a("s_mov_b64 exec, s[%d:%d]" % (S_PM, S_PM + 1))
        for r in (2 * k, 2 * k + 1):
            a("s_add_u32 s%d, s%d, %d" % (S_OFF, S_PB, r * 4096))
            a("buffer_load_dwordx2 %s, v%d, s[%d:%d], s%d offen %s" % (vr(P_SUM + 2 * r, 2), V_PO, S_WS, S_WS + 3, S_OFF, LD))
        a("s_mov_b64 exec, -1")
    return f

def vm_wait_roles(a, nw, nx):
    if nw == nx: a("s_waitcnt vmcnt(%d)" % nw)
    else: role_branch(a, "s_waitcnt vmcnt(%d)" % nw, "s_waitcnt vmcnt(%d)" % nx)

def publish(a, s_off, wave=0):
    def body(a):
        a("v_mov_b32 v4, s%d" % S_NONCE)
        a("v_mov_b32 v5, 0")
        a("s_mov_b64 exec, 1")
        a("buffer_store_dword v4, v5, s[%d:%d], s%d offen sc0 sc1" % (S_WS, S_WS + 3, s_off))
        a("s_mov_b64 exec, -1")
    if wave is None: body(a)
    else: on_wave(a, wave, body)

def poll(a, voff, s_off, mask_lo, mask_hi):
    def body(a):
        lp, ld = a.newlabel("pp"), a.newlabel("pd")
        a("s_mov_b32 exec_lo, %s" % mask_lo)
        a("s_mov_b32 exec_hi, %s" % mask_hi)
        a("s_mov_b32 s%d, 0" % S_T5)
        a.label(lp)
        a("buffer_load_dword v6, v%d, s[%d:%d], s%d offen sc1" % (voff, S_WS, S_WS + 3, s_off))
        a("s_waitcnt vmcnt(0)")
        a("v_cmp_ne_u32_e64 s[%d:%d], s%d, v6" % (S_M0, S_M0 + 1, S_NONCE))
        a("s_add_u32 s%d, s%d, 1" % (S_T5, S_T5))
        a("s_nop 1")
        a("s_cmp_eq_u64 s[%d:%d], 0" % (S_M0, S_M0 + 1))
        a("s_cbranch_scc1 %s" % ld)
        a("s_sleep 1")
        a("s_cmp_lt_u32 s%d, %d" % (S_T5, SPIN_LIMIT))
        a("s_cbranch_scc1 %s" % lp)
        a.label(ld)
        a("s_mov_b64 exec, -1")
    on_wave(a, 0, body)

def wo_pf_setup(a, v):
    a("v_mul_u32_u24 v4, 52, v%d" % V_LANE); a("v_lshrrev_b32 v4, 8, v4")
    a("v_mul_u32_u24 v5, 5, v4"); a("v_sub_u32 v5, v%d, v5" % V_LANE)
    a("s_mul_i32 s%d, s%d, 20" % (S_T0, S_I))
    a("v_add_u32 v4, s%d, v4" % S_T0)
    a("s_movk_i32 s%d, 1280" % S_T1)
    a("v_mul_u32_u24 v4, s%d, v4" % S_T1)
    a("v_lshl_add_u32 v4, v5, 7, v4")
    a("s_lshr_b32 s%d, s%d, 2" % (S_T0, S_G))
    a("s_mul_i32 s%d, s%d, 640" % (S_T0, S_T0))
    a("v_add_u32 v%d, s%d, v4" % (v, S_T0))
assert all((l * 52) >> 8 == l // 5 for l in range(64))

def wo_pf_issue(a, v, srd_):
    a("buffer_load_dword v%d, v%d, s[%d:%d], 0 offen %s" % (V_PFD, v, srd_, srd_ + 3, PFL))
    a("s_mov_b32 s%d, %d" % (S_OFF, 12 * 1280))
    a("buffer_load_dword v%d, v%d, s[%d:%d], s%d offen %s" % (V_PFD, v, srd_, srd_ + 3, S_OFF, PFL))

def phase1(a):
    dma_setup(a)
    stamp(a, "dset")
    entry_srd(a)
    stamp(a, "karg")
    if 'pffirst' not in OPT and 'pf1' not in OPT:
        emit(a, [dma(0, j) for j in range(5)])
        emit(a, [pf('x', 0, 0), pf('w', 0, 0), pf('x', 1, 1), pf('w', 1, 1)])
    elif 'pf1' in OPT:
        emit(a, [pf('x', 0, 0), pf('w', 0, 0)])
        emit(a, [dma(0, j) for j in range(5)])
        emit(a, [pf('x', 1, 1), pf('w', 1, 1)])
    else:
        emit(a, [pf('x', 0, 0), pf('w', 0, 0), pf('x', 1, 1), pf('w', 1, 1)])
        stamp(a, "pf0")
        emit(a, [dma(0, j) for j in range(5)])
    entry_srd2(a)
    stamp(a, "g0")
    addr1_setup(a)
    emit(a, [dma(1, j) for j in range(5)])
    emit(a, [pf('x', 2, 2), pf('w', 2, 2)])
    a("v_mov_b32 v8, 0")
    a("s_mov_b32 s%d, %d" % (S_OFF, WS_FLAG))
    a("buffer_load_dword v9, v8, s[%d:%d], s%d offen sc1" % (S_WS, S_WS + 3, S_OFF))
    stamp(a, "g1")
    vm_wait_roles(a, 6, 5)
    stamp(a, "g0land")
    a("s_barrier")
    stamp(a, "t0")
    lq = LQ(a)
    cur = [lq.issue(x) for x in p1_reads(0, 0)]
    SCH = {'e': [2, 1, 1, 1, 1, 2, 1, 1, 1, 1], 'f': [2, 2, 2, 2, 2, 2, 0, 0, 0, 0], 'm': [2, 2, 1, 1, 1, 1, 1, 1, 1, 1], 'g': [2, 2, 2, 1, 1, 1, 1, 1, 1, 0]}[SCHED]
    needs12 = lambda ids: [ids[2 + 2 * (i // 2) + 1] for i in range(10)]
    needs10 = lambda ids: [ids[2 * (i // 2) + 1] for i in range(10)]
    for s in range(10):
        ex0 = {}
        if s >= 1: ex0 = {2: dma(s + 2, 3), 6: dma(s + 2, 4)}
        if s == 0: ex0 = {0: dma(2, 0), 2: dma(2, 1), 4: dma(2, 2), 6: dma(2, 3), 8: dma(2, 4)}
        if s == 5:
            lines = rec(addr2_setup)
            for k_, pos in enumerate((1, 3, 4, 5, 7, 8, 9)):
                ex0[pos] = [ex0.get(pos), lines[k_ * len(lines) // 7:(k_ + 1) * len(lines) // 7]]
        nxt = half(a, lq, p1_mfmas(s, 0, s == 0), needs12(cur), p1_reads(s, 1), SCH, ex0)
        if s == 0: vm_wait_roles(a, 6, 5)
        elif s == 8: vm_wait_roles(a, 5, 0)
        elif s == 9: a("s_waitcnt vmcnt(5)")
        else: vm_wait_roles(a, 5, 4)
        a("s_barrier")
        stamp(a, "s%d" % s)
        if s == 2:
            a("v_readfirstlane_b32 s%d, v9" % S_NONCE)
            a("s_nop 3")
            a("s_add_u32 s%d, s%d, 0x9e3779b9" % (S_NONCE, S_NONCE))
        pfl = []
        if s == 0: pfl = [pf('x', 3, 3), pf('w', 3, 3)]
        if s == 2: pfl = [pf('x', 4, 0), pf('w', 4, 0)]
        if s == 3: pfl = [lambda a: wo_pf_setup(a, V_PF)]
        def wopf_own(a):
            if 'nopf' in OPT: return
            def body(a):
                l, l2 = a.newlabel("wpf"), a.newlabel("wpf2")
                a("s_cmp_eq_u32 s%d, 0" % S_BR)
                a("s_cbranch_scc1 %s" % l)
                wo_pf_issue(a, V_PF, S_WOB)
                a("s_branch %s" % l2)
                a.label(l)
                wo_pf_issue(a, V_PF, S_WO)
                a.label(l2)
            on_wave(a, 5, body)
        if s == 4: pfl = [pf('q', 0, 1), wopf_own]
        if s == 5: pfl = [pf('q', 1, 2)]
        if s == 6: pfl = [pf('q', 2, 3)]
        ex1 = {1: dma(s + 3, 0), 4: dma(s + 3, 1), 7: dma(s + 3, 2), 9: pfl}
        if s == 9: ex1 = {1: dma(12, 0), 3: dma(12, 1), 5: dma(12, 2), 7: dma(12, 3), 9: dma(12, 4)}
        rd = p1_reads(s + 1, 0) if s < 9 else p2_reads(0)
        cur = half(a, lq, p1_mfmas(s, 1, False), needs12(nxt), rd, SCH, ex1)
    stamp(a, "p1end")
    lb, ld = a.newlabel("e1b"), a.newlabel("e1d")
    a("s_cmp_eq_u32 s%d, 0" % S_BR)
    a("s_cbranch_scc0 %s" % lb)
    epi1_A(a)
    a("s_branch %s" % ld)
    a.label(lb)
    a("s_waitcnt lgkmcnt(0)")
    epi1_B(a)
    emit(a, p2_reads(0))
    a.label(ld)
    stamp(a, "e1end")
    p3_dma_setup(a)
    S_WBF, S_WB1, S_WB2 = S_SOFF, S_STEP, S_J + 1
    a("s_and_b32 s%d, s%d, s%d" % (S_WBF, S_BR, S_CS))
    a("s_mul_i32 s%d, s%d, %d" % (S_WB1, S_RG, 3 * 5120))
    a("s_mul_i32 s%d, s%d, %d" % (S_WB2, S_RG, 3 * 32 * 1280))
    def wob(q):
        def f(a):
            l = a.newlabel("wob")
            a("s_cmp_eq_u32 s%d, 0" % S_WBF)
            a("s_cbranch_scc1 %s" % l)
            a("s_add_u32 m0, s%d, %d" % (S_WB1, (q // 5) * 5120 + (q % 5) * 1024))
            a("s_add_u32 s%d, s%d, %d" % (S_OFF, S_WB2, (q // 5) * 32 * 1280))
            a("buffer_load_dwordx4 v%d, s[%d:%d], s%d offen %s lds" % (C_DMA + q % 5, S_WOB, S_WOB + 3, S_OFF, DML))
            a.label(l)
        return f
    WOB_N = [2, 1, 2, 1, 2, 1, 2, 1, 2, 1]
    WOB_BEFORE0 = lambda u: 0
    PUBD = 0 if 'pub0' in OPT else 1
    def wopf(a):
        if 'nopf' in OPT: return
        def body(a):
            l = a.newlabel("wpf")
            a("s_cmp_eq_u32 s%d, 0" % S_BR)
            a("s_cbranch_scc1 %s" % l)
            wo_pf_issue(a, V_PF, S_WO)
            a.label(l)
        on_wave(a, 1, body)
    a("s_waitcnt lgkmcnt(0)")
    lq = LQ(a)
    cur = None
    SCH2 = {'e': [1] * 10, 'f': [2, 2, 2, 2, 2, 0, 0, 0, 0, 0], 'm': [2, 1, 1, 1, 1, 1, 1, 1, 1, 0], 'g': [2, 2, 1, 1, 1, 1, 1, 1, 0, 0]}[SCHED]
    for u in range(10):
        extra = {}
        rd = []
        if u + 1 < 10:
            if (u + 1) % 2 == 0:
                nx = 10 + (u + 1) // 2
                def by_branch(na, nb):
                    def f(a):
                        lB, lD = a.newlabel("wb"), a.newlabel("wd")
                        a("s_cmp_eq_u32 s%d, 0" % S_BR)
                        a("s_cbranch_scc0 %s" % lB)
                        a("s_waitcnt vmcnt(%d)" % na)
                        a("s_branch %s" % lD)
                        a.label(lB)
                        a("s_waitcnt vmcnt(%d)" % nb)
                        a.label(lD)
                    return f
                if nx == 13: role_branch(a, "s_waitcnt vmcnt(5)", None)
                elif nx == 14: role_branch(a, "s_waitcnt vmcnt(0)", None)
                else: role_branch(a, by_branch(5 + (10 if 'dbl' in OPT else 5), 6), None)
                a("s_barrier")
                if 13 <= nx + 2 <= 14: extra = {1: dma(nx + 2, 0), 3: dma(nx + 2, 1), 5: dma(nx + 2, 2), 7: dma(nx + 2, 3), 9: dma(nx + 2, 4)}
                if nx == 12 + PUBD:
                    def pub(a):
                        role_branch(a, "s_waitcnt vmcnt(%d)" % (5 if PUBD == 0 else 5), by_branch(0, sum(WOB_N[:u]) + (1 if WOB_N[u] > 1 else 1) * 0 + WOB_BEFORE0(u)))
                        a("s_lshl_b32 s%d, s%d, 4" % (S_T0, S_G))
                        a("s_add_u32 s%d, s%d, s%d" % (S_T0, S_T0, S_R))
                        a("s_lshl_b32 s%d, s%d, 5" % (S_T0, S_T0))
                        a("s_add_u32 s%d, s%d, s%d" % (S_T0, S_T0, S_WV))
                        a("s_lshl_b32 s%d, s%d, 2" % (S_T0, S_T0))
                        a("s_mul_i32 s%d, s%d, %d" % (S_T1, S_BR, F_PART - F_KV))
                        a("s_add_u32 s%d, s%d, s%d" % (S_T0, S_T0, S_T1))
                        a("s_add_u32 s%d, s%d, %d" % (S_T0, S_T0, F_KV))
                        publish(a, S_T0, None)
                    extra[0] = [pub]
            rd = p2_reads(u + 1)
        if u == 8: extra[3] = [wopf]
        def spread(lines, positions):
            n = len(positions)
            for k_, pos in enumerate(positions):
                extra[pos] = [extra.get(pos), lines[k_ * len(lines) // n:(k_ + 1) * len(lines) // n]]
        if u == 6: spread(rec(setup_q), (0, 1, 3, 4, 5, 7, 8, 9))
        if u == 7:
            extra[1] = [extra.get(1), on_A(lambda a: setup_k(a))]
            extra[5] = [extra.get(5), on_A(lambda a: setup_v(a))]
        if u == 8: spread(rec(setup_o), (0, 1, 4, 5, 7, 8, 9))
        q0 = sum(WOB_N[:u])
        for n_ in range(WOB_N[u]):
            pos = (2, 6)[n_]
            extra[pos] = [extra.get(pos), wob(q0 + n_)]
        needs = needs10(cur) if cur else [0] * 10
        cur = half(a, lq, p2_mfmas(u), needs, rd, SCH2, extra)
    a("s_nop 4")
    stamp(a, "p2end")
    epi2(a)
    stamp(a, "e2end")

LDS_K, LDS_V = 0, 65536
LDS_KVR = 135168
A_KA0, A_KA1, A_KAT, A_VA0, A_VA1, A_QA0, A_QA1, A_QAT, A_OM, A_OT = 10, 11, 12, 13, 14, 15, 16, 17, 18, 19
A_AM, A_Q1, A_Q2, A_KB, A_VB, A_S, A_O = 20, 32, 36, 40, 64, 96, 240
S_TAU0 = S_U
S_EXV, S_HI, S_LO = 62, 64, 66
NEG_BIG = f2u(-3.0e38)
S_KV0, S_KV1, S_KV2 = 20, 21, 22
A_L16 = 88

def jkey(r, h):
    m, b, e = r >> 3, (r >> 2) & 1, r & 3
    return 16 * b + 8 * m + 4 * h + e
def diag_mask(r):
    return (sum(1 << i for i in range(32) if jkey(r, 0) <= i), sum(1 << i for i in range(32) if jkey(r, 1) <= i))

def _p2_addr(a, dst, n, kgimg, tbit, sbase, extra):
    a("v_lshl_add_u32 v9, v%d, 2, v%d" % (kgimg, n))
    a("v_and_b32 v9, 15, v9")
    a("v_lshl_add_u32 v9, v%d, 4, v9" % kgimg)
    a("v_lshlrev_b32 v9, 4, v9")
    a("v_lshl_add_u32 v9, v%d, 3, v9" % tbit)
    a("s_add_u32 s%d, s%d, %d" % (S_T5, sbase, extra))
    a("v_add_u32 v%d, s%d, v9" % (dst, S_T5))

def setup_q(a):
    a("v_and_b32 v4, 1, v%d" % V_KG)
    a("v_lshrrev_b32 v5, 1, v%d" % V_KG)
    a("v_lshrrev_b32 v6, 2, v%d" % V_N)
    a("v_and_b32 v7, 3, v%d" % V_N)
    a("s_and_b32 s%d, s%d, 3" % (S_T0, S_WV))
    a("s_lshr_b32 s%d, s%d, 2" % (S_T1, S_WV))
    a("s_mul_i32 s%d, s%d, 5120" % (S_T1, S_T1))
    a("s_lshl_b32 s%d, s%d, 10" % (S_T2, S_T0))
    a("s_add_u32 s%d, s%d, s%d" % (S_T2, S_T2, S_T1))
    a("s_add_u32 s%d, s%d, 4096" % (S_T3, S_T1))
    a("s_lshl_b32 s%d, s%d, 2" % (S_T4, S_T0))
    a("v_lshl_add_u32 v8, v5, 3, v6")
    _p2_addr(a, A_QA0, 8, 7, 4, S_T2, LDS_Q)
    a("v_add_u32 v30, 4, v8")
    _p2_addr(a, A_QA1, 30, 7, 4, S_T2, LDS_Q)
    a("v_add_u32 v31, s%d, v6" % S_T4)
    _p2_addr(a, A_QAT, 31, 7, 4, S_T3, LDS_Q)

def setup_k(a):
    a("v_and_b32 v28, 1, v7")
    a("v_lshl_add_u32 v28, v4, 1, v28")
    a("v_lshrrev_b32 v29, 1, v7")
    _p2_addr(a, A_KA0, 8, 28, 29, S_T2, LDS_K)
    _p2_addr(a, A_KA1, 30, 28, 29, S_T2, LDS_K)
    _p2_addr(a, A_KAT, 31, 28, 29, S_T3, LDS_K)

def setup_v(a):
    a("v_and_b32 v4, 31, v%d" % V_LANE)
    a("v_lshrrev_b32 v5, 5, v%d" % V_LANE)
    a("v_cmp_gt_u32_e64 s[%d:%d], 16, v4" % (S_M0, S_M0 + 1))
    a("s_sub_u32 s%d, s%d, 16" % (S_T5, S_T4))
    a("v_add_u32 v6, s%d, v4" % S_T5)
    a("v_and_b32 v6, 15, v6")
    a("v_cndmask_b32_e64 v6, v6, v4, s[%d:%d]" % (S_M0, S_M0 + 1))
    a("v_mov_b32 v7, s%d" % S_T3)
    a("v_mov_b32 v8, s%d" % S_T2)
    a("v_cndmask_b32_e64 v7, v7, v8, s[%d:%d]" % (S_M0, S_M0 + 1))
    for m in range(2):
        a("v_add_u32 v8, %d, v5" % (2 * m))
        a("v_lshl_add_u32 v9, v8, 2, v6")
        a("v_and_b32 v9, 15, v9")
        a("v_lshl_add_u32 v9, v8, 4, v9")
        a("v_lshl_add_u32 v9, v9, 4, v7")
        a("v_add_u32 v%d, %d, v9" % (A_VA0 + m, LDS_V))

def setup_o(a):
    a("v_and_b32 v4, 31, v%d" % V_LANE)
    a("v_lshrrev_b32 v5, 5, v%d" % V_LANE)
    a("s_and_b32 s%d, s%d, 3" % (S_T0, S_WV))
    a("s_lshl_b32 s%d, s%d, 2" % (S_T1, S_G))
    a("s_add_u32 s%d, s%d, s%d" % (S_T1, S_T1, S_T0))
    a("s_lshl_b32 s%d, s%d, 3" % (S_T2, S_R))
    a("s_lshr_b32 s%d, s%d, 2" % (S_T3, S_WV))
    a("s_lshl_b32 s%d, s%d, 1" % (S_T3, S_T3))
    a("s_add_u32 s%d, s%d, s%d" % (S_T2, S_T2, S_T3))
    a("s_mul_i32 s%d, s%d, 20480" % (S_T2, S_T2))
    a("s_mul_i32 s%d, s%d, %d" % (S_T3, S_BR, O_BR))
    a("s_add_u32 s%d, s%d, s%d" % (S_T2, S_T2, S_T3))
    a("s_add_u32 s%d, s%d, %d" % (S_T2, S_T2, WS_O))
    a("v_lshrrev_b32 v6, 4, v4")
    a("s_movk_i32 s%d, 20480" % S_T3)
    a("v_mul_u32_u24 v6, s%d, v6" % S_T3)
    a("v_and_b32 v7, 15, v4")
    a("v_lshl_add_u32 v6, v7, 4, v6")
    a("v_add_u32 v6, s%d, v6" % S_T2)
    a("s_lshr_b32 s%d, s%d, 1" % (S_T3, S_T1))
    a("s_lshl_b32 s%d, s%d, 10" % (S_T3, S_T3))
    a("s_and_b32 s%d, s%d, 1" % (S_T4, S_T1))
    a("s_lshl_b32 s%d, s%d, 9" % (S_T4, S_T4))
    a("s_add_u32 s%d, s%d, s%d" % (S_T3, S_T3, S_T4))
    a("v_lshl_add_u32 v7, v5, 8, v6")
    a("v_add_u32 v%d, s%d, v7" % (A_OM, S_T3))
    a("s_lshr_b32 s%d, s%d, 3" % (S_T3, S_T1))
    a("s_add_u32 s%d, s%d, 16" % (S_T3, S_T3))
    a("s_lshl_b32 s%d, s%d, 10" % (S_T3, S_T3))
    a("s_and_b32 s%d, s%d, 6" % (S_T4, S_T1))
    a("s_lshl_b32 s%d, s%d, 7" % (S_T4, S_T4))
    a("s_add_u32 s%d, s%d, s%d" % (S_T3, S_T3, S_T4))
    a("s_and_b32 s%d, s%d, 1" % (S_T4, S_T1))
    a("s_lshl_b32 s%d, s%d, 3" % (S_T4, S_T4))
    a("s_add_u32 s%d, s%d, s%d" % (S_T3, S_T3, S_T4))
    a("v_add_u32 v%d, s%d, v6" % (A_OT, S_T3))

def set_hilo(a):
    a("s_mov_b32 s%d, 0" % S_HI); a("s_mov_b32 s%d, -1" % (S_HI + 1))
    a("s_mov_b32 s%d, -1" % S_LO); a("s_mov_b32 s%d, 0" % (S_LO + 1))

def on_A(f):
    def g(a):
        l = a.newlabel("oa")
        a("s_cmp_eq_u32 s%d, 0" % S_BR)
        a("s_cbranch_scc0 %s" % l)
        emit(a, f)
        a.label(l)
    return g

def q_frag_reads():
    return ["ds_read_b64_tr_b16 %s, v%d" % (vr(A_Q1, 2), A_QA0),
            "ds_read_b64_tr_b16 %s, v%d" % (vr(A_Q1 + 2, 2), A_QA1),
            "ds_read_b64_tr_b16 %s, v%d" % (vr(A_Q2, 2), A_QAT)]
def q_frag_fix(a):
    a("v_cndmask_b32_e64 v%d, v%d, 0, s[%d:%d]" % (A_Q2, A_Q2, S_HI, S_HI + 1))
    a("v_cndmask_b32_e64 v%d, v%d, 0, s[%d:%d]" % (A_Q2 + 1, A_Q2 + 1, S_HI, S_HI + 1))

def o_epilogue(a, eps=False):
    O = A_O
    a("v_cndmask_b32_e64 v30, v%d, v%d, s[%d:%d]" % (O + 12, O + 8, S_HI, S_HI + 1))
    if eps: a("v_add_f32 v30, 0x%x, v30" % f2u(1e-6))
    a("v_rcp_f32 v30, v30")
    a("s_nop 0")
    for k in range(0, 12, 2):
        a("v_pk_mul_f32 %s, %s, v[30:31] op_sel_hi:[1,0]" % (vr(O + k, 2), vr(O + k, 2)))
    for k in range(6): a("v_cvt_pk_bf16_f32 v%d, v%d, v%d" % (O + k, O + 2 * k, O + 2 * k + 1))
    for fl in ([ST, ""] if 'dbl' in OPT else [ST]):
        a("buffer_store_dwordx4 %s, v%d, s[%d:%d], 0 offen %s" % (vr(O, 4), A_OM, S_WS, S_WS + 3, fl))
        a("s_mov_b64 exec, s[%d:%d]" % (S_LO, S_LO + 1))
        a("buffer_store_dwordx2 %s, v%d, s[%d:%d], 0 offen %s" % (vr(O + 4, 2), A_OT, S_WS, S_WS + 3, fl))
        a("s_mov_b64 exec, -1")

def attn_setup(a):
    set_hilo(a)
    for r in range(16):
        lo, hi = diag_mask(r)
        a("s_mov_b32 s%d, 0x%x" % (S_MASK + 2 * r, lo)); a("s_mov_b32 s%d, 0x%x" % (S_MASK + 2 * r + 1, hi))
    a("v_mov_b32 v30, 0xffff")
    a("v_mov_b32 v31, 0xffff0000")
    for k in range(8):
        a("v_cndmask_b32_e64 v4, 0, v30, s[%d:%d]" % (S_MASK + 4 * k, S_MASK + 4 * k + 1))
        a("v_cndmask_b32_e64 v5, 0, v31, s[%d:%d]" % (S_MASK + 4 * k + 2, S_MASK + 4 * k + 3))
        a("v_or_b32 v%d, v4, v5" % (A_AM + k))
    a("v_mov_b32 v4, 0x3f803f80")
    for k in range(24): a("v_mov_b32 v%d, v4" % (A_VB + k))
    for b in range(3):
        a("v_mov_b32 v%d, 0" % (A_KB + 8 * b + 6)); a("v_mov_b32 v%d, 0" % (A_KB + 8 * b + 7))
    a("v_mov_b32 v%d, 0" % (A_Q2 + 2)); a("v_mov_b32 v%d, 0" % (A_Q2 + 3))
    a("s_mov_b32 s%d, 0x000fffff" % S_EXV); a("s_mov_b32 s%d, 0x000fffff" % (S_EXV + 1))

def k_reads(tau, buf):
    b = A_KB + 8 * buf
    return ["ds_read_b64_tr_b16 %s, v%d offset:%d" % (vr(b, 2), A_KA0, tau * 5120),
            "ds_read_b64_tr_b16 %s, v%d offset:%d" % (vr(b + 2, 2), A_KA1, tau * 5120),
            "ds_read_b64_tr_b16 %s, v%d offset:%d" % (vr(b + 4, 2), A_KAT, tau * 5120)]
def v_reads(tau, buf):
    b = A_VB + 8 * buf
    return ["s_mov_b64 exec, s[%d:%d]" % (S_EXV, S_EXV + 1),
            "ds_read_b128 %s, v%d offset:%d" % (vr(b, 4), A_VA0, tau * 5120),
            "ds_read_b128 %s, v%d offset:%d" % (vr(b + 4, 4), A_VA1, tau * 5120),
            "s_mov_b64 exec, -1"]

TAG = ''
PUB0_AT = 8
def attn_unit(a, stubs, mid, qk_extra, late_v=None, pre_epi=None):
    S = lambda t: A_S + 16 * t
    order = [8, 0, 1, 2, 3, 4, 5, 6, 7]
    emit(a, q_frag_reads())
    emit(a, k_reads(order[0], 0)); emit(a, k_reads(order[1], 1))
    a("s_waitcnt lgkmcnt(6)")
    q_frag_fix(a)
    accs = [28, 29, 30, 31]
    acc_init = [False] * 4
    def max_ops(base):
        L = []
        for k in range(0, 16, 2):
            ai = (k // 2) % 4
            if not acc_init[ai]:
                L.append("v_max_f32 v%d, v%d, v%d" % (accs[ai], base + k, base + k + 1)); acc_init[ai] = True
            else:
                L.append("v_max3_f32 v%d, v%d, v%d, v%d" % (accs[ai], base + k, base + k + 1, accs[ai]))
        return L
    merge = ["v_cndmask_b32_e64 v%d, v%d, v%d, s[%d:%d]" % (S(0) + r, S(0) + r, S(8) + r, S_MASK + 2 * r, S_MASK + 2 * r + 1) for r in range(16)]
    for idx, tau in enumerate(order):
        buf = idx % 3
        if idx + 2 < 9: emit(a, k_reads(order[idx + 2], (idx + 2) % 3))
        a("s_waitcnt lgkmcnt(%d)" % (3 * min(2, 8 - idx)))
        kb = A_KB + 8 * buf
        if tau < 8:
            lf, lr = a.newlabel("fill"), a.newlabel("fret")
            a("s_cmp_gt_u32 s%d, %d" % (S_TAU0, tau))
            a("s_cbranch_scc1 %s" % lf)
            stubs.append((lf, lr, S(tau)))
        work = []
        if idx == 3: work = merge[:]
        if idx == 4: work = max_ops(S(0))
        if idx >= 5: work = max_ops(S(order[idx - 3]))
        hw = len(work) // 2
        a(mfma32(S(tau), kb, A_Q1, "0"))
        if tau < 8 and 'oldqk' not in OPT:
            a.label(lr)
            emit(a, work[:hw])
            l2 = a.newlabel("tl")
            a("s_cmp_gt_u32 s%d, %d" % (S_TAU0, tau))
            a("s_cbranch_scc1 %s" % l2)
            a(mfma32(S(tau), kb + 4, A_Q2))
            a.label(l2)
        else:
            emit(a, work[:hw])
            a(mfma32(S(tau), kb + 4, A_Q2))
            if tau < 8: a.label(lr)
        emit(a, qk_extra.get(idx))
        emit(a, work[hw:])
    stamp(a, "qk" + TAG)
    emit(a, max_ops(S(5)))
    emit(a, max_ops(S(6)))
    emit(a, mid)
    if late_v is None:
        emit(a, v_reads(8, 0)); emit(a, v_reads(0, 1))
    emit(a, max_ops(S(7)))
    a("v_max3_f32 v28, v28, v29, v30")
    a("v_max_f32 v28, v28, v31")
    a("v_mov_b32 v29, v28")
    a("s_nop 1")
    a("v_permlane32_swap_b32 v28, v29")
    a("s_nop 1")
    a("v_max_f32 v28, v28, v29")
    def sm_ops(base, mf=()):
        L = ["v_pk_add_f32 %s, %s, v[28:29] op_sel_hi:[1,0] neg_lo:[0,1] neg_hi:[0,1]" % (vr(base + k, 2), vr(base + k, 2)) for k in range(0, 16, 2)]
        E = ["v_exp_f32 v%d, v%d" % (base + k, base + k) for k in range(16)]
        C = ["v_cvt_pk_bf16_f32 v%d, v%d, v%d" % (base + k, base + 2 * k, base + 2 * k + 1) for k in range(8)]
        out = list(L)
        m = len(mf)
        pos = {2: [1, 9], 4: [0, 4, 8, 12], 0: []}[m]
        for k, e in enumerate(E):
            out.append(e)
            if k in pos: out.append(mf[pos.index(k)])
        return out + C
    stamp(a, "mx" + TAG)
    emit(a, sm_ops(S(0)))
    if late_v is not None:
        emit(a, late_v)
        emit(a, v_reads(8, 0)); emit(a, v_reads(0, 1))
    for k in range(8): a("v_and_b32 v%d, v%d, v%d" % (S(0) + 8 + k, S(0) + k, A_AM + k))
    for k in range(8): a("v_xor_b32 v%d, v%d, v%d" % (S(0) + k, S(0) + k, S(0) + 8 + k))
    a("s_waitcnt lgkmcnt(0)")
    emit(a, v_reads(1, 2))
    pv = [mfma32(A_O, A_VB + 0, S(0) + 8, "0"), mfma32(A_O, A_VB + 4, S(0) + 12),
          mfma32(A_O, A_VB + 8, S(0)), mfma32(A_O, A_VB + 12, S(0) + 4)]
    for tau in range(1, 8):
        vb = (tau + 1) % 3
        emit(a, sm_ops(S(tau), pv))
        a("s_waitcnt lgkmcnt(0)")
        if tau + 1 < 8: emit(a, v_reads(tau + 1, (tau + 2) % 3))
        b = A_VB + 8 * vb
        pv = [mfma32(A_O, b, S(tau)), mfma32(A_O, b + 4, S(tau) + 4)]
    a("s_nop 1")
    emit(a, pv)
    if pre_epi: emit(a, pre_epi)
    a("s_nop 15")
    o_epilogue(a)

def round_advance(a, attn=True):
    for v in ((A_KA0, A_KA1, A_KAT, A_VA0, A_VA1) if attn else ()) + (A_QA0, A_QA1, A_QAT):
        a("v_add_u32 v%d, %d, v%d" % (v, 2 * 5120, v))
    a("v_add_u32 v%d, %d, v%d" % (A_OM, 4 * 20480, A_OM))
    a("v_add_u32 v%d, %d, v%d" % (A_OT, 4 * 20480, A_OT))

def set_tau0(a):
    a("s_lshl_b32 s%d, s%d, 2" % (S_T0, S_R))
    a("s_lshr_b32 s%d, s%d, 2" % (S_T1, S_WV))
    a("s_add_u32 s%d, s%d, s%d" % (S_T0, S_T0, S_T1))
    a("s_add_u32 s%d, s%d, s%d" % (S_T0, S_T0, S_DB))
    a("s_sub_i32 s%d, 8, s%d" % (S_TAU0, S_T0))
    a("s_max_i32 s%d, s%d, 0" % (S_TAU0, S_TAU0))

def emit_stubs(a, stubs):
    for lf, lr, base in stubs:
        a.label(lf)
        a("v_mov_b32 v%d, 0x%x" % (base, NEG_BIG))
        for k in range(1, 16): a("v_mov_b32 v%d, v%d" % (base + k, base))
        a("s_branch %s" % lr)

def kv_params(a):
    a("s_lshl_b32 s%d, s%d, 6" % (S_T0, S_G))
    a("s_lshl_b32 s%d, s%d, 2" % (S_T1, S_R))
    a("s_add_u32 s%d, s%d, s%d" % (S_T0, S_T0, S_T1))
    a("s_sub_i32 s%d, s%d, 8" % (S_T0, S_T0))
    a("s_mul_i32 s%d, s%d, 5120" % (S_T0, S_T0))
    a("s_lshl_b32 s%d, s%d, 10" % (S_KV1, S_WV))
    a("s_add_u32 s%d, s%d, s%d" % (S_KV0, S_T0, S_KV1))
    a("s_lshl_b32 s%d, s%d, 2" % (S_T3, S_R))
    a("s_sub_i32 s%d, 8, s%d" % (S_T3, S_T3))
    a("s_max_i32 s%d, s%d, 0" % (S_T3, S_T3))
    a("s_mul_i32 s%d, s%d, 5120" % (S_KV2, S_T3))
    a("v_lshlrev_b32 v%d, 4, v%d" % (A_L16, V_LANE))

def kv_load(tensor, k):
    def f(a):
        l = a.newlabel("kvl")
        a("s_add_u32 s%d, s%d, %d" % (S_T4, S_KV1, k * 8192))
        if k == 7:
            a("s_cmp_ge_u32 s%d, 61440" % S_T4)
            a("s_cbranch_scc1 %s" % l)
        a("s_add_u32 s%d, s%d, %d" % (S_OFF, S_KV0, WS_KV + tensor * 8 * 64 * 5120 + k * 8192))
        a("s_cmp_lt_u32 s%d, s%d" % (S_T4, S_KV2))
        if tensor == 0:
            a("s_cbranch_scc1 %s" % l)
        else:
            a("s_cselect_b32 s%d, 0x7ff00000, s%d" % (S_OFF, S_OFF))
        a("s_add_u32 m0, s%d, %d" % (S_T4, LDS_K if tensor == 0 else LDS_V))
        a("s_nop 0")
        a("buffer_load_dwordx4 v%d, s[%d:%d], s%d offen %s lds" % (A_L16, S_WS, S_WS + 3, S_OFF, LD))
        a.label(l)
    return f

def oa_flag_off(a, dst, half_):
    a("s_lshl_b32 s%d, s%d, 1" % (dst, S_R))
    a("s_add_u32 s%d, s%d, %d" % (dst, dst, half_))
    a("s_lshl_b32 s%d, s%d, 3" % (dst, dst))
    a("s_add_u32 s%d, s%d, s%d" % (dst, dst, S_G))
    a("s_lshl_b32 s%d, s%d, 5" % (dst, dst))
    a("s_add_u32 s%d, s%d, s%d" % (dst, dst, S_WV))
    a("s_lshl_b32 s%d, s%d, 2" % (dst, dst))
    a("s_add_u32 s%d, s%d, %d" % (dst, dst, F_OA))

def phase2A(a, stubs):
    kv_load(0, 7)(a)
    attn_setup(a)
    a("s_waitcnt vmcnt(0) lgkmcnt(0)")
    a("s_barrier")
    stamp(a, "kvld")
    for rnd in range(2):
        a("s_mov_b32 s%d, %d" % (S_DB, 2 * rnd))
        set_tau0(a)
        if 'noprio' not in OPT:
            lp = a.newlabel("prio")
            a("s_cmp_eq_u32 s%d, 0" % S_CS)
            a("s_cbranch_scc1 %s" % lp)
            a("s_setprio %d" % (1 if rnd == 0 else 0))
            a.label(lp)
        late_v = None
        if rnd == 0:
            mid = None
            def late_v(a):
                a("s_waitcnt vmcnt(0)")
                a("s_barrier")
                stamp(a, "vld")
            qk_extra = {i: kv_load(1, i - 0) for i in range(8)}
        else:
            def pub0(a):
                a("s_waitcnt vmcnt(0)")
                oa_flag_off(a, S_T0, 0)
                publish(a, S_T0, None)
            mid = None
            qk_extra = {PUB0_AT: pub0}
        def pre_epi(a):
            poll_oa(a, 0)
        global TAG
        TAG = str(rnd)
        attn_unit(a, stubs, mid, qk_extra, late_v, pre_epi if (rnd == 1 and 'nopre' not in OPT) else None)
        stamp(a, "rnd%d" % rnd)
        if rnd == 0: round_advance(a)

def apply_phase(a):
    P = P_SUM
    early_load_B(7)(a)
    wo_load(a, S_WOB, first=12)
    set_hilo(a)
    a("v_mov_b32 v%d, 0" % (A_Q2 + 2)); a("v_mov_b32 v%d, 0" % (A_Q2 + 3))
    a("s_lshr_b32 s%d, s%d, 1" % (S_T1, S_WV))
    a("s_lshl_b32 s%d, s%d, 11" % (S_T1, S_T1))
    a("v_lshlrev_b32 v8, 1, v%d" % V_PO)
    a("v_add_u32 v8, %d, v8" % LDS_KVR)
    a("v_add_u32 v8, s%d, v8" % S_T1)
    a("v_and_b32 v4, 31, v%d" % V_LANE)
    a("v_min_u32 v4, 20, v4")
    a("v_lshrrev_b32 v5, 5, v%d" % V_LANE)
    a("v_mul_u32_u24 v6, 48, v5")
    a("v_add_u32 v6, v6, v4")
    a("s_and_b32 s%d, s%d, 3" % (S_T0, S_WV))
    a("s_lshl_b32 s%d, s%d, 11" % (S_T0, S_T0))
    a("s_add_u32 s%d, s%d, %d" % (S_T0, S_T0, LDS_KVR))
    a("v_lshlrev_b32 v6, 4, v6")
    a("v_add_u32 v6, s%d, v6" % S_T0)
    a("v_lshlrev_b32 v7, 4, v4")
    a("v_add_u32 v7, s%d, v7" % S_T0)
    ACC = P + 32
    a("s_mov_b32 s%d, 0xffff0000" % S_T2)
    a("s_waitcnt vmcnt(5)")
    for r in range(16):
        c = ACC + 4 * (r & 1)
        for hw in range(2):
            src = P + 2 * r + hw
            if r < 2:
                a("v_lshlrev_b32 v%d, 16, v%d" % (c + 2 * hw, src))
                a("v_and_b32 v%d, s%d, v%d" % (c + 2 * hw + 1, S_T2, src))
            else:
                a("v_lshlrev_b32 v%d, 16, v%d" % (ACC + 8, src))
                a("v_and_b32 v%d, s%d, v%d" % (ACC + 9, S_T2, src))
                a("v_pk_add_f32 %s, %s, %s" % (vr(c + 2 * hw, 2), vr(c + 2 * hw, 2), vr(ACC + 8, 2)))
    for k in (0, 2): a("v_pk_add_f32 %s, %s, %s" % (vr(ACC + k, 2), vr(ACC + k, 2), vr(ACC + 4 + k, 2)))
    P = ACC
    a("s_barrier")
    a("s_mov_b64 exec, s[%d:%d]" % (S_PM, S_PM + 1))
    a("ds_write_b128 v8, %s" % vr(P, 4))
    a("s_mov_b64 exec, -1")
    a("s_waitcnt lgkmcnt(0)")
    a("s_barrier")
    stamp(a, "kvred")
    F = A_KB
    a("ds_read_b128 %s, v6" % vr(F, 4))
    a("ds_read_b128 %s, v6 offset:%d" % (vr(F + 4, 4), 24 * 16))
    a("ds_read_b128 %s, v7 offset:%d" % (vr(F + 8, 4), 4 * 24 * 16))
    emit(a, q_frag_reads())
    a("s_waitcnt lgkmcnt(3)")
    KV1, KV2 = A_VB, A_VB + 4
    for k in range(4): a("v_cvt_pk_bf16_f32 v%d, v%d, v%d" % (KV1 + k, F + 2 * k, F + 2 * k + 1))
    for k in range(2): a("v_cvt_pk_bf16_f32 v%d, v%d, v%d" % (KV2 + k, F + 8 + 2 * k, F + 9 + 2 * k))
    a("v_mov_b32 v%d, 0" % (KV2 + 2)); a("v_mov_b32 v%d, 0" % (KV2 + 3))
    for rnd in range(2):
        a("s_waitcnt lgkmcnt(0)")
        q_frag_fix(a)
        a("s_nop 1")
        a(mfma32(A_O, KV1, A_Q1, "0"))
        a(mfma32(A_O, KV2, A_Q2))
        if rnd == 0:
            round_advance(a, False) if False else None
            for v in (A_QA0, A_QA1, A_QAT): a("v_add_u32 v%d, %d, v%d" % (v, 2 * 5120, v))
            emit(a, q_frag_reads())
            a("s_nop 9")
        else:
            a("s_nop 15")
        o_epilogue(a, eps=True)
        if rnd == 0:
            a("v_add_u32 v%d, %d, v%d" % (A_OM, 4 * 20480, A_OM))
            a("v_add_u32 v%d, %d, v%d" % (A_OT, 4 * 20480, A_OT))

C_DMA = 10
C_WA, C_WT, C_OF, C_OUT, C_XA = 20, 21, 22, 23, 24
C_O = 32
C_WB = 112
C_ACC = 172
C_R = 212

def p3_dma_setup(a):
    a("s_mul_i32 s%d, s%d, 160" % (S_T0, S_G))
    a("s_movk_i32 s%d, 6554" % S_T2)
    a("s_movk_i32 s%d, 1280" % S_T3)
    for j in range(5):
        a("v_add_u32 v4, %d, v%d" % (64 * j, V_LANE))
        a("v_mul_u32_u24 v8, s%d, v4" % S_T2)
        a("v_lshrrev_b32 v8, 16, v8")
        a("v_mul_u32_u24 v9, 10, v8")
        a("v_sub_u32 v9, v4, v9")
        a("v_mul_u32_u24 v8, s%d, v8" % S_T3)
        a("v_lshl_add_u32 v8, v9, 4, v8")
        a("v_add_u32 v%d, s%d, v8" % (C_DMA + j, S_T0))

def p3_setup(a):
    a("s_mul_i32 s%d, s%d, 160" % (S_T0, S_G))
    a("v_lshrrev_b32 v4, 1, v%d" % V_KG)
    a("v_and_b32 v5, 1, v%d" % V_KG)
    a("v_lshrrev_b32 v6, 2, v%d" % V_N)
    a("v_and_b32 v7, 3, v%d" % V_N)
    a("v_mul_u32_u24 v8, 20, v4")
    a("v_lshl_add_u32 v8, v5, 2, v8")
    a("v_add_u32 v8, v8, v6")
    a("s_movk_i32 s%d, 160" % S_T1)
    a("v_mul_u32_u24 v8, s%d, v8" % S_T1)
    a("v_lshl_add_u32 v8, v7, 3, v8")
    a("s_mul_i32 s%d, s%d, 51200" % (S_T2, S_CS))
    a("v_add_u32 v%d, s%d, v8" % (C_WA, S_T2))
    a("v_mul_u32_u24 v8, 40, v%d" % V_KG)
    a("v_add3_u32 v8, v8, v6, 16")
    a("v_mul_u32_u24 v8, s%d, v8" % S_T1)
    a("v_lshl_add_u32 v8, v7, 3, v8")
    a("v_add_u32 v%d, s%d, v8" % (C_WT, S_T2))
    a("v_lshlrev_b32 v%d, 4, v%d" % (C_OF, V_LANE))
    a("s_lshl_b32 s%d, s%d, 4" % (S_T2, S_RG))
    a("v_add_u32 v8, s%d, v%d" % (S_T2, V_N))
    a("s_movk_i32 s%d, 2560" % S_T2)
    a("v_mul_u32_u24 v8, s%d, v8" % S_T2)
    a("v_lshl_add_u32 v8, v%d, 3, v8" % V_KG)
    a("v_add_u32 v%d, s%d, v8" % (C_OUT, S_T0))
    a("s_mul_i32 s%d, s%d, 10240" % (S_T2, S_RG))
    a("s_add_u32 s%d, s%d, %d" % (S_T2, S_T2, XCH3))
    a("v_add_u32 v%d, s%d, v%d" % (C_XA, S_T2, C_OF))

def wo_block(a, srd_wo):
    a("s_mul_i32 s%d, s%d, %d" % (S_OFF, S_T0, 32 * 1280))
    a("s_mul_i32 s%d, s%d, 5120" % (S_T0, S_T0))
    for j in range(5):
        a("s_add_u32 m0, s%d, %d" % (S_T0, j * 1024))
        a("s_nop 0")
        a("buffer_load_dwordx4 v%d, s[%d:%d], s%d offen %s lds" % (C_DMA + j, srd_wo, srd_wo + 3, S_OFF, DML))

def wo_load(a, srd_wo, skip0=False, first=0):
    nw = 7 if skip0 else 8
    nb = 20 - first
    for k in range((nb + nw - 1) // nw):
        l = a.newlabel("wol")
        if skip0:
            a("s_cmp_eq_u32 s%d, 0" % S_WV)
            a("s_cbranch_scc1 %s" % l)
        a("s_add_u32 s%d, s%d, %d" % (S_T0, S_WV, first + nw * k))
        if skip0: a("s_sub_u32 s%d, s%d, 1" % (S_T0, S_T0))
        if first + nw * k + nw > 20:
            a("s_cmp_ge_u32 s%d, 20" % S_T0)
            a("s_cbranch_scc1 %s" % l)
        wo_block(a, srd_wo)
        a.label(l)

def p3_oloads(a, br, s_row0, k):
    a("s_lshr_b32 s%d, s%d, 4" % (S_T0, s_row0))
    a("s_add_u32 s%d, s%d, s%d" % (S_T0, S_T0, S_RG))
    a("s_add_u32 s%d, s%d, %d" % (S_T0, S_T0, 4 * k))
    a("s_mul_i32 s%d, s%d, 20480" % (S_T0, S_T0))
    a("s_add_u32 s%d, s%d, %d" % (S_T0, S_T0, WS_O + br * O_BR))
    a("s_lshl_b32 s%d, s%d, 13" % (S_T1, S_CS))
    a("s_add_u32 s%d, s%d, s%d" % (S_T1, S_T1, S_T0))
    for i in range(8):
        a("s_add_u32 s%d, s%d, %d" % (S_OFF, S_T1, i * 1024))
        a("buffer_load_dwordx4 %s, v%d, s[%d:%d], s%d offen %s" % (vr(C_O + 40 * k + 4 * i, 4), C_OF, S_WS, S_WS + 3, S_OFF, LD))
    a("s_lshl_b32 s%d, s%d, 11" % (S_T1, S_CS))
    a("s_add_u32 s%d, s%d, s%d" % (S_T1, S_T1, S_T0))
    for i in range(2):
        a("s_add_u32 s%d, s%d, %d" % (S_OFF, S_T1, (16 + i) * 1024))
        a("buffer_load_dwordx4 %s, v%d, s[%d:%d], s%d offen %s" % (vr(C_O + 40 * k + 32 + 4 * i, 4), C_OF, S_WS, S_WS + 3, S_OFF, LD))

def p3_wreads(i):
    wb = C_WB + 20 * (i % 3)
    L = []
    for T in range(5):
        for rd in range(2):
            if i < 8: L.append("ds_read_b64_tr_b16 %s, v%d offset:%d" % (vr(wb + 4 * T + 2 * rd, 2), C_WA, i * 6400 + rd * 1280 + 32 * T))
            else: L.append("ds_read_b64_tr_b16 %s, v%d offset:%d" % (vr(wb + 4 * T + 2 * rd, 2), C_WT, (i - 8) * 25600 + rd * 3200 + 32 * T))
    return L

def p3_mm(a, sets, vm_after, extra={}):
    lq = LQ(a)
    ids = {}
    ids[0] = [lq.issue(x) for x in p3_wreads(0)]
    ids[1] = [lq.issue(x) for x in p3_wreads(1)]
    for i in range(10):
        wb = C_WB + 20 * (i % 3)
        rd = p3_wreads(i + 2) if i + 2 < 10 else []
        ids[i + 2] = []
        n = vm_after(i)
        if n is not None: a("s_waitcnt vmcnt(%d)" % n)
        emit(a, extra.get(i))
        mm = [(T, mfma16(C_ACC + 20 * k + 4 * T, wb + 4 * T, C_O + 40 * sets[k] + 4 * i, "0" if i == 0 else None)) for T in range(5) for k in range(len(sets))]
        per = (len(rd) + len(mm) - 1) // len(mm) if rd else 0
        for (T, m) in mm:
            lq.need(ids[i][2 * T + 1])
            a(m)
            for _ in range(per):
                if rd: ids[i + 2].append(lq.issue(rd.pop(0)))

XCH3 = 102400
OTILE = 143360
OSTR = 160
def p3_epilogue(a, br, s_row0, nset, hooks={}):
    npieces = 640 * nset
    nround = (npieces + 511) // 512
    last_waves = (npieces - 512 * (nround - 1)) // 64
    def send(tiles):
        def f(a):
            for k in range(nset):
                for T in tiles:
                    a("ds_write_b128 v%d, %s offset:%d" % (C_XA, vr(C_ACC + 20 * k + 4 * T, 4), k * 5120 + T * 1024))
        return f
    a("s_lshl_b32 s%d, s%d, 4" % (S_T0, S_RG))
    a("v_add_u32 v4, s%d, v%d" % (S_T0, V_N))
    a("s_movk_i32 s%d, %d" % (S_T1, OSTR))
    a("v_mul_u32_u24 v4, s%d, v4" % S_T1)
    a("v_lshl_add_u32 v4, v%d, 3, v4" % V_KG)
    a("v_add_u32 v4, %d, v4" % OTILE)
    a("s_nop 2")
    role_branch(a, send([3, 4]), send([0, 1, 2]))
    a("s_lshl_b32 s%d, s%d, 6" % (S_T0, S_WV))
    a("v_add_u32 v5, s%d, v%d" % (S_T0, V_LANE))
    a("s_movk_i32 s%d, 6554" % S_T2)
    a("s_movk_i32 s%d, 2560" % S_T3)
    a("s_mul_i32 s%d, s%d, 160" % (S_T4, S_G))
    for m in range(nround):
        a("v_add_u32 v6, %d, v5" % (512 * m))
        a("v_mul_u32_u24 v7, s%d, v6" % S_T2)
        a("v_lshrrev_b32 v7, 16, v7")
        a("v_mul_u32_u24 v8, 10, v7")
        a("v_sub_u32 v8, v6, v8")
        a("v_mul_u32_u24 v9, s%d, v7" % S_T1)
        a("v_lshl_add_u32 v9, v8, 4, v9")
        a("v_add_u32 v%d, %d, v9" % (C_R + m, OTILE))
        a("v_mul_u32_u24 v9, s%d, v7" % S_T3)
        a("v_lshl_add_u32 v9, v8, 4, v9")
        a("v_add_u32 v%d, s%d, v9" % (C_R + 4 + m, S_T4))
    a("s_waitcnt lgkmcnt(0)")
    a("s_barrier")
    emit(a, hooks.get(0))
    def recv(tiles):
        def f(a):
            for k in range(nset):
                for n_, T in enumerate(tiles):
                    a("ds_read_b128 %s, v%d offset:%d" % (vr(C_WB + 12 * k + 4 * n_, 4), C_XA, k * 5120 + T * 1024))
            a("s_waitcnt lgkmcnt(0)")
            for k in range(nset):
                for n_, T in enumerate(tiles):
                    d = C_ACC + 20 * k + 4 * T
                    r = C_WB + 12 * k + 4 * n_
                    for q in (0, 2): a("v_pk_add_f32 %s, %s, %s" % (vr(d + q, 2), vr(d + q, 2), vr(r + q, 2)))
                    a("v_cvt_pk_bf16_f32 v%d, v%d, v%d" % (d, d, d + 1))
                    a("v_cvt_pk_bf16_f32 v%d, v%d, v%d" % (d + 1, d + 2, d + 3))
                    a("ds_write_b64 v4, %s offset:%d" % (vr(d, 2), k * 64 * OSTR + 32 * T))
        return f
    role_branch(a, recv([0, 1, 2]), recv([3, 4]))
    emit(a, hooks.get(1))
    a("s_mul_i32 s%d, s%d, 2560" % (S_T0, s_row0))
    a("s_add_u32 s%d, s%d, %d" % (S_T0, S_T0, br * 1280))
    a("s_waitcnt lgkmcnt(0)")
    a("s_barrier")
    for m in range(nround):
        l = a.newlabel("fr")
        if m == nround - 1 and last_waves < 8:
            a("s_cmp_ge_u32 s%d, %d" % (S_WV, last_waves))
            a("s_cbranch_scc1 %s" % l)
        a("ds_read_b128 %s, v%d offset:%d" % (vr(C_O + 4 * m, 4), C_R + m, 0))
        a.label(l)
    emit(a, hooks.get(2))
    a("s_waitcnt lgkmcnt(0)")
    for m in range(nround):
        l = a.newlabel("fs")
        if m == nround - 1 and last_waves < 8:
            a("s_cmp_ge_u32 s%d, %d" % (S_WV, last_waves))
            a("s_cbranch_scc1 %s" % l)
        a("buffer_store_dwordx4 %s, v%d, s[%d:%d], s%d offen %s" % (vr(C_O + 4 * m, 4), C_R + 4 + m, S_OUT, S_OUT + 3, S_T0, OUTST))
        a.label(l)
assert all((p * 6554) >> 16 == p // 10 for p in range(1536))

def poll_oa(a, half_):
    a("v_lshrrev_b32 v7, 3, v%d" % V_LANE)
    a("v_and_b32 v8, 7, v%d" % V_LANE)
    a("v_lshlrev_b32 v7, 7, v7")
    a("v_lshl_add_u32 v7, v8, 2, v7")
    a("s_lshl_b32 s%d, s%d, 1" % (S_T0, S_R))
    a("s_add_u32 s%d, s%d, %d" % (S_T0, S_T0, half_))
    a("s_lshl_b32 s%d, s%d, 10" % (S_T0, S_T0))
    a("s_add_u32 s%d, s%d, %d" % (S_T0, S_T0, F_OA))
    poll(a, 7, S_T0, "-1", "-1")

S_JR = S_DB
def phase3A(a):
    p3_dma_setup(a)
    p3_setup(a)
    a("s_lshl_b32 s%d, s%d, 7" % (S_JR, S_R))
    a("s_barrier")
    stamp(a, "attn")
    a("s_add_u32 s%d, s%d, 0" % (S_U, S_WV))
    a("s_mul_i32 s%d, s%d, %d" % (S_OFF, S_WV, 32 * 1280))
    a("s_mul_i32 s%d, s%d, 5120" % (S_U, S_WV))
    for j in range(5):
        a("s_add_u32 m0, s%d, %d" % (S_U, j * 1024))
        a("s_mul_i32 s%d, s%d, %d" % (S_OFF, S_WV, 32 * 1280))
        a("buffer_load_dwordx4 v%d, s[%d:%d], s%d offen %s lds" % (C_DMA + j, S_WO, S_WO + 3, S_OFF, DML))
        if j == 1:
            a("s_waitcnt vmcnt(2)")
            oa_flag_off(a, S_T0, 1)
            publish(a, S_T0, None)
    p3_oloads(a, 0, S_JR, 0)
    wo_load(a, S_WO, first=8)
    a("s_waitcnt vmcnt(0)")
    a("s_barrier")
    stamp(a, "j0a")
    p3_mm(a, [0], lambda i: None)
    stamp(a, "j1a")
    p3_epilogue(a, 0, S_JR, 1)
    stamp(a, "j2a")

def phaseB(a):
    apply_phase(a)
    stamp(a, "kvld")
    p3_setup(a)
    a("s_waitcnt vmcnt(0)")
    a("s_barrier")
    a("s_lshl_b32 s%d, s%d, 3" % (S_T0, S_R))
    a("s_add_u32 s%d, s%d, s%d" % (S_T0, S_T0, S_G))
    a("s_lshl_b32 s%d, s%d, 7" % (S_T0, S_T0))
    a("s_add_u32 s%d, s%d, %d" % (S_T0, S_T0, F_OB))
    publish(a, S_T0, 0)
    stamp(a, "attn")
    a("v_lshlrev_b32 v7, 7, v%d" % V_LANE)
    a("s_lshl_b32 s%d, s%d, 10" % (S_T0, S_R))
    a("s_add_u32 s%d, s%d, %d" % (S_T0, S_T0, F_OB))
    poll(a, 7, S_T0, "0xff", "0")
    a("s_barrier")
    stamp(a, "j0b")
    a("s_lshl_b32 s%d, s%d, 7" % (S_JR, S_R))
    p3_oloads(a, 1, S_JR, 0)
    p3_oloads(a, 1, S_JR, 1)
    p3_mm(a, [0, 1], lambda i: 9 - i)
    stamp(a, "j1b")
    def refill(k):
        def f(a):
            l = a.newlabel("rf")
            a("s_cmp_eq_u32 s%d, 0" % S_WV)
            a("s_cbranch_scc1 %s" % l)
            a("s_add_u32 s%d, s%d, %d" % (S_U, S_WV, 7 * k + 63))
            a("s_sub_u32 s%d, s%d, 64" % (S_U, S_U))
            if k == 2:
                a("s_cmp_ge_u32 s%d, 20" % S_U)
                a("s_cbranch_scc1 %s" % l)
            a("s_mul_i32 s%d, s%d, %d" % (S_OFF, S_U, 32 * 1280))
            a("s_mul_i32 s%d, s%d, 5120" % (S_U, S_U))
            for j in range(5):
                a("s_add_u32 m0, s%d, %d" % (S_U, j * 1024))
                a("s_nop 0")
                a("buffer_load_dwordx4 v%d, s[%d:%d], s%d offen %s lds" % (C_DMA + j, S_WO, S_WO + 3, S_OFF, DML))
            a.label(l)
        return f
    if 'norefill' in OPT:
        p3_epilogue(a, 1, S_JR, 2)
        stamp(a, "j2b")
        a("s_barrier")
        wo_load(a, S_WO, skip0=True)
    else:
        p3_epilogue(a, 1, S_JR, 2, {0: refill(0), 1: refill(1), 2: refill(2)})
        stamp(a, "j2b")
    poll_oa(a, 1)
    a("s_waitcnt vmcnt(0)")
    a("s_barrier")
    stamp(a, "j0a")
    a("s_lshl_b32 s%d, s%d, 7" % (S_JR, S_R))
    a("s_add_u32 s%d, s%d, 64" % (S_JR, S_JR))
    p3_oloads(a, 0, S_JR, 0)
    p3_mm(a, [0], lambda i: 9 - i)
    stamp(a, "j1a")
    p3_epilogue(a, 0, S_JR, 1)
    stamp(a, "j2a")

def epoch_update(a):
    l = a.newlabel("ep")
    a("s_cmp_eq_u32 s2, 0")
    a("s_cbranch_scc0 %s" % l)
    a("v_lshlrev_b32 v7, 7, v%d" % V_LANE)
    for k in range(4):
        a("s_mov_b32 s%d, %d" % (S_T0, F_KV + k * 64 * 128))
        poll(a, 7, S_T0, "-1", "-1")
    a("s_mov_b32 s%d, %d" % (S_T0, WS_FLAG))
    publish(a, S_T0, 0)
    a.label(l)

HEADER = """; sliding-window attention block + linear attention block, one fused launch (generated by gen3.py)
"""
def build():
    out = [HEADER, "; @launch grid=(256,1,1) block=(512,1,1) lds=163840\n"]
    out.append('.amdgcn_target "amdgcn-amd-amdhsa--gfx950"\n.text\n')
    a = Asm()
    stubs = []
    entry(a)
    phase1(a)
    if 'p1only' in OPT: a("s_branch L_fin2")
    lb = a.newlabel("brB")
    a("s_cmp_eq_u32 s%d, 0" % S_BR)
    a("s_cbranch_scc0 %s" % lb)
    phase2A(a, stubs)
    phase3A(a)
    a("s_branch L_fin")
    emit_stubs(a, stubs)
    a.label(lb)
    phaseB(a)
    a.label("L_fin")
    epoch_update(a)
    a.label("L_fin2")
    stamp(a, "end")
    if STAMPS: a("s_waitcnt vmcnt(0)")
    stamp_store(a)
    a.label("L_end"); a("s_endpgm")
    a.label("L_codeend")
    out.append(".globl %s\n.p2align 8\n.type %s,@function\n%s:\n" % (NAME, NAME, NAME) + a.text())
    if 'nocodepf' not in OPT:
        out.append(".set CODE_TOTAL, L_codeend - L_pcbase\n.set CODE_CHUNK, ((CODE_TOTAL / 8 + 127) / 128) * 128\n.set CODE_LAST, CODE_TOTAL - 4\n")
    out.append('.section .rodata,"a"\n.p2align 6\n')
    out.append((".amdhsa_kernel %s\n  .amdhsa_next_free_vgpr 256\n  .amdhsa_next_free_sgpr 102\n  .amdhsa_accum_offset 256\n"
                "  .amdhsa_group_segment_fixed_size 0\n  .amdhsa_kernarg_size 72\n  .amdhsa_user_sgpr_count 2\n"
                "  .amdhsa_user_sgpr_kernarg_segment_ptr 1\n  .amdhsa_system_sgpr_workgroup_id_x 1\n.end_amdhsa_kernel\n") % NAME)
    return "".join(out)

if __name__ == "__main__":
    OPT = set(sys.argv[2:])
    for x in sys.argv:
        if x.startswith("st="):
            STAMPS = True
            STMAP = {n: i for i, n in enumerate(x[3:].split(","))}
    for x in OPT:
        if x.startswith('sch='): SCHED = x[4:]
        if x.startswith('pub0at='): PUB0_AT = int(x[7:])
        if x.startswith('wsb='): WS_BASE = int(x[4:]) << 20
        if x.startswith('outst='): OUTST = x[6:].replace('+', ' ')
    if 'pfnt' in OPT: PFL = "nt"
    if 'dmant' in OPT: DML = "nt"
    if 'p1only' in OPT: S_ST = 84
    open(sys.argv[1], "w").write(build())
```

```python
import sys, struct
from asmlib import Asm, vr, sr

NAME = "concat_heads__sliding_block__linear_attn_block__prompt_kernel"
WS_KV   = 0x0000000
WS_O    = 0x0A00000
WS_PART = 0x0F00000
WS_FLAG = 0x1000000
WS_STAMP = 0x1080000
WS_SIZE = 0x1100000
O_BR = 128 * 20480
F_KV, F_PART, F_OA, F_OB = WS_FLAG + 0x1000, WS_FLAG + 0x5000, WS_FLAG + 0x9000, WS_FLAG + 0x11000
SPIN_LIMIT = 40000
ST, LD = "sc1", "sc1"
PFL = ""
DML = ""
STAMPS, STMAP, OPT = False, None, set()
SCHED = 'e'
WS_BASE = 0
OUTST = 'nt'

S_NONCE = 3
S_ST = 4
S_I, S_U = 22, 23
S_X, S_W, S_WS, S_OUT, S_WO, S_WOB = 24, 28, 32, 36, 40, 44
S_BR, S_R, S_G, S_WV, S_RG, S_CS = 48, 49, 50, 51, 52, 53
S_T0, S_T1, S_T2, S_T3, S_T4, S_T5 = 54, 55, 56, 57, 58, 59
S_DB, S_OFF = 60, 61
S_M0, S_M1, S_M2 = 62, 64, 66
S_D, S_SB, S_SOFF, S_STEP, S_J = 68, 72, 76, 77, 78
S_G1 = 82
S_MASK = 68

V_IMG, V_LANE, V_N, V_KG = 0, 1, 2, 3
V_DMA, V_XA, V_WA, V_PF, V_XT, V_WB0, V_WB1 = 10, 15, 19, 29, 32, 40, 60
V_ACC, V_ACC2, V_XP, V_DMA2, V_PFD, V_WA2 = 80, 120, 160, 240, 245, 246
LDS_W = 65536
XSLOT, WSLOT = 16384, 20480
LOG2E = 1.4426950408889634
QSCALE = LOG2E / (20.0 ** 0.5)

def f2u(x): return struct.unpack("<I", struct.pack("<f", x))[0]
def mfma16(d, x, y, c=None):
    return "v_mfma_f32_16x16x32_bf16 %s, %s, %s, %s" % (vr(d, 4), vr(x, 4), vr(y, 4), vr(d, 4) if c is None else c)
def mfma32(d, x, y, c=None):
    return "v_mfma_f32_32x32x16_bf16 %s, %s, %s, %s" % (vr(d, 16), vr(x, 4), vr(y, 4), vr(d, 16) if c is None else c)
def emit(a, item):
    if item is None: return
    if callable(item): item(a)
    elif isinstance(item, (list, tuple)):
        for x in item: emit(a, x)
    else: a(item)

class LQ:
    def __init__(self, a): self.a, self.n, self.done = a, 0, 0
    def issue(self, s, cnt=1):
        emit(self.a, s); self.n += cnt; return self.n
    def need(self, idx):
        if idx > self.done:
            cnt = self.n - idx
            self.a("s_waitcnt lgkmcnt(%d)" % min(cnt, 15))
            self.done = idx if cnt <= 15 else self.n - 15
    def drain(self):
        if self.n > self.done:
            self.a("s_waitcnt lgkmcnt(0)"); self.done = self.n

NST = 8
def rec(f, *args):
    r = Asm(); r.nlab = 900000; f(r, *args)
    return [l.strip() for l in r.lines]
def stamp(a, name):
    if not STAMPS or STMAP is None or name not in STMAP: return
    i = STMAP[name]
    a("%s s[%d:%d]" % ("s_memtime" if 'cyc' in OPT else "s_memrealtime", S_ST + 2 * i, S_ST + 2 * i + 1))
def stamp_dbg(a):
    a("s_memrealtime s[20:21]")
    a("s_load_dwordx2 s[24:25], s[0:1], 56")
    a("s_waitcnt lgkmcnt(0)")
    a("s_mov_b32 s26, 256"); a("s_mov_b32 s27, 0x20000")
    a("s_mov_b64 exec, 1")
    a("v_mov_b32 v4, 0")
    a("s_not_b32 s22, s101")
    for reg, slot in [(22, 0), (20, 1)] + [(S_ST + 2 * i, 2 + i) for i in range(NST)]:
        a("v_mov_b32 v5, s%d" % reg)
        a("buffer_atomic_umax v5, v4, s[24:27], 0 offen offset:%d" % (slot * 4))
    a("v_mov_b32 v5, s101")
    a("buffer_atomic_umax v5, v4, s[24:27], 0 offen offset:%d" % (10 * 4))
    a("s_mov_b64 exec, -1")

def stamp_store(a):
    if not STAMPS: return
    if 'dbg' in OPT: return stamp_dbg(a)
    a("s_memrealtime s[20:21]")
    a("s_memtime s[24:25]")
    a("s_waitcnt lgkmcnt(0)")
    a("s_lshl_b32 s%d, s2, 3" % S_T0)
    a("s_add_u32 s%d, s%d, s%d" % (S_T0, S_T0, S_WV))
    a("s_lshl_b32 s%d, s%d, 6" % (S_T0, S_T0))
    a("s_add_u32 s%d, s%d, %d" % (S_T0, S_T0, WS_STAMP))
    a("s_mov_b64 exec, 1")
    a("v_mov_b32 v4, 0")
    for i in range(NST):
        a("v_mov_b32 v5, s%d" % (S_ST + 2 * i))
        a("buffer_store_dword v5, v4, s[%d:%d], s%d offen offset:%d" % (S_WS, S_WS + 3, S_T0, i * 4))
    a("s_getreg_b32 s21, hwreg(HW_REG_XCC_ID)")
    a("s_getreg_b32 s22, hwreg(HW_REG_HW_ID)")
    for reg, slot in ((20, 15), (101, 14), (100, 13), (21, 12), (22, 11), (24, 10)):
        a("v_mov_b32 v5, s%d" % reg)
        a("buffer_store_dword v5, v4, s[%d:%d], s%d offen offset:%d" % (S_WS, S_WS + 3, S_T0, slot * 4))
    a("s_mov_b64 exec, -1")

def minwrap(a, v, m, tmp):
    a("v_subrev_u32 v%d, %d, v%d" % (tmp, m, v))
    a("v_min_u32 v%d, v%d, v%d" % (v, v, tmp))
def srd(a, d, lo, hi, size):
    a("s_mov_b32 s%d, s%d" % (d, lo)); a("s_mov_b32 s%d, s%d" % (d + 1, hi))
    a("s_mov_b32 s%d, %d" % (d + 2, size)); a("s_mov_b32 s%d, 0x20000" % (d + 3))
def role_branch(a, fw, fx):
    lx, ld = a.newlabel("rx"), a.newlabel("rd")
    a("s_cmp_eq_u32 s%d, 0" % S_CS)
    a("s_cbranch_scc0 %s" % (lx if fx else ld))
    emit(a, fw)
    if fx:
        a("s_branch %s" % ld)
        a.label(lx)
        emit(a, fx)
    a.label(ld)
def on_wave(a, wave, f):
    l = a.newlabel("ow")
    a("s_cmp_eq_u32 s%d, %d" % (S_WV, wave))
    a("s_cbranch_scc0 %s" % l)
    emit(a, f)
    a.label(l)

def entry(a):
    a("s_cmp_ge_u32 s2, 256")
    a("s_cbranch_scc1 L_end")
    if STAMPS:
        a("s_memrealtime s[100:101]")
        a("s_memtime s[62:63]")
    a("s_load_dwordx16 s[4:19], s[0:1], 0")
    a("s_load_dwordx2 s[20:21], s[0:1], 64")
    if 'badmap' in OPT:
        a("s_lshr_b32 s%d, s2, 5" % S_T0)
        a("s_and_b32 s%d, s2, 31" % S_I)
    else:
        a("s_and_b32 s%d, s2, 7" % S_T0)
        a("s_lshr_b32 s%d, s2, 3" % S_I)
    a("v_lshrrev_b32 v4, 6, v0")
    a("v_and_b32 v%d, 63, v0" % V_LANE)
    a("v_and_b32 v%d, 15, v0" % V_N)
    a("v_readfirstlane_b32 s%d, v4" % S_WV)
    a("v_lshrrev_b32 v%d, 4, v%d" % (V_KG, V_LANE))
    if 'brlo' in OPT or 'brhi' in OPT:
        a("s_lshr_b32 s%d, s%d, 2" % (S_BR, S_T0))
        if 'brhi' in OPT: a("s_xor_b32 s%d, s%d, 1" % (S_BR, S_BR))
        a("s_and_b32 s%d, s%d, 3" % (S_T2, S_T0))
    else:
        a("s_and_b32 s%d, s%d, 1" % (S_BR, S_T0))
        a("s_lshr_b32 s%d, s%d, 1" % (S_T2, S_T0))
    a("s_and_b32 s%d, s%d, 1" % (S_T3, S_T2))
    a("s_lshl_b32 s%d, s%d, 3" % (S_T3, S_T3))
    a("s_and_b32 s%d, s%d, 7" % (S_T4, S_I))
    a("s_add_u32 s%d, s%d, s%d" % (S_R, S_T3, S_T4))
    a("s_lshr_b32 s%d, s%d, 1" % (S_T3, S_T2))
    a("s_lshr_b32 s%d, s%d, 3" % (S_T4, S_I))
    a("s_lshl_b32 s%d, s%d, 2" % (S_T5, S_T3))
    a("s_add_u32 s%d, s%d, s%d" % (S_G, S_T5, S_T4))
    a("s_lshl_b32 s%d, s%d, 1" % (S_T3, S_T3))
    a("s_and_b32 s%d, s%d, 1" % (S_T5, S_T4))
    a("s_add_u32 s%d, s%d, s%d" % (S_T3, S_T3, S_T5))
    a("s_lshr_b32 s%d, s%d, 1" % (S_T4, S_T4))
    a("s_lshl_b32 s%d, s%d, 2" % (S_T4, S_T4))
    a("s_add_u32 s%d, s%d, s%d" % (S_G1, S_T3, S_T4))
    a("s_and_b32 s%d, s%d, 3" % (S_RG, S_WV))
    a("s_lshr_b32 s%d, s%d, 2" % (S_CS, S_WV))
    if 'nocodepf' not in OPT:
        def cpf(a):
            a("s_getpc_b64 s[56:57]")
            a.label("L_pcbase")
            a("s_and_b32 s%d, s%d, 7" % (S_T4, S_I))
            a("s_mul_i32 s%d, s%d, CODE_CHUNK" % (S_T4, S_T4))
            a("v_lshlrev_b32 v4, 7, v%d" % V_LANE)
            a("v_add_u32 v4, s%d, v4" % S_T4)
            a("v_min_u32 v4, CODE_LAST, v4")
            a("global_load_dword v%d, v4, s[56:57]" % V_PFD)
        on_wave(a, 7, cpf)

def dma_setup(a):
    stamp(a, "ids")
    def fw(a):
        a("s_mul_i32 s%d, s%d, %d" % (S_T0, S_RG, 16 * 3840))
        a("s_mul_i32 s%d, s%d, 160" % (S_T1, S_G))
        a("s_mul_i32 s%d, s%d, 320" % (S_T2, S_G1))
        a("s_cmp_eq_u32 s%d, 0" % S_BR)
        a("s_cselect_b32 s%d, s%d, s%d" % (S_T2, S_T2, S_T1))
        a("s_cselect_b32 s%d, 0, 1120" % S_T5)
        a("s_add_u32 s%d, s%d, s%d" % (S_T2, S_T2, S_T0))
        a("s_add_u32 s%d, s%d, 1280" % (S_T2, S_T2))
        a("s_add_u32 s%d, s%d, s%d" % (S_T0, S_T0, S_T1))
        a("s_movk_i32 s%d, 3277" % S_T1)
        a("s_movk_i32 s%d, 3840" % S_T3)
        a("s_mov_b32 s%d, %d" % (S_T4, 245760 - 160))
        for j in range(5):
            p, kk, q, u, t = 4, 5, 6, 7, 8
            a("v_add_u32 v%d, %d, v%d" % (p, 64 * j, V_LANE))
            a("v_mul_u32_u24 v%d, s%d, v%d" % (kk, S_T1, p))
            a("v_lshrrev_b32 v%d, 16, v%d" % (kk, kk))
            a("v_mul_u32_u24 v%d, 20, v%d" % (q, kk))
            a("v_lshrrev_b32 v%d, 2, v%d" % (u, kk))
            a("v_sub_u32 v%d, v%d, v%d" % (q, p, q))
            a("v_and_b32 v%d, 2, v%d" % (u, u))
            a("v_sub_u32 v%d, v%d, v%d" % (u, q, u))
            a("v_add_u32 v%d, 20, v%d" % (t, u))
            a("v_min_u32 v%d, v%d, v%d" % (u, u, t))
            a("v_add_u32 v%d, 6, v%d" % (t, u))
            a("v_lshrrev_b32 v%d, 4, v%d" % (t, t))
            a("v_mul_u32_u24 v%d, s%d, v%d" % (kk, S_T3, kk))
            a("v_lshl_add_u32 v%d, v%d, 4, v%d" % (kk, u, kk))
            a("v_mad_u32_u24 v%d, v%d, s%d, v%d" % (q, t, S_T5, kk))
            a("v_add_u32 v%d, s%d, v%d" % (V_DMA + j, S_T2, q))
            a("v_mad_u32_u24 v%d, v%d, s%d, v%d" % (q, t, S_T4, kk))
            a("v_add_u32 v%d, s%d, v%d" % (V_DMA2 + j, S_T0, q))
        a("s_mul_i32 s%d, s%d, 5120" % (S_T0, S_RG))
        for k in range(4): a("s_add_u32 s%d, s%d, %d" % (S_SB + k, S_T0, LDS_W + k * WSLOT))
        a("s_mov_b32 s%d, %d" % (S_STEP, 64 * 3840))
        for k in range(1, 4): a("s_mov_b32 s%d, 0" % (S_J + k))
        a("v_and_b32 v4, 31, v%d" % V_LANE)
        a("v_lshrrev_b32 v5, 5, v%d" % V_LANE)
        a("v_min_u32 v4, 19, v4")
        a("s_lshr_b32 s%d, s%d, 2" % (S_T0, S_G))
        a("v_mul_u32_u24 v6, 13, v4"); a("v_lshrrev_b32 v6, 7, v6")
        a("v_mul_u32_u24 v7, 52, v4"); a("v_lshrrev_b32 v7, 8, v7")
        a("v_mul_u32_u24 v8, 5, v7"); a("v_sub_u32 v8, v4, v8")
        a("v_lshlrev_b32 v8, 7, v8")
        a("v_lshl_add_u32 v6, v5, 6, v6")
        a("s_lshl_b32 s%d, s%d, 1" % (S_T2, S_I))
        a("v_add_u32 v6, s%d, v6" % S_T2)
        a("v_mul_u32_u24 v6, s%d, v6" % S_T3)
        a("v_and_b32 v9, 1, v7")
        a("s_movk_i32 s%d, 1280" % S_T2)
        a("v_mul_u32_u24 v9, s%d, v9" % S_T2)
        a("v_add3_u32 v6, v6, v9, v8")
        a("s_mul_i32 s%d, s%d, 640" % (S_T0, S_T0))
        a("s_add_u32 s%d, s%d, 1280" % (S_T2, S_T0))
        a("v_add_u32 v%d, s%d, v6" % (V_PF + 1, S_T2))
        a("v_lshl_add_u32 v7, v5, 7, v7")
        a("s_lshl_b32 s%d, s%d, 2" % (S_T2, S_I))
        a("v_add_u32 v7, s%d, v7" % S_T2)
        a("v_mul_u32_u24 v7, s%d, v7" % S_T3)
        a("v_add3_u32 v%d, v7, v8, s%d" % (V_PF + 2, S_T0))
        a("v_mov_b32 v%d, 0" % V_PF)
    def fx(a):
        a("s_lshl_b32 s%d, s%d, 7" % (S_T0, S_R))
        a("s_lshl_b32 s%d, s%d, 5" % (S_T1, S_RG))
        a("s_add_u32 s%d, s%d, s%d" % (S_T0, S_T0, S_T1))
        a("s_mul_i32 s%d, s%d, 1280" % (S_T0, S_T0))
        a("s_movk_i32 s%d, 1280" % S_T1)
        a("v_lshrrev_b32 v4, 3, v%d" % V_LANE)
        a("v_and_b32 v5, 7, v%d" % V_LANE)
        a("v_xor_b32 v5, v5, v4")
        a("v_mul_u32_u24 v4, s%d, v4" % S_T1)
        a("v_lshl_add_u32 v4, v5, 4, v4")
        a("v_add_u32 v%d, s%d, v4" % (V_DMA, S_T0))
        for j in range(1, 5): a("v_mov_b32 v%d, v%d" % (V_DMA + j, V_DMA))
        for j in range(5): a("v_mov_b32 v%d, 0" % (V_DMA2 + j))
        a("s_lshl_b32 s%d, s%d, 12" % (S_T0, S_RG))
        for k in range(4): a("s_add_u32 s%d, s%d, %d" % (S_SB + k, S_T0, k * XSLOT))
        a("s_movk_i32 s%d, 128" % S_STEP)
        for k in range(1, 4): a("s_mov_b32 s%d, %d" % (S_J + k, k * 10240))
        a("v_and_b32 v4, 31, v%d" % V_LANE)
        a("v_lshrrev_b32 v5, 5, v%d" % V_LANE)
        a("s_lshr_b32 s%d, s%d, 3" % (S_T0, S_R))
        a("s_lshl_b32 s%d, s%d, 5" % (S_T0, S_T0))
        a("s_add_u32 s%d, s%d, s%d" % (S_T0, S_T0, S_I))
        a("s_mul_i32 s%d, s%d, %d" % (S_T0, S_T0, 32 * 1280))
        a("v_mul_u32_u24 v6, s%d, v4" % S_T1)
        a("v_lshl_add_u32 v6, v5, 7, v6")
        a("v_add_u32 v%d, s%d, v6" % (V_PF, S_T0))
        a("v_mov_b32 v%d, 0" % (V_PF + 1)); a("v_mov_b32 v%d, 0" % (V_PF + 2))
    role_branch(a, fw, fx)
    a("s_mov_b32 s%d, 0" % S_SOFF)

def entry_srd(a):
    a("s_waitcnt lgkmcnt(0)")
    a("s_cmp_eq_u32 s%d, 0" % S_BR)
    a("s_cselect_b32 s%d, s4, s10" % S_X)
    a("s_cselect_b32 s%d, s5, s11" % (S_X + 1))
    a("s_mov_b32 s%d, 2621440" % (S_X + 2))
    a("s_mov_b32 s%d, 0x20000" % (S_X + 3))
    a("s_cselect_b32 s%d, s6, s12" % S_W)
    a("s_cselect_b32 s%d, s7, s13" % (S_W + 1))
    a("s_mov_b32 s%d, 2457600" % (S_W + 2))
    a("s_mov_b32 s%d, 0x20000" % (S_W + 3))
    a("s_cmp_eq_u32 s%d, 0" % S_CS)
    a("s_cselect_b32 s%d, s%d, s%d" % (S_D, S_W, S_X))
    a("s_cselect_b32 s%d, s%d, s%d" % (S_D + 1, S_W + 1, S_X + 1))
    a("s_cselect_b32 s%d, s%d, s%d" % (S_D + 2, S_W + 2, S_X + 2))
    a("s_mov_b32 s%d, 0x20000" % (S_D + 3))

def entry_srd2(a):
    if WS_BASE:
        a("s_add_u32 s20, s20, %d" % WS_BASE)
        a("s_addc_u32 s21, s21, 0")
    srd(a, S_WS, 20, 21, WS_SIZE)
    srd(a, S_OUT, 16, 17, 5242880)
    srd(a, S_WO, 8, 9, 819200)
    srd(a, S_WOB, 14, 15, 819200)
    if STAMPS:
        a("s_mov_b32 s101, s100")
        a("s_mov_b32 s100, s62")
        if S_ST == 4:
            for i in range(NST): a("s_mov_b32 s%d, 0" % (S_ST + 2 * i))

def pf(kind, idx, k):
    def f(a):
        if 'nopf' in OPT: return
        def body(a):
            if kind == 'x': a("s_mov_b32 s%d, %d" % (S_OFF, idx * 256)); s_, v = S_X, V_PF
            elif kind == 'w': a("s_mov_b32 s%d, %d" % (S_OFF, idx * 128 * 3840)); s_, v = S_W, V_PF + 1
            else: a("s_mov_b32 s%d, %d" % (S_OFF, idx * 256 * 3840)); s_, v = S_W, V_PF + 2
            if 'pfhalf' in OPT and kind == 'x': a("s_mov_b32 exec_hi, 0")
            if 'nopfx' in OPT and kind == 'x': return
            if 'nopfw' in OPT and kind != 'x': return
            a("buffer_load_dword v%d, v%d, s[%d:%d], s%d offen %s" % (V_PFD, v, s_, s_ + 3, S_OFF, PFL))
            if 'pfhalf' in OPT and kind == 'x': a("s_mov_b32 exec_hi, -1")
        on_wave(a, (4 + k) if kind == 'x' else k, body)
    return f

def dma(sig, j):
    def f(a):
        if 'nodma' in OPT and sig >= 3: return
        slot = sig % 4
        def body(a):
            a("s_add_u32 m0, s%d, %d" % (S_SB + slot, j * 1024))
            if sig < 10:
                if 1 <= j <= 3:
                    a("s_add_u32 s%d, s%d, s%d" % (S_OFF, S_SOFF, S_J + j)); so = S_OFF
                else:
                    a("s_nop 0"); so = S_SOFF
                a("buffer_load_dwordx4 v%d, s[%d:%d], s%d offen %s lds" % (V_DMA + j, S_D, S_D + 3, so, DML))
            else:
                a("s_mov_b32 s%d, %d" % (S_OFF, (sig - 10) * 128 * 3840))
                a("buffer_load_dwordx4 v%d, s[%d:%d], s%d offen %s lds" % (V_DMA2 + j, S_D, S_D + 3, S_OFF, DML))
        if sig >= 10 or j == 4: role_branch(a, body, None)
        else: body(a)
        if sig < 10 and j == 4: a("s_add_u32 s%d, s%d, s%d" % (S_SOFF, S_SOFF, S_STEP))
    return f

def img_pos(a, dst, tmp):
    a("v_lshl_add_u32 v%d, v%d, 2, v%d" % (tmp, V_KG, V_N))
    a("v_and_b32 v%d, 15, v%d" % (tmp, tmp))
    a("v_lshl_add_u32 v%d, v%d, 4, v%d" % (tmp, V_KG, tmp))
    a("v_lshlrev_b32 v%d, 4, v%d" % (dst, tmp))

E_, RP, BB, W4, TM = V_ACC2, V_ACC2 + 1, V_ACC2 + 2, V_ACC2 + 3, V_ACC2 + 4
def addr1_setup(a):
    a("v_and_b32 v4, 7, v%d" % V_N)
    a("s_lshl_b32 s%d, s%d, 12" % (S_T0, S_RG))
    a("v_lshlrev_b32 v5, 7, v%d" % V_N)
    a("v_xor_b32 v4, v4, v%d" % V_KG)
    a("v_lshl_add_u32 v4, v4, 4, v5")
    a("s_xor_b32 s%d, s%d, 1" % (S_T5, S_CS))
    a("s_lshl_b32 s%d, s%d, 6" % (S_T1, S_T5))
    a("s_lshl_b32 s%d, s%d, 11" % (S_T2, S_CS))
    a("s_or_b32 s%d, s%d, s%d" % (S_T1, S_T1, S_T2))
    a("s_or_b32 s%d, s%d, s%d" % (S_T1, S_T1, S_T0))
    a("v_xor_b32 v%d, s%d, v4" % (V_XA, S_T1))
    a("v_xor_b32 v%d, 0x800, v%d" % (V_XA + 1, V_XA))
    a("v_xor_b32 v%d, 64, v%d" % (V_XA + 2, V_XA))
    a("v_xor_b32 v%d, 64, v%d" % (V_XA + 3, V_XA + 1))
    a("v_and_b32 v4, 3, v%d" % V_N)
    a("v_lshrrev_b32 v%d, 2, v%d" % (RP, V_N))
    a("v_and_b32 v7, 1, v%d" % V_KG)
    a("v_lshl_add_u32 v%d, v%d, 3, v%d" % (RP, V_KG, RP))
    a("s_movk_i32 s%d, 320" % S_T1)
    a("v_lshlrev_b32 v7, 5, v7")
    a("v_mul_u32_u24 v%d, s%d, v%d" % (RP, S_T1, RP))
    a("v_lshl_add_u32 v%d, v4, 3, v7" % E_)
    a("v_add_u32 v%d, %d, v%d" % (RP, LDS_W, RP))
    a("v_add_u32 v%d, v%d, v%d" % (BB, RP, E_))
    a("s_mul_i32 s%d, s%d, 160" % (S_T2, S_CS))
    a("s_mul_i32 s%d, s%d, 80" % (S_T3, S_CS))
    a("s_mul_i32 s%d, s%d, 10240" % (S_T0, S_T5))
    a("s_mul_i32 s%d, s%d, 10240" % (S_T1, S_CS))
    def sA(T):
        a("s_add_u32 s%d, s%d, %d" % (S_T4, S_T2, 40 * T))
        a("s_add_u32 s%d, s%d, %d" % (S_T5, S_T3, (T >> 1) * 160 + 40 * (T & 1)))
        a("s_cmp_eq_u32 s%d, 0" % S_BR)
        a("s_cselect_b32 s%d, s%d, s%d" % (S_T4, S_T4, S_T5))
    for T in range(3):
        sA(T)
        a("s_add_u32 s%d, s%d, s%d" % (S_T5, S_T4, S_T0))
        a("v_add_u32 v%d, s%d, v%d" % (V_WA + T, S_T5, BB))
        a("s_add_u32 s%d, s%d, s%d" % (S_T5, S_T4, S_T1))
        a("v_add_u32 v%d, s%d, v%d" % (V_WA + 5 + T, S_T5, BB))
    sA(3)
    a("v_add_u32 v5, s%d, v%d" % (S_T4, E_))
    minwrap(a, 5, 320, TM)
    a("v_add_u32 v5, v5, v%d" % RP)
    a("v_add_u32 v%d, s%d, v5" % (V_WA + 3, S_T0))
    a("v_add_u32 v%d, s%d, v5" % (V_WA + 8, S_T1))
    a("s_cmp_eq_u32 s%d, 0" % S_BR)
    a("s_cselect_b32 s%d, s%d, s%d" % (S_T4, S_T2, S_T3))
    a("s_cselect_b32 s%d, 0, 80" % S_T5)
    a("s_add_u32 s%d, s%d, 32" % (S_T4, S_T4))
    a("v_mul_u32_u24 v%d, 40, v4" % (W4))
    a("v_lshrrev_b32 v5, 1, v4")
    a("v_add_u32 v%d, v%d, v7" % (W4, W4))
    a("v_mad_u32_u24 v5, v5, s%d, v%d" % (S_T5, W4))
    a("v_add_u32 v5, s%d, v5" % S_T4)
    minwrap(a, 5, 320, TM)
    a("v_add_u32 v5, v5, v%d" % RP)
    a("v_add_u32 v%d, s%d, v5" % (V_WA + 4, S_T0))
    a("v_add_u32 v%d, s%d, v5" % (V_WA + 9, S_T1))

def addr2_setup(a):
    a("s_mul_i32 s%d, s%d, 10240" % (S_T1, S_CS))
    for seg in range(2):
        for T in range(4):
            if seg == 1 and T == 3: continue
            a("s_add_u32 s%d, s%d, %d" % (S_T4, S_T1, seg * 160 + 40 * T))
            a("v_add_u32 v%d, s%d, v%d" % (V_WA2 + seg * 5 + T, S_T4, BB))
    a("v_add_u32 v5, 280, v%d" % E_)
    minwrap(a, 5, 320, TM)
    a("v_add3_u32 v%d, v5, v%d, s%d" % (V_WA2 + 8, RP, S_T1))
    a("s_add_u32 s%d, s%d, 32" % (S_T4, S_T1))
    a("v_add3_u32 v%d, v%d, v%d, s%d" % (V_WA2 + 4, W4, RP, S_T4))
    a("v_add_u32 v5, 192, v%d" % (W4))
    minwrap(a, 5, 320, TM)
    a("v_add3_u32 v%d, v5, v%d, s%d" % (V_WA2 + 9, RP, S_T1))
    img_pos(a, V_IMG, 4)

def p1_reads(s, hf):
    if 'noread' in OPT: return ["s_nop 0"] * 12
    slot = s % 4
    wb = V_WB0 if hf == 0 else V_WB1
    L = []
    for tp in range(2):
        dst = (V_XT + 4 * tp) if hf == 0 else (V_XP + (s * 2 + tp) * 4)
        L.append("ds_read_b128 %s, v%d offset:%d" % (vr(dst, 4), V_XA + hf * 2 + tp, slot * XSLOT))
    for T in range(5):
        for rd in range(2):
            L.append("ds_read_b64_tr_b16 %s, v%d offset:%d" % (vr(wb + 4 * T + 2 * rd, 2), V_WA + hf * 5 + T, slot * WSLOT + rd * 1280))
    return L
def p1_mfmas(s, hf, first):
    if 'nomfma' in OPT: return ["s_nop 0"] * 10
    wb = V_WB0 if hf == 0 else V_WB1
    return [mfma16(V_ACC + (tp * 5 + T) * 4, (V_XT + 4 * tp) if hf == 0 else (V_XP + (s * 2 + tp) * 4), wb + 4 * T, "0" if first else None)
            for T in range(5) for tp in range(2)]
def p2_reads(u):
    v, seg = u >> 1, u & 1
    slot = (10 + v) % 4
    wb = V_WB0 if (u & 1) == 0 else V_WB1
    return ["ds_read_b64_tr_b16 %s, v%d offset:%d" % (vr(wb + 4 * T + 2 * rd, 2), V_WA2 + seg * 5 + T, slot * WSLOT + rd * 1280)
            for T in range(5) for rd in range(2)]
def p2_mfmas(u):
    wb = V_WB0 if (u & 1) == 0 else V_WB1
    return [mfma16(V_ACC2 + (tp * 5 + T) * 4, V_XP + (u * 2 + tp) * 4, wb + 4 * T, "0" if u == 0 else None)
            for T in range(5) for tp in range(2)]

def half(a, lq, mf, needs, reads, sched, extra):
    ids = []
    reads = list(reads)
    for i, m in enumerate(mf):
        lq.need(needs[i])
        a(m)
        for _ in range(sched[i]):
            if reads: ids.append(lq.issue(reads.pop(0)))
        if i in extra: emit(a, extra[i])
    while reads: ids.append(lq.issue(reads.pop(0)))
    return ids

def epi1_A(a):
    a("s_lshr_b32 s%d, s%d, 2" % (S_T0, S_G1))
    a("s_lshl_b32 s%d, s%d, 3" % (S_T0, S_T0))
    a("s_and_b32 s%d, s%d, 3" % (S_T1, S_G1))
    a("s_lshl_b32 s%d, s%d, 1" % (S_T1, S_T1))
    a("s_add_u32 s%d, s%d, s%d" % (S_T0, S_T0, S_T1))
    a("s_add_u32 s%d, s%d, s%d" % (S_T0, S_T0, S_CS))
    a("s_lshl_b32 s%d, s%d, 6" % (S_T0, S_T0))
    a("s_lshl_b32 s%d, s%d, 2" % (S_T1, S_R))
    a("s_add_u32 s%d, s%d, s%d" % (S_T0, S_T0, S_T1))
    a("s_add_u32 s%d, s%d, s%d" % (S_T0, S_T0, S_RG))
    a("s_mul_i32 s%d, s%d, 5120" % (S_T0, S_T0))
    a("s_add_u32 s%d, s%d, %d" % (S_T0, S_T0, WS_KV))
    a("s_add_u32 s%d, s%d, 4096" % (S_T1, S_T0))
    def pack(swap):
        def f(a):
            for T in range(5):
                e = V_ACC2 + T * 4
                for t in range(2):
                    tp = t ^ swap
                    d = V_ACC + (tp * 5 + T) * 4
                    a("v_cvt_pk_bf16_f32 v%d, v%d, v%d" % (e + 2 * t, d, d + 1))
                    a("v_cvt_pk_bf16_f32 v%d, v%d, v%d" % (e + 2 * t + 1, d + 2, d + 3))
                a("buffer_store_dwordx4 %s, v%d, s[%d:%d], s%d offen offset:%d %s" % (vr(e, 4), V_IMG, S_WS, S_WS + 3, S_T1 if T == 4 else S_T0, (T & 3) * 1024, ST))
                if 'dbl' in OPT:
                    a("buffer_store_dwordx4 %s, v%d, s[%d:%d], s%d offen offset:%d" % (vr(e, 4), V_IMG, S_WS, S_WS + 3, S_T1 if T == 4 else S_T0, (T & 3) * 1024))
        return f
    role_branch(a, pack(0), pack(1))
    a("s_nop 1")

def phi(a, regs, tmp):
    a("s_mov_b32 s%d, 0x%x" % (S_T4, f2u(LOG2E)))
    a("s_mov_b32 s%d, 0x%x" % (S_T5, f2u(LOG2E)))
    a("s_mov_b32 s%d, 0x%x" % (S_M2, f2u(1e-6)))
    a("s_mov_b32 s%d, 0x%x" % (S_M2 + 1, f2u(1e-6)))
    for i in range(0, len(regs), 4):
        g = regs[i:i + 4]
        assert g[0] % 2 == 0 and g[1] == g[0] + 1 and g[2] % 2 == 0 and g[3] == g[2] + 1
        for k in (0, 2): a("v_pk_mul_f32 %s, %s, s[%d:%d]" % (vr(tmp + k, 2), vr(g[k], 2), S_T4, S_T5))
        for k in range(4): a("v_exp_f32_e64 v%d, v%d clamp" % (tmp + k, tmp + k))
        for k in range(4): a("v_max_f32 v%d, 0, v%d" % (g[k], g[k]))
        for k in (0, 2): a("v_pk_add_f32 %s, %s, s[%d:%d]" % (vr(g[k], 2), vr(g[k], 2), S_M2, S_M2 + 1))
        for k in (0, 2): a("v_pk_add_f32 %s, %s, %s" % (vr(g[k], 2), vr(g[k], 2), vr(tmp + k, 2)))

def piece_decode(a):
    a("s_and_b32 s%d, s%d, 1" % (S_T0, S_WV))
    a("s_lshl_b32 s%d, s%d, 6" % (S_T0, S_T0))
    a("v_add_u32 v5, s%d, v%d" % (S_T0, V_LANE))
    a("s_movk_i32 s%d, 2731" % S_T1)
    a("v_mul_u32_u24 v6, s%d, v5" % S_T1)
    a("v_lshrrev_b32 v6, 16, v6")
    a("v_mul_u32_u24 v7, 24, v6")
    a("v_sub_u32 v7, v5, v7")

B_WR, B_RD, B_GO = V_ACC2 + 16, V_ACC2 + 17, V_ACC2 + 18
S_BM, S_BB = 90, 92
def epi1B_pre(a):
    M = V_ACC2 + 19
    a("s_mul_i32 s%d, s%d, 7168" % (S_T0, S_WV))
    a("v_lshlrev_b32 v4, 4, v%d" % V_LANE)
    a("v_add_u32 v%d, s%d, v4" % (B_WR, S_T0))
    piece_decode(a)
    a("s_lshr_b32 s%d, s%d, 1" % (S_T2, S_WV))
    a("s_and_b32 s%d, s%d, 1" % (S_T3, S_T2))
    a("s_lshr_b32 s%d, s%d, 1" % (S_T2, S_T2))
    a("s_lshl_b32 s%d, s%d, 2" % (S_T4, S_T3))
    a("s_sub_u32 s%d, s%d, 8" % (S_T4, S_T4))
    a("v_add_u32 v8, s%d, v7" % S_T4)
    a("v_cmp_gt_u32_e64 s[%d:%d], 20, v7" % (S_M0, S_M0 + 1))
    a("v_cmp_gt_u32_e64 s[%d:%d], 16, v7" % (S_M1, S_M1 + 1))
    a("v_cmp_gt_u32_e64 s[%d:%d], 4, v6" % (S_M2, S_M2 + 1))
    a("s_nop 1")
    a("v_cndmask_b32_e64 v8, 0, v8, s[%d:%d]" % (S_M0, S_M0 + 1))
    a("v_cndmask_b32_e64 v8, v8, v7, s[%d:%d]" % (S_M1, S_M1 + 1))
    a("v_mov_b32 v4, s%d" % S_T3)
    a("v_cndmask_b32_e64 v4, v4, v6, s[%d:%d]" % (S_M2, S_M2 + 1))
    a("v_lshl_add_u32 v8, v4, 4, v8")
    a("s_add_u32 s%d, s%d, 4" % (S_T4, S_T3))
    a("v_mov_b32 v4, s%d" % S_T4)
    a("v_mov_b32 v%d, s%d" % (M, S_T3))
    a("v_cndmask_b32_e64 v4, v4, v%d, s[%d:%d]" % (M, S_M2, S_M2 + 1))
    a("s_add_u32 s%d, s%d, 2" % (S_T4, S_T3))
    a("v_mov_b32 v%d, s%d" % (M, S_T4))
    a("v_cndmask_b32_e64 v%d, 6, v%d, s[%d:%d]" % (M, M, S_M2, S_M2 + 1))
    a("v_cndmask_b32_e64 v4, v%d, v4, s[%d:%d]" % (M, S_M1, S_M1 + 1))
    a("v_lshlrev_b32 v4, 10, v4")
    a("v_lshl_add_u32 v8, v8, 4, v4")
    a("s_mul_i32 s%d, s%d, %d" % (S_T4, S_T2, 4 * 7168))
    a("v_add_u32 v8, s%d, v8" % S_T4)
    a("v_cmp_gt_u32_e64 s[%d:%d], 21, v7" % (S_M0, S_M0 + 1))
    a("v_cmp_gt_u32_e64 s[%d:%d], 5, v6" % (S_M1, S_M1 + 1))
    a("v_min_u32 v%d, %d, v8" % (B_RD, 8 * 7168 - 3 * 7168 - 16))
    a("s_lshl_b32 s%d, s%d, 4" % (S_BB, S_G))
    a("s_add_u32 s%d, s%d, s%d" % (S_BB, S_BB, S_R))
    a("s_lshl_b32 s%d, s%d, 12" % (S_BB, S_BB))
    a("s_lshr_b32 s%d, s%d, 1" % (S_T1, S_WV))
    a("s_lshl_b32 s%d, s%d, 10" % (S_T1, S_T1))
    a("s_add_u32 s%d, s%d, s%d" % (S_BB, S_BB, S_T1))
    a("s_add_u32 s%d, s%d, %d" % (S_BB, S_BB, WS_PART))
    a("v_lshlrev_b32 v%d, 3, v5" % B_GO)
    a("s_and_b64 s[%d:%d], s[%d:%d], s[%d:%d]" % (S_BM, S_BM + 1, S_M0, S_M0 + 1, S_M1, S_M1 + 1))

def epi1_B(a):
    acc = lambda tp, T: V_ACC + (tp * 5 + T) * 4
    raw = V_WB0
    TMP = V_ACC2
    a("s_nop 7")
    for tp in range(2):
        for k in range(4): a("v_mov_b32 v%d, v%d" % (raw + tp * 4 + k, acc(tp, 4) + k))
    regs = []
    for T in (0, 1, 4):
        for tp in range(2): regs += [acc(tp, T) + k for k in range(4)]
    phi(a, regs, TMP)
    a("s_mov_b32 s%d, 0x00ff00ff" % S_M0)
    a("s_mov_b32 s%d, 0x00ff00ff" % (S_M0 + 1))
    for tp in range(2):
        for k in range(4):
            a("v_cndmask_b32_e64 v%d, v%d, v%d, s[%d:%d]" % (acc(tp, 4) + k, raw + tp * 4 + k, acc(tp, 4) + k, S_M0, S_M0 + 1))
    P = V_WB1
    for T in range(5):
        for tp in range(2):
            d = acc(tp, T)
            a("v_cvt_pk_bf16_f32 v%d, v%d, v%d" % (P + 4 * T + 2 * tp, d, d + 1))
            a("v_cvt_pk_bf16_f32 v%d, v%d, v%d" % (P + 4 * T + 2 * tp + 1, d + 2, d + 3))
    TB = V_WB0 + 8
    a("v_mov_b32 v%d, 0x3f803f80" % TMP)
    for k in range(4):
        a("v_cndmask_b32_e64 v%d, v%d, v%d, s[%d:%d]" % (TB + k, P + 16 + k, TMP, S_M0, S_M0 + 1))
    F0, F1, V0, V1, TA = P, P + 4, P + 8, P + 12, P + 16
    D = V_ACC
    for i, (x, y) in enumerate([(F0, V0), (F1, V1), (F0, TB), (F1, TB), (TA, V0), (TA, V1), (TA, TB)]):
        a(mfma16(D + 4 * i, x, y, "0"))
    a("s_barrier")
    a("s_nop 7")
    for i in range(7):
        a("ds_write_b128 v%d, %s offset:%d" % (B_WR, vr(D + 4 * i, 4), i * 1024))
    a("s_waitcnt lgkmcnt(0)")
    a("s_barrier")
    E = V_ACC
    for rg in range(4): a("ds_read_b128 %s, v%d offset:%d" % (vr(E + 4 * rg, 4), B_RD, rg * 7168))
    a("s_waitcnt lgkmcnt(0)")
    for k in (0, 2):
        a("v_pk_add_f32 %s, %s, %s" % (vr(E + k, 2), vr(E + k, 2), vr(E + 4 + k, 2)))
        a("v_pk_add_f32 %s, %s, %s" % (vr(E + 8 + k, 2), vr(E + 8 + k, 2), vr(E + 12 + k, 2)))
    for k in (0, 2): a("v_pk_add_f32 %s, %s, %s" % (vr(E + k, 2), vr(E + k, 2), vr(E + 8 + k, 2)))
    a("v_cvt_pk_bf16_f32 v%d, v%d, v%d" % (E, E, E + 1))
    a("v_cvt_pk_bf16_f32 v%d, v%d, v%d" % (E + 1, E + 2, E + 3))
    a("s_mov_b64 exec, s[%d:%d]" % (S_BM, S_BM + 1))
    a("buffer_store_dwordx2 %s, v%d, s[%d:%d], s%d offen %s" % (vr(E, 2), B_GO, S_WS, S_WS + 3, S_BB, ST))
    a("s_mov_b64 exec, -1")

LDS_Q = 143360
S_PM, S_PB = 80, 82
V_PO = 88
P_SUM = V_XP
def pre2(a):
    lb, ld = a.newlabel("p2b"), a.newlabel("p2d")
    a("s_cmp_eq_u32 s%d, 0" % S_BR)
    a("s_cbranch_scc0 %s" % lb)
    kv_params(a)
    a("v_and_b32 v7, 7, v%d" % V_LANE)
    a("v_lshrrev_b32 v8, 3, v%d" % V_LANE)
    a("v_and_b32 v9, 3, v8")
    a("v_lshrrev_b32 v8, 2, v8")
    a("v_lshlrev_b32 v8, 12, v8")
    a("v_lshlrev_b32 v9, 7, v9")
    a("v_sub_u32 v8, v8, v9")
    a("v_lshl_add_u32 v7, v7, 2, v8")
    a("s_and_b32 s%d, s%d, 4" % (S_T0, S_G))
    a("s_and_b32 s%d, s%d, 3" % (S_T1, S_G))
    a("s_lshr_b32 s%d, s%d, 1" % (S_T1, S_T1))
    a("s_add_u32 s%d, s%d, s%d" % (S_T0, S_T0, S_T1))
    a("s_lshl_b32 s%d, s%d, 4" % (S_T0, S_T0))
    a("s_add_u32 s%d, s%d, s%d" % (S_T0, S_T0, S_R))
    a("s_lshl_b32 s%d, s%d, 7" % (S_T0, S_T0))
    a("s_add_u32 s%d, s%d, %d" % (S_T0, S_T0, F_KV))
    a("v_add_u32 v7, s%d, v7" % S_T0)
    a("s_min_u32 s%d, s%d, 2" % (S_T1, S_R))
    a("s_lshl_b32 s%d, s%d, 3" % (S_T1, S_T1))
    a("s_lshl_b32 s%d, 0x100, s%d" % (S_T1, S_T1))
    a("s_sub_u32 s%d, s%d, 1" % (S_T1, S_T1))
    a("s_mov_b32 s%d, 0" % S_T2)
    poll(a, 7, S_T2, "s%d" % S_T1, "s%d" % S_T1)
    a("s_branch %s" % ld)
    a.label(lb)
    piece_decode(a)
    a("v_cmp_gt_u32_e64 s[%d:%d], 21, v7" % (S_M0, S_M0 + 1))
    a("v_cmp_gt_u32_e64 s[%d:%d], 5, v6" % (S_M1, S_M1 + 1))
    a("s_lshl_b32 s%d, s%d, 16" % (S_PB, S_G))
    a("s_lshr_b32 s%d, s%d, 1" % (S_T1, S_WV))
    a("s_lshl_b32 s%d, s%d, 10" % (S_T1, S_T1))
    a("s_add_u32 s%d, s%d, s%d" % (S_PB, S_PB, S_T1))
    a("s_add_u32 s%d, s%d, %d" % (S_PB, S_PB, WS_PART))
    a("v_lshlrev_b32 v%d, 3, v5" % V_PO)
    a("s_and_b64 s[%d:%d], s[%d:%d], s[%d:%d]" % (S_PM, S_PM + 1, S_M0, S_M0 + 1, S_M1, S_M1 + 1))
    a("v_and_b32 v7, 7, v%d" % V_LANE)
    a("v_lshrrev_b32 v8, 3, v%d" % V_LANE)
    a("v_lshlrev_b32 v8, 7, v8")
    a("v_lshl_add_u32 v7, v7, 2, v8")
    a("s_lshl_b32 s%d, s%d, 11" % (S_T0, S_G))
    a("s_add_u32 s%d, s%d, %d" % (S_T0, S_T0, F_PART))
    poll(a, 7, S_T0, "-1", "-1")
    a("s_add_u32 s%d, s%d, 1024" % (S_T0, S_T0))
    poll(a, 7, S_T0, "-1", "-1")
    a.label(ld)

def early_load(k):
    def f(a):
        lb, ld = a.newlabel("elb"), a.newlabel("eld")
        a("s_cmp_eq_u32 s%d, 0" % S_BR)
        a("s_cbranch_scc0 %s" % lb)
        kv_load(0, k)(a)
        a("s_branch %s" % ld)
        a.label(lb)
        a("s_mov_b64 exec, s[%d:%d]" % (S_PM, S_PM + 1))
        for r in (2 * k, 2 * k + 1):
            a("s_add_u32 s%d, s%d, %d" % (S_OFF, S_PB, r * 4096))
            a("buffer_load_dwordx2 %s, v%d, s[%d:%d], s%d offen %s" % (vr(P_SUM + 2 * r, 2), V_PO, S_WS, S_WS + 3, S_OFF, LD))
        a("s_mov_b64 exec, -1")
        a.label(ld)
    return f

def epi2(a):
    XCH = 102400
    pre2(a)
    stamp(a, "poll1")
    a("s_mul_i32 s%d, s%d, 5120" % (S_T0, S_WV))
    a("s_add_u32 s%d, s%d, %d" % (S_T0, S_T0, XCH))
    a("v_lshlrev_b32 v4, 4, v%d" % V_LANE)
    a("s_xor_b32 s%d, s%d, 4" % (S_T1, S_WV))
    a("v_add_u32 v5, s%d, v4" % S_T0)
    a("s_mul_i32 s%d, s%d, 5120" % (S_T1, S_T1))
    a("s_add_u32 s%d, s%d, %d" % (S_T1, S_T1, XCH))
    a("s_barrier")
    for T in range(5): a("ds_write_b128 v5, %s offset:%d" % (vr(V_ACC2 + (5 + T) * 4, 4), T * 1024))
    early_load(0)(a)
    a("v_add_u32 v5, s%d, v4" % S_T1)
    a("s_lshl_b32 s%d, s%d, 3" % (S_T1, S_CS))
    a("v_add_u32 v4, s%d, v%d" % (S_T1, V_IMG))
    a("s_mul_i32 s%d, s%d, 5120" % (S_T0, S_RG))
    a("s_add_u32 s%d, s%d, %d" % (S_T0, S_T0, LDS_Q))
    a("v_add_u32 v4, s%d, v4" % S_T0)
    a("s_waitcnt lgkmcnt(0)")
    a("s_barrier")
    R = V_WB0
    for T in range(5): a("ds_read_b128 %s, v5 offset:%d" % (vr(R + 4 * T, 4), T * 1024))
    early_load(1)(a)
    regs = [V_ACC2 + T * 4 + k for T in range(5) for k in range(4)]
    for T in range(5):
        a("s_waitcnt lgkmcnt(%d)" % (4 - T))
        for k in (0, 2):
            a("v_pk_add_f32 %s, %s, %s" % (vr(V_ACC2 + 4 * T + k, 2), vr(V_ACC2 + 4 * T + k, 2), vr(R + 4 * T + k, 2)))
    early_load(2)(a)
    lb, ld = a.newlabel("e2b"), a.newlabel("e2d")
    a("s_cmp_eq_u32 s%d, 0" % S_BR)
    a("s_cbranch_scc0 %s" % lb)
    a("s_mov_b32 s%d, 0x%x" % (S_T2, f2u(QSCALE)))
    a("s_mov_b32 s%d, 0x%x" % (S_T3, f2u(QSCALE)))
    for k in range(0, 20, 2): a("v_pk_mul_f32 %s, %s, s[%d:%d]" % (vr(V_ACC2 + k, 2), vr(V_ACC2 + k, 2), S_T2, S_T3))
    a("s_branch %s" % ld)
    a.label(lb)
    for gi in range(5):
        phi(a, regs[4 * gi:4 * gi + 4], V_ACC)
        if gi in (0, 2, 4): early_load_B(3 + gi // 2)(a)
    a.label(ld)
    for T in range(5):
        d = V_ACC2 + T * 4
        a("v_cvt_pk_bf16_f32 v%d, v%d, v%d" % (R + 2 * T, d, d + 1))
        a("v_cvt_pk_bf16_f32 v%d, v%d, v%d" % (R + 2 * T + 1, d + 2, d + 3))
        a("ds_write_b64 v4, %s offset:%d" % (vr(R + 2 * T, 2), T * 1024))
        if T in (0, 2, 4): early_load_A(3 + T // 2)(a)
    early_load(6)(a)

def early_load_A(k):
    def f(a):
        l = a.newlabel("ela")
        a("s_cmp_eq_u32 s%d, 0" % S_BR)
        a("s_cbranch_scc0 %s" % l)
        kv_load(0, k)(a)
        a.label(l)
    return f
def early_load_B(k):
    def f(a):
        a("s_mov_b64 exec, s[%d:%d]" % (S_PM, S_PM + 1))
        for r in (2 * k, 2 * k + 1):
            a("s_add_u32 s%d, s%d, %d" % (S_OFF, S_PB, r * 4096))
            a("buffer_load_dwordx2 %s, v%d, s[%d:%d], s%d offen %s" % (vr(P_SUM + 2 * r, 2), V_PO, S_WS, S_WS + 3, S_OFF, LD))
        a("s_mov_b64 exec, -1")
    return f

def vm_wait_roles(a, nw, nx):
    if nw == nx: a("s_waitcnt vmcnt(%d)" % nw)
    else: role_branch(a, "s_waitcnt vmcnt(%d)" % nw, "s_waitcnt vmcnt(%d)" % nx)

def publish(a, s_off, wave=0):
    def body(a):
        a("v_mov_b32 v4, s%d" % S_NONCE)
        a("v_mov_b32 v5, 0")
        a("s_mov_b64 exec, 1")
        a("buffer_store_dword v4, v5, s[%d:%d], s%d offen sc0 sc1" % (S_WS, S_WS + 3, s_off))
        a("s_mov_b64 exec, -1")
    if wave is None: body(a)
    else: on_wave(a, wave, body)

def poll(a, voff, s_off, mask_lo, mask_hi):
    def body(a):
        lp, ld = a.newlabel("pp"), a.newlabel("pd")
        a("s_mov_b32 exec_lo, %s" % mask_lo)
        a("s_mov_b32 exec_hi, %s" % mask_hi)
        a("s_mov_b32 s%d, 0" % S_T5)
        a.label(lp)
        a("buffer_load_dword v6, v%d, s[%d:%d], s%d offen sc1" % (voff, S_WS, S_WS + 3, s_off))
        a("s_waitcnt vmcnt(0)")
        a("v_cmp_ne_u32_e64 s[%d:%d], s%d, v6" % (S_M0, S_M0 + 1, S_NONCE))
        a("s_add_u32 s%d, s%d, 1" % (S_T5, S_T5))
        a("s_nop 1")
        a("s_cmp_eq_u64 s[%d:%d], 0" % (S_M0, S_M0 + 1))
        a("s_cbranch_scc1 %s" % ld)
        if 'nosleep' not in OPT: a("s_sleep 1")
        a("s_cmp_lt_u32 s%d, %d" % (S_T5, SPIN_LIMIT))
        a("s_cbranch_scc1 %s" % lp)
        a.label(ld)
        a("s_mov_b64 exec, -1")
    on_wave(a, 0, body)

def wo_pf_setup(a, v):
    a("v_mul_u32_u24 v4, 52, v%d" % V_LANE); a("v_lshrrev_b32 v4, 8, v4")
    a("v_mul_u32_u24 v5, 5, v4"); a("v_sub_u32 v5, v%d, v5" % V_LANE)
    a("s_mul_i32 s%d, s%d, 20" % (S_T0, S_I))
    a("v_add_u32 v4, s%d, v4" % S_T0)
    a("s_movk_i32 s%d, 1280" % S_T1)
    a("v_mul_u32_u24 v4, s%d, v4" % S_T1)
    a("v_lshl_add_u32 v4, v5, 7, v4")
    a("s_lshr_b32 s%d, s%d, 2" % (S_T0, S_G))
    a("s_mul_i32 s%d, s%d, 640" % (S_T0, S_T0))
    a("v_add_u32 v%d, s%d, v4" % (v, S_T0))
assert all((l * 52) >> 8 == l // 5 for l in range(64))

def wo_pf_issue(a, v, srd_):
    a("buffer_load_dword v%d, v%d, s[%d:%d], 0 offen %s" % (V_PFD, v, srd_, srd_ + 3, PFL))
    a("s_mov_b32 s%d, %d" % (S_OFF, 12 * 1280))
    a("buffer_load_dword v%d, v%d, s[%d:%d], s%d offen %s" % (V_PFD, v, srd_, srd_ + 3, S_OFF, PFL))

def phase1(a):
    dma_setup(a)
    stamp(a, "dset")
    entry_srd(a)
    stamp(a, "karg")
    if 'pffirst' not in OPT and 'pf1' not in OPT:
        emit(a, [dma(0, j) for j in range(5)])
        emit(a, [pf('x', 0, 0), pf('w', 0, 0), pf('x', 1, 1), pf('w', 1, 1)])
    elif 'pf1' in OPT:
        emit(a, [pf('x', 0, 0), pf('w', 0, 0)])
        emit(a, [dma(0, j) for j in range(5)])
        emit(a, [pf('x', 1, 1), pf('w', 1, 1)])
    else:
        emit(a, [pf('x', 0, 0), pf('w', 0, 0), pf('x', 1, 1), pf('w', 1, 1)])
        stamp(a, "pf0")
        emit(a, [dma(0, j) for j in range(5)])
    entry_srd2(a)
    stamp(a, "g0")
    addr1_setup(a)
    emit(a, [dma(1, j) for j in range(5)])
    emit(a, [pf('x', 2, 2), pf('w', 2, 2)])
    a("v_mov_b32 v8, 0")
    a("s_mov_b32 s%d, %d" % (S_OFF, WS_FLAG))
    a("buffer_load_dword v9, v8, s[%d:%d], s%d offen sc1" % (S_WS, S_WS + 3, S_OFF))
    stamp(a, "g1")
    vm_wait_roles(a, 6, 5)
    stamp(a, "g0land")
    a("s_barrier")
    stamp(a, "t0")
    lq = LQ(a)
    cur = [lq.issue(x) for x in p1_reads(0, 0)]
    SCH = {'e': [2, 1, 1, 1, 1, 2, 1, 1, 1, 1], 'f': [2, 2, 2, 2, 2, 2, 0, 0, 0, 0], 'm': [2, 2, 1, 1, 1, 1, 1, 1, 1, 1], 'g': [2, 2, 2, 1, 1, 1, 1, 1, 1, 0]}[SCHED]
    needs12 = lambda ids: [ids[2 + 2 * (i // 2) + 1] for i in range(10)]
    needs10 = lambda ids: [ids[2 * (i // 2) + 1] for i in range(10)]
    for s in range(10):
        ex0 = {}
        if s >= 1: ex0 = {2: dma(s + 2, 3), 6: dma(s + 2, 4)}
        if s == 0: ex0 = {0: dma(2, 0), 2: dma(2, 1), 4: dma(2, 2), 6: dma(2, 3), 8: dma(2, 4)}
        if s == 7:
            lines = rec(epi1B_pre)
            for k_, pos in enumerate((0, 1, 3, 4, 5, 7, 8, 9)):
                ex0[pos] = [ex0.get(pos), lines[k_ * len(lines) // 8:(k_ + 1) * len(lines) // 8]]
        if s == 5:
            lines = rec(addr2_setup)
            for k_, pos in enumerate((1, 3, 4, 5, 7, 8, 9)):
                ex0[pos] = [ex0.get(pos), lines[k_ * len(lines) // 7:(k_ + 1) * len(lines) // 7]]
        nxt = half(a, lq, p1_mfmas(s, 0, s == 0), needs12(cur), p1_reads(s, 1), SCH, ex0)
        if s == 0: vm_wait_roles(a, 6, 5)
        elif s == 8: vm_wait_roles(a, 5, 0)
        elif s == 9: a("s_waitcnt vmcnt(5)")
        else: vm_wait_roles(a, 5, 4)
        a("s_barrier")
        stamp(a, "s%d" % s)
        if s == 2:
            a("v_readfirstlane_b32 s%d, v9" % S_NONCE)
            a("s_nop 3")
            a("s_add_u32 s%d, s%d, 0x9e3779b9" % (S_NONCE, S_NONCE))
        pfl = []
        if s == 0: pfl = [pf('x', 3, 3), pf('w', 3, 3)]
        if s == 2: pfl = [pf('x', 4, 0), pf('w', 4, 0)]
        if s == 3: pfl = [lambda a: wo_pf_setup(a, V_PF)]
        def wopf_own(a):
            if 'nopf' in OPT: return
            def body(a):
                l, l2 = a.newlabel("wpf"), a.newlabel("wpf2")
                a("s_cmp_eq_u32 s%d, 0" % S_BR)
                a("s_cbranch_scc1 %s" % l)
                wo_pf_issue(a, V_PF, S_WOB)
                a("s_branch %s" % l2)
                a.label(l)
                wo_pf_issue(a, V_PF, S_WO)
                a.label(l2)
            on_wave(a, 5, body)
        if s == 4: pfl = [pf('q', 0, 1), wopf_own]
        if s == 5: pfl = [pf('q', 1, 2)]
        if s == 6: pfl = [pf('q', 2, 3)]
        ex1 = {1: dma(s + 3, 0), 4: dma(s + 3, 1), 7: dma(s + 3, 2), 9: pfl}
        if s == 9: ex1 = {1: dma(12, 0), 3: dma(12, 1), 5: dma(12, 2), 7: dma(12, 3), 9: dma(12, 4)}
        rd = p1_reads(s + 1, 0) if s < 9 else p2_reads(0)
        cur = half(a, lq, p1_mfmas(s, 1, False), needs12(nxt), rd, SCH, ex1)
    stamp(a, "p1end")
    lb, ld = a.newlabel("e1b"), a.newlabel("e1d")
    a("s_cmp_eq_u32 s%d, 0" % S_BR)
    a("s_cbranch_scc0 %s" % lb)
    epi1_A(a)
    a("s_branch %s" % ld)
    a.label(lb)
    a("s_waitcnt lgkmcnt(0)")
    epi1_B(a)
    emit(a, p2_reads(0))
    a.label(ld)
    stamp(a, "e1end")
    p3_dma_setup(a)
    S_WBF, S_WB1, S_WB2 = S_SOFF, S_STEP, S_J + 1
    a("s_and_b32 s%d, s%d, s%d" % (S_WBF, S_BR, S_CS))
    a("s_mul_i32 s%d, s%d, %d" % (S_WB1, S_RG, 3 * 5120))
    a("s_mul_i32 s%d, s%d, %d" % (S_WB2, S_RG, 3 * 32 * 1280))
    def wob(q):
        def f(a):
            l = a.newlabel("wob")
            a("s_cmp_eq_u32 s%d, 0" % S_WBF)
            a("s_cbranch_scc1 %s" % l)
            a("s_add_u32 m0, s%d, %d" % (S_WB1, (q // 5) * 5120 + (q % 5) * 1024))
            a("s_add_u32 s%d, s%d, %d" % (S_OFF, S_WB2, (q // 5) * 32 * 1280))
            a("buffer_load_dwordx4 v%d, s[%d:%d], s%d offen %s lds" % (C_DMA + q % 5, S_WOB, S_WOB + 3, S_OFF, DML))
            a.label(l)
        return f
    WOB_N = [2, 1, 2, 1, 2, 1, 2, 1, 2, 1]
    WOB_BEFORE0 = lambda u: 0
    PUBD = 1 if 'pub1' in OPT else 0
    def wopf(a):
        if 'nopf' in OPT: return
        def body(a):
            l = a.newlabel("wpf")
            a("s_cmp_eq_u32 s%d, 0" % S_BR)
            a("s_cbranch_scc1 %s" % l)
            wo_pf_issue(a, V_PF, S_WO)
            a.label(l)
        on_wave(a, 1, body)
    a("s_waitcnt lgkmcnt(0)")
    lq = LQ(a)
    cur = None
    SCH2 = {'e': [1] * 10, 'f': [2, 2, 2, 2, 2, 0, 0, 0, 0, 0], 'm': [2, 1, 1, 1, 1, 1, 1, 1, 1, 0], 'g': [2, 2, 1, 1, 1, 1, 1, 1, 0, 0]}[SCHED]
    for u in range(10):
        extra = {}
        rd = []
        if u + 1 < 10:
            if (u + 1) % 2 == 0:
                nx = 10 + (u + 1) // 2
                def by_branch(na, nb):
                    def f(a):
                        lB, lD = a.newlabel("wb"), a.newlabel("wd")
                        a("s_cmp_eq_u32 s%d, 0" % S_BR)
                        a("s_cbranch_scc0 %s" % lB)
                        a("s_waitcnt vmcnt(%d)" % na)
                        a("s_branch %s" % lD)
                        a.label(lB)
                        a("s_waitcnt vmcnt(%d)" % nb)
                        a.label(lD)
                    return f
                if nx == 13: role_branch(a, "s_waitcnt vmcnt(5)", None)
                elif nx == 14: role_branch(a, "s_waitcnt vmcnt(0)", None)
                else: role_branch(a, by_branch(5 + (10 if 'dbl' in OPT else 5), 6), None)
                a("s_barrier")
                if 13 <= nx + 2 <= 14: extra = {1: dma(nx + 2, 0), 3: dma(nx + 2, 1), 5: dma(nx + 2, 2), 7: dma(nx + 2, 3), 9: dma(nx + 2, 4)}
                if nx == 12 + PUBD:
                    def pub(a):
                        role_branch(a, "s_waitcnt vmcnt(%d)" % (5 if PUBD == 0 else 5), by_branch(0, sum(WOB_N[:u]) + (1 if WOB_N[u] > 1 else 1) * 0 + WOB_BEFORE0(u)))
                        a("s_lshl_b32 s%d, s%d, 4" % (S_T0, S_G))
                        a("s_add_u32 s%d, s%d, s%d" % (S_T0, S_T0, S_R))
                        a("s_lshl_b32 s%d, s%d, 5" % (S_T0, S_T0))
                        a("s_add_u32 s%d, s%d, s%d" % (S_T0, S_T0, S_WV))
                        a("s_lshl_b32 s%d, s%d, 2" % (S_T0, S_T0))
                        a("s_mul_i32 s%d, s%d, %d" % (S_T1, S_BR, F_PART - F_KV))
                        a("s_add_u32 s%d, s%d, s%d" % (S_T0, S_T0, S_T1))
                        a("s_add_u32 s%d, s%d, %d" % (S_T0, S_T0, F_KV))
                        publish(a, S_T0, None)
                    extra[0] = [pub]
            rd = p2_reads(u + 1)
        if u == 8: extra[3] = [wopf]
        def spread(lines, positions):
            n = len(positions)
            for k_, pos in enumerate(positions):
                extra[pos] = [extra.get(pos), lines[k_ * len(lines) // n:(k_ + 1) * len(lines) // n]]
        if u == 6: spread(rec(setup_q), (0, 1, 3, 4, 5, 7, 8, 9))
        if u == 7:
            extra[1] = [extra.get(1), on_A(lambda a: setup_k(a))]
            extra[5] = [extra.get(5), on_A(lambda a: setup_v(a))]
        if u == 8: spread(rec(setup_o), (0, 1, 4, 5, 7, 8, 9))
        q0 = sum(WOB_N[:u])
        for n_ in range(WOB_N[u]):
            pos = (2, 6)[n_]
            extra[pos] = [extra.get(pos), wob(q0 + n_)]
        needs = needs10(cur) if cur else [0] * 10
        cur = half(a, lq, p2_mfmas(u), needs, rd, SCH2, extra)
    a("s_nop 4")
    stamp(a, "p2end")
    epi2(a)
    stamp(a, "e2end")

LDS_K, LDS_V = 0, 65536
LDS_KVR = 135168
A_KA0, A_KA1, A_KAT, A_VA0, A_VA1, A_QA0, A_QA1, A_QAT, A_OM, A_OT = 10, 11, 12, 13, 14, 15, 16, 17, 18, 19
A_AM, A_Q1, A_Q2, A_KB, A_VB, A_S, A_O = 20, 32, 36, 40, 64, 96, 240
S_TAU0 = S_U
S_EXV, S_HI, S_LO = 62, 64, 66
NEG_BIG = f2u(-3.0e38)
S_KV0, S_KV1, S_KV2 = 20, 21, 22
A_L16 = 88

def jkey(r, h):
    m, b, e = r >> 3, (r >> 2) & 1, r & 3
    return 16 * b + 8 * m + 4 * h + e
def diag_mask(r):
    return (sum(1 << i for i in range(32) if jkey(r, 0) <= i), sum(1 << i for i in range(32) if jkey(r, 1) <= i))

def _p2_addr(a, dst, n, kgimg, tbit, sbase, extra):
    a("v_lshl_add_u32 v9, v%d, 2, v%d" % (kgimg, n))
    a("v_and_b32 v9, 15, v9")
    a("v_lshl_add_u32 v9, v%d, 4, v9" % kgimg)
    a("v_lshlrev_b32 v9, 4, v9")
    a("v_lshl_add_u32 v9, v%d, 3, v9" % tbit)
    a("s_add_u32 s%d, s%d, %d" % (S_T5, sbase, extra))
    a("v_add_u32 v%d, s%d, v9" % (dst, S_T5))

def setup_q(a):
    a("v_and_b32 v4, 1, v%d" % V_KG)
    a("v_lshrrev_b32 v5, 1, v%d" % V_KG)
    a("v_lshrrev_b32 v6, 2, v%d" % V_N)
    a("v_and_b32 v7, 3, v%d" % V_N)
    a("s_and_b32 s%d, s%d, 3" % (S_T0, S_WV))
    a("s_lshr_b32 s%d, s%d, 2" % (S_T1, S_WV))
    a("s_mul_i32 s%d, s%d, 5120" % (S_T1, S_T1))
    a("s_lshl_b32 s%d, s%d, 10" % (S_T2, S_T0))
    a("s_add_u32 s%d, s%d, s%d" % (S_T2, S_T2, S_T1))
    a("s_add_u32 s%d, s%d, 4096" % (S_T3, S_T1))
    a("s_lshl_b32 s%d, s%d, 2" % (S_T4, S_T0))
    a("v_lshl_add_u32 v8, v5, 3, v6")
    _p2_addr(a, A_QA0, 8, 7, 4, S_T2, LDS_Q)
    a("v_add_u32 v30, 4, v8")
    _p2_addr(a, A_QA1, 30, 7, 4, S_T2, LDS_Q)
    a("v_add_u32 v31, s%d, v6" % S_T4)
    _p2_addr(a, A_QAT, 31, 7, 4, S_T3, LDS_Q)

def setup_k(a):
    a("v_and_b32 v28, 1, v7")
    a("v_lshl_add_u32 v28, v4, 1, v28")
    a("v_lshrrev_b32 v29, 1, v7")
    _p2_addr(a, A_KA0, 8, 28, 29, S_T2, LDS_K)
    _p2_addr(a, A_KA1, 30, 28, 29, S_T2, LDS_K)
    _p2_addr(a, A_KAT, 31, 28, 29, S_T3, LDS_K)

def setup_v(a):
    a("v_and_b32 v4, 31, v%d" % V_LANE)
    a("v_lshrrev_b32 v5, 5, v%d" % V_LANE)
    a("v_cmp_gt_u32_e64 s[%d:%d], 16, v4" % (S_M0, S_M0 + 1))
    a("s_sub_u32 s%d, s%d, 16" % (S_T5, S_T4))
    a("v_add_u32 v6, s%d, v4" % S_T5)
    a("v_and_b32 v6, 15, v6")
    a("v_cndmask_b32_e64 v6, v6, v4, s[%d:%d]" % (S_M0, S_M0 + 1))
    a("v_mov_b32 v7, s%d" % S_T3)
    a("v_mov_b32 v8, s%d" % S_T2)
    a("v_cndmask_b32_e64 v7, v7, v8, s[%d:%d]" % (S_M0, S_M0 + 1))
    for m in range(2):
        a("v_add_u32 v8, %d, v5" % (2 * m))
        a("v_lshl_add_u32 v9, v8, 2, v6")
        a("v_and_b32 v9, 15, v9")
        a("v_lshl_add_u32 v9, v8, 4, v9")
        a("v_lshl_add_u32 v9, v9, 4, v7")
        a("v_add_u32 v%d, %d, v9" % (A_VA0 + m, LDS_V))

def setup_o(a):
    a("v_and_b32 v4, 31, v%d" % V_LANE)
    a("v_lshrrev_b32 v5, 5, v%d" % V_LANE)
    a("s_and_b32 s%d, s%d, 3" % (S_T0, S_WV))
    a("s_lshl_b32 s%d, s%d, 2" % (S_T1, S_G))
    a("s_add_u32 s%d, s%d, s%d" % (S_T1, S_T1, S_T0))
    a("s_lshl_b32 s%d, s%d, 3" % (S_T2, S_R))
    a("s_lshr_b32 s%d, s%d, 2" % (S_T3, S_WV))
    a("s_lshl_b32 s%d, s%d, 1" % (S_T3, S_T3))
    a("s_add_u32 s%d, s%d, s%d" % (S_T2, S_T2, S_T3))
    a("s_mul_i32 s%d, s%d, 20480" % (S_T2, S_T2))
    a("s_mul_i32 s%d, s%d, %d" % (S_T3, S_BR, O_BR))
    a("s_add_u32 s%d, s%d, s%d" % (S_T2, S_T2, S_T3))
    a("s_add_u32 s%d, s%d, %d" % (S_T2, S_T2, WS_O))
    a("v_lshrrev_b32 v6, 4, v4")
    a("s_movk_i32 s%d, 20480" % S_T3)
    a("v_mul_u32_u24 v6, s%d, v6" % S_T3)
    a("v_and_b32 v7, 15, v4")
    a("v_lshl_add_u32 v6, v7, 4, v6")
    a("v_add_u32 v6, s%d, v6" % S_T2)
    a("s_lshr_b32 s%d, s%d, 1" % (S_T3, S_T1))
    a("s_lshl_b32 s%d, s%d, 10" % (S_T3, S_T3))
    a("s_and_b32 s%d, s%d, 1" % (S_T4, S_T1))
    a("s_lshl_b32 s%d, s%d, 9" % (S_T4, S_T4))
    a("s_add_u32 s%d, s%d, s%d" % (S_T3, S_T3, S_T4))
    a("v_lshl_add_u32 v7, v5, 8, v6")
    a("v_add_u32 v%d, s%d, v7" % (A_OM, S_T3))
    a("s_lshr_b32 s%d, s%d, 3" % (S_T3, S_T1))
    a("s_add_u32 s%d, s%d, 16" % (S_T3, S_T3))
    a("s_lshl_b32 s%d, s%d, 10" % (S_T3, S_T3))
    a("s_and_b32 s%d, s%d, 6" % (S_T4, S_T1))
    a("s_lshl_b32 s%d, s%d, 7" % (S_T4, S_T4))
    a("s_add_u32 s%d, s%d, s%d" % (S_T3, S_T3, S_T4))
    a("s_and_b32 s%d, s%d, 1" % (S_T4, S_T1))
    a("s_lshl_b32 s%d, s%d, 3" % (S_T4, S_T4))
    a("s_add_u32 s%d, s%d, s%d" % (S_T3, S_T3, S_T4))
    a("v_add_u32 v%d, s%d, v6" % (A_OT, S_T3))

def set_hilo(a):
    a("s_mov_b32 s%d, 0" % S_HI); a("s_mov_b32 s%d, -1" % (S_HI + 1))
    a("s_mov_b32 s%d, -1" % S_LO); a("s_mov_b32 s%d, 0" % (S_LO + 1))

def on_A(f):
    def g(a):
        l = a.newlabel("oa")
        a("s_cmp_eq_u32 s%d, 0" % S_BR)
        a("s_cbranch_scc0 %s" % l)
        emit(a, f)
        a.label(l)
    return g

def q_frag_reads():
    return ["ds_read_b64_tr_b16 %s, v%d" % (vr(A_Q1, 2), A_QA0),
            "ds_read_b64_tr_b16 %s, v%d" % (vr(A_Q1 + 2, 2), A_QA1),
            "ds_read_b64_tr_b16 %s, v%d" % (vr(A_Q2, 2), A_QAT)]
def q_frag_fix(a):
    a("v_cndmask_b32_e64 v%d, v%d, 0, s[%d:%d]" % (A_Q2, A_Q2, S_HI, S_HI + 1))
    a("v_cndmask_b32_e64 v%d, v%d, 0, s[%d:%d]" % (A_Q2 + 1, A_Q2 + 1, S_HI, S_HI + 1))

def o_epilogue(a, eps=False):
    O = A_O
    a("v_cndmask_b32_e64 v30, v%d, v%d, s[%d:%d]" % (O + 12, O + 8, S_HI, S_HI + 1))
    if eps: a("v_add_f32 v30, 0x%x, v30" % f2u(1e-6))
    a("v_rcp_f32 v30, v30")
    a("s_nop 0")
    for k in range(0, 12, 2):
        a("v_pk_mul_f32 %s, %s, v[30:31] op_sel_hi:[1,0]" % (vr(O + k, 2), vr(O + k, 2)))
    for k in range(6): a("v_cvt_pk_bf16_f32 v%d, v%d, v%d" % (O + k, O + 2 * k, O + 2 * k + 1))
    for fl in ([ST, ""] if 'dbl' in OPT else [ST]):
        a("buffer_store_dwordx4 %s, v%d, s[%d:%d], 0 offen %s" % (vr(O, 4), A_OM, S_WS, S_WS + 3, fl))
        a("s_mov_b64 exec, s[%d:%d]" % (S_LO, S_LO + 1))
        a("buffer_store_dwordx2 %s, v%d, s[%d:%d], 0 offen %s" % (vr(O + 4, 2), A_OT, S_WS, S_WS + 3, fl))
        a("s_mov_b64 exec, -1")

def attn_setup(a):
    set_hilo(a)
    for r in range(16):
        lo, hi = diag_mask(r)
        a("s_mov_b32 s%d, 0x%x" % (S_MASK + 2 * r, lo)); a("s_mov_b32 s%d, 0x%x" % (S_MASK + 2 * r + 1, hi))
    a("v_mov_b32 v30, 0xffff")
    a("v_mov_b32 v31, 0xffff0000")
    for k in range(8):
        a("v_cndmask_b32_e64 v4, 0, v30, s[%d:%d]" % (S_MASK + 4 * k, S_MASK + 4 * k + 1))
        a("v_cndmask_b32_e64 v5, 0, v31, s[%d:%d]" % (S_MASK + 4 * k + 2, S_MASK + 4 * k + 3))
        a("v_or_b32 v%d, v4, v5" % (A_AM + k))
    a("v_mov_b32 v4, 0x3f803f80")
    for k in range(24): a("v_mov_b32 v%d, v4" % (A_VB + k))
    for b in range(3):
        a("v_mov_b32 v%d, 0" % (A_KB + 8 * b + 6)); a("v_mov_b32 v%d, 0" % (A_KB + 8 * b + 7))
    a("v_mov_b32 v%d, 0" % (A_Q2 + 2)); a("v_mov_b32 v%d, 0" % (A_Q2 + 3))
    a("s_mov_b32 s%d, 0x000fffff" % S_EXV); a("s_mov_b32 s%d, 0x000fffff" % (S_EXV + 1))

def k_reads(tau, buf):
    b = A_KB + 8 * buf
    return ["ds_read_b64_tr_b16 %s, v%d offset:%d" % (vr(b, 2), A_KA0, tau * 5120),
            "ds_read_b64_tr_b16 %s, v%d offset:%d" % (vr(b + 2, 2), A_KA1, tau * 5120),
            "ds_read_b64_tr_b16 %s, v%d offset:%d" % (vr(b + 4, 2), A_KAT, tau * 5120)]
def v_reads(tau, buf):
    b = A_VB + 8 * buf
    return ["s_mov_b64 exec, s[%d:%d]" % (S_EXV, S_EXV + 1),
            "ds_read_b128 %s, v%d offset:%d" % (vr(b, 4), A_VA0, tau * 5120),
            "ds_read_b128 %s, v%d offset:%d" % (vr(b + 4, 4), A_VA1, tau * 5120),
            "s_mov_b64 exec, -1"]

TAG = ''
PUB0_AT = 6
def attn_unit(a, stubs, mid, qk_extra, late_v=None, pre_epi=None):
    S = lambda t: A_S + 16 * t
    order = [8, 0, 1, 2, 3, 4, 5, 6, 7]
    emit(a, q_frag_reads())
    emit(a, k_reads(order[0], 0)); emit(a, k_reads(order[1], 1))
    a("s_waitcnt lgkmcnt(6)")
    q_frag_fix(a)
    accs = [28, 29, 30, 31]
    acc_init = [False] * 4
    def max_ops(base):
        L = []
        for k in range(0, 16, 2):
            ai = (k // 2) % 4
            if not acc_init[ai]:
                L.append("v_max_f32 v%d, v%d, v%d" % (accs[ai], base + k, base + k + 1)); acc_init[ai] = True
            else:
                L.append("v_max3_f32 v%d, v%d, v%d, v%d" % (accs[ai], base + k, base + k + 1, accs[ai]))
        return L
    merge = ["v_cndmask_b32_e64 v%d, v%d, v%d, s[%d:%d]" % (S(0) + r, S(0) + r, S(8) + r, S_MASK + 2 * r, S_MASK + 2 * r + 1) for r in range(16)]
    for idx, tau in enumerate(order):
        buf = idx % 3
        if idx + 2 < 9: emit(a, k_reads(order[idx + 2], (idx + 2) % 3))
        a("s_waitcnt lgkmcnt(%d)" % (3 * min(2, 8 - idx)))
        kb = A_KB + 8 * buf
        if tau < 8:
            lf, lr = a.newlabel("fill"), a.newlabel("fret")
            a("s_cmp_gt_u32 s%d, %d" % (S_TAU0, tau))
            a("s_cbranch_scc1 %s" % lf)
            stubs.append((lf, lr, S(tau)))
        work = []
        if idx == 3: work = merge[:]
        if idx == 4: work = max_ops(S(0))
        if idx >= 5: work = max_ops(S(order[idx - 3]))
        hw = len(work) // 2
        a(mfma32(S(tau), kb, A_Q1, "0"))
        if tau < 8 and 'oldqk' not in OPT:
            a.label(lr)
            emit(a, work[:hw])
            l2 = a.newlabel("tl")
            a("s_cmp_gt_u32 s%d, %d" % (S_TAU0, tau))
            a("s_cbranch_scc1 %s" % l2)
            a(mfma32(S(tau), kb + 4, A_Q2))
            a.label(l2)
        else:
            emit(a, work[:hw])
            a(mfma32(S(tau), kb + 4, A_Q2))
            if tau < 8: a.label(lr)
        emit(a, qk_extra.get(idx))
        emit(a, work[hw:])
    stamp(a, "qk" + TAG)
    emit(a, max_ops(S(5)))
    emit(a, max_ops(S(6)))
    emit(a, mid)
    if late_v is None:
        emit(a, v_reads(8, 0)); emit(a, v_reads(0, 1))
    emit(a, max_ops(S(7)))
    a("v_max3_f32 v28, v28, v29, v30")
    a("v_max_f32 v28, v28, v31")
    a("v_mov_b32 v29, v28")
    a("s_nop 1")
    a("v_permlane32_swap_b32 v28, v29")
    a("s_nop 1")
    a("v_max_f32 v28, v28, v29")
    def sm_ops(base, mf=()):
        L = ["v_pk_add_f32 %s, %s, v[28:29] op_sel_hi:[1,0] neg_lo:[0,1] neg_hi:[0,1]" % (vr(base + k, 2), vr(base + k, 2)) for k in range(0, 16, 2)]
        E = ["v_exp_f32 v%d, v%d" % (base + k, base + k) for k in range(16)]
        C = ["v_cvt_pk_bf16_f32 v%d, v%d, v%d" % (base + k, base + 2 * k, base + 2 * k + 1) for k in range(8)]
        out = list(L)
        m = len(mf)
        pos = {2: [1, 9], 4: [0, 4, 8, 12], 0: []}[m]
        for k, e in enumerate(E):
            out.append(e)
            if k in pos: out.append(mf[pos.index(k)])
        return out + C
    stamp(a, "mx" + TAG)
    emit(a, sm_ops(S(0)))
    if late_v is not None:
        emit(a, late_v)
        emit(a, v_reads(8, 0)); emit(a, v_reads(0, 1))
    for k in range(8): a("v_and_b32 v%d, v%d, v%d" % (S(0) + 8 + k, S(0) + k, A_AM + k))
    for k in range(8): a("v_xor_b32 v%d, v%d, v%d" % (S(0) + k, S(0) + k, S(0) + 8 + k))
    a("s_waitcnt lgkmcnt(0)")
    emit(a, v_reads(1, 2))
    pv = [mfma32(A_O, A_VB + 0, S(0) + 8, "0"), mfma32(A_O, A_VB + 4, S(0) + 12),
          mfma32(A_O, A_VB + 8, S(0)), mfma32(A_O, A_VB + 12, S(0) + 4)]
    for tau in range(1, 8):
        vb = (tau + 1) % 3
        emit(a, sm_ops(S(tau), pv))
        a("s_waitcnt lgkmcnt(0)")
        if tau + 1 < 8: emit(a, v_reads(tau + 1, (tau + 2) % 3))
        b = A_VB + 8 * vb
        pv = [mfma32(A_O, b, S(tau)), mfma32(A_O, b + 4, S(tau) + 4)]
    a("s_nop 1")
    emit(a, pv)
    if pre_epi: emit(a, pre_epi)
    a("s_nop 15")
    o_epilogue(a)

def round_advance(a, attn=True):
    for v in ((A_KA0, A_KA1, A_KAT, A_VA0, A_VA1) if attn else ()) + (A_QA0, A_QA1, A_QAT):
        a("v_add_u32 v%d, %d, v%d" % (v, 2 * 5120, v))
    a("v_add_u32 v%d, %d, v%d" % (A_OM, 4 * 20480, A_OM))
    a("v_add_u32 v%d, %d, v%d" % (A_OT, 4 * 20480, A_OT))

def set_tau0(a):
    a("s_lshl_b32 s%d, s%d, 2" % (S_T0, S_R))
    a("s_lshr_b32 s%d, s%d, 2" % (S_T1, S_WV))
    a("s_add_u32 s%d, s%d, s%d" % (S_T0, S_T0, S_T1))
    a("s_add_u32 s%d, s%d, s%d" % (S_T0, S_T0, S_DB))
    a("s_sub_i32 s%d, 8, s%d" % (S_TAU0, S_T0))
    a("s_max_i32 s%d, s%d, 0" % (S_TAU0, S_TAU0))

def emit_stubs(a, stubs):
    for lf, lr, base in stubs:
        a.label(lf)
        a("v_mov_b32 v%d, 0x%x" % (base, NEG_BIG))
        for k in range(1, 16): a("v_mov_b32 v%d, v%d" % (base + k, base))
        a("s_branch %s" % lr)

def kv_params(a):
    a("s_lshl_b32 s%d, s%d, 6" % (S_T0, S_G))
    a("s_lshl_b32 s%d, s%d, 2" % (S_T1, S_R))
    a("s_add_u32 s%d, s%d, s%d" % (S_T0, S_T0, S_T1))
    a("s_sub_i32 s%d, s%d, 8" % (S_T0, S_T0))
    a("s_mul_i32 s%d, s%d, 5120" % (S_T0, S_T0))
    a("s_lshl_b32 s%d, s%d, 10" % (S_KV1, S_WV))
    a("s_add_u32 s%d, s%d, s%d" % (S_KV0, S_T0, S_KV1))
    a("s_lshl_b32 s%d, s%d, 2" % (S_T3, S_R))
    a("s_sub_i32 s%d, 8, s%d" % (S_T3, S_T3))
    a("s_max_i32 s%d, s%d, 0" % (S_T3, S_T3))
    a("s_mul_i32 s%d, s%d, 5120" % (S_KV2, S_T3))
    a("v_lshlrev_b32 v%d, 4, v%d" % (A_L16, V_LANE))

def kv_load(tensor, k):
    def f(a):
        l = a.newlabel("kvl")
        a("s_add_u32 s%d, s%d, %d" % (S_T4, S_KV1, k * 8192))
        if k == 7:
            a("s_cmp_ge_u32 s%d, 61440" % S_T4)
            a("s_cbranch_scc1 %s" % l)
        a("s_add_u32 s%d, s%d, %d" % (S_OFF, S_KV0, WS_KV + tensor * 8 * 64 * 5120 + k * 8192))
        a("s_cmp_lt_u32 s%d, s%d" % (S_T4, S_KV2))
        if tensor == 0:
            a("s_cbranch_scc1 %s" % l)
        else:
            a("s_cselect_b32 s%d, 0x7ff00000, s%d" % (S_OFF, S_OFF))
        a("s_add_u32 m0, s%d, %d" % (S_T4, LDS_K if tensor == 0 else LDS_V))
        a("s_nop 0")
        a("buffer_load_dwordx4 v%d, s[%d:%d], s%d offen %s lds" % (A_L16, S_WS, S_WS + 3, S_OFF, LD))
        a.label(l)
    return f

def oa_flag_off(a, dst, half_):
    a("s_lshl_b32 s%d, s%d, 1" % (dst, S_R))
    a("s_add_u32 s%d, s%d, %d" % (dst, dst, half_))
    a("s_lshl_b32 s%d, s%d, 3" % (dst, dst))
    a("s_add_u32 s%d, s%d, s%d" % (dst, dst, S_G))
    a("s_lshl_b32 s%d, s%d, 5" % (dst, dst))
    a("s_add_u32 s%d, s%d, s%d" % (dst, dst, S_WV))
    a("s_lshl_b32 s%d, s%d, 2" % (dst, dst))
    a("s_add_u32 s%d, s%d, %d" % (dst, dst, F_OA))

def phase2A(a, stubs):
    kv_load(0, 7)(a)
    attn_setup(a)
    a("s_waitcnt vmcnt(0) lgkmcnt(0)")
    a("s_barrier")
    stamp(a, "kvld")
    for rnd in range(2):
        a("s_mov_b32 s%d, %d" % (S_DB, 2 * rnd))
        set_tau0(a)
        if 'noprio' not in OPT:
            lp = a.newlabel("prio")
            a("s_cmp_eq_u32 s%d, 0" % S_CS)
            a("s_cbranch_scc1 %s" % lp)
            a("s_setprio %d" % (1 if rnd == 0 else 0))
            a.label(lp)
        late_v = None
        if rnd == 0:
            mid = None
            def late_v(a):
                a("s_waitcnt vmcnt(0)")
                a("s_barrier")
                stamp(a, "vld")
            qk_extra = {i: kv_load(1, i - 0) for i in range(8)}
        else:
            def pub0(a):
                a("s_waitcnt vmcnt(0)")
                oa_flag_off(a, S_T0, 0)
                publish(a, S_T0, None)
            mid = None
            qk_extra = {PUB0_AT: pub0}
        def pre_epi(a):
            poll_oa(a, 0)
        global TAG
        TAG = str(rnd)
        attn_unit(a, stubs, mid, qk_extra, late_v, pre_epi if (rnd == 1 and 'nopre' not in OPT) else None)
        stamp(a, "rnd%d" % rnd)
        if rnd == 0: round_advance(a)

def apply_phase(a):
    P = P_SUM
    early_load_B(7)(a)
    wo_load(a, S_WOB, first=12)
    set_hilo(a)
    a("v_mov_b32 v%d, 0" % (A_Q2 + 2)); a("v_mov_b32 v%d, 0" % (A_Q2 + 3))
    a("s_lshr_b32 s%d, s%d, 1" % (S_T1, S_WV))
    a("s_lshl_b32 s%d, s%d, 11" % (S_T1, S_T1))
    a("v_lshlrev_b32 v8, 1, v%d" % V_PO)
    a("v_add_u32 v8, %d, v8" % LDS_KVR)
    a("v_add_u32 v8, s%d, v8" % S_T1)
    a("v_and_b32 v4, 31, v%d" % V_LANE)
    a("v_min_u32 v4, 20, v4")
    a("v_lshrrev_b32 v5, 5, v%d" % V_LANE)
    a("v_mul_u32_u24 v6, 48, v5")
    a("v_add_u32 v6, v6, v4")
    a("s_and_b32 s%d, s%d, 3" % (S_T0, S_WV))
    a("s_lshl_b32 s%d, s%d, 11" % (S_T0, S_T0))
    a("s_add_u32 s%d, s%d, %d" % (S_T0, S_T0, LDS_KVR))
    a("v_lshlrev_b32 v6, 4, v6")
    a("v_add_u32 v6, s%d, v6" % S_T0)
    a("v_lshlrev_b32 v7, 4, v4")
    a("v_add_u32 v7, s%d, v7" % S_T0)
    ACC = P + 32
    a("s_mov_b32 s%d, 0xffff0000" % S_T2)
    a("s_waitcnt vmcnt(5)")
    for r in range(16):
        c = ACC + 4 * (r & 1)
        for hw in range(2):
            src = P + 2 * r + hw
            if r < 2:
                a("v_lshlrev_b32 v%d, 16, v%d" % (c + 2 * hw, src))
                a("v_and_b32 v%d, s%d, v%d" % (c + 2 * hw + 1, S_T2, src))
            else:
                a("v_lshlrev_b32 v%d, 16, v%d" % (ACC + 8, src))
                a("v_and_b32 v%d, s%d, v%d" % (ACC + 9, S_T2, src))
                a("v_pk_add_f32 %s, %s, %s" % (vr(c + 2 * hw, 2), vr(c + 2 * hw, 2), vr(ACC + 8, 2)))
    for k in (0, 2): a("v_pk_add_f32 %s, %s, %s" % (vr(ACC + k, 2), vr(ACC + k, 2), vr(ACC + 4 + k, 2)))
    P = ACC
    a("s_barrier")
    a("s_mov_b64 exec, s[%d:%d]" % (S_PM, S_PM + 1))
    a("ds_write_b128 v8, %s" % vr(P, 4))
    a("s_mov_b64 exec, -1")
    a("s_waitcnt lgkmcnt(0)")
    a("s_barrier")
    stamp(a, "kvred")
    F = A_KB
    a("ds_read_b128 %s, v6" % vr(F, 4))
    a("ds_read_b128 %s, v6 offset:%d" % (vr(F + 4, 4), 24 * 16))
    a("ds_read_b128 %s, v7 offset:%d" % (vr(F + 8, 4), 4 * 24 * 16))
    emit(a, q_frag_reads())
    a("s_waitcnt lgkmcnt(3)")
    KV1, KV2 = A_VB, A_VB + 4
    for k in range(4): a("v_cvt_pk_bf16_f32 v%d, v%d, v%d" % (KV1 + k, F + 2 * k, F + 2 * k + 1))
    for k in range(2): a("v_cvt_pk_bf16_f32 v%d, v%d, v%d" % (KV2 + k, F + 8 + 2 * k, F + 9 + 2 * k))
    a("v_mov_b32 v%d, 0" % (KV2 + 2)); a("v_mov_b32 v%d, 0" % (KV2 + 3))
    for rnd in range(2):
        a("s_waitcnt lgkmcnt(0)")
        q_frag_fix(a)
        a("s_nop 1")
        a(mfma32(A_O, KV1, A_Q1, "0"))
        a(mfma32(A_O, KV2, A_Q2))
        if rnd == 0:
            round_advance(a, False) if False else None
            for v in (A_QA0, A_QA1, A_QAT): a("v_add_u32 v%d, %d, v%d" % (v, 2 * 5120, v))
            emit(a, q_frag_reads())
            a("s_nop 9")
        else:
            a("s_nop 15")
        o_epilogue(a, eps=True)
        if rnd == 0:
            a("v_add_u32 v%d, %d, v%d" % (A_OM, 4 * 20480, A_OM))
            a("v_add_u32 v%d, %d, v%d" % (A_OT, 4 * 20480, A_OT))

C_DMA = 10
C_WA, C_WT, C_OF, C_OUT, C_XA = 20, 21, 22, 23, 24
C_O = 32
C_WB = 112
C_ACC = 172
C_R = 212

def p3_dma_setup(a):
    a("s_mul_i32 s%d, s%d, 160" % (S_T0, S_G))
    a("s_movk_i32 s%d, 6554" % S_T2)
    a("s_movk_i32 s%d, 1280" % S_T3)
    for j in range(5):
        a("v_add_u32 v4, %d, v%d" % (64 * j, V_LANE))
        a("v_mul_u32_u24 v8, s%d, v4" % S_T2)
        a("v_lshrrev_b32 v8, 16, v8")
        a("v_mul_u32_u24 v9, 10, v8")
        a("v_sub_u32 v9, v4, v9")
        a("v_mul_u32_u24 v8, s%d, v8" % S_T3)
        a("v_lshl_add_u32 v8, v9, 4, v8")
        a("v_add_u32 v%d, s%d, v8" % (C_DMA + j, S_T0))

def p3_setup(a):
    a("s_mul_i32 s%d, s%d, 160" % (S_T0, S_G))
    a("v_lshrrev_b32 v4, 1, v%d" % V_KG)
    a("v_and_b32 v5, 1, v%d" % V_KG)
    a("v_lshrrev_b32 v6, 2, v%d" % V_N)
    a("v_and_b32 v7, 3, v%d" % V_N)
    a("v_mul_u32_u24 v8, 20, v4")
    a("v_lshl_add_u32 v8, v5, 2, v8")
    a("v_add_u32 v8, v8, v6")
    a("s_movk_i32 s%d, 160" % S_T1)
    a("v_mul_u32_u24 v8, s%d, v8" % S_T1)
    a("v_lshl_add_u32 v8, v7, 3, v8")
    a("s_mul_i32 s%d, s%d, 51200" % (S_T2, S_CS))
    a("v_add_u32 v%d, s%d, v8" % (C_WA, S_T2))
    a("v_mul_u32_u24 v8, 40, v%d" % V_KG)
    a("v_add3_u32 v8, v8, v6, 16")
    a("v_mul_u32_u24 v8, s%d, v8" % S_T1)
    a("v_lshl_add_u32 v8, v7, 3, v8")
    a("v_add_u32 v%d, s%d, v8" % (C_WT, S_T2))
    a("v_lshlrev_b32 v%d, 4, v%d" % (C_OF, V_LANE))
    a("s_lshl_b32 s%d, s%d, 4" % (S_T2, S_RG))
    a("v_add_u32 v8, s%d, v%d" % (S_T2, V_N))
    a("s_movk_i32 s%d, 2560" % S_T2)
    a("v_mul_u32_u24 v8, s%d, v8" % S_T2)
    a("v_lshl_add_u32 v8, v%d, 3, v8" % V_KG)
    a("v_add_u32 v%d, s%d, v8" % (C_OUT, S_T0))
    a("s_mul_i32 s%d, s%d, 10240" % (S_T2, S_RG))
    a("s_add_u32 s%d, s%d, %d" % (S_T2, S_T2, XCH3))
    a("v_add_u32 v%d, s%d, v%d" % (C_XA, S_T2, C_OF))

def wo_block(a, srd_wo):
    a("s_mul_i32 s%d, s%d, %d" % (S_OFF, S_T0, 32 * 1280))
    a("s_mul_i32 s%d, s%d, 5120" % (S_T0, S_T0))
    for j in range(5):
        a("s_add_u32 m0, s%d, %d" % (S_T0, j * 1024))
        a("s_nop 0")
        a("buffer_load_dwordx4 v%d, s[%d:%d], s%d offen %s lds" % (C_DMA + j, srd_wo, srd_wo + 3, S_OFF, DML))

def wo_load(a, srd_wo, skip0=False, first=0):
    nw = 7 if skip0 else 8
    nb = 20 - first
    for k in range((nb + nw - 1) // nw):
        l = a.newlabel("wol")
        if skip0:
            a("s_cmp_eq_u32 s%d, 0" % S_WV)
            a("s_cbranch_scc1 %s" % l)
        a("s_add_u32 s%d, s%d, %d" % (S_T0, S_WV, first + nw * k))
        if skip0: a("s_sub_u32 s%d, s%d, 1" % (S_T0, S_T0))
        if first + nw * k + nw > 20:
            a("s_cmp_ge_u32 s%d, 20" % S_T0)
            a("s_cbranch_scc1 %s" % l)
        wo_block(a, srd_wo)
        a.label(l)

def p3_oloads(a, br, s_row0, k):
    a("s_lshr_b32 s%d, s%d, 4" % (S_T0, s_row0))
    a("s_add_u32 s%d, s%d, s%d" % (S_T0, S_T0, S_RG))
    a("s_add_u32 s%d, s%d, %d" % (S_T0, S_T0, 4 * k))
    a("s_mul_i32 s%d, s%d, 20480" % (S_T0, S_T0))
    a("s_add_u32 s%d, s%d, %d" % (S_T0, S_T0, WS_O + br * O_BR))
    a("s_lshl_b32 s%d, s%d, 13" % (S_T1, S_CS))
    a("s_add_u32 s%d, s%d, s%d" % (S_T1, S_T1, S_T0))
    for i in range(8):
        a("s_add_u32 s%d, s%d, %d" % (S_OFF, S_T1, i * 1024))
        a("buffer_load_dwordx4 %s, v%d, s[%d:%d], s%d offen %s" % (vr(C_O + 40 * k + 4 * i, 4), C_OF, S_WS, S_WS + 3, S_OFF, LD))
    a("s_lshl_b32 s%d, s%d, 11" % (S_T1, S_CS))
    a("s_add_u32 s%d, s%d, s%d" % (S_T1, S_T1, S_T0))
    for i in range(2):
        a("s_add_u32 s%d, s%d, %d" % (S_OFF, S_T1, (16 + i) * 1024))
        a("buffer_load_dwordx4 %s, v%d, s[%d:%d], s%d offen %s" % (vr(C_O + 40 * k + 32 + 4 * i, 4), C_OF, S_WS, S_WS + 3, S_OFF, LD))

def p3_wreads(i):
    wb = C_WB + 20 * (i % 3)
    L = []
    for T in range(5):
        for rd in range(2):
            if i < 8: L.append("ds_read_b64_tr_b16 %s, v%d offset:%d" % (vr(wb + 4 * T + 2 * rd, 2), C_WA, i * 6400 + rd * 1280 + 32 * T))
            else: L.append("ds_read_b64_tr_b16 %s, v%d offset:%d" % (vr(wb + 4 * T + 2 * rd, 2), C_WT, (i - 8) * 25600 + rd * 3200 + 32 * T))
    return L

def p3_mm(a, sets, vm_after, extra={}):
    lq = LQ(a)
    ids = {}
    ids[0] = [lq.issue(x) for x in p3_wreads(0)]
    ids[1] = [lq.issue(x) for x in p3_wreads(1)]
    for i in range(10):
        wb = C_WB + 20 * (i % 3)
        rd = p3_wreads(i + 2) if i + 2 < 10 else []
        ids[i + 2] = []
        n = vm_after(i)
        if n is not None: a("s_waitcnt vmcnt(%d)" % n)
        emit(a, extra.get(i))
        mm = [(T, mfma16(C_ACC + 20 * k + 4 * T, wb + 4 * T, C_O + 40 * sets[k] + 4 * i, "0" if i == 0 else None)) for T in range(5) for k in range(len(sets))]
        per = (len(rd) + len(mm) - 1) // len(mm) if rd else 0
        for (T, m) in mm:
            lq.need(ids[i][2 * T + 1])
            a(m)
            for _ in range(per):
                if rd: ids[i + 2].append(lq.issue(rd.pop(0)))

XCH3 = 102400
OTILE = 143360
OSTR = 160
def p3_epilogue(a, br, s_row0, nset, hooks={}):
    npieces = 640 * nset
    nround = (npieces + 511) // 512
    last_waves = (npieces - 512 * (nround - 1)) // 64
    def send(tiles):
        def f(a):
            for k in range(nset):
                for T in tiles:
                    a("ds_write_b128 v%d, %s offset:%d" % (C_XA, vr(C_ACC + 20 * k + 4 * T, 4), k * 5120 + T * 1024))
        return f
    a("s_lshl_b32 s%d, s%d, 4" % (S_T0, S_RG))
    a("v_add_u32 v4, s%d, v%d" % (S_T0, V_N))
    a("s_movk_i32 s%d, %d" % (S_T1, OSTR))
    a("v_mul_u32_u24 v4, s%d, v4" % S_T1)
    a("v_lshl_add_u32 v4, v%d, 3, v4" % V_KG)
    a("v_add_u32 v4, %d, v4" % OTILE)
    a("s_nop 2")
    role_branch(a, send([3, 4]), send([0, 1, 2]))
    a("s_lshl_b32 s%d, s%d, 6" % (S_T0, S_WV))
    a("v_add_u32 v5, s%d, v%d" % (S_T0, V_LANE))
    a("s_movk_i32 s%d, 6554" % S_T2)
    a("s_movk_i32 s%d, 2560" % S_T3)
    a("s_mul_i32 s%d, s%d, 160" % (S_T4, S_G))
    for m in range(nround):
        a("v_add_u32 v6, %d, v5" % (512 * m))
        a("v_mul_u32_u24 v7, s%d, v6" % S_T2)
        a("v_lshrrev_b32 v7, 16, v7")
        a("v_mul_u32_u24 v8, 10, v7")
        a("v_sub_u32 v8, v6, v8")
        a("v_mul_u32_u24 v9, s%d, v7" % S_T1)
        a("v_lshl_add_u32 v9, v8, 4, v9")
        a("v_add_u32 v%d, %d, v9" % (C_R + m, OTILE))
        a("v_mul_u32_u24 v9, s%d, v7" % S_T3)
        a("v_lshl_add_u32 v9, v8, 4, v9")
        a("v_add_u32 v%d, s%d, v9" % (C_R + 4 + m, S_T4))
    a("s_waitcnt lgkmcnt(0)")
    a("s_barrier")
    emit(a, hooks.get(0))
    def recv(tiles):
        def f(a):
            for k in range(nset):
                for n_, T in enumerate(tiles):
                    a("ds_read_b128 %s, v%d offset:%d" % (vr(C_WB + 12 * k + 4 * n_, 4), C_XA, k * 5120 + T * 1024))
            a("s_waitcnt lgkmcnt(0)")
            for k in range(nset):
                for n_, T in enumerate(tiles):
                    d = C_ACC + 20 * k + 4 * T
                    r = C_WB + 12 * k + 4 * n_
                    for q in (0, 2): a("v_pk_add_f32 %s, %s, %s" % (vr(d + q, 2), vr(d + q, 2), vr(r + q, 2)))
                    a("v_cvt_pk_bf16_f32 v%d, v%d, v%d" % (d, d, d + 1))
                    a("v_cvt_pk_bf16_f32 v%d, v%d, v%d" % (d + 1, d + 2, d + 3))
                    a("ds_write_b64 v4, %s offset:%d" % (vr(d, 2), k * 64 * OSTR + 32 * T))
        return f
    role_branch(a, recv([0, 1, 2]), recv([3, 4]))
    emit(a, hooks.get(1))
    a("s_mul_i32 s%d, s%d, 2560" % (S_T0, s_row0))
    a("s_add_u32 s%d, s%d, %d" % (S_T0, S_T0, br * 1280))
    a("s_waitcnt lgkmcnt(0)")
    a("s_barrier")
    for m in range(nround):
        l = a.newlabel("fr")
        if m == nround - 1 and last_waves < 8:
            a("s_cmp_ge_u32 s%d, %d" % (S_WV, last_waves))
            a("s_cbranch_scc1 %s" % l)
        a("ds_read_b128 %s, v%d offset:%d" % (vr(C_O + 4 * m, 4), C_R + m, 0))
        a.label(l)
    emit(a, hooks.get(2))
    a("s_waitcnt lgkmcnt(0)")
    for m in range(nround):
        l = a.newlabel("fs")
        if m == nround - 1 and last_waves < 8:
            a("s_cmp_ge_u32 s%d, %d" % (S_WV, last_waves))
            a("s_cbranch_scc1 %s" % l)
        a("buffer_store_dwordx4 %s, v%d, s[%d:%d], s%d offen %s" % (vr(C_O + 4 * m, 4), C_R + 4 + m, S_OUT, S_OUT + 3, S_T0, OUTST))
        a.label(l)
assert all((p * 6554) >> 16 == p // 10 for p in range(1536))

def poll_oa(a, half_):
    a("v_lshrrev_b32 v7, 3, v%d" % V_LANE)
    a("v_and_b32 v8, 7, v%d" % V_LANE)
    a("v_lshlrev_b32 v7, 7, v7")
    a("v_lshl_add_u32 v7, v8, 2, v7")
    a("s_lshl_b32 s%d, s%d, 1" % (S_T0, S_R))
    a("s_add_u32 s%d, s%d, %d" % (S_T0, S_T0, half_))
    a("s_lshl_b32 s%d, s%d, 10" % (S_T0, S_T0))
    a("s_add_u32 s%d, s%d, %d" % (S_T0, S_T0, F_OA))
    poll(a, 7, S_T0, "-1", "-1")

S_JR = S_DB
def phase3A(a):
    p3_dma_setup(a)
    p3_setup(a)
    a("s_lshl_b32 s%d, s%d, 7" % (S_JR, S_R))
    a("s_barrier")
    stamp(a, "attn")
    a("s_add_u32 s%d, s%d, 0" % (S_U, S_WV))
    a("s_mul_i32 s%d, s%d, %d" % (S_OFF, S_WV, 32 * 1280))
    a("s_mul_i32 s%d, s%d, 5120" % (S_U, S_WV))
    for j in range(5):
        a("s_add_u32 m0, s%d, %d" % (S_U, j * 1024))
        a("s_mul_i32 s%d, s%d, %d" % (S_OFF, S_WV, 32 * 1280))
        a("buffer_load_dwordx4 v%d, s[%d:%d], s%d offen %s lds" % (C_DMA + j, S_WO, S_WO + 3, S_OFF, DML))
        if j == 1:
            a("s_waitcnt vmcnt(2)")
            oa_flag_off(a, S_T0, 1)
            publish(a, S_T0, None)
    p3_oloads(a, 0, S_JR, 0)
    wo_load(a, S_WO, first=8)
    a("s_waitcnt vmcnt(0)")
    a("s_barrier")
    stamp(a, "j0a")
    p3_mm(a, [0], lambda i: None)
    stamp(a, "j1a")
    p3_epilogue(a, 0, S_JR, 1)
    stamp(a, "j2a")

def phaseB(a):
    apply_phase(a)
    stamp(a, "kvld")
    p3_setup(a)
    a("s_waitcnt vmcnt(0)")
    a("s_barrier")
    a("s_lshl_b32 s%d, s%d, 3" % (S_T0, S_R))
    a("s_add_u32 s%d, s%d, s%d" % (S_T0, S_T0, S_G))
    a("s_lshl_b32 s%d, s%d, 7" % (S_T0, S_T0))
    a("s_add_u32 s%d, s%d, %d" % (S_T0, S_T0, F_OB))
    publish(a, S_T0, 0)
    stamp(a, "attn")
    a("v_lshlrev_b32 v7, 7, v%d" % V_LANE)
    a("s_lshl_b32 s%d, s%d, 10" % (S_T0, S_R))
    a("s_add_u32 s%d, s%d, %d" % (S_T0, S_T0, F_OB))
    poll(a, 7, S_T0, "0xff", "0")
    a("s_barrier")
    stamp(a, "j0b")
    a("s_lshl_b32 s%d, s%d, 7" % (S_JR, S_R))
    p3_oloads(a, 1, S_JR, 0)
    p3_oloads(a, 1, S_JR, 1)
    p3_mm(a, [0, 1], lambda i: 9 - i)
    stamp(a, "j1b")
    def refill(k):
        def f(a):
            l = a.newlabel("rf")
            a("s_cmp_eq_u32 s%d, 0" % S_WV)
            a("s_cbranch_scc1 %s" % l)
            a("s_add_u32 s%d, s%d, %d" % (S_U, S_WV, 7 * k + 63))
            a("s_sub_u32 s%d, s%d, 64" % (S_U, S_U))
            if k == 2:
                a("s_cmp_ge_u32 s%d, 20" % S_U)
                a("s_cbranch_scc1 %s" % l)
            a("s_mul_i32 s%d, s%d, %d" % (S_OFF, S_U, 32 * 1280))
            a("s_mul_i32 s%d, s%d, 5120" % (S_U, S_U))
            for j in range(5):
                a("s_add_u32 m0, s%d, %d" % (S_U, j * 1024))
                a("s_nop 0")
                a("buffer_load_dwordx4 v%d, s[%d:%d], s%d offen %s lds" % (C_DMA + j, S_WO, S_WO + 3, S_OFF, DML))
            a.label(l)
        return f
    if 'norefill' in OPT:
        p3_epilogue(a, 1, S_JR, 2)
        stamp(a, "j2b")
        a("s_barrier")
        wo_load(a, S_WO, skip0=True)
    else:
        p3_epilogue(a, 1, S_JR, 2, {0: refill(0), 1: refill(1), 2: refill(2)})
        stamp(a, "j2b")
    poll_oa(a, 1)
    a("s_waitcnt vmcnt(0)")
    a("s_barrier")
    stamp(a, "j0a")
    a("s_lshl_b32 s%d, s%d, 7" % (S_JR, S_R))
    a("s_add_u32 s%d, s%d, 64" % (S_JR, S_JR))
    p3_oloads(a, 0, S_JR, 0)
    p3_mm(a, [0], lambda i: 9 - i)
    stamp(a, "j1a")
    p3_epilogue(a, 0, S_JR, 1)
    stamp(a, "j2a")

def epoch_update(a):
    l = a.newlabel("ep")
    a("s_cmp_eq_u32 s2, 0")
    a("s_cbranch_scc0 %s" % l)
    a("v_lshlrev_b32 v7, 7, v%d" % V_LANE)
    for k in range(4):
        a("s_mov_b32 s%d, %d" % (S_T0, F_KV + k * 64 * 128))
        poll(a, 7, S_T0, "-1", "-1")
    a("s_mov_b32 s%d, %d" % (S_T0, WS_FLAG))
    publish(a, S_T0, 0)
    a.label(l)

HEADER = """; sliding-window attention block + linear attention block, one fused launch (generated by gen3.py)
"""
def build():
    out = [HEADER, "; @launch grid=(256,1,1) block=(512,1,1) lds=163840\n"]
    out.append('.amdgcn_target "amdgcn-amd-amdhsa--gfx950"\n.text\n')
    a = Asm()
    stubs = []
    entry(a)
    phase1(a)
    if 'p1only' in OPT: a("s_branch L_fin2")
    lb = a.newlabel("brB")
    a("s_cmp_eq_u32 s%d, 0" % S_BR)
    a("s_cbranch_scc0 %s" % lb)
    phase2A(a, stubs)
    phase3A(a)
    a("s_branch L_fin")
    emit_stubs(a, stubs)
    a.label(lb)
    phaseB(a)
    a.label("L_fin")
    epoch_update(a)
    a.label("L_fin2")
    stamp(a, "end")
    if STAMPS: a("s_waitcnt vmcnt(0)")
    stamp_store(a)
    a.label("L_end"); a("s_endpgm")
    a.label("L_codeend")
    out.append(".globl %s\n.p2align 8\n.type %s,@function\n%s:\n" % (NAME, NAME, NAME) + a.text())
    if 'nocodepf' not in OPT:
        out.append(".set CODE_TOTAL, L_codeend - L_pcbase\n.set CODE_CHUNK, ((CODE_TOTAL / 8 + 127) / 128) * 128\n.set CODE_LAST, CODE_TOTAL - 4\n")
    out.append('.section .rodata,"a"\n.p2align 6\n')
    out.append((".amdhsa_kernel %s\n  .amdhsa_next_free_vgpr 256\n  .amdhsa_next_free_sgpr 102\n  .amdhsa_accum_offset 256\n"
                "  .amdhsa_group_segment_fixed_size 0\n  .amdhsa_kernarg_size 72\n  .amdhsa_user_sgpr_count 2\n"
                "  .amdhsa_user_sgpr_kernarg_segment_ptr 1\n  .amdhsa_system_sgpr_workgroup_id_x 1\n.end_amdhsa_kernel\n") % NAME)
    return "".join(out)

if __name__ == "__main__":
    OPT = set(sys.argv[2:])
    for x in sys.argv:
        if x.startswith("st="):
            STAMPS = True
            STMAP = {n: i for i, n in enumerate(x[3:].split(","))}
    for x in OPT:
        if x.startswith('sch='): SCHED = x[4:]
        if x.startswith('pub0at='): PUB0_AT = int(x[7:])
        if x.startswith('wsb='): WS_BASE = int(x[4:]) << 20
        if x.startswith('outst='): OUTST = x[6:].replace('+', ' ')
    if 'pfnt' in OPT: PFL = "nt"
    if 'dmant' in OPT: DML = "nt"
    if 'p1only' in OPT: S_ST = 84
    open(sys.argv[1], "w").write(build())
```

```python
import sys, struct
from asmlib import Asm, vr, sr

NAME = "concat_heads__sliding_block__linear_attn_block__prompt_kernel"
WS_KV   = 0x0000000
WS_O    = 0x0A00000
WS_PART = 0x0F00000
WS_FLAG = 0x1000000
WS_STAMP = 0x1080000
WS_SIZE = 0x1100000
O_BR = 128 * 20480
F_KV, F_PART, F_OA, F_OB = WS_FLAG + 0x1000, WS_FLAG + 0x5000, WS_FLAG + 0x9000, WS_FLAG + 0x11000
SPIN_LIMIT = 40000
ST, LD = "sc1", "sc1"
PFL = ""
DML = ""
STAMPS, STMAP, OPT = False, None, set()
SCHED = 'e'
WS_BASE = 0
OUTST = 'nt'

S_NONCE = 3
S_ST = 4
S_I, S_U = 22, 23
S_X, S_W, S_WS, S_OUT, S_WO, S_WOB = 24, 28, 32, 36, 40, 44
S_BR, S_R, S_G, S_WV, S_RG, S_CS = 48, 49, 50, 51, 52, 53
S_T0, S_T1, S_T2, S_T3, S_T4, S_T5 = 54, 55, 56, 57, 58, 59
S_DB, S_OFF = 60, 61
S_M0, S_M1, S_M2 = 62, 64, 66
S_D, S_SB, S_SOFF, S_STEP, S_J = 68, 72, 76, 77, 78
S_G1 = 82
S_MASK = 68

V_IMG, V_LANE, V_N, V_KG = 0, 1, 2, 3
V_DMA, V_XA, V_WA, V_PF, V_XT, V_WB0, V_WB1 = 10, 15, 19, 29, 32, 40, 60
V_ACC, V_ACC2, V_XP, V_DMA2, V_PFD, V_WA2 = 80, 120, 160, 240, 245, 246
LDS_W = 65536
XSLOT, WSLOT = 16384, 20480
LOG2E = 1.4426950408889634
QSCALE = LOG2E / (20.0 ** 0.5)

def f2u(x): return struct.unpack("<I", struct.pack("<f", x))[0]
def mfma16(d, x, y, c=None):
    return "v_mfma_f32_16x16x32_bf16 %s, %s, %s, %s" % (vr(d, 4), vr(x, 4), vr(y, 4), vr(d, 4) if c is None else c)
def mfma32(d, x, y, c=None):
    return "v_mfma_f32_32x32x16_bf16 %s, %s, %s, %s" % (vr(d, 16), vr(x, 4), vr(y, 4), vr(d, 16) if c is None else c)
def emit(a, item):
    if item is None: return
    if callable(item): item(a)
    elif isinstance(item, (list, tuple)):
        for x in item: emit(a, x)
    else: a(item)

class LQ:
    def __init__(self, a): self.a, self.n, self.done = a, 0, 0
    def issue(self, s, cnt=1):
        emit(self.a, s); self.n += cnt; return self.n
    def need(self, idx):
        if idx > self.done:
            cnt = self.n - idx
            self.a("s_waitcnt lgkmcnt(%d)" % min(cnt, 15))
            self.done = idx if cnt <= 15 else self.n - 15
    def drain(self):
        if self.n > self.done:
            self.a("s_waitcnt lgkmcnt(0)"); self.done = self.n

NST = 8
def rec(f, *args):
    r = Asm(); r.nlab = 900000; f(r, *args)
    return [l.strip() for l in r.lines]
def stamp(a, name):
    if not STAMPS or STMAP is None or name not in STMAP: return
    i = STMAP[name]
    a("%s s[%d:%d]" % ("s_memtime" if 'cyc' in OPT else "s_memrealtime", S_ST + 2 * i, S_ST + 2 * i + 1))
def stamp_dbg(a):
    a("s_memrealtime s[20:21]")
    a("s_load_dwordx2 s[24:25], s[0:1], 56")
    a("s_waitcnt lgkmcnt(0)")
    a("s_mov_b32 s26, 256"); a("s_mov_b32 s27, 0x20000")
    a("s_mov_b64 exec, 1")
    a("v_mov_b32 v4, 0")
    a("s_not_b32 s22, s101")
    for reg, slot in [(22, 0), (20, 1)] + [(S_ST + 2 * i, 2 + i) for i in range(NST)]:
        a("v_mov_b32 v5, s%d" % reg)
        a("buffer_atomic_umax v5, v4, s[24:27], 0 offen offset:%d" % (slot * 4))
    a("v_mov_b32 v5, s101")
    a("buffer_atomic_umax v5, v4, s[24:27], 0 offen offset:%d" % (10 * 4))
    a("s_mov_b64 exec, -1")

def stamp_store(a):
    if not STAMPS: return
    if 'dbg' in OPT: return stamp_dbg(a)
    a("s_memrealtime s[20:21]")
    a("s_memtime s[24:25]")
    a("s_waitcnt lgkmcnt(0)")
    a("s_lshl_b32 s%d, s2, 3" % S_T0)
    a("s_add_u32 s%d, s%d, s%d" % (S_T0, S_T0, S_WV))
    a("s_lshl_b32 s%d, s%d, 6" % (S_T0, S_T0))
    a("s_add_u32 s%d, s%d, %d" % (S_T0, S_T0, WS_STAMP))
    a("s_mov_b64 exec, 1")
    a("v_mov_b32 v4, 0")
    for i in range(NST):
        a("v_mov_b32 v5, s%d" % (S_ST + 2 * i))
        a("buffer_store_dword v5, v4, s[%d:%d], s%d offen offset:%d" % (S_WS, S_WS + 3, S_T0, i * 4))
    a("s_getreg_b32 s21, hwreg(HW_REG_XCC_ID)")
    a("s_getreg_b32 s22, hwreg(HW_REG_HW_ID)")
    for reg, slot in ((20, 15), (101, 14), (100, 13), (21, 12), (22, 11), (24, 10)):
        a("v_mov_b32 v5, s%d" % reg)
        a("buffer_store_dword v5, v4, s[%d:%d], s%d offen offset:%d" % (S_WS, S_WS + 3, S_T0, slot * 4))
    a("s_mov_b64 exec, -1")

def minwrap(a, v, m, tmp):
    a("v_subrev_u32 v%d, %d, v%d" % (tmp, m, v))
    a("v_min_u32 v%d, v%d, v%d" % (v, v, tmp))
def srd(a, d, lo, hi, size):
    a("s_mov_b32 s%d, s%d" % (d, lo)); a("s_mov_b32 s%d, s%d" % (d + 1, hi))
    a("s_mov_b32 s%d, %d" % (d + 2, size)); a("s_mov_b32 s%d, 0x20000" % (d + 3))
def role_branch(a, fw, fx):
    lx, ld = a.newlabel("rx"), a.newlabel("rd")
    a("s_cmp_eq_u32 s%d, 0" % S_CS)
    a("s_cbranch_scc0 %s" % (lx if fx else ld))
    emit(a, fw)
    if fx:
        a("s_branch %s" % ld)
        a.label(lx)
        emit(a, fx)
    a.label(ld)
def on_wave(a, wave, f):
    l = a.newlabel("ow")
    a("s_cmp_eq_u32 s%d, %d" % (S_WV, wave))
    a("s_cbranch_scc0 %s" % l)
    emit(a, f)
    a.label(l)

def entry(a):
    a("s_cmp_ge_u32 s2, 256")
    a("s_cbranch_scc1 L_end")
    if STAMPS:
        a("s_memrealtime s[100:101]")
        a("s_memtime s[62:63]")
    a("s_load_dwordx16 s[4:19], s[0:1], 0")
    a("s_load_dwordx2 s[20:21], s[0:1], 64")
    if 'badmap' in OPT:
        a("s_lshr_b32 s%d, s2, 5" % S_T0)
        a("s_and_b32 s%d, s2, 31" % S_I)
    else:
        a("s_and_b32 s%d, s2, 7" % S_T0)
        a("s_lshr_b32 s%d, s2, 3" % S_I)
    a("v_lshrrev_b32 v4, 6, v0")
    a("v_and_b32 v%d, 63, v0" % V_LANE)
    a("v_and_b32 v%d, 15, v0" % V_N)
    a("v_readfirstlane_b32 s%d, v4" % S_WV)
    a("v_lshrrev_b32 v%d, 4, v%d" % (V_KG, V_LANE))
    if 'brlo' in OPT or 'brhi' in OPT:
        a("s_lshr_b32 s%d, s%d, 2" % (S_BR, S_T0))
        if 'brhi' in OPT: a("s_xor_b32 s%d, s%d, 1" % (S_BR, S_BR))
        a("s_and_b32 s%d, s%d, 3" % (S_T2, S_T0))
    else:
        a("s_and_b32 s%d, s%d, 1" % (S_BR, S_T0))
        a("s_lshr_b32 s%d, s%d, 1" % (S_T2, S_T0))
    a("s_and_b32 s%d, s%d, 1" % (S_T3, S_T2))
    a("s_lshl_b32 s%d, s%d, 3" % (S_T3, S_T3))
    a("s_and_b32 s%d, s%d, 7" % (S_T4, S_I))
    a("s_add_u32 s%d, s%d, s%d" % (S_R, S_T3, S_T4))
    a("s_lshr_b32 s%d, s%d, 1" % (S_T3, S_T2))
    a("s_lshr_b32 s%d, s%d, 3" % (S_T4, S_I))
    a("s_lshl_b32 s%d, s%d, 2" % (S_T5, S_T3))
    a("s_add_u32 s%d, s%d, s%d" % (S_G, S_T5, S_T4))
    a("s_lshl_b32 s%d, s%d, 1" % (S_T3, S_T3))
    a("s_and_b32 s%d, s%d, 1" % (S_T5, S_T4))
    a("s_add_u32 s%d, s%d, s%d" % (S_T3, S_T3, S_T5))
    a("s_lshr_b32 s%d, s%d, 1" % (S_T4, S_T4))
    a("s_lshl_b32 s%d, s%d, 2" % (S_T4, S_T4))
    a("s_add_u32 s%d, s%d, s%d" % (S_G1, S_T3, S_T4))
    a("s_and_b32 s%d, s%d, 3" % (S_RG, S_WV))
    a("s_lshr_b32 s%d, s%d, 2" % (S_CS, S_WV))
    if 'nocodepf' not in OPT:
        def cpf(a):
            a("s_getpc_b64 s[56:57]")
            a.label("L_pcbase")
            a("s_and_b32 s%d, s%d, 7" % (S_T4, S_I))
            a("s_mul_i32 s%d, s%d, CODE_CHUNK" % (S_T4, S_T4))
            a("v_lshlrev_b32 v4, 7, v%d" % V_LANE)
            a("v_add_u32 v4, s%d, v4" % S_T4)
            a("v_min_u32 v4, CODE_LAST, v4")
            a("global_load_dword v%d, v4, s[56:57]" % V_PFD)
        on_wave(a, 7, cpf)

S_B12, S_C12 = 93, 94
def dma_setup(a):
    stamp(a, "ids")
    def fw(a):
        a("s_mul_i32 s%d, s%d, %d" % (S_T0, S_RG, 16 * 3840))
        a("s_mul_i32 s%d, s%d, 160" % (S_T1, S_G))
        a("s_mul_i32 s%d, s%d, 320" % (S_T2, S_G1))
        a("s_cmp_eq_u32 s%d, 0" % S_BR)
        a("s_cselect_b32 s%d, s%d, s%d" % (S_T2, S_T2, S_T1))
        a("s_cselect_b32 s%d, 0, 1120" % S_T5)
        a("s_add_u32 s%d, s%d, s%d" % (S_T2, S_T2, S_T0))
        a("s_add_u32 s%d, s%d, 1280" % (S_T2, S_T2))
        a("s_add_u32 s%d, s%d, s%d" % (S_T0, S_T0, S_T1))
        a("s_sub_u32 s%d, s%d, s%d" % (S_B12, S_T0, S_T2))
        a("s_sub_u32 s%d, %d, s%d" % (S_C12, 245760 - 160, S_T5))
        a("s_movk_i32 s%d, 3277" % S_T1)
        a("s_movk_i32 s%d, 3840" % S_T3)
        for j in range(5):
            p, kk, q, u, t = 4, 5, 6, 7, V_DMA2 + j
            a("v_add_u32 v%d, %d, v%d" % (p, 64 * j, V_LANE))
            a("v_mul_u32_u24 v%d, s%d, v%d" % (kk, S_T1, p))
            a("v_lshrrev_b32 v%d, 16, v%d" % (kk, kk))
            a("v_mul_u32_u24 v%d, 20, v%d" % (q, kk))
            a("v_lshrrev_b32 v%d, 2, v%d" % (u, kk))
            a("v_sub_u32 v%d, v%d, v%d" % (q, p, q))
            a("v_and_b32 v%d, 2, v%d" % (u, u))
            a("v_sub_u32 v%d, v%d, v%d" % (u, q, u))
            a("v_add_u32 v8, 20, v%d" % u)
            a("v_min_u32 v%d, v%d, v8" % (u, u))
            a("v_add_u32 v%d, 6, v%d" % (t, u))
            a("v_lshrrev_b32 v%d, 4, v%d" % (t, t))
            a("v_mul_u32_u24 v%d, s%d, v%d" % (kk, S_T3, kk))
            a("v_lshl_add_u32 v%d, v%d, 4, v%d" % (kk, u, kk))
            a("v_mad_u32_u24 v%d, v%d, s%d, v%d" % (q, t, S_T5, kk))
            a("v_add_u32 v%d, s%d, v%d" % (V_DMA + j, S_T2, q))
        a("s_mul_i32 s%d, s%d, 5120" % (S_T0, S_RG))
        for k in range(4): a("s_add_u32 s%d, s%d, %d" % (S_SB + k, S_T0, LDS_W + k * WSLOT))
        a("s_mov_b32 s%d, %d" % (S_STEP, 64 * 3840))
        for k in range(1, 4): a("s_mov_b32 s%d, 0" % (S_J + k))
    def fx(a):
        a("s_lshl_b32 s%d, s%d, 7" % (S_T0, S_R))
        a("s_lshl_b32 s%d, s%d, 5" % (S_T1, S_RG))
        a("s_add_u32 s%d, s%d, s%d" % (S_T0, S_T0, S_T1))
        a("s_mul_i32 s%d, s%d, 1280" % (S_T0, S_T0))
        a("s_movk_i32 s%d, 1280" % S_T1)
        a("v_lshrrev_b32 v4, 3, v%d" % V_LANE)
        a("v_and_b32 v5, 7, v%d" % V_LANE)
        a("v_xor_b32 v5, v5, v4")
        a("v_mul_u32_u24 v4, s%d, v4" % S_T1)
        a("v_lshl_add_u32 v4, v5, 4, v4")
        a("v_add_u32 v%d, s%d, v4" % (V_DMA, S_T0))
        for j in range(1, 5): a("v_mov_b32 v%d, v%d" % (V_DMA + j, V_DMA))
        for j in range(5): a("v_mov_b32 v%d, 0" % (V_DMA2 + j))
        a("s_lshl_b32 s%d, s%d, 12" % (S_T0, S_RG))
        for k in range(4): a("s_add_u32 s%d, s%d, %d" % (S_SB + k, S_T0, k * XSLOT))
        a("s_movk_i32 s%d, 128" % S_STEP)
        for k in range(1, 4): a("s_mov_b32 s%d, %d" % (S_J + k, k * 10240))
        a("s_mov_b32 s%d, 0" % S_B12); a("s_mov_b32 s%d, 0" % S_C12)
    role_branch(a, fw, fx)
    a("s_mov_b32 s%d, 0" % S_SOFF)

def dma_setup2(a):
    def fw(a):
        for j in range(5):
            a("v_mad_u32_u24 v%d, v%d, s%d, v%d" % (V_DMA2 + j, V_DMA2 + j, S_C12, V_DMA + j))
            a("v_add_u32 v%d, s%d, v%d" % (V_DMA2 + j, S_B12, V_DMA2 + j))
        a("s_movk_i32 s%d, 3840" % S_T3)
        a("v_and_b32 v4, 31, v%d" % V_LANE)
        a("v_lshrrev_b32 v5, 5, v%d" % V_LANE)
        a("v_min_u32 v4, 19, v4")
        a("s_lshr_b32 s%d, s%d, 2" % (S_T0, S_G))
        a("v_mul_u32_u24 v6, 13, v4"); a("v_lshrrev_b32 v6, 7, v6")
        a("v_mul_u32_u24 v7, 52, v4"); a("v_lshrrev_b32 v7, 8, v7")
        a("v_mul_u32_u24 v8, 5, v7"); a("v_sub_u32 v8, v4, v8")
        a("v_lshlrev_b32 v8, 7, v8")
        a("v_lshl_add_u32 v6, v5, 6, v6")
        a("s_lshl_b32 s%d, s%d, 1" % (S_T2, S_I))
        a("v_add_u32 v6, s%d, v6" % S_T2)
        a("v_mul_u32_u24 v6, s%d, v6" % S_T3)
        a("v_and_b32 v9, 1, v7")
        a("s_movk_i32 s%d, 1280" % S_T2)
        a("v_mul_u32_u24 v9, s%d, v9" % S_T2)
        a("v_add3_u32 v6, v6, v9, v8")
        a("s_mul_i32 s%d, s%d, 640" % (S_T0, S_T0))
        a("s_add_u32 s%d, s%d, 1280" % (S_T2, S_T0))
        a("v_add_u32 v%d, s%d, v6" % (V_PF + 1, S_T2))
        a("v_lshl_add_u32 v7, v5, 7, v7")
        a("s_lshl_b32 s%d, s%d, 2" % (S_T2, S_I))
        a("v_add_u32 v7, s%d, v7" % S_T2)
        a("v_mul_u32_u24 v7, s%d, v7" % S_T3)
        a("v_add3_u32 v%d, v7, v8, s%d" % (V_PF + 2, S_T0))
        a("v_mov_b32 v%d, 0" % V_PF)
    def fx(a):
        a("s_movk_i32 s%d, 1280" % S_T1)
        a("v_and_b32 v4, 31, v%d" % V_LANE)
        a("v_lshrrev_b32 v5, 5, v%d" % V_LANE)
        a("s_lshr_b32 s%d, s%d, 3" % (S_T0, S_R))
        a("s_lshl_b32 s%d, s%d, 5" % (S_T0, S_T0))
        a("s_add_u32 s%d, s%d, s%d" % (S_T0, S_T0, S_I))
        a("s_mul_i32 s%d, s%d, %d" % (S_T0, S_T0, 32 * 1280))
        a("v_mul_u32_u24 v6, s%d, v4" % S_T1)
        a("v_lshl_add_u32 v6, v5, 7, v6")
        a("v_add_u32 v%d, s%d, v6" % (V_PF, S_T0))
        a("v_mov_b32 v%d, 0" % (V_PF + 1)); a("v_mov_b32 v%d, 0" % (V_PF + 2))
    role_branch(a, fw, fx)

def entry_srd(a):
    a("s_waitcnt lgkmcnt(0)")
    a("s_cmp_eq_u32 s%d, 0" % S_BR)
    a("s_cselect_b32 s%d, s4, s10" % S_X)
    a("s_cselect_b32 s%d, s5, s11" % (S_X + 1))
    a("s_mov_b32 s%d, 2621440" % (S_X + 2))
    a("s_mov_b32 s%d, 0x20000" % (S_X + 3))
    a("s_cselect_b32 s%d, s6, s12" % S_W)
    a("s_cselect_b32 s%d, s7, s13" % (S_W + 1))
    a("s_mov_b32 s%d, 2457600" % (S_W + 2))
    a("s_mov_b32 s%d, 0x20000" % (S_W + 3))
    a("s_cmp_eq_u32 s%d, 0" % S_CS)
    a("s_cselect_b32 s%d, s%d, s%d" % (S_D, S_W, S_X))
    a("s_cselect_b32 s%d, s%d, s%d" % (S_D + 1, S_W + 1, S_X + 1))
    a("s_cselect_b32 s%d, s%d, s%d" % (S_D + 2, S_W + 2, S_X + 2))
    a("s_mov_b32 s%d, 0x20000" % (S_D + 3))

def entry_srd2(a):
    if WS_BASE:
        a("s_add_u32 s20, s20, %d" % WS_BASE)
        a("s_addc_u32 s21, s21, 0")
    srd(a, S_WS, 20, 21, WS_SIZE)
    srd(a, S_OUT, 16, 17, 5242880)
    srd(a, S_WO, 8, 9, 819200)
    srd(a, S_WOB, 14, 15, 819200)
    if STAMPS:
        a("s_mov_b32 s101, s100")
        a("s_mov_b32 s100, s62")
        if S_ST == 4:
            for i in range(NST): a("s_mov_b32 s%d, 0" % (S_ST + 2 * i))

def pf(kind, idx, k):
    def f(a):
        if 'nopf' in OPT: return
        def body(a):
            if kind == 'x': a("s_mov_b32 s%d, %d" % (S_OFF, idx * 256)); s_, v = S_X, V_PF
            elif kind == 'w': a("s_mov_b32 s%d, %d" % (S_OFF, idx * 128 * 3840)); s_, v = S_W, V_PF + 1
            else: a("s_mov_b32 s%d, %d" % (S_OFF, idx * 256 * 3840)); s_, v = S_W, V_PF + 2
            if 'pfhalf' in OPT and kind == 'x': a("s_mov_b32 exec_hi, 0")
            if 'nopfx' in OPT and kind == 'x': return
            if 'nopfw' in OPT and kind != 'x': return
            a("buffer_load_dword v%d, v%d, s[%d:%d], s%d offen %s" % (V_PFD, v, s_, s_ + 3, S_OFF, PFL))
            if 'pfhalf' in OPT and kind == 'x': a("s_mov_b32 exec_hi, -1")
        on_wave(a, (4 + k) if kind == 'x' else k, body)
    return f

def dma(sig, j):
    def f(a):
        if 'nodma' in OPT and sig >= 3: return
        slot = sig % 4
        def body(a):
            a("s_add_u32 m0, s%d, %d" % (S_SB + slot, j * 1024))
            if sig < 10:
                if 1 <= j <= 3:
                    a("s_add_u32 s%d, s%d, s%d" % (S_OFF, S_SOFF, S_J + j)); so = S_OFF
                else:
                    a("s_nop 0"); so = S_SOFF
                a("buffer_load_dwordx4 v%d, s[%d:%d], s%d offen %s lds" % (V_DMA + j, S_D, S_D + 3, so, DML))
            else:
                a("s_mov_b32 s%d, %d" % (S_OFF, (sig - 10) * 128 * 3840))
                a("buffer_load_dwordx4 v%d, s[%d:%d], s%d offen %s lds" % (V_DMA2 + j, S_D, S_D + 3, S_OFF, DML))
        if sig >= 10 or j == 4: role_branch(a, body, None)
        else: body(a)
        if sig < 10 and j == 4: a("s_add_u32 s%d, s%d, s%d" % (S_SOFF, S_SOFF, S_STEP))
    return f

def img_pos(a, dst, tmp):
    a("v_lshl_add_u32 v%d, v%d, 2, v%d" % (tmp, V_KG, V_N))
    a("v_and_b32 v%d, 15, v%d" % (tmp, tmp))
    a("v_lshl_add_u32 v%d, v%d, 4, v%d" % (tmp, V_KG, tmp))
    a("v_lshlrev_b32 v%d, 4, v%d" % (dst, tmp))

E_, RP, BB, W4, TM = V_ACC2, V_ACC2 + 1, V_ACC2 + 2, V_ACC2 + 3, V_ACC2 + 4
def addr1_setup(a):
    a("v_and_b32 v4, 7, v%d" % V_N)
    a("s_lshl_b32 s%d, s%d, 12" % (S_T0, S_RG))
    a("v_lshlrev_b32 v5, 7, v%d" % V_N)
    a("v_xor_b32 v4, v4, v%d" % V_KG)
    a("v_lshl_add_u32 v4, v4, 4, v5")
    a("s_xor_b32 s%d, s%d, 1" % (S_T5, S_CS))
    a("s_lshl_b32 s%d, s%d, 6" % (S_T1, S_T5))
    a("s_lshl_b32 s%d, s%d, 11" % (S_T2, S_CS))
    a("s_or_b32 s%d, s%d, s%d" % (S_T1, S_T1, S_T2))
    a("s_or_b32 s%d, s%d, s%d" % (S_T1, S_T1, S_T0))
    a("v_xor_b32 v%d, s%d, v4" % (V_XA, S_T1))
    a("v_xor_b32 v%d, 0x800, v%d" % (V_XA + 1, V_XA))
    a("v_xor_b32 v%d, 64, v%d" % (V_XA + 2, V_XA))
    a("v_xor_b32 v%d, 64, v%d" % (V_XA + 3, V_XA + 1))
    a("v_and_b32 v4, 3, v%d" % V_N)
    a("v_lshrrev_b32 v%d, 2, v%d" % (RP, V_N))
    a("v_and_b32 v7, 1, v%d" % V_KG)
    a("v_lshl_add_u32 v%d, v%d, 3, v%d" % (RP, V_KG, RP))
    a("s_movk_i32 s%d, 320" % S_T1)
    a("v_lshlrev_b32 v7, 5, v7")
    a("v_mul_u32_u24 v%d, s%d, v%d" % (RP, S_T1, RP))
    a("v_lshl_add_u32 v%d, v4, 3, v7" % E_)
    a("v_add_u32 v%d, %d, v%d" % (RP, LDS_W, RP))
    a("v_add_u32 v%d, v%d, v%d" % (BB, RP, E_))
    a("s_mul_i32 s%d, s%d, 160" % (S_T2, S_CS))
    a("s_mul_i32 s%d, s%d, 80" % (S_T3, S_CS))
    a("s_mul_i32 s%d, s%d, 10240" % (S_T0, S_T5))
    a("s_mul_i32 s%d, s%d, 10240" % (S_T1, S_CS))
    def sA(T):
        a("s_add_u32 s%d, s%d, %d" % (S_T4, S_T2, 40 * T))
        a("s_add_u32 s%d, s%d, %d" % (S_T5, S_T3, (T >> 1) * 160 + 40 * (T & 1)))
        a("s_cmp_eq_u32 s%d, 0" % S_BR)
        a("s_cselect_b32 s%d, s%d, s%d" % (S_T4, S_T4, S_T5))
    for T in range(3):
        sA(T)
        a("s_add_u32 s%d, s%d, s%d" % (S_T5, S_T4, S_T0))
        a("v_add_u32 v%d, s%d, v%d" % (V_WA + T, S_T5, BB))
        a("s_add_u32 s%d, s%d, s%d" % (S_T5, S_T4, S_T1))
        a("v_add_u32 v%d, s%d, v%d" % (V_WA + 5 + T, S_T5, BB))
    sA(3)
    a("v_add_u32 v5, s%d, v%d" % (S_T4, E_))
    minwrap(a, 5, 320, TM)
    a("v_add_u32 v5, v5, v%d" % RP)
    a("v_add_u32 v%d, s%d, v5" % (V_WA + 3, S_T0))
    a("v_add_u32 v%d, s%d, v5" % (V_WA + 8, S_T1))
    a("s_cmp_eq_u32 s%d, 0" % S_BR)
    a("s_cselect_b32 s%d, s%d, s%d" % (S_T4, S_T2, S_T3))
    a("s_cselect_b32 s%d, 0, 80" % S_T5)
    a("s_add_u32 s%d, s%d, 32" % (S_T4, S_T4))
    a("v_mul_u32_u24 v%d, 40, v4" % (W4))
    a("v_lshrrev_b32 v5, 1, v4")
    a("v_add_u32 v%d, v%d, v7" % (W4, W4))
    a("v_mad_u32_u24 v5, v5, s%d, v%d" % (S_T5, W4))
    a("v_add_u32 v5, s%d, v5" % S_T4)
    minwrap(a, 5, 320, TM)
    a("v_add_u32 v5, v5, v%d" % RP)
    a("v_add_u32 v%d, s%d, v5" % (V_WA + 4, S_T0))
    a("v_add_u32 v%d, s%d, v5" % (V_WA + 9, S_T1))

def addr2_setup(a):
    a("s_mul_i32 s%d, s%d, 10240" % (S_T1, S_CS))
    for seg in range(2):
        for T in range(4):
            if seg == 1 and T == 3: continue
            a("s_add_u32 s%d, s%d, %d" % (S_T4, S_T1, seg * 160 + 40 * T))
            a("v_add_u32 v%d, s%d, v%d" % (V_WA2 + seg * 5 + T, S_T4, BB))
    a("v_add_u32 v5, 280, v%d" % E_)
    minwrap(a, 5, 320, TM)
    a("v_add3_u32 v%d, v5, v%d, s%d" % (V_WA2 + 8, RP, S_T1))
    a("s_add_u32 s%d, s%d, 32" % (S_T4, S_T1))
    a("v_add3_u32 v%d, v%d, v%d, s%d" % (V_WA2 + 4, W4, RP, S_T4))
    a("v_add_u32 v5, 192, v%d" % (W4))
    minwrap(a, 5, 320, TM)
    a("v_add3_u32 v%d, v5, v%d, s%d" % (V_WA2 + 9, RP, S_T1))
    img_pos(a, V_IMG, 4)

def p1_reads(s, hf):
    if 'noread' in OPT: return ["s_nop 0"] * 12
    slot = s % 4
    wb = V_WB0 if hf == 0 else V_WB1
    L = []
    for tp in range(2):
        dst = (V_XT + 4 * tp) if hf == 0 else (V_XP + (s * 2 + tp) * 4)
        L.append("ds_read_b128 %s, v%d offset:%d" % (vr(dst, 4), V_XA + hf * 2 + tp, slot * XSLOT))
    for T in range(5):
        for rd in range(2):
            L.append("ds_read_b64_tr_b16 %s, v%d offset:%d" % (vr(wb + 4 * T + 2 * rd, 2), V_WA + hf * 5 + T, slot * WSLOT + rd * 1280))
    return L
def p1_mfmas(s, hf, first):
    if 'nomfma' in OPT: return ["s_nop 0"] * 10
    wb = V_WB0 if hf == 0 else V_WB1
    return [mfma16(V_ACC + (tp * 5 + T) * 4, (V_XT + 4 * tp) if hf == 0 else (V_XP + (s * 2 + tp) * 4), wb + 4 * T, "0" if first else None)
            for T in range(5) for tp in range(2)]
def p2_reads(u):
    v, seg = u >> 1, u & 1
    slot = (10 + v) % 4
    wb = V_WB0 if (u & 1) == 0 else V_WB1
    return ["ds_read_b64_tr_b16 %s, v%d offset:%d" % (vr(wb + 4 * T + 2 * rd, 2), V_WA2 + seg * 5 + T, slot * WSLOT + rd * 1280)
            for T in range(5) for rd in range(2)]
def p2_mfmas(u):
    wb = V_WB0 if (u & 1) == 0 else V_WB1
    return [mfma16(V_ACC2 + (tp * 5 + T) * 4, V_XP + (u * 2 + tp) * 4, wb + 4 * T, "0" if u == 0 else None)
            for T in range(5) for tp in range(2)]

def half(a, lq, mf, needs, reads, sched, extra):
    ids = []
    reads = list(reads)
    for i, m in enumerate(mf):
        lq.need(needs[i])
        a(m)
        for _ in range(sched[i]):
            if reads: ids.append(lq.issue(reads.pop(0)))
        if i in extra: emit(a, extra[i])
    while reads: ids.append(lq.issue(reads.pop(0)))
    return ids

def epi1_A(a):
    a("s_lshr_b32 s%d, s%d, 2" % (S_T0, S_G1))
    a("s_lshl_b32 s%d, s%d, 3" % (S_T0, S_T0))
    a("s_and_b32 s%d, s%d, 3" % (S_T1, S_G1))
    a("s_lshl_b32 s%d, s%d, 1" % (S_T1, S_T1))
    a("s_add_u32 s%d, s%d, s%d" % (S_T0, S_T0, S_T1))
    a("s_add_u32 s%d, s%d, s%d" % (S_T0, S_T0, S_CS))
    a("s_lshl_b32 s%d, s%d, 6" % (S_T0, S_T0))
    a("s_lshl_b32 s%d, s%d, 2" % (S_T1, S_R))
    a("s_add_u32 s%d, s%d, s%d" % (S_T0, S_T0, S_T1))
    a("s_add_u32 s%d, s%d, s%d" % (S_T0, S_T0, S_RG))
    a("s_mul_i32 s%d, s%d, 5120" % (S_T0, S_T0))
    a("s_add_u32 s%d, s%d, %d" % (S_T0, S_T0, WS_KV))
    a("s_add_u32 s%d, s%d, 4096" % (S_T1, S_T0))
    def pack(swap):
        def f(a):
            for T in range(5):
                e = V_ACC2 + T * 4
                for t in range(2):
                    tp = t ^ swap
                    d = V_ACC + (tp * 5 + T) * 4
                    a("v_cvt_pk_bf16_f32 v%d, v%d, v%d" % (e + 2 * t, d, d + 1))
                    a("v_cvt_pk_bf16_f32 v%d, v%d, v%d" % (e + 2 * t + 1, d + 2, d + 3))
                a("buffer_store_dwordx4 %s, v%d, s[%d:%d], s%d offen offset:%d %s" % (vr(e, 4), V_IMG, S_WS, S_WS + 3, S_T1 if T == 4 else S_T0, (T & 3) * 1024, ST))
                if 'dbl' in OPT:
                    a("buffer_store_dwordx4 %s, v%d, s[%d:%d], s%d offen offset:%d" % (vr(e, 4), V_IMG, S_WS, S_WS + 3, S_T1 if T == 4 else S_T0, (T & 3) * 1024))
        return f
    role_branch(a, pack(0), pack(1))
    a("s_nop 1")

def phi(a, regs, tmp):
    a("s_mov_b32 s%d, 0x%x" % (S_T4, f2u(LOG2E)))
    a("s_mov_b32 s%d, 0x%x" % (S_T5, f2u(LOG2E)))
    a("s_mov_b32 s%d, 0x%x" % (S_M2, f2u(1e-6)))
    a("s_mov_b32 s%d, 0x%x" % (S_M2 + 1, f2u(1e-6)))
    for i in range(0, len(regs), 4):
        g = regs[i:i + 4]
        assert g[0] % 2 == 0 and g[1] == g[0] + 1 and g[2] % 2 == 0 and g[3] == g[2] + 1
        for k in (0, 2): a("v_pk_mul_f32 %s, %s, s[%d:%d]" % (vr(tmp + k, 2), vr(g[k], 2), S_T4, S_T5))
        for k in range(4): a("v_exp_f32_e64 v%d, v%d clamp" % (tmp + k, tmp + k))
        for k in range(4): a("v_max_f32 v%d, 0, v%d" % (g[k], g[k]))
        for k in (0, 2): a("v_pk_add_f32 %s, %s, s[%d:%d]" % (vr(g[k], 2), vr(g[k], 2), S_M2, S_M2 + 1))
        for k in (0, 2): a("v_pk_add_f32 %s, %s, %s" % (vr(g[k], 2), vr(g[k], 2), vr(tmp + k, 2)))

def piece_decode(a):
    a("s_and_b32 s%d, s%d, 1" % (S_T0, S_WV))
    a("s_lshl_b32 s%d, s%d, 6" % (S_T0, S_T0))
    a("v_add_u32 v5, s%d, v%d" % (S_T0, V_LANE))
    a("s_movk_i32 s%d, 2731" % S_T1)
    a("v_mul_u32_u24 v6, s%d, v5" % S_T1)
    a("v_lshrrev_b32 v6, 16, v6")
    a("v_mul_u32_u24 v7, 24, v6")
    a("v_sub_u32 v7, v5, v7")

B_WR, B_RD, B_GO = V_ACC2 + 16, V_ACC2 + 17, V_ACC2 + 18
S_BM, S_BB = 90, 92
def epi1B_pre(a):
    M = V_ACC2 + 19
    a("s_mul_i32 s%d, s%d, 7168" % (S_T0, S_WV))
    a("v_lshlrev_b32 v4, 4, v%d" % V_LANE)
    a("v_add_u32 v%d, s%d, v4" % (B_WR, S_T0))
    piece_decode(a)
    a("s_lshr_b32 s%d, s%d, 1" % (S_T2, S_WV))
    a("s_and_b32 s%d, s%d, 1" % (S_T3, S_T2))
    a("s_lshr_b32 s%d, s%d, 1" % (S_T2, S_T2))
    a("s_lshl_b32 s%d, s%d, 2" % (S_T4, S_T3))
    a("s_sub_u32 s%d, s%d, 8" % (S_T4, S_T4))
    a("v_add_u32 v8, s%d, v7" % S_T4)
    a("v_cmp_gt_u32_e64 s[%d:%d], 20, v7" % (S_M0, S_M0 + 1))
    a("v_cmp_gt_u32_e64 s[%d:%d], 16, v7" % (S_M1, S_M1 + 1))
    a("v_cmp_gt_u32_e64 s[%d:%d], 4, v6" % (S_M2, S_M2 + 1))
    a("s_nop 1")
    a("v_cndmask_b32_e64 v8, 0, v8, s[%d:%d]" % (S_M0, S_M0 + 1))
    a("v_cndmask_b32_e64 v8, v8, v7, s[%d:%d]" % (S_M1, S_M1 + 1))
    a("v_mov_b32 v4, s%d" % S_T3)
    a("v_cndmask_b32_e64 v4, v4, v6, s[%d:%d]" % (S_M2, S_M2 + 1))
    a("v_lshl_add_u32 v8, v4, 4, v8")
    a("s_add_u32 s%d, s%d, 4" % (S_T4, S_T3))
    a("v_mov_b32 v4, s%d" % S_T4)
    a("v_mov_b32 v%d, s%d" % (M, S_T3))
    a("v_cndmask_b32_e64 v4, v4, v%d, s[%d:%d]" % (M, S_M2, S_M2 + 1))
    a("s_add_u32 s%d, s%d, 2" % (S_T4, S_T3))
    a("v_mov_b32 v%d, s%d" % (M, S_T4))
    a("v_cndmask_b32_e64 v%d, 6, v%d, s[%d:%d]" % (M, M, S_M2, S_M2 + 1))
    a("v_cndmask_b32_e64 v4, v%d, v4, s[%d:%d]" % (M, S_M1, S_M1 + 1))
    a("v_lshlrev_b32 v4, 10, v4")
    a("v_lshl_add_u32 v8, v8, 4, v4")
    a("s_mul_i32 s%d, s%d, %d" % (S_T4, S_T2, 4 * 7168))
    a("v_add_u32 v8, s%d, v8" % S_T4)
    a("v_cmp_gt_u32_e64 s[%d:%d], 21, v7" % (S_M0, S_M0 + 1))
    a("v_cmp_gt_u32_e64 s[%d:%d], 5, v6" % (S_M1, S_M1 + 1))
    a("v_min_u32 v%d, %d, v8" % (B_RD, 8 * 7168 - 3 * 7168 - 16))
    a("s_lshl_b32 s%d, s%d, 4" % (S_BB, S_G))
    a("s_add_u32 s%d, s%d, s%d" % (S_BB, S_BB, S_R))
    a("s_lshl_b32 s%d, s%d, 12" % (S_BB, S_BB))
    a("s_lshr_b32 s%d, s%d, 1" % (S_T1, S_WV))
    a("s_lshl_b32 s%d, s%d, 10" % (S_T1, S_T1))
    a("s_add_u32 s%d, s%d, s%d" % (S_BB, S_BB, S_T1))
    a("s_add_u32 s%d, s%d, %d" % (S_BB, S_BB, WS_PART))
    a("v_lshlrev_b32 v%d, 3, v5" % B_GO)
    a("s_and_b64 s[%d:%d], s[%d:%d], s[%d:%d]" % (S_BM, S_BM + 1, S_M0, S_M0 + 1, S_M1, S_M1 + 1))

def epi1_B(a):
    acc = lambda tp, T: V_ACC + (tp * 5 + T) * 4
    raw = V_WB0
    TMP = V_ACC2
    a("s_nop 7")
    for tp in range(2):
        for k in range(4): a("v_mov_b32 v%d, v%d" % (raw + tp * 4 + k, acc(tp, 4) + k))
    regs = []
    for T in (0, 1, 4):
        for tp in range(2): regs += [acc(tp, T) + k for k in range(4)]
    phi(a, regs, TMP)
    a("s_mov_b32 s%d, 0x00ff00ff" % S_M0)
    a("s_mov_b32 s%d, 0x00ff00ff" % (S_M0 + 1))
    for tp in range(2):
        for k in range(4):
            a("v_cndmask_b32_e64 v%d, v%d, v%d, s[%d:%d]" % (acc(tp, 4) + k, raw + tp * 4 + k, acc(tp, 4) + k, S_M0, S_M0 + 1))
    P = V_WB1
    for T in range(5):
        for tp in range(2):
            d = acc(tp, T)
            a("v_cvt_pk_bf16_f32 v%d, v%d, v%d" % (P + 4 * T + 2 * tp, d, d + 1))
            a("v_cvt_pk_bf16_f32 v%d, v%d, v%d" % (P + 4 * T + 2 * tp + 1, d + 2, d + 3))
    TB = V_WB0 + 8
    a("v_mov_b32 v%d, 0x3f803f80" % TMP)
    for k in range(4):
        a("v_cndmask_b32_e64 v%d, v%d, v%d, s[%d:%d]" % (TB + k, P + 16 + k, TMP, S_M0, S_M0 + 1))
    F0, F1, V0, V1, TA = P, P + 4, P + 8, P + 12, P + 16
    D = V_ACC
    for i, (x, y) in enumerate([(F0, V0), (F1, V1), (F0, TB), (F1, TB), (TA, V0), (TA, V1), (TA, TB)]):
        a(mfma16(D + 4 * i, x, y, "0"))
    a("s_barrier")
    a("s_nop 7")
    for i in range(7):
        a("ds_write_b128 v%d, %s offset:%d" % (B_WR, vr(D + 4 * i, 4), i * 1024))
    a("s_waitcnt lgkmcnt(0)")
    a("s_barrier")
    E = V_ACC
    for rg in range(4): a("ds_read_b128 %s, v%d offset:%d" % (vr(E + 4 * rg, 4), B_RD, rg * 7168))
    a("s_waitcnt lgkmcnt(0)")
    for k in (0, 2):
        a("v_pk_add_f32 %s, %s, %s" % (vr(E + k, 2), vr(E + k, 2), vr(E + 4 + k, 2)))
        a("v_pk_add_f32 %s, %s, %s" % (vr(E + 8 + k, 2), vr(E + 8 + k, 2), vr(E + 12 + k, 2)))
    for k in (0, 2): a("v_pk_add_f32 %s, %s, %s" % (vr(E + k, 2), vr(E + k, 2), vr(E + 8 + k, 2)))
    a("v_cvt_pk_bf16_f32 v%d, v%d, v%d" % (E, E, E + 1))
    a("v_cvt_pk_bf16_f32 v%d, v%d, v%d" % (E + 1, E + 2, E + 3))
    a("s_mov_b64 exec, s[%d:%d]" % (S_BM, S_BM + 1))
    a("buffer_store_dwordx2 %s, v%d, s[%d:%d], s%d offen %s" % (vr(E, 2), B_GO, S_WS, S_WS + 3, S_BB, ST))
    a("s_mov_b64 exec, -1")

LDS_Q = 143360
S_PM, S_PB = 80, 82
V_PO = 88
P_SUM = V_XP
def pre2(a):
    lb, ld = a.newlabel("p2b"), a.newlabel("p2d")
    a("s_cmp_eq_u32 s%d, 0" % S_BR)
    a("s_cbranch_scc0 %s" % lb)
    kv_params(a)
    a("v_and_b32 v7, 7, v%d" % V_LANE)
    a("v_lshrrev_b32 v8, 3, v%d" % V_LANE)
    a("v_and_b32 v9, 3, v8")
    a("v_lshrrev_b32 v8, 2, v8")
    a("v_lshlrev_b32 v8, 12, v8")
    a("v_lshlrev_b32 v9, 7, v9")
    a("v_sub_u32 v8, v8, v9")
    a("v_lshl_add_u32 v7, v7, 2, v8")
    a("s_and_b32 s%d, s%d, 4" % (S_T0, S_G))
    a("s_and_b32 s%d, s%d, 3" % (S_T1, S_G))
    a("s_lshr_b32 s%d, s%d, 1" % (S_T1, S_T1))
    a("s_add_u32 s%d, s%d, s%d" % (S_T0, S_T0, S_T1))
    a("s_lshl_b32 s%d, s%d, 4" % (S_T0, S_T0))
    a("s_add_u32 s%d, s%d, s%d" % (S_T0, S_T0, S_R))
    a("s_lshl_b32 s%d, s%d, 7" % (S_T0, S_T0))
    a("s_add_u32 s%d, s%d, %d" % (S_T0, S_T0, F_KV))
    a("v_add_u32 v7, s%d, v7" % S_T0)
    a("s_min_u32 s%d, s%d, 2" % (S_T1, S_R))
    a("s_lshl_b32 s%d, s%d, 3" % (S_T1, S_T1))
    a("s_lshl_b32 s%d, 0x100, s%d" % (S_T1, S_T1))
    a("s_sub_u32 s%d, s%d, 1" % (S_T1, S_T1))
    a("s_mov_b32 s%d, 0" % S_T2)
    poll(a, 7, S_T2, "s%d" % S_T1, "s%d" % S_T1)
    a("s_branch %s" % ld)
    a.label(lb)
    piece_decode(a)
    a("v_cmp_gt_u32_e64 s[%d:%d], 21, v7" % (S_M0, S_M0 + 1))
    a("v_cmp_gt_u32_e64 s[%d:%d], 5, v6" % (S_M1, S_M1 + 1))
    a("s_lshl_b32 s%d, s%d, 16" % (S_PB, S_G))
    a("s_lshr_b32 s%d, s%d, 1" % (S_T1, S_WV))
    a("s_lshl_b32 s%d, s%d, 10" % (S_T1, S_T1))
    a("s_add_u32 s%d, s%d, s%d" % (S_PB, S_PB, S_T1))
    a("s_add_u32 s%d, s%d, %d" % (S_PB, S_PB, WS_PART))
    a("v_lshlrev_b32 v%d, 3, v5" % V_PO)
    a("s_and_b64 s[%d:%d], s[%d:%d], s[%d:%d]" % (S_PM, S_PM + 1, S_M0, S_M0 + 1, S_M1, S_M1 + 1))
    a("v_and_b32 v7, 7, v%d" % V_LANE)
    a("v_lshrrev_b32 v8, 3, v%d" % V_LANE)
    a("v_lshlrev_b32 v8, 7, v8")
    a("v_lshl_add_u32 v7, v7, 2, v8")
    a("s_lshl_b32 s%d, s%d, 11" % (S_T0, S_G))
    a("s_add_u32 s%d, s%d, %d" % (S_T0, S_T0, F_PART))
    poll(a, 7, S_T0, "-1", "-1")
    a("s_add_u32 s%d, s%d, 1024" % (S_T0, S_T0))
    poll(a, 7, S_T0, "-1", "-1")
    a.label(ld)

def early_load(k):
    def f(a):
        lb, ld = a.newlabel("elb"), a.newlabel("eld")
        a("s_cmp_eq_u32 s%d, 0" % S_BR)
        a("s_cbranch_scc0 %s" % lb)
        kv_load(0, k)(a)
        a("s_branch %s" % ld)
        a.label(lb)
        a("s_mov_b64 exec, s[%d:%d]" % (S_PM, S_PM + 1))
        for r in (2 * k, 2 * k + 1):
            a("s_add_u32 s%d, s%d, %d" % (S_OFF, S_PB, r * 4096))
            a("buffer_load_dwordx2 %s, v%d, s[%d:%d], s%d offen %s" % (vr(P_SUM + 2 * r, 2), V_PO, S_WS, S_WS + 3, S_OFF, LD))
        a("s_mov_b64 exec, -1")
        a.label(ld)
    return f

def epi2(a):
    XCH = 102400
    pre2(a)
    stamp(a, "poll1")
    a("s_mul_i32 s%d, s%d, 5120" % (S_T0, S_WV))
    a("s_add_u32 s%d, s%d, %d" % (S_T0, S_T0, XCH))
    a("v_lshlrev_b32 v4, 4, v%d" % V_LANE)
    a("s_xor_b32 s%d, s%d, 4" % (S_T1, S_WV))
    a("v_add_u32 v5, s%d, v4" % S_T0)
    a("s_mul_i32 s%d, s%d, 5120" % (S_T1, S_T1))
    a("s_add_u32 s%d, s%d, %d" % (S_T1, S_T1, XCH))
    a("s_barrier")
    for T in range(5): a("ds_write_b128 v5, %s offset:%d" % (vr(V_ACC2 + (5 + T) * 4, 4), T * 1024))
    early_load(0)(a)
    a("v_add_u32 v5, s%d, v4" % S_T1)
    a("s_lshl_b32 s%d, s%d, 3" % (S_T1, S_CS))
    a("v_add_u32 v4, s%d, v%d" % (S_T1, V_IMG))
    a("s_mul_i32 s%d, s%d, 5120" % (S_T0, S_RG))
    a("s_add_u32 s%d, s%d, %d" % (S_T0, S_T0, LDS_Q))
    a("v_add_u32 v4, s%d, v4" % S_T0)
    a("s_waitcnt lgkmcnt(0)")
    a("s_barrier")
    R = V_WB0
    for T in range(5): a("ds_read_b128 %s, v5 offset:%d" % (vr(R + 4 * T, 4), T * 1024))
    early_load(1)(a)
    regs = [V_ACC2 + T * 4 + k for T in range(5) for k in range(4)]
    for T in range(5):
        a("s_waitcnt lgkmcnt(%d)" % (4 - T))
        for k in (0, 2):
            a("v_pk_add_f32 %s, %s, %s" % (vr(V_ACC2 + 4 * T + k, 2), vr(V_ACC2 + 4 * T + k, 2), vr(R + 4 * T + k, 2)))
    early_load(2)(a)
    lb, ld = a.newlabel("e2b"), a.newlabel("e2d")
    a("s_cmp_eq_u32 s%d, 0" % S_BR)
    a("s_cbranch_scc0 %s" % lb)
    a("s_mov_b32 s%d, 0x%x" % (S_T2, f2u(QSCALE)))
    a("s_mov_b32 s%d, 0x%x" % (S_T3, f2u(QSCALE)))
    for k in range(0, 20, 2): a("v_pk_mul_f32 %s, %s, s[%d:%d]" % (vr(V_ACC2 + k, 2), vr(V_ACC2 + k, 2), S_T2, S_T3))
    a("s_branch %s" % ld)
    a.label(lb)
    for gi in range(5):
        phi(a, regs[4 * gi:4 * gi + 4], V_ACC)
        if gi in (0, 2, 4): early_load_B(3 + gi // 2)(a)
    a.label(ld)
    for T in range(5):
        d = V_ACC2 + T * 4
        a("v_cvt_pk_bf16_f32 v%d, v%d, v%d" % (R + 2 * T, d, d + 1))
        a("v_cvt_pk_bf16_f32 v%d, v%d, v%d" % (R + 2 * T + 1, d + 2, d + 3))
        a("ds_write_b64 v4, %s offset:%d" % (vr(R + 2 * T, 2), T * 1024))
        if T in (0, 2, 4): early_load_A(3 + T // 2)(a)
    early_load(6)(a)

def early_load_A(k):
    def f(a):
        l = a.newlabel("ela")
        a("s_cmp_eq_u32 s%d, 0" % S_BR)
        a("s_cbranch_scc0 %s" % l)
        kv_load(0, k)(a)
        a.label(l)
    return f
def early_load_B(k):
    def f(a):
        a("s_mov_b64 exec, s[%d:%d]" % (S_PM, S_PM + 1))
        for r in (2 * k, 2 * k + 1):
            a("s_add_u32 s%d, s%d, %d" % (S_OFF, S_PB, r * 4096))
            a("buffer_load_dwordx2 %s, v%d, s[%d:%d], s%d offen %s" % (vr(P_SUM + 2 * r, 2), V_PO, S_WS, S_WS + 3, S_OFF, LD))
        a("s_mov_b64 exec, -1")
    return f

def vm_wait_roles(a, nw, nx):
    if nw == nx: a("s_waitcnt vmcnt(%d)" % nw)
    else: role_branch(a, "s_waitcnt vmcnt(%d)" % nw, "s_waitcnt vmcnt(%d)" % nx)

def publish(a, s_off, wave=0):
    def body(a):
        a("v_mov_b32 v4, s%d" % S_NONCE)
        a("v_mov_b32 v5, 0")
        a("s_mov_b64 exec, 1")
        a("buffer_store_dword v4, v5, s[%d:%d], s%d offen sc0 sc1" % (S_WS, S_WS + 3, s_off))
        a("s_mov_b64 exec, -1")
    if wave is None: body(a)
    else: on_wave(a, wave, body)

def poll(a, voff, s_off, mask_lo, mask_hi):
    def body(a):
        lp, ld = a.newlabel("pp"), a.newlabel("pd")
        a("s_mov_b32 exec_lo, %s" % mask_lo)
        a("s_mov_b32 exec_hi, %s" % mask_hi)
        a("s_mov_b32 s%d, 0" % S_T5)
        a.label(lp)
        a("buffer_load_dword v6, v%d, s[%d:%d], s%d offen sc1" % (voff, S_WS, S_WS + 3, s_off))
        a("s_waitcnt vmcnt(0)")
        a("v_cmp_ne_u32_e64 s[%d:%d], s%d, v6" % (S_M0, S_M0 + 1, S_NONCE))
        a("s_add_u32 s%d, s%d, 1" % (S_T5, S_T5))
        a("s_nop 1")
        a("s_cmp_eq_u64 s[%d:%d], 0" % (S_M0, S_M0 + 1))
        a("s_cbranch_scc1 %s" % ld)
        if 'nosleep' not in OPT: a("s_sleep 1")
        a("s_cmp_lt_u32 s%d, %d" % (S_T5, SPIN_LIMIT))
        a("s_cbranch_scc1 %s" % lp)
        a.label(ld)
        a("s_mov_b64 exec, -1")
    on_wave(a, 0, body)

def wo_pf_setup(a, v):
    a("v_mul_u32_u24 v4, 52, v%d" % V_LANE); a("v_lshrrev_b32 v4, 8, v4")
    a("v_mul_u32_u24 v5, 5, v4"); a("v_sub_u32 v5, v%d, v5" % V_LANE)
    a("s_mul_i32 s%d, s%d, 20" % (S_T0, S_I))
    a("v_add_u32 v4, s%d, v4" % S_T0)
    a("s_movk_i32 s%d, 1280" % S_T1)
    a("v_mul_u32_u24 v4, s%d, v4" % S_T1)
    a("v_lshl_add_u32 v4, v5, 7, v4")
    a("s_lshr_b32 s%d, s%d, 2" % (S_T0, S_G))
    a("s_mul_i32 s%d, s%d, 640" % (S_T0, S_T0))
    a("v_add_u32 v%d, s%d, v4" % (v, S_T0))
assert all((l * 52) >> 8 == l // 5 for l in range(64))

def wo_pf_issue(a, v, srd_):
    a("buffer_load_dword v%d, v%d, s[%d:%d], 0 offen %s" % (V_PFD, v, srd_, srd_ + 3, PFL))
    a("s_mov_b32 s%d, %d" % (S_OFF, 12 * 1280))
    a("buffer_load_dword v%d, v%d, s[%d:%d], s%d offen %s" % (V_PFD, v, srd_, srd_ + 3, S_OFF, PFL))

def phase1(a):
    dma_setup(a)
    if 'pf0first' in OPT: dma_setup2(a)
    stamp(a, "dset")
    entry_srd(a)
    stamp(a, "karg")
    if 'pf0first' in OPT:
        emit(a, [pf('x', 0, 0), pf('w', 0, 0)])
        emit(a, [dma(0, j) for j in range(5)])
        emit(a, [pf('x', 1, 1), pf('w', 1, 1)])
    else:
        emit(a, [dma(0, j) for j in range(5)])
        dma_setup2(a)
        emit(a, [pf('x', 0, 0), pf('w', 0, 0), pf('x', 1, 1), pf('w', 1, 1)])
    entry_srd2(a)
    stamp(a, "g0")
    addr1_setup(a)
    emit(a, [dma(1, j) for j in range(5)])
    emit(a, [pf('x', 2, 2), pf('w', 2, 2)])
    a("v_mov_b32 v8, 0")
    a("s_mov_b32 s%d, %d" % (S_OFF, WS_FLAG))
    a("buffer_load_dword v9, v8, s[%d:%d], s%d offen sc1" % (S_WS, S_WS + 3, S_OFF))
    stamp(a, "g1")
    vm_wait_roles(a, 6, 5)
    stamp(a, "g0land")
    a("s_barrier")
    stamp(a, "t0")
    lq = LQ(a)
    cur = [lq.issue(x) for x in p1_reads(0, 0)]
    SCH = {'e': [2, 1, 1, 1, 1, 2, 1, 1, 1, 1], 'f': [2, 2, 2, 2, 2, 2, 0, 0, 0, 0], 'm': [2, 2, 1, 1, 1, 1, 1, 1, 1, 1], 'g': [2, 2, 2, 1, 1, 1, 1, 1, 1, 0]}[SCHED]
    needs12 = lambda ids: [ids[2 + 2 * (i // 2) + 1] for i in range(10)]
    needs10 = lambda ids: [ids[2 * (i // 2) + 1] for i in range(10)]
    for s in range(10):
        ex0 = {}
        if s >= 1: ex0 = {2: dma(s + 2, 3), 6: dma(s + 2, 4)}
        if s == 0: ex0 = {0: dma(2, 0), 2: dma(2, 1), 4: dma(2, 2), 6: dma(2, 3), 8: dma(2, 4)}
        if s == 7:
            lines = rec(epi1B_pre)
            for k_, pos in enumerate((0, 1, 3, 4, 5, 7, 8, 9)):
                ex0[pos] = [ex0.get(pos), lines[k_ * len(lines) // 8:(k_ + 1) * len(lines) // 8]]
        if s == 5:
            lines = rec(addr2_setup)
            for k_, pos in enumerate((1, 3, 4, 5, 7, 8, 9)):
                ex0[pos] = [ex0.get(pos), lines[k_ * len(lines) // 7:(k_ + 1) * len(lines) // 7]]
        nxt = half(a, lq, p1_mfmas(s, 0, s == 0), needs12(cur), p1_reads(s, 1), SCH, ex0)
        if s == 0: vm_wait_roles(a, 6, 5)
        elif s == 8: vm_wait_roles(a, 5, 0)
        elif s == 9: a("s_waitcnt vmcnt(5)")
        else: vm_wait_roles(a, 5, 4)
        a("s_barrier")
        stamp(a, "s%d" % s)
        if s == 2:
            a("v_readfirstlane_b32 s%d, v9" % S_NONCE)
            a("s_nop 3")
            a("s_add_u32 s%d, s%d, 0x9e3779b9" % (S_NONCE, S_NONCE))
        pfl = []
        if s == 0: pfl = [pf('x', 3, 3), pf('w', 3, 3)]
        if s == 2: pfl = [pf('x', 4, 0), pf('w', 4, 0)]
        if s == 3: pfl = [lambda a: wo_pf_setup(a, V_PF)]
        def wopf_own(a):
            if 'nopf' in OPT: return
            def body(a):
                l, l2 = a.newlabel("wpf"), a.newlabel("wpf2")
                a("s_cmp_eq_u32 s%d, 0" % S_BR)
                a("s_cbranch_scc1 %s" % l)
                wo_pf_issue(a, V_PF, S_WOB)
                a("s_branch %s" % l2)
                a.label(l)
                wo_pf_issue(a, V_PF, S_WO)
                a.label(l2)
            on_wave(a, 5, body)
        if s == 4: pfl = [pf('q', 0, 1), wopf_own]
        if s == 5: pfl = [pf('q', 1, 2)]
        if s == 6: pfl = [pf('q', 2, 3)]
        ex1 = {1: dma(s + 3, 0), 4: dma(s + 3, 1), 7: dma(s + 3, 2), 9: pfl}
        if s == 9: ex1 = {1: dma(12, 0), 3: dma(12, 1), 5: dma(12, 2), 7: dma(12, 3), 9: dma(12, 4)}
        rd = p1_reads(s + 1, 0) if s < 9 else p2_reads(0)
        cur = half(a, lq, p1_mfmas(s, 1, False), needs12(nxt), rd, SCH, ex1)
    stamp(a, "p1end")
    lb, ld = a.newlabel("e1b"), a.newlabel("e1d")
    a("s_cmp_eq_u32 s%d, 0" % S_BR)
    a("s_cbranch_scc0 %s" % lb)
    epi1_A(a)
    a("s_branch %s" % ld)
    a.label(lb)
    a("s_waitcnt lgkmcnt(0)")
    epi1_B(a)
    emit(a, p2_reads(0))
    a.label(ld)
    stamp(a, "e1end")
    p3_dma_setup(a)
    S_WBF, S_WB1, S_WB2 = S_SOFF, S_STEP, S_J + 1
    a("s_and_b32 s%d, s%d, s%d" % (S_WBF, S_BR, S_CS))
    a("s_mul_i32 s%d, s%d, %d" % (S_WB1, S_RG, 3 * 5120))
    a("s_mul_i32 s%d, s%d, %d" % (S_WB2, S_RG, 3 * 32 * 1280))
    def wob(q):
        def f(a):
            l = a.newlabel("wob")
            a("s_cmp_eq_u32 s%d, 0" % S_WBF)
            a("s_cbranch_scc1 %s" % l)
            a("s_add_u32 m0, s%d, %d" % (S_WB1, (q // 5) * 5120 + (q % 5) * 1024))
            a("s_add_u32 s%d, s%d, %d" % (S_OFF, S_WB2, (q // 5) * 32 * 1280))
            a("buffer_load_dwordx4 v%d, s[%d:%d], s%d offen %s lds" % (C_DMA + q % 5, S_WOB, S_WOB + 3, S_OFF, DML))
            a.label(l)
        return f
    WOB_N = [2, 1, 2, 1, 2, 1, 2, 1, 2, 1]
    WOB_BEFORE0 = lambda u: 0
    PUBD = 1 if 'pub1' in OPT else 0
    def wopf(a):
        if 'nopf' in OPT: return
        def body(a):
            l = a.newlabel("wpf")
            a("s_cmp_eq_u32 s%d, 0" % S_BR)
            a("s_cbranch_scc1 %s" % l)
            wo_pf_issue(a, V_PF, S_WO)
            a.label(l)
        on_wave(a, 1, body)
    a("s_waitcnt lgkmcnt(0)")
    lq = LQ(a)
    cur = None
    SCH2 = {'e': [1] * 10, 'f': [2, 2, 2, 2, 2, 0, 0, 0, 0, 0], 'm': [2, 1, 1, 1, 1, 1, 1, 1, 1, 0], 'g': [2, 2, 1, 1, 1, 1, 1, 1, 0, 0]}[SCHED]
    for u in range(10):
        extra = {}
        rd = []
        if u + 1 < 10:
            if (u + 1) % 2 == 0:
                nx = 10 + (u + 1) // 2
                def by_branch(na, nb):
                    def f(a):
                        lB, lD = a.newlabel("wb"), a.newlabel("wd")
                        a("s_cmp_eq_u32 s%d, 0" % S_BR)
                        a("s_cbranch_scc0 %s" % lB)
                        a("s_waitcnt vmcnt(%d)" % na)
                        a("s_branch %s" % lD)
                        a.label(lB)
                        a("s_waitcnt vmcnt(%d)" % nb)
                        a.label(lD)
                    return f
                if nx == 13: role_branch(a, "s_waitcnt vmcnt(5)", None)
                elif nx == 14: role_branch(a, "s_waitcnt vmcnt(0)", None)
                else: role_branch(a, by_branch(5 + (10 if 'dbl' in OPT else 5), 6), None)
                a("s_barrier")
                if 13 <= nx + 2 <= 14: extra = {1: dma(nx + 2, 0), 3: dma(nx + 2, 1), 5: dma(nx + 2, 2), 7: dma(nx + 2, 3), 9: dma(nx + 2, 4)}
                if nx == 12 + PUBD:
                    def pub(a):
                        role_branch(a, "s_waitcnt vmcnt(%d)" % (5 if PUBD == 0 else 5), by_branch(0, sum(WOB_N[:u]) + (1 if WOB_N[u] > 1 else 1) * 0 + WOB_BEFORE0(u)))
                        a("s_lshl_b32 s%d, s%d, 4" % (S_T0, S_G))
                        a("s_add_u32 s%d, s%d, s%d" % (S_T0, S_T0, S_R))
                        a("s_lshl_b32 s%d, s%d, 5" % (S_T0, S_T0))
                        a("s_add_u32 s%d, s%d, s%d" % (S_T0, S_T0, S_WV))
                        a("s_lshl_b32 s%d, s%d, 2" % (S_T0, S_T0))
                        a("s_mul_i32 s%d, s%d, %d" % (S_T1, S_BR, F_PART - F_KV))
                        a("s_add_u32 s%d, s%d, s%d" % (S_T0, S_T0, S_T1))
                        a("s_add_u32 s%d, s%d, %d" % (S_T0, S_T0, F_KV))
                        publish(a, S_T0, None)
                    extra[0] = [pub]
            rd = p2_reads(u + 1)
        if u == 8: extra[3] = [wopf]
        def spread(lines, positions):
            n = len(positions)
            for k_, pos in enumerate(positions):
                extra[pos] = [extra.get(pos), lines[k_ * len(lines) // n:(k_ + 1) * len(lines) // n]]
        if u == 6: spread(rec(setup_q), (0, 1, 3, 4, 5, 7, 8, 9))
        if u == 7:
            extra[1] = [extra.get(1), on_A(lambda a: setup_k(a))]
            extra[5] = [extra.get(5), on_A(lambda a: setup_v(a))]
        if u == 8: spread(rec(setup_o), (0, 1, 4, 5, 7, 8, 9))
        q0 = sum(WOB_N[:u])
        for n_ in range(WOB_N[u]):
            pos = (2, 6)[n_]
            extra[pos] = [extra.get(pos), wob(q0 + n_)]
        needs = needs10(cur) if cur else [0] * 10
        cur = half(a, lq, p2_mfmas(u), needs, rd, SCH2, extra)
    a("s_nop 4")
    stamp(a, "p2end")
    epi2(a)
    stamp(a, "e2end")

LDS_K, LDS_V = 0, 65536
LDS_KVR = 135168
A_KA0, A_KA1, A_KAT, A_VA0, A_VA1, A_QA0, A_QA1, A_QAT, A_OM, A_OT = 10, 11, 12, 13, 14, 15, 16, 17, 18, 19
A_AM, A_Q1, A_Q2, A_KB, A_VB, A_S, A_O = 20, 32, 36, 40, 64, 96, 240
S_TAU0 = S_U
S_EXV, S_HI, S_LO = 62, 64, 66
NEG_BIG = f2u(-3.0e38)
S_KV0, S_KV1, S_KV2 = 20, 21, 22
A_L16 = 88

def jkey(r, h):
    m, b, e = r >> 3, (r >> 2) & 1, r & 3
    return 16 * b + 8 * m + 4 * h + e
def diag_mask(r):
    return (sum(1 << i for i in range(32) if jkey(r, 0) <= i), sum(1 << i for i in range(32) if jkey(r, 1) <= i))

def _p2_addr(a, dst, n, kgimg, tbit, sbase, extra):
    a("v_lshl_add_u32 v9, v%d, 2, v%d" % (kgimg, n))
    a("v_and_b32 v9, 15, v9")
    a("v_lshl_add_u32 v9, v%d, 4, v9" % kgimg)
    a("v_lshlrev_b32 v9, 4, v9")
    a("v_lshl_add_u32 v9, v%d, 3, v9" % tbit)
    a("s_add_u32 s%d, s%d, %d" % (S_T5, sbase, extra))
    a("v_add_u32 v%d, s%d, v9" % (dst, S_T5))

def setup_q(a):
    a("v_and_b32 v4, 1, v%d" % V_KG)
    a("v_lshrrev_b32 v5, 1, v%d" % V_KG)
    a("v_lshrrev_b32 v6, 2, v%d" % V_N)
    a("v_and_b32 v7, 3, v%d" % V_N)
    a("s_and_b32 s%d, s%d, 3" % (S_T0, S_WV))
    a("s_lshr_b32 s%d, s%d, 2" % (S_T1, S_WV))
    a("s_mul_i32 s%d, s%d, 5120" % (S_T1, S_T1))
    a("s_lshl_b32 s%d, s%d, 10" % (S_T2, S_T0))
    a("s_add_u32 s%d, s%d, s%d" % (S_T2, S_T2, S_T1))
    a("s_add_u32 s%d, s%d, 4096" % (S_T3, S_T1))
    a("s_lshl_b32 s%d, s%d, 2" % (S_T4, S_T0))
    a("v_lshl_add_u32 v8, v5, 3, v6")
    _p2_addr(a, A_QA0, 8, 7, 4, S_T2, LDS_Q)
    a("v_add_u32 v30, 4, v8")
    _p2_addr(a, A_QA1, 30, 7, 4, S_T2, LDS_Q)
    a("v_add_u32 v31, s%d, v6" % S_T4)
    _p2_addr(a, A_QAT, 31, 7, 4, S_T3, LDS_Q)

def setup_k(a):
    a("v_and_b32 v28, 1, v7")
    a("v_lshl_add_u32 v28, v4, 1, v28")
    a("v_lshrrev_b32 v29, 1, v7")
    _p2_addr(a, A_KA0, 8, 28, 29, S_T2, LDS_K)
    _p2_addr(a, A_KA1, 30, 28, 29, S_T2, LDS_K)
    _p2_addr(a, A_KAT, 31, 28, 29, S_T3, LDS_K)

def setup_v(a):
    a("v_and_b32 v4, 31, v%d" % V_LANE)
    a("v_lshrrev_b32 v5, 5, v%d" % V_LANE)
    a("v_cmp_gt_u32_e64 s[%d:%d], 16, v4" % (S_M0, S_M0 + 1))
    a("s_sub_u32 s%d, s%d, 16" % (S_T5, S_T4))
    a("v_add_u32 v6, s%d, v4" % S_T5)
    a("v_and_b32 v6, 15, v6")
    a("v_cndmask_b32_e64 v6, v6, v4, s[%d:%d]" % (S_M0, S_M0 + 1))
    a("v_mov_b32 v7, s%d" % S_T3)
    a("v_mov_b32 v8, s%d" % S_T2)
    a("v_cndmask_b32_e64 v7, v7, v8, s[%d:%d]" % (S_M0, S_M0 + 1))
    for m in range(2):
        a("v_add_u32 v8, %d, v5" % (2 * m))
        a("v_lshl_add_u32 v9, v8, 2, v6")
        a("v_and_b32 v9, 15, v9")
        a("v_lshl_add_u32 v9, v8, 4, v9")
        a("v_lshl_add_u32 v9, v9, 4, v7")
        a("v_add_u32 v%d, %d, v9" % (A_VA0 + m, LDS_V))

def setup_o(a):
    a("v_and_b32 v4, 31, v%d" % V_LANE)
    a("v_lshrrev_b32 v5, 5, v%d" % V_LANE)
    a("s_and_b32 s%d, s%d, 3" % (S_T0, S_WV))
    a("s_lshl_b32 s%d, s%d, 2" % (S_T1, S_G))
    a("s_add_u32 s%d, s%d, s%d" % (S_T1, S_T1, S_T0))
    a("s_lshl_b32 s%d, s%d, 3" % (S_T2, S_R))
    a("s_lshr_b32 s%d, s%d, 2" % (S_T3, S_WV))
    a("s_lshl_b32 s%d, s%d, 1" % (S_T3, S_T3))
    a("s_add_u32 s%d, s%d, s%d" % (S_T2, S_T2, S_T3))
    a("s_mul_i32 s%d, s%d, 20480" % (S_T2, S_T2))
    a("s_mul_i32 s%d, s%d, %d" % (S_T3, S_BR, O_BR))
    a("s_add_u32 s%d, s%d, s%d" % (S_T2, S_T2, S_T3))
    a("s_add_u32 s%d, s%d, %d" % (S_T2, S_T2, WS_O))
    a("v_lshrrev_b32 v6, 4, v4")
    a("s_movk_i32 s%d, 20480" % S_T3)
    a("v_mul_u32_u24 v6, s%d, v6" % S_T3)
    a("v_and_b32 v7, 15, v4")
    a("v_lshl_add_u32 v6, v7, 4, v6")
    a("v_add_u32 v6, s%d, v6" % S_T2)
    a("s_lshr_b32 s%d, s%d, 1" % (S_T3, S_T1))
    a("s_lshl_b32 s%d, s%d, 10" % (S_T3, S_T3))
    a("s_and_b32 s%d, s%d, 1" % (S_T4, S_T1))
    a("s_lshl_b32 s%d, s%d, 9" % (S_T4, S_T4))
    a("s_add_u32 s%d, s%d, s%d" % (S_T3, S_T3, S_T4))
    a("v_lshl_add_u32 v7, v5, 8, v6")
    a("v_add_u32 v%d, s%d, v7" % (A_OM, S_T3))
    a("s_lshr_b32 s%d, s%d, 3" % (S_T3, S_T1))
    a("s_add_u32 s%d, s%d, 16" % (S_T3, S_T3))
    a("s_lshl_b32 s%d, s%d, 10" % (S_T3, S_T3))
    a("s_and_b32 s%d, s%d, 6" % (S_T4, S_T1))
    a("s_lshl_b32 s%d, s%d, 7" % (S_T4, S_T4))
    a("s_add_u32 s%d, s%d, s%d" % (S_T3, S_T3, S_T4))
    a("s_and_b32 s%d, s%d, 1" % (S_T4, S_T1))
    a("s_lshl_b32 s%d, s%d, 3" % (S_T4, S_T4))
    a("s_add_u32 s%d, s%d, s%d" % (S_T3, S_T3, S_T4))
    a("v_add_u32 v%d, s%d, v6" % (A_OT, S_T3))

def set_hilo(a):
    a("s_mov_b32 s%d, 0" % S_HI); a("s_mov_b32 s%d, -1" % (S_HI + 1))
    a("s_mov_b32 s%d, -1" % S_LO); a("s_mov_b32 s%d, 0" % (S_LO + 1))

def on_A(f):
    def g(a):
        l = a.newlabel("oa")
        a("s_cmp_eq_u32 s%d, 0" % S_BR)
        a("s_cbranch_scc0 %s" % l)
        emit(a, f)
        a.label(l)
    return g

def q_frag_reads():
    return ["ds_read_b64_tr_b16 %s, v%d" % (vr(A_Q1, 2), A_QA0),
            "ds_read_b64_tr_b16 %s, v%d" % (vr(A_Q1 + 2, 2), A_QA1),
            "ds_read_b64_tr_b16 %s, v%d" % (vr(A_Q2, 2), A_QAT)]
def q_frag_fix(a):
    a("v_cndmask_b32_e64 v%d, v%d, 0, s[%d:%d]" % (A_Q2, A_Q2, S_HI, S_HI + 1))
    a("v_cndmask_b32_e64 v%d, v%d, 0, s[%d:%d]" % (A_Q2 + 1, A_Q2 + 1, S_HI, S_HI + 1))

def o_epilogue(a, eps=False):
    O = A_O
    a("v_cndmask_b32_e64 v30, v%d, v%d, s[%d:%d]" % (O + 12, O + 8, S_HI, S_HI + 1))
    if eps: a("v_add_f32 v30, 0x%x, v30" % f2u(1e-6))
    a("v_rcp_f32 v30, v30")
    a("s_nop 0")
    for k in range(0, 12, 2):
        a("v_pk_mul_f32 %s, %s, v[30:31] op_sel_hi:[1,0]" % (vr(O + k, 2), vr(O + k, 2)))
    for k in range(6): a("v_cvt_pk_bf16_f32 v%d, v%d, v%d" % (O + k, O + 2 * k, O + 2 * k + 1))
    for fl in ([ST, ""] if 'dbl' in OPT else [ST]):
        a("buffer_store_dwordx4 %s, v%d, s[%d:%d], 0 offen %s" % (vr(O, 4), A_OM, S_WS, S_WS + 3, fl))
        a("s_mov_b64 exec, s[%d:%d]" % (S_LO, S_LO + 1))
        a("buffer_store_dwordx2 %s, v%d, s[%d:%d], 0 offen %s" % (vr(O + 4, 2), A_OT, S_WS, S_WS + 3, fl))
        a("s_mov_b64 exec, -1")

def attn_setup(a):
    set_hilo(a)
    for r in range(16):
        lo, hi = diag_mask(r)
        a("s_mov_b32 s%d, 0x%x" % (S_MASK + 2 * r, lo)); a("s_mov_b32 s%d, 0x%x" % (S_MASK + 2 * r + 1, hi))
    a("v_mov_b32 v30, 0xffff")
    a("v_mov_b32 v31, 0xffff0000")
    for k in range(8):
        a("v_cndmask_b32_e64 v4, 0, v30, s[%d:%d]" % (S_MASK + 4 * k, S_MASK + 4 * k + 1))
        a("v_cndmask_b32_e64 v5, 0, v31, s[%d:%d]" % (S_MASK + 4 * k + 2, S_MASK + 4 * k + 3))
        a("v_or_b32 v%d, v4, v5" % (A_AM + k))
    a("v_mov_b32 v4, 0x3f803f80")
    for k in range(24): a("v_mov_b32 v%d, v4" % (A_VB + k))
    for b in range(3):
        a("v_mov_b32 v%d, 0" % (A_KB + 8 * b + 6)); a("v_mov_b32 v%d, 0" % (A_KB + 8 * b + 7))
    a("v_mov_b32 v%d, 0" % (A_Q2 + 2)); a("v_mov_b32 v%d, 0" % (A_Q2 + 3))
    a("s_mov_b32 s%d, 0x000fffff" % S_EXV); a("s_mov_b32 s%d, 0x000fffff" % (S_EXV + 1))

def k_reads(tau, buf):
    b = A_KB + 8 * buf
    return ["ds_read_b64_tr_b16 %s, v%d offset:%d" % (vr(b, 2), A_KA0, tau * 5120),
            "ds_read_b64_tr_b16 %s, v%d offset:%d" % (vr(b + 2, 2), A_KA1, tau * 5120),
            "ds_read_b64_tr_b16 %s, v%d offset:%d" % (vr(b + 4, 2), A_KAT, tau * 5120)]
def v_reads(tau, buf):
    b = A_VB + 8 * buf
    return ["s_mov_b64 exec, s[%d:%d]" % (S_EXV, S_EXV + 1),
            "ds_read_b128 %s, v%d offset:%d" % (vr(b, 4), A_VA0, tau * 5120),
            "ds_read_b128 %s, v%d offset:%d" % (vr(b + 4, 4), A_VA1, tau * 5120),
            "s_mov_b64 exec, -1"]

TAG = ''
PUB0_AT = 6
def attn_unit(a, stubs, mid, qk_extra, late_v=None, pre_epi=None):
    S = lambda t: A_S + 16 * t
    order = [8, 0, 1, 2, 3, 4, 5, 6, 7]
    emit(a, q_frag_reads())
    emit(a, k_reads(order[0], 0)); emit(a, k_reads(order[1], 1))
    a("s_waitcnt lgkmcnt(6)")
    q_frag_fix(a)
    accs = [28, 29, 30, 31]
    acc_init = [False] * 4
    def max_ops(base):
        L = []
        for k in range(0, 16, 2):
            ai = (k // 2) % 4
            if not acc_init[ai]:
                L.append("v_max_f32 v%d, v%d, v%d" % (accs[ai], base + k, base + k + 1)); acc_init[ai] = True
            else:
                L.append("v_max3_f32 v%d, v%d, v%d, v%d" % (accs[ai], base + k, base + k + 1, accs[ai]))
        return L
    merge = ["v_cndmask_b32_e64 v%d, v%d, v%d, s[%d:%d]" % (S(0) + r, S(0) + r, S(8) + r, S_MASK + 2 * r, S_MASK + 2 * r + 1) for r in range(16)]
    for idx, tau in enumerate(order):
        buf = idx % 3
        if idx + 2 < 9: emit(a, k_reads(order[idx + 2], (idx + 2) % 3))
        a("s_waitcnt lgkmcnt(%d)" % (3 * min(2, 8 - idx)))
        kb = A_KB + 8 * buf
        if tau < 8:
            lf, lr = a.newlabel("fill"), a.newlabel("fret")
            a("s_cmp_gt_u32 s%d, %d" % (S_TAU0, tau))
            a("s_cbranch_scc1 %s" % lf)
            stubs.append((lf, lr, S(tau)))
        work = []
        if idx == 3: work = merge[:]
        if idx == 4: work = max_ops(S(0))
        if idx >= 5: work = max_ops(S(order[idx - 3]))
        hw = len(work) // 2
        a(mfma32(S(tau), kb, A_Q1, "0"))
        if tau < 8 and 'oldqk' not in OPT:
            a.label(lr)
            emit(a, work[:hw])
            l2 = a.newlabel("tl")
            a("s_cmp_gt_u32 s%d, %d" % (S_TAU0, tau))
            a("s_cbranch_scc1 %s" % l2)
            a(mfma32(S(tau), kb + 4, A_Q2))
            a.label(l2)
        else:
            emit(a, work[:hw])
            a(mfma32(S(tau), kb + 4, A_Q2))
            if tau < 8: a.label(lr)
        emit(a, qk_extra.get(idx))
        emit(a, work[hw:])
    stamp(a, "qk" + TAG)
    emit(a, max_ops(S(5)))
    emit(a, max_ops(S(6)))
    emit(a, mid)
    if late_v is None:
        emit(a, v_reads(8, 0)); emit(a, v_reads(0, 1))
    emit(a, max_ops(S(7)))
    a("v_max3_f32 v28, v28, v29, v30")
    a("v_max_f32 v28, v28, v31")
    a("v_mov_b32 v29, v28")
    a("s_nop 1")
    a("v_permlane32_swap_b32 v28, v29")
    a("s_nop 1")
    a("v_max_f32 v28, v28, v29")
    def sm_ops(base, mf=()):
        L = ["v_pk_add_f32 %s, %s, v[28:29] op_sel_hi:[1,0] neg_lo:[0,1] neg_hi:[0,1]" % (vr(base + k, 2), vr(base + k, 2)) for k in range(0, 16, 2)]
        E = ["v_exp_f32 v%d, v%d" % (base + k, base + k) for k in range(16)]
        C = ["v_cvt_pk_bf16_f32 v%d, v%d, v%d" % (base + k, base + 2 * k, base + 2 * k + 1) for k in range(8)]
        out = list(L)
        m = len(mf)
        pos = {2: [1, 9], 4: [0, 4, 8, 12], 0: []}[m]
        for k, e in enumerate(E):
            out.append(e)
            if k in pos: out.append(mf[pos.index(k)])
        return out + C
    stamp(a, "mx" + TAG)
    emit(a, sm_ops(S(0)))
    if late_v is not None:
        emit(a, late_v)
        emit(a, v_reads(8, 0)); emit(a, v_reads(0, 1))
    for k in range(8): a("v_and_b32 v%d, v%d, v%d" % (S(0) + 8 + k, S(0) + k, A_AM + k))
    for k in range(8): a("v_xor_b32 v%d, v%d, v%d" % (S(0) + k, S(0) + k, S(0) + 8 + k))
    a("s_waitcnt lgkmcnt(0)")
    emit(a, v_reads(1, 2))
    pv = [mfma32(A_O, A_VB + 0, S(0) + 8, "0"), mfma32(A_O, A_VB + 4, S(0) + 12),
          mfma32(A_O, A_VB + 8, S(0)), mfma32(A_O, A_VB + 12, S(0) + 4)]
    for tau in range(1, 8):
        vb = (tau + 1) % 3
        emit(a, sm_ops(S(tau), pv))
        a("s_waitcnt lgkmcnt(0)")
        if tau + 1 < 8: emit(a, v_reads(tau + 1, (tau + 2) % 3))
        b = A_VB + 8 * vb
        pv = [mfma32(A_O, b, S(tau)), mfma32(A_O, b + 4, S(tau) + 4)]
    a("s_nop 1")
    emit(a, pv)
    if pre_epi: emit(a, pre_epi)
    a("s_nop 15")
    o_epilogue(a)

def round_advance(a, attn=True):
    for v in ((A_KA0, A_KA1, A_KAT, A_VA0, A_VA1) if attn else ()) + (A_QA0, A_QA1, A_QAT):
        a("v_add_u32 v%d, %d, v%d" % (v, 2 * 5120, v))
    a("v_add_u32 v%d, %d, v%d" % (A_OM, 4 * 20480, A_OM))
    a("v_add_u32 v%d, %d, v%d" % (A_OT, 4 * 20480, A_OT))

def set_tau0(a):
    a("s_lshl_b32 s%d, s%d, 2" % (S_T0, S_R))
    a("s_lshr_b32 s%d, s%d, 2" % (S_T1, S_WV))
    a("s_add_u32 s%d, s%d, s%d" % (S_T0, S_T0, S_T1))
    a("s_add_u32 s%d, s%d, s%d" % (S_T0, S_T0, S_DB))
    a("s_sub_i32 s%d, 8, s%d" % (S_TAU0, S_T0))
    a("s_max_i32 s%d, s%d, 0" % (S_TAU0, S_TAU0))

def emit_stubs(a, stubs):
    for lf, lr, base in stubs:
        a.label(lf)
        a("v_mov_b32 v%d, 0x%x" % (base, NEG_BIG))
        for k in range(1, 16): a("v_mov_b32 v%d, v%d" % (base + k, base))
        a("s_branch %s" % lr)

def kv_params(a):
    a("s_lshl_b32 s%d, s%d, 6" % (S_T0, S_G))
    a("s_lshl_b32 s%d, s%d, 2" % (S_T1, S_R))
    a("s_add_u32 s%d, s%d, s%d" % (S_T0, S_T0, S_T1))
    a("s_sub_i32 s%d, s%d, 8" % (S_T0, S_T0))
    a("s_mul_i32 s%d, s%d, 5120" % (S_T0, S_T0))
    a("s_lshl_b32 s%d, s%d, 10" % (S_KV1, S_WV))
    a("s_add_u32 s%d, s%d, s%d" % (S_KV0, S_T0, S_KV1))
    a("s_lshl_b32 s%d, s%d, 2" % (S_T3, S_R))
    a("s_sub_i32 s%d, 8, s%d" % (S_T3, S_T3))
    a("s_max_i32 s%d, s%d, 0" % (S_T3, S_T3))
    a("s_mul_i32 s%d, s%d, 5120" % (S_KV2, S_T3))
    a("v_lshlrev_b32 v%d, 4, v%d" % (A_L16, V_LANE))

def kv_load(tensor, k):
    def f(a):
        l = a.newlabel("kvl")
        a("s_add_u32 s%d, s%d, %d" % (S_T4, S_KV1, k * 8192))
        if k == 7:
            a("s_cmp_ge_u32 s%d, 61440" % S_T4)
            a("s_cbranch_scc1 %s" % l)
        a("s_add_u32 s%d, s%d, %d" % (S_OFF, S_KV0, WS_KV + tensor * 8 * 64 * 5120 + k * 8192))
        a("s_cmp_lt_u32 s%d, s%d" % (S_T4, S_KV2))
        if tensor == 0:
            a("s_cbranch_scc1 %s" % l)
        else:
            a("s_cselect_b32 s%d, 0x7ff00000, s%d" % (S_OFF, S_OFF))
        a("s_add_u32 m0, s%d, %d" % (S_T4, LDS_K if tensor == 0 else LDS_V))
        a("s_nop 0")
        a("buffer_load_dwordx4 v%d, s[%d:%d], s%d offen %s lds" % (A_L16, S_WS, S_WS + 3, S_OFF, LD))
        a.label(l)
    return f

def oa_flag_off(a, dst, half_):
    a("s_lshl_b32 s%d, s%d, 1" % (dst, S_R))
    a("s_add_u32 s%d, s%d, %d" % (dst, dst, half_))
    a("s_lshl_b32 s%d, s%d, 3" % (dst, dst))
    a("s_add_u32 s%d, s%d, s%d" % (dst, dst, S_G))
    a("s_lshl_b32 s%d, s%d, 5" % (dst, dst))
    a("s_add_u32 s%d, s%d, s%d" % (dst, dst, S_WV))
    a("s_lshl_b32 s%d, s%d, 2" % (dst, dst))
    a("s_add_u32 s%d, s%d, %d" % (dst, dst, F_OA))

def phase2A(a, stubs):
    kv_load(0, 7)(a)
    attn_setup(a)
    a("s_waitcnt vmcnt(0) lgkmcnt(0)")
    a("s_barrier")
    stamp(a, "kvld")
    for rnd in range(2):
        a("s_mov_b32 s%d, %d" % (S_DB, 2 * rnd))
        set_tau0(a)
        if 'noprio' not in OPT:
            lp = a.newlabel("prio")
            a("s_cmp_eq_u32 s%d, 0" % S_CS)
            a("s_cbranch_scc1 %s" % lp)
            a("s_setprio %d" % (1 if rnd == 0 else 0))
            a.label(lp)
        late_v = None
        if rnd == 0:
            mid = None
            def late_v(a):
                a("s_waitcnt vmcnt(0)")
                a("s_barrier")
                stamp(a, "vld")
            qk_extra = {i: kv_load(1, i - 0) for i in range(8)}
        else:
            def pub0(a):
                a("s_waitcnt vmcnt(0)")
                oa_flag_off(a, S_T0, 0)
                publish(a, S_T0, None)
            mid = None
            qk_extra = {PUB0_AT: pub0}
        def pre_epi(a):
            poll_oa(a, 0)
        global TAG
        TAG = str(rnd)
        attn_unit(a, stubs, mid, qk_extra, late_v, pre_epi if (rnd == 1 and 'nopre' not in OPT) else None)
        stamp(a, "rnd%d" % rnd)
        if rnd == 0: round_advance(a)

def apply_phase(a):
    P = P_SUM
    early_load_B(7)(a)
    wo_load(a, S_WOB, first=12)
    set_hilo(a)
    a("v_mov_b32 v%d, 0" % (A_Q2 + 2)); a("v_mov_b32 v%d, 0" % (A_Q2 + 3))
    a("s_lshr_b32 s%d, s%d, 1" % (S_T1, S_WV))
    a("s_lshl_b32 s%d, s%d, 11" % (S_T1, S_T1))
    a("v_lshlrev_b32 v8, 1, v%d" % V_PO)
    a("v_add_u32 v8, %d, v8" % LDS_KVR)
    a("v_add_u32 v8, s%d, v8" % S_T1)
    a("v_and_b32 v4, 31, v%d" % V_LANE)
    a("v_min_u32 v4, 20, v4")
    a("v_lshrrev_b32 v5, 5, v%d" % V_LANE)
    a("v_mul_u32_u24 v6, 48, v5")
    a("v_add_u32 v6, v6, v4")
    a("s_and_b32 s%d, s%d, 3" % (S_T0, S_WV))
    a("s_lshl_b32 s%d, s%d, 11" % (S_T0, S_T0))
    a("s_add_u32 s%d, s%d, %d" % (S_T0, S_T0, LDS_KVR))
    a("v_lshlrev_b32 v6, 4, v6")
    a("v_add_u32 v6, s%d, v6" % S_T0)
    a("v_lshlrev_b32 v7, 4, v4")
    a("v_add_u32 v7, s%d, v7" % S_T0)
    ACC = P + 32
    a("s_mov_b32 s%d, 0xffff0000" % S_T2)
    a("s_waitcnt vmcnt(5)")
    for r in range(16):
        c = ACC + 4 * (r & 1)
        for hw in range(2):
            src = P + 2 * r + hw
            if r < 2:
                a("v_lshlrev_b32 v%d, 16, v%d" % (c + 2 * hw, src))
                a("v_and_b32 v%d, s%d, v%d" % (c + 2 * hw + 1, S_T2, src))
            else:
                a("v_lshlrev_b32 v%d, 16, v%d" % (ACC + 8, src))
                a("v_and_b32 v%d, s%d, v%d" % (ACC + 9, S_T2, src))
                a("v_pk_add_f32 %s, %s, %s" % (vr(c + 2 * hw, 2), vr(c + 2 * hw, 2), vr(ACC + 8, 2)))
    for k in (0, 2): a("v_pk_add_f32 %s, %s, %s" % (vr(ACC + k, 2), vr(ACC + k, 2), vr(ACC + 4 + k, 2)))
    P = ACC
    a("s_barrier")
    a("s_mov_b64 exec, s[%d:%d]" % (S_PM, S_PM + 1))
    a("ds_write_b128 v8, %s" % vr(P, 4))
    a("s_mov_b64 exec, -1")
    a("s_waitcnt lgkmcnt(0)")
    a("s_barrier")
    stamp(a, "kvred")
    F = A_KB
    a("ds_read_b128 %s, v6" % vr(F, 4))
    a("ds_read_b128 %s, v6 offset:%d" % (vr(F + 4, 4), 24 * 16))
    a("ds_read_b128 %s, v7 offset:%d" % (vr(F + 8, 4), 4 * 24 * 16))
    emit(a, q_frag_reads())
    a("s_waitcnt lgkmcnt(3)")
    KV1, KV2 = A_VB, A_VB + 4
    for k in range(4): a("v_cvt_pk_bf16_f32 v%d, v%d, v%d" % (KV1 + k, F + 2 * k, F + 2 * k + 1))
    for k in range(2): a("v_cvt_pk_bf16_f32 v%d, v%d, v%d" % (KV2 + k, F + 8 + 2 * k, F + 9 + 2 * k))
    a("v_mov_b32 v%d, 0" % (KV2 + 2)); a("v_mov_b32 v%d, 0" % (KV2 + 3))
    for rnd in range(2):
        a("s_waitcnt lgkmcnt(0)")
        q_frag_fix(a)
        a("s_nop 1")
        a(mfma32(A_O, KV1, A_Q1, "0"))
        a(mfma32(A_O, KV2, A_Q2))
        if rnd == 0:
            round_advance(a, False) if False else None
            for v in (A_QA0, A_QA1, A_QAT): a("v_add_u32 v%d, %d, v%d" % (v, 2 * 5120, v))
            emit(a, q_frag_reads())
            a("s_nop 9")
        else:
            a("s_nop 15")
        o_epilogue(a, eps=True)
        if rnd == 0:
            a("v_add_u32 v%d, %d, v%d" % (A_OM, 4 * 20480, A_OM))
            a("v_add_u32 v%d, %d, v%d" % (A_OT, 4 * 20480, A_OT))

C_DMA = 10
C_WA, C_WT, C_OF, C_OUT, C_XA = 20, 21, 22, 23, 24
C_O = 32
C_WB = 112
C_ACC = 172
C_R = 212

def p3_dma_setup(a):
    a("s_mul_i32 s%d, s%d, 160" % (S_T0, S_G))
    a("s_movk_i32 s%d, 6554" % S_T2)
    a("s_movk_i32 s%d, 1280" % S_T3)
    for j in range(5):
        a("v_add_u32 v4, %d, v%d" % (64 * j, V_LANE))
        a("v_mul_u32_u24 v8, s%d, v4" % S_T2)
        a("v_lshrrev_b32 v8, 16, v8")
        a("v_mul_u32_u24 v9, 10, v8")
        a("v_sub_u32 v9, v4, v9")
        a("v_mul_u32_u24 v8, s%d, v8" % S_T3)
        a("v_lshl_add_u32 v8, v9, 4, v8")
        a("v_add_u32 v%d, s%d, v8" % (C_DMA + j, S_T0))

def p3_setup(a):
    a("s_mul_i32 s%d, s%d, 160" % (S_T0, S_G))
    a("v_lshrrev_b32 v4, 1, v%d" % V_KG)
    a("v_and_b32 v5, 1, v%d" % V_KG)
    a("v_lshrrev_b32 v6, 2, v%d" % V_N)
    a("v_and_b32 v7, 3, v%d" % V_N)
    a("v_mul_u32_u24 v8, 20, v4")
    a("v_lshl_add_u32 v8, v5, 2, v8")
    a("v_add_u32 v8, v8, v6")
    a("s_movk_i32 s%d, 160" % S_T1)
    a("v_mul_u32_u24 v8, s%d, v8" % S_T1)
    a("v_lshl_add_u32 v8, v7, 3, v8")
    a("s_mul_i32 s%d, s%d, 51200" % (S_T2, S_CS))
    a("v_add_u32 v%d, s%d, v8" % (C_WA, S_T2))
    a("v_mul_u32_u24 v8, 40, v%d" % V_KG)
    a("v_add3_u32 v8, v8, v6, 16")
    a("v_mul_u32_u24 v8, s%d, v8" % S_T1)
    a("v_lshl_add_u32 v8, v7, 3, v8")
    a("v_add_u32 v%d, s%d, v8" % (C_WT, S_T2))
    a("v_lshlrev_b32 v%d, 4, v%d" % (C_OF, V_LANE))
    a("s_lshl_b32 s%d, s%d, 4" % (S_T2, S_RG))
    a("v_add_u32 v8, s%d, v%d" % (S_T2, V_N))
    a("s_movk_i32 s%d, 2560" % S_T2)
    a("v_mul_u32_u24 v8, s%d, v8" % S_T2)
    a("v_lshl_add_u32 v8, v%d, 3, v8" % V_KG)
    a("v_add_u32 v%d, s%d, v8" % (C_OUT, S_T0))
    a("s_mul_i32 s%d, s%d, 10240" % (S_T2, S_RG))
    a("s_add_u32 s%d, s%d, %d" % (S_T2, S_T2, XCH3))
    a("v_add_u32 v%d, s%d, v%d" % (C_XA, S_T2, C_OF))

def wo_block(a, srd_wo):
    a("s_mul_i32 s%d, s%d, %d" % (S_OFF, S_T0, 32 * 1280))
    a("s_mul_i32 s%d, s%d, 5120" % (S_T0, S_T0))
    for j in range(5):
        a("s_add_u32 m0, s%d, %d" % (S_T0, j * 1024))
        a("s_nop 0")
        a("buffer_load_dwordx4 v%d, s[%d:%d], s%d offen %s lds" % (C_DMA + j, srd_wo, srd_wo + 3, S_OFF, DML))

def wo_load(a, srd_wo, skip0=False, first=0):
    nw = 7 if skip0 else 8
    nb = 20 - first
    for k in range((nb + nw - 1) // nw):
        l = a.newlabel("wol")
        if skip0:
            a("s_cmp_eq_u32 s%d, 0" % S_WV)
            a("s_cbranch_scc1 %s" % l)
        a("s_add_u32 s%d, s%d, %d" % (S_T0, S_WV, first + nw * k))
        if skip0: a("s_sub_u32 s%d, s%d, 1" % (S_T0, S_T0))
        if first + nw * k + nw > 20:
            a("s_cmp_ge_u32 s%d, 20" % S_T0)
            a("s_cbranch_scc1 %s" % l)
        wo_block(a, srd_wo)
        a.label(l)

def p3_oloads(a, br, s_row0, k):
    a("s_lshr_b32 s%d, s%d, 4" % (S_T0, s_row0))
    a("s_add_u32 s%d, s%d, s%d" % (S_T0, S_T0, S_RG))
    a("s_add_u32 s%d, s%d, %d" % (S_T0, S_T0, 4 * k))
    a("s_mul_i32 s%d, s%d, 20480" % (S_T0, S_T0))
    a("s_add_u32 s%d, s%d, %d" % (S_T0, S_T0, WS_O + br * O_BR))
    a("s_lshl_b32 s%d, s%d, 13" % (S_T1, S_CS))
    a("s_add_u32 s%d, s%d, s%d" % (S_T1, S_T1, S_T0))
    for i in range(8):
        a("s_add_u32 s%d, s%d, %d" % (S_OFF, S_T1, i * 1024))
        a("buffer_load_dwordx4 %s, v%d, s[%d:%d], s%d offen %s" % (vr(C_O + 40 * k + 4 * i, 4), C_OF, S_WS, S_WS + 3, S_OFF, LD))
    a("s_lshl_b32 s%d, s%d, 11" % (S_T1, S_CS))
    a("s_add_u32 s%d, s%d, s%d" % (S_T1, S_T1, S_T0))
    for i in range(2):
        a("s_add_u32 s%d, s%d, %d" % (S_OFF, S_T1, (16 + i) * 1024))
        a("buffer_load_dwordx4 %s, v%d, s[%d:%d], s%d offen %s" % (vr(C_O + 40 * k + 32 + 4 * i, 4), C_OF, S_WS, S_WS + 3, S_OFF, LD))

def p3_wreads(i):
    wb = C_WB + 20 * (i % 3)
    L = []
    for T in range(5):
        for rd in range(2):
            if i < 8: L.append("ds_read_b64_tr_b16 %s, v%d offset:%d" % (vr(wb + 4 * T + 2 * rd, 2), C_WA, i * 6400 + rd * 1280 + 32 * T))
            else: L.append("ds_read_b64_tr_b16 %s, v%d offset:%d" % (vr(wb + 4 * T + 2 * rd, 2), C_WT, (i - 8) * 25600 + rd * 3200 + 32 * T))
    return L

def p3_mm(a, sets, vm_after, extra={}):
    lq = LQ(a)
    ids = {}
    ids[0] = [lq.issue(x) for x in p3_wreads(0)]
    ids[1] = [lq.issue(x) for x in p3_wreads(1)]
    for i in range(10):
        wb = C_WB + 20 * (i % 3)
        rd = p3_wreads(i + 2) if i + 2 < 10 else []
        ids[i + 2] = []
        n = vm_after(i)
        if n is not None: a("s_waitcnt vmcnt(%d)" % n)
        emit(a, extra.get(i))
        mm = [(T, mfma16(C_ACC + 20 * k + 4 * T, wb + 4 * T, C_O + 40 * sets[k] + 4 * i, "0" if i == 0 else None)) for T in range(5) for k in range(len(sets))]
        per = (len(rd) + len(mm) - 1) // len(mm) if rd else 0
        for (T, m) in mm:
            lq.need(ids[i][2 * T + 1])
            a(m)
            for _ in range(per):
                if rd: ids[i + 2].append(lq.issue(rd.pop(0)))

XCH3 = 102400
OTILE = 143360
OSTR = 160
def p3_epilogue(a, br, s_row0, nset, hooks={}):
    npieces = 640 * nset
    nround = (npieces + 511) // 512
    last_waves = (npieces - 512 * (nround - 1)) // 64
    def send(tiles):
        def f(a):
            for k in range(nset):
                for T in tiles:
                    a("ds_write_b128 v%d, %s offset:%d" % (C_XA, vr(C_ACC + 20 * k + 4 * T, 4), k * 5120 + T * 1024))
        return f
    a("s_lshl_b32 s%d, s%d, 4" % (S_T0, S_RG))
    a("v_add_u32 v4, s%d, v%d" % (S_T0, V_N))
    a("s_movk_i32 s%d, %d" % (S_T1, OSTR))
    a("v_mul_u32_u24 v4, s%d, v4" % S_T1)
    a("v_lshl_add_u32 v4, v%d, 3, v4" % V_KG)
    a("v_add_u32 v4, %d, v4" % OTILE)
    a("s_nop 2")
    role_branch(a, send([3, 4]), send([0, 1, 2]))
    a("s_lshl_b32 s%d, s%d, 6" % (S_T0, S_WV))
    a("v_add_u32 v5, s%d, v%d" % (S_T0, V_LANE))
    a("s_movk_i32 s%d, 6554" % S_T2)
    a("s_movk_i32 s%d, 2560" % S_T3)
    a("s_mul_i32 s%d, s%d, 160" % (S_T4, S_G))
    for m in range(nround):
        a("v_add_u32 v6, %d, v5" % (512 * m))
        a("v_mul_u32_u24 v7, s%d, v6" % S_T2)
        a("v_lshrrev_b32 v7, 16, v7")
        a("v_mul_u32_u24 v8, 10, v7")
        a("v_sub_u32 v8, v6, v8")
        a("v_mul_u32_u24 v9, s%d, v7" % S_T1)
        a("v_lshl_add_u32 v9, v8, 4, v9")
        a("v_add_u32 v%d, %d, v9" % (C_R + m, OTILE))
        a("v_mul_u32_u24 v9, s%d, v7" % S_T3)
        a("v_lshl_add_u32 v9, v8, 4, v9")
        a("v_add_u32 v%d, s%d, v9" % (C_R + 4 + m, S_T4))
    a("s_waitcnt lgkmcnt(0)")
    a("s_barrier")
    emit(a, hooks.get(0))
    def recv(tiles):
        def f(a):
            for k in range(nset):
                for n_, T in enumerate(tiles):
                    a("ds_read_b128 %s, v%d offset:%d" % (vr(C_WB + 12 * k + 4 * n_, 4), C_XA, k * 5120 + T * 1024))
            a("s_waitcnt lgkmcnt(0)")
            for k in range(nset):
                for n_, T in enumerate(tiles):
                    d = C_ACC + 20 * k + 4 * T
                    r = C_WB + 12 * k + 4 * n_
                    for q in (0, 2): a("v_pk_add_f32 %s, %s, %s" % (vr(d + q, 2), vr(d + q, 2), vr(r + q, 2)))
                    a("v_cvt_pk_bf16_f32 v%d, v%d, v%d" % (d, d, d + 1))
                    a("v_cvt_pk_bf16_f32 v%d, v%d, v%d" % (d + 1, d + 2, d + 3))
                    a("ds_write_b64 v4, %s offset:%d" % (vr(d, 2), k * 64 * OSTR + 32 * T))
        return f
    role_branch(a, recv([0, 1, 2]), recv([3, 4]))
    emit(a, hooks.get(1))
    a("s_mul_i32 s%d, s%d, 2560" % (S_T0, s_row0))
    a("s_add_u32 s%d, s%d, %d" % (S_T0, S_T0, br * 1280))
    a("s_waitcnt lgkmcnt(0)")
    a("s_barrier")
    for m in range(nround):
        l = a.newlabel("fr")
        if m == nround - 1 and last_waves < 8:
            a("s_cmp_ge_u32 s%d, %d" % (S_WV, last_waves))
            a("s_cbranch_scc1 %s" % l)
        a("ds_read_b128 %s, v%d offset:%d" % (vr(C_O + 4 * m, 4), C_R + m, 0))
        a.label(l)
    emit(a, hooks.get(2))
    a("s_waitcnt lgkmcnt(0)")
    for m in range(nround):
        l = a.newlabel("fs")
        if m == nround - 1 and last_waves < 8:
            a("s_cmp_ge_u32 s%d, %d" % (S_WV, last_waves))
            a("s_cbranch_scc1 %s" % l)
        a("buffer_store_dwordx4 %s, v%d, s[%d:%d], s%d offen %s" % (vr(C_O + 4 * m, 4), C_R + 4 + m, S_OUT, S_OUT + 3, S_T0, OUTST))
        a.label(l)
assert all((p * 6554) >> 16 == p // 10 for p in range(1536))

def poll_oa(a, half_):
    a("v_lshrrev_b32 v7, 3, v%d" % V_LANE)
    a("v_and_b32 v8, 7, v%d" % V_LANE)
    a("v_lshlrev_b32 v7, 7, v7")
    a("v_lshl_add_u32 v7, v8, 2, v7")
    a("s_lshl_b32 s%d, s%d, 1" % (S_T0, S_R))
    a("s_add_u32 s%d, s%d, %d" % (S_T0, S_T0, half_))
    a("s_lshl_b32 s%d, s%d, 10" % (S_T0, S_T0))
    a("s_add_u32 s%d, s%d, %d" % (S_T0, S_T0, F_OA))
    poll(a, 7, S_T0, "-1", "-1")

S_JR = S_DB
def phase3A(a):
    p3_dma_setup(a)
    p3_setup(a)
    a("s_lshl_b32 s%d, s%d, 7" % (S_JR, S_R))
    a("s_barrier")
    stamp(a, "attn")
    a("s_add_u32 s%d, s%d, 0" % (S_U, S_WV))
    a("s_mul_i32 s%d, s%d, %d" % (S_OFF, S_WV, 32 * 1280))
    a("s_mul_i32 s%d, s%d, 5120" % (S_U, S_WV))
    for j in range(5):
        a("s_add_u32 m0, s%d, %d" % (S_U, j * 1024))
        a("s_mul_i32 s%d, s%d, %d" % (S_OFF, S_WV, 32 * 1280))
        a("buffer_load_dwordx4 v%d, s[%d:%d], s%d offen %s lds" % (C_DMA + j, S_WO, S_WO + 3, S_OFF, DML))
        if j == 1:
            a("s_waitcnt vmcnt(2)")
            oa_flag_off(a, S_T0, 1)
            publish(a, S_T0, None)
    p3_oloads(a, 0, S_JR, 0)
    wo_load(a, S_WO, first=8)
    a("s_waitcnt vmcnt(0)")
    a("s_barrier")
    stamp(a, "j0a")
    p3_mm(a, [0], lambda i: None)
    stamp(a, "j1a")
    p3_epilogue(a, 0, S_JR, 1)
    stamp(a, "j2a")

def phaseB(a):
    apply_phase(a)
    stamp(a, "kvld")
    p3_setup(a)
    a("s_waitcnt vmcnt(0)")
    a("s_barrier")
    a("s_lshl_b32 s%d, s%d, 3" % (S_T0, S_R))
    a("s_add_u32 s%d, s%d, s%d" % (S_T0, S_T0, S_G))
    a("s_lshl_b32 s%d, s%d, 7" % (S_T0, S_T0))
    a("s_add_u32 s%d, s%d, %d" % (S_T0, S_T0, F_OB))
    publish(a, S_T0, 0)
    stamp(a, "attn")
    a("v_lshlrev_b32 v7, 7, v%d" % V_LANE)
    a("s_lshl_b32 s%d, s%d, 10" % (S_T0, S_R))
    a("s_add_u32 s%d, s%d, %d" % (S_T0, S_T0, F_OB))
    poll(a, 7, S_T0, "0xff", "0")
    a("s_barrier")
    stamp(a, "j0b")
    a("s_lshl_b32 s%d, s%d, 7" % (S_JR, S_R))
    p3_oloads(a, 1, S_JR, 0)
    p3_oloads(a, 1, S_JR, 1)
    p3_mm(a, [0, 1], lambda i: 9 - i)
    stamp(a, "j1b")
    def refill(k):
        def f(a):
            l = a.newlabel("rf")
            a("s_cmp_eq_u32 s%d, 0" % S_WV)
            a("s_cbranch_scc1 %s" % l)
            a("s_add_u32 s%d, s%d, %d" % (S_U, S_WV, 7 * k + 63))
            a("s_sub_u32 s%d, s%d, 64" % (S_U, S_U))
            if k == 2:
                a("s_cmp_ge_u32 s%d, 20" % S_U)
                a("s_cbranch_scc1 %s" % l)
            a("s_mul_i32 s%d, s%d, %d" % (S_OFF, S_U, 32 * 1280))
            a("s_mul_i32 s%d, s%d, 5120" % (S_U, S_U))
            for j in range(5):
                a("s_add_u32 m0, s%d, %d" % (S_U, j * 1024))
                a("s_nop 0")
                a("buffer_load_dwordx4 v%d, s[%d:%d], s%d offen %s lds" % (C_DMA + j, S_WO, S_WO + 3, S_OFF, DML))
            a.label(l)
        return f
    if 'norefill' in OPT:
        p3_epilogue(a, 1, S_JR, 2)
        stamp(a, "j2b")
        a("s_barrier")
        wo_load(a, S_WO, skip0=True)
    else:
        p3_epilogue(a, 1, S_JR, 2, {0: refill(0), 1: refill(1), 2: refill(2)})
        stamp(a, "j2b")
    poll_oa(a, 1)
    a("s_waitcnt vmcnt(0)")
    a("s_barrier")
    stamp(a, "j0a")
    a("s_lshl_b32 s%d, s%d, 7" % (S_JR, S_R))
    a("s_add_u32 s%d, s%d, 64" % (S_JR, S_JR))
    p3_oloads(a, 0, S_JR, 0)
    p3_mm(a, [0], lambda i: 9 - i)
    stamp(a, "j1a")
    p3_epilogue(a, 0, S_JR, 1)
    stamp(a, "j2a")

def epoch_update(a):
    l = a.newlabel("ep")
    a("s_cmp_eq_u32 s2, 0")
    a("s_cbranch_scc0 %s" % l)
    a("v_lshlrev_b32 v7, 7, v%d" % V_LANE)
    for k in range(4):
        a("s_mov_b32 s%d, %d" % (S_T0, F_KV + k * 64 * 128))
        poll(a, 7, S_T0, "-1", "-1")
    a("s_mov_b32 s%d, %d" % (S_T0, WS_FLAG))
    publish(a, S_T0, 0)
    a.label(l)

HEADER = """; sliding-window attention block + linear attention block, one fused launch (generated by gen3.py)
"""
def build():
    out = [HEADER, "; @launch grid=(256,1,1) block=(512,1,1) lds=163840\n"]
    out.append('.amdgcn_target "amdgcn-amd-amdhsa--gfx950"\n.text\n')
    a = Asm()
    stubs = []
    entry(a)
    phase1(a)
    if 'p1only' in OPT: a("s_branch L_fin2")
    lb = a.newlabel("brB")
    a("s_cmp_eq_u32 s%d, 0" % S_BR)
    a("s_cbranch_scc0 %s" % lb)
    phase2A(a, stubs)
    phase3A(a)
    a("s_branch L_fin")
    emit_stubs(a, stubs)
    a.label(lb)
    phaseB(a)
    a.label("L_fin")
    epoch_update(a)
    a.label("L_fin2")
    stamp(a, "end")
    if STAMPS: a("s_waitcnt vmcnt(0)")
    stamp_store(a)
    a.label("L_end"); a("s_endpgm")
    a.label("L_codeend")
    out.append(".globl %s\n.p2align 8\n.type %s,@function\n%s:\n" % (NAME, NAME, NAME) + a.text())
    if 'nocodepf' not in OPT:
        out.append(".set CODE_TOTAL, L_codeend - L_pcbase\n.set CODE_CHUNK, ((CODE_TOTAL / 8 + 127) / 128) * 128\n.set CODE_LAST, CODE_TOTAL - 4\n")
    out.append('.section .rodata,"a"\n.p2align 6\n')
    out.append((".amdhsa_kernel %s\n  .amdhsa_next_free_vgpr 256\n  .amdhsa_next_free_sgpr 102\n  .amdhsa_accum_offset 256\n"
                "  .amdhsa_group_segment_fixed_size 0\n  .amdhsa_kernarg_size 72\n  .amdhsa_user_sgpr_count 2\n"
                "  .amdhsa_user_sgpr_kernarg_segment_ptr 1\n  .amdhsa_system_sgpr_workgroup_id_x 1\n.end_amdhsa_kernel\n") % NAME)
    return "".join(out)

if __name__ == "__main__":
    OPT = set(sys.argv[2:])
    for x in sys.argv:
        if x.startswith("st="):
            STAMPS = True
            STMAP = {n: i for i, n in enumerate(x[3:].split(","))}
    for x in OPT:
        if x.startswith('sch='): SCHED = x[4:]
        if x.startswith('pub0at='): PUB0_AT = int(x[7:])
        if x.startswith('wsb='): WS_BASE = int(x[4:]) << 20
        if x.startswith('outst='): OUTST = x[6:].replace('+', ' ')
    if 'pfnt' in OPT: PFL = "nt"
    if 'dmant' in OPT: DML = "nt"
    if 'p1only' in OPT: S_ST = 84
    open(sys.argv[1], "w").write(build())
```

```python
import sys, struct
from asmlib import Asm, vr, sr

NAME = "concat_heads__sliding_block__linear_attn_block__prompt_kernel"
WS_KV   = 0x0000000
WS_O    = 0x0A00000
WS_PART = 0x0F00000
WS_FLAG = 0x1000000
WS_STAMP = 0x1080000
WS_SIZE = 0x1100000
O_BR = 128 * 20480
F_KV, F_PART, F_OA, F_OB = WS_FLAG + 0x1000, WS_FLAG + 0x5000, WS_FLAG + 0x9000, WS_FLAG + 0x11000
SPIN_LIMIT = 40000
ST, LD = "sc1", "sc1"
PFL = ""
DML = ""
STAMPS, STMAP, OPT = False, None, set()
SCHED = 'e'
WS_BASE = 0
OUTST = 'nt'

S_NONCE = 3
S_ST = 4
S_I, S_U = 22, 23
S_X, S_W, S_WS, S_OUT, S_WO, S_WOB = 24, 28, 32, 36, 40, 44
S_BR, S_R, S_G, S_WV, S_RG, S_CS = 48, 49, 50, 51, 52, 53
S_T0, S_T1, S_T2, S_T3, S_T4, S_T5 = 54, 55, 56, 57, 58, 59
S_DB, S_OFF = 60, 61
S_M0, S_M1, S_M2 = 62, 64, 66
S_D, S_SB, S_SOFF, S_STEP, S_J = 68, 72, 76, 77, 78
S_G1 = 82
S_MASK = 68

V_IMG, V_LANE, V_N, V_KG = 0, 1, 2, 3
V_DMA, V_XA, V_WA, V_PF, V_XT, V_WB0, V_WB1 = 10, 15, 19, 29, 32, 40, 60
V_ACC, V_ACC2, V_XP, V_DMA2, V_PFD, V_WA2 = 80, 120, 160, 240, 245, 246
LDS_W = 65536
XSLOT, WSLOT = 16384, 20480
LOG2E = 1.4426950408889634
QSCALE = LOG2E / (20.0 ** 0.5)

def f2u(x): return struct.unpack("<I", struct.pack("<f", x))[0]
def mfma16(d, x, y, c=None):
    return "v_mfma_f32_16x16x32_bf16 %s, %s, %s, %s" % (vr(d, 4), vr(x, 4), vr(y, 4), vr(d, 4) if c is None else c)
def mfma32(d, x, y, c=None):
    return "v_mfma_f32_32x32x16_bf16 %s, %s, %s, %s" % (vr(d, 16), vr(x, 4), vr(y, 4), vr(d, 16) if c is None else c)
def emit(a, item):
    if item is None: return
    if callable(item): item(a)
    elif isinstance(item, (list, tuple)):
        for x in item: emit(a, x)
    else: a(item)

class LQ:
    def __init__(self, a): self.a, self.n, self.done = a, 0, 0
    def issue(self, s, cnt=1):
        emit(self.a, s); self.n += cnt; return self.n
    def need(self, idx):
        if idx > self.done:
            cnt = self.n - idx
            self.a("s_waitcnt lgkmcnt(%d)" % min(cnt, 15))
            self.done = idx if cnt <= 15 else self.n - 15
    def drain(self):
        if self.n > self.done:
            self.a("s_waitcnt lgkmcnt(0)"); self.done = self.n

NST = 8
def rec(f, *args):
    r = Asm(); r.nlab = 900000; f(r, *args)
    return [l.strip() for l in r.lines]
def stamp(a, name):
    if not STAMPS or STMAP is None or name not in STMAP: return
    i = STMAP[name]
    a("%s s[%d:%d]" % ("s_memtime" if 'cyc' in OPT else "s_memrealtime", S_ST + 2 * i, S_ST + 2 * i + 1))
def stamp_dbg(a):
    a("s_memrealtime s[20:21]")
    a("s_load_dwordx2 s[24:25], s[0:1], 56")
    a("s_waitcnt lgkmcnt(0)")
    a("s_mov_b32 s26, 256"); a("s_mov_b32 s27, 0x20000")
    a("s_mov_b64 exec, 1")
    a("v_mov_b32 v4, 0")
    a("s_not_b32 s22, s101")
    for reg, slot in [(22, 0), (20, 1)] + [(S_ST + 2 * i, 2 + i) for i in range(NST)]:
        a("v_mov_b32 v5, s%d" % reg)
        a("buffer_atomic_umax v5, v4, s[24:27], 0 offen offset:%d" % (slot * 4))
    a("v_mov_b32 v5, s101")
    a("buffer_atomic_umax v5, v4, s[24:27], 0 offen offset:%d" % (10 * 4))
    a("s_mov_b64 exec, -1")

def stamp_store(a):
    if not STAMPS: return
    if 'dbg' in OPT: return stamp_dbg(a)
    a("s_memrealtime s[20:21]")
    a("s_memtime s[24:25]")
    a("s_waitcnt lgkmcnt(0)")
    a("s_lshl_b32 s%d, s2, 3" % S_T0)
    a("s_add_u32 s%d, s%d, s%d" % (S_T0, S_T0, S_WV))
    a("s_lshl_b32 s%d, s%d, 6" % (S_T0, S_T0))
    a("s_add_u32 s%d, s%d, %d" % (S_T0, S_T0, WS_STAMP))
    a("s_mov_b64 exec, 1")
    a("v_mov_b32 v4, 0")
    for i in range(NST):
        a("v_mov_b32 v5, s%d" % (S_ST + 2 * i))
        a("buffer_store_dword v5, v4, s[%d:%d], s%d offen offset:%d" % (S_WS, S_WS + 3, S_T0, i * 4))
    a("s_getreg_b32 s21, hwreg(HW_REG_XCC_ID)")
    a("s_getreg_b32 s22, hwreg(HW_REG_HW_ID)")
    for reg, slot in ((20, 15), (101, 14), (100, 13), (21, 12), (22, 11), (24, 10)):
        a("v_mov_b32 v5, s%d" % reg)
        a("buffer_store_dword v5, v4, s[%d:%d], s%d offen offset:%d" % (S_WS, S_WS + 3, S_T0, slot * 4))
    a("s_mov_b64 exec, -1")

def minwrap(a, v, m, tmp):
    a("v_subrev_u32 v%d, %d, v%d" % (tmp, m, v))
    a("v_min_u32 v%d, v%d, v%d" % (v, v, tmp))
def srd(a, d, lo, hi, size):
    a("s_mov_b32 s%d, s%d" % (d, lo)); a("s_mov_b32 s%d, s%d" % (d + 1, hi))
    a("s_mov_b32 s%d, %d" % (d + 2, size)); a("s_mov_b32 s%d, 0x20000" % (d + 3))
def role_branch(a, fw, fx):
    lx, ld = a.newlabel("rx"), a.newlabel("rd")
    a("s_cmp_eq_u32 s%d, 0" % S_CS)
    a("s_cbranch_scc0 %s" % (lx if fx else ld))
    emit(a, fw)
    if fx:
        a("s_branch %s" % ld)
        a.label(lx)
        emit(a, fx)
    a.label(ld)
def on_wave(a, wave, f):
    l = a.newlabel("ow")
    a("s_cmp_eq_u32 s%d, %d" % (S_WV, wave))
    a("s_cbranch_scc0 %s" % l)
    emit(a, f)
    a.label(l)

def entry(a):
    a("s_cmp_ge_u32 s2, 256")
    a("s_cbranch_scc1 L_end")
    if STAMPS:
        a("s_memrealtime s[100:101]")
        a("s_memtime s[62:63]")
    a("s_load_dwordx16 s[4:19], s[0:1], 0")
    a("s_load_dwordx2 s[20:21], s[0:1], 64")
    if 'badmap' in OPT:
        a("s_lshr_b32 s%d, s2, 5" % S_T0)
        a("s_and_b32 s%d, s2, 31" % S_I)
    else:
        a("s_and_b32 s%d, s2, 7" % S_T0)
        a("s_lshr_b32 s%d, s2, 3" % S_I)
    a("v_lshrrev_b32 v4, 6, v0")
    a("v_and_b32 v%d, 63, v0" % V_LANE)
    a("v_and_b32 v%d, 15, v0" % V_N)
    a("v_readfirstlane_b32 s%d, v4" % S_WV)
    a("v_lshrrev_b32 v%d, 4, v%d" % (V_KG, V_LANE))
    if 'brlo' in OPT or 'brhi' in OPT:
        a("s_lshr_b32 s%d, s%d, 2" % (S_BR, S_T0))
        if 'brhi' in OPT: a("s_xor_b32 s%d, s%d, 1" % (S_BR, S_BR))
        a("s_and_b32 s%d, s%d, 3" % (S_T2, S_T0))
    else:
        a("s_and_b32 s%d, s%d, 1" % (S_BR, S_T0))
        a("s_lshr_b32 s%d, s%d, 1" % (S_T2, S_T0))
    a("s_and_b32 s%d, s%d, 1" % (S_T3, S_T2))
    a("s_lshl_b32 s%d, s%d, 3" % (S_T3, S_T3))
    a("s_and_b32 s%d, s%d, 7" % (S_T4, S_I))
    a("s_add_u32 s%d, s%d, s%d" % (S_R, S_T3, S_T4))
    a("s_lshr_b32 s%d, s%d, 1" % (S_T3, S_T2))
    a("s_lshr_b32 s%d, s%d, 3" % (S_T4, S_I))
    a("s_lshl_b32 s%d, s%d, 2" % (S_T5, S_T3))
    a("s_add_u32 s%d, s%d, s%d" % (S_G, S_T5, S_T4))
    a("s_lshl_b32 s%d, s%d, 1" % (S_T3, S_T3))
    a("s_and_b32 s%d, s%d, 1" % (S_T5, S_T4))
    a("s_add_u32 s%d, s%d, s%d" % (S_T3, S_T3, S_T5))
    a("s_lshr_b32 s%d, s%d, 1" % (S_T4, S_T4))
    a("s_lshl_b32 s%d, s%d, 2" % (S_T4, S_T4))
    a("s_add_u32 s%d, s%d, s%d" % (S_G1, S_T3, S_T4))
    a("s_and_b32 s%d, s%d, 3" % (S_RG, S_WV))
    a("s_lshr_b32 s%d, s%d, 2" % (S_CS, S_WV))
    if 'nocodepf' not in OPT:
        def cpf(a):
            a("s_getpc_b64 s[56:57]")
            a.label("L_pcbase")
            a("s_and_b32 s%d, s%d, 7" % (S_T4, S_I))
            a("s_mul_i32 s%d, s%d, CODE_CHUNK" % (S_T4, S_T4))
            a("v_lshlrev_b32 v4, 7, v%d" % V_LANE)
            a("v_add_u32 v4, s%d, v4" % S_T4)
            a("v_min_u32 v4, CODE_LAST, v4")
            a("global_load_dword v%d, v4, s[56:57]" % V_PFD)
        on_wave(a, 7, cpf)

S_B12, S_C12 = 93, 94
def dma_setup(a):
    stamp(a, "ids")
    def fw(a):
        a("s_mul_i32 s%d, s%d, %d" % (S_T0, S_RG, 16 * 3840))
        a("s_mul_i32 s%d, s%d, 160" % (S_T1, S_G))
        a("s_mul_i32 s%d, s%d, 320" % (S_T2, S_G1))
        a("s_cmp_eq_u32 s%d, 0" % S_BR)
        a("s_cselect_b32 s%d, s%d, s%d" % (S_T2, S_T2, S_T1))
        a("s_cselect_b32 s%d, 0, 1120" % S_T5)
        a("s_add_u32 s%d, s%d, s%d" % (S_T2, S_T2, S_T0))
        a("s_add_u32 s%d, s%d, 1280" % (S_T2, S_T2))
        a("s_add_u32 s%d, s%d, s%d" % (S_T0, S_T0, S_T1))
        a("s_sub_u32 s%d, s%d, s%d" % (S_B12, S_T0, S_T2))
        a("s_sub_u32 s%d, %d, s%d" % (S_C12, 245760 - 160, S_T5))
        a("s_movk_i32 s%d, 3277" % S_T1)
        a("s_movk_i32 s%d, 3840" % S_T3)
        for j in range(5):
            p, kk, q, u, t = 4, 5, 6, 7, V_DMA2 + j
            a("v_add_u32 v%d, %d, v%d" % (p, 64 * j, V_LANE))
            a("v_mul_u32_u24 v%d, s%d, v%d" % (kk, S_T1, p))
            a("v_lshrrev_b32 v%d, 16, v%d" % (kk, kk))
            a("v_mul_u32_u24 v%d, 20, v%d" % (q, kk))
            a("v_lshrrev_b32 v%d, 2, v%d" % (u, kk))
            a("v_sub_u32 v%d, v%d, v%d" % (q, p, q))
            a("v_and_b32 v%d, 2, v%d" % (u, u))
            a("v_sub_u32 v%d, v%d, v%d" % (u, q, u))
            a("v_add_u32 v8, 20, v%d" % u)
            a("v_min_u32 v%d, v%d, v8" % (u, u))
            a("v_add_u32 v%d, 6, v%d" % (t, u))
            a("v_lshrrev_b32 v%d, 4, v%d" % (t, t))
            a("v_mul_u32_u24 v%d, s%d, v%d" % (kk, S_T3, kk))
            a("v_lshl_add_u32 v%d, v%d, 4, v%d" % (kk, u, kk))
            a("v_mad_u32_u24 v%d, v%d, s%d, v%d" % (q, t, S_T5, kk))
            a("v_add_u32 v%d, s%d, v%d" % (V_DMA + j, S_T2, q))
        a("s_mul_i32 s%d, s%d, 5120" % (S_T0, S_RG))
        for k in range(4): a("s_add_u32 s%d, s%d, %d" % (S_SB + k, S_T0, LDS_W + k * WSLOT))
        a("s_mov_b32 s%d, %d" % (S_STEP, 64 * 3840))
        for k in range(1, 4): a("s_mov_b32 s%d, 0" % (S_J + k))
    def fx(a):
        a("s_lshl_b32 s%d, s%d, 7" % (S_T0, S_R))
        a("s_lshl_b32 s%d, s%d, 5" % (S_T1, S_RG))
        a("s_add_u32 s%d, s%d, s%d" % (S_T0, S_T0, S_T1))
        a("s_mul_i32 s%d, s%d, 1280" % (S_T0, S_T0))
        a("s_movk_i32 s%d, 1280" % S_T1)
        a("v_lshrrev_b32 v4, 3, v%d" % V_LANE)
        a("v_and_b32 v5, 7, v%d" % V_LANE)
        a("v_xor_b32 v5, v5, v4")
        a("v_mul_u32_u24 v4, s%d, v4" % S_T1)
        a("v_lshl_add_u32 v4, v5, 4, v4")
        a("v_add_u32 v%d, s%d, v4" % (V_DMA, S_T0))
        for j in range(1, 5): a("v_mov_b32 v%d, v%d" % (V_DMA + j, V_DMA))
        for j in range(5): a("v_mov_b32 v%d, 0" % (V_DMA2 + j))
        a("s_lshl_b32 s%d, s%d, 12" % (S_T0, S_RG))
        for k in range(4): a("s_add_u32 s%d, s%d, %d" % (S_SB + k, S_T0, k * XSLOT))
        a("s_movk_i32 s%d, 128" % S_STEP)
        for k in range(1, 4): a("s_mov_b32 s%d, %d" % (S_J + k, k * 10240))
        a("s_mov_b32 s%d, 0" % S_B12); a("s_mov_b32 s%d, 0" % S_C12)
    role_branch(a, fw, fx)
    a("s_mov_b32 s%d, 0" % S_SOFF)

def dma_setup2(a):
    def fw(a):
        for j in range(5):
            a("v_mad_u32_u24 v%d, v%d, s%d, v%d" % (V_DMA2 + j, V_DMA2 + j, S_C12, V_DMA + j))
            a("v_add_u32 v%d, s%d, v%d" % (V_DMA2 + j, S_B12, V_DMA2 + j))
        a("s_movk_i32 s%d, 3840" % S_T3)
        a("v_and_b32 v4, 31, v%d" % V_LANE)
        a("v_lshrrev_b32 v5, 5, v%d" % V_LANE)
        a("v_min_u32 v4, 19, v4")
        a("s_lshr_b32 s%d, s%d, 2" % (S_T0, S_G))
        a("v_mul_u32_u24 v6, 13, v4"); a("v_lshrrev_b32 v6, 7, v6")
        a("v_mul_u32_u24 v7, 52, v4"); a("v_lshrrev_b32 v7, 8, v7")
        a("v_mul_u32_u24 v8, 5, v7"); a("v_sub_u32 v8, v4, v8")
        a("v_lshlrev_b32 v8, 7, v8")
        a("v_lshl_add_u32 v6, v5, 6, v6")
        a("s_lshl_b32 s%d, s%d, 1" % (S_T2, S_I))
        a("v_add_u32 v6, s%d, v6" % S_T2)
        a("v_mul_u32_u24 v6, s%d, v6" % S_T3)
        a("v_and_b32 v9, 1, v7")
        a("s_movk_i32 s%d, 1280" % S_T2)
        a("v_mul_u32_u24 v9, s%d, v9" % S_T2)
        a("v_add3_u32 v6, v6, v9, v8")
        a("s_mul_i32 s%d, s%d, 640" % (S_T0, S_T0))
        a("s_add_u32 s%d, s%d, 1280" % (S_T2, S_T0))
        a("v_add_u32 v%d, s%d, v6" % (V_PF + 1, S_T2))
        a("v_lshl_add_u32 v7, v5, 7, v7")
        a("s_lshl_b32 s%d, s%d, 2" % (S_T2, S_I))
        a("v_add_u32 v7, s%d, v7" % S_T2)
        a("v_mul_u32_u24 v7, s%d, v7" % S_T3)
        a("v_add3_u32 v%d, v7, v8, s%d" % (V_PF + 2, S_T0))
        a("v_mov_b32 v%d, 0" % V_PF)
    def fx(a):
        a("s_movk_i32 s%d, 1280" % S_T1)
        a("v_and_b32 v4, 31, v%d" % V_LANE)
        a("v_lshrrev_b32 v5, 5, v%d" % V_LANE)
        a("s_lshr_b32 s%d, s%d, 3" % (S_T0, S_R))
        a("s_lshl_b32 s%d, s%d, 5" % (S_T0, S_T0))
        a("s_add_u32 s%d, s%d, s%d" % (S_T0, S_T0, S_I))
        a("s_mul_i32 s%d, s%d, %d" % (S_T0, S_T0, 32 * 1280))
        a("v_mul_u32_u24 v6, s%d, v4" % S_T1)
        a("v_lshl_add_u32 v6, v5, 7, v6")
        a("v_add_u32 v%d, s%d, v6" % (V_PF, S_T0))
        a("v_mov_b32 v%d, 0" % (V_PF + 1)); a("v_mov_b32 v%d, 0" % (V_PF + 2))
    role_branch(a, fw, fx)

def entry_srd(a):
    a("s_waitcnt lgkmcnt(0)")
    a("s_cmp_eq_u32 s%d, 0" % S_BR)
    a("s_cselect_b32 s%d, s4, s10" % S_X)
    a("s_cselect_b32 s%d, s5, s11" % (S_X + 1))
    a("s_mov_b32 s%d, 2621440" % (S_X + 2))
    a("s_mov_b32 s%d, 0x20000" % (S_X + 3))
    a("s_cselect_b32 s%d, s6, s12" % S_W)
    a("s_cselect_b32 s%d, s7, s13" % (S_W + 1))
    a("s_mov_b32 s%d, 2457600" % (S_W + 2))
    a("s_mov_b32 s%d, 0x20000" % (S_W + 3))
    a("s_cmp_eq_u32 s%d, 0" % S_CS)
    a("s_cselect_b32 s%d, s%d, s%d" % (S_D, S_W, S_X))
    a("s_cselect_b32 s%d, s%d, s%d" % (S_D + 1, S_W + 1, S_X + 1))
    a("s_cselect_b32 s%d, s%d, s%d" % (S_D + 2, S_W + 2, S_X + 2))
    a("s_mov_b32 s%d, 0x20000" % (S_D + 3))

def entry_srd2(a):
    if WS_BASE:
        a("s_add_u32 s20, s20, %d" % WS_BASE)
        a("s_addc_u32 s21, s21, 0")
    srd(a, S_WS, 20, 21, WS_SIZE)
    srd(a, S_OUT, 16, 17, 5242880)
    srd(a, S_WO, 8, 9, 819200)
    srd(a, S_WOB, 14, 15, 819200)
    if STAMPS:
        a("s_mov_b32 s101, s100")
        a("s_mov_b32 s100, s62")
        if S_ST == 4:
            for i in range(NST): a("s_mov_b32 s%d, 0" % (S_ST + 2 * i))

def pf(kind, idx, k):
    def f(a):
        if 'nopf' in OPT: return
        def body(a):
            if kind == 'x': a("s_mov_b32 s%d, %d" % (S_OFF, idx * 256)); s_, v = S_X, V_PF
            elif kind == 'w': a("s_mov_b32 s%d, %d" % (S_OFF, idx * 128 * 3840)); s_, v = S_W, V_PF + 1
            else: a("s_mov_b32 s%d, %d" % (S_OFF, idx * 256 * 3840)); s_, v = S_W, V_PF + 2
            if 'pfhalf' in OPT and kind == 'x': a("s_mov_b32 exec_hi, 0")
            if 'nopfx' in OPT and kind == 'x': return
            if 'nopfw' in OPT and kind != 'x': return
            a("buffer_load_dword v%d, v%d, s[%d:%d], s%d offen %s" % (V_PFD, v, s_, s_ + 3, S_OFF, PFL))
            if 'pfhalf' in OPT and kind == 'x': a("s_mov_b32 exec_hi, -1")
        on_wave(a, (4 + k) if kind == 'x' else k, body)
    return f

def dma(sig, j):
    def f(a):
        if 'nodma' in OPT and sig >= 3: return
        slot = sig % 4
        def body(a):
            a("s_add_u32 m0, s%d, %d" % (S_SB + slot, j * 1024))
            if sig < 10:
                if 1 <= j <= 3:
                    a("s_add_u32 s%d, s%d, s%d" % (S_OFF, S_SOFF, S_J + j)); so = S_OFF
                else:
                    a("s_nop 0"); so = S_SOFF
                a("buffer_load_dwordx4 v%d, s[%d:%d], s%d offen %s lds" % (V_DMA + j, S_D, S_D + 3, so, DML))
            else:
                a("s_mov_b32 s%d, %d" % (S_OFF, (sig - 10) * 128 * 3840))
                a("buffer_load_dwordx4 v%d, s[%d:%d], s%d offen %s lds" % (V_DMA2 + j, S_D, S_D + 3, S_OFF, DML))
        if sig >= 10 or j == 4: role_branch(a, body, None)
        else: body(a)
        if sig < 10 and j == 4: a("s_add_u32 s%d, s%d, s%d" % (S_SOFF, S_SOFF, S_STEP))
    return f

def img_pos(a, dst, tmp):
    a("v_lshl_add_u32 v%d, v%d, 2, v%d" % (tmp, V_KG, V_N))
    a("v_and_b32 v%d, 15, v%d" % (tmp, tmp))
    a("v_lshl_add_u32 v%d, v%d, 4, v%d" % (tmp, V_KG, tmp))
    a("v_lshlrev_b32 v%d, 4, v%d" % (dst, tmp))

E_, RP, BB, W4, TM = V_ACC2, V_ACC2 + 1, V_ACC2 + 2, V_ACC2 + 3, V_ACC2 + 4
def addr1_setup(a):
    a("v_and_b32 v4, 7, v%d" % V_N)
    a("s_lshl_b32 s%d, s%d, 12" % (S_T0, S_RG))
    a("v_lshlrev_b32 v5, 7, v%d" % V_N)
    a("v_xor_b32 v4, v4, v%d" % V_KG)
    a("v_lshl_add_u32 v4, v4, 4, v5")
    a("s_xor_b32 s%d, s%d, 1" % (S_T5, S_CS))
    a("s_lshl_b32 s%d, s%d, 6" % (S_T1, S_T5))
    a("s_lshl_b32 s%d, s%d, 11" % (S_T2, S_CS))
    a("s_or_b32 s%d, s%d, s%d" % (S_T1, S_T1, S_T2))
    a("s_or_b32 s%d, s%d, s%d" % (S_T1, S_T1, S_T0))
    a("v_xor_b32 v%d, s%d, v4" % (V_XA, S_T1))
    a("v_xor_b32 v%d, 0x800, v%d" % (V_XA + 1, V_XA))
    a("v_xor_b32 v%d, 64, v%d" % (V_XA + 2, V_XA))
    a("v_xor_b32 v%d, 64, v%d" % (V_XA + 3, V_XA + 1))
    a("v_and_b32 v4, 3, v%d" % V_N)
    a("v_lshrrev_b32 v%d, 2, v%d" % (RP, V_N))
    a("v_and_b32 v7, 1, v%d" % V_KG)
    a("v_lshl_add_u32 v%d, v%d, 3, v%d" % (RP, V_KG, RP))
    a("s_movk_i32 s%d, 320" % S_T1)
    a("v_lshlrev_b32 v7, 5, v7")
    a("v_mul_u32_u24 v%d, s%d, v%d" % (RP, S_T1, RP))
    a("v_lshl_add_u32 v%d, v4, 3, v7" % E_)
    a("v_add_u32 v%d, %d, v%d" % (RP, LDS_W, RP))
    a("v_add_u32 v%d, v%d, v%d" % (BB, RP, E_))
    a("s_mul_i32 s%d, s%d, 160" % (S_T2, S_CS))
    a("s_mul_i32 s%d, s%d, 80" % (S_T3, S_CS))
    a("s_mul_i32 s%d, s%d, 10240" % (S_T0, S_T5))
    a("s_mul_i32 s%d, s%d, 10240" % (S_T1, S_CS))
    def sA(T):
        a("s_add_u32 s%d, s%d, %d" % (S_T4, S_T2, 40 * T))
        a("s_add_u32 s%d, s%d, %d" % (S_T5, S_T3, (T >> 1) * 160 + 40 * (T & 1)))
        a("s_cmp_eq_u32 s%d, 0" % S_BR)
        a("s_cselect_b32 s%d, s%d, s%d" % (S_T4, S_T4, S_T5))
    for T in range(3):
        sA(T)
        a("s_add_u32 s%d, s%d, s%d" % (S_T5, S_T4, S_T0))
        a("v_add_u32 v%d, s%d, v%d" % (V_WA + T, S_T5, BB))
        a("s_add_u32 s%d, s%d, s%d" % (S_T5, S_T4, S_T1))
        a("v_add_u32 v%d, s%d, v%d" % (V_WA + 5 + T, S_T5, BB))
    sA(3)
    a("v_add_u32 v5, s%d, v%d" % (S_T4, E_))
    minwrap(a, 5, 320, TM)
    a("v_add_u32 v5, v5, v%d" % RP)
    a("v_add_u32 v%d, s%d, v5" % (V_WA + 3, S_T0))
    a("v_add_u32 v%d, s%d, v5" % (V_WA + 8, S_T1))
    a("s_cmp_eq_u32 s%d, 0" % S_BR)
    a("s_cselect_b32 s%d, s%d, s%d" % (S_T4, S_T2, S_T3))
    a("s_cselect_b32 s%d, 0, 80" % S_T5)
    a("s_add_u32 s%d, s%d, 32" % (S_T4, S_T4))
    a("v_mul_u32_u24 v%d, 40, v4" % (W4))
    a("v_lshrrev_b32 v5, 1, v4")
    a("v_add_u32 v%d, v%d, v7" % (W4, W4))
    a("v_mad_u32_u24 v5, v5, s%d, v%d" % (S_T5, W4))
    a("v_add_u32 v5, s%d, v5" % S_T4)
    minwrap(a, 5, 320, TM)
    a("v_add_u32 v5, v5, v%d" % RP)
    a("v_add_u32 v%d, s%d, v5" % (V_WA + 4, S_T0))
    a("v_add_u32 v%d, s%d, v5" % (V_WA + 9, S_T1))

def addr2_setup(a):
    a("s_mul_i32 s%d, s%d, 10240" % (S_T1, S_CS))
    for seg in range(2):
        for T in range(4):
            if seg == 1 and T == 3: continue
            a("s_add_u32 s%d, s%d, %d" % (S_T4, S_T1, seg * 160 + 40 * T))
            a("v_add_u32 v%d, s%d, v%d" % (V_WA2 + seg * 5 + T, S_T4, BB))
    a("v_add_u32 v5, 280, v%d" % E_)
    minwrap(a, 5, 320, TM)
    a("v_add3_u32 v%d, v5, v%d, s%d" % (V_WA2 + 8, RP, S_T1))
    a("s_add_u32 s%d, s%d, 32" % (S_T4, S_T1))
    a("v_add3_u32 v%d, v%d, v%d, s%d" % (V_WA2 + 4, W4, RP, S_T4))
    a("v_add_u32 v5, 192, v%d" % (W4))
    minwrap(a, 5, 320, TM)
    a("v_add3_u32 v%d, v5, v%d, s%d" % (V_WA2 + 9, RP, S_T1))
    img_pos(a, V_IMG, 4)

def p1_reads(s, hf):
    if 'noread' in OPT: return ["s_nop 0"] * 12
    slot = s % 4
    wb = V_WB0 if hf == 0 else V_WB1
    L = []
    for tp in range(2):
        dst = (V_XT + 4 * tp) if hf == 0 else (V_XP + (s * 2 + tp) * 4)
        L.append("ds_read_b128 %s, v%d offset:%d" % (vr(dst, 4), V_XA + hf * 2 + tp, slot * XSLOT))
    for T in range(5):
        for rd in range(2):
            L.append("ds_read_b64_tr_b16 %s, v%d offset:%d" % (vr(wb + 4 * T + 2 * rd, 2), V_WA + hf * 5 + T, slot * WSLOT + rd * 1280))
    return L
def p1_mfmas(s, hf, first):
    if 'nomfma' in OPT: return ["s_nop 0"] * 10
    wb = V_WB0 if hf == 0 else V_WB1
    return [mfma16(V_ACC + (tp * 5 + T) * 4, (V_XT + 4 * tp) if hf == 0 else (V_XP + (s * 2 + tp) * 4), wb + 4 * T, "0" if first else None)
            for T in range(5) for tp in range(2)]
def p2_reads(u):
    v, seg = u >> 1, u & 1
    slot = (10 + v) % 4
    wb = V_WB0 if (u & 1) == 0 else V_WB1
    return ["ds_read_b64_tr_b16 %s, v%d offset:%d" % (vr(wb + 4 * T + 2 * rd, 2), V_WA2 + seg * 5 + T, slot * WSLOT + rd * 1280)
            for T in range(5) for rd in range(2)]
def p2_mfmas(u):
    wb = V_WB0 if (u & 1) == 0 else V_WB1
    return [mfma16(V_ACC2 + (tp * 5 + T) * 4, V_XP + (u * 2 + tp) * 4, wb + 4 * T, "0" if u == 0 else None)
            for T in range(5) for tp in range(2)]

def half(a, lq, mf, needs, reads, sched, extra):
    ids = []
    reads = list(reads)
    for i, m in enumerate(mf):
        lq.need(needs[i])
        a(m)
        for _ in range(sched[i]):
            if reads: ids.append(lq.issue(reads.pop(0)))
        if i in extra: emit(a, extra[i])
    while reads: ids.append(lq.issue(reads.pop(0)))
    return ids

def epi1_A(a):
    a("s_lshr_b32 s%d, s%d, 2" % (S_T0, S_G1))
    a("s_lshl_b32 s%d, s%d, 3" % (S_T0, S_T0))
    a("s_and_b32 s%d, s%d, 3" % (S_T1, S_G1))
    a("s_lshl_b32 s%d, s%d, 1" % (S_T1, S_T1))
    a("s_add_u32 s%d, s%d, s%d" % (S_T0, S_T0, S_T1))
    a("s_add_u32 s%d, s%d, s%d" % (S_T0, S_T0, S_CS))
    a("s_lshl_b32 s%d, s%d, 6" % (S_T0, S_T0))
    a("s_lshl_b32 s%d, s%d, 2" % (S_T1, S_R))
    a("s_add_u32 s%d, s%d, s%d" % (S_T0, S_T0, S_T1))
    a("s_add_u32 s%d, s%d, s%d" % (S_T0, S_T0, S_RG))
    a("s_mul_i32 s%d, s%d, 5120" % (S_T0, S_T0))
    a("s_add_u32 s%d, s%d, %d" % (S_T0, S_T0, WS_KV))
    a("s_add_u32 s%d, s%d, 4096" % (S_T1, S_T0))
    def pack(swap):
        def f(a):
            for T in range(5):
                e = V_ACC2 + T * 4
                for t in range(2):
                    tp = t ^ swap
                    d = V_ACC + (tp * 5 + T) * 4
                    a("v_cvt_pk_bf16_f32 v%d, v%d, v%d" % (e + 2 * t, d, d + 1))
                    a("v_cvt_pk_bf16_f32 v%d, v%d, v%d" % (e + 2 * t + 1, d + 2, d + 3))
                a("buffer_store_dwordx4 %s, v%d, s[%d:%d], s%d offen offset:%d %s" % (vr(e, 4), V_IMG, S_WS, S_WS + 3, S_T1 if T == 4 else S_T0, (T & 3) * 1024, ST))
                if 'dbl' in OPT:
                    a("buffer_store_dwordx4 %s, v%d, s[%d:%d], s%d offen offset:%d" % (vr(e, 4), V_IMG, S_WS, S_WS + 3, S_T1 if T == 4 else S_T0, (T & 3) * 1024))
        return f
    role_branch(a, pack(0), pack(1))
    a("s_nop 1")

def phi(a, regs, tmp):
    a("s_mov_b32 s%d, 0x%x" % (S_T4, f2u(LOG2E)))
    a("s_mov_b32 s%d, 0x%x" % (S_T5, f2u(LOG2E)))
    a("s_mov_b32 s%d, 0x%x" % (S_M2, f2u(1e-6)))
    a("s_mov_b32 s%d, 0x%x" % (S_M2 + 1, f2u(1e-6)))
    for i in range(0, len(regs), 4):
        g = regs[i:i + 4]
        assert g[0] % 2 == 0 and g[1] == g[0] + 1 and g[2] % 2 == 0 and g[3] == g[2] + 1
        for k in (0, 2): a("v_pk_mul_f32 %s, %s, s[%d:%d]" % (vr(tmp + k, 2), vr(g[k], 2), S_T4, S_T5))
        for k in range(4): a("v_exp_f32_e64 v%d, v%d clamp" % (tmp + k, tmp + k))
        for k in range(4): a("v_max_f32 v%d, 0, v%d" % (g[k], g[k]))
        for k in (0, 2): a("v_pk_add_f32 %s, %s, s[%d:%d]" % (vr(g[k], 2), vr(g[k], 2), S_M2, S_M2 + 1))
        for k in (0, 2): a("v_pk_add_f32 %s, %s, %s" % (vr(g[k], 2), vr(g[k], 2), vr(tmp + k, 2)))

def piece_decode(a):
    a("s_and_b32 s%d, s%d, 1" % (S_T0, S_WV))
    a("s_lshl_b32 s%d, s%d, 6" % (S_T0, S_T0))
    a("v_add_u32 v5, s%d, v%d" % (S_T0, V_LANE))
    a("s_movk_i32 s%d, 2731" % S_T1)
    a("v_mul_u32_u24 v6, s%d, v5" % S_T1)
    a("v_lshrrev_b32 v6, 16, v6")
    a("v_mul_u32_u24 v7, 24, v6")
    a("v_sub_u32 v7, v5, v7")

B_WR, B_RD, B_GO = V_ACC2 + 16, V_ACC2 + 17, V_ACC2 + 18
S_BM, S_BB = 90, 92
def epi1B_pre(a):
    M = V_ACC2 + 19
    a("s_mul_i32 s%d, s%d, 7168" % (S_T0, S_WV))
    a("v_lshlrev_b32 v4, 4, v%d" % V_LANE)
    a("v_add_u32 v%d, s%d, v4" % (B_WR, S_T0))
    piece_decode(a)
    a("s_lshr_b32 s%d, s%d, 1" % (S_T2, S_WV))
    a("s_and_b32 s%d, s%d, 1" % (S_T3, S_T2))
    a("s_lshr_b32 s%d, s%d, 1" % (S_T2, S_T2))
    a("s_lshl_b32 s%d, s%d, 2" % (S_T4, S_T3))
    a("s_sub_u32 s%d, s%d, 8" % (S_T4, S_T4))
    a("v_add_u32 v8, s%d, v7" % S_T4)
    a("v_cmp_gt_u32_e64 s[%d:%d], 20, v7" % (S_M0, S_M0 + 1))
    a("v_cmp_gt_u32_e64 s[%d:%d], 16, v7" % (S_M1, S_M1 + 1))
    a("v_cmp_gt_u32_e64 s[%d:%d], 4, v6" % (S_M2, S_M2 + 1))
    a("s_nop 1")
    a("v_cndmask_b32_e64 v8, 0, v8, s[%d:%d]" % (S_M0, S_M0 + 1))
    a("v_cndmask_b32_e64 v8, v8, v7, s[%d:%d]" % (S_M1, S_M1 + 1))
    a("v_mov_b32 v4, s%d" % S_T3)
    a("v_cndmask_b32_e64 v4, v4, v6, s[%d:%d]" % (S_M2, S_M2 + 1))
    a("v_lshl_add_u32 v8, v4, 4, v8")
    a("s_add_u32 s%d, s%d, 4" % (S_T4, S_T3))
    a("v_mov_b32 v4, s%d" % S_T4)
    a("v_mov_b32 v%d, s%d" % (M, S_T3))
    a("v_cndmask_b32_e64 v4, v4, v%d, s[%d:%d]" % (M, S_M2, S_M2 + 1))
    a("s_add_u32 s%d, s%d, 2" % (S_T4, S_T3))
    a("v_mov_b32 v%d, s%d" % (M, S_T4))
    a("v_cndmask_b32_e64 v%d, 6, v%d, s[%d:%d]" % (M, M, S_M2, S_M2 + 1))
    a("v_cndmask_b32_e64 v4, v%d, v4, s[%d:%d]" % (M, S_M1, S_M1 + 1))
    a("v_lshlrev_b32 v4, 10, v4")
    a("v_lshl_add_u32 v8, v8, 4, v4")
    a("s_mul_i32 s%d, s%d, %d" % (S_T4, S_T2, 4 * 7168))
    a("v_add_u32 v8, s%d, v8" % S_T4)
    a("v_cmp_gt_u32_e64 s[%d:%d], 21, v7" % (S_M0, S_M0 + 1))
    a("v_cmp_gt_u32_e64 s[%d:%d], 5, v6" % (S_M1, S_M1 + 1))
    a("v_min_u32 v%d, %d, v8" % (B_RD, 8 * 7168 - 3 * 7168 - 16))
    a("s_lshl_b32 s%d, s%d, 4" % (S_BB, S_G))
    a("s_add_u32 s%d, s%d, s%d" % (S_BB, S_BB, S_R))
    a("s_lshl_b32 s%d, s%d, 12" % (S_BB, S_BB))
    a("s_lshr_b32 s%d, s%d, 1" % (S_T1, S_WV))
    a("s_lshl_b32 s%d, s%d, 10" % (S_T1, S_T1))
    a("s_add_u32 s%d, s%d, s%d" % (S_BB, S_BB, S_T1))
    a("s_add_u32 s%d, s%d, %d" % (S_BB, S_BB, WS_PART))
    a("v_lshlrev_b32 v%d, 3, v5" % B_GO)
    a("s_and_b64 s[%d:%d], s[%d:%d], s[%d:%d]" % (S_BM, S_BM + 1, S_M0, S_M0 + 1, S_M1, S_M1 + 1))

def epi1_B(a):
    acc = lambda tp, T: V_ACC + (tp * 5 + T) * 4
    raw = V_WB0
    TMP = V_ACC2
    a("s_nop 7")
    for tp in range(2):
        for k in range(4): a("v_mov_b32 v%d, v%d" % (raw + tp * 4 + k, acc(tp, 4) + k))
    regs = []
    for T in (0, 1, 4):
        for tp in range(2): regs += [acc(tp, T) + k for k in range(4)]
    phi(a, regs, TMP)
    a("s_mov_b32 s%d, 0x00ff00ff" % S_M0)
    a("s_mov_b32 s%d, 0x00ff00ff" % (S_M0 + 1))
    for tp in range(2):
        for k in range(4):
            a("v_cndmask_b32_e64 v%d, v%d, v%d, s[%d:%d]" % (acc(tp, 4) + k, raw + tp * 4 + k, acc(tp, 4) + k, S_M0, S_M0 + 1))
    P = V_WB1
    for T in range(5):
        for tp in range(2):
            d = acc(tp, T)
            a("v_cvt_pk_bf16_f32 v%d, v%d, v%d" % (P + 4 * T + 2 * tp, d, d + 1))
            a("v_cvt_pk_bf16_f32 v%d, v%d, v%d" % (P + 4 * T + 2 * tp + 1, d + 2, d + 3))
    TB = V_WB0 + 8
    a("v_mov_b32 v%d, 0x3f803f80" % TMP)
    for k in range(4):
        a("v_cndmask_b32_e64 v%d, v%d, v%d, s[%d:%d]" % (TB + k, P + 16 + k, TMP, S_M0, S_M0 + 1))
    F0, F1, V0, V1, TA = P, P + 4, P + 8, P + 12, P + 16
    D = V_ACC
    for i, (x, y) in enumerate([(F0, V0), (F1, V1), (F0, TB), (F1, TB), (TA, V0), (TA, V1), (TA, TB)]):
        a(mfma16(D + 4 * i, x, y, "0"))
    a("s_barrier")
    a("s_nop 7")
    for i in range(7):
        a("ds_write_b128 v%d, %s offset:%d" % (B_WR, vr(D + 4 * i, 4), i * 1024))
    a("s_waitcnt lgkmcnt(0)")
    a("s_barrier")
    E = V_ACC
    for rg in range(4): a("ds_read_b128 %s, v%d offset:%d" % (vr(E + 4 * rg, 4), B_RD, rg * 7168))
    a("s_waitcnt lgkmcnt(0)")
    for k in (0, 2):
        a("v_pk_add_f32 %s, %s, %s" % (vr(E + k, 2), vr(E + k, 2), vr(E + 4 + k, 2)))
        a("v_pk_add_f32 %s, %s, %s" % (vr(E + 8 + k, 2), vr(E + 8 + k, 2), vr(E + 12 + k, 2)))
    for k in (0, 2): a("v_pk_add_f32 %s, %s, %s" % (vr(E + k, 2), vr(E + k, 2), vr(E + 8 + k, 2)))
    a("v_cvt_pk_bf16_f32 v%d, v%d, v%d" % (E, E, E + 1))
    a("v_cvt_pk_bf16_f32 v%d, v%d, v%d" % (E + 1, E + 2, E + 3))
    a("s_mov_b64 exec, s[%d:%d]" % (S_BM, S_BM + 1))
    a("buffer_store_dwordx2 %s, v%d, s[%d:%d], s%d offen %s" % (vr(E, 2), B_GO, S_WS, S_WS + 3, S_BB, ST))
    a("s_mov_b64 exec, -1")

LDS_Q = 143360
S_PM, S_PB = 80, 82
V_PO = 88
P_SUM = V_XP
S_PO, S_PK = 95, 96
def first_poll_load(a, two):
    if two: a("buffer_load_dwordx2 v[8:9], v7, s[%d:%d], s%d offen sc1" % (S_WS, S_WS + 3, S_PO))
    else: a("buffer_load_dword v8, v7, s[%d:%d], s%d offen sc1" % (S_WS, S_WS + 3, S_PO))

def pre2_begin(a):
    lb, ld = a.newlabel("p2b"), a.newlabel("p2d")
    a("s_cmp_eq_u32 s%d, 0" % S_BR)
    a("s_cbranch_scc0 %s" % lb)
    kv_params(a)
    a("v_and_b32 v7, 7, v%d" % V_LANE)
    a("v_lshrrev_b32 v8, 3, v%d" % V_LANE)
    a("v_and_b32 v9, 3, v8")
    a("v_lshrrev_b32 v8, 2, v8")
    a("v_lshlrev_b32 v8, 12, v8")
    a("v_lshlrev_b32 v9, 7, v9")
    a("v_sub_u32 v8, v8, v9")
    a("v_lshl_add_u32 v7, v7, 2, v8")
    a("s_and_b32 s%d, s%d, 4" % (S_T0, S_G))
    a("s_and_b32 s%d, s%d, 3" % (S_T1, S_G))
    a("s_lshr_b32 s%d, s%d, 1" % (S_T1, S_T1))
    a("s_add_u32 s%d, s%d, s%d" % (S_T0, S_T0, S_T1))
    a("s_lshl_b32 s%d, s%d, 4" % (S_T0, S_T0))
    a("s_add_u32 s%d, s%d, s%d" % (S_T0, S_T0, S_R))
    a("s_lshl_b32 s%d, s%d, 7" % (S_T0, S_T0))
    a("s_add_u32 s%d, s%d, %d" % (S_T0, S_T0, F_KV))
    a("v_add_u32 v7, s%d, v7" % S_T0)
    a("s_min_u32 s%d, s%d, 2" % (S_T1, S_R))
    a("s_lshl_b32 s%d, s%d, 3" % (S_T1, S_T1))
    a("s_lshl_b32 s%d, 0x100, s%d" % (S_T1, S_T1))
    a("s_sub_u32 s%d, s%d, 1" % (S_PK, S_T1))
    a("s_mov_b32 s%d, 0" % S_PO)
    def ia(a):
        a("s_mov_b32 exec_lo, s%d" % S_PK); a("s_mov_b32 exec_hi, s%d" % S_PK)
        first_poll_load(a, False)
        a("s_mov_b64 exec, -1")
    on_wave(a, 0, ia)
    a("s_branch %s" % ld)
    a.label(lb)
    piece_decode(a)
    a("v_cmp_gt_u32_e64 s[%d:%d], 21, v7" % (S_M0, S_M0 + 1))
    a("v_cmp_gt_u32_e64 s[%d:%d], 5, v6" % (S_M1, S_M1 + 1))
    a("s_lshl_b32 s%d, s%d, 16" % (S_PB, S_G))
    a("s_lshr_b32 s%d, s%d, 1" % (S_T1, S_WV))
    a("s_lshl_b32 s%d, s%d, 10" % (S_T1, S_T1))
    a("s_add_u32 s%d, s%d, s%d" % (S_PB, S_PB, S_T1))
    a("s_add_u32 s%d, s%d, %d" % (S_PB, S_PB, WS_PART))
    a("v_lshlrev_b32 v%d, 3, v5" % V_PO)
    a("s_and_b64 s[%d:%d], s[%d:%d], s[%d:%d]" % (S_PM, S_PM + 1, S_M0, S_M0 + 1, S_M1, S_M1 + 1))
    a("v_and_b32 v7, 3, v%d" % V_LANE)
    a("v_lshrrev_b32 v8, 2, v%d" % V_LANE)
    a("v_lshlrev_b32 v8, 7, v8")
    a("v_lshl_add_u32 v7, v7, 3, v8")
    a("s_lshl_b32 s%d, s%d, 11" % (S_PO, S_G))
    a("s_add_u32 s%d, s%d, %d" % (S_PO, S_PO, F_PART))
    a("s_mov_b32 s%d, -1" % S_PK)
    on_wave(a, 0, lambda a: first_poll_load(a, True))
    a.label(ld)

def pre2(a):
    def body(a):
        lb, lchk = a.newlabel("qb"), a.newlabel("qc")
        lp, ld = a.newlabel("qp"), a.newlabel("qd")
        a("s_mov_b32 exec_lo, s%d" % S_PK); a("s_mov_b32 exec_hi, s%d" % S_PK)
        a("s_mov_b32 s%d, 0" % S_T5)
        a.label(lp)
        a("s_waitcnt vmcnt(0)")
        a("v_xor_b32 v8, s%d, v8" % S_NONCE)
        a("s_cmp_eq_u32 s%d, 0" % S_BR)
        a("s_cbranch_scc1 %s" % lchk)
        a("v_xor_b32 v9, s%d, v9" % S_NONCE)
        a("v_or_b32 v8, v8, v9")
        a.label(lchk)
        a("v_cmp_ne_u32_e64 s[%d:%d], 0, v8" % (S_M0, S_M0 + 1))
        a("s_add_u32 s%d, s%d, 1" % (S_T5, S_T5))
        a("s_nop 1")
        a("s_cmp_eq_u64 s[%d:%d], 0" % (S_M0, S_M0 + 1))
        a("s_cbranch_scc1 %s" % ld)
        a("s_cmp_ge_u32 s%d, %d" % (S_T5, SPIN_LIMIT))
        a("s_cbranch_scc1 %s" % ld)
        a("s_sleep 1")
        a("s_cmp_eq_u32 s%d, 0" % S_BR)
        a("s_cbranch_scc0 %s" % lb)
        first_poll_load(a, False)
        a("s_branch %s" % lp)
        a.label(lb)
        first_poll_load(a, True)
        a("s_branch %s" % lp)
        a.label(ld)
        a("s_mov_b64 exec, -1")
    on_wave(a, 0, body)

def early_load(k):
    def f(a):
        lb, ld = a.newlabel("elb"), a.newlabel("eld")
        a("s_cmp_eq_u32 s%d, 0" % S_BR)
        a("s_cbranch_scc0 %s" % lb)
        kv_load(0, k)(a)
        a("s_branch %s" % ld)
        a.label(lb)
        a("s_mov_b64 exec, s[%d:%d]" % (S_PM, S_PM + 1))
        for r in (2 * k, 2 * k + 1):
            a("s_add_u32 s%d, s%d, %d" % (S_OFF, S_PB, r * 4096))
            a("buffer_load_dwordx2 %s, v%d, s[%d:%d], s%d offen %s" % (vr(P_SUM + 2 * r, 2), V_PO, S_WS, S_WS + 3, S_OFF, LD))
        a("s_mov_b64 exec, -1")
        a.label(ld)
    return f

def epi2(a):
    XCH = 102400
    pre2(a)
    stamp(a, "poll1")
    a("s_mul_i32 s%d, s%d, 5120" % (S_T0, S_WV))
    a("s_add_u32 s%d, s%d, %d" % (S_T0, S_T0, XCH))
    a("v_lshlrev_b32 v4, 4, v%d" % V_LANE)
    a("s_xor_b32 s%d, s%d, 4" % (S_T1, S_WV))
    a("v_add_u32 v5, s%d, v4" % S_T0)
    a("s_mul_i32 s%d, s%d, 5120" % (S_T1, S_T1))
    a("s_add_u32 s%d, s%d, %d" % (S_T1, S_T1, XCH))
    a("s_barrier")
    for T in range(5): a("ds_write_b128 v5, %s offset:%d" % (vr(V_ACC2 + (5 + T) * 4, 4), T * 1024))
    early_load(0)(a)
    a("v_add_u32 v5, s%d, v4" % S_T1)
    a("s_lshl_b32 s%d, s%d, 3" % (S_T1, S_CS))
    a("v_add_u32 v4, s%d, v%d" % (S_T1, V_IMG))
    a("s_mul_i32 s%d, s%d, 5120" % (S_T0, S_RG))
    a("s_add_u32 s%d, s%d, %d" % (S_T0, S_T0, LDS_Q))
    a("v_add_u32 v4, s%d, v4" % S_T0)
    a("s_waitcnt lgkmcnt(0)")
    a("s_barrier")
    R = V_WB0
    for T in range(5): a("ds_read_b128 %s, v5 offset:%d" % (vr(R + 4 * T, 4), T * 1024))
    early_load(1)(a)
    regs = [V_ACC2 + T * 4 + k for T in range(5) for k in range(4)]
    for T in range(5):
        a("s_waitcnt lgkmcnt(%d)" % (4 - T))
        for k in (0, 2):
            a("v_pk_add_f32 %s, %s, %s" % (vr(V_ACC2 + 4 * T + k, 2), vr(V_ACC2 + 4 * T + k, 2), vr(R + 4 * T + k, 2)))
    early_load(2)(a)
    lb, ld = a.newlabel("e2b"), a.newlabel("e2d")
    a("s_cmp_eq_u32 s%d, 0" % S_BR)
    a("s_cbranch_scc0 %s" % lb)
    a("s_mov_b32 s%d, 0x%x" % (S_T2, f2u(QSCALE)))
    a("s_mov_b32 s%d, 0x%x" % (S_T3, f2u(QSCALE)))
    for k in range(0, 20, 2): a("v_pk_mul_f32 %s, %s, s[%d:%d]" % (vr(V_ACC2 + k, 2), vr(V_ACC2 + k, 2), S_T2, S_T3))
    a("s_branch %s" % ld)
    a.label(lb)
    for gi in range(5):
        phi(a, regs[4 * gi:4 * gi + 4], V_ACC)
        if gi in (0, 2, 4): early_load_B(3 + gi // 2)(a)
    a.label(ld)
    for T in range(5):
        d = V_ACC2 + T * 4
        a("v_cvt_pk_bf16_f32 v%d, v%d, v%d" % (R + 2 * T, d, d + 1))
        a("v_cvt_pk_bf16_f32 v%d, v%d, v%d" % (R + 2 * T + 1, d + 2, d + 3))
        a("ds_write_b64 v4, %s offset:%d" % (vr(R + 2 * T, 2), T * 1024))
        if T in (0, 2, 4): early_load_A(3 + T // 2)(a)
    early_load(6)(a)

def early_load_A(k):
    def f(a):
        l = a.newlabel("ela")
        a("s_cmp_eq_u32 s%d, 0" % S_BR)
        a("s_cbranch_scc0 %s" % l)
        kv_load(0, k)(a)
        a.label(l)
    return f
def early_load_B(k):
    def f(a):
        a("s_mov_b64 exec, s[%d:%d]" % (S_PM, S_PM + 1))
        for r in (2 * k, 2 * k + 1):
            a("s_add_u32 s%d, s%d, %d" % (S_OFF, S_PB, r * 4096))
            a("buffer_load_dwordx2 %s, v%d, s[%d:%d], s%d offen %s" % (vr(P_SUM + 2 * r, 2), V_PO, S_WS, S_WS + 3, S_OFF, LD))
        a("s_mov_b64 exec, -1")
    return f

def vm_wait_roles(a, nw, nx):
    if nw == nx: a("s_waitcnt vmcnt(%d)" % nw)
    else: role_branch(a, "s_waitcnt vmcnt(%d)" % nw, "s_waitcnt vmcnt(%d)" % nx)

def publish(a, s_off, wave=0):
    def body(a):
        a("v_mov_b32 v4, s%d" % S_NONCE)
        a("v_mov_b32 v5, 0")
        a("s_mov_b64 exec, 1")
        a("buffer_store_dword v4, v5, s[%d:%d], s%d offen sc0 sc1" % (S_WS, S_WS + 3, s_off))
        a("s_mov_b64 exec, -1")
    if wave is None: body(a)
    else: on_wave(a, wave, body)

def poll(a, voff, s_off, mask_lo, mask_hi, two=False):
    def body(a):
        lp, ld = a.newlabel("pp"), a.newlabel("pd")
        a("s_mov_b32 exec_lo, %s" % mask_lo)
        a("s_mov_b32 exec_hi, %s" % mask_hi)
        a("s_mov_b32 s%d, 0" % S_T5)
        a.label(lp)
        if two:
            a("buffer_load_dwordx2 v[8:9], v%d, s[%d:%d], s%d offen sc1" % (voff, S_WS, S_WS + 3, s_off))
            a("s_waitcnt vmcnt(0)")
            a("v_xor_b32 v8, s%d, v8" % S_NONCE)
            a("v_xor_b32 v9, s%d, v9" % S_NONCE)
            a("v_or_b32 v8, v8, v9")
            a("v_cmp_ne_u32_e64 s[%d:%d], 0, v8" % (S_M0, S_M0 + 1))
        else:
            a("buffer_load_dword v6, v%d, s[%d:%d], s%d offen sc1" % (voff, S_WS, S_WS + 3, s_off))
            a("s_waitcnt vmcnt(0)")
            a("v_cmp_ne_u32_e64 s[%d:%d], s%d, v6" % (S_M0, S_M0 + 1, S_NONCE))
        a("s_add_u32 s%d, s%d, 1" % (S_T5, S_T5))
        a("s_nop 1")
        a("s_cmp_eq_u64 s[%d:%d], 0" % (S_M0, S_M0 + 1))
        a("s_cbranch_scc1 %s" % ld)
        if 'nosleep' not in OPT: a("s_sleep 1")
        a("s_cmp_lt_u32 s%d, %d" % (S_T5, SPIN_LIMIT))
        a("s_cbranch_scc1 %s" % lp)
        a.label(ld)
        a("s_mov_b64 exec, -1")
    on_wave(a, 0, body)

def wo_pf_setup(a, v):
    a("v_mul_u32_u24 v4, 52, v%d" % V_LANE); a("v_lshrrev_b32 v4, 8, v4")
    a("v_mul_u32_u24 v5, 5, v4"); a("v_sub_u32 v5, v%d, v5" % V_LANE)
    a("s_mul_i32 s%d, s%d, 20" % (S_T0, S_I))
    a("v_add_u32 v4, s%d, v4" % S_T0)
    a("s_movk_i32 s%d, 1280" % S_T1)
    a("v_mul_u32_u24 v4, s%d, v4" % S_T1)
    a("v_lshl_add_u32 v4, v5, 7, v4")
    a("s_lshr_b32 s%d, s%d, 2" % (S_T0, S_G))
    a("s_mul_i32 s%d, s%d, 640" % (S_T0, S_T0))
    a("v_add_u32 v%d, s%d, v4" % (v, S_T0))
assert all((l * 52) >> 8 == l // 5 for l in range(64))

def wo_pf_issue(a, v, srd_):
    a("buffer_load_dword v%d, v%d, s[%d:%d], 0 offen %s" % (V_PFD, v, srd_, srd_ + 3, PFL))
    a("s_mov_b32 s%d, %d" % (S_OFF, 12 * 1280))
    a("buffer_load_dword v%d, v%d, s[%d:%d], s%d offen %s" % (V_PFD, v, srd_, srd_ + 3, S_OFF, PFL))

def phase1(a):
    dma_setup(a)
    if 'pf0first' in OPT: dma_setup2(a)
    stamp(a, "dset")
    entry_srd(a)
    stamp(a, "karg")
    if 'pf0first' in OPT:
        emit(a, [pf('x', 0, 0), pf('w', 0, 0)])
        emit(a, [dma(0, j) for j in range(5)])
        emit(a, [pf('x', 1, 1), pf('w', 1, 1)])
    else:
        emit(a, [dma(0, j) for j in range(5)])
        dma_setup2(a)
        emit(a, [pf('x', 0, 0), pf('w', 0, 0), pf('x', 1, 1), pf('w', 1, 1)])
    entry_srd2(a)
    stamp(a, "g0")
    addr1_setup(a)
    emit(a, [dma(1, j) for j in range(5)])
    emit(a, [pf('x', 2, 2), pf('w', 2, 2)])
    a("v_mov_b32 v8, 0")
    a("s_mov_b32 s%d, %d" % (S_OFF, WS_FLAG))
    a("buffer_load_dword v9, v8, s[%d:%d], s%d offen sc1" % (S_WS, S_WS + 3, S_OFF))
    stamp(a, "g1")
    vm_wait_roles(a, 6, 5)
    stamp(a, "g0land")
    a("s_barrier")
    stamp(a, "t0")
    lq = LQ(a)
    cur = [lq.issue(x) for x in p1_reads(0, 0)]
    SCH = {'e': [2, 1, 1, 1, 1, 2, 1, 1, 1, 1], 'f': [2, 2, 2, 2, 2, 2, 0, 0, 0, 0], 'm': [2, 2, 1, 1, 1, 1, 1, 1, 1, 1], 'g': [2, 2, 2, 1, 1, 1, 1, 1, 1, 0]}[SCHED]
    needs12 = lambda ids: [ids[2 + 2 * (i // 2) + 1] for i in range(10)]
    needs10 = lambda ids: [ids[2 * (i // 2) + 1] for i in range(10)]
    for s in range(10):
        ex0 = {}
        if s >= 1: ex0 = {2: dma(s + 2, 3), 6: dma(s + 2, 4)}
        if s == 0: ex0 = {0: dma(2, 0), 2: dma(2, 1), 4: dma(2, 2), 6: dma(2, 3), 8: dma(2, 4)}
        if s == 7:
            lines = rec(epi1B_pre)
            for k_, pos in enumerate((0, 1, 3, 4, 5, 7, 8, 9)):
                ex0[pos] = [ex0.get(pos), lines[k_ * len(lines) // 8:(k_ + 1) * len(lines) // 8]]
        if s == 5:
            lines = rec(addr2_setup)
            for k_, pos in enumerate((1, 3, 4, 5, 7, 8, 9)):
                ex0[pos] = [ex0.get(pos), lines[k_ * len(lines) // 7:(k_ + 1) * len(lines) // 7]]
        nxt = half(a, lq, p1_mfmas(s, 0, s == 0), needs12(cur), p1_reads(s, 1), SCH, ex0)
        if s == 0: vm_wait_roles(a, 6, 5)
        elif s == 8: vm_wait_roles(a, 5, 0)
        elif s == 9: a("s_waitcnt vmcnt(5)")
        else: vm_wait_roles(a, 5, 4)
        a("s_barrier")
        stamp(a, "s%d" % s)
        if s == 2:
            a("v_readfirstlane_b32 s%d, v9" % S_NONCE)
            a("s_nop 3")
            a("s_add_u32 s%d, s%d, 0x9e3779b9" % (S_NONCE, S_NONCE))
        pfl = []
        if s == 0: pfl = [pf('x', 3, 3), pf('w', 3, 3)]
        if s == 2: pfl = [pf('x', 4, 0), pf('w', 4, 0)]
        if s == 3: pfl = [lambda a: wo_pf_setup(a, V_PF)]
        def wopf_own(a):
            if 'nopf' in OPT: return
            def body(a):
                l, l2 = a.newlabel("wpf"), a.newlabel("wpf2")
                a("s_cmp_eq_u32 s%d, 0" % S_BR)
                a("s_cbranch_scc1 %s" % l)
                wo_pf_issue(a, V_PF, S_WOB)
                a("s_branch %s" % l2)
                a.label(l)
                wo_pf_issue(a, V_PF, S_WO)
                a.label(l2)
            on_wave(a, 5, body)
        if s == 4: pfl = [pf('q', 0, 1), wopf_own]
        if s == 5: pfl = [pf('q', 1, 2)]
        if s == 6: pfl = [pf('q', 2, 3)]
        ex1 = {1: dma(s + 3, 0), 4: dma(s + 3, 1), 7: dma(s + 3, 2), 9: pfl}
        if s == 9: ex1 = {1: dma(12, 0), 3: dma(12, 1), 5: dma(12, 2), 7: dma(12, 3), 9: dma(12, 4)}
        rd = p1_reads(s + 1, 0) if s < 9 else p2_reads(0)
        cur = half(a, lq, p1_mfmas(s, 1, False), needs12(nxt), rd, SCH, ex1)
    stamp(a, "p1end")
    lb, ld = a.newlabel("e1b"), a.newlabel("e1d")
    a("s_cmp_eq_u32 s%d, 0" % S_BR)
    a("s_cbranch_scc0 %s" % lb)
    epi1_A(a)
    a("s_branch %s" % ld)
    a.label(lb)
    a("s_waitcnt lgkmcnt(0)")
    epi1_B(a)
    emit(a, p2_reads(0))
    a.label(ld)
    stamp(a, "e1end")
    p3_dma_setup(a)
    S_WBF, S_WB1, S_WB2 = S_SOFF, S_STEP, S_J + 1
    a("s_and_b32 s%d, s%d, s%d" % (S_WBF, S_BR, S_CS))
    a("s_mul_i32 s%d, s%d, %d" % (S_WB1, S_RG, 3 * 5120))
    a("s_mul_i32 s%d, s%d, %d" % (S_WB2, S_RG, 3 * 32 * 1280))
    def wob(q):
        def f(a):
            l = a.newlabel("wob")
            a("s_cmp_eq_u32 s%d, 0" % S_WBF)
            a("s_cbranch_scc1 %s" % l)
            a("s_add_u32 m0, s%d, %d" % (S_WB1, (q // 5) * 5120 + (q % 5) * 1024))
            a("s_add_u32 s%d, s%d, %d" % (S_OFF, S_WB2, (q // 5) * 32 * 1280))
            a("buffer_load_dwordx4 v%d, s[%d:%d], s%d offen %s lds" % (C_DMA + q % 5, S_WOB, S_WOB + 3, S_OFF, DML))
            a.label(l)
        return f
    WOB_N = [2, 1, 2, 1, 2, 1, 2, 1, 2, 1]
    WOB_BEFORE0 = lambda u: 0
    PUBD = 1 if 'pub1' in OPT else 0
    def wopf(a):
        if 'nopf' in OPT: return
        def body(a):
            l = a.newlabel("wpf")
            a("s_cmp_eq_u32 s%d, 0" % S_BR)
            a("s_cbranch_scc1 %s" % l)
            wo_pf_issue(a, V_PF, S_WO)
            a.label(l)
        on_wave(a, 1, body)
    a("s_waitcnt lgkmcnt(0)")
    lq = LQ(a)
    cur = None
    SCH2 = {'e': [1] * 10, 'f': [2, 2, 2, 2, 2, 0, 0, 0, 0, 0], 'm': [2, 1, 1, 1, 1, 1, 1, 1, 1, 0], 'g': [2, 2, 1, 1, 1, 1, 1, 1, 0, 0]}[SCHED]
    for u in range(10):
        extra = {}
        rd = []
        if u + 1 < 10:
            if (u + 1) % 2 == 0:
                nx = 10 + (u + 1) // 2
                def by_branch(na, nb):
                    def f(a):
                        lB, lD = a.newlabel("wb"), a.newlabel("wd")
                        a("s_cmp_eq_u32 s%d, 0" % S_BR)
                        a("s_cbranch_scc0 %s" % lB)
                        a("s_waitcnt vmcnt(%d)" % na)
                        a("s_branch %s" % lD)
                        a.label(lB)
                        a("s_waitcnt vmcnt(%d)" % nb)
                        a.label(lD)
                    return f
                if nx == 13: role_branch(a, "s_waitcnt vmcnt(5)", None)
                elif nx == 14: role_branch(a, "s_waitcnt vmcnt(0)", None)
                else: role_branch(a, by_branch(5 + (10 if 'dbl' in OPT else 5), 6), None)
                a("s_barrier")
                if 13 <= nx + 2 <= 14: extra = {1: dma(nx + 2, 0), 3: dma(nx + 2, 1), 5: dma(nx + 2, 2), 7: dma(nx + 2, 3), 9: dma(nx + 2, 4)}
                if nx == 12 + PUBD:
                    def pub(a):
                        role_branch(a, "s_waitcnt vmcnt(%d)" % (5 if PUBD == 0 else 5), by_branch(0, sum(WOB_N[:u]) + (1 if WOB_N[u] > 1 else 1) * 0 + WOB_BEFORE0(u)))
                        a("s_lshl_b32 s%d, s%d, 4" % (S_T0, S_G))
                        a("s_add_u32 s%d, s%d, s%d" % (S_T0, S_T0, S_R))
                        a("s_lshl_b32 s%d, s%d, 5" % (S_T0, S_T0))
                        a("s_add_u32 s%d, s%d, s%d" % (S_T0, S_T0, S_WV))
                        a("s_lshl_b32 s%d, s%d, 2" % (S_T0, S_T0))
                        a("s_mul_i32 s%d, s%d, %d" % (S_T1, S_BR, F_PART - F_KV))
                        a("s_add_u32 s%d, s%d, s%d" % (S_T0, S_T0, S_T1))
                        a("s_add_u32 s%d, s%d, %d" % (S_T0, S_T0, F_KV))
                        publish(a, S_T0, None)
                    extra[0] = [pub]
            rd = p2_reads(u + 1)
        if u == 8: extra[3] = [wopf]
        def spread(lines, positions):
            n = len(positions)
            for k_, pos in enumerate(positions):
                extra[pos] = [extra.get(pos), lines[k_ * len(lines) // n:(k_ + 1) * len(lines) // n]]
        if u == 6: spread(rec(setup_q), (0, 1, 3, 4, 5, 7, 8, 9))
        if u == 7:
            extra[1] = [extra.get(1), on_A(lambda a: setup_k(a))]
            extra[5] = [extra.get(5), on_A(lambda a: setup_v(a))]
        if u == 8: spread(rec(setup_o), (0, 1, 4, 5, 7, 8, 9))
        if u == 9: extra[1] = [extra.get(1), pre2_begin]
        q0 = sum(WOB_N[:u])
        for n_ in range(WOB_N[u]):
            pos = (2, 6)[n_]
            extra[pos] = [extra.get(pos), wob(q0 + n_)]
        needs = needs10(cur) if cur else [0] * 10
        cur = half(a, lq, p2_mfmas(u), needs, rd, SCH2, extra)
    a("s_nop 4")
    stamp(a, "p2end")
    epi2(a)
    stamp(a, "e2end")

LDS_K, LDS_V = 0, 65536
LDS_KVR = 135168
A_KA0, A_KA1, A_KAT, A_VA0, A_VA1, A_QA0, A_QA1, A_QAT, A_OM, A_OT = 10, 11, 12, 13, 14, 15, 16, 17, 18, 19
A_AM, A_Q1, A_Q2, A_KB, A_VB, A_S, A_O = 20, 32, 36, 40, 64, 96, 240
S_TAU0 = S_U
S_EXV, S_HI, S_LO = 62, 64, 66
NEG_BIG = f2u(-3.0e38)
S_KV0, S_KV1, S_KV2 = 20, 21, 22
A_L16 = 88

def jkey(r, h):
    m, b, e = r >> 3, (r >> 2) & 1, r & 3
    return 16 * b + 8 * m + 4 * h + e
def diag_mask(r):
    return (sum(1 << i for i in range(32) if jkey(r, 0) <= i), sum(1 << i for i in range(32) if jkey(r, 1) <= i))

def _p2_addr(a, dst, n, kgimg, tbit, sbase, extra):
    a("v_lshl_add_u32 v9, v%d, 2, v%d" % (kgimg, n))
    a("v_and_b32 v9, 15, v9")
    a("v_lshl_add_u32 v9, v%d, 4, v9" % kgimg)
    a("v_lshlrev_b32 v9, 4, v9")
    a("v_lshl_add_u32 v9, v%d, 3, v9" % tbit)
    a("s_add_u32 s%d, s%d, %d" % (S_T5, sbase, extra))
    a("v_add_u32 v%d, s%d, v9" % (dst, S_T5))

def setup_q(a):
    a("v_and_b32 v4, 1, v%d" % V_KG)
    a("v_lshrrev_b32 v5, 1, v%d" % V_KG)
    a("v_lshrrev_b32 v6, 2, v%d" % V_N)
    a("v_and_b32 v7, 3, v%d" % V_N)
    a("s_and_b32 s%d, s%d, 3" % (S_T0, S_WV))
    a("s_lshr_b32 s%d, s%d, 2" % (S_T1, S_WV))
    a("s_mul_i32 s%d, s%d, 5120" % (S_T1, S_T1))
    a("s_lshl_b32 s%d, s%d, 10" % (S_T2, S_T0))
    a("s_add_u32 s%d, s%d, s%d" % (S_T2, S_T2, S_T1))
    a("s_add_u32 s%d, s%d, 4096" % (S_T3, S_T1))
    a("s_lshl_b32 s%d, s%d, 2" % (S_T4, S_T0))
    a("v_lshl_add_u32 v8, v5, 3, v6")
    _p2_addr(a, A_QA0, 8, 7, 4, S_T2, LDS_Q)
    a("v_add_u32 v30, 4, v8")
    _p2_addr(a, A_QA1, 30, 7, 4, S_T2, LDS_Q)
    a("v_add_u32 v31, s%d, v6" % S_T4)
    _p2_addr(a, A_QAT, 31, 7, 4, S_T3, LDS_Q)

def setup_k(a):
    a("v_and_b32 v28, 1, v7")
    a("v_lshl_add_u32 v28, v4, 1, v28")
    a("v_lshrrev_b32 v29, 1, v7")
    _p2_addr(a, A_KA0, 8, 28, 29, S_T2, LDS_K)
    _p2_addr(a, A_KA1, 30, 28, 29, S_T2, LDS_K)
    _p2_addr(a, A_KAT, 31, 28, 29, S_T3, LDS_K)

def setup_v(a):
    a("v_and_b32 v4, 31, v%d" % V_LANE)
    a("v_lshrrev_b32 v5, 5, v%d" % V_LANE)
    a("v_cmp_gt_u32_e64 s[%d:%d], 16, v4" % (S_M0, S_M0 + 1))
    a("s_sub_u32 s%d, s%d, 16" % (S_T5, S_T4))
    a("v_add_u32 v6, s%d, v4" % S_T5)
    a("v_and_b32 v6, 15, v6")
    a("v_cndmask_b32_e64 v6, v6, v4, s[%d:%d]" % (S_M0, S_M0 + 1))
    a("v_mov_b32 v7, s%d" % S_T3)
    a("v_mov_b32 v8, s%d" % S_T2)
    a("v_cndmask_b32_e64 v7, v7, v8, s[%d:%d]" % (S_M0, S_M0 + 1))
    for m in range(2):
        a("v_add_u32 v8, %d, v5" % (2 * m))
        a("v_lshl_add_u32 v9, v8, 2, v6")
        a("v_and_b32 v9, 15, v9")
        a("v_lshl_add_u32 v9, v8, 4, v9")
        a("v_lshl_add_u32 v9, v9, 4, v7")
        a("v_add_u32 v%d, %d, v9" % (A_VA0 + m, LDS_V))

def setup_o(a):
    a("v_and_b32 v4, 31, v%d" % V_LANE)
    a("v_lshrrev_b32 v5, 5, v%d" % V_LANE)
    a("s_and_b32 s%d, s%d, 3" % (S_T0, S_WV))
    a("s_lshl_b32 s%d, s%d, 2" % (S_T1, S_G))
    a("s_add_u32 s%d, s%d, s%d" % (S_T1, S_T1, S_T0))
    a("s_lshl_b32 s%d, s%d, 3" % (S_T2, S_R))
    a("s_lshr_b32 s%d, s%d, 2" % (S_T3, S_WV))
    a("s_lshl_b32 s%d, s%d, 1" % (S_T3, S_T3))
    a("s_add_u32 s%d, s%d, s%d" % (S_T2, S_T2, S_T3))
    a("s_mul_i32 s%d, s%d, 20480" % (S_T2, S_T2))
    a("s_mul_i32 s%d, s%d, %d" % (S_T3, S_BR, O_BR))
    a("s_add_u32 s%d, s%d, s%d" % (S_T2, S_T2, S_T3))
    a("s_add_u32 s%d, s%d, %d" % (S_T2, S_T2, WS_O))
    a("v_lshrrev_b32 v6, 4, v4")
    a("s_movk_i32 s%d, 20480" % S_T3)
    a("v_mul_u32_u24 v6, s%d, v6" % S_T3)
    a("v_and_b32 v7, 15, v4")
    a("v_lshl_add_u32 v6, v7, 4, v6")
    a("v_add_u32 v6, s%d, v6" % S_T2)
    a("s_lshr_b32 s%d, s%d, 1" % (S_T3, S_T1))
    a("s_lshl_b32 s%d, s%d, 10" % (S_T3, S_T3))
    a("s_and_b32 s%d, s%d, 1" % (S_T4, S_T1))
    a("s_lshl_b32 s%d, s%d, 9" % (S_T4, S_T4))
    a("s_add_u32 s%d, s%d, s%d" % (S_T3, S_T3, S_T4))
    a("v_lshl_add_u32 v7, v5, 8, v6")
    a("v_add_u32 v%d, s%d, v7" % (A_OM, S_T3))
    a("s_lshr_b32 s%d, s%d, 3" % (S_T3, S_T1))
    a("s_add_u32 s%d, s%d, 16" % (S_T3, S_T3))
    a("s_lshl_b32 s%d, s%d, 10" % (S_T3, S_T3))
    a("s_and_b32 s%d, s%d, 6" % (S_T4, S_T1))
    a("s_lshl_b32 s%d, s%d, 7" % (S_T4, S_T4))
    a("s_add_u32 s%d, s%d, s%d" % (S_T3, S_T3, S_T4))
    a("s_and_b32 s%d, s%d, 1" % (S_T4, S_T1))
    a("s_lshl_b32 s%d, s%d, 3" % (S_T4, S_T4))
    a("s_add_u32 s%d, s%d, s%d" % (S_T3, S_T3, S_T4))
    a("v_add_u32 v%d, s%d, v6" % (A_OT, S_T3))

def set_hilo(a):
    a("s_mov_b32 s%d, 0" % S_HI); a("s_mov_b32 s%d, -1" % (S_HI + 1))
    a("s_mov_b32 s%d, -1" % S_LO); a("s_mov_b32 s%d, 0" % (S_LO + 1))

def on_A(f):
    def g(a):
        l = a.newlabel("oa")
        a("s_cmp_eq_u32 s%d, 0" % S_BR)
        a("s_cbranch_scc0 %s" % l)
        emit(a, f)
        a.label(l)
    return g

def q_frag_reads():
    return ["ds_read_b64_tr_b16 %s, v%d" % (vr(A_Q1, 2), A_QA0),
            "ds_read_b64_tr_b16 %s, v%d" % (vr(A_Q1 + 2, 2), A_QA1),
            "ds_read_b64_tr_b16 %s, v%d" % (vr(A_Q2, 2), A_QAT)]
def q_frag_fix(a):
    a("v_cndmask_b32_e64 v%d, v%d, 0, s[%d:%d]" % (A_Q2, A_Q2, S_HI, S_HI + 1))
    a("v_cndmask_b32_e64 v%d, v%d, 0, s[%d:%d]" % (A_Q2 + 1, A_Q2 + 1, S_HI, S_HI + 1))

def o_epilogue(a, eps=False):
    O = A_O
    a("v_cndmask_b32_e64 v30, v%d, v%d, s[%d:%d]" % (O + 12, O + 8, S_HI, S_HI + 1))
    if eps: a("v_add_f32 v30, 0x%x, v30" % f2u(1e-6))
    a("v_rcp_f32 v30, v30")
    a("s_nop 0")
    for k in range(0, 12, 2):
        a("v_pk_mul_f32 %s, %s, v[30:31] op_sel_hi:[1,0]" % (vr(O + k, 2), vr(O + k, 2)))
    for k in range(6): a("v_cvt_pk_bf16_f32 v%d, v%d, v%d" % (O + k, O + 2 * k, O + 2 * k + 1))
    for fl in ([ST, ""] if 'dbl' in OPT else [ST]):
        a("buffer_store_dwordx4 %s, v%d, s[%d:%d], 0 offen %s" % (vr(O, 4), A_OM, S_WS, S_WS + 3, fl))
        a("s_mov_b64 exec, s[%d:%d]" % (S_LO, S_LO + 1))
        a("buffer_store_dwordx2 %s, v%d, s[%d:%d], 0 offen %s" % (vr(O + 4, 2), A_OT, S_WS, S_WS + 3, fl))
        a("s_mov_b64 exec, -1")

def attn_setup(a):
    set_hilo(a)
    for r in range(16):
        lo, hi = diag_mask(r)
        a("s_mov_b32 s%d, 0x%x" % (S_MASK + 2 * r, lo)); a("s_mov_b32 s%d, 0x%x" % (S_MASK + 2 * r + 1, hi))
    a("v_mov_b32 v30, 0xffff")
    a("v_mov_b32 v31, 0xffff0000")
    for k in range(8):
        a("v_cndmask_b32_e64 v4, 0, v30, s[%d:%d]" % (S_MASK + 4 * k, S_MASK + 4 * k + 1))
        a("v_cndmask_b32_e64 v5, 0, v31, s[%d:%d]" % (S_MASK + 4 * k + 2, S_MASK + 4 * k + 3))
        a("v_or_b32 v%d, v4, v5" % (A_AM + k))
    a("v_mov_b32 v4, 0x3f803f80")
    for k in range(24): a("v_mov_b32 v%d, v4" % (A_VB + k))
    for b in range(3):
        a("v_mov_b32 v%d, 0" % (A_KB + 8 * b + 6)); a("v_mov_b32 v%d, 0" % (A_KB + 8 * b + 7))
    a("v_mov_b32 v%d, 0" % (A_Q2 + 2)); a("v_mov_b32 v%d, 0" % (A_Q2 + 3))
    a("s_mov_b32 s%d, 0x000fffff" % S_EXV); a("s_mov_b32 s%d, 0x000fffff" % (S_EXV + 1))

def k_reads(tau, buf):
    b = A_KB + 8 * buf
    return ["ds_read_b64_tr_b16 %s, v%d offset:%d" % (vr(b, 2), A_KA0, tau * 5120),
            "ds_read_b64_tr_b16 %s, v%d offset:%d" % (vr(b + 2, 2), A_KA1, tau * 5120),
            "ds_read_b64_tr_b16 %s, v%d offset:%d" % (vr(b + 4, 2), A_KAT, tau * 5120)]
def v_reads(tau, buf):
    b = A_VB + 8 * buf
    return ["s_mov_b64 exec, s[%d:%d]" % (S_EXV, S_EXV + 1),
            "ds_read_b128 %s, v%d offset:%d" % (vr(b, 4), A_VA0, tau * 5120),
            "ds_read_b128 %s, v%d offset:%d" % (vr(b + 4, 4), A_VA1, tau * 5120),
            "s_mov_b64 exec, -1"]

TAG = ''
PUB0_AT = 6
def attn_unit(a, stubs, mid, qk_extra, late_v=None, pre_epi=None):
    S = lambda t: A_S + 16 * t
    order = [8, 0, 1, 2, 3, 4, 5, 6, 7]
    emit(a, q_frag_reads())
    emit(a, k_reads(order[0], 0)); emit(a, k_reads(order[1], 1))
    a("s_waitcnt lgkmcnt(6)")
    q_frag_fix(a)
    accs = [28, 29, 30, 31]
    acc_init = [False] * 4
    def max_ops(base):
        L = []
        for k in range(0, 16, 2):
            ai = (k // 2) % 4
            if not acc_init[ai]:
                L.append("v_max_f32 v%d, v%d, v%d" % (accs[ai], base + k, base + k + 1)); acc_init[ai] = True
            else:
                L.append("v_max3_f32 v%d, v%d, v%d, v%d" % (accs[ai], base + k, base + k + 1, accs[ai]))
        return L
    merge = ["v_cndmask_b32_e64 v%d, v%d, v%d, s[%d:%d]" % (S(0) + r, S(0) + r, S(8) + r, S_MASK + 2 * r, S_MASK + 2 * r + 1) for r in range(16)]
    for idx, tau in enumerate(order):
        buf = idx % 3
        if idx + 2 < 9: emit(a, k_reads(order[idx + 2], (idx + 2) % 3))
        a("s_waitcnt lgkmcnt(%d)" % (3 * min(2, 8 - idx)))
        kb = A_KB + 8 * buf
        if tau < 8:
            lf, lr = a.newlabel("fill"), a.newlabel("fret")
            a("s_cmp_gt_u32 s%d, %d" % (S_TAU0, tau))
            a("s_cbranch_scc1 %s" % lf)
            stubs.append((lf, lr, S(tau)))
        work = []
        if idx == 3: work = merge[:]
        if idx == 4: work = max_ops(S(0))
        if idx >= 5: work = max_ops(S(order[idx - 3]))
        hw = len(work) // 2
        a(mfma32(S(tau), kb, A_Q1, "0"))
        if tau < 8 and 'oldqk' not in OPT:
            a.label(lr)
            emit(a, work[:hw])
            l2 = a.newlabel("tl")
            a("s_cmp_gt_u32 s%d, %d" % (S_TAU0, tau))
            a("s_cbranch_scc1 %s" % l2)
            a(mfma32(S(tau), kb + 4, A_Q2))
            a.label(l2)
        else:
            emit(a, work[:hw])
            a(mfma32(S(tau), kb + 4, A_Q2))
            if tau < 8: a.label(lr)
        emit(a, qk_extra.get(idx))
        emit(a, work[hw:])
    stamp(a, "qk" + TAG)
    emit(a, max_ops(S(5)))
    emit(a, max_ops(S(6)))
    emit(a, mid)
    if late_v is None:
        emit(a, v_reads(8, 0)); emit(a, v_reads(0, 1))
    emit(a, max_ops(S(7)))
    a("v_max3_f32 v28, v28, v29, v30")
    a("v_max_f32 v28, v28, v31")
    a("v_mov_b32 v29, v28")
    a("s_nop 1")
    a("v_permlane32_swap_b32 v28, v29")
    a("s_nop 1")
    a("v_max_f32 v28, v28, v29")
    def sm_ops(base, mf=()):
        L = ["v_pk_add_f32 %s, %s, v[28:29] op_sel_hi:[1,0] neg_lo:[0,1] neg_hi:[0,1]" % (vr(base + k, 2), vr(base + k, 2)) for k in range(0, 16, 2)]
        E = ["v_exp_f32 v%d, v%d" % (base + k, base + k) for k in range(16)]
        C = ["v_cvt_pk_bf16_f32 v%d, v%d, v%d" % (base + k, base + 2 * k, base + 2 * k + 1) for k in range(8)]
        out = list(L)
        m = len(mf)
        pos = {2: [1, 9], 4: [0, 4, 8, 12], 0: []}[m]
        for k, e in enumerate(E):
            out.append(e)
            if k in pos: out.append(mf[pos.index(k)])
        return out + C
    stamp(a, "mx" + TAG)
    emit(a, sm_ops(S(0)))
    if late_v is not None:
        emit(a, late_v)
        emit(a, v_reads(8, 0)); emit(a, v_reads(0, 1))
    for k in range(8): a("v_and_b32 v%d, v%d, v%d" % (S(0) + 8 + k, S(0) + k, A_AM + k))
    for k in range(8): a("v_xor_b32 v%d, v%d, v%d" % (S(0) + k, S(0) + k, S(0) + 8 + k))
    a("s_waitcnt lgkmcnt(0)")
    emit(a, v_reads(1, 2))
    pv = [mfma32(A_O, A_VB + 0, S(0) + 8, "0"), mfma32(A_O, A_VB + 4, S(0) + 12),
          mfma32(A_O, A_VB + 8, S(0)), mfma32(A_O, A_VB + 12, S(0) + 4)]
    for tau in range(1, 8):
        vb = (tau + 1) % 3
        emit(a, sm_ops(S(tau), pv))
        a("s_waitcnt lgkmcnt(0)")
        if tau + 1 < 8: emit(a, v_reads(tau + 1, (tau + 2) % 3))
        b = A_VB + 8 * vb
        pv = [mfma32(A_O, b, S(tau)), mfma32(A_O, b + 4, S(tau) + 4)]
    a("s_nop 1")
    emit(a, pv)
    if pre_epi: emit(a, pre_epi)
    a("s_nop 15")
    o_epilogue(a)

def round_advance(a, attn=True):
    for v in ((A_KA0, A_KA1, A_KAT, A_VA0, A_VA1) if attn else ()) + (A_QA0, A_QA1, A_QAT):
        a("v_add_u32 v%d, %d, v%d" % (v, 2 * 5120, v))
    a("v_add_u32 v%d, %d, v%d" % (A_OM, 4 * 20480, A_OM))
    a("v_add_u32 v%d, %d, v%d" % (A_OT, 4 * 20480, A_OT))

def set_tau0(a):
    a("s_lshl_b32 s%d, s%d, 2" % (S_T0, S_R))
    a("s_lshr_b32 s%d, s%d, 2" % (S_T1, S_WV))
    a("s_add_u32 s%d, s%d, s%d" % (S_T0, S_T0, S_T1))
    a("s_add_u32 s%d, s%d, s%d" % (S_T0, S_T0, S_DB))
    a("s_sub_i32 s%d, 8, s%d" % (S_TAU0, S_T0))
    a("s_max_i32 s%d, s%d, 0" % (S_TAU0, S_TAU0))

def emit_stubs(a, stubs):
    for lf, lr, base in stubs:
        a.label(lf)
        a("v_mov_b32 v%d, 0x%x" % (base, NEG_BIG))
        for k in range(1, 16): a("v_mov_b32 v%d, v%d" % (base + k, base))
        a("s_branch %s" % lr)

def kv_params(a):
    a("s_lshl_b32 s%d, s%d, 6" % (S_T0, S_G))
    a("s_lshl_b32 s%d, s%d, 2" % (S_T1, S_R))
    a("s_add_u32 s%d, s%d, s%d" % (S_T0, S_T0, S_T1))
    a("s_sub_i32 s%d, s%d, 8" % (S_T0, S_T0))
    a("s_mul_i32 s%d, s%d, 5120" % (S_T0, S_T0))
    a("s_lshl_b32 s%d, s%d, 10" % (S_KV1, S_WV))
    a("s_add_u32 s%d, s%d, s%d" % (S_KV0, S_T0, S_KV1))
    a("s_lshl_b32 s%d, s%d, 2" % (S_T3, S_R))
    a("s_sub_i32 s%d, 8, s%d" % (S_T3, S_T3))
    a("s_max_i32 s%d, s%d, 0" % (S_T3, S_T3))
    a("s_mul_i32 s%d, s%d, 5120" % (S_KV2, S_T3))
    a("v_lshlrev_b32 v%d, 4, v%d" % (A_L16, V_LANE))

def kv_load(tensor, k):
    def f(a):
        l = a.newlabel("kvl")
        a("s_add_u32 s%d, s%d, %d" % (S_T4, S_KV1, k * 8192))
        if k == 7:
            a("s_cmp_ge_u32 s%d, 61440" % S_T4)
            a("s_cbranch_scc1 %s" % l)
        a("s_add_u32 s%d, s%d, %d" % (S_OFF, S_KV0, WS_KV + tensor * 8 * 64 * 5120 + k * 8192))
        a("s_cmp_lt_u32 s%d, s%d" % (S_T4, S_KV2))
        if tensor == 0:
            a("s_cbranch_scc1 %s" % l)
        else:
            a("s_cselect_b32 s%d, 0x7ff00000, s%d" % (S_OFF, S_OFF))
        a("s_add_u32 m0, s%d, %d" % (S_T4, LDS_K if tensor == 0 else LDS_V))
        a("s_nop 0")
        a("buffer_load_dwordx4 v%d, s[%d:%d], s%d offen %s lds" % (A_L16, S_WS, S_WS + 3, S_OFF, LD))
        a.label(l)
    return f

def oa_flag_off(a, dst, half_):
    a("s_lshl_b32 s%d, s%d, 1" % (dst, S_R))
    a("s_add_u32 s%d, s%d, %d" % (dst, dst, half_))
    a("s_lshl_b32 s%d, s%d, 3" % (dst, dst))
    a("s_add_u32 s%d, s%d, s%d" % (dst, dst, S_G))
    a("s_lshl_b32 s%d, s%d, 5" % (dst, dst))
    a("s_add_u32 s%d, s%d, s%d" % (dst, dst, S_WV))
    a("s_lshl_b32 s%d, s%d, 2" % (dst, dst))
    a("s_add_u32 s%d, s%d, %d" % (dst, dst, F_OA))

def phase2A(a, stubs):
    kv_load(0, 7)(a)
    attn_setup(a)
    a("s_waitcnt vmcnt(0) lgkmcnt(0)")
    a("s_barrier")
    stamp(a, "kvld")
    for rnd in range(2):
        a("s_mov_b32 s%d, %d" % (S_DB, 2 * rnd))
        set_tau0(a)
        if 'noprio' not in OPT:
            lp = a.newlabel("prio")
            a("s_cmp_eq_u32 s%d, 0" % S_CS)
            a("s_cbranch_scc1 %s" % lp)
            a("s_setprio %d" % (1 if rnd == 0 else 0))
            a.label(lp)
        late_v = None
        if rnd == 0:
            mid = None
            def late_v(a):
                a("s_waitcnt vmcnt(0)")
                a("s_barrier")
                stamp(a, "vld")
            qk_extra = {i: kv_load(1, i - 0) for i in range(8)}
        else:
            def pub0(a):
                a("s_waitcnt vmcnt(0)")
                oa_flag_off(a, S_T0, 0)
                publish(a, S_T0, None)
            mid = None
            qk_extra = {PUB0_AT: pub0}
        def pre_epi(a):
            poll_oa(a, 0)
        global TAG
        TAG = str(rnd)
        attn_unit(a, stubs, mid, qk_extra, late_v, pre_epi if (rnd == 1 and 'nopre' not in OPT) else None)
        stamp(a, "rnd%d" % rnd)
        if rnd == 0: round_advance(a)

def apply_phase(a):
    P = P_SUM
    early_load_B(7)(a)
    wo_load(a, S_WOB, first=12)
    set_hilo(a)
    a("v_mov_b32 v%d, 0" % (A_Q2 + 2)); a("v_mov_b32 v%d, 0" % (A_Q2 + 3))
    a("s_lshr_b32 s%d, s%d, 1" % (S_T1, S_WV))
    a("s_lshl_b32 s%d, s%d, 11" % (S_T1, S_T1))
    a("v_lshlrev_b32 v8, 1, v%d" % V_PO)
    a("v_add_u32 v8, %d, v8" % LDS_KVR)
    a("v_add_u32 v8, s%d, v8" % S_T1)
    a("v_and_b32 v4, 31, v%d" % V_LANE)
    a("v_min_u32 v4, 20, v4")
    a("v_lshrrev_b32 v5, 5, v%d" % V_LANE)
    a("v_mul_u32_u24 v6, 48, v5")
    a("v_add_u32 v6, v6, v4")
    a("s_and_b32 s%d, s%d, 3" % (S_T0, S_WV))
    a("s_lshl_b32 s%d, s%d, 11" % (S_T0, S_T0))
    a("s_add_u32 s%d, s%d, %d" % (S_T0, S_T0, LDS_KVR))
    a("v_lshlrev_b32 v6, 4, v6")
    a("v_add_u32 v6, s%d, v6" % S_T0)
    a("v_lshlrev_b32 v7, 4, v4")
    a("v_add_u32 v7, s%d, v7" % S_T0)
    ACC = P + 32
    a("s_mov_b32 s%d, 0xffff0000" % S_T2)
    a("s_waitcnt vmcnt(5)")
    for r in range(16):
        c = ACC + 4 * (r & 1)
        for hw in range(2):
            src = P + 2 * r + hw
            if r < 2:
                a("v_lshlrev_b32 v%d, 16, v%d" % (c + 2 * hw, src))
                a("v_and_b32 v%d, s%d, v%d" % (c + 2 * hw + 1, S_T2, src))
            else:
                a("v_lshlrev_b32 v%d, 16, v%d" % (ACC + 8, src))
                a("v_and_b32 v%d, s%d, v%d" % (ACC + 9, S_T2, src))
                a("v_pk_add_f32 %s, %s, %s" % (vr(c + 2 * hw, 2), vr(c + 2 * hw, 2), vr(ACC + 8, 2)))
    for k in (0, 2): a("v_pk_add_f32 %s, %s, %s" % (vr(ACC + k, 2), vr(ACC + k, 2), vr(ACC + 4 + k, 2)))
    P = ACC
    a("s_barrier")
    a("s_mov_b64 exec, s[%d:%d]" % (S_PM, S_PM + 1))
    a("ds_write_b128 v8, %s" % vr(P, 4))
    a("s_mov_b64 exec, -1")
    a("s_waitcnt lgkmcnt(0)")
    a("s_barrier")
    stamp(a, "kvred")
    F = A_KB
    a("ds_read_b128 %s, v6" % vr(F, 4))
    a("ds_read_b128 %s, v6 offset:%d" % (vr(F + 4, 4), 24 * 16))
    a("ds_read_b128 %s, v7 offset:%d" % (vr(F + 8, 4), 4 * 24 * 16))
    emit(a, q_frag_reads())
    a("s_waitcnt lgkmcnt(3)")
    KV1, KV2 = A_VB, A_VB + 4
    for k in range(4): a("v_cvt_pk_bf16_f32 v%d, v%d, v%d" % (KV1 + k, F + 2 * k, F + 2 * k + 1))
    for k in range(2): a("v_cvt_pk_bf16_f32 v%d, v%d, v%d" % (KV2 + k, F + 8 + 2 * k, F + 9 + 2 * k))
    a("v_mov_b32 v%d, 0" % (KV2 + 2)); a("v_mov_b32 v%d, 0" % (KV2 + 3))
    for rnd in range(2):
        a("s_waitcnt lgkmcnt(0)")
        q_frag_fix(a)
        a("s_nop 1")
        a(mfma32(A_O, KV1, A_Q1, "0"))
        a(mfma32(A_O, KV2, A_Q2))
        if rnd == 0:
            round_advance(a, False) if False else None
            for v in (A_QA0, A_QA1, A_QAT): a("v_add_u32 v%d, %d, v%d" % (v, 2 * 5120, v))
            emit(a, q_frag_reads())
            a("s_nop 9")
        else:
            a("s_nop 15")
        o_epilogue(a, eps=True)
        if rnd == 0:
            a("v_add_u32 v%d, %d, v%d" % (A_OM, 4 * 20480, A_OM))
            a("v_add_u32 v%d, %d, v%d" % (A_OT, 4 * 20480, A_OT))

C_DMA = 10
C_WA, C_WT, C_OF, C_OUT, C_XA = 20, 21, 22, 23, 24
C_O = 32
C_WB = 112
C_ACC = 172
C_R = 212

def p3_dma_setup(a):
    a("s_mul_i32 s%d, s%d, 160" % (S_T0, S_G))
    a("s_movk_i32 s%d, 6554" % S_T2)
    a("s_movk_i32 s%d, 1280" % S_T3)
    for j in range(5):
        a("v_add_u32 v4, %d, v%d" % (64 * j, V_LANE))
        a("v_mul_u32_u24 v8, s%d, v4" % S_T2)
        a("v_lshrrev_b32 v8, 16, v8")
        a("v_mul_u32_u24 v9, 10, v8")
        a("v_sub_u32 v9, v4, v9")
        a("v_mul_u32_u24 v8, s%d, v8" % S_T3)
        a("v_lshl_add_u32 v8, v9, 4, v8")
        a("v_add_u32 v%d, s%d, v8" % (C_DMA + j, S_T0))

def p3_setup(a):
    a("s_mul_i32 s%d, s%d, 160" % (S_T0, S_G))
    a("v_lshrrev_b32 v4, 1, v%d" % V_KG)
    a("v_and_b32 v5, 1, v%d" % V_KG)
    a("v_lshrrev_b32 v6, 2, v%d" % V_N)
    a("v_and_b32 v7, 3, v%d" % V_N)
    a("v_mul_u32_u24 v8, 20, v4")
    a("v_lshl_add_u32 v8, v5, 2, v8")
    a("v_add_u32 v8, v8, v6")
    a("s_movk_i32 s%d, 160" % S_T1)
    a("v_mul_u32_u24 v8, s%d, v8" % S_T1)
    a("v_lshl_add_u32 v8, v7, 3, v8")
    a("s_mul_i32 s%d, s%d, 51200" % (S_T2, S_CS))
    a("v_add_u32 v%d, s%d, v8" % (C_WA, S_T2))
    a("v_mul_u32_u24 v8, 40, v%d" % V_KG)
    a("v_add3_u32 v8, v8, v6, 16")
    a("v_mul_u32_u24 v8, s%d, v8" % S_T1)
    a("v_lshl_add_u32 v8, v7, 3, v8")
    a("v_add_u32 v%d, s%d, v8" % (C_WT, S_T2))
    a("v_lshlrev_b32 v%d, 4, v%d" % (C_OF, V_LANE))
    a("s_lshl_b32 s%d, s%d, 4" % (S_T2, S_RG))
    a("v_add_u32 v8, s%d, v%d" % (S_T2, V_N))
    a("s_movk_i32 s%d, 2560" % S_T2)
    a("v_mul_u32_u24 v8, s%d, v8" % S_T2)
    a("v_lshl_add_u32 v8, v%d, 3, v8" % V_KG)
    a("v_add_u32 v%d, s%d, v8" % (C_OUT, S_T0))
    a("s_mul_i32 s%d, s%d, 10240" % (S_T2, S_RG))
    a("s_add_u32 s%d, s%d, %d" % (S_T2, S_T2, XCH3))
    a("v_add_u32 v%d, s%d, v%d" % (C_XA, S_T2, C_OF))

def wo_block(a, srd_wo):
    a("s_mul_i32 s%d, s%d, %d" % (S_OFF, S_T0, 32 * 1280))
    a("s_mul_i32 s%d, s%d, 5120" % (S_T0, S_T0))
    for j in range(5):
        a("s_add_u32 m0, s%d, %d" % (S_T0, j * 1024))
        a("s_nop 0")
        a("buffer_load_dwordx4 v%d, s[%d:%d], s%d offen %s lds" % (C_DMA + j, srd_wo, srd_wo + 3, S_OFF, DML))

def wo_load(a, srd_wo, skip0=False, first=0):
    nw = 7 if skip0 else 8
    nb = 20 - first
    for k in range((nb + nw - 1) // nw):
        l = a.newlabel("wol")
        if skip0:
            a("s_cmp_eq_u32 s%d, 0" % S_WV)
            a("s_cbranch_scc1 %s" % l)
        a("s_add_u32 s%d, s%d, %d" % (S_T0, S_WV, first + nw * k))
        if skip0: a("s_sub_u32 s%d, s%d, 1" % (S_T0, S_T0))
        if first + nw * k + nw > 20:
            a("s_cmp_ge_u32 s%d, 20" % S_T0)
            a("s_cbranch_scc1 %s" % l)
        wo_block(a, srd_wo)
        a.label(l)

def p3_oloads(a, br, s_row0, k):
    a("s_lshr_b32 s%d, s%d, 4" % (S_T0, s_row0))
    a("s_add_u32 s%d, s%d, s%d" % (S_T0, S_T0, S_RG))
    a("s_add_u32 s%d, s%d, %d" % (S_T0, S_T0, 4 * k))
    a("s_mul_i32 s%d, s%d, 20480" % (S_T0, S_T0))
    a("s_add_u32 s%d, s%d, %d" % (S_T0, S_T0, WS_O + br * O_BR))
    a("s_lshl_b32 s%d, s%d, 13" % (S_T1, S_CS))
    a("s_add_u32 s%d, s%d, s%d" % (S_T1, S_T1, S_T0))
    for i in range(8):
        a("s_add_u32 s%d, s%d, %d" % (S_OFF, S_T1, i * 1024))
        a("buffer_load_dwordx4 %s, v%d, s[%d:%d], s%d offen %s" % (vr(C_O + 40 * k + 4 * i, 4), C_OF, S_WS, S_WS + 3, S_OFF, LD))
    a("s_lshl_b32 s%d, s%d, 11" % (S_T1, S_CS))
    a("s_add_u32 s%d, s%d, s%d" % (S_T1, S_T1, S_T0))
    for i in range(2):
        a("s_add_u32 s%d, s%d, %d" % (S_OFF, S_T1, (16 + i) * 1024))
        a("buffer_load_dwordx4 %s, v%d, s[%d:%d], s%d offen %s" % (vr(C_O + 40 * k + 32 + 4 * i, 4), C_OF, S_WS, S_WS + 3, S_OFF, LD))

def p3_wreads(i):
    wb = C_WB + 20 * (i % 3)
    L = []
    for T in range(5):
        for rd in range(2):
            if i < 8: L.append("ds_read_b64_tr_b16 %s, v%d offset:%d" % (vr(wb + 4 * T + 2 * rd, 2), C_WA, i * 6400 + rd * 1280 + 32 * T))
            else: L.append("ds_read_b64_tr_b16 %s, v%d offset:%d" % (vr(wb + 4 * T + 2 * rd, 2), C_WT, (i - 8) * 25600 + rd * 3200 + 32 * T))
    return L

def p3_mm(a, sets, vm_after, extra={}):
    lq = LQ(a)
    ids = {}
    ids[0] = [lq.issue(x) for x in p3_wreads(0)]
    ids[1] = [lq.issue(x) for x in p3_wreads(1)]
    for i in range(10):
        wb = C_WB + 20 * (i % 3)
        rd = p3_wreads(i + 2) if i + 2 < 10 else []
        ids[i + 2] = []
        n = vm_after(i)
        if n is not None: a("s_waitcnt vmcnt(%d)" % n)
        emit(a, extra.get(i))
        mm = [(T, mfma16(C_ACC + 20 * k + 4 * T, wb + 4 * T, C_O + 40 * sets[k] + 4 * i, "0" if i == 0 else None)) for T in range(5) for k in range(len(sets))]
        per = (len(rd) + len(mm) - 1) // len(mm) if rd else 0
        for (T, m) in mm:
            lq.need(ids[i][2 * T + 1])
            a(m)
            for _ in range(per):
                if rd: ids[i + 2].append(lq.issue(rd.pop(0)))

XCH3 = 102400
OTILE = 143360
OSTR = 160
def p3_epilogue(a, br, s_row0, nset, hooks={}):
    npieces = 640 * nset
    nround = (npieces + 511) // 512
    last_waves = (npieces - 512 * (nround - 1)) // 64
    def send(tiles):
        def f(a):
            for k in range(nset):
                for T in tiles:
                    a("ds_write_b128 v%d, %s offset:%d" % (C_XA, vr(C_ACC + 20 * k + 4 * T, 4), k * 5120 + T * 1024))
        return f
    a("s_lshl_b32 s%d, s%d, 4" % (S_T0, S_RG))
    a("v_add_u32 v4, s%d, v%d" % (S_T0, V_N))
    a("s_movk_i32 s%d, %d" % (S_T1, OSTR))
    a("v_mul_u32_u24 v4, s%d, v4" % S_T1)
    a("v_lshl_add_u32 v4, v%d, 3, v4" % V_KG)
    a("v_add_u32 v4, %d, v4" % OTILE)
    a("s_nop 2")
    role_branch(a, send([3, 4]), send([0, 1, 2]))
    a("s_lshl_b32 s%d, s%d, 6" % (S_T0, S_WV))
    a("v_add_u32 v5, s%d, v%d" % (S_T0, V_LANE))
    a("s_movk_i32 s%d, 6554" % S_T2)
    a("s_movk_i32 s%d, 2560" % S_T3)
    a("s_mul_i32 s%d, s%d, 160" % (S_T4, S_G))
    for m in range(nround):
        a("v_add_u32 v6, %d, v5" % (512 * m))
        a("v_mul_u32_u24 v7, s%d, v6" % S_T2)
        a("v_lshrrev_b32 v7, 16, v7")
        a("v_mul_u32_u24 v8, 10, v7")
        a("v_sub_u32 v8, v6, v8")
        a("v_mul_u32_u24 v9, s%d, v7" % S_T1)
        a("v_lshl_add_u32 v9, v8, 4, v9")
        a("v_add_u32 v%d, %d, v9" % (C_R + m, OTILE))
        a("v_mul_u32_u24 v9, s%d, v7" % S_T3)
        a("v_lshl_add_u32 v9, v8, 4, v9")
        a("v_add_u32 v%d, s%d, v9" % (C_R + 4 + m, S_T4))
    a("s_waitcnt lgkmcnt(0)")
    a("s_barrier")
    emit(a, hooks.get(0))
    def recv(tiles):
        def f(a):
            for k in range(nset):
                for n_, T in enumerate(tiles):
                    a("ds_read_b128 %s, v%d offset:%d" % (vr(C_WB + 12 * k + 4 * n_, 4), C_XA, k * 5120 + T * 1024))
            a("s_waitcnt lgkmcnt(0)")
            for k in range(nset):
                for n_, T in enumerate(tiles):
                    d = C_ACC + 20 * k + 4 * T
                    r = C_WB + 12 * k + 4 * n_
                    for q in (0, 2): a("v_pk_add_f32 %s, %s, %s" % (vr(d + q, 2), vr(d + q, 2), vr(r + q, 2)))
                    a("v_cvt_pk_bf16_f32 v%d, v%d, v%d" % (d, d, d + 1))
                    a("v_cvt_pk_bf16_f32 v%d, v%d, v%d" % (d + 1, d + 2, d + 3))
                    a("ds_write_b64 v4, %s offset:%d" % (vr(d, 2), k * 64 * OSTR + 32 * T))
        return f
    role_branch(a, recv([0, 1, 2]), recv([3, 4]))
    emit(a, hooks.get(1))
    a("s_mul_i32 s%d, s%d, 2560" % (S_T0, s_row0))
    a("s_add_u32 s%d, s%d, %d" % (S_T0, S_T0, br * 1280))
    a("s_waitcnt lgkmcnt(0)")
    a("s_barrier")
    for m in range(nround):
        l = a.newlabel("fr")
        if m == nround - 1 and last_waves < 8:
            a("s_cmp_ge_u32 s%d, %d" % (S_WV, last_waves))
            a("s_cbranch_scc1 %s" % l)
        a("ds_read_b128 %s, v%d offset:%d" % (vr(C_O + 4 * m, 4), C_R + m, 0))
        a.label(l)
    emit(a, hooks.get(2))
    a("s_waitcnt lgkmcnt(0)")
    for m in range(nround):
        l = a.newlabel("fs")
        if m == nround - 1 and last_waves < 8:
            a("s_cmp_ge_u32 s%d, %d" % (S_WV, last_waves))
            a("s_cbranch_scc1 %s" % l)
        a("buffer_store_dwordx4 %s, v%d, s[%d:%d], s%d offen %s" % (vr(C_O + 4 * m, 4), C_R + 4 + m, S_OUT, S_OUT + 3, S_T0, OUTST))
        a.label(l)
assert all((p * 6554) >> 16 == p // 10 for p in range(1536))

def poll_oa(a, half_):
    a("v_lshrrev_b32 v7, 3, v%d" % V_LANE)
    a("v_and_b32 v8, 7, v%d" % V_LANE)
    a("v_lshlrev_b32 v7, 7, v7")
    a("v_lshl_add_u32 v7, v8, 2, v7")
    a("s_lshl_b32 s%d, s%d, 1" % (S_T0, S_R))
    a("s_add_u32 s%d, s%d, %d" % (S_T0, S_T0, half_))
    a("s_lshl_b32 s%d, s%d, 10" % (S_T0, S_T0))
    a("s_add_u32 s%d, s%d, %d" % (S_T0, S_T0, F_OA))
    poll(a, 7, S_T0, "-1", "-1")

S_JR = S_DB
def phase3A(a):
    p3_dma_setup(a)
    p3_setup(a)
    a("s_lshl_b32 s%d, s%d, 7" % (S_JR, S_R))
    a("s_barrier")
    stamp(a, "attn")
    a("s_add_u32 s%d, s%d, 0" % (S_U, S_WV))
    a("s_mul_i32 s%d, s%d, %d" % (S_OFF, S_WV, 32 * 1280))
    a("s_mul_i32 s%d, s%d, 5120" % (S_U, S_WV))
    for j in range(5):
        a("s_add_u32 m0, s%d, %d" % (S_U, j * 1024))
        a("s_mul_i32 s%d, s%d, %d" % (S_OFF, S_WV, 32 * 1280))
        a("buffer_load_dwordx4 v%d, s[%d:%d], s%d offen %s lds" % (C_DMA + j, S_WO, S_WO + 3, S_OFF, DML))
        if j == 1:
            a("s_waitcnt vmcnt(2)")
            oa_flag_off(a, S_T0, 1)
            publish(a, S_T0, None)
    p3_oloads(a, 0, S_JR, 0)
    wo_load(a, S_WO, first=8)
    a("s_waitcnt vmcnt(0)")
    a("s_barrier")
    stamp(a, "j0a")
    p3_mm(a, [0], lambda i: None)
    stamp(a, "j1a")
    p3_epilogue(a, 0, S_JR, 1)
    stamp(a, "j2a")

def phaseB(a):
    apply_phase(a)
    stamp(a, "kvld")
    p3_setup(a)
    a("s_waitcnt vmcnt(0)")
    a("s_barrier")
    a("s_lshl_b32 s%d, s%d, 3" % (S_T0, S_R))
    a("s_add_u32 s%d, s%d, s%d" % (S_T0, S_T0, S_G))
    a("s_lshl_b32 s%d, s%d, 7" % (S_T0, S_T0))
    a("s_add_u32 s%d, s%d, %d" % (S_T0, S_T0, F_OB))
    publish(a, S_T0, 0)
    stamp(a, "attn")
    a("v_lshlrev_b32 v7, 7, v%d" % V_LANE)
    a("s_lshl_b32 s%d, s%d, 10" % (S_T0, S_R))
    a("s_add_u32 s%d, s%d, %d" % (S_T0, S_T0, F_OB))
    poll(a, 7, S_T0, "0xff", "0")
    a("s_barrier")
    stamp(a, "j0b")
    a("s_lshl_b32 s%d, s%d, 7" % (S_JR, S_R))
    p3_oloads(a, 1, S_JR, 0)
    p3_oloads(a, 1, S_JR, 1)
    p3_mm(a, [0, 1], lambda i: 9 - i)
    stamp(a, "j1b")
    def refill(k):
        def f(a):
            l = a.newlabel("rf")
            a("s_cmp_eq_u32 s%d, 0" % S_WV)
            a("s_cbranch_scc1 %s" % l)
            a("s_add_u32 s%d, s%d, %d" % (S_U, S_WV, 7 * k + 63))
            a("s_sub_u32 s%d, s%d, 64" % (S_U, S_U))
            if k == 2:
                a("s_cmp_ge_u32 s%d, 20" % S_U)
                a("s_cbranch_scc1 %s" % l)
            a("s_mul_i32 s%d, s%d, %d" % (S_OFF, S_U, 32 * 1280))
            a("s_mul_i32 s%d, s%d, 5120" % (S_U, S_U))
            for j in range(5):
                a("s_add_u32 m0, s%d, %d" % (S_U, j * 1024))
                a("s_nop 0")
                a("buffer_load_dwordx4 v%d, s[%d:%d], s%d offen %s lds" % (C_DMA + j, S_WO, S_WO + 3, S_OFF, DML))
            a.label(l)
        return f
    if 'norefill' in OPT:
        p3_epilogue(a, 1, S_JR, 2)
        stamp(a, "j2b")
        a("s_barrier")
        wo_load(a, S_WO, skip0=True)
    else:
        p3_epilogue(a, 1, S_JR, 2, {0: refill(0), 1: refill(1), 2: refill(2)})
        stamp(a, "j2b")
    poll_oa(a, 1)
    a("s_waitcnt vmcnt(0)")
    a("s_barrier")
    stamp(a, "j0a")
    a("s_lshl_b32 s%d, s%d, 7" % (S_JR, S_R))
    a("s_add_u32 s%d, s%d, 64" % (S_JR, S_JR))
    p3_oloads(a, 0, S_JR, 0)
    p3_mm(a, [0], lambda i: 9 - i)
    stamp(a, "j1a")
    p3_epilogue(a, 0, S_JR, 1)
    stamp(a, "j2a")

def epoch_update(a):
    l = a.newlabel("ep")
    a("s_cmp_eq_u32 s2, 0")
    a("s_cbranch_scc0 %s" % l)
    a("v_lshlrev_b32 v7, 7, v%d" % V_LANE)
    for k in range(4):
        a("s_mov_b32 s%d, %d" % (S_T0, F_KV + k * 64 * 128))
        poll(a, 7, S_T0, "-1", "-1")
    a("s_mov_b32 s%d, %d" % (S_T0, WS_FLAG))
    publish(a, S_T0, 0)
    a.label(l)

HEADER = """; sliding-window attention block + linear attention block, one fused launch (generated by gen3.py)
"""
def build():
    out = [HEADER, "; @launch grid=(256,1,1) block=(512,1,1) lds=163840\n"]
    out.append('.amdgcn_target "amdgcn-amd-amdhsa--gfx950"\n.text\n')
    a = Asm()
    stubs = []
    entry(a)
    phase1(a)
    if 'p1only' in OPT: a("s_branch L_fin2")
    lb = a.newlabel("brB")
    a("s_cmp_eq_u32 s%d, 0" % S_BR)
    a("s_cbranch_scc0 %s" % lb)
    phase2A(a, stubs)
    phase3A(a)
    a("s_branch L_fin")
    emit_stubs(a, stubs)
    a.label(lb)
    phaseB(a)
    a.label("L_fin")
    epoch_update(a)
    a.label("L_fin2")
    stamp(a, "end")
    if STAMPS: a("s_waitcnt vmcnt(0)")
    stamp_store(a)
    a.label("L_end"); a("s_endpgm")
    a.label("L_codeend")
    out.append(".globl %s\n.p2align 8\n.type %s,@function\n%s:\n" % (NAME, NAME, NAME) + a.text())
    if 'nocodepf' not in OPT:
        out.append(".set CODE_TOTAL, L_codeend - L_pcbase\n.set CODE_CHUNK, ((CODE_TOTAL / 8 + 127) / 128) * 128\n.set CODE_LAST, CODE_TOTAL - 4\n")
    out.append('.section .rodata,"a"\n.p2align 6\n')
    out.append((".amdhsa_kernel %s\n  .amdhsa_next_free_vgpr 256\n  .amdhsa_next_free_sgpr 102\n  .amdhsa_accum_offset 256\n"
                "  .amdhsa_group_segment_fixed_size 0\n  .amdhsa_kernarg_size 72\n  .amdhsa_user_sgpr_count 2\n"
                "  .amdhsa_user_sgpr_kernarg_segment_ptr 1\n  .amdhsa_system_sgpr_workgroup_id_x 1\n.end_amdhsa_kernel\n") % NAME)
    return "".join(out)

if __name__ == "__main__":
    OPT = set(sys.argv[2:])
    for x in sys.argv:
        if x.startswith("st="):
            STAMPS = True
            STMAP = {n: i for i, n in enumerate(x[3:].split(","))}
    for x in OPT:
        if x.startswith('sch='): SCHED = x[4:]
        if x.startswith('pub0at='): PUB0_AT = int(x[7:])
        if x.startswith('wsb='): WS_BASE = int(x[4:]) << 20
        if x.startswith('outst='): OUTST = x[6:].replace('+', ' ')
    if 'pfnt' in OPT: PFL = "nt"
    if 'dmant' in OPT: DML = "nt"
    if 'p1only' in OPT: S_ST = 84
    open(sys.argv[1], "w").write(build())
```
